```python
import torch

def _softmax(x, axis=-1):
    return torch.softmax(x, dim=axis)
def _gelu(x):
    return torch.nn.functional.gelu(x, approximate="tanh")
def _silu(x):
    return torch.nn.functional.silu(x)
def _sigmoid(x):
    return torch.sigmoid(x)
def _layernorm(x, axis=-1, eps=1e-5):
    m = x.mean(dim=axis, keepdim=True)
    v = x.var(dim=axis, keepdim=True, unbiased=False)
    return (x - m) / torch.sqrt(v + eps)
def _scatter_add(tgt, idx, src, axis=0):
    return tgt.clone().index_add_(axis, idx, src)
def _segment_sum(src, seg, n):
    out = torch.zeros((n,) + src.shape[1:], dtype=src.dtype)
    return out.index_add_(0, seg, src)
def _pad(x, pw):
    flat = tuple(v for pair in reversed(pw) for v in pair)
    return torch.nn.functional.pad(x, flat)

kernel_name = 'standalone__gqa_block_cached__near_ridge'

def setup_inputs():

    _w = (lambda a: (lambda t: t.to(torch.bfloat16) if t.is_floating_point() else t)(torch.as_tensor(a)))
    B, Sq, D = 8, 192, 640
    Hq, Hkv, Sk, Dh = 32, 32, 1024, 192
    assert Hq % Hkv == 0, (Hq, Hkv)
    return {
        "x": _w((lambda *s: torch.randn(*s, dtype=torch.bfloat16) * 0.8)(B, Sq, D)),
        "k_cache": _w((lambda *s: torch.randn(*s, dtype=torch.bfloat16) * 0.8)(B, Hkv, Sk, Dh)),
        "v_cache": _w((lambda *s: torch.randn(*s, dtype=torch.bfloat16) * 0.05)(B, Hkv, Sk, Dh)),
        "wq": _w((lambda *s: torch.randn(*s, dtype=torch.bfloat16) * 0.8)(D, Hq * Dh) * (D ** -0.5)),
        "wo": _w((lambda *s: torch.randn(*s, dtype=torch.bfloat16) * 0.05)(Hq * Dh, D) * ((Hq * Dh) ** -0.5)),
    }

def reference(x, k_cache, v_cache, wq, wo):
    B, Sq, D = x.shape
    Hq, Dh = 32, 192
    Hkv = k_cache.shape[1]
    rep = Hq // Hkv
    q = (lambda x, *d: x.permute(*d))((x @ wq).reshape(B, Sq, Hq, Dh), 0, 2, 1, 3)
    k = (lambda x, n, axis: torch.repeat_interleave(x, n, dim=axis))(k_cache, rep, axis=1)
    v = (lambda x, n, axis: torch.repeat_interleave(x, n, dim=axis))(v_cache, rep, axis=1)
    scores = torch.einsum("bhqd,bhkd->bhqk", q, k) * (Dh ** -0.5)
    p = _softmax(scores, axis=-1)
    o = torch.einsum("bhqk,bhkd->bhqd", p, v)
    return (lambda x, *d: x.permute(*d))(o, 0, 2, 1, 3).reshape(B, Sq, Hq * Dh) @ wo
```

```python
class Asm:
    def __init__(self):
        self.lines = []
        self.uid = 0
    def __call__(self, s=""):
        for l in s.split("\n"):
            self.lines.append(l)
    def label(self, name):
        self.lines.append(name + ":")
    def newlabel(self, p="L"):
        self.uid += 1
        return f"{p}_{self.uid}"
    def text(self):
        return "\n".join(self.lines) + "\n"

HDR = """.amdgcn_target "amdgcn-amd-amdhsa--gfx950"
.text
"""

def kernel_begin(a, name):
    a(f".globl {name}")
    a(".p2align 8")
    a(f".type {name},@function")
    a(f"{name}:")

def kernel_desc(name, vgpr=256, accum=256, sgpr=102):
    return f""".amdhsa_kernel {name}
  .amdhsa_next_free_vgpr {vgpr}
  .amdhsa_next_free_sgpr {sgpr}
  .amdhsa_accum_offset {accum}
  .amdhsa_group_segment_fixed_size 0
  .amdhsa_kernarg_size 64
  .amdhsa_user_sgpr_count 2
  .amdhsa_user_sgpr_kernarg_segment_ptr 1
  .amdhsa_system_sgpr_workgroup_id_x 1
.end_amdhsa_kernel
"""

def srd(a, d, base, nbytes):
    a(f"s_mov_b32 s{d}, s{base}")
    a(f"s_and_b32 s{d+1}, s{base+1}, 0xffff")
    a(f"s_mov_b32 s{d+2}, {nbytes}")
    a(f"s_mov_b32 s{d+3}, 0x00020000")
```

```python
import re, copy

_rng = re.compile(r'^(-|abs\()?([vas])(?:\[(\d+):(\d+)\]|(\d+))\)?$')
def regs_of(tok):
    tok = tok.strip()
    m = _rng.match(tok)
    if not m:
        if tok in ('vcc', 'exec', 'm0', 'scc'):
            return [(tok, 0)]
        if tok in ('vcc_lo', 'vcc_hi'): return [('vcc', 0)]
        return []
    k = m.group(2)
    if m.group(5) is not None:
        return [(k, int(m.group(5)))]
    return [(k, i) for i in range(int(m.group(3)), int(m.group(4)) + 1)]

TRANS = ('v_exp_f32', 'v_log_f32', 'v_rcp_f32', 'v_rsq_f32', 'v_sqrt_f32', 'v_sin_f32', 'v_cos_f32')

class I:
    def __init__(self, text, tag=None):
        self.text = text.strip()
        self.tag = tag
        t = self.text.split(';')[0].strip()
        self.is_label = t.endswith(':')
        self.kind = None
        self.dst = []; self.src = []; self.srcC = []; self.srcAB = []; self.data = []
        self.wide_store = False
        if not t or self.is_label or t.startswith('.'):
            self.kind = 'none'; self.op = ''
            return
        sp = t.split(None, 1)
        op = sp[0]; self.op = op
        rest = sp[1] if len(sp) > 1 else ''
        ops = [o.strip() for o in rest.split(',')] if rest else []
        mods = ''
        if ops:
            l = ops[-1].split()
            ops[-1] = l[0] if l else ''
            mods = ' '.join(l[1:])
        self.mods = mods
        R = regs_of
        if op.startswith('v_mfma'):
            self.kind = 'mfma'
            self.dst = R(ops[0]); self.srcAB = R(ops[1]) + R(ops[2]); self.srcC = R(ops[3])
            self.src = self.srcAB + self.srcC
            self.passes = 4 if '16x16x32' in op else 8
        elif op.startswith('ds_read') or op.startswith('ds_bpermute'):
            self.kind = 'ds'; self.dst = R(ops[0]); self.src = sum((R(o) for o in ops[1:]), [])
        elif op.startswith('ds_write'):
            self.kind = 'ds'; self.src = sum((R(o) for o in ops), [])
        elif op.startswith('buffer_load') or op.startswith('global_load'):
            self.kind = 'vmem'
            if 'lds' in mods.split() or '_lds_' in op:
                self.src = sum((R(o) for o in ops), []) + [('m0', 0)]
                self.dma = True
            else:
                self.dst = R(ops[0]); self.src = sum((R(o) for o in ops[1:]), [])
        elif op.startswith('buffer_store') or op.startswith('buffer_atomic'):
            self.kind = 'vmem'; self.src = sum((R(o) for o in ops), [])
            self.data = R(ops[0])
            if op.startswith('buffer_atomic') and 'sc0' in mods.split():
                self.dst = R(ops[0])
            self.wide_store = len(self.data) >= 3
        elif op.startswith('global_store') or op.startswith('global_atomic'):
            self.kind = 'vmem'; self.src = sum((R(o) for o in ops), [])
            self.data = R(ops[1]); self.wide_store = len(self.data) >= 3
        elif op in ('buffer_wbl2', 'buffer_inv'):
            self.kind = 'vmem'
        elif op.startswith('v_'):
            self.kind = 'valu'
            base = op.replace('_e32', '').replace('_e64', '')
            self.trans = base in TRANS
            if base.startswith('v_permlane'):
                self.dst = R(ops[0]) + R(ops[1]); self.src = list(self.dst); self.permlane = True
            elif base.startswith('v_add_co') or base.startswith('v_addc_co') or base.startswith('v_sub_co'):
                self.dst = R(ops[0]) + R(ops[1]); self.src = sum((R(o) for o in ops[2:]), [])
            elif base == 'v_nop':
                pass
            else:
                self.dst = R(ops[0]); self.src = sum((R(o) for o in ops[1:]), [])
                if base.startswith('v_fmac') or base.startswith('v_writelane'): self.src += self.dst
            self.rdlane = base.startswith('v_readfirstlane') or base.startswith('v_readlane')
        elif op.startswith('s_load') or op in ('s_memtime', 's_memrealtime'):
            self.kind = 'smem'; self.dst = R(ops[0]); self.src = sum((R(o) for o in ops[1:]), [])
        elif op == 's_nop':
            self.kind = 'nop'; self.n = int(ops[0], 0) + 1
        elif op == 's_waitcnt':
            self.kind = 'wait'
            m = re.search(r'vmcnt\((\d+)\)', t); self.vm = int(m.group(1)) if m else None
            m = re.search(r'lgkmcnt\((\d+)\)', t); self.lg = int(m.group(1)) if m else None
        elif op == 'WAITVM':
            self.kind = 'waitvm'; self.wtag = rest.strip()
        elif op.startswith('s_'):
            self.kind = 'salu'
            if op.startswith('s_cmp') or op.startswith('s_cbranch') or op in ('s_branch', 's_barrier', 's_endpgm', 's_setprio', 's_sleep'):
                self.src = sum((R(o) for o in ops), [])
            else:
                self.dst = R(ops[0]); self.src = sum((R(o) for o in ops[1:]), [])
        else:
            raise ValueError("unknown instr: " + t)

class State:
    def __init__(self):
        self.hist = []
        self.lds = []
        self.vm = []
        self.smem = set()
    def clone(self):
        s = State(); s.hist = [[i, d] for i, d in self.hist]; s.lds = list(self.lds); s.vm = list(self.vm); s.smem = set(self.smem)
        return s
    def advance(self, n):
        for h in self.hist: h[1] += n
        self.hist = [h for h in self.hist if h[1] < 24]

def need_ws(p, c):
    n = 0
    pd = set(p.dst)
    cs = set(c.src); cd = set(c.dst)
    if p.kind == 'valu':
        pv = {r for r in pd if r[0] in 'va'}
        ps = {r for r in pd if r[0] in ('s', 'vcc')}
        if c.kind == 'mfma' and pv & cs: n = max(n, 2)
        if c.kind == 'valu':
            if getattr(c, 'permlane', False) and pv & cs: n = max(n, 2)
            if c.rdlane and pv & cs: n = max(n, 1)
            if p.trans and pv & cs: n = max(n, 1)
            if ps & cs: n = max(n, 2)
            if ('vcc', 0) in ps and c.op.startswith('v_cndmask'): n = max(n, 2)
        if c.kind == 'vmem' and ps & cs: n = max(n, 5)
        if c.kind in ('salu',) and ps & cs: n = max(n, 1)
    elif p.kind == 'mfma':
        P = p.passes
        if c.kind == 'mfma':
            if pd & set(c.srcAB): n = max(n, {4: 8, 8: 12}[P])
            if pd & set(c.srcC):
                if not (c.srcC == p.dst and c.passes == P): n = max(n, {4: 6, 8: 10}[P])
            elif pd & cd: n = max(n, {4: 6, 8: 10}[P])
        elif c.kind in ('valu', 'vmem', 'ds'):
            if pd & (cs | cd): n = max(n, {4: 8, 8: 12}[P])
            if c.kind == 'valu' and set(p.srcC) & cd: n = max(n, {4: 3, 8: 7}[P])
    elif p.kind == 'salu':
        if ('m0', 0) in pd and c.kind == 'vmem' and ('m0', 0) in cs: n = max(n, 1)
    elif p.kind == 'vmem':
        if p.wide_store and set(p.data) & cd: n = max(n, 2)
    return n

def analyze(instrs, st):
    out = []
    for ins in instrs:
        lg = None; vm = None; nops = 0
        k = ins.kind
        if k == 'none':
            out.append((None, None, 0)); continue
        if k == 'waitvm':
            idx = [i for i, (d, t) in enumerate(st.vm) if t == ins.wtag]
            if idx:
                vm = len(st.vm) - 1 - idx[-1]
                st.vm = st.vm[idx[-1] + 1:]
                st.advance(1)
            out.append((None, vm, 0)); continue
        if k == 'wait':
            if ins.lg is not None:
                if ins.lg == 0: st.smem = set()
                if len(st.lds) > ins.lg: st.lds = st.lds[len(st.lds) - ins.lg:] if ins.lg else []
            if ins.vm is not None and len(st.vm) > ins.vm:
                st.vm = st.vm[len(st.vm) - ins.vm:] if ins.vm else []
            st.advance(1)
            out.append((None, None, 0)); continue
        if k == 'nop':
            st.advance(ins.n); out.append((None, None, 0)); continue
        touch = set(ins.src) | set(ins.dst)
        if st.smem & touch:
            lg = 0
        idx = [i for i, d in enumerate(st.lds) if d & touch]
        if idx:
            n = len(st.lds) - 1 - idx[-1]
            if st.smem: n = 0
            lg = n if lg is None else min(lg, n)
        if lg is not None:
            lg = min(lg, 15)
            st.lds = st.lds[len(st.lds) - lg:] if lg else []
            if lg == 0: st.smem = set()
        idx = [i for i, (d, t) in enumerate(st.vm) if d & touch and not (k == 'vmem' and d == set(ins.dst) and t == 'dummy')]
        if idx:
            vm = min(len(st.vm) - 1 - idx[-1], 63)
            st.vm = st.vm[len(st.vm) - vm:] if vm else []
        if lg is not None or vm is not None:
            st.advance(1)
        for p, d in st.hist:
            nops = max(nops, need_ws(p, ins) - d)
        if nops > 0: st.advance(nops)
        st.advance(1)
        st.hist.append([ins, 0])
        if k == 'ds': st.lds.append(set(ins.dst))
        if k == 'vmem': st.vm.append((set(ins.dst), ins.tag))
        if k == 'smem': st.smem |= set(ins.dst)
        out.append((lg, vm, nops))
    return out

def render(instrs, ann):
    lines = []
    for ins, (lg, vm, nops) in zip(instrs, ann):
        w = []
        if vm is not None: w.append(f"vmcnt({min(vm,63)})")
        if lg is not None: w.append(f"lgkmcnt({lg})")
        if w: lines.append("s_waitcnt " + " ".join(w))
        while nops > 0:
            n = min(nops, 16); lines.append(f"s_nop {n-1}"); nops -= n
        if ins.kind != 'waitvm':
            lines.append(ins.text)
    return lines

def mn(a, b):
    if a is None: return b
    if b is None: return a
    return min(a, b)

class Prog:
    def __init__(self):
        self.lines = []
        self.st = State()
        self.cur = []
        self.uid = 0
    def __call__(self, s, tag=None):
        for l in s.split("\n"):
            if l.strip(): self.cur.append(I(l, tag))
    def add(self, ins): self.cur.append(ins)
    def flush(self):
        ann = analyze(self.cur, self.st)
        self.lines += render(self.cur, ann)
        self.cur = []
    def raw(self, s):
        self.flush(); self.lines += s.split("\n")
    def reset_state(self):
        self.flush(); self.st = State()
    def loop(self, body):
        self.flush()
        s1 = self.st.clone(); a1 = analyze(body, s1)
        s2 = s1.clone(); a2 = analyze(body, s2)
        s3 = s2.clone(); a3 = analyze(body, s3)
        ann = [(mn(mn(x[0], y[0]), z[0]), mn(mn(x[1], y[1]), z[1]), max(x[2], y[2], z[2])) for x, y, z in zip(a1, a2, a3)]
        self.lines += render(body, ann)
        self.st = s3
    def newlabel(self, p="L"):
        self.uid += 1; return f"{p}_{self.uid}"
    def text(self):
        self.flush(); return "\n".join(self.lines) + "\n"

def L(s, tag=None):
    return [I(l, tag) for l in s.split("\n") if l.strip()]

def interleave(mf, fill, lead=0):
    out = []
    tot = sum(c for c, _ in fill)
    n = len(mf)
    acc = 0.0; fi = 0
    for k, m in enumerate(mf):
        out += m
        target = tot * (k + 1) / n
        while fi < len(fill) and acc + fill[fi][0] * 0.5 <= target:
            out += fill[fi][1]; acc += fill[fi][0]; fi += 1
    while fi < len(fill):
        out += fill[fi][1]; fi += 1
    return out
```

```python
import sys, math, struct
from sched import *
from asmlib import kernel_desc

NAME = "standalone__gqa_block_cached__near_ridge"
SLOT = 12288
STAMP = False
NT = "nt"
NTW = "nt"
OEX_OFF = 0
PART_OFF = 20 << 20
STAMP_OFF = 64 << 20

def f32(x): return "0x%08x" % struct.unpack("<I", struct.pack("<f", x))[0]
def vr(b, n=4): return f"v[{b}:{b+n-1}]"
def ar(b, n=4): return f"a[{b}:{b+n-1}]"
MF = "v_mfma_f32_16x16x32_bf16"

def srd(p, d, lo, hi, nbytes):
    p(f"s_mov_b32 s{d}, s{lo}\ns_and_b32 s{d+1}, s{hi}, 0xffff\ns_mov_b32 s{d+2}, {nbytes}\ns_mov_b32 s{d+3}, 0x00020000")

sK, sV, sWq, sX, sO, sT = 8, 12, 16, 20, 24, 28
sWAVE, sB, sH, sHG, sHL = 32, 33, 34, 35, 36
sM0W = 37
sKOFF, sVOFF = 38, 39
sKSL, sVSL = 40, 41
sKRD, sVRD = 42, 43
sCNT = 44
sTMP = 46
sSTAMP = 60
def stamp(p, i):
    if STAMP: p(f"s_memrealtime s[{sSTAMP+2*i}:{sSTAMP+2*i+1}]")

def decode(p, end):
    p(f"""
s_cmp_ge_u32 s2, 256
s_cbranch_scc1 {end}""")
    stamp(p, 0)
    p(f"""
s_load_dwordx8 s[76:83], s[0:1], 0
s_load_dwordx8 s[84:91], s[0:1], 32
v_lshrrev_b32 v1, 6, v0
v_and_b32 v0, 63, v0
v_readfirstlane_b32 s{sWAVE}, v1
s_and_b32 s{sHG}, s2, 3
s_bfe_u32 s{sB}, s2, 0x10002
s_lshl_b32 s{sB}, s{sB}, 2
s_lshr_b32 s{sTMP}, s2, 6
s_add_u32 s{sB}, s{sB}, s{sTMP}
s_bfe_u32 s{sHL}, s2, 0x30003
s_lshl_b32 s{sH}, s{sHG}, 3
s_add_u32 s{sH}, s{sH}, s{sHL}
s_mul_i32 s{sM0W}, s{sWAVE}, 3072
""")

def addptr(p, lo, sreg):
    p(f"s_add_u32 s{lo}, s{lo}, s{sreg}\ns_addc_u32 s{lo+1}, s{lo+1}, 0")

def store_stamps(p, kidx, n):
    if not STAMP: return
    p(f"s_add_u32 s92, s90, {STAMP_OFF + kidx*65536}\ns_addc_u32 s93, s91, 0")
    srd(p, sT, 92, 93, 65536)
    lab = p.newlabel("L_nost")
    p("s_waitcnt lgkmcnt(0)")
    p(f"s_cmp_lg_u32 s{sWAVE}, 0\ns_cbranch_scc1 {lab}")
    p(f"s_lshl_b32 s{sTMP}, s2, 7\nv_mov_b32 v2, s{sTMP}")
    p("v_cmp_eq_u32 vcc, 0, v0\ns_and_saveexec_b64 s[94:95], vcc")
    for i in range(n):
        p(f"v_mov_b32 v4, s{sSTAMP+2*i}\nv_mov_b32 v5, s{sSTAMP+2*i+1}")
        p(f"buffer_store_dwordx2 v[4:5], v2, s[{sT}:{sT+3}], 0 offen offset:{8*i}")
        p("s_nop 1")
    p("s_waitcnt vmcnt(0)")
    p(f"{lab}:")

vKD, vVD, vWD = 2, 5, 8
vXD = 11
vKL, vVL = 17, 19
vKA, vVA = 23, 25
vXR = 29
vT0 = 31
vACC = 32
vQ = 176
vS = (32, 56); vP = (80, 92); vNM = 104; vONE = 116; vE = 120; vCK = 128; vR = 132
aO = 0; aL = 144; aPOOL = 192; NPOOL = 8
aX = 0
def qfrag(qb, s): return vQ + (qb * 6 + s) * 4
def oacc(db, qb): return aO + (db * 3 + qb) * 4
def sreg(buf, qb, kb): return vS[buf] + (qb * 2 + kb) * 4

def k1_setup(p):
    t = 240
    p(f"""
v_lshrrev_b32 v{t}, 3, v0
v_and_b32 v{t+1}, 7, v0
s_lshl_b32 s{sTMP}, s{sWAVE}, 3
""")
    for j in range(3):
        p(f"""
v_add_u32 v{t+2}, {8*j}, v{t}
v_mul_u32_u24 v{t+3}, 11, v{t+2}
v_lshrrev_b32 v{t+3}, 5, v{t+3}
v_mul_u32_u24 v{t+4}, 3, v{t+3}
v_sub_u32 v{t+4}, v{t+2}, v{t+4}
v_add_u32 v{t+3}, s{sTMP}, v{t+3}
""")
        p(f"""
v_bfe_u32 v{t+5}, v{t+3}, 2, 1
v_and_b32 v{t+6}, 2, v{t+3}
v_or_b32 v{t+5}, v{t+5}, v{t+6}
v_lshrrev_b32 v{t+6}, 1, v{t+3}
v_and_b32 v{t+6}, 4, v{t+6}
v_or_b32 v{t+5}, v{t+5}, v{t+6}
v_xor_b32 v{t+5}, v{t+5}, v{t+1}
v_lshlrev_b32 v{t+5}, 4, v{t+5}
v_lshl_add_u32 v{t+5}, v{t}, 7, v{t+5}
v_add_u32 v{vKD+j}, s{sM0W}, v{t+5}
""")
        p(f"""
v_and_b32 v{t+5}, 6, v{t+3}
v_xor_b32 v{t+5}, v{t+5}, v{t+1}
v_lshlrev_b32 v{t+5}, 4, v{t+5}
v_lshl_add_u32 v{t+6}, v{t}, 7, v{t+5}
v_add_u32 v{vVD+j}, s{sM0W}, v{t+6}
""")
        p(f"""
v_bfe_u32 v{t+6}, v{t+3}, 2, 2
v_lshlrev_b32 v{t+6}, 3, v{t+6}
v_lshrrev_b32 v{t+7}, 4, v{t+3}
v_lshl_add_u32 v{t+6}, v{t+7}, 2, v{t+6}
v_and_b32 v{t+7}, 3, v{t+3}
v_add_u32 v{t+6}, v{t+6}, v{t+7}
v_mul_u32_u24 v{t+6}, 12288, v{t+6}
v_lshl_add_u32 v{t+6}, v{t+4}, 7, v{t+6}
v_add_u32 v{t+6}, v{t+6}, v{t+5}
v_subrev_u32 v{vWD+j}, {1024*j}, v{t+6}
""")
    for half in range(2):
        p(f"""
v_lshrrev_b32 v{t+2}, 1, v{t}
v_add_u32 v{t+2}, {4*half}, v{t+2}
v_xor_b32 v{t+2}, v{t+2}, v{t+1}
v_lshlrev_b32 v{t+2}, 4, v{t+2}
v_add_u32 v{t+3}, {8*half}, v{t}
v_mul_u32_u24 v{t+3}, 1280, v{t+3}
v_add_u32 v{vXD+half}, v{t+2}, v{t+3}
v_add_u32 v{vXD+2+half}, {20480-1024}, v{vXD+half}
v_add_u32 v{vXD+4+half}, {2*(20480-1024)}, v{vXD+half}
""")

def k1_setup_reads(p):
    t = 240
    p(f"""
v_and_b32 v{t}, 15, v0
v_lshrrev_b32 v{t+1}, 4, v0
""")
    p(f"""
v_lshrrev_b32 v{t+2}, 1, v{t}
v_xor_b32 v{t+2}, v{t+2}, v{t+1}
v_lshlrev_b32 v{t+2}, 4, v{t+2}
v_and_b32 v{t+3}, 7, v{t}
v_lshl_add_u32 v{t+2}, v{t+3}, 7, v{t+2}
v_lshrrev_b32 v{t+3}, 3, v{t}
v_mul_u32_u24 v{t+3}, 12288, v{t+3}
v_add3_u32 v{t+2}, v{t+2}, v{t+3}, s{sM0W}
v_add_u32 v{vXR}, {7*SLOT}, v{t+2}
v_xor_b32 v{vXR+1}, 64, v{vXR}
""")
    p(f"""
v_lshrrev_b32 v{t+2}, 1, v{t}
v_xor_b32 v{t+2}, v{t+2}, v{t+1}
v_bfe_u32 v{t+3}, v{t+2}, 1, 1
v_and_b32 v{t+4}, 1, v{t+2}
v_lshl_add_u32 v{t+3}, v{t+4}, 1, v{t+3}
v_and_b32 v{t+4}, 4, v{t+2}
v_or_b32 v{t+3}, v{t+3}, v{t+4}
v_lshlrev_b32 v{t+3}, 4, v{t+3}
v_mul_u32_u24 v{t+4}, 384, v{t}
v_add_u32 v{vKL}, v{t+3}, v{t+4}
v_xor_b32 v{vKL+1}, 64, v{vKL}
""")
    p(f"""
v_lshrrev_b32 v{t+2}, 2, v0
v_mul_u32_u24 v{t+3}, 384, v{t+2}
v_bfe_u32 v{t+4}, v{t+2}, 1, 2
v_lshl_add_u32 v{t+3}, v{t+4}, 5, v{t+3}
v_and_b32 v{t+4}, 3, v0
v_lshl_add_u32 v{vVL}, v{t+4}, 3, v{t+3}
v_xor_b32 v{vVL+1}, 32, v{vVL}
v_xor_b32 v{vVL+2}, 64, v{vVL}
v_xor_b32 v{vVL+3}, 96, v{vVL}
""")

def dma_tile(kind, slot_expr, soff, tag=None):
    vd, sr, pol = {'K': (vKD, sK, NT), 'V': (vVD, sV, NT), 'W': (vWD, sWq, NTW)}[kind]
    g = []
    pre = []
    if isinstance(slot_expr, int):
        pre.append(f"s_add_u32 m0, s{sM0W}, {slot_expr*SLOT}")
    else:
        pre.append(f"s_mov_b32 m0, {slot_expr}")
    if isinstance(soff, int):
        pre.append(f"s_mov_b32 s{sTMP+1}, {soff}"); so = f"s{sTMP+1}"
    else:
        so = soff
    for j in range(3):
        ins = L("\n".join(pre)) if j == 0 else []
        ins += L(f"buffer_load_dwordx4 v{vd+j}, s[{sr}:{sr+3}], {so} offen offset:{1024*j} {pol} lds", tag)
        g.append(ins)
    return g

XPAIR = {1: 7, 2: 9, 0: 11}
def dma_x(c):
    g = []
    base = XPAIR[c % 3]
    for half in range(2):
        for qb in range(3):
            pre = []
            if qb == 0:
                pre.append(f"s_add_u32 m0, s{sM0W}, {(base+half)*SLOT}")
                pre.append(f"s_mov_b32 s{sTMP+1}, {c*128}")
            g.append(L("\n".join(pre)) + L(f"buffer_load_dwordx4 v{vXD+2*qb+half}, s[{sX}:{sX+3}], s{sTMP+1} offen offset:{1024*qb} {NTW} lds", f"X{c}"))
    return g
def xfrag(c, ks, qb): return aX + (c % 8) * 24 + (ks * 3 + qb) * 4
def read_x(c):
    off = (XPAIR[c % 3] - 7) * SLOT
    g = []
    for ks in range(2):
        for qb in range(3):
            g.append(L(f"ds_read_b128 {ar(xfrag(c,ks,qb))}, v{vXR+ks} offset:{off + qb*1024}"))
    return g

WSLOT = {}
for u, s in zip(range(7, 20), [0, 2, 1, 4, 3, 6, 5, 8, 7, 10, 9, 11, 12]): WSLOT[u] = s
for u in range(7): WSLOT[u] = WSLOT[u + 7]
KVORDER = [('K', 0), ('K', 1), ('V', 0), ('K', 2), ('V', 1), ('K', 3), ('V', 2), ('K', 4), ('V', 3), ('K', 5), ('V', 4)]
def kvslot(kind, i): return 2 * (i % 6) + (kind == 'V')

class Pool:
    def __init__(self): self.n = 0
    def next(self):
        r = aPOOL + 4 * (self.n % NPOOL); self.n += 1; return r

def vunit_reads(buf, db, base_imm=0):
    return L(f"ds_read_b64_tr_b16 {ar(buf,2)}, v{vVA+(db&3)} offset:{base_imm + (db>>2)*128}\n"
             f"ds_read_b64_tr_b16 {ar(buf+2,2)}, v{vVA+(db&3)} offset:{base_imm + (db>>2)*128 + 6144}")
def kunit_reads(buf, kb, ds):
    return L(f"ds_read_b128 {ar(buf)}, v{vKA+(ds&1)} offset:{kb*6144 + (ds>>1)*128}")

def set_vaddr_imm(slot):
    return [L(f"v_add_u32 v{vVA+u}, {slot*SLOT}, v{vVL+u}") for u in range(4)]
def set_kaddr_imm(slot):
    return [L(f"v_add_u32 v{vKA+u}, {slot*SLOT}, v{vKL+u}") for u in range(2)]

T = 3
def span(tail, units, fills, rlead=2, keep=None):
    seq = [dict(reads=None, mf=m) for m in tail] + units
    nt = len(tail)
    rd_units = [u for u in units if u['reads']]
    if keep is None: keep = T
    npos = len(seq) - keep
    slots = []
    pos_first = []
    ri = 0
    upos = {id(u): i for i, u in enumerate(seq)}
    rq = [(max(0, upos[id(u)] - (T + rlead)), u) for u in rd_units]
    for pos in range(npos):
        pos_first.append(len(slots))
        rds = []
        while ri < len(rq) and rq[ri][0] <= pos:
            rds += rq[ri][1].get('pre', []) + rq[ri][1]['reads']; ri += 1
        mf = seq[pos]['mf']
        per = [[] for _ in mf]
        if pos == 0:
            pre0 = rds; rds = []
        for k, r in enumerate(rds): per[min(k * len(mf) // max(len(rds), 1), len(mf) - 1)].append(r)
        for k, m in enumerate(mf):
            s = ([] if not (pos == 0 and k == 0) else list(pre0)) + (seq[pos].get('head', []) if k == 0 else []) + [m] + per[k]
            slots.append(s)
    assert ri == len(rq), (ri, len(rq))
    pos_first.append(len(slots))
    for (a, b, fl) in fills:
        b = min(b, npos)
        lo, hi = pos_first[a], pos_first[b]
        used = [len(slots[k]) - 1 for k in range(lo, hi)]
        tot = sum(c for c, _ in fl) + sum(used)
        n = hi - lo
        acc = 0.0; fi = 0
        for k in range(n):
            acc += used[k]
            target = tot * (k + 1) / n
            while fi < len(fl) and acc + fl[fi][0] * 0.5 <= target:
                slots[lo + k] += fl[fi][1]; acc += fl[fi][0]; fi += 1
        while fi < len(fl):
            slots[hi - 1] += fl[fi][1]; fi += 1
    out = [i for s in slots for i in s]
    return out, [u['mf'] for u in seq[npos:]]

def cost1(groups): return [(len(g), g) for g in groups]

XREAD = {1: 0, 2: 1, 3: 2, 4: 3, 5: 4, 6: 5, 7: 6, 8: 7, 9: 8}

def qproj(p, pool):
    order = [('X', 0), ('W', 0), ('W', 1), ('X', 1), ('W', 2), ('W', 3), ('X', 2), ('W', 4), ('W', 5), ('W', 6)]
    for k, i in order:
        gs = dma_x(i) if k == 'X' else dma_tile('W', WSLOT[i], i * 32 * 12288, f"W{i}")
        for g in gs: p.cur += g
    k1_setup_reads(p)
    p("WAITVM X0")
    for g in read_x(0): p.cur += g
    p("s_waitcnt lgkmcnt(0)")
    for g in dma_x(3): p.cur += g
    tail = []
    kvq = list(KVORDER)
    for u in range(20):
        c, ks = u >> 1, u & 1
        p(f"WAITVM W{u}")
        p("s_waitcnt lgkmcnt(0)\ns_barrier")
        for g in set_vaddr_imm(WSLOT[u]): p.cur += g
        units = []
        for db in range(12):
            buf = pool.next()
            mf = []
            for qb in range(3):
                d = vACC + (db * 3 + qb) * 4
                mf.append(I(f"{MF} {vr(d)}, {ar(buf)}, {ar(xfrag(c,ks,qb))}, {vr(d) if u else 0}"))
            units.append(dict(reads=vunit_reads(buf, db), mf=mf))
        f1 = []
        if 1 <= u <= 7:
            f1 += dma_tile('W', WSLOT[u + 6], (u + 6) * 32 * 12288, f"W{u+6}")
        elif u >= 8 and kvq:
            k, i = kvq.pop(0)
            assert kvslot(k, i) == WSLOT[u - 1]
            f1 += dma_tile(k, kvslot(k, i), i * SLOT, f"{k}{i}")
        fills = [(0, 4, cost1(f1))]
        for cc, st in XREAD.items():
            if st == u:
                rd = read_x(cc)
                rd[0] = [I(f"WAITVM X{cc}")] + rd[0]
                fills.append((4, 7, cost1(rd)))
                if cc + 3 <= 9:
                    nx = dma_x(cc + 3)
                else:
                    w0 = 14 + 2 * (cc - 7)
                    nx = dma_tile('W', WSLOT[w0], w0 * 32 * 12288, f"W{w0}") + dma_tile('W', WSLOT[w0 + 1], (w0 + 1) * 32 * 12288, f"W{w0+1}")
                last = xfrag(cc, 1, 2)
                nx[0] = L(f"v_accvgpr_read_b32 v{vT0}, a{last}") + nx[0]
                fills.append((9, 12, cost1(nx)))
        ins, tail = span(tail, units, fills)
        p.cur += ins
    assert not kvq
    for m in tail: p.cur += m
    SC = math.log2(math.e) / math.sqrt(192.0)
    p(f"s_mov_b32 s{sTMP+2}, {f32(SC)}\ns_mov_b32 s{sTMP+3}, {f32(SC)}")
    for s in range(6):
        for qb in range(3):
            a = vACC + ((2 * s) * 3 + qb) * 4; b = vACC + ((2 * s + 1) * 3 + qb) * 4
            q = qfrag(qb, s)
            for r in (a, a + 2, b, b + 2):
                p(f"v_pk_mul_f32 {vr(r,2)}, {vr(r,2)}, s[{sTMP+2}:{sTMP+3}]")
            p(f"v_cvt_pk_bf16_f32 v{q}, v{a}, v{a+1}\nv_cvt_pk_bf16_f32 v{q+1}, v{a+2}, v{a+3}")
            p(f"v_cvt_pk_bf16_f32 v{q+2}, v{b}, v{b+1}\nv_cvt_pk_bf16_f32 v{q+3}, v{b+2}, v{b+3}")
    for s in range(6):
        for qb in range(3):
            q = qfrag(qb, s)
            p(f"v_permlane16_swap_b32 v{q}, v{q+2}\nv_permlane16_swap_b32 v{q+1}, v{q+3}")

def qk_units(pool, buf, zero=False):
    units = []
    for kb in range(2):
        for ds in range(6):
            pb = pool.next()
            mf = []
            for qb in range(3):
                d = sreg(buf, qb, kb)
                c = vr(d) if ds else (0 if zero else vr(vNM + 4 * qb))
                mf.append(I(f"{MF} {vr(d)}, {ar(pb)}, {vr(qfrag(qb,ds))}, {c}"))
            units.append(dict(reads=kunit_reads(pb, kb, ds), mf=mf))
    return units
def pv_units(pool, buf, zero=False):
    units = [dict(reads=None, mf=[I(f"{MF} {ar(aL+4*qb)}, {vr(vONE)}, {vr(vP[buf]+4*qb)}, {0 if zero else ar(aL+4*qb)}") for qb in range(3)])]
    for db in range(12):
        pb = pool.next()
        mf = [I(f"{MF} {ar(oacc(db,qb))}, {ar(pb)}, {vr(vP[buf]+4*qb)}, {0 if zero else ar(oacc(db,qb))}") for qb in range(3)]
        units.append(dict(reads=vunit_reads(pb, db), mf=mf))
    return units

def softmax_items(buf):
    pairs = [(qb, kb, h) for kb in range(2) for qb in range(3) for h in range(2)]
    items = []
    for n, (qb, kb, h) in enumerate(pairs):
        s = sreg(buf, qb, kb) + 2 * h
        e = vE + 2 * (n % 3)
        items.append((2, L(f"v_exp_f32 v{e}, v{s}")))
        items.append((2, L(f"v_exp_f32 v{e+1}, v{s+1}")))
        if n > 0:
            q2, k2, h2 = pairs[n - 1]; e2 = vE + 2 * ((n - 1) % 3)
            items.append((1, L(f"v_cvt_pk_bf16_f32 v{vP[buf]+4*q2+2*k2+h2}, v{e2}, v{e2+1}")))
    q2, k2, h2 = pairs[-1]; e2 = vE + 2 * (11 % 3)
    P = vP[buf]
    items.append((1, L(f"v_or3_b32 v{vCK}, v{P}, v{P+1}, v{P+4}")))
    items.append((1, L(f"v_cvt_pk_bf16_f32 v{P+4*q2+2*k2+h2}, v{e2}, v{e2+1}")))
    items.append((1, L(f"v_or3_b32 v{vCK}, v{vCK}, v{P+5}, v{P+8}")))
    items.append((1, L(f"v_or3_b32 v{vCK+1}, v{P+9}, v{P+2}, v{P+3}")))
    items.append((1, L(f"v_or3_b32 v{vCK}, v{vCK}, v{P+6}, v{P+7}")))
    items.append((1, L(f"v_or3_b32 v{vCK+1}, v{vCK+1}, v{P+10}, v{P+11}")))
    items.append((1, L(f"v_or_b32 v{vCK}, v{vCK}, v{vCK+1}")))
    items.append((1, L(f"v_and_b32 v{vCK}, 0x40004000, v{vCK}")))
    items.append((1, L(f"v_cmp_ne_u32 vcc, 0, v{vCK}")))
    return items
SPLIT = 17

BIAS = 8.0
def rowmax(p, buf, qb, dst):
    s0, s1 = sreg(buf, qb, 0), sreg(buf, qb, 1)
    p(f"""
v_max3_f32 v{dst}, v{s0}, v{s0+1}, v{s0+2}
v_max3_f32 v{dst}, v{dst}, v{s0+3}, v{s1}
v_max3_f32 v{dst}, v{dst}, v{s1+1}, v{s1+2}
v_max_f32 v{dst}, v{dst}, v{s1+3}
v_mov_b32 v{vR+8}, v{dst}
v_permlane32_swap_b32 v{dst}, v{vR+8}
v_max_f32 v{dst}, v{dst}, v{vR+8}
v_mov_b32 v{vR+8}, v{dst}
v_permlane16_swap_b32 v{dst}, v{vR+8}
v_max_f32 v{dst}, v{dst}, v{vR+8}
""")

def rare_path(p, label, ret, buf, has_next):
    p.reset_state()
    p(f"{label}:\ns_nop 15")
    for qb in range(3):
        d = vR + qb
        rowmax(p, buf, qb, d)
        p(f"v_add_f32 v{d}, {f32(BIAS)}, v{d}\nv_max_f32 v{d}, 0, v{d}")
        for r in range(4): p(f"v_sub_f32 v{vNM+4*qb+r}, v{vNM+4*qb+r}, v{d}")
        for bb in ([buf, buf ^ 1] if has_next else [buf]):
            for r in range(8): p(f"v_sub_f32 v{sreg(bb,qb,0)+r}, v{sreg(bb,qb,0)+r}, v{d}")
        p(f"v_exp_f32_e64 v{vR+4+qb}, -v{d}")
    for qb in range(3):
        regs = [aL + 4 * qb + r for r in range(4)] + [oacc(db, qb) + r for db in range(12) for r in range(4)]
        for r in regs:
            p(f"v_accvgpr_read_b32 v{vR+9}, a{r}\nv_mul_f32 v{vR+9}, v{vR+9}, v{vR+4+qb}\nv_accvgpr_write_b32 a{r}, v{vR+9}")
    for c, g in softmax_items(buf): p.cur += [I(x.text) for x in g]
    p(f"s_nop 7\ns_branch {ret}")
    p.flush()


def attention(p, pool, rares):
    for r in range(4): p(f"v_mov_b32 v{vONE+r}, 0x3f803f80")
    for db in range(12 - T, 12):
        for r in range(12): p(f"v_accvgpr_write_b32 a{oacc(db,0)+r}, 0")
    p("WAITVM V0")
    p("s_waitcnt lgkmcnt(0)\ns_barrier")
    for g in set_kaddr_imm(kvslot('K', 0)): p.cur += g
    ins, tail = span([], qk_units(pool, 0, zero=True), [], keep=0)
    p.cur += ins
    for qb in range(3):
        d = vR + qb
        rowmax(p, 0, qb, d)
        p(f"v_add_f32 v{d}, {f32(BIAS)}, v{d}")
        for r in range(4): p(f"v_sub_f32 v{vNM+4*qb+r}, 0, v{d}")
        for r in range(8): p(f"v_sub_f32 v{sreg(0,qb,0)+r}, v{sreg(0,qb,0)+r}, v{d}")
    p(f"""
s_mov_b32 s{sKOFF}, {6*SLOT}
s_mov_b32 s{sVOFF}, {5*SLOT}
s_mov_b32 s{sKRD}, 0
""")
    def step(t_par, tail, first=False, last=False, vm=24):
        cur, nxt = t_par, t_par ^ 1
        ins = L(f"s_waitcnt vmcnt({vm}) lgkmcnt(0)\ns_barrier")
        ins += L(f"s_add_u32 s{sVRD}, s{sKRD}, {SLOT}")
        if not last:
            ins += L(f"""
s_add_u32 s{sKSL}, s{sKRD}, s{sM0W}
s_sub_u32 s{sVSL}, s{sKSL}, {SLOT}
s_cmp_eq_u32 s{sKRD}, 0
s_cselect_b32 s{sTMP}, {12*SLOT}, 0
s_add_u32 s{sVSL}, s{sVSL}, s{sTMP}
s_add_u32 s{sKRD}, s{sKRD}, {2*SLOT}
s_cmp_eq_u32 s{sKRD}, {12*SLOT}
s_cselect_b32 s{sKRD}, 0, s{sKRD}
v_add_u32 v{vKA}, s{sKRD}, v{vKL}
v_add_u32 v{vKA+1}, s{sKRD}, v{vKL+1}
""")
        qk = [] if last else qk_units(pool, nxt)
        pv = pv_units(pool, cur, zero=first)
        pv[1]['pre'] = [x for u in range(4) for x in L(f"v_add_u32 v{vVA+u}, s{sVRD}, v{vVL+u}")]
        nt = len(tail); nq = len(qk)
        smb = softmax_items(cur)[(0 if first else SPLIT):]
        if not first:
            lab = p.newlabel("L_rare"); ret = p.newlabel("L_ret")
            rares.append((lab, ret, cur, not last))
            pv[0]['head'] = L(f"s_cbranch_vccnz {lab}\n{ret}:")
        if last:
            fills = [(0, nt, smb)]
        else:
            dk = dma_tile('K', f"s{sKSL}", f"s{sKOFF}"); dk[2] += L(f"s_add_u32 s{sKOFF}, s{sKOFF}, {SLOT}")
            dv = dma_tile('V', f"s{sVSL}", f"s{sVOFF}"); dv[2] += L(f"s_add_u32 s{sVOFF}, s{sVOFF}, {SLOT}")
            sma = softmax_items(nxt)[:SPLIT]
            fills = [(0, nt + nq, cost1(dk + dv)), (0, nt + nq, smb), (nt + nq + 1, 99, sma)]
        body, tail = span(tail, qk + pv, fills, keep=0 if last else None)
        return ins + body, tail
    ins, tail0 = step(0, [], first=True, vm=63)
    p.cur += ins
    p(f"s_mov_b32 s{sCNT}, 15")
    lp = p.newlabel("L_att")
    n0 = pool.n % NPOOL
    sv = pool.n; pool.n -= 12
    tail = [u['mf'] for u in pv_units(pool, 0)[-T:]]
    assert pool.n == sv
    b1, tail1 = step(1, tail)
    b2, tail2 = step(0, tail1)
    assert pool.n % NPOOL == n0
    assert [[i.text for i in m] for m in tail2] == [[i.text for i in m] for m in tail]
    p.loop(L(f"{lp}:") + b1 + b2 + L(f"s_sub_u32 s{sCNT}, s{sCNT}, 1\ns_cmp_lg_u32 s{sCNT}, 0\ns_cbranch_scc1 {lp}"))
    ins, _ = step(1, tail2, last=True)
    p.cur += ins

def o_epilogue(p, pol=""):
    vb = 32
    for qb in range(3):
        p(f"v_accvgpr_read_b32 v{vR+2*qb}, a{aL+4*qb}")
    for qb in range(3):
        p(f"v_rcp_f32 v{vR+2*qb}, v{vR+2*qb}")
    p(f"v_lshlrev_b32 v{vT0}, 4, v0\nv_add_u32 v{vT0}, s{sM0W}, v{vT0}")
    n = 0
    for s in range(6):
        p(f"s_mov_b32 s{sTMP+1}, {s*12288}")
        for qb in range(3):
            t = vb + 12 * (n % 6); n += 1
            for r in range(4):
                p(f"v_accvgpr_read_b32 v{t+r}, a{oacc(2*s,qb)+r}")
                p(f"v_accvgpr_read_b32 v{t+4+r}, a{oacc(2*s+1,qb)+r}")
            for r in range(0, 8, 2):
                p(f"v_pk_mul_f32 {vr(t+r,2)}, {vr(t+r,2)}, {vr(vR+2*qb,2)} op_sel_hi:[1,0]")
            for r in range(4):
                p(f"v_cvt_pk_bf16_f32 v{t+8+r}, v{t+2*r}, v{t+2*r+1}")
            p(f"buffer_store_dwordx4 {vr(t+8)}, v{vT0}, s[{sO}:{sO+3}], s{sTMP+1} offen offset:{1024*qb} {pol}")

def kernel_head(p, name):
    p.raw(f".globl {name}\n.p2align 8\n.type {name},@function\n{name}:")
    p.reset_state()

def k1(p):
    name = "attn_kernel"
    kernel_head(p, name)
    decode(p, "L_end1")
    k1_setup(p)
    p(f"""
s_lshl_b32 s{sTMP}, s{sB}, 5
s_add_u32 s{sTMP}, s{sTMP}, s{sH}
s_mul_i32 s{sTMP+1}, s{sTMP}, 393216
""")
    addptr(p, 78, sTMP + 1); addptr(p, 80, sTMP + 1)
    srd(p, sK, 78, 79, 393216); srd(p, sV, 80, 81, 393216)
    p(f"s_mul_i32 s{sTMP+1}, s{sTMP}, 73728\ns_add_u32 s92, s90, s{sTMP+1}\ns_addc_u32 s93, s91, 0")
    srd(p, sO, 92, 93, 73728)
    p(f"s_mul_i32 s{sTMP+1}, s{sH}, 384")
    addptr(p, 82, sTMP + 1)
    srd(p, sWq, 82, 83, 639 * 12288 + 384)
    p(f"s_lshl_b32 s{sTMP+1}, s{sB}, 2\ns_add_u32 s{sTMP+1}, s{sTMP+1}, s{sWAVE}\ns_mul_i32 s{sTMP+1}, s{sTMP+1}, {48*1280}")
    addptr(p, 76, sTMP + 1)
    srd(p, sX, 76, 77, 48 * 1280)
    pool = Pool()
    qproj(p, pool)
    stamp(p, 1)
    rares = []
    attention(p, pool, rares)
    stamp(p, 2)
    o_epilogue(p)
    p("s_waitcnt vmcnt(0)")
    stamp(p, 3)
    store_stamps(p, 0, 4)
    p("L_end1:\ns_endpgm")
    for (lab, ret, buf, hn) in rares: rare_path(p, lab, ret, buf, hn)
    return kernel_desc(name, vgpr=512, accum=256)

sWo, sP = 16, 20
vWOD = 2
vWOL = 8; vWOA = 9; vOL = 10
vB = 32
aC = 0
GSZ = 20480
NG = 8
def dma_wo(slot_s, soff_s):
    g = []
    for j in range(5):
        pre = []
        if j == 0: pre = L(f"s_mov_b32 m0, {slot_s}")
        if j == 4: pre = L(f"s_add_u32 m0, {slot_s}, 4096")
        g.append(pre + L(f"buffer_load_dwordx4 v{vWOD+j}, s[{sWo}:{sWo+3}], {soff_s} offen offset:{1024*(j%4)} {NTW} lds"))
    return g
def load_b(buf, soff_s, pol=""):
    g = []
    for ks in range(4):
        for qb in range(3):
            pre = L(f"s_add_u32 s{sTMP+1}, {soff_s}, {ks*12288}") if qb == 0 else []
            g.append(pre + L(f"buffer_load_dwordx4 {vr(vB+buf*48+(ks*3+qb)*4)}, v{vOL}, s[{sO}:{sO+3}], s{sTMP+1} offen offset:{1024*qb} {pol}", "noauto"))
    return g

def k2(p):
    name = "oproj_kernel"
    kernel_head(p, name)
    decode(p, "L_end2")
    t = 240
    p(f"s_lshl_b32 s{sTMP}, s{sWAVE}, 5")
    for j in range(5):
        p(f"""
v_add_u32 v{t}, {64*j}, v0
v_mul_u32_u24 v{t+1}, 205, v{t}
v_lshrrev_b32 v{t+1}, 11, v{t+1}
v_mul_u32_u24 v{t+2}, 10, v{t+1}
v_sub_u32 v{t+2}, v{t}, v{t+2}
v_add_u32 v{t+1}, s{sTMP}, v{t+1}
v_mul_u32_u24 v{t+1}, 1280, v{t+1}
v_lshl_add_u32 v{t+1}, v{t+2}, 4, v{t+1}
v_subrev_u32 v{vWOD+j}, {1024*(j%4)}, v{t+1}
""")
    p(f"""
v_lshrrev_b32 v{t}, 2, v0
v_mul_u32_u24 v{t}, 160, v{t}
v_and_b32 v{t+1}, 3, v0
v_lshl_add_u32 v{vWOL}, v{t+1}, 3, v{t}
v_lshlrev_b32 v{vOL}, 4, v0
v_add_u32 v{vOL}, s{sM0W}, v{vOL}
s_mul_i32 s{sTMP}, s{sHG}, {1536*1280}
s_mul_i32 s{sTMP+1}, s{sHL}, 160
s_add_u32 s{sTMP}, s{sTMP}, s{sTMP+1}
""")
    addptr(p, 84, sTMP)
    srd(p, sWo, 84, 85, 1535 * 1280 + 160)
    p(f"""
s_lshl_b32 s{sTMP}, s{sB}, 2
s_add_u32 s{sTMP}, s{sTMP}, s{sHG}
s_mul_i32 s{sTMP+1}, s{sTMP}, {8*73728}
s_add_u32 s92, s90, s{sTMP+1}
s_addc_u32 s93, s91, 0
""")
    srd(p, sO, 92, 93, 8 * 73728)
    p(f"""
s_lshl_b32 s{sTMP}, s{sB}, 3
s_add_u32 s{sTMP}, s{sTMP}, s{sHL}
s_lshl_b32 s{sTMP}, s{sTMP}, 2
s_add_u32 s{sTMP}, s{sTMP}, s{sHG}
s_lshl_b32 s{sTMP}, s{sTMP}, 2
s_add_u32 s{sTMP}, s{sTMP}, s{sWAVE}
s_mul_i32 s{sTMP}, s{sTMP}, 15360
s_add_u32 s{sTMP}, s{sTMP}, {PART_OFF}
s_add_u32 s92, s90, s{sTMP}
s_addc_u32 s93, s91, 0
""")
    srd(p, sP, 92, 93, 15360)
    sWW = 45
    sWOFF, sWSL, sBOFF, sRD = sKOFF, sKSL, sVOFF, sKRD
    p(f"s_mul_i32 s{sWW}, s{sWAVE}, 5120")
    LA = 6
    def wo_static(G):
        p(f"s_add_u32 s{sWSL}, s{sWW}, {(G % NG)*GSZ}\ns_mov_b32 s{sWOFF}, {G*128*1280}")
        for g in dma_wo(f"s{sWSL}", f"s{sWOFF}"): p.cur += g
    def b_static(G):
        p(f"s_mov_b32 s{sBOFF}, {G*4*12288}")
        for g in load_b(G % 3, f"s{sBOFF}"): p.cur += g
    for G in range(2, LA): wo_static(G - 2)
    wo_static(LA - 2); b_static(0); wo_static(LA - 1); b_static(1)
    for r in range(60): p(f"v_accvgpr_write_b32 a{aC+r}, 0")
    for r in range(4 * NPOOL): p(f"v_accvgpr_write_b32 a{aPOOL+r}, 0")
    for r in range(12): p(f"v_mov_b32 v{vB+2*48+36+r}, 0")
    p(f"""
s_mov_b32 s{sWOFF}, {LA*128*1280}
s_mov_b32 s{sBOFF}, {2*4*12288}
s_mov_b32 s{sRD}, 0
s_mov_b32 s{sCNT}, 4
""")
    pool = Pool()
    def units(buf):
        us = []
        for ks in range(4):
            for nb in range(5):
                pb = pool.next()
                rd = L(f"ds_read_b64_tr_b16 {ar(pb,2)}, v{vWOA} offset:{ks*5120+nb*32}\nds_read_b64_tr_b16 {ar(pb+2,2)}, v{vWOA} offset:{ks*5120+nb*32+2560}")
                mf = [I(f"{MF} {ar(aC+(nb*3+qb)*4)}, {ar(pb)}, {vr(vB+buf*48+(ks*3+qb)*4)}, {ar(aC+(nb*3+qb)*4)}") for qb in range(3)]
                us.append(dict(reads=rd, mf=mf))
        return us
    def grp(buf, tail):
        ins = L(f"""
s_waitcnt vmcnt(17) lgkmcnt(0)
s_barrier
v_add_u32 v{vWOA}, s{sRD}, v{vWOL}
s_add_u32 s{sWSL}, s{sRD}, {LA*GSZ}
s_cmp_ge_u32 s{sWSL}, {NG*GSZ}
s_cselect_b32 s{sTMP}, {NG*GSZ}, 0
s_sub_u32 s{sWSL}, s{sWSL}, s{sTMP}
s_add_u32 s{sWSL}, s{sWSL}, s{sWW}
s_add_u32 s{sRD}, s{sRD}, {GSZ}
s_cmp_eq_u32 s{sRD}, {NG*GSZ}
s_cselect_b32 s{sRD}, 0, s{sRD}
""")
        dw = dma_wo(f"s{sWSL}", f"s{sWOFF}"); dw[4] += L(f"s_add_u32 s{sWOFF}, s{sWOFF}, {128*1280}")
        lb = load_b((buf + 2) % 3, f"s{sBOFF}"); lb[-1] += L(f"s_add_u32 s{sBOFF}, s{sBOFF}, {4*12288}")
        body, tail = span(tail, units(buf), [(0, T + 1, cost1(dw)), (T + 1, 99, cost1(lb))])
        return ins + body, tail
    global NPOOL_SAVE
    pool.n = 40
    tail = [u['mf'] for u in units(2)[-T:]]
    pool.n = 0
    body = []
    tl = tail
    for buf in range(3):
        ins, tl = grp(buf, tl); body += ins
    assert [[i.text for i in m] for m in tl] == [[i.text for i in m] for m in tail], "pool period"
    for i in body + p.cur:
        if i.tag == "noauto": i.dst = []
    lp = p.newlabel("L_op")
    p.loop(L(f"{lp}:") + body + L(f"s_sub_u32 s{sCNT}, s{sCNT}, 1\ns_cmp_lg_u32 s{sCNT}, 0\ns_cbranch_scc1 {lp}"))
    for m in tl: p.cur += m
    stamp(p, 1)
    p(f"v_lshlrev_b32 v{vT0}, 4, v0")
    for tt in range(15):
        if tt % 4 == 0: p(f"s_mov_b32 s{sTMP+1}, {tt*1024}")
        p(f"buffer_store_dwordx4 {ar(aC+tt*4)}, v{vT0}, s[{sP}:{sP+3}], s{sTMP+1} offen offset:{(tt%4)*1024}")
    p("s_waitcnt vmcnt(0)")
    stamp(p, 2)
    store_stamps(p, 1, 3)
    p("L_end2:\ns_endpgm")
    return kernel_desc(name, vgpr=512, accum=256)

def k3(p):
    name = "reduce_kernel"
    kernel_head(p, name)
    decode(p, "L_end3")
    p(f"""
s_lshl_b32 s{sTMP}, s{sB}, 3
s_add_u32 s{sTMP}, s{sTMP}, s{sHL}
s_lshl_b32 s{sTMP}, s{sTMP}, 4
s_add_u32 s{sTMP}, s{sTMP}, s{sHG}
s_mul_i32 s{sTMP}, s{sTMP}, 15360
s_add_u32 s{sTMP}, s{sTMP}, {PART_OFF}
s_add_u32 s92, s90, s{sTMP}
s_addc_u32 s93, s91, 0
""")
    srd(p, sP, 92, 93, 13 * 15360)
    p(f"""
s_lshl_b32 s{sTMP}, s{sB}, 2
s_add_u32 s{sTMP}, s{sTMP}, s{sHG}
s_mul_i32 s{sTMP}, s{sTMP}, {48*1280}
s_mul_i32 s{sTMP+1}, s{sHL}, 160
s_add_u32 s{sTMP}, s{sTMP}, s{sTMP+1}
""")
    addptr(p, 86, sTMP)
    srd(p, sO, 86, 87, 47 * 1280 + 160)
    p(f"""
s_lshl_b32 s{sTMP}, s{sWAVE}, 10
v_lshlrev_b32 v2, 4, v0
v_add_u32 v2, s{sTMP}, v2
v_and_b32 v3, 15, v0
v_mul_u32_u24 v3, 1280, v3
v_lshrrev_b32 v4, 4, v0
v_lshl_add_u32 v3, v4, 3, v3
""")
    for i in range(4):
        for g in range(4):
            p(f"s_mov_b32 s{sTMP+1}, {g*4*15360 + i*4096}")
            p(f"buffer_load_dwordx4 {vr(8+(i*4+g)*4)}, v2, s[{sP}:{sP+3}], s{sTMP+1} offen")
    for i in range(4):
        b = 8 + i * 16
        p(f"""
s_add_u32 s{sTMP}, s{sWAVE}, {4*i}
s_mul_i32 s{sTMP+1}, s{sTMP}, 11
s_lshr_b32 s{sTMP+1}, s{sTMP+1}, 5
s_mul_i32 s{sTMP+2}, s{sTMP+1}, 3
s_sub_u32 s{sTMP+2}, s{sTMP}, s{sTMP+2}
s_mul_i32 s{sTMP+2}, s{sTMP+2}, {16*1280}
s_lshl_b32 s{sTMP+1}, s{sTMP+1}, 5
s_add_u32 s{sTMP+1}, s{sTMP+1}, s{sTMP+2}
""")
        if i == 3:
            p(f"s_cmp_eq_u32 s{sWAVE}, 3\ns_cbranch_scc1 L_skip3")
        for r in range(4):
            p(f"v_add_f32 v{b+r}, v{b+r}, v{b+4+r}\nv_add_f32 v{b+8+r}, v{b+8+r}, v{b+12+r}\nv_add_f32 v{b+r}, v{b+r}, v{b+8+r}")
        p(f"v_cvt_pk_bf16_f32 v{b+4}, v{b}, v{b+1}\nv_cvt_pk_bf16_f32 v{b+5}, v{b+2}, v{b+3}")
        p(f"buffer_store_dwordx2 {vr(b+4,2)}, v3, s[{sO}:{sO+3}], s{sTMP+1} offen")
    p("L_skip3:\ns_waitcnt vmcnt(0)")
    stamp(p, 1)
    store_stamps(p, 2, 2)
    p("L_end3:\ns_endpgm")
    return kernel_desc(name, vgpr=80, accum=80)

def build(path):
    global NPOOL
    p = Prog()
    p.raw("""; GQA block (q-proj, attention over cached K/V, out-proj) for gfx950
; @launch kernel=attn_kernel grid=(256,1,1) block=(256,1,1) lds=163840
; @launch kernel=oproj_kernel grid=(256,1,1) block=(256,1,1) lds=163840
; @launch kernel=reduce_kernel grid=(256,1,1) block=(256,1,1) lds=0
.amdgcn_target "amdgcn-amd-amdhsa--gfx950"
.text""")
    d = k1(p)
    NPOOL = 10
    d += ".p2align 6\n" + k2(p)
    d += ".p2align 6\n" + k3(p)
    p.raw('.section .rodata,"a"\n.p2align 6\n' + d)
    open(path, "w").write(p.text())

if __name__ == "__main__":
    for a in sys.argv[2:]:
        k, v = a.split("=")
        globals()[k] = eval(v)
    build(sys.argv[1])
```

```python
import re, copy

_rng = re.compile(r'^(-|abs\()?([vas])(?:\[(\d+):(\d+)\]|(\d+))\)?$')
def regs_of(tok):
    tok = tok.strip()
    m = _rng.match(tok)
    if not m:
        if tok in ('vcc', 'exec', 'm0', 'scc'):
            return [(tok, 0)]
        if tok in ('vcc_lo', 'vcc_hi'): return [('vcc', 0)]
        return []
    k = m.group(2)
    if m.group(5) is not None:
        return [(k, int(m.group(5)))]
    return [(k, i) for i in range(int(m.group(3)), int(m.group(4)) + 1)]

TRANS = ('v_exp_f32', 'v_log_f32', 'v_rcp_f32', 'v_rsq_f32', 'v_sqrt_f32', 'v_sin_f32', 'v_cos_f32')

class I:
    def __init__(self, text, tag=None):
        self.text = text.strip()
        self.tag = tag
        t = self.text.split(';')[0].strip()
        self.is_label = t.endswith(':')
        self.kind = None
        self.dst = []; self.src = []; self.srcC = []; self.srcAB = []; self.data = []
        self.wide_store = False
        if not t or self.is_label or t.startswith('.'):
            self.kind = 'none'; self.op = ''
            return
        sp = t.split(None, 1)
        op = sp[0]; self.op = op
        rest = sp[1] if len(sp) > 1 else ''
        ops = [o.strip() for o in rest.split(',')] if rest else []
        mods = ''
        if ops:
            l = ops[-1].split()
            ops[-1] = l[0] if l else ''
            mods = ' '.join(l[1:])
        self.mods = mods
        R = regs_of
        if op.startswith('v_mfma'):
            self.kind = 'mfma'
            self.dst = R(ops[0]); self.srcAB = R(ops[1]) + R(ops[2]); self.srcC = R(ops[3])
            self.src = self.srcAB + self.srcC
            self.passes = 4 if '16x16x32' in op else 8
        elif op.startswith('ds_read') or op.startswith('ds_bpermute'):
            self.kind = 'ds'; self.dst = R(ops[0]); self.src = sum((R(o) for o in ops[1:]), [])
        elif op.startswith('ds_write'):
            self.kind = 'ds'; self.src = sum((R(o) for o in ops), [])
        elif op.startswith('buffer_load') or op.startswith('global_load'):
            self.kind = 'vmem'
            if 'lds' in mods.split() or '_lds_' in op:
                self.src = sum((R(o) for o in ops), []) + [('m0', 0)]
                self.dma = True
            else:
                self.dst = R(ops[0]); self.src = sum((R(o) for o in ops[1:]), [])
        elif op.startswith('buffer_store') or op.startswith('buffer_atomic'):
            self.kind = 'vmem'; self.src = sum((R(o) for o in ops), [])
            self.data = R(ops[0])
            if op.startswith('buffer_atomic') and 'sc0' in mods.split():
                self.dst = R(ops[0])
            self.wide_store = len(self.data) >= 3
        elif op.startswith('global_store') or op.startswith('global_atomic'):
            self.kind = 'vmem'; self.src = sum((R(o) for o in ops), [])
            self.data = R(ops[1]); self.wide_store = len(self.data) >= 3
        elif op in ('buffer_wbl2', 'buffer_inv'):
            self.kind = 'vmem'
        elif op.startswith('v_'):
            self.kind = 'valu'
            base = op.replace('_e32', '').replace('_e64', '')
            self.trans = base in TRANS
            if base.startswith('v_permlane'):
                self.dst = R(ops[0]) + R(ops[1]); self.src = list(self.dst); self.permlane = True
            elif base.startswith('v_add_co') or base.startswith('v_addc_co') or base.startswith('v_sub_co'):
                self.dst = R(ops[0]) + R(ops[1]); self.src = sum((R(o) for o in ops[2:]), [])
            elif base == 'v_nop':
                pass
            else:
                self.dst = R(ops[0]); self.src = sum((R(o) for o in ops[1:]), [])
                if base.startswith('v_fmac') or base.startswith('v_writelane'): self.src += self.dst
            self.rdlane = base.startswith('v_readfirstlane') or base.startswith('v_readlane')
        elif op.startswith('s_load') or op in ('s_memtime', 's_memrealtime'):
            self.kind = 'smem'; self.dst = R(ops[0]); self.src = sum((R(o) for o in ops[1:]), [])
        elif op == 's_nop':
            self.kind = 'nop'; self.n = int(ops[0], 0) + 1
        elif op == 's_waitcnt':
            self.kind = 'wait'
            m = re.search(r'vmcnt\((\d+)\)', t); self.vm = int(m.group(1)) if m else None
            m = re.search(r'lgkmcnt\((\d+)\)', t); self.lg = int(m.group(1)) if m else None
        elif op == 'WAITVM':
            self.kind = 'waitvm'; self.wtag = rest.strip()
        elif op.startswith('s_'):
            self.kind = 'salu'
            if op.startswith('s_cmp') or op.startswith('s_cbranch') or op in ('s_branch', 's_barrier', 's_endpgm', 's_setprio', 's_sleep'):
                self.src = sum((R(o) for o in ops), [])
            else:
                self.dst = R(ops[0]); self.src = sum((R(o) for o in ops[1:]), [])
        else:
            raise ValueError("unknown instr: " + t)

class State:
    def __init__(self):
        self.hist = []
        self.lds = []
        self.vm = []
        self.smem = set()
    def clone(self):
        s = State(); s.hist = [[i, d] for i, d in self.hist]; s.lds = list(self.lds); s.vm = list(self.vm); s.smem = set(self.smem)
        return s
    def advance(self, n):
        for h in self.hist: h[1] += n
        self.hist = [h for h in self.hist if h[1] < 24]

def need_ws(p, c):
    n = 0
    pd = set(p.dst)
    cs = set(c.src); cd = set(c.dst)
    if p.kind == 'valu':
        pv = {r for r in pd if r[0] in 'va'}
        ps = {r for r in pd if r[0] in ('s', 'vcc')}
        if c.kind == 'mfma' and pv & cs: n = max(n, 2)
        if c.kind == 'valu':
            if getattr(c, 'permlane', False) and pv & cs: n = max(n, 2)
            if c.rdlane and pv & cs: n = max(n, 1)
            if p.trans and pv & cs: n = max(n, 1)
            if ps & cs: n = max(n, 2)
            if ('vcc', 0) in ps and c.op.startswith('v_cndmask'): n = max(n, 2)
        if c.kind == 'vmem' and ps & cs: n = max(n, 5)
        if c.kind in ('salu',) and ps & cs: n = max(n, 1)
    elif p.kind == 'mfma':
        P = p.passes
        if c.kind == 'mfma':
            if pd & set(c.srcAB): n = max(n, {4: 8, 8: 12}[P])
            if pd & set(c.srcC):
                if not (c.srcC == p.dst and c.passes == P): n = max(n, {4: 6, 8: 10}[P])
            elif pd & cd: n = max(n, {4: 6, 8: 10}[P])
        elif c.kind in ('valu', 'vmem', 'ds'):
            if pd & (cs | cd): n = max(n, {4: 8, 8: 12}[P])
            if c.kind == 'valu' and set(p.srcC) & cd: n = max(n, {4: 3, 8: 7}[P])
    elif p.kind == 'salu':
        if ('m0', 0) in pd and c.kind == 'vmem' and ('m0', 0) in cs: n = max(n, 1)
    elif p.kind == 'vmem':
        if p.wide_store and set(p.data) & cd: n = max(n, 2)
    return n

def _next_mfma(instrs, i):
    for j in range(i, min(i + 8, len(instrs))):
        x = instrs[j]
        if x.kind == 'mfma': return x
        if x.is_label or x.op.startswith('s_cbranch') or x.op in ('s_branch', 's_barrier') or x.kind in ('wait', 'waitvm'): return None
    return None

def analyze(instrs, st):
    out = []
    prev_mfma = False
    for pos, ins in enumerate(instrs):
        lg = None; vm = None; nops = 0
        k = ins.kind
        hoist = None
        if prev_mfma and k not in ('none', 'mfma', 'wait', 'waitvm', 'nop'):
            hoist = _next_mfma(instrs, pos)
        if k != 'none': prev_mfma = (k == 'mfma')
        if k == 'none':
            out.append((None, None, 0)); continue
        if k == 'waitvm':
            idx = [i for i, (d, t) in enumerate(st.vm) if t == ins.wtag]
            if idx:
                vm = len(st.vm) - 1 - idx[-1]
                st.vm = st.vm[idx[-1] + 1:]
                st.advance(1)
            out.append((None, vm, 0)); continue
        if k == 'wait':
            if ins.lg is not None:
                if ins.lg == 0: st.smem = set()
                if len(st.lds) > ins.lg: st.lds = st.lds[len(st.lds) - ins.lg:] if ins.lg else []
            if ins.vm is not None and len(st.vm) > ins.vm:
                st.vm = st.vm[len(st.vm) - ins.vm:] if ins.vm else []
            st.advance(1)
            out.append((None, None, 0)); continue
        if k == 'nop':
            st.advance(ins.n); out.append((None, None, 0)); continue
        touch = set(ins.src) | set(ins.dst)
        if hoist is not None: touch |= set(hoist.src) | set(hoist.dst)
        if st.smem & touch:
            lg = 0
        idx = [i for i, d in enumerate(st.lds) if d & touch]
        if idx:
            n = len(st.lds) - 1 - idx[-1]
            lg = n if lg is None else min(lg, n)
        if lg is not None:
            lg = min(lg, 15)
            st.lds = st.lds[len(st.lds) - lg:] if lg else []
            if lg == 0: st.smem = set()
        idx = [i for i, (d, t) in enumerate(st.vm) if d & touch and not (k == 'vmem' and d == set(ins.dst) and t == 'dummy')]
        if idx:
            vm = min(len(st.vm) - 1 - idx[-1], 63)
            st.vm = st.vm[len(st.vm) - vm:] if vm else []
        if lg is not None or vm is not None:
            st.advance(1)
        for p, d in st.hist:
            nops = max(nops, need_ws(p, ins) - d)
        if nops > 0: st.advance(nops)
        st.advance(1)
        st.hist.append([ins, 0])
        if k == 'ds': st.lds.append(set(ins.dst))
        if k == 'vmem': st.vm.append((set(ins.dst), ins.tag))
        if k == 'smem': st.smem |= set(ins.dst)
        out.append((lg, vm, nops))
    return out

def render(instrs, ann):
    lines = []
    for ins, (lg, vm, nops) in zip(instrs, ann):
        w = []
        if vm is not None: w.append(f"vmcnt({min(vm,63)})")
        if lg is not None: w.append(f"lgkmcnt({lg})")
        if w: lines.append("s_waitcnt " + " ".join(w))
        while nops > 0:
            n = min(nops, 16); lines.append(f"s_nop {n-1}"); nops -= n
        if ins.kind != 'waitvm':
            lines.append(ins.text)
    return lines

def mn(a, b):
    if a is None: return b
    if b is None: return a
    return min(a, b)

class Prog:
    def __init__(self):
        self.lines = []
        self.st = State()
        self.cur = []
        self.uid = 0
    def __call__(self, s, tag=None):
        for l in s.split("\n"):
            if l.strip(): self.cur.append(I(l, tag))
    def add(self, ins): self.cur.append(ins)
    def flush(self):
        ann = analyze(self.cur, self.st)
        self.lines += render(self.cur, ann)
        self.cur = []
    def raw(self, s):
        self.flush(); self.lines += s.split("\n")
    def reset_state(self):
        self.flush(); self.st = State()
    def loop(self, body):
        self.flush()
        s1 = self.st.clone(); a1 = analyze(body, s1)
        s2 = s1.clone(); a2 = analyze(body, s2)
        s3 = s2.clone(); a3 = analyze(body, s3)
        ann = [(mn(mn(x[0], y[0]), z[0]), mn(mn(x[1], y[1]), z[1]), max(x[2], y[2], z[2])) for x, y, z in zip(a1, a2, a3)]
        self.lines += render(body, ann)
        self.st = s3
    def newlabel(self, p="L"):
        self.uid += 1; return f"{p}_{self.uid}"
    def text(self):
        self.flush(); return "\n".join(self.lines) + "\n"

def L(s, tag=None):
    return [I(l, tag) for l in s.split("\n") if l.strip()]

def interleave(mf, fill, lead=0):
    out = []
    tot = sum(c for c, _ in fill)
    n = len(mf)
    acc = 0.0; fi = 0
    for k, m in enumerate(mf):
        out += m
        target = tot * (k + 1) / n
        while fi < len(fill) and acc + fill[fi][0] * 0.5 <= target:
            out += fill[fi][1]; acc += fill[fi][0]; fi += 1
    while fi < len(fill):
        out += fill[fi][1]; fi += 1
    return out


class Item:
    def __init__(self, kind, text, lo=0, hi=10**9, target=None, after=(), tag=None):
        self.kind = kind
        self.ins = L(text, tag) if isinstance(text, str) else text
        self.lo = lo; self.hi = hi; self.target = target; self.after = list(after)
        self.gap = None

def chain(items, lo, hi, mind=1):
    n = len(items)
    for k, it in enumerate(items):
        it.lo = max(it.lo, lo); it.hi = min(it.hi, hi)
        it.target = lo + (hi - lo + 1) * k // max(n, 1)
        if k: it.after.append((items[k - 1], mind if items[k - 1].kind != it.kind or it.kind in 'EM' else 0))
    return items

WARN = []
def pack(mf, items, resA=(), name=""):
    n = len(mf)
    G = {g: dict(A=[], L=[], V=[], X=[], u=0) for g in range(0, n)}
    resA = set(resA)
    def scost(it, g):
        k = len([x for x in it.ins if x.kind != 'none'])
        if it.ins[0].kind == 'waitvm' and k > 1 and it.ins[1].kind == 'wait': k -= 0
        return k - (1 if (not G[g]['A'] and g not in resA) else 0)
    def fits(it, g):
        s = G[g]
        if s['X']: return False
        if it.kind == 'S': return s['u'] + scost(it, g) <= 2
        if it.kind in 'EM':
            if s['u'] != 0: return False
            if getattr(it, 'needA', False) and (s['A'] or g in resA): return False
            if it.kind == 'M':
                for h in (g - 1, g + 1):
                    if h in G and any(x.kind == 'M' for x in G[h]['V']): return False
            return True
        return s['u'] <= 1
    def put(it, g, force=False):
        s = G[g]; it.gap = g
        if force: s['X'].append(it); s['u'] += 2; return
        if it.kind == 'S':
            s['u'] += scost(it, g); s['A'].append(it)
        elif it.kind == 'L': s['L'].append(it); s['u'] += 1
        else:
            s['V'].append(it); s['u'] += 2 if it.kind in 'EM' else 1
            if getattr(it, 'needA', False): resA.add(g)
    idx = {id(it): i for i, it in enumerate(items)}
    order = sorted(range(len(items)), key=lambda i: (0 if items[i].kind == 'L' else 2 if getattr(items[i], 'dense', False) else 1, items[i].target if items[i].target is not None else items[i].lo, i))
    def place(i):
        it = items[i]
        if it.gap is not None: return
        lo = max(it.lo, 0); plo = 0
        for (a, d) in it.after:
            if a.gap is None: place(idx[id(a)])
            lo = max(lo, a.gap + d); plo = max(plo, a.gap)
        hi = min(it.hi, n - 1)
        t = max(lo, it.target if it.target is not None else lo)
        t = min(t, hi)
        cand = list(range(t, hi + 1)) + list(range(t - 1, lo - 1, -1))
        cand = [g for g in cand if g >= lo]
        if it.kind == 'V' and not getattr(it, 'dense', False):
            pref = [g for g in range(max(t, lo), min(t + 4, hi + 1)) if G[g]['u'] == 1]
            cand = pref + cand
        if it.kind == 'S':
            pref = [g for g in range(max(t, lo), min(t + 3, hi + 1)) if scost(it, g) == 0 or (G[g]['u'] == 1 and scost(it, g) == 1)]
            cand = pref + cand
        for g in cand:
            if fits(it, g):
                put(it, g); return
        assert plo <= hi, (name, it.ins[0].text, plo, hi)
        rng = range(max(plo, min(lo, hi)), hi + 1)
        g = min(rng, key=lambda g: (G[g]['u'], g))
        WARN.append(f"{name}: overflow {it.kind} {it.ins[0].text} at gap {g} (lo {lo} hi {hi})")
        put(it, g, True)
    for i in order: place(i)
    out = []
    for g, (head, m) in enumerate(mf):
        out.extend(head); out.append(m)
        s = G[g]
        for it in s['A'] + s['L'] + s['V'] + s['X']: out.extend(it.ins)
    return out

def estimate(lines):
    cyc = 0; t = 0; mfree = 0; vfree = 0; prev = None; nm = 0
    for l in lines:
        ins = I(l)
        if ins.kind == 'none': continue
        if ins.kind == 'mfma':
            t = max(t, mfree, vfree); mfree = t + 16; vfree = t + 8; t += 4; nm += 1
        elif ins.kind in ('salu', 'wait', 'smem'):
            t += 8 if ins.op.startswith('s_cbranch') else 4
        elif ins.kind == 'nop': t += 4 * ins.n
        else:
            t = max(t, vfree)
            if ins.kind in ('ds', 'vmem') and prev is not None and prev.kind == 'valu': t += 8
            c = 8 if (ins.kind == 'vmem' or (ins.kind == 'valu' and ins.trans)) else 4
            if ins.op.startswith('v_pk'): t = max(t, mfree); c = 8
            t += c; vfree = t
        prev = ins
    return max(t, mfree), nm
```

```python
import sys, math, struct
from sched import *
from asmlib import kernel_desc

NAME = "standalone__gqa_block_cached__near_ridge"
SLOT = 12288
STAMP = False
NT = "nt"
NTW = ""
NTO = ""
OST = "sc1"
OLD = "sc1"
CODEPF = True
SKIPS = ()
WOPF = True
FAST = True
OFAST = ""
STAG = False
PART_OFF = 20 << 20
FLAG_OFF = 40 << 20
STAMP_OFF = 64 << 20
NSTAMP = 12
NODMA = 0
TRACE = 0
KVPF = True
SNAKE = True
NOKV = 0
DROP = ()
STSET = 'q'
KSTAG = True
VERB = 0
FLAGPOS = 20
NOBAR = 0

def f32(x): return "0x%08x" % struct.unpack("<I", struct.pack("<f", x))[0]
def vr(b, n=4): return f"v[{b}:{b+n-1}]"
def ar(b, n=4): return f"a[{b}:{b+n-1}]"
MF = "v_mfma_f32_16x16x32_bf16"

def srd(p, d, lo, hi, nbytes):
    p(f"s_mov_b32 s{d}, s{lo}\ns_and_b32 s{d+1}, s{hi}, 0xffff\ns_mov_b32 s{d+2}, {nbytes}\ns_mov_b32 s{d+3}, 0x00020000")

sK, sV, sWq, sX, sO, sF, sWo = 4, 8, 12, 16, 20, 24, 28
sP, sOUT, sDBG = 12, 16, 92
sPF = 76
sXCC = 50; sFASTF = 42
sTK1, sTK2 = 92, 94
TOKC = (0x9e3779b9, 0x7f4a7c15)
F2BASE = 128 * 256
sWAVE, sB, sH, sHG, sHL = 32, 33, 34, 35, 36
sM0W = 37
sKOFF = 38
sWR, sRD = 39, 40
sT, sD = 41, 42
sWOFF, sXOFF = 43, 44
sWW = 45
sTMP = 46
sLTHR = 3
sKK = 51
sSTAMP = 52
def stamp(p, i):
    if STAMP: p(f"{'s_memtime' if STAMP == 2 else 's_memrealtime'} s[{sSTAMP+2*i}:{sSTAMP+2*i+1}]")
CST = {5: 80, 6: 82, 9: 88, 10: 100}
_stamp0 = stamp
def stamp(p, i):
    _stamp0(p, i)
    if STAMP and i in CST: p(f"s_memtime s[{CST[i]}:{CST[i]+1}]")

def addptr(p, lo, sreg):
    p(f"s_add_u32 s{lo}, s{lo}, s{sreg}\ns_addc_u32 s{lo+1}, s{lo+1}, 0")
def ws_srd(p, d, sreg, const, nbytes):
    p(f"s_add_u32 s96, s90, s{sreg}\ns_addc_u32 s97, s91, 0")
    if const: p(f"s_add_u32 s96, s96, {const}\ns_addc_u32 s97, s97, 0")
    srd(p, d, 96, 97, nbytes)

vKD, vVD, vWD = 2, 5, 8
vXD = 11
vWOD = 11
vKL, vVL = 17, 19
vKA, vVA = 23, 25
vXR = 29
vWOL, vOL = 29, 30
vWOA = 23
vT0 = 31
vVB = 252
vPF = 168
vXC = 172
vF1, vF2 = 250, 251
vFLV = 8
vACC = 32
vQ = 176
vS = (32, 56); vP = (80, 92); vNM = 104; vONE = 116; vE = 120; vCK = 130; vR = 132; vL = (144, 156)
NE = 5
vB = 32
vRC = 244
aO = 0; aPOOL = 144; aC = 196
aX = 0; NXB = 6
def qfrag(qb, s): return vQ + (qb * 6 + s) * 4
def oacc(db, qb): return aO + (db * 3 + qb) * 4
def sreg(buf, qb, kb): return vS[buf] + (qb * 2 + kb) * 4
def bfrag(u, qb): return vB + ((u // 4) % 3) * 48 + ((u % 4) * 3 + qb) * 4

XS0 = 5
def xpair(c): return XS0 + 2 * (c % 2)
WRING = [9, 10, 11, 1, 12]
def wslot(u): return WRING[u % 5]
def kvslot(kind, i): return 2 * (i % 6) if kind == 'K' else 2 * ((i + 1) % 6) + 1

def setup_dma(p):
    t = 240
    p(f"""
v_lshrrev_b32 v{t}, 3, v0
v_and_b32 v{t+1}, 7, v0
s_lshl_b32 s{sTMP}, s{sWAVE}, 3
s_and_b32 s{sTMP+1}, s{sB}, 3
s_lshl_b32 s{sTMP+1}, s{sTMP+1}, 2
s_add_u32 s{sTMP+1}, s{sTMP+1}, s{sWAVE}
s_mul_i32 s{sTMP+1}, s{sTMP+1}, {48*1280}
""")
    for half in range(2):
        p(f"""
v_lshrrev_b32 v{t+2}, 1, v{t}
v_add_u32 v{t+2}, {4*half}, v{t+2}
v_xor_b32 v{t+2}, v{t+2}, v{t+1}
v_lshlrev_b32 v{t+2}, 4, v{t+2}
v_add_u32 v{t+3}, {8*half}, v{t}
v_mul_u32_u24 v{t+3}, 1280, v{t+3}
v_add3_u32 v{vXD+half}, v{t+2}, v{t+3}, s{sTMP+1}
v_add_u32 v{vXD+2+half}, {20480-1024}, v{vXD+half}
v_add_u32 v{vXD+4+half}, {2*(20480-1024)}, v{vXD+half}
""")
def setup_dma2(p):
    t = 240
    p(f"s_mul_i32 s{sTMP+1}, s{sHL}, 384")
    for j in range(3):
        p(f"""
v_add_u32 v{t+2}, {8*j}, v{t}
v_mul_u32_u24 v{t+3}, 11, v{t+2}
v_lshrrev_b32 v{t+3}, 5, v{t+3}
v_mul_u32_u24 v{t+4}, 3, v{t+3}
v_sub_u32 v{t+4}, v{t+2}, v{t+4}
v_add_u32 v{t+3}, s{sTMP}, v{t+3}
v_bfe_u32 v{t+5}, v{t+3}, 2, 1
v_and_b32 v{t+6}, 2, v{t+3}
v_or_b32 v{t+5}, v{t+5}, v{t+6}
v_lshrrev_b32 v{t+6}, 1, v{t+3}
v_and_b32 v{t+6}, 4, v{t+6}
v_or_b32 v{t+5}, v{t+5}, v{t+6}
v_xor_b32 v{t+5}, v{t+5}, v{t+1}
v_lshlrev_b32 v{t+5}, 4, v{t+5}
v_lshl_add_u32 v{t+5}, v{t}, 7, v{t+5}
v_add_u32 v{vKD+j}, s{sM0W}, v{t+5}
v_and_b32 v{t+5}, 6, v{t+3}
v_xor_b32 v{t+5}, v{t+5}, v{t+1}
v_lshlrev_b32 v{t+5}, 4, v{t+5}
v_lshl_add_u32 v{t+6}, v{t}, 7, v{t+5}
v_add_u32 v{vVD+j}, s{sM0W}, v{t+6}
v_bfe_u32 v{t+6}, v{t+3}, 2, 2
v_lshlrev_b32 v{t+6}, 3, v{t+6}
v_lshrrev_b32 v{t+7}, 4, v{t+3}
v_lshl_add_u32 v{t+6}, v{t+7}, 2, v{t+6}
v_and_b32 v{t+7}, 3, v{t+3}
v_add_u32 v{t+6}, v{t+6}, v{t+7}
v_mul_u32_u24 v{t+6}, 12288, v{t+6}
v_lshl_add_u32 v{t+6}, v{t+4}, 7, v{t+6}
v_add3_u32 v{t+6}, v{t+6}, v{t+5}, s{sTMP+1}
v_subrev_u32 v{vWD+j}, {1024*j}, v{t+6}
""")

vPW, vPX, vPK = 232, 233, 234
def setup_pf(p):
    t = 224
    p(f"""
s_lshr_b32 s{sTMP+1}, s2, 3
s_lshl_b32 s{sTMP+1}, s{sTMP+1}, 2
s_add_u32 s{sTMP+1}, s{sTMP+1}, s{sWAVE}
s_mul_i32 s{sTMP+2}, s{sTMP+1}, 36
v_add_u32 v{t}, s{sTMP+2}, v0
v_mul_u32_u24 v{t+1}, 2731, v{t}
v_lshrrev_b32 v{t+1}, 16, v{t+1}
v_mul_u32_u24 v{t+2}, 24, v{t+1}
v_sub_u32 v{t+2}, v{t}, v{t+2}
v_mul_u32_u24 v{t+1}, 12288, v{t+1}
v_lshl_add_u32 v{t+1}, v{t+2}, 7, v{t+1}
v_cmp_gt_u32 vcc, 36, v0
v_mov_b32 v{t+3}, 0x7f000000
v_cndmask_b32 v{vPW}, v{t+3}, v{t+1}, vcc
s_mul_i32 s{sTMP+2}, s{sTMP+1}, 6
v_mul_u32_u24 v{t}, 11, v0
v_lshrrev_b32 v{t}, 5, v{t}
v_mul_u32_u24 v{t+1}, 3, v{t}
v_sub_u32 v{t+1}, v0, v{t+1}
v_add_u32 v{t}, s{sTMP+2}, v{t}
v_mul_u32_u24 v{t}, 1280, v{t}
v_lshl_add_u32 v{t}, v{t+1}, 7, v{t}
v_cmp_gt_u32 vcc, 18, v0
v_cndmask_b32 v{vPX}, v{t+3}, v{t}, vcc
""")
    for k, (so, first) in enumerate(((sKK, 6), (sKOFF, 5))):
        p(f"""
s_lshl_b32 s{sTMP+1}, s{sWAVE}, 13
s_add_u32 s{sTMP+1}, s{sTMP+1}, s{so}
s_add_u32 s{sTMP+1}, s{sTMP+1}, {first*SLOT}
v_lshlrev_b32 v{t}, 7, v0
v_add_u32 v{t}, s{sTMP+1}, v{t}
v_subrev_u32 v{t+1}, {32*SLOT}, v{t}
v_min_u32 v{vPK+k}, v{t}, v{t+1}
""")
def pf_items(n):
    if n[1] == 'K': return [Item('M', f"buffer_load_dword v248, v{vPK}, s[{sK}:{sK+3}], 0 offen {NT}", tag="dummy")]
    if n[1] == 'V': return [Item('M', f"buffer_load_dword v248, v{vPK+1}, s[{sV}:{sV+3}], 0 offen {NT}", tag="dummy")]
    b = int(n[1])
    return [S(f"s_mov_b32 s{sTMP+1}, {(1+3*b)*128}"), Item('M', f"buffer_load_dword v248, v{vPX}, s[{sX}:{sX+3}], s{sTMP+1} offen {NTW}", tag="dummy"),
            S(f"s_mov_b32 s{sTMP+1}, {(1+3*b)*64*12288}"), Item('M', f"buffer_load_dword v248, v{vPW}, s[{sWq}:{sWq+3}], s{sTMP+1} offen {NTW}", tag="dummy")]

def setup_reads(p):
    t = 240
    p(f"""
v_and_b32 v{t}, 15, v0
v_lshrrev_b32 v{t+1}, 4, v0
v_lshrrev_b32 v{t+2}, 1, v{t}
v_xor_b32 v{t+2}, v{t+2}, v{t+1}
v_lshlrev_b32 v{t+5}, 4, v{t+2}
v_and_b32 v{t+3}, 7, v{t}
v_lshl_add_u32 v{t+5}, v{t+3}, 7, v{t+5}
v_lshrrev_b32 v{t+3}, 3, v{t}
v_mul_u32_u24 v{t+3}, 12288, v{t+3}
v_add3_u32 v{t+5}, v{t+5}, v{t+3}, s{sM0W}
v_add_u32 v{vXR}, {XS0*SLOT}, v{t+5}
v_xor_b32 v{vXR+1}, 64, v{vXR}
v_bfe_u32 v{t+3}, v{t+2}, 1, 1
v_and_b32 v{t+4}, 1, v{t+2}
v_lshl_add_u32 v{t+3}, v{t+4}, 1, v{t+3}
v_and_b32 v{t+4}, 4, v{t+2}
v_or_b32 v{t+3}, v{t+3}, v{t+4}
v_lshlrev_b32 v{t+3}, 4, v{t+3}
v_mul_u32_u24 v{t+4}, 384, v{t}
v_add_u32 v{vKL}, v{t+3}, v{t+4}
v_xor_b32 v{vKL+1}, 64, v{vKL}
v_lshrrev_b32 v{t+2}, 2, v0
v_mul_u32_u24 v{t+3}, 384, v{t+2}
v_bfe_u32 v{t+4}, v{t+2}, 1, 2
v_lshl_add_u32 v{t+3}, v{t+4}, 5, v{t+3}
v_and_b32 v{t+4}, 3, v0
v_lshl_add_u32 v{vVL}, v{t+4}, 3, v{t+3}
v_xor_b32 v{vVL+1}, 32, v{vVL}
v_xor_b32 v{vVL+2}, 64, v{vVL}
v_xor_b32 v{vVL+3}, 96, v{vVL}
""")

def wrap_add(s, inc, lim):
    return L(f"s_add_u32 s{s}, s{s}, {inc}\ns_cmp_ge_u32 s{s}, {lim}\ns_cselect_b32 s{sTMP+3}, {lim}, 0\ns_sub_u32 s{s}, s{s}, s{sTMP+3}")


def S(t, **k): return Item('S', t, **k)
def wrap_items(s, inc, lim):
    return [S(f"s_add_u32 s{s}, s{s}, {inc}"), S(f"s_cmp_ge_u32 s{s}, {lim}\ns_cselect_b32 s{sTMP+3}, {lim}, 0\ns_sub_u32 s{s}, s{s}, s{sTMP+3}")]
def wrap0_items(s, inc, lim, zero="0"):
    return [S(f"s_add_u32 s{s}, s{s}, {inc}"), S(f"s_cmp_ge_u32 s{s}, {lim}\ns_cselect_b32 s{s}, {zero}, s{s}")]

def dma_tile(kind, pre, so, tag=None, post=()):
    vd, sr, pol = {'K': (vKD, sK, NT), 'V': (vVD, sV, NT), 'W': (vWD, sWq, NTW)}[kind]
    g = [S(x) for x in pre]
    for j in range(3):
        g.append(Item('M', f"buffer_load_dwordx4 v{vd+j}, s[{sr}:{sr+3}], {so} offen offset:{1024*j} {pol} lds", tag=tag))
    return g + list(post)
def dma_kv_static(kind, i):
    so = sKK if kind == 'K' else sKOFF
    return dma_tile(kind, [f"s_add_u32 m0, s{sM0W}, {kvslot(kind,i)*SLOT}"], f"s{so}", f"{kind}{i}", wrap0_items(so, SLOT, 32 * SLOT))
def dma_w(u):
    return dma_tile('W', [f"s_add_u32 m0, s{sM0W}, {wslot(u)*SLOT}"], f"s{sWOFF}", f"W{u}", wrap0_items(sWOFF, 32 * 12288, 640 * 12288))
def dma_x(c):
    g = []
    base = xpair(c)
    for half in range(2):
        g.append(S(f"s_add_u32 m0, s{sM0W}, {(base+half)*SLOT}"))
        for qb in range(3):
            g.append(Item('M', f"buffer_load_dwordx4 v{vXD+2*qb+half}, s[{sX}:{sX+3}], s{sXOFF} offen offset:{1024*qb} {NTW} lds", tag=f"X{c}"))
    return g + wrap0_items(sXOFF, 128, 1280)
def xfrag(c, ks, qb): return aX + (c % NXB) * 24 + (ks * 3 + qb) * 4
def read_x(c):
    off = (xpair(c) - XS0) * SLOT
    return [Item('L', f"ds_read_b128 {ar(xfrag(c,ks,qb))}, v{vXR+ks} offset:{off + qb*1024}") for ks in range(2) for qb in range(3)]
def flat(p, items):
    for it in items: p.cur += it.ins

def snake(mf, k): return mf[::-1] if (SNAKE and k & 1) else mf
class Pool:
    def __init__(self, size): self.n = 0; self.size = size
    def next(self):
        r = aPOOL + 4 * (self.n % self.size); self.n += 1; return r

def vunit_reads(buf, db, base_imm=0, va=None):
    va = vVA if va is None else va
    return [f"ds_read_b64_tr_b16 {ar(buf,2)}, v{va+(db&3)} offset:{base_imm + (db>>2)*128}",
            f"ds_read_b64_tr_b16 {ar(buf+2,2)}, v{va+(db&3)} offset:{base_imm + (db>>2)*128 + 6144}"]
def kunit_reads(buf, kb, ds, imm=0):
    return [f"ds_read_b128 {ar(buf)}, v{vKA+(ds&1)} offset:{imm + kb*6144 + (ds>>1)*128}"]

T = 4
RGAP = 6
class Stream:
    def __init__(self, tail=()):
        self.mf = []; self.items = []; self.resA = set()
        for u in tail: self.add_unit(u, True)
    def n(self): return len(self.mf)
    def add_unit(self, u, noread=False):
        u['first'] = len(self.mf)
        if u.get('reads') or u.get('needwait'): self.resA.add(len(self.mf) - 1)
        for k, m in enumerate(u['mf']): self.mf.append((u.get('head', []) if k == 0 else [], m))
    def reads(self, units, lo, hi, after=()):
        its = []
        tot = sum(len(u['reads']) for u in units); k = 0
        for u in units:
            g = lo + (hi - lo + 1) * k // tot
            for r in u['reads']:
                it = Item('L', r, lo=lo, hi=max(lo, min(hi, u['first'] - 5)), target=g, after=list(after) + ([(its[-1], 0)] if its else []))
                it.use = u['first']
                its.append(it); k += 1
        self.items += its
        return its
    def barrier(self, g, wait):
        w = Item('S', [I(x) for x in wait], lo=g, hi=g + 2, target=g)
        b = Item('S', "s_barrier", lo=g + 1, hi=g + 3, after=[(w, 1)])
        self.items += [w, b]
        return b
    def add(self, its): self.items += its; return its
    def emit(self, keep=0, name=""):
        mf = self.mf[:len(self.mf) - keep] if keep else self.mf
        out = pack(mf, self.items, self.resA, name)
        for it in self.items:
            if hasattr(it, 'use'):
                d = set(it.ins[0].dst)
                assert it.gap < it.use, (name, it.ins[0].text)
                for g in range(it.gap + 1, it.use):
                    assert not (d & set(self.mf[g][1].src)), ("pool WAR", name, it.ins[0].text, it.gap, g)
        return out

SCHED = 1
def set_sched():
    global PRO, PRO2, QS
    if SCHED == 0:
        PRO = ['X0', 'W0', 'W1', 'W2']
        PRO2 = ['X1']
        QS = {
            0: (['W3'], None, []),
            1: (['W4', 'W5'], 1, ['X2']),
            2: (['W6'], None, ['X3']),
            3: (['W7'], 2, ['X4']),
            4: (['W8'], 3, ['X5']),
            5: (['W9', 'K0', 'K1'], None, []),
            6: (['W10'], 4, ['X6']),
            7: (['W11'], 5, ['X7']),
            8: (['W12', 'V0', 'K2'], None, []),
            9: (['W13'], 6, ['X8']),
            10: (['W14'], 7, ['X9']),
            11: (['W15'], None, []),
            12: (['W16'], 8, ['V1', 'K3']),
            13: (['W17'], 9, []),
            14: (['W18'], None, []),
            15: (['W19', 'V2', 'K4'], None, []),
            16: (['V3'], None, []),
            17: (['K5'], None, []),
            18: (['V4'], None, []),
            19: ([], None, []),
        }
    elif SCHED == 1:
        PRO = ['X0', 'W0', 'W1', 'P0', 'X1', 'W2', 'W3', 'W4']
        PRO2 = ['X2', 'P1']
        QS = {
            0: ([], None, []),
            1: (['W5'], 1, ['X3']),
            2: (['W6', 'P2'], None, []),
            3: (['W7'], 2, ['X4']),
            4: (['W8'], 3, ['X5']),
            5: (['W9', 'K0', 'K1'], None, []),
            6: (['W10'], 4, ['X6']),
            7: (['W11'], 5, ['X7']),
            8: (['W12', 'V0', 'K2'], None, []),
            9: (['W13'], 6, ['X8']),
            10: (['W14'], 7, ['X9']),
            11: (['W15'], None, []),
            12: (['W16'], 8, ['V1', 'K3']),
            13: (['W17'], 9, []),
            14: (['W18'], None, []),
            15: (['W19', 'V2', 'K4'], None, []),
            16: (['V3'], None, []),
            17: (['K5'], None, []),
            18: (['V4'], None, []),
            19: (['PK', 'PV'] if KVPF else [], None, []),
        }
    elif SCHED == 2:
        PRO = ['X0', 'W0', 'W1', 'P0', 'X1', 'W2', 'W3']
        PRO2 = ['P1', 'X2', 'W4']
        QS = {
            0: ([], None, []),
            1: (['P2', 'W5'], 1, ['X3']),
            2: (['W6'], None, []),
            3: (['W7', 'K0', 'K1'], 2, ['X4']),
            4: (['W8'], 3, ['X5']),
            5: (['W9', 'V0', 'K2'], None, []),
            6: (['W10'], 4, ['X6']),
            7: (['W11'], 5, ['X7']),
            8: (['W12'], 6, ['X8']),
            9: (['W13'], 7, ['X9']),
            10: (['W14'], 8, ['V1', 'K3']),
            11: (['W15'], 9, []),
            12: (['W16', 'V2', 'K4'], None, []),
            13: (['W17'], None, []),
            14: (['W18'], None, []),
            15: (['W19'] + (['PK', 'PV'] if KVPF else []), None, []),
            16: (['V3'], None, []),
            17: (['K5'], None, []),
            18: (['V4'], None, []),
            19: ([], None, []),
        }
def issue(name):
    if name[0] == 'P': return pf_items(name)
    k, i = name[0], int(name[1:])
    return dma_x(i) if k == 'X' else dma_w(i) if k == 'W' else dma_kv_static(k, i)

def check_sched():
    occ = {}
    xread = {0: -1}
    for u, (e, xr, l) in QS.items():
        if xr is not None: xread[xr] = u
    def slots(n):
        k, i = n[0], int(n[1:])
        return [xpair(i), xpair(i) + 1] if k == 'X' else [wslot(i)] if k == 'W' else [kvslot(k, i)]
    def put(n, u, late):
        if n[0] == 'P': return
        for s in slots(n):
            o = occ.get(s)
            if o:
                k, i = o[0], int(o[1:])
                if k == 'W': assert i <= u - 1, (n, u, o)
                elif k == 'X': assert xread[i] < u or (xread[i] == u and late), (n, u, o)
                else: assert False, (n, u, o)
            occ[s] = n
    seq = []
    for n in PRO: put(n, -2, False); seq.append(n)
    for n in PRO2: put(n, -1, True); seq.append(n)
    for u in range(20):
        e, xr, l = QS[u]
        for n in e: put(n, u, False); seq.append(n)
        for n in l: put(n, u, True); seq.append(n)
        if xr is not None:
            assert xr * 2 > u and (xr - NXB) * 2 + 1 < u, (xr, u)
    assert [n for n in seq if n[0] == 'W'] == [f"W{i}" for i in range(20)]
    assert [n for n in seq if n[0] == 'X'] == [f"X{i}" for i in range(10)]
    assert [n for n in seq if n[0] in 'KV'] == ['K0', 'K1', 'V0', 'K2', 'V1', 'K3', 'V2', 'K4', 'V3', 'K5', 'V4']

def qproj(p, pool):
    set_sched()
    check_sched()
    for n in PRO:
        if n == 'W0': setup_dma2(p)
        if n == 'P0': setup_pf(p)
        flat(p, issue(n))
    if 'P0' not in PRO: setup_pf(p)
    setup_reads(p)
    p("WAITVM X0")
    if STSET in 'qQ': stamp(p, 1)
    flat(p, read_x(0))
    if any(n[0] == 'X' and xpair(int(n[1:])) == xpair(0) for n in PRO2): p("s_waitcnt lgkmcnt(0)")
    for n in PRO2: flat(p, issue(n))
    p(f"""
s_add_u32 s{sTK1}, s{sTK1}, {TOKC[0]}
s_addc_u32 s{sTK1+1}, s{sTK1+1}, {TOKC[1]}
s_add_u32 s{sTK2}, s{sTK2}, {TOKC[0]}
s_addc_u32 s{sTK2+1}, s{sTK2+1}, {TOKC[1]}
s_xor_b32 s{sXCC}, s{sXCC}, s{sTK1}
v_mov_b32 v240, s{sXCC}
v_mov_b32 v241, s{sTK1+1}
s_lshl_b64 exec, 1, s{sHL}
buffer_store_dwordx2 v[240:241], v{vF1}, s[{sF}:{sF+3}], 0 offen offset:128 sc1
s_mov_b64 exec, -1
""")
    for uu in range(4): p(f"v_add_u32 v{vVA+uu}, {wslot(0)*SLOT}, v{vVL+uu}")
    p("WAITVM W0\ns_barrier")
    st = Stream()
    tiles = []
    for u in range(20):
        c, ks = u >> 1, u & 1
        va = vVA if u % 2 == 0 else vVB
        units = []
        for db in range(12):
            buf = pool.next()
            mf = []
            for qb in range(3):
                d = vACC + (db * 3 + qb) * 4
                mf.append(I(f"{MF} {vr(d)}, {ar(buf)}, {ar(xfrag(c,ks,qb))}, {vr(d) if u else 0}"))
            units.append(dict(reads=vunit_reads(buf, db, 0, va), mf=snake(mf, db)))
            st.add_unit(units[-1])
        tiles.append(units)
    prevdma = None
    for u in range(20):
        g0 = 36 * u - 3 * T
        if u == 0:
            for un in tiles[0][:T]:
                for r in un['reads']: p(r)
            st.reads(tiles[0][T:], 0, g0 + 36 - RGAP)
            bar = None; glo = 0
        else:
            w = [f"WAITVM W{u}", "s_waitcnt lgkmcnt(0)"]
            if STAMP and STSET == 'Q' and u % 2 == 0 and u <= 16:
                k = [2, 3, 4, 6, 7, 8, 9, 10][u // 2 - 1]
                w.append(f"s_memrealtime s[{sSTAMP+2*k}:{sSTAMP+2*k+1}]")
            if STAMP and STSET == 'q' and u in (5, 10, 15): w.append(f"{'s_memtime' if STAMP == 2 else 's_memrealtime'} s[{sSTAMP+2*(1+u//5)}:{sSTAMP+2*(1+u//5)+1}]")
            bar = st.barrier(g0, w)
            st.reads(tiles[u], g0 + 1, g0 + 36 - RGAP, [(bar, 0)])
            glo = g0 + 2
        if u < 19:
            va = vVA if (u + 1) % 2 == 0 else vVB
            st.add(chain([Item('V', f"v_add_u32 v{va+uu}, {wslot(u+1)*SLOT}, v{vVL+uu}") for uu in range(4)], glo + 6, g0 + 30))
        e, xr, l = QS[u]
        f1 = [g for n in e for g in issue(n)]
        nx = [g for n in l for g in issue(n)]
        seq = []
        if f1:
            chain(f1, glo, glo + 12)
            if bar: f1[0].after.append((bar, 1))
            seq += f1
        if xr is not None:
            rd = [S(f"WAITVM X{xr}")] + read_x(xr)
            chain(rd, g0 + 14, g0 + 22)
            seq += rd
            if nx: nx = [Item('V', f"v_accvgpr_read_b32 v{vT0}, a{xfrag(xr,1,2)}", after=[(rd[-1], 4)])] + nx
        if nx:
            chain(nx, g0 + 24, g0 + 35)
            seq += nx
        for k in range(len(seq)):
            pv = seq[k - 1] if k else prevdma
            if pv is not None and not any(a is pv for a, _ in seq[k].after): seq[k].after.append((pv, 1))
            seq[k].hi = g0 + 50 if seq[k].kind != 'L' else g0 + 30
        if seq: prevdma = seq[-1]
        st.add(seq)
    p.cur += st.emit(name="qproj")
    SC = math.log2(math.e) / math.sqrt(192.0)
    p(f"s_mov_b32 s{sTMP+2}, {f32(SC)}\ns_mov_b32 s{sTMP+3}, {f32(SC)}")
    for s in range(6):
        for qb in range(3):
            a = vACC + ((2 * s) * 3 + qb) * 4; b = vACC + ((2 * s + 1) * 3 + qb) * 4
            q = qfrag(qb, s)
            for r in (a, a + 2, b, b + 2):
                p(f"v_pk_mul_f32 {vr(r,2)}, {vr(r,2)}, s[{sTMP+2}:{sTMP+3}]")
            p(f"v_cvt_pk_bf16_f32 v{q}, v{a}, v{a+1}\nv_cvt_pk_bf16_f32 v{q+1}, v{a+2}, v{a+3}")
            p(f"v_cvt_pk_bf16_f32 v{q+2}, v{b}, v{b+1}\nv_cvt_pk_bf16_f32 v{q+3}, v{b+2}, v{b+3}")
    for s in range(6):
        for qb in range(3):
            q = qfrag(qb, s)
            p(f"v_permlane16_swap_b32 v{q}, v{q+2}\nv_permlane16_swap_b32 v{q+1}, v{q+3}")

def qk_units(pool, buf, zero=False, imm=0):
    units = []
    for kb in range(2):
        for ds in range(6):
            pb = pool.next()
            mf = []
            for qb in range(3):
                d = sreg(buf, qb, kb)
                c = vr(d) if ds else (0 if zero else vr(vNM + 4 * qb))
                mf.append(I(f"{MF} {vr(d)}, {ar(pb)}, {vr(qfrag(qb,ds))}, {c}"))
            units.append(dict(reads=kunit_reads(pb, kb, ds, imm), mf=snake(mf, ds)))
    return units
def rs_unit(buf, zero=False):
    return dict(reads=None, mf=[I(f"{MF} {vr(vL[buf]+4*qb)}, {vr(vONE)}, {vr(vP[buf]+4*qb)}, {0 if zero else vr(vL[buf^1]+4*qb)}") for qb in range(3)])
def pv_units(pool, buf, zero=False, imm=0):
    units = []
    for db in range(12):
        pb = pool.next()
        mf = [I(f"{MF} {ar(oacc(db,qb))}, {ar(pb)}, {vr(vP[buf]+4*qb)}, {0 if zero else ar(oacc(db,qb))}") for qb in range(3)]
        units.append(dict(reads=vunit_reads(pb, db, SLOT + imm), mf=snake(mf, db)))
    return units

PAIRS = [(qb, kb, h) for kb in range(2) for qb in range(3) for h in range(2)]
def softmax_items(buf, n0, n1, lo, hi):
    ex = []; cv = []
    for n in range(n0, n1):
        qb, kb, h = PAIRS[n]
        s = sreg(buf, qb, kb) + 2 * h
        e = vE + 2 * (n % NE)
        a = Item('E', f"v_exp_f32 v{e}, v{s}"); b = Item('E', f"v_exp_f32 v{e+1}, v{s+1}")
        if len(cv) >= NE: a.after.append((cv[-NE], 1))
        ex += [a, b]
        cv.append(Item('V', f"v_cvt_pk_bf16_f32 v{vP[buf]+4*qb+2*kb+h}, v{e}, v{e+1}", lo=lo, hi=hi, after=[(b, 1)]))
    chain(ex, lo, hi - 1)
    for e in ex: e.hi = hi
    for k, c in enumerate(cv): c.target = ex[2 * k + 1].target + 1
    return ex + cv
SPLIT = 6
LTHR = 2.0 ** 40
def rowmax(p, buf, qb, dst):
    s0, s1 = sreg(buf, qb, 0), sreg(buf, qb, 1)
    p(f"""
v_max3_f32 v{dst}, v{s0}, v{s0+1}, v{s0+2}
v_max3_f32 v{dst}, v{dst}, v{s0+3}, v{s1}
v_max3_f32 v{dst}, v{dst}, v{s1+1}, v{s1+2}
v_max_f32 v{dst}, v{dst}, v{s1+3}
v_mov_b32 v{vR+8}, v{dst}
v_permlane32_swap_b32 v{dst}, v{vR+8}
v_max_f32 v{dst}, v{dst}, v{vR+8}
v_mov_b32 v{vR+8}, v{dst}
v_permlane16_swap_b32 v{dst}, v{vR+8}
v_max_f32 v{dst}, v{dst}, v{vR+8}
""")

def rare_path(p, label, buf):
    p.reset_state()
    p(f"{label}:\ns_nop 15")
    for qb in range(3):
        d = vR + qb
        rowmax(p, buf, qb, d)
        p(f"v_max_f32 v{d}, 0, v{d}")
        for r in range(4): p(f"v_sub_f32 v{vNM+4*qb+r}, v{vNM+4*qb+r}, v{d}")
        for bb in (buf, buf ^ 1):
            for r in range(8): p(f"v_sub_f32 v{sreg(bb,qb,0)+r}, v{sreg(bb,qb,0)+r}, v{d}")
        p(f"v_exp_f32_e64 v{vR+4+qb}, -v{d}")
    for qb in range(3):
        for r in range(4): p(f"v_mul_f32 v{vL[buf^1]+4*qb+r}, v{vL[buf^1]+4*qb+r}, v{vR+4+qb}")
        for r in [oacc(db, qb) + r for db in range(12) for r in range(4)]:
            p(f"v_accvgpr_read_b32 v{vR+9}, a{r}\nv_mul_f32 v{vR+9}, v{vR+9}, v{vR+4+qb}\nv_accvgpr_write_b32 a{r}, v{vR+9}")
    for (qb, kb, h) in PAIRS:
        s = sreg(buf, qb, kb) + 2 * h
        p(f"v_exp_f32 v{vE}, v{s}\nv_exp_f32 v{vE+1}, v{s+1}\nv_cvt_pk_bf16_f32 v{vP[buf]+4*qb+2*kb+h}, v{vE}, v{vE+1}")
    p.cur += rs_unit(buf)['mf']
    p(f"s_nop 15\ns_setpc_b64 s[98:99]")
    p.flush()

GSZ = 20480
TRAMPS = []
OUTL = []
def goff(G): return ((G + 4) % 8) * GSZ
def dma_wo(m0a, m0b, tag):
    g = []
    for j in range(5):
        if j == 0: g.append(S(m0a))
        if j == 4: g.append(S(m0b))
        g.append(Item('M', f"buffer_load_dwordx4 v{vWOD+j}, s[{sWo}:{sWo+3}], s{sWOFF} offen offset:{1024*(j%4)} {NTO} lds", tag=tag))
    return g + wrap_items(sWOFF, 4 * 40960, 48 * 40960)
def dma_wo_static(G):
    sl = goff(G)
    return dma_wo(f"s_add_u32 m0, s{sWW}, {sl}", f"s_add_u32 m0, s{sWW}, {sl+4096}", f"G{G}")

def setup_oproj(p):
    t = 136
    for j in range(5):
        p(f"""
v_add_u32 v{t}, {64*j}, v0
v_mul_u32_u24 v{t+1}, 205, v{t}
v_lshrrev_b32 v{t+1}, 11, v{t+1}
v_mul_u32_u24 v{t+2}, 10, v{t+1}
v_sub_u32 v{t+2}, v{t}, v{t+2}
v_mul_u32_u24 v{t+1}, 1280, v{t+1}
v_lshl_add_u32 v{t+1}, v{t+2}, 4, v{t+1}
v_subrev_u32 v{vWOD+j}, {1024*(j%4)}, v{t+1}
""")
    p(f"""
v_lshrrev_b32 v{t}, 2, v0
v_mul_u32_u24 v{t}, 160, v{t}
v_and_b32 v{t+1}, 3, v0
v_lshl_add_u32 v{vWOL}, v{t+1}, 3, v{t}
v_lshlrev_b32 v{vOL}, 4, v0
v_add_u32 v{vOL}, s{sM0W}, v{vOL}
s_mul_i32 s{sWW}, s{sWAVE}, 5120
s_mul_i32 s{sTMP}, s{sHL}, 6
s_add_u32 s{sTMP}, s{sTMP}, s{sWAVE}
s_mul_i32 s{sWOFF}, s{sTMP}, 40960
""")
    p(f"""
s_lshl_b32 s{sTMP}, s{sB}, 3
s_add_u32 s{sTMP}, s{sTMP}, s{sHL}
s_lshl_b32 s{sTMP}, s{sTMP}, 2
s_add_u32 s{sTMP}, s{sTMP}, s{sWAVE}
s_mul_i32 s{sTMP+1}, s{sTMP}, {4*15360}
""")
    ws_srd(p, sP, sTMP + 1, PART_OFF, 4 * 15360)
    p(f"""
s_mul_i32 s{sTMP}, s{sHL}, 160
s_sub_u32 s96, s84, s{sTMP}
s_subb_u32 s97, s85, 0
s_lshr_b32 s{sTMP}, s2, 3
s_lshl_b32 s{sTMP}, s{sTMP}, 2
s_add_u32 s{sTMP}, s{sTMP}, s{sWAVE}
s_mul_i32 s{sTMP}, s{sTMP}, {120*128}
s_add_u32 s96, s96, s{sTMP}
s_addc_u32 s97, s97, 0
v_lshlrev_b32 v{vPF}, 8, v0
""")
    srd(p, sPF, 96, 97, 120 * 128)
    p(f"""
s_lshl_b32 s{sTMP}, s{sB}, 2
s_add_u32 s{sTMP}, s{sTMP}, s{sWAVE}
s_mul_i32 s{sTMP}, s{sTMP}, {48*1280}
s_mul_i32 s{sTMP+1}, s{sHL}, 160
s_add_u32 s{sTMP}, s{sTMP}, s{sTMP+1}
""")
    addptr(p, 86, sTMP)
    srd(p, sOUT, 86, 87, 47 * 1280 + 160)

def attention(p, pool):
    for r in range(4): p(f"v_mov_b32 v{vONE+r}, 0x3f803f80")
    for db in range(12 - T, 12):
        for r in range(12): p(f"v_accvgpr_write_b32 a{oacc(db,0)+r}, 0")
    setup_oproj(p)
    p(f"s_mov_b32 s{sLTHR}, {f32(LTHR)}")
    for u in range(2): p(f"v_mov_b32 v{vKA+u}, v{vKL+u}")
    p("WAITVM V0")
    p("s_waitcnt lgkmcnt(0)\ns_barrier")
    st = Stream()
    qk = qk_units(pool, 0, zero=True)
    for u in qk: st.add_unit(u)
    for u in qk[:4]: p(u['reads'][0])
    st.reads(qk[4:], 0, 22)
    p.cur += st.emit(name="qk0")
    for qb in range(3):
        d = vR + qb
        rowmax(p, 0, qb, d)
        for r in range(4): p(f"v_sub_f32 v{vNM+4*qb+r}, 0, v{d}")
        for r in range(8): p(f"v_sub_f32 v{sreg(0,qb,0)+r}, v{sreg(0,qb,0)+r}, v{d}")
    skipmask = sum(1 << s for s in SKIPS)
    assert all(s % 2 == 1 and s <= 25 for s in SKIPS) and len(SKIPS) <= 2
    p(f"""
s_mov_b32 s{sWR}, s{sM0W}
s_mov_b32 s{sRD}, 0
s_mov_b32 s{sT}, 1
""")
    for u in range(4): p(f"v_mov_b32 v{vVA+u}, v{vVL+u}")
    def kv_issue(par, nok=False):
        dk = dma_tile('K', [f"s_mov_b32 m0, s{sWR}"], f"s{sKK}") if not nok else []
        dv = dma_tile('V', [f"s_add_u32 m0, s{sWR}, {SLOT}"], f"s{sKOFF}")
        post = [S(f"s_mov_b32 s{sKOFF}, s{sKK}")] + wrap0_items(sKK, SLOT, 32 * SLOT)
        if par and not SKIPS: post.append(S(f"s_cmp_eq_u32 s{sT}, 25\ns_cselect_b32 s{sKK}, {32*SLOT}, s{sKK}"))
        return dk + dv + post + wrap0_items(sWR, 2 * SLOT, 12 * SLOT, f"s{sM0W}")
    def step(t_par, tail, mode, vm, extra=(), endi=()):
        cur, nxt = t_par, t_par ^ 1
        first = mode == 'first'; last = mode == 'last'
        imm = 0 if t_par else 2 * SLOT
        st = Stream(tail)
        pre = []
        qk = [] if last else qk_units(pool, nxt, imm=imm)
        pv = pv_units(pool, cur, zero=first, imm=imm)
        rs = rs_unit(cur, zero=first)
        if not first:
            ret = p.newlabel("L_ret"); tr = p.newlabel("L_tramp")
            TRAMPS.append((tr, ret, cur))
            pv[0]['head'] = L(f"s_cbranch_vccnz {tr}\n{ret}:")
        order = qk[:9] + [rs] + qk[9:] + pv if not first else qk + [rs] + pv
        for u in order: st.add_unit(u)
        keep = 0 if last else 3 * T
        n = st.n() - keep
        wait = [f"s_waitcnt vmcnt({vm}) lgkmcnt(0)"]
        if first:
            pre = L("s_waitcnt lgkmcnt(0)\ns_barrier") + [I(u['reads'][0]) for u in qk[:4]]
            kr = st.reads(qk[4:], 0, 20); bar = None
        else:
            bar = st.barrier(0, wait)
            kr = st.reads(qk, 1, 33, [(bar, 0)]) if qk else []
        aft = ([(bar, 0)] if bar else []) + ([(kr[-1], 0)] if kr else [])
        if t_par:
            va = chain([Item('V', f"v_add_u32 v{vVA+u}, s{sRD}, v{vVL+u}") for u in range(4)], 0, 3 if last else 20)
            st.add(va); aft.append((va[-1], 1))
        vlo = (kr[-1].target + 2) if kr else 3
        st.reads(pv, vlo, (n - 12) if not last else 36, aft)
        if not t_par:
            up = wrap0_items(sRD, 4 * SLOT, 12 * SLOT) + [Item('V', f"v_add_u32 v{vKA+u}, s{sRD}, v{vKL+u}") for u in range(2)]
            up[0].after += [(kr[-1], 1)]
            st.add(chain(up, rs['first'], n - 4))
        dm = []
        if mode in ('first', 'A'):
            dm += kv_issue(t_par)
            chain(dm, 2, 30)
            for x in dm: x.hi = n - 8
        if extra:
            chain(extra, (rs['first'] + 4) if last else 2, n - 1 if last else 50); dm += extra
            for x in extra: x.hi = n - 1
        if dm and bar: dm[0].after.append((bar, 1))
        st.add(dm)
        st.add(softmax_items(cur, 0 if first else SPLIT, 12, 0, rs['first'] - 2))
        if not first:
            mx = Item('V', f"v_max3_f32 v{vCK}, v{vL[cur]}, v{vL[cur]+4}, v{vL[cur]+8}", lo=min(rs['first'] + 6, pv[0]['first'] - 1), hi=pv[0]['first'] - 1)
            cm = Item('V', f"v_cmp_nge_f32 vcc, s{sLTHR}, v{vCK}", after=[(mx, 0)], hi=pv[0]['first'] - 1)
            st.add([mx, cm])
        if not last: st.add(softmax_items(nxt, 0, SPLIT, pv[0]['first'] + 1, n - 1))
        if endi: st.add(chain(list(endi), n - 3, n - 1, 0))
        body = st.emit(keep, name=mode)
        return pre + body, ([] if last else [dict(mf=u['mf'], needwait=False) for u in pv[12 - T:]])
    ins, tail0 = step(0, [], 'first', 0)
    p.cur += ins
    sv = pool.n; pool.n -= 12
    tail = [dict(mf=u['mf']) for u in pv_units(pool, 0)[12 - T:]]
    assert pool.n == sv
    txt = lambda tl: [[i.text for i in u['mf']] for u in tl]
    lp = p.newlabel("L_attA"); le = p.newlabel("L_attE"); ls = p.newlabel("L_attS")
    VMA = 12 if SKIPS else 24
    b1, tail1 = step(1, tail, 'A', VMA)
    b2, tail2 = step(0, tail1, 'A', VMA, endi=[S(f"s_add_u32 s{sT}, s{sT}, 2"), S(f"s_cmp_lt_u32 s{sT}, 27")])
    assert txt(tail2) == txt(tail)
    if SKIPS:
        bs, tails = step(1, tail, 'skip', 12)
        assert txt(tails) == txt(tail1)
        p.loop(L(f"{lp}:\ns_bitcmp1_b32 {skipmask}, s{sT}\ns_cbranch_scc1 {ls}") + b1 + L(f"{le}:") + b2 + L(f"s_cbranch_scc1 {lp}"))
        q = Prog(); q.st = p.st.clone()
        q.cur = L(f"{ls}:") + bs + L(f"s_branch {le}")
        OUTL.append(q.text())
    else:
        tr = []
        if TRACE:
            tr = L(f"s_memrealtime s[54:55]\ns_memtime s[56:57]\ns_waitcnt lgkmcnt(0)\nv_writelane_b32 v174, s54, s{sT}\nv_writelane_b32 v175, s56, s{sT}".replace("v_writelane_b32 v174, s54, s%d" % sT, "s_mov_b32 m0, s%d\nv_writelane_b32 v174, s54, m0" % sT).replace("v_writelane_b32 v175, s56, s%d" % sT, "v_writelane_b32 v175, s56, m0"))
        p.loop(L(f"{lp}:") + tr + b1 + b2 + L(f"s_cbranch_scc1 {lp}"))
        if TRACE:
            p(f"s_mov_b32 s{sTMP}, 0")
            ws_srd(p, 56, sTMP, STAMP_OFF + 65536, 1 << 20)
            p(f"s_lshl_b32 s{sTMP}, s2, 2\ns_add_u32 s{sTMP}, s{sTMP}, s{sWAVE}\ns_lshl_b32 s{sTMP}, s{sTMP}, 9\nv_lshlrev_b32 v{vT0}, 3, v0")
            p(f"buffer_store_dwordx2 v[174:175], v{vT0}, s[56:59], s{sTMP} offen")
    stamp(p, 6)
    p("L_att27:")
    cnt = lambda its: sum(1 for x in its if x.kind == 'M')
    NSK = len(SKIPS)
    pf = [Item('M', f"buffer_load_dword v{vPF+1+k}, v{vPF}, s[{sPF}:{sPF+3}], 0 offen offset:{k*128} {NTO}", tag="dummy") for k in range(2)] if WOPF else []
    xc = [Item('M', f"buffer_load_dwordx2 v[{vXC}:{vXC+1}], v{vF1}, s[{sF}:{sF+3}], 0 offen offset:128 sc1")]
    plan = {0: {27: ['x', 'p'], 28: [0, 1], 29: [2, 3], 30: [4], 31: [5, 6]},
            1: {27: ['x', 'kv'], 28: ['p', 0], 29: [1, 2], 30: [3, 4], 31: [5, 6]},
            2: {27: ['x', 'kv'], 28: ['kv'], 29: ['p', 0], 30: [1, 2], 31: [3, 4]}}[NSK]
    global NEXTG
    NEXTG = plan[31][-1] + 1
    log = []
    for pr in range(27, 32 - NSK): log += [pr] * 6
    nxtpair = 32 - NSK
    tl = tail
    for t in range(27, 32):
        vm = len(log) - 1 - max(k for k, x in enumerate(log) if x == t)
        ex = []
        for a in plan[t]:
            if a == 'kv':
                its = kv_issue(0, nok=(nxtpair == 31)); log += [nxtpair] * cnt(its); nxtpair += 1
            else:
                its = xc if a == 'x' else pf if a == 'p' else dma_wo_static(a); log += [-1] * cnt(its)
            ex += its
        ins, tl = step(t & 1, tl, 'last' if t == 31 else 'P', min(vm, 63), ex); p.cur += ins

def o_epilogue(p, pol):
    for qb in range(3): p(f"v_rcp_f32 v{vRC+2*qb}, v{vL[1]+4*qb}")
    p(f"s_mul_i32 s{sXOFF}, s{sHL}, 73728")
    n = 0
    for s in range(6):
        for qb in range(3):
            t = vQ + 8 * (n % 4); n += 1
            d = bfrag(s, qb)
            for r in range(4):
                p(f"v_accvgpr_read_b32 v{t+r}, a{oacc(2*s,qb)+r}")
                p(f"v_accvgpr_read_b32 v{t+4+r}, a{oacc(2*s+1,qb)+r}")
            for r in range(0, 8, 2):
                p(f"v_pk_mul_f32 {vr(t+r,2)}, {vr(t+r,2)}, {vr(vRC+2*qb,2)} op_sel_hi:[1,0]")
            for r in range(4):
                p(f"v_cvt_pk_bf16_f32 v{d+r}, v{t+2*r}, v{t+2*r+1}")
            p(f"buffer_store_dwordx4 {vr(d)}, v{vOL}, s[{sO}:{sO+3}], s{sXOFF} offen offset:{1024*qb} {pol}", "OST")
        flat(p, wrap0_items(sXOFF, 12288, 48 * 12288))

def handshake_and_store(p):
    if not FAST:
        o_epilogue(p, "sc1"); p(f"s_mov_b32 s{sFASTF}, 0"); return
    p(f"s_mov_b32 s{sXCC+1}, s{sTK1+1}\nv_cmp_ne_u64 vcc, s[{sXCC}:{sXCC+1}], v[{vXC}:{vXC+1}]\ns_mov_b32 s{sFASTF}, 1\ns_cbranch_vccnz L_slowst")
    p.flush()
    q = Prog(); q.st = p.st.clone()
    q(f"L_slowst:\ns_mov_b32 s{sFASTF}, 0")
    o_epilogue(q, "sc1")
    q("s_branch L_stdone")
    OUTL.append(q.text())
    o_epilogue(p, OFAST)
    p("L_stdone:")

def set_flag(vfl, sidx, tk, fast=False):
    st = f"buffer_store_dwordx2 v[{vFLV}:{vFLV+1}], v{vfl}, s[{sF}:{sF+3}], 0 offen"
    pre = f"v_mov_b32 v{vFLV}, s{tk}\nv_mov_b32 v{vFLV+1}, s{tk+1}\ns_lshl_b64 exec, 1, s{sidx}\n"
    if not fast:
        return L(pre + st + " sc1\ns_mov_b64 exec, -1")
    OUTL.append(f"L_slowfl:\n{st} sc1\ns_branch L_fldone\n")
    return L(pre + f"s_cmp_eq_u32 s{sFASTF}, 0\ns_cbranch_scc1 L_slowfl\n{st}\nL_fldone:\ns_mov_b64 exec, -1")

def poll(p, voff, tk, sidx):
    lp = p.newlabel("L_poll"); dn = p.newlabel("L_pd"); ne = p.newlabel("L_ne")
    p(f"s_mov_b32 s{sTMP}, 0x20000")
    p.flush()
    p.raw(f"""{lp}:
buffer_load_dwordx2 v[{vFLV}:{vFLV+1}], v{voff}, s[{sF}:{sF+3}], 0 offen sc1
s_waitcnt vmcnt(0)
v_cmp_ne_u64 vcc, s[{tk}:{tk+1}], v[{vFLV}:{vFLV+1}]
s_cbranch_vccz {dn}
s_sub_u32 s{sTMP}, s{sTMP}, 1
s_cmp_lg_u32 s{sTMP}, 0
s_cbranch_scc1 {lp}
{dn}:""")
    p("s_waitcnt vmcnt(0)")
def bump_epoch(p, voff, tk, sidx):
    ne = p.newlabel("L_ne")
    p(f"s_cmp_lg_u32 s{sidx}, 0\ns_cbranch_scc1 {ne}\nv_mov_b32 v{vFLV}, s{tk}\nv_mov_b32 v{vFLV+1}, s{tk+1}\ns_mov_b64 exec, 1")
    p.flush()
    p.raw(f"buffer_store_dwordx2 v[{vFLV}:{vFLV+1}], v{voff}, s[{sF}:{sF+3}], 0 offen offset:64 sc1")
    p(f"s_mov_b64 exec, -1\n{ne}:")

def load_b(u):
    g = [Item('M', f"buffer_load_dwordx4 {vr(bfrag(u,qb))}, v{vOL}, s[{sO}:{sO+3}], s{sXOFF} offen offset:{1024*qb} {OLD}") for qb in range(3)]
    return g + wrap0_items(sXOFF, 12288, 48 * 12288)

def oproj(p):
    pool = Pool(12)
    def units(G):
        us = []
        for ks in range(4):
            u = 4 * G + ks
            for nb in range(5):
                pb = pool.next()
                va = vWOA + (G & 1)
                rd = [f"ds_read_b64_tr_b16 {ar(pb,2)}, v{va} offset:{ks*5120+nb*32}", f"ds_read_b64_tr_b16 {ar(pb+2,2)}, v{va} offset:{ks*5120+nb*32+2560}"]
                mf = [I(f"{MF} {ar(aC+(nb*3+qb)*4)}, {ar(pb)}, {vr(bfrag(u,qb))}, {ar(aC+(nb*3+qb)*4) if u else 0}") for qb in range(3)]
                us.append(dict(reads=rd, mf=snake(mf, nb)))
        return us
    U = [units(G) for G in range(12)]
    p(f"v_add_u32 v{vWOA}, {goff(0)}, v{vWOL}\nv_add_u32 v{vWOA+1}, {goff(1)}, v{vWOL}")
    p("WAITVM G1\ns_waitcnt lgkmcnt(0)\ns_barrier")
    st = Stream()
    for u in U[0] + U[1][:T]: st.add_unit(u)
    for u in U[0][:T]:
        for r in u['reads']: p(r)
    st.reads(U[0][T:] + U[1][:T], 0, 56)
    fl = Item('M', [I("WAITVM OST")] + set_flag(vF1, sHL, sTK1, True), lo=FLAGPOS, target=FLAGPOS)
    st.add([fl])
    w7 = chain([x for G in range(NEXTG, 8) for x in dma_wo_static(G)], FLAGPOS + 2, 59); w7[0].after.append((fl, 1)); st.add(w7)
    p.cur += st.emit(3 * T, name="op0")
    stamp(p, 8)
    poll(p, vF1, sTK1, sHL)
    stamp(p, 9)
    for u in range(6, 12): flat(p, load_b(u))
    st = Stream()
    for G in range(1, 12):
        for u in U[G]: st.add_unit(u)
    prev = None
    for G in range(1, 12):
        g0 = 60 * (G - 1) - 3 * T
        if G == 1:
            bar = st.barrier(0, ["s_nop 0"])
            st.reads(U[1][T:], 0, g0 + 60 - RGAP)
        else:
            w = [f"WAITVM G{G}", "s_waitcnt lgkmcnt(0)"]
            if STAMP and STSET == 'o' and G in (3, 6, 9): w.append(f"s_memrealtime s[{sSTAMP+2*(G//3)}:{sSTAMP+2*(G//3)+1}]")
            bar = st.barrier(g0, w)
            st.reads(U[G], g0 + 1, g0 + 60 - RGAP, [(bar, 0)])
        if G < 11:
            st.add([Item('V', f"v_add_u32 v{vWOA+((G+1)&1)}, {goff(G+1)}, v{vWOL}", lo=g0 + 20, hi=g0 + 50)])
        seq = []
        if G + 7 <= 11:
            seq += dma_wo_static(G + 7); seq[0].after.append((bar, 1))
        nw = len(seq)
        if G + 2 <= 11:
            seq += [g for u in range(4 * (G + 2), 4 * (G + 2) + 4) for g in load_b(u)]
            seq[nw].lo = g0 + 3 * T + 1
        if seq:
            chain(seq, max(g0 + 2, 2), g0 + 57)
            for x in seq: x.hi = g0 + 70
            if prev: seq[0].after.append((prev, 1))
            prev = seq[-1]
            st.add(seq)
    p.cur += st.emit(name="oproj")
    if STSET == 'o': stamp(p, 4)

def final_reduce(p):
    p(f"v_lshlrev_b32 v{vOL}, 4, v0\ns_mul_i32 s{sTMP+2}, s{sHG}, 15360")
    for tt in range(15):
        if tt % 4 == 0: p(f"s_add_u32 s{sTMP+1}, s{sTMP+2}, {tt*1024}")
        p(f"buffer_store_dwordx4 {ar(aC+tt*4)}, v{vOL}, s[{sP}:{sP+3}], s{sTMP+1} offen offset:{(tt%4)*1024} sc1")
    p(f"""
s_lshl_b32 s{sTMP}, s{sHG}, 10
v_add_u32 v2, s{sTMP}, v{vOL}
v_and_b32 v3, 15, v0
v_mul_u32_u24 v3, 1280, v3
v_lshrrev_b32 v4, 4, v0
v_lshl_add_u32 v3, v4, 3, v3
s_waitcnt vmcnt(0)
""")
    p.cur += set_flag(vF2, sHG, sTK2)
    stamp(p, 10)
    poll(p, vF2, sTK2, sHG)
    for i in range(4):
        for g in range(4):
            p(f"s_mov_b32 s{sTMP+1}, {g*15360 + i*4096}")
            p(f"buffer_load_dwordx4 {vr(32+(i*4+g)*4)}, v2, s[{sP}:{sP+3}], s{sTMP+1} offen sc1")
    for i in range(4):
        b = 32 + i * 16
        p(f"""
s_add_u32 s{sTMP}, s{sHG}, {4*i}
s_mul_i32 s{sTMP+1}, s{sTMP}, 11
s_lshr_b32 s{sTMP+1}, s{sTMP+1}, 5
s_mul_i32 s{sTMP+2}, s{sTMP+1}, 3
s_sub_u32 s{sTMP+2}, s{sTMP}, s{sTMP+2}
s_mul_i32 s{sTMP+2}, s{sTMP+2}, {16*1280}
s_lshl_b32 s{sTMP+1}, s{sTMP+1}, 5
s_add_u32 s{sTMP+1}, s{sTMP+1}, s{sTMP+2}
""")
        if i == 3: p(f"s_cmp_eq_u32 s{sHG}, 3\ns_cbranch_scc1 L_skip3")
        for r in range(4):
            p(f"v_add_f32 v{b+r}, v{b+r}, v{b+4+r}\nv_add_f32 v{b+8+r}, v{b+8+r}, v{b+12+r}\nv_add_f32 v{b+r}, v{b+r}, v{b+8+r}")
        p(f"v_cvt_pk_bf16_f32 v{b+4}, v{b}, v{b+1}\nv_cvt_pk_bf16_f32 v{b+5}, v{b+2}, v{b+3}")
        p(f"buffer_store_dwordx2 {vr(b+4,2)}, v3, s[{sOUT}:{sOUT+3}], s{sTMP+1} offen")
    p("L_skip3:")
    bump_epoch(p, vF1, sTK1, sHL)
    bump_epoch(p, vF2, sTK2, sHG)

def store_stamps(p):
    if not STAMP: return
    p("s_waitcnt vmcnt(0)")
    stamp(p, 11)
    p(f"s_mov_b32 s{sTMP}, 0")
    ws_srd(p, sK, sTMP, STAMP_OFF, 65536)
    lab = p.newlabel("L_nost")
    p("s_waitcnt lgkmcnt(0)")
    p(f"s_cmp_lg_u32 s{sWAVE}, 0\ns_cbranch_scc1 {lab}")
    p(f"s_lshl_b32 s{sTMP}, s2, 7\nv_mov_b32 v2, s{sTMP}")
    p("s_mov_b64 exec, 1")
    for i in range(NSTAMP):
        p(f"v_mov_b32 v4, s{sSTAMP+2*i}\nv_mov_b32 v5, s{sSTAMP+2*i+1}")
        p(f"buffer_store_dwordx2 v[4:5], v2, s[{sK}:{sK+3}], 0 offen offset:{8*i}")
        p("s_nop 1")
    for i, r in enumerate(CST.values()):
        p(f"v_mov_b32 v4, s{r}\nv_mov_b32 v5, s{r+1}")
        p(f"buffer_store_dwordx2 v[4:5], v2, s[{sK}:{sK+3}], 0 offen offset:{8*(NSTAMP+i)}")
        p("s_nop 1")
    p("s_waitcnt vmcnt(0)")
    p(f"{lab}:")

def kernel(p):
    name = NAME + "_kernel"
    p.raw(f".globl {name}\n.p2align 8\n.type {name},@function\n{name}:")
    p("s_cmp_ge_u32 s2, 256\ns_cbranch_scc1 L_end")
    stamp(p, 0)
    p(f"""
s_load_dwordx8 s[76:83], s[0:1], 0
s_load_dwordx8 s[84:91], s[0:1], 32
v_lshrrev_b32 v1, 6, v0
v_and_b32 v0, 63, v0
v_readfirstlane_b32 s{sWAVE}, v1
s_and_b32 s{sHG}, s2, 3
s_bfe_u32 s{sB}, s2, 0x10002
s_lshl_b32 s{sB}, s{sB}, 2
s_lshr_b32 s{sTMP+1}, s2, 6
s_add_u32 s{sB}, s{sB}, s{sTMP+1}
s_bfe_u32 s{sHL}, s2, 0x30003
s_lshl_b32 s{sH}, s{sHG}, 3
s_add_u32 s{sH}, s{sH}, s{sHL}
s_mul_i32 s{sM0W}, s{sWAVE}, 3072
s_getreg_b32 s{sXCC}, hwreg(HW_REG_XCC_ID, 0, 4)
""")
    if KSTAG:
        p(f"s_mul_i32 s{sKK}, s2, 11\ns_lshr_b32 s{sTMP+2}, s2, 5\ns_add_u32 s{sKK}, s{sKK}, s{sTMP+2}\ns_and_b32 s{sKK}, s{sKK}, 31\ns_mul_i32 s{sKK}, s{sKK}, {SLOT}")
    else:
        p(f"s_mov_b32 s{sKK}, 0")
    p(f"s_mov_b32 s{sKOFF}, s{sKK}")
    if STAG:
        p(f"""
s_mul_i32 s{sTMP+1}, s{sTMP+1}, 5
s_lshr_b32 s{sTMP+1}, s{sTMP+1}, 1
s_mul_i32 s{sTMP+2}, s{sHL}, 5
s_lshr_b32 s{sTMP+2}, s{sTMP+2}, 2
s_add_u32 s{sTMP+1}, s{sTMP+1}, s{sTMP+2}
s_cmp_ge_u32 s{sTMP+1}, 10
s_cselect_b32 s{sTMP+2}, 10, 0
s_sub_u32 s{sTMP+1}, s{sTMP+1}, s{sTMP+2}
s_lshl_b32 s{sXOFF}, s{sTMP+1}, 7
s_mul_i32 s{sWOFF}, s{sTMP+1}, {64*12288}
""")
    else:
        p(f"s_mov_b32 s{sXOFF}, 0\ns_mov_b32 s{sWOFF}, 0")
    setup_dma(p)
    p(f"s_and_b32 s{sTMP+1}, s{sB}, 4\ns_mul_i32 s{sTMP+1}, s{sTMP+1}, {192*1280}")
    addptr(p, 76, sTMP + 1)
    srd(p, sX, 76, 77, 768 * 1280)
    p(f"s_mov_b32 s{sTMP+1}, 0")
    ws_srd(p, sF, sTMP + 1, FLAG_OFF, F2BASE + 256 * 128)
    p(f"""
s_lshl_b32 s{sTMP+1}, s{sB}, 2
s_add_u32 s{sTMP+1}, s{sTMP+1}, s{sHG}
s_lshl_b32 s{sTMP+1}, s{sTMP+1}, 2
s_add_u32 s{sTMP+1}, s{sTMP+1}, s{sWAVE}
s_lshl_b32 s{sTMP+1}, s{sTMP+1}, 8
s_lshl_b32 s{sTMP+2}, s{sB}, 3
s_add_u32 s{sTMP+2}, s{sTMP+2}, s{sHL}
s_lshl_b32 s{sTMP+2}, s{sTMP+2}, 2
s_add_u32 s{sTMP+2}, s{sTMP+2}, s{sWAVE}
s_lshl_b32 s{sTMP+2}, s{sTMP+2}, 7
s_add_u32 s{sTMP+2}, s{sTMP+2}, {F2BASE}
v_and_b32 v248, 7, v0
v_lshl_add_u32 v{vF1}, v248, 3, s{sTMP+1}
v_and_b32 v248, 3, v0
v_lshl_add_u32 v{vF2}, v248, 3, s{sTMP+2}
s_add_u32 s{sTMP+1}, s{sTMP+1}, 64
s_add_u32 s{sTMP+2}, s{sTMP+2}, 64
s_load_dwordx2 s[{sTK1}:{sTK1+1}], s[96:97], s{sTMP+1}
s_load_dwordx2 s[{sTK2}:{sTK2+1}], s[96:97], s{sTMP+2}
""")
    lab = p.newlabel("L_nopf")
    p(f"s_cmp_lg_u32 s{sWAVE}, 0\ns_cbranch_scc1 {lab}")
    if CODEPF:
        p(f"""
s_mov_b64 exec, -1
s_getpc_b64 s[98:99]
s_lshr_b32 s{sTMP+1}, s2, 3
s_mul_i32 s{sTMP+1}, s{sTMP+1}, {12*128}
v_lshlrev_b32 v252, 7, v0
v_add_u32 v252, s{sTMP+1}, v252
v_mov_b32 v253, s99
v_add_co_u32 v252, vcc, s98, v252
v_addc_co_u32 v253, vcc, 0, v253, vcc
s_mov_b64 exec, 0xfff
""")
        p.flush()
        p.raw("global_load_dword v254, v[252:253], off")
    p(f"s_mov_b64 exec, -1\n{lab}:")
    p(f"""
s_lshl_b32 s{sTMP+2}, s{sB}, 5
s_add_u32 s{sTMP+2}, s{sTMP+2}, s{sH}
s_mul_i32 s{sTMP+1}, s{sTMP+2}, 393216
""")
    addptr(p, 78, sTMP + 1); addptr(p, 80, sTMP + 1)
    srd(p, sK, 78, 79, 393216); srd(p, sV, 80, 81, 393216)
    p(f"s_sub_u32 s{sTMP+2}, s{sTMP+2}, s{sHL}\ns_mul_i32 s{sTMP+1}, s{sTMP+2}, 73728")
    ws_srd(p, sO, sTMP + 1, 0, 8 * 73728)
    p(f"s_mul_i32 s{sTMP+1}, s{sHG}, 3072")
    addptr(p, 82, sTMP + 1)
    srd(p, sWq, 82, 83, 639 * 12288 + 3072)
    p(f"s_mul_i32 s{sTMP+1}, s{sHG}, {1536*1280}\ns_mul_i32 s{sTMP+2}, s{sHL}, 160\ns_add_u32 s{sTMP+1}, s{sTMP+1}, s{sTMP+2}")
    addptr(p, 84, sTMP + 1)
    srd(p, sWo, 84, 85, 1535 * 1280 + 160)
    pool = Pool(12)
    qproj(p, pool)
    stamp(p, 5)
    if STSET != 'Q':
        attention(p, pool)
        stamp(p, 7)
        handshake_and_store(p)
        oproj(p)
        final_reduce(p)
    store_stamps(p)
    p("L_end:\ns_endpgm")
    for t in OUTL: p.raw(t)
    for tr, ret, cur in TRAMPS: p.raw(f"{tr}:\ns_call_b64 s[98:99], L_rare{cur}\ns_branch {ret}")
    rare_path(p, "L_rare0", 0)
    rare_path(p, "L_rare1", 1)
    p.raw(".fill 64, 4, 0xbf800000" if STSET != 'Q' else ".fill 12288, 4, 0xbf800000")
    return kernel_desc(name, vgpr=512, accum=256)

def build(path):
    p = Prog()
    p.raw("""; GQA block (q-proj, attention over cached K/V, out-proj) for gfx950: one fused kernel
; @launch grid=(256,1,1) block=(256,1,1) lds=163840
.amdgcn_target "amdgcn-amd-amdhsa--gfx950"
.text""")
    d = kernel(p)
    p.raw('.section .rodata,"a"\n.p2align 6\n' + d)
    txt = p.text()
    if NODMA:
        txt = "\n".join(l for l in txt.split("\n") if not (l.startswith("buffer_load_dwordx4") and (NODMA == 2 or l.endswith("lds"))))
        txt = txt.replace("s_cbranch_vccnz L_tramp", "s_cbranch_execz L_tramp")
    if DROP:
        out = []; on = False
        for l in txt.split("\n"):
            if l.startswith("L_attA") or l.startswith("L_attS"): on = True
            if l.startswith("L_att27") or l.startswith("L_slow"): on = False
            if on and any(l.startswith(d) for d in DROP): continue
            out.append(l)
        txt = "\n".join(out).replace("s_cbranch_vccnz L_tramp", "s_cbranch_execz L_tramp")
    if NOKV:
        txt = "\n".join(l for l in txt.split("\n") if not (l.startswith("buffer_load_dwordx4") and ("s[4:7]" in l or "s[8:11]" in l)))
    if NOBAR:
        txt = txt.replace("s_barrier\n", "")
    open(path, "w").write(txt)
    if VERB:
        for w in WARN: print("WARN", w)
    ls = txt.split("\n")
    marks = [k for k, l in enumerate(ls) if l.endswith(":") and not l.startswith("L_ret")]
    for a, b in zip(marks, marks[1:] + [len(ls)]):
        seg = [l for l in ls[a:b] if l and not l.startswith(".") and not l.startswith(" ")]
        c, nm = estimate(seg)
        if nm: print(f"{ls[a]:28s} est {c:6d} cyc, mfma {nm:4d} ({16*nm})")

if __name__ == "__main__":
    for a in sys.argv[2:]:
        k, v = a.split("=", 1)
        globals()[k] = eval(v)
    build(sys.argv[1])
```

```python
import sys, math, struct
from sched import *
from asmlib import kernel_desc

NAME = "standalone__gqa_block_cached__near_ridge"
SLOT = 12288
STAMP = False
NT = "nt"
NTW = ""
NTO = ""
OST = "sc1"
OLD = "sc1"
CODEPF = True
SKIPS = ()
WOPF = True
FAST = True
OFAST = ""
STAG = False
PART_OFF = 20 << 20
FLAG_OFF = 40 << 20
STAMP_OFF = 64 << 20
NSTAMP = 12
NODMA = 0
DBGST = None
TRACE = 0
KVPF = True
SNAKE = True
NOKV = 0
DROP = ()
STSET = 'q'
KSTAG = True
VERB = 0
FLAGPOS = 20
NOBAR = 0

def f32(x): return "0x%08x" % struct.unpack("<I", struct.pack("<f", x))[0]
def vr(b, n=4): return f"v[{b}:{b+n-1}]"
def ar(b, n=4): return f"a[{b}:{b+n-1}]"
MF = "v_mfma_f32_16x16x32_bf16"

def srd(p, d, lo, hi, nbytes):
    p(f"s_mov_b32 s{d}, s{lo}\ns_and_b32 s{d+1}, s{hi}, 0xffff\ns_mov_b32 s{d+2}, {nbytes}\ns_mov_b32 s{d+3}, 0x00020000")

sK, sV, sWq, sX, sO, sF, sWo = 4, 8, 12, 16, 20, 24, 28
sP, sOUT, sDBG = 12, 16, 92
sPF = 76
sXCC = 50; sFASTF = 42
sTK1, sTK2 = 92, 94
TOKC = (0x9e3779b9, 0x7f4a7c15)
F2BASE = 128 * 256
sWAVE, sB, sH, sHG, sHL = 32, 33, 34, 35, 36
sM0W = 37
sKOFF = 38
sWR, sRD = 39, 40
sT, sD = 41, 42
sWOFF, sXOFF = 43, 44
sWW = 45
sTMP = 46
sLTHR = 3
sKK = 51
sSTAMP = 52
def stamp(p, i):
    if STAMP: p(f"{'s_memtime' if STAMP == 2 else 's_memrealtime'} s[{sSTAMP+2*i}:{sSTAMP+2*i+1}]")
CST = {5: 80, 6: 82, 9: 88, 10: 100}
_stamp0 = stamp
def stamp(p, i):
    _stamp0(p, i)
    if STAMP and i in CST: p(f"s_memtime s[{CST[i]}:{CST[i]+1}]")

def addptr(p, lo, sreg):
    p(f"s_add_u32 s{lo}, s{lo}, s{sreg}\ns_addc_u32 s{lo+1}, s{lo+1}, 0")
def ws_srd(p, d, sreg, const, nbytes):
    p(f"s_add_u32 s96, s90, s{sreg}\ns_addc_u32 s97, s91, 0")
    if const: p(f"s_add_u32 s96, s96, {const}\ns_addc_u32 s97, s97, 0")
    srd(p, d, 96, 97, nbytes)

vKD, vVD, vWD = 2, 5, 8
vXD = 11
vWOD = 11
vKL, vVL = 17, 19
vKA, vVA = 23, 25
vXR = 29
vWOL, vOL = 29, 30
vWOA = 23
vT0 = 31
vVB = 252
vPF = 168
vXC = 172
vF1, vF2 = 250, 251
vFLV = 8
vACC = 32
vQ = 176
vS = (32, 56); vP = (80, 92); vNM = 104; vONE = 116; vE = 120; vCK = 130; vR = 132; vL = (144, 156)
NE = 5
vB = 32
vRC = 244
aO = 0; aPOOL = 144; aC = 196
aX = 0; NXB = 6
def qfrag(qb, s): return vQ + (qb * 6 + s) * 4
def oacc(db, qb): return aO + (db * 3 + qb) * 4
def sreg(buf, qb, kb): return vS[buf] + (qb * 2 + kb) * 4
def bfrag(u, qb): return vB + ((u // 4) % 3) * 48 + ((u % 4) * 3 + qb) * 4

XS0 = 5
def xpair(c): return XS0 + 2 * (c % 2)
WRING = [9, 10, 11, 1, 12]
def wslot(u): return WRING[u % 5]
def kvslot(kind, i): return 2 * (i % 6) if kind == 'K' else 2 * ((i + 1) % 6) + 1

def setup_dma(p):
    t = 240
    p(f"""
v_lshrrev_b32 v{t}, 3, v0
v_and_b32 v{t+1}, 7, v0
s_lshl_b32 s{sTMP}, s{sWAVE}, 3
s_and_b32 s{sTMP+1}, s{sB}, 3
s_lshl_b32 s{sTMP+1}, s{sTMP+1}, 2
s_add_u32 s{sTMP+1}, s{sTMP+1}, s{sWAVE}
s_mul_i32 s{sTMP+1}, s{sTMP+1}, {48*1280}
""")
    for half in range(2):
        p(f"""
v_lshrrev_b32 v{t+2}, 1, v{t}
v_add_u32 v{t+2}, {4*half}, v{t+2}
v_xor_b32 v{t+2}, v{t+2}, v{t+1}
v_lshlrev_b32 v{t+2}, 4, v{t+2}
v_add_u32 v{t+3}, {8*half}, v{t}
v_mul_u32_u24 v{t+3}, 1280, v{t+3}
v_add3_u32 v{vXD+half}, v{t+2}, v{t+3}, s{sTMP+1}
v_add_u32 v{vXD+2+half}, {20480-1024}, v{vXD+half}
v_add_u32 v{vXD+4+half}, {2*(20480-1024)}, v{vXD+half}
""")
def setup_dma2(p):
    t = 240
    p(f"s_mul_i32 s{sTMP+1}, s{sHL}, 384")
    for j in range(3):
        p(f"""
v_add_u32 v{t+2}, {8*j}, v{t}
v_mul_u32_u24 v{t+3}, 11, v{t+2}
v_lshrrev_b32 v{t+3}, 5, v{t+3}
v_mul_u32_u24 v{t+4}, 3, v{t+3}
v_sub_u32 v{t+4}, v{t+2}, v{t+4}
v_add_u32 v{t+3}, s{sTMP}, v{t+3}
v_bfe_u32 v{t+5}, v{t+3}, 2, 1
v_and_b32 v{t+6}, 2, v{t+3}
v_or_b32 v{t+5}, v{t+5}, v{t+6}
v_lshrrev_b32 v{t+6}, 1, v{t+3}
v_and_b32 v{t+6}, 4, v{t+6}
v_or_b32 v{t+5}, v{t+5}, v{t+6}
v_xor_b32 v{t+5}, v{t+5}, v{t+1}
v_lshlrev_b32 v{t+5}, 4, v{t+5}
v_lshl_add_u32 v{t+5}, v{t}, 7, v{t+5}
v_add_u32 v{vKD+j}, s{sM0W}, v{t+5}
v_and_b32 v{t+5}, 6, v{t+3}
v_xor_b32 v{t+5}, v{t+5}, v{t+1}
v_lshlrev_b32 v{t+5}, 4, v{t+5}
v_lshl_add_u32 v{t+6}, v{t}, 7, v{t+5}
v_add_u32 v{vVD+j}, s{sM0W}, v{t+6}
v_bfe_u32 v{t+6}, v{t+3}, 2, 2
v_lshlrev_b32 v{t+6}, 3, v{t+6}
v_lshrrev_b32 v{t+7}, 4, v{t+3}
v_lshl_add_u32 v{t+6}, v{t+7}, 2, v{t+6}
v_and_b32 v{t+7}, 3, v{t+3}
v_add_u32 v{t+6}, v{t+6}, v{t+7}
v_mul_u32_u24 v{t+6}, 12288, v{t+6}
v_lshl_add_u32 v{t+6}, v{t+4}, 7, v{t+6}
v_add3_u32 v{t+6}, v{t+6}, v{t+5}, s{sTMP+1}
v_subrev_u32 v{vWD+j}, {1024*j}, v{t+6}
""")

vPW, vPX, vPK = 232, 233, 234
def setup_pf(p):
    t = 224
    p(f"""
s_lshr_b32 s{sTMP+1}, s2, 3
s_lshl_b32 s{sTMP+1}, s{sTMP+1}, 2
s_add_u32 s{sTMP+1}, s{sTMP+1}, s{sWAVE}
s_mul_i32 s{sTMP+2}, s{sTMP+1}, 36
v_add_u32 v{t}, s{sTMP+2}, v0
v_mul_u32_u24 v{t+1}, 2731, v{t}
v_lshrrev_b32 v{t+1}, 16, v{t+1}
v_mul_u32_u24 v{t+2}, 24, v{t+1}
v_sub_u32 v{t+2}, v{t}, v{t+2}
v_mul_u32_u24 v{t+1}, 12288, v{t+1}
v_lshl_add_u32 v{t+1}, v{t+2}, 7, v{t+1}
v_cmp_gt_u32 vcc, 36, v0
v_mov_b32 v{t+3}, 0x7f000000
v_cndmask_b32 v{vPW}, v{t+3}, v{t+1}, vcc
s_mul_i32 s{sTMP+2}, s{sTMP+1}, 6
v_mul_u32_u24 v{t}, 11, v0
v_lshrrev_b32 v{t}, 5, v{t}
v_mul_u32_u24 v{t+1}, 3, v{t}
v_sub_u32 v{t+1}, v0, v{t+1}
v_add_u32 v{t}, s{sTMP+2}, v{t}
v_mul_u32_u24 v{t}, 1280, v{t}
v_lshl_add_u32 v{t}, v{t+1}, 7, v{t}
v_cmp_gt_u32 vcc, 18, v0
v_cndmask_b32 v{vPX}, v{t+3}, v{t}, vcc
""")
    for k, (so, first) in enumerate(((sKK, 6), (sKOFF, 5))):
        p(f"""
s_lshl_b32 s{sTMP+1}, s{sWAVE}, 13
s_add_u32 s{sTMP+1}, s{sTMP+1}, s{so}
s_add_u32 s{sTMP+1}, s{sTMP+1}, {first*SLOT}
v_lshlrev_b32 v{t}, 7, v0
v_add_u32 v{t}, s{sTMP+1}, v{t}
v_subrev_u32 v{t+1}, {32*SLOT}, v{t}
v_min_u32 v{vPK+k}, v{t}, v{t+1}
""")
def pf_items(n):
    if n[1] == 'K': return [Item('M', f"buffer_load_dword v248, v{vPK}, s[{sK}:{sK+3}], 0 offen {NT}", tag="dummy")]
    if n[1] == 'V': return [Item('M', f"buffer_load_dword v248, v{vPK+1}, s[{sV}:{sV+3}], 0 offen {NT}", tag="dummy")]
    b = int(n[1])
    return [S(f"s_mov_b32 s{sTMP+1}, {(1+3*b)*128}"), Item('M', f"buffer_load_dword v248, v{vPX}, s[{sX}:{sX+3}], s{sTMP+1} offen {NTW}", tag="dummy"),
            S(f"s_mov_b32 s{sTMP+1}, {(1+3*b)*64*12288}"), Item('M', f"buffer_load_dword v248, v{vPW}, s[{sWq}:{sWq+3}], s{sTMP+1} offen {NTW}", tag="dummy")]

def setup_reads(p):
    t = 240
    p(f"""
v_and_b32 v{t}, 15, v0
v_lshrrev_b32 v{t+1}, 4, v0
v_lshrrev_b32 v{t+2}, 1, v{t}
v_xor_b32 v{t+2}, v{t+2}, v{t+1}
v_lshlrev_b32 v{t+5}, 4, v{t+2}
v_and_b32 v{t+3}, 7, v{t}
v_lshl_add_u32 v{t+5}, v{t+3}, 7, v{t+5}
v_lshrrev_b32 v{t+3}, 3, v{t}
v_mul_u32_u24 v{t+3}, 12288, v{t+3}
v_add3_u32 v{t+5}, v{t+5}, v{t+3}, s{sM0W}
v_add_u32 v{vXR}, {XS0*SLOT}, v{t+5}
v_xor_b32 v{vXR+1}, 64, v{vXR}
v_bfe_u32 v{t+3}, v{t+2}, 1, 1
v_and_b32 v{t+4}, 1, v{t+2}
v_lshl_add_u32 v{t+3}, v{t+4}, 1, v{t+3}
v_and_b32 v{t+4}, 4, v{t+2}
v_or_b32 v{t+3}, v{t+3}, v{t+4}
v_lshlrev_b32 v{t+3}, 4, v{t+3}
v_mul_u32_u24 v{t+4}, 384, v{t}
v_add_u32 v{vKL}, v{t+3}, v{t+4}
v_xor_b32 v{vKL+1}, 64, v{vKL}
v_lshrrev_b32 v{t+2}, 2, v0
v_mul_u32_u24 v{t+3}, 384, v{t+2}
v_bfe_u32 v{t+4}, v{t+2}, 1, 2
v_lshl_add_u32 v{t+3}, v{t+4}, 5, v{t+3}
v_and_b32 v{t+4}, 3, v0
v_lshl_add_u32 v{vVL}, v{t+4}, 3, v{t+3}
v_xor_b32 v{vVL+1}, 32, v{vVL}
v_xor_b32 v{vVL+2}, 64, v{vVL}
v_xor_b32 v{vVL+3}, 96, v{vVL}
""")

def wrap_add(s, inc, lim):
    return L(f"s_add_u32 s{s}, s{s}, {inc}\ns_cmp_ge_u32 s{s}, {lim}\ns_cselect_b32 s{sTMP+3}, {lim}, 0\ns_sub_u32 s{s}, s{s}, s{sTMP+3}")


def S(t, **k): return Item('S', t, **k)
def wrap_items(s, inc, lim):
    return [S(f"s_add_u32 s{s}, s{s}, {inc}"), S(f"s_cmp_ge_u32 s{s}, {lim}\ns_cselect_b32 s{sTMP+3}, {lim}, 0\ns_sub_u32 s{s}, s{s}, s{sTMP+3}")]
def wrap0_items(s, inc, lim, zero="0"):
    return [S(f"s_add_u32 s{s}, s{s}, {inc}"), S(f"s_cmp_ge_u32 s{s}, {lim}\ns_cselect_b32 s{s}, {zero}, s{s}")]

def dma_tile(kind, pre, so, tag=None, post=()):
    vd, sr, pol = {'K': (vKD, sK, NT), 'V': (vVD, sV, NT), 'W': (vWD, sWq, NTW)}[kind]
    g = [S(x) for x in pre]
    for j in range(3):
        g.append(Item('M', f"buffer_load_dwordx4 v{vd+j}, s[{sr}:{sr+3}], {so} offen offset:{1024*j} {pol} lds", tag=tag))
    return g + list(post)
def dma_kv_static(kind, i):
    so = sKK if kind == 'K' else sKOFF
    return dma_tile(kind, [f"s_add_u32 m0, s{sM0W}, {kvslot(kind,i)*SLOT}"], f"s{so}", f"{kind}{i}", wrap0_items(so, SLOT, 32 * SLOT))
def dma_w(u):
    return dma_tile('W', [f"s_add_u32 m0, s{sM0W}, {wslot(u)*SLOT}"], f"s{sWOFF}", f"W{u}", wrap0_items(sWOFF, 32 * 12288, 640 * 12288))
def dma_x(c):
    g = []
    base = xpair(c)
    for half in range(2):
        g.append(S(f"s_add_u32 m0, s{sM0W}, {(base+half)*SLOT}"))
        for qb in range(3):
            g.append(Item('M', f"buffer_load_dwordx4 v{vXD+2*qb+half}, s[{sX}:{sX+3}], s{sXOFF} offen offset:{1024*qb} {NTW} lds", tag=f"X{c}"))
    return g + wrap0_items(sXOFF, 128, 1280)
def xfrag(c, ks, qb): return aX + (c % NXB) * 24 + (ks * 3 + qb) * 4
def read_x(c):
    off = (xpair(c) - XS0) * SLOT
    return [Item('L', f"ds_read_b128 {ar(xfrag(c,ks,qb))}, v{vXR+ks} offset:{off + qb*1024}") for ks in range(2) for qb in range(3)]
def flat(p, items):
    for it in items: p.cur += it.ins

def snake(mf, k): return mf[::-1] if (SNAKE and k & 1) else mf
class Pool:
    def __init__(self, size): self.n = 0; self.size = size
    def next(self):
        r = aPOOL + 4 * (self.n % self.size); self.n += 1; return r

def vunit_reads(buf, db, base_imm=0, va=None):
    va = vVA if va is None else va
    return [f"ds_read_b64_tr_b16 {ar(buf,2)}, v{va+(db&3)} offset:{base_imm + (db>>2)*128}",
            f"ds_read_b64_tr_b16 {ar(buf+2,2)}, v{va+(db&3)} offset:{base_imm + (db>>2)*128 + 6144}"]
def kunit_reads(buf, kb, ds, imm=0):
    return [f"ds_read_b128 {ar(buf)}, v{vKA+(ds&1)} offset:{imm + kb*6144 + (ds>>1)*128}"]

T = 4
RGAP = 6
class Stream:
    def __init__(self, tail=()):
        self.mf = []; self.items = []; self.resA = set()
        for u in tail: self.add_unit(u, True)
    def n(self): return len(self.mf)
    def add_unit(self, u, noread=False):
        u['first'] = len(self.mf)
        if u.get('reads') or u.get('needwait'): self.resA.add(len(self.mf) - 1)
        for k, m in enumerate(u['mf']): self.mf.append((u.get('head', []) if k == 0 else [], m))
    def reads(self, units, lo, hi, after=()):
        its = []
        tot = sum(len(u['reads']) for u in units); k = 0
        for u in units:
            g = lo + (hi - lo + 1) * k // tot
            for r in u['reads']:
                it = Item('L', r, lo=lo, hi=max(lo, min(hi, u['first'] - 5)), target=g, after=list(after) + ([(its[-1], 0)] if its else []))
                it.use = u['first']
                its.append(it); k += 1
        self.items += its
        return its
    def barrier(self, g, wait):
        w = Item('S', [I(x) for x in wait], lo=g, hi=g + 2, target=g)
        b = Item('S', "s_barrier", lo=g + 1, hi=g + 3, after=[(w, 1)])
        self.items += [w, b]
        return b
    def add(self, its): self.items += its; return its
    def emit(self, keep=0, name=""):
        mf = self.mf[:len(self.mf) - keep] if keep else self.mf
        out = pack(mf, self.items, self.resA, name)
        for it in self.items:
            if hasattr(it, 'use'):
                d = set(it.ins[0].dst)
                assert it.gap < it.use, (name, it.ins[0].text)
                for g in range(it.gap + 1, it.use):
                    assert not (d & set(self.mf[g][1].src)), ("pool WAR", name, it.ins[0].text, it.gap, g)
        return out

SCHED = 1
def set_sched():
    global PRO, PRO2, QS
    if SCHED == 0:
        PRO = ['X0', 'W0', 'W1', 'W2']
        PRO2 = ['X1']
        QS = {
            0: (['W3'], None, []),
            1: (['W4', 'W5'], 1, ['X2']),
            2: (['W6'], None, ['X3']),
            3: (['W7'], 2, ['X4']),
            4: (['W8'], 3, ['X5']),
            5: (['W9', 'K0', 'K1'], None, []),
            6: (['W10'], 4, ['X6']),
            7: (['W11'], 5, ['X7']),
            8: (['W12', 'V0', 'K2'], None, []),
            9: (['W13'], 6, ['X8']),
            10: (['W14'], 7, ['X9']),
            11: (['W15'], None, []),
            12: (['W16'], 8, ['V1', 'K3']),
            13: (['W17'], 9, []),
            14: (['W18'], None, []),
            15: (['W19', 'V2', 'K4'], None, []),
            16: (['V3'], None, []),
            17: (['K5'], None, []),
            18: (['V4'], None, []),
            19: ([], None, []),
        }
    elif SCHED == 1:
        PRO = ['X0', 'W0', 'W1', 'P0', 'X1', 'W2', 'W3', 'W4']
        PRO2 = ['X2', 'P1']
        QS = {
            0: ([], None, []),
            1: (['W5'], 1, ['X3']),
            2: (['W6', 'P2'], None, []),
            3: (['W7'], 2, ['X4']),
            4: (['W8'], 3, ['X5']),
            5: (['W9', 'K0', 'K1'], None, []),
            6: (['W10'], 4, ['X6']),
            7: (['W11'], 5, ['X7']),
            8: (['W12', 'V0', 'K2'], None, []),
            9: (['W13'], 6, ['X8']),
            10: (['W14'], 7, ['X9']),
            11: (['W15'], None, []),
            12: (['W16'], 8, ['V1', 'K3']),
            13: (['W17'], 9, []),
            14: (['W18'], None, []),
            15: (['W19', 'V2', 'K4'], None, []),
            16: (['V3'], None, []),
            17: (['K5'], None, []),
            18: (['V4'], None, []),
            19: (['PK', 'PV'] if KVPF else [], None, []),
        }
    elif SCHED == 2:
        PRO = ['X0', 'W0', 'W1', 'P0', 'X1', 'W2', 'W3']
        PRO2 = ['P1', 'X2', 'W4']
        QS = {
            0: ([], None, []),
            1: (['P2', 'W5'], 1, ['X3']),
            2: (['W6'], None, []),
            3: (['W7', 'K0', 'K1'], 2, ['X4']),
            4: (['W8'], 3, ['X5']),
            5: (['W9', 'V0', 'K2'], None, []),
            6: (['W10'], 4, ['X6']),
            7: (['W11'], 5, ['X7']),
            8: (['W12'], 6, ['X8']),
            9: (['W13'], 7, ['X9']),
            10: (['W14'], 8, ['V1', 'K3']),
            11: (['W15'], 9, []),
            12: (['W16', 'V2', 'K4'], None, []),
            13: (['W17'], None, []),
            14: (['W18'], None, []),
            15: (['W19'] + (['PK', 'PV'] if KVPF else []), None, []),
            16: (['V3'], None, []),
            17: (['K5'], None, []),
            18: (['V4'], None, []),
            19: ([], None, []),
        }
def issue(name):
    if name[0] == 'P': return pf_items(name)
    k, i = name[0], int(name[1:])
    return dma_x(i) if k == 'X' else dma_w(i) if k == 'W' else dma_kv_static(k, i)

def check_sched():
    occ = {}
    xread = {0: -1}
    for u, (e, xr, l) in QS.items():
        if xr is not None: xread[xr] = u
    def slots(n):
        k, i = n[0], int(n[1:])
        return [xpair(i), xpair(i) + 1] if k == 'X' else [wslot(i)] if k == 'W' else [kvslot(k, i)]
    def put(n, u, late):
        if n[0] == 'P': return
        for s in slots(n):
            o = occ.get(s)
            if o:
                k, i = o[0], int(o[1:])
                if k == 'W': assert i <= u - 1, (n, u, o)
                elif k == 'X': assert xread[i] < u or (xread[i] == u and late), (n, u, o)
                else: assert False, (n, u, o)
            occ[s] = n
    seq = []
    for n in PRO: put(n, -2, False); seq.append(n)
    for n in PRO2: put(n, -1, True); seq.append(n)
    for u in range(20):
        e, xr, l = QS[u]
        for n in e: put(n, u, False); seq.append(n)
        for n in l: put(n, u, True); seq.append(n)
        if xr is not None:
            assert xr * 2 > u and (xr - NXB) * 2 + 1 < u, (xr, u)
    assert [n for n in seq if n[0] == 'W'] == [f"W{i}" for i in range(20)]
    assert [n for n in seq if n[0] == 'X'] == [f"X{i}" for i in range(10)]
    assert [n for n in seq if n[0] in 'KV'] == ['K0', 'K1', 'V0', 'K2', 'V1', 'K3', 'V2', 'K4', 'V3', 'K5', 'V4']

def qproj(p, pool):
    set_sched()
    check_sched()
    for n in PRO:
        if n == 'W0': setup_dma2(p)
        if n == 'P0': setup_pf(p)
        flat(p, issue(n))
    if 'P0' not in PRO: setup_pf(p)
    setup_reads(p)
    p("WAITVM X0")
    if STSET in 'qQ': stamp(p, 1)
    flat(p, read_x(0))
    if any(n[0] == 'X' and xpair(int(n[1:])) == xpair(0) for n in PRO2): p("s_waitcnt lgkmcnt(0)")
    for n in PRO2: flat(p, issue(n))
    p(f"""
s_add_u32 s{sTK1}, s{sTK1}, {TOKC[0]}
s_addc_u32 s{sTK1+1}, s{sTK1+1}, {TOKC[1]}
s_add_u32 s{sTK2}, s{sTK2}, {TOKC[0]}
s_addc_u32 s{sTK2+1}, s{sTK2+1}, {TOKC[1]}
s_xor_b32 s{sXCC}, s{sXCC}, s{sTK1}
v_mov_b32 v240, s{sXCC}
v_mov_b32 v241, s{sTK1+1}
s_lshl_b64 exec, 1, s{sHL}
buffer_store_dwordx2 v[240:241], v{vF1}, s[{sF}:{sF+3}], 0 offen offset:128 sc1
s_mov_b64 exec, -1
""")
    for uu in range(4): p(f"v_add_u32 v{vVA+uu}, {wslot(0)*SLOT}, v{vVL+uu}")
    p("WAITVM W0\ns_barrier")
    st = Stream()
    tiles = []
    for u in range(20):
        c, ks = u >> 1, u & 1
        va = vVA if u % 2 == 0 else vVB
        units = []
        for db in range(12):
            buf = pool.next()
            mf = []
            for qb in range(3):
                d = vACC + (db * 3 + qb) * 4
                mf.append(I(f"{MF} {vr(d)}, {ar(buf)}, {ar(xfrag(c,ks,qb))}, {vr(d) if u else 0}"))
            units.append(dict(reads=vunit_reads(buf, db, 0, va), mf=snake(mf, db)))
            st.add_unit(units[-1])
        tiles.append(units)
    prevdma = None
    for u in range(20):
        g0 = 36 * u - 3 * T
        if u == 0:
            for un in tiles[0][:T]:
                for r in un['reads']: p(r)
            st.reads(tiles[0][T:], 0, g0 + 36 - RGAP)
            bar = None; glo = 0
        else:
            w = [f"WAITVM W{u}", "s_waitcnt lgkmcnt(0)"]
            if STAMP and STSET == 'Q' and u % 2 == 0 and u <= 16:
                k = [2, 3, 4, 6, 7, 8, 9, 10][u // 2 - 1]
                w.append(f"s_memrealtime s[{sSTAMP+2*k}:{sSTAMP+2*k+1}]")
            if STAMP and STSET == 'q' and u in (5, 10, 15): w.append(f"{'s_memtime' if STAMP == 2 else 's_memrealtime'} s[{sSTAMP+2*(1+u//5)}:{sSTAMP+2*(1+u//5)+1}]")
            bar = st.barrier(g0, w)
            st.reads(tiles[u], g0 + 1, g0 + 36 - RGAP, [(bar, 0)])
            glo = g0 + 2
        if u < 19:
            va = vVA if (u + 1) % 2 == 0 else vVB
            st.add(chain([Item('V', f"v_add_u32 v{va+uu}, {wslot(u+1)*SLOT}, v{vVL+uu}") for uu in range(4)], glo + 6, g0 + 30))
        e, xr, l = QS[u]
        f1 = [g for n in e for g in issue(n)]
        nx = [g for n in l for g in issue(n)]
        seq = []
        if f1:
            chain(f1, glo, glo + 12)
            if bar: f1[0].after.append((bar, 1))
            seq += f1
        if xr is not None:
            rd = [S(f"WAITVM X{xr}")] + read_x(xr)
            chain(rd, g0 + 14, g0 + 22)
            seq += rd
            if nx: nx = [Item('V', f"v_accvgpr_read_b32 v{vT0}, a{xfrag(xr,1,2)}", after=[(rd[-1], 4)])] + nx
        if nx:
            chain(nx, g0 + 24, g0 + 35)
            seq += nx
        for k in range(len(seq)):
            pv = seq[k - 1] if k else prevdma
            if pv is not None and not any(a is pv for a, _ in seq[k].after): seq[k].after.append((pv, 1))
            seq[k].hi = g0 + 50 if seq[k].kind != 'L' else g0 + 30
        if seq: prevdma = seq[-1]
        st.add(seq)
    p.cur += st.emit(name="qproj")
    SC = math.log2(math.e) / math.sqrt(192.0)
    p(f"s_mov_b32 s{sTMP+2}, {f32(SC)}\ns_mov_b32 s{sTMP+3}, {f32(SC)}")
    for s in range(6):
        for qb in range(3):
            a = vACC + ((2 * s) * 3 + qb) * 4; b = vACC + ((2 * s + 1) * 3 + qb) * 4
            q = qfrag(qb, s)
            for r in (a, a + 2, b, b + 2):
                p(f"v_pk_mul_f32 {vr(r,2)}, {vr(r,2)}, s[{sTMP+2}:{sTMP+3}]")
            p(f"v_cvt_pk_bf16_f32 v{q}, v{a}, v{a+1}\nv_cvt_pk_bf16_f32 v{q+1}, v{a+2}, v{a+3}")
            p(f"v_cvt_pk_bf16_f32 v{q+2}, v{b}, v{b+1}\nv_cvt_pk_bf16_f32 v{q+3}, v{b+2}, v{b+3}")
    for s in range(6):
        for qb in range(3):
            q = qfrag(qb, s)
            p(f"v_permlane16_swap_b32 v{q}, v{q+2}\nv_permlane16_swap_b32 v{q+1}, v{q+3}")

def qk_units(pool, buf, zero=False, imm=0):
    units = []
    for kb in range(2):
        for ds in range(6):
            pb = pool.next()
            mf = []
            for qb in range(3):
                d = sreg(buf, qb, kb)
                c = vr(d) if ds else (0 if zero else vr(vNM + 4 * qb))
                mf.append(I(f"{MF} {vr(d)}, {ar(pb)}, {vr(qfrag(qb,ds))}, {c}"))
            units.append(dict(reads=kunit_reads(pb, kb, ds, imm), mf=snake(mf, ds)))
    return units
def rs_unit(buf, zero=False):
    return dict(reads=None, mf=[I(f"{MF} {vr(vL[buf]+4*qb)}, {vr(vONE)}, {vr(vP[buf]+4*qb)}, {0 if zero else vr(vL[buf^1]+4*qb)}") for qb in range(3)])
def pv_units(pool, buf, zero=False, imm=0):
    units = []
    for db in range(12):
        pb = pool.next()
        mf = [I(f"{MF} {ar(oacc(db,qb))}, {ar(pb)}, {vr(vP[buf]+4*qb)}, {0 if zero else ar(oacc(db,qb))}") for qb in range(3)]
        units.append(dict(reads=vunit_reads(pb, db, SLOT + imm), mf=snake(mf, db)))
    return units

PAIRS = [(qb, kb, h) for kb in range(2) for qb in range(3) for h in range(2)]
def softmax_items(buf, n0, n1, lo, hi):
    ex = []; cv = []
    for n in range(n0, n1):
        qb, kb, h = PAIRS[n]
        s = sreg(buf, qb, kb) + 2 * h
        e = vE + 2 * (n % NE)
        a = Item('E', f"v_exp_f32 v{e}, v{s}"); b = Item('E', f"v_exp_f32 v{e+1}, v{s+1}")
        if len(cv) >= NE: a.after.append((cv[-NE], 1))
        ex += [a, b]
        cv.append(Item('V', f"v_cvt_pk_bf16_f32 v{vP[buf]+4*qb+2*kb+h}, v{e}, v{e+1}", lo=lo, hi=hi, after=[(b, 1)]))
    chain(ex, lo, hi - 1)
    for e in ex: e.hi = hi
    for k, c in enumerate(cv): c.target = ex[2 * k + 1].target + 1
    return ex + cv
SPLIT = 6
LTHR = 2.0 ** 40
def rowmax(p, buf, qb, dst):
    s0, s1 = sreg(buf, qb, 0), sreg(buf, qb, 1)
    p(f"""
v_max3_f32 v{dst}, v{s0}, v{s0+1}, v{s0+2}
v_max3_f32 v{dst}, v{dst}, v{s0+3}, v{s1}
v_max3_f32 v{dst}, v{dst}, v{s1+1}, v{s1+2}
v_max_f32 v{dst}, v{dst}, v{s1+3}
v_mov_b32 v{vR+8}, v{dst}
v_permlane32_swap_b32 v{dst}, v{vR+8}
v_max_f32 v{dst}, v{dst}, v{vR+8}
v_mov_b32 v{vR+8}, v{dst}
v_permlane16_swap_b32 v{dst}, v{vR+8}
v_max_f32 v{dst}, v{dst}, v{vR+8}
""")

def rare_path(p, label, buf):
    p.reset_state()
    p(f"{label}:\ns_nop 15")
    for qb in range(3):
        d = vR + qb
        rowmax(p, buf, qb, d)
        p(f"v_max_f32 v{d}, 0, v{d}")
        for r in range(4): p(f"v_sub_f32 v{vNM+4*qb+r}, v{vNM+4*qb+r}, v{d}")
        for bb in (buf, buf ^ 1):
            for r in range(8): p(f"v_sub_f32 v{sreg(bb,qb,0)+r}, v{sreg(bb,qb,0)+r}, v{d}")
        p(f"v_exp_f32_e64 v{vR+4+qb}, -v{d}")
    for qb in range(3):
        for r in range(4): p(f"v_mul_f32 v{vL[buf^1]+4*qb+r}, v{vL[buf^1]+4*qb+r}, v{vR+4+qb}")
        for r in [oacc(db, qb) + r for db in range(12) for r in range(4)]:
            p(f"v_accvgpr_read_b32 v{vR+9}, a{r}\nv_mul_f32 v{vR+9}, v{vR+9}, v{vR+4+qb}\nv_accvgpr_write_b32 a{r}, v{vR+9}")
    for (qb, kb, h) in PAIRS:
        s = sreg(buf, qb, kb) + 2 * h
        p(f"v_exp_f32 v{vE}, v{s}\nv_exp_f32 v{vE+1}, v{s+1}\nv_cvt_pk_bf16_f32 v{vP[buf]+4*qb+2*kb+h}, v{vE}, v{vE+1}")
    p.cur += rs_unit(buf)['mf']
    p(f"s_nop 15\ns_setpc_b64 s[98:99]")
    p.flush()

GSZ = 20480
TRAMPS = []
OUTL = []
def goff(G): return ((G + 4) % 8) * GSZ
def dma_wo(m0a, m0b, tag):
    g = []
    for j in range(5):
        if j == 0: g.append(S(m0a))
        if j == 4: g.append(S(m0b))
        g.append(Item('M', f"buffer_load_dwordx4 v{vWOD+j}, s[{sWo}:{sWo+3}], s{sWOFF} offen offset:{1024*(j%4)} {NTO} lds", tag=tag))
    return g + wrap_items(sWOFF, 4 * 40960, 48 * 40960)
def dma_wo_static(G):
    sl = goff(G)
    return dma_wo(f"s_add_u32 m0, s{sWW}, {sl}", f"s_add_u32 m0, s{sWW}, {sl+4096}", f"G{G}")

def setup_oproj(p):
    t = 136
    for j in range(5):
        p(f"""
v_add_u32 v{t}, {64*j}, v0
v_mul_u32_u24 v{t+1}, 205, v{t}
v_lshrrev_b32 v{t+1}, 11, v{t+1}
v_mul_u32_u24 v{t+2}, 10, v{t+1}
v_sub_u32 v{t+2}, v{t}, v{t+2}
v_mul_u32_u24 v{t+1}, 1280, v{t+1}
v_lshl_add_u32 v{t+1}, v{t+2}, 4, v{t+1}
v_subrev_u32 v{vWOD+j}, {1024*(j%4)}, v{t+1}
""")
    p(f"""
v_lshrrev_b32 v{t}, 2, v0
v_mul_u32_u24 v{t}, 160, v{t}
v_and_b32 v{t+1}, 3, v0
v_lshl_add_u32 v{vWOL}, v{t+1}, 3, v{t}
v_lshlrev_b32 v{vOL}, 4, v0
v_add_u32 v{vOL}, s{sM0W}, v{vOL}
s_mul_i32 s{sWW}, s{sWAVE}, 5120
s_mul_i32 s{sTMP}, s{sHL}, 6
s_add_u32 s{sTMP}, s{sTMP}, s{sWAVE}
s_mul_i32 s{sWOFF}, s{sTMP}, 40960
""")
    p(f"""
s_lshl_b32 s{sTMP}, s{sB}, 3
s_add_u32 s{sTMP}, s{sTMP}, s{sHL}
s_lshl_b32 s{sTMP}, s{sTMP}, 2
s_add_u32 s{sTMP}, s{sTMP}, s{sWAVE}
s_mul_i32 s{sTMP+1}, s{sTMP}, {4*15360}
""")
    ws_srd(p, sP, sTMP + 1, PART_OFF, 4 * 15360)
    p(f"""
s_mul_i32 s{sTMP}, s{sHL}, 160
s_sub_u32 s96, s84, s{sTMP}
s_subb_u32 s97, s85, 0
s_lshr_b32 s{sTMP}, s2, 3
s_lshl_b32 s{sTMP}, s{sTMP}, 2
s_add_u32 s{sTMP}, s{sTMP}, s{sWAVE}
s_mul_i32 s{sTMP}, s{sTMP}, {120*128}
s_add_u32 s96, s96, s{sTMP}
s_addc_u32 s97, s97, 0
v_lshlrev_b32 v{vPF}, 8, v0
""")
    srd(p, sPF, 96, 97, 120 * 128)
    p(f"""
s_lshl_b32 s{sTMP}, s{sB}, 2
s_add_u32 s{sTMP}, s{sTMP}, s{sWAVE}
s_mul_i32 s{sTMP}, s{sTMP}, {48*1280}
s_mul_i32 s{sTMP+1}, s{sHL}, 160
s_add_u32 s{sTMP}, s{sTMP}, s{sTMP+1}
""")
    addptr(p, 86, sTMP)
    srd(p, sOUT, 86, 87, 47 * 1280 + 160)

def attention(p, pool):
    for r in range(4): p(f"v_mov_b32 v{vONE+r}, 0x3f803f80")
    for db in range(12 - T, 12):
        for r in range(12): p(f"v_accvgpr_write_b32 a{oacc(db,0)+r}, 0")
    setup_oproj(p)
    p(f"s_mov_b32 s{sLTHR}, {f32(LTHR)}")
    for u in range(2): p(f"v_mov_b32 v{vKA+u}, v{vKL+u}")
    p("WAITVM V0")
    p("s_waitcnt lgkmcnt(0)\ns_barrier")
    st = Stream()
    qk = qk_units(pool, 0, zero=True)
    for u in qk: st.add_unit(u)
    for u in qk[:4]: p(u['reads'][0])
    st.reads(qk[4:], 0, 22)
    p.cur += st.emit(name="qk0")
    for qb in range(3):
        d = vR + qb
        rowmax(p, 0, qb, d)
        for r in range(4): p(f"v_sub_f32 v{vNM+4*qb+r}, 0, v{d}")
        for r in range(8): p(f"v_sub_f32 v{sreg(0,qb,0)+r}, v{sreg(0,qb,0)+r}, v{d}")
    skipmask = sum(1 << s for s in SKIPS)
    assert all(s % 2 == 1 and s <= 25 for s in SKIPS) and len(SKIPS) <= 2
    p(f"""
s_mov_b32 s{sWR}, s{sM0W}
s_mov_b32 s{sRD}, 0
s_mov_b32 s{sT}, 1
""")
    for u in range(4): p(f"v_mov_b32 v{vVA+u}, v{vVL+u}")
    def kv_issue(par, nok=False):
        dk = dma_tile('K', [f"s_mov_b32 m0, s{sWR}"], f"s{sKK}") if not nok else []
        dv = dma_tile('V', [f"s_add_u32 m0, s{sWR}, {SLOT}"], f"s{sKOFF}")
        post = [S(f"s_mov_b32 s{sKOFF}, s{sKK}")] + wrap0_items(sKK, SLOT, 32 * SLOT)
        if par and not SKIPS: post.append(S(f"s_cmp_eq_u32 s{sT}, 25\ns_cselect_b32 s{sKK}, {32*SLOT}, s{sKK}"))
        return dk + dv + post + wrap0_items(sWR, 2 * SLOT, 12 * SLOT, f"s{sM0W}")
    def step(t_par, tail, mode, vm, extra=(), endi=()):
        cur, nxt = t_par, t_par ^ 1
        first = mode == 'first'; last = mode == 'last'
        imm = 0 if t_par else 2 * SLOT
        st = Stream(tail)
        pre = []
        qk = [] if last else qk_units(pool, nxt, imm=imm)
        pv = pv_units(pool, cur, zero=first, imm=imm)
        rs = rs_unit(cur, zero=first)
        if not first:
            ret = p.newlabel("L_ret"); tr = p.newlabel("L_tramp")
            TRAMPS.append((tr, ret, cur))
            pv[0]['head'] = L(f"s_cbranch_vccnz {tr}\n{ret}:")
        order = qk[:9] + [rs] + qk[9:] + pv if not first else qk + [rs] + pv
        for u in order: st.add_unit(u)
        keep = 0 if last else 3 * T
        n = st.n() - keep
        wait = [f"s_waitcnt vmcnt({vm}) lgkmcnt(0)"]
        if first:
            pre = L("s_waitcnt lgkmcnt(0)\ns_barrier") + [I(u['reads'][0]) for u in qk[:4]]
            kr = st.reads(qk[4:], 0, 20); bar = None
        else:
            bar = st.barrier(0, wait)
            kr = st.reads(qk, 1, 33, [(bar, 0)]) if qk else []
        aft = ([(bar, 0)] if bar else []) + ([(kr[-1], 0)] if kr else [])
        if t_par:
            va = chain([Item('V', f"v_add_u32 v{vVA+u}, s{sRD}, v{vVL+u}") for u in range(4)], 0, 3 if last else 20)
            st.add(va); aft.append((va[-1], 1))
        vlo = (kr[-1].target + 2) if kr else 3
        st.reads(pv, vlo, (n - 12) if not last else 36, aft)
        if not t_par:
            up = wrap0_items(sRD, 4 * SLOT, 12 * SLOT) + [Item('V', f"v_add_u32 v{vKA+u}, s{sRD}, v{vKL+u}") for u in range(2)]
            up[0].after += [(kr[-1], 1)]
            st.add(chain(up, rs['first'], n - 4))
        dm = []
        if mode in ('first', 'A'):
            dm += kv_issue(t_par)
            chain(dm, 2, 30)
            for x in dm: x.hi = n - 8
        if extra:
            chain(extra, (rs['first'] + 4) if last else 2, n - 1 if last else 50); dm += extra
            for x in extra: x.hi = n - 1
        if dm and bar: dm[0].after.append((bar, 1))
        st.add(dm)
        st.add(softmax_items(cur, 0 if first else SPLIT, 12, 0, rs['first'] - 2))
        if not first:
            mx = Item('V', f"v_max3_f32 v{vCK}, v{vL[cur]}, v{vL[cur]+4}, v{vL[cur]+8}", lo=min(rs['first'] + 6, pv[0]['first'] - 1), hi=pv[0]['first'] - 1)
            cm = Item('V', f"v_cmp_nge_f32 vcc, s{sLTHR}, v{vCK}", after=[(mx, 0)], hi=pv[0]['first'] - 1)
            st.add([mx, cm])
        if not last: st.add(softmax_items(nxt, 0, SPLIT, pv[0]['first'] + 1, n - 1))
        if endi: st.add(chain(list(endi), n - 3, n - 1, 0))
        body = st.emit(keep, name=mode)
        return pre + body, ([] if last else [dict(mf=u['mf'], needwait=False) for u in pv[12 - T:]])
    ins, tail0 = step(0, [], 'first', 0)
    p.cur += ins
    sv = pool.n; pool.n -= 12
    tail = [dict(mf=u['mf']) for u in pv_units(pool, 0)[12 - T:]]
    assert pool.n == sv
    txt = lambda tl: [[i.text for i in u['mf']] for u in tl]
    lp = p.newlabel("L_attA"); le = p.newlabel("L_attE"); ls = p.newlabel("L_attS")
    VMA = 12 if SKIPS else 24
    b1, tail1 = step(1, tail, 'A', VMA)
    b2, tail2 = step(0, tail1, 'A', VMA, endi=[S(f"s_add_u32 s{sT}, s{sT}, 2"), S(f"s_cmp_lt_u32 s{sT}, 27")])
    assert txt(tail2) == txt(tail)
    if SKIPS:
        bs, tails = step(1, tail, 'skip', 12)
        assert txt(tails) == txt(tail1)
        p.loop(L(f"{lp}:\ns_bitcmp1_b32 {skipmask}, s{sT}\ns_cbranch_scc1 {ls}") + b1 + L(f"{le}:") + b2 + L(f"s_cbranch_scc1 {lp}"))
        q = Prog(); q.st = p.st.clone()
        q.cur = L(f"{ls}:") + bs + L(f"s_branch {le}")
        OUTL.append(q.text())
    else:
        tr = []
        if TRACE:
            tr = L(f"s_memrealtime s[54:55]\ns_memtime s[56:57]\ns_waitcnt lgkmcnt(0)\nv_writelane_b32 v174, s54, s{sT}\nv_writelane_b32 v175, s56, s{sT}".replace("v_writelane_b32 v174, s54, s%d" % sT, "s_mov_b32 m0, s%d\nv_writelane_b32 v174, s54, m0" % sT).replace("v_writelane_b32 v175, s56, s%d" % sT, "v_writelane_b32 v175, s56, m0"))
        p.loop(L(f"{lp}:") + tr + b1 + b2 + L(f"s_cbranch_scc1 {lp}"))
        if TRACE:
            p(f"s_mov_b32 s{sTMP}, 0")
            ws_srd(p, 56, sTMP, STAMP_OFF + 65536, 1 << 20)
            p(f"s_lshl_b32 s{sTMP}, s2, 2\ns_add_u32 s{sTMP}, s{sTMP}, s{sWAVE}\ns_lshl_b32 s{sTMP}, s{sTMP}, 9\nv_lshlrev_b32 v{vT0}, 3, v0")
            p(f"buffer_store_dwordx2 v[174:175], v{vT0}, s[56:59], s{sTMP} offen")
    stamp(p, 6)
    p("L_att27:")
    cnt = lambda its: sum(1 for x in its if x.kind == 'M')
    NSK = len(SKIPS)
    pf = [Item('M', f"buffer_load_dword v{vPF+1+k}, v{vPF}, s[{sPF}:{sPF+3}], 0 offen offset:{k*128} {NTO}", tag="dummy") for k in range(2)] if WOPF else []
    xc = [Item('M', f"buffer_load_dwordx2 v[{vXC}:{vXC+1}], v{vF1}, s[{sF}:{sF+3}], 0 offen offset:128 sc1")]
    plan = {0: {27: ['x', 'p'], 28: [0, 1], 29: [2, 3], 30: [4], 31: [5, 6]},
            1: {27: ['x', 'kv'], 28: ['p', 0], 29: [1, 2], 30: [3, 4], 31: [5, 6]},
            2: {27: ['x', 'kv'], 28: ['kv'], 29: ['p', 0], 30: [1, 2], 31: [3, 4]}}[NSK]
    global NEXTG
    NEXTG = plan[31][-1] + 1
    log = []
    for pr in range(27, 32 - NSK): log += [pr] * 6
    nxtpair = 32 - NSK
    tl = tail
    for t in range(27, 32):
        vm = len(log) - 1 - max(k for k, x in enumerate(log) if x == t)
        ex = []
        for a in plan[t]:
            if a == 'kv':
                its = kv_issue(0, nok=(nxtpair == 31)); log += [nxtpair] * cnt(its); nxtpair += 1
            else:
                its = xc if a == 'x' else pf if a == 'p' else dma_wo_static(a); log += [-1] * cnt(its)
            ex += its
        ins, tl = step(t & 1, tl, 'last' if t == 31 else 'P', min(vm, 63), ex); p.cur += ins

def o_epilogue(p, pol):
    for qb in range(3): p(f"v_rcp_f32 v{vRC+2*qb}, v{vL[1]+4*qb}")
    p(f"s_mul_i32 s{sXOFF}, s{sHL}, 73728")
    n = 0
    for s in range(6):
        for qb in range(3):
            t = vQ + 8 * (n % 4); n += 1
            d = bfrag(s, qb)
            for r in range(4):
                p(f"v_accvgpr_read_b32 v{t+r}, a{oacc(2*s,qb)+r}")
                p(f"v_accvgpr_read_b32 v{t+4+r}, a{oacc(2*s+1,qb)+r}")
            for r in range(0, 8, 2):
                p(f"v_pk_mul_f32 {vr(t+r,2)}, {vr(t+r,2)}, {vr(vRC+2*qb,2)} op_sel_hi:[1,0]")
            for r in range(4):
                p(f"v_cvt_pk_bf16_f32 v{d+r}, v{t+2*r}, v{t+2*r+1}")
            p(f"buffer_store_dwordx4 {vr(d)}, v{vOL}, s[{sO}:{sO+3}], s{sXOFF} offen offset:{1024*qb} {pol}", "OST")
        flat(p, wrap0_items(sXOFF, 12288, 48 * 12288))

def handshake_and_store(p):
    if not FAST:
        o_epilogue(p, "sc1"); p(f"s_mov_b32 s{sFASTF}, 0"); return
    p(f"s_mov_b32 s{sXCC+1}, s{sTK1+1}\nv_cmp_ne_u64 vcc, s[{sXCC}:{sXCC+1}], v[{vXC}:{vXC+1}]\ns_mov_b32 s{sFASTF}, 1\ns_cbranch_vccnz L_slowst")
    p.flush()
    q = Prog(); q.st = p.st.clone()
    q(f"L_slowst:\ns_mov_b32 s{sFASTF}, 0")
    o_epilogue(q, "sc1")
    q("s_branch L_stdone")
    OUTL.append(q.text())
    o_epilogue(p, OFAST)
    p("L_stdone:")

def set_flag(vfl, sidx, tk, fast=False):
    st = f"buffer_store_dwordx2 v[{vFLV}:{vFLV+1}], v{vfl}, s[{sF}:{sF+3}], 0 offen"
    pre = f"v_mov_b32 v{vFLV}, s{tk}\nv_mov_b32 v{vFLV+1}, s{tk+1}\ns_lshl_b64 exec, 1, s{sidx}\n"
    if not fast:
        return L(pre + st + " sc1\ns_mov_b64 exec, -1")
    OUTL.append(f"L_slowfl:\n{st} sc1\ns_branch L_fldone\n")
    return L(pre + f"s_cmp_eq_u32 s{sFASTF}, 0\ns_cbranch_scc1 L_slowfl\n{st}\nL_fldone:\ns_mov_b64 exec, -1")

def poll(p, voff, tk, sidx):
    lp = p.newlabel("L_poll"); dn = p.newlabel("L_pd"); ne = p.newlabel("L_ne")
    p(f"s_mov_b32 s{sTMP}, 0x20000")
    p.flush()
    p.raw(f"""{lp}:
buffer_load_dwordx2 v[{vFLV}:{vFLV+1}], v{voff}, s[{sF}:{sF+3}], 0 offen sc1
s_waitcnt vmcnt(0)
v_cmp_ne_u64 vcc, s[{tk}:{tk+1}], v[{vFLV}:{vFLV+1}]
s_cbranch_vccz {dn}
s_sub_u32 s{sTMP}, s{sTMP}, 1
s_cmp_lg_u32 s{sTMP}, 0
s_cbranch_scc1 {lp}
{dn}:""")
    p("s_waitcnt vmcnt(0)")
def bump_epoch(p, voff, tk, sidx):
    ne = p.newlabel("L_ne")
    p(f"s_cmp_lg_u32 s{sidx}, 0\ns_cbranch_scc1 {ne}\nv_mov_b32 v{vFLV}, s{tk}\nv_mov_b32 v{vFLV+1}, s{tk+1}\ns_mov_b64 exec, 1")
    p.flush()
    p.raw(f"buffer_store_dwordx2 v[{vFLV}:{vFLV+1}], v{voff}, s[{sF}:{sF+3}], 0 offen offset:64 sc1")
    p(f"s_mov_b64 exec, -1\n{ne}:")

def load_b(u):
    g = [Item('M', f"buffer_load_dwordx4 {vr(bfrag(u,qb))}, v{vOL}, s[{sO}:{sO+3}], s{sXOFF} offen offset:{1024*qb} {OLD}") for qb in range(3)]
    return g + wrap0_items(sXOFF, 12288, 48 * 12288)

def oproj(p):
    pool = Pool(12)
    def units(G):
        us = []
        for ks in range(4):
            u = 4 * G + ks
            for nb in range(5):
                pb = pool.next()
                va = vWOA + (G & 1)
                rd = [f"ds_read_b64_tr_b16 {ar(pb,2)}, v{va} offset:{ks*5120+nb*32}", f"ds_read_b64_tr_b16 {ar(pb+2,2)}, v{va} offset:{ks*5120+nb*32+2560}"]
                mf = [I(f"{MF} {ar(aC+(nb*3+qb)*4)}, {ar(pb)}, {vr(bfrag(u,qb))}, {ar(aC+(nb*3+qb)*4) if u else 0}") for qb in range(3)]
                us.append(dict(reads=rd, mf=snake(mf, nb)))
        return us
    U = [units(G) for G in range(12)]
    p(f"v_add_u32 v{vWOA}, {goff(0)}, v{vWOL}\nv_add_u32 v{vWOA+1}, {goff(1)}, v{vWOL}")
    p("WAITVM G1\ns_waitcnt lgkmcnt(0)\ns_barrier")
    st = Stream()
    for u in U[0] + U[1][:T]: st.add_unit(u)
    for u in U[0][:T]:
        for r in u['reads']: p(r)
    st.reads(U[0][T:] + U[1][:T], 0, 56)
    fl = Item('M', [I("WAITVM OST")] + set_flag(vF1, sHL, sTK1, True), lo=FLAGPOS, target=FLAGPOS)
    st.add([fl])
    w7 = chain([x for G in range(NEXTG, 8) for x in dma_wo_static(G)], FLAGPOS + 2, 59); w7[0].after.append((fl, 1)); st.add(w7)
    p.cur += st.emit(3 * T, name="op0")
    stamp(p, 8)
    poll(p, vF1, sTK1, sHL)
    stamp(p, 9)
    for u in range(6, 12): flat(p, load_b(u))
    st = Stream()
    for G in range(1, 12):
        for u in U[G]: st.add_unit(u)
    prev = None
    for G in range(1, 12):
        g0 = 60 * (G - 1) - 3 * T
        if G == 1:
            bar = st.barrier(0, ["s_nop 0"])
            st.reads(U[1][T:], 0, g0 + 60 - RGAP)
        else:
            w = [f"WAITVM G{G}", "s_waitcnt lgkmcnt(0)"]
            if STAMP and STSET == 'o' and G in (3, 6, 9): w.append(f"s_memrealtime s[{sSTAMP+2*(G//3)}:{sSTAMP+2*(G//3)+1}]")
            bar = st.barrier(g0, w)
            st.reads(U[G], g0 + 1, g0 + 60 - RGAP, [(bar, 0)])
        if G < 11:
            st.add([Item('V', f"v_add_u32 v{vWOA+((G+1)&1)}, {goff(G+1)}, v{vWOL}", lo=g0 + 20, hi=g0 + 50)])
        seq = []
        if G + 7 <= 11:
            seq += dma_wo_static(G + 7); seq[0].after.append((bar, 1))
        nw = len(seq)
        if G + 2 <= 11:
            seq += [g for u in range(4 * (G + 2), 4 * (G + 2) + 4) for g in load_b(u)]
            seq[nw].lo = g0 + 3 * T + 1
        if seq:
            chain(seq, max(g0 + 2, 2), g0 + 57)
            for x in seq: x.hi = g0 + 70
            if prev: seq[0].after.append((prev, 1))
            prev = seq[-1]
            st.add(seq)
    p.cur += st.emit(name="oproj")
    if STSET == 'o': stamp(p, 4)

def final_reduce(p):
    p(f"v_lshlrev_b32 v{vOL}, 4, v0\ns_mul_i32 s{sTMP+2}, s{sHG}, 15360")
    for tt in range(15):
        if tt % 4 == 0: p(f"s_add_u32 s{sTMP+1}, s{sTMP+2}, {tt*1024}")
        p(f"buffer_store_dwordx4 {ar(aC+tt*4)}, v{vOL}, s[{sP}:{sP+3}], s{sTMP+1} offen offset:{(tt%4)*1024} sc1")
    p(f"""
s_lshl_b32 s{sTMP}, s{sHG}, 10
v_add_u32 v2, s{sTMP}, v{vOL}
v_and_b32 v3, 15, v0
v_mul_u32_u24 v3, 1280, v3
v_lshrrev_b32 v4, 4, v0
v_lshl_add_u32 v3, v4, 3, v3
s_waitcnt vmcnt(0)
""")
    p.cur += set_flag(vF2, sHG, sTK2)
    stamp(p, 10)
    poll(p, vF2, sTK2, sHG)
    for i in range(4):
        for g in range(4):
            p(f"s_mov_b32 s{sTMP+1}, {g*15360 + i*4096}")
            p(f"buffer_load_dwordx4 {vr(32+(i*4+g)*4)}, v2, s[{sP}:{sP+3}], s{sTMP+1} offen sc1")
    for i in range(4):
        b = 32 + i * 16
        p(f"""
s_add_u32 s{sTMP}, s{sHG}, {4*i}
s_mul_i32 s{sTMP+1}, s{sTMP}, 11
s_lshr_b32 s{sTMP+1}, s{sTMP+1}, 5
s_mul_i32 s{sTMP+2}, s{sTMP+1}, 3
s_sub_u32 s{sTMP+2}, s{sTMP}, s{sTMP+2}
s_mul_i32 s{sTMP+2}, s{sTMP+2}, {16*1280}
s_lshl_b32 s{sTMP+1}, s{sTMP+1}, 5
s_add_u32 s{sTMP+1}, s{sTMP+1}, s{sTMP+2}
""")
        if i == 3: p(f"s_cmp_eq_u32 s{sHG}, 3\ns_cbranch_scc1 L_skip3")
        for r in range(4):
            p(f"v_add_f32 v{b+r}, v{b+r}, v{b+4+r}\nv_add_f32 v{b+8+r}, v{b+8+r}, v{b+12+r}\nv_add_f32 v{b+r}, v{b+r}, v{b+8+r}")
        p(f"v_cvt_pk_bf16_f32 v{b+4}, v{b}, v{b+1}\nv_cvt_pk_bf16_f32 v{b+5}, v{b+2}, v{b+3}")
        p(f"buffer_store_dwordx2 {vr(b+4,2)}, v3, s[{sOUT}:{sOUT+3}], s{sTMP+1} offen")
    p("L_skip3:")
    bump_epoch(p, vF1, sTK1, sHL)
    bump_epoch(p, vF2, sTK2, sHG)

def store_stamps(p):
    if not STAMP: return
    p("s_waitcnt vmcnt(0)")
    stamp(p, 11)
    if DBGST is not None:
        lab = p.newlabel("L_nodbg")
        p("s_load_dwordx2 s[96:97], s[0:1], 48\ns_waitcnt lgkmcnt(0)")
        srd(p, sK, 96, 97, 256)
        p(f"s_cmp_lg_u32 s{sWAVE}, 0\ns_cbranch_scc1 {lab}\ns_cmp_lg_u32 s2, {DBGST}\ns_cbranch_scc1 {lab}")
        p("s_mov_b64 exec, 1\nv_mov_b32 v2, 0")
        for i in range(NSTAMP):
            p(f"s_sub_u32 s{sTMP}, s{sSTAMP+2*i}, s{sSTAMP}\nv_mov_b32 v4, s{sTMP}")
            p(f"buffer_store_dword v4, v2, s[{sK}:{sK+3}], 0 offen offset:{4*i}\ns_nop 1")
        p(f"s_sub_u32 s{sTMP}, s82, s80\nv_mov_b32 v4, s{sTMP}\nbuffer_store_dword v4, v2, s[{sK}:{sK+3}], 0 offen offset:48\ns_nop 1")
        p(f"s_sub_u32 s{sTMP}, s100, s88\nv_mov_b32 v4, s{sTMP}\nbuffer_store_dword v4, v2, s[{sK}:{sK+3}], 0 offen offset:52\ns_waitcnt vmcnt(0)")
        p(f"{lab}:")
        return
    p(f"s_mov_b32 s{sTMP}, 0")
    ws_srd(p, sK, sTMP, STAMP_OFF, 65536)
    lab = p.newlabel("L_nost")
    p("s_waitcnt lgkmcnt(0)")
    p(f"s_cmp_lg_u32 s{sWAVE}, 0\ns_cbranch_scc1 {lab}")
    p(f"s_lshl_b32 s{sTMP}, s2, 7\nv_mov_b32 v2, s{sTMP}")
    p("s_mov_b64 exec, 1")
    for i in range(NSTAMP):
        p(f"v_mov_b32 v4, s{sSTAMP+2*i}\nv_mov_b32 v5, s{sSTAMP+2*i+1}")
        p(f"buffer_store_dwordx2 v[4:5], v2, s[{sK}:{sK+3}], 0 offen offset:{8*i}")
        p("s_nop 1")
    for i, r in enumerate(CST.values()):
        p(f"v_mov_b32 v4, s{r}\nv_mov_b32 v5, s{r+1}")
        p(f"buffer_store_dwordx2 v[4:5], v2, s[{sK}:{sK+3}], 0 offen offset:{8*(NSTAMP+i)}")
        p("s_nop 1")
    p("s_waitcnt vmcnt(0)")
    p(f"{lab}:")

def kernel(p):
    name = NAME + "_kernel"
    p.raw(f".globl {name}\n.p2align 8\n.type {name},@function\n{name}:")
    p("s_cmp_ge_u32 s2, 256\ns_cbranch_scc1 L_end")
    stamp(p, 0)
    p(f"""
s_load_dwordx8 s[76:83], s[0:1], 0
s_load_dwordx8 s[84:91], s[0:1], 32
v_lshrrev_b32 v1, 6, v0
v_and_b32 v0, 63, v0
v_readfirstlane_b32 s{sWAVE}, v1
s_and_b32 s{sHG}, s2, 3
s_bfe_u32 s{sB}, s2, 0x10002
s_lshl_b32 s{sB}, s{sB}, 2
s_lshr_b32 s{sTMP+1}, s2, 6
s_add_u32 s{sB}, s{sB}, s{sTMP+1}
s_bfe_u32 s{sHL}, s2, 0x30003
s_lshl_b32 s{sH}, s{sHG}, 3
s_add_u32 s{sH}, s{sH}, s{sHL}
s_mul_i32 s{sM0W}, s{sWAVE}, 3072
s_getreg_b32 s{sXCC}, hwreg(HW_REG_XCC_ID, 0, 4)
""")
    if KSTAG:
        p(f"s_mul_i32 s{sKK}, s2, 11\ns_lshr_b32 s{sTMP+2}, s2, 5\ns_add_u32 s{sKK}, s{sKK}, s{sTMP+2}\ns_and_b32 s{sKK}, s{sKK}, 31\ns_mul_i32 s{sKK}, s{sKK}, {SLOT}")
    else:
        p(f"s_mov_b32 s{sKK}, 0")
    p(f"s_mov_b32 s{sKOFF}, s{sKK}")
    if STAG:
        p(f"""
s_mul_i32 s{sTMP+1}, s{sTMP+1}, 5
s_lshr_b32 s{sTMP+1}, s{sTMP+1}, 1
s_mul_i32 s{sTMP+2}, s{sHL}, 5
s_lshr_b32 s{sTMP+2}, s{sTMP+2}, 2
s_add_u32 s{sTMP+1}, s{sTMP+1}, s{sTMP+2}
s_cmp_ge_u32 s{sTMP+1}, 10
s_cselect_b32 s{sTMP+2}, 10, 0
s_sub_u32 s{sTMP+1}, s{sTMP+1}, s{sTMP+2}
s_lshl_b32 s{sXOFF}, s{sTMP+1}, 7
s_mul_i32 s{sWOFF}, s{sTMP+1}, {64*12288}
""")
    else:
        p(f"s_mov_b32 s{sXOFF}, 0\ns_mov_b32 s{sWOFF}, 0")
    setup_dma(p)
    p(f"s_and_b32 s{sTMP+1}, s{sB}, 4\ns_mul_i32 s{sTMP+1}, s{sTMP+1}, {192*1280}")
    addptr(p, 76, sTMP + 1)
    srd(p, sX, 76, 77, 768 * 1280)
    p(f"s_mov_b32 s{sTMP+1}, 0")
    ws_srd(p, sF, sTMP + 1, FLAG_OFF, F2BASE + 256 * 128)
    p(f"""
s_lshl_b32 s{sTMP+1}, s{sB}, 2
s_add_u32 s{sTMP+1}, s{sTMP+1}, s{sHG}
s_lshl_b32 s{sTMP+1}, s{sTMP+1}, 2
s_add_u32 s{sTMP+1}, s{sTMP+1}, s{sWAVE}
s_lshl_b32 s{sTMP+1}, s{sTMP+1}, 8
s_lshl_b32 s{sTMP+2}, s{sB}, 3
s_add_u32 s{sTMP+2}, s{sTMP+2}, s{sHL}
s_lshl_b32 s{sTMP+2}, s{sTMP+2}, 2
s_add_u32 s{sTMP+2}, s{sTMP+2}, s{sWAVE}
s_lshl_b32 s{sTMP+2}, s{sTMP+2}, 7
s_add_u32 s{sTMP+2}, s{sTMP+2}, {F2BASE}
v_and_b32 v248, 7, v0
v_lshl_add_u32 v{vF1}, v248, 3, s{sTMP+1}
v_and_b32 v248, 3, v0
v_lshl_add_u32 v{vF2}, v248, 3, s{sTMP+2}
s_add_u32 s{sTMP+1}, s{sTMP+1}, 64
s_add_u32 s{sTMP+2}, s{sTMP+2}, 64
s_load_dwordx2 s[{sTK1}:{sTK1+1}], s[96:97], s{sTMP+1}
s_load_dwordx2 s[{sTK2}:{sTK2+1}], s[96:97], s{sTMP+2}
""")
    lab = p.newlabel("L_nopf")
    p(f"s_cmp_lg_u32 s{sWAVE}, 0\ns_cbranch_scc1 {lab}")
    if CODEPF:
        p(f"""
s_mov_b64 exec, -1
s_getpc_b64 s[98:99]
s_lshr_b32 s{sTMP+1}, s2, 3
s_mul_i32 s{sTMP+1}, s{sTMP+1}, {12*128}
v_lshlrev_b32 v252, 7, v0
v_add_u32 v252, s{sTMP+1}, v252
v_mov_b32 v253, s99
v_add_co_u32 v252, vcc, s98, v252
v_addc_co_u32 v253, vcc, 0, v253, vcc
s_mov_b64 exec, 0xfff
""")
        p.flush()
        p.raw("global_load_dword v254, v[252:253], off")
    p(f"s_mov_b64 exec, -1\n{lab}:")
    p(f"""
s_lshl_b32 s{sTMP+2}, s{sB}, 5
s_add_u32 s{sTMP+2}, s{sTMP+2}, s{sH}
s_mul_i32 s{sTMP+1}, s{sTMP+2}, 393216
""")
    addptr(p, 78, sTMP + 1); addptr(p, 80, sTMP + 1)
    srd(p, sK, 78, 79, 393216); srd(p, sV, 80, 81, 393216)
    p(f"s_sub_u32 s{sTMP+2}, s{sTMP+2}, s{sHL}\ns_mul_i32 s{sTMP+1}, s{sTMP+2}, 73728")
    ws_srd(p, sO, sTMP + 1, 0, 8 * 73728)
    p(f"s_mul_i32 s{sTMP+1}, s{sHG}, 3072")
    addptr(p, 82, sTMP + 1)
    srd(p, sWq, 82, 83, 639 * 12288 + 3072)
    p(f"s_mul_i32 s{sTMP+1}, s{sHG}, {1536*1280}\ns_mul_i32 s{sTMP+2}, s{sHL}, 160\ns_add_u32 s{sTMP+1}, s{sTMP+1}, s{sTMP+2}")
    addptr(p, 84, sTMP + 1)
    srd(p, sWo, 84, 85, 1535 * 1280 + 160)
    pool = Pool(12)
    qproj(p, pool)
    stamp(p, 5)
    if STSET != 'Q':
        attention(p, pool)
        stamp(p, 7)
        handshake_and_store(p)
        oproj(p)
        final_reduce(p)
    store_stamps(p)
    p("L_end:\ns_endpgm")
    for t in OUTL: p.raw(t)
    for tr, ret, cur in TRAMPS: p.raw(f"{tr}:\ns_call_b64 s[98:99], L_rare{cur}\ns_branch {ret}")
    rare_path(p, "L_rare0", 0)
    rare_path(p, "L_rare1", 1)
    p.raw(".fill 64, 4, 0xbf800000" if STSET != 'Q' else ".fill 12288, 4, 0xbf800000")
    return kernel_desc(name, vgpr=512, accum=256)

def build(path):
    p = Prog()
    p.raw("""; GQA block (q-proj, attention over cached K/V, out-proj) for gfx950: one fused kernel
; @launch grid=(256,1,1) block=(256,1,1) lds=163840
.amdgcn_target "amdgcn-amd-amdhsa--gfx950"
.text""")
    d = kernel(p)
    p.raw('.section .rodata,"a"\n.p2align 6\n' + d)
    txt = p.text()
    if NODMA:
        txt = "\n".join(l for l in txt.split("\n") if not (l.startswith("buffer_load_dwordx4") and (NODMA == 2 or l.endswith("lds"))))
        txt = txt.replace("s_cbranch_vccnz L_tramp", "s_cbranch_execz L_tramp")
    if DROP:
        out = []; on = False
        for l in txt.split("\n"):
            if l.startswith("L_attA") or l.startswith("L_attS"): on = True
            if l.startswith("L_att27") or l.startswith("L_slow"): on = False
            if on and any(l.startswith(d) for d in DROP): continue
            out.append(l)
        txt = "\n".join(out).replace("s_cbranch_vccnz L_tramp", "s_cbranch_execz L_tramp")
    if NOKV:
        txt = "\n".join(l for l in txt.split("\n") if not (l.startswith("buffer_load_dwordx4") and ("s[4:7]" in l or "s[8:11]" in l)))
    if NOBAR:
        txt = txt.replace("s_barrier\n", "")
    open(path, "w").write(txt)
    if VERB:
        for w in WARN: print("WARN", w)
    ls = txt.split("\n")
    marks = [k for k, l in enumerate(ls) if l.endswith(":") and not l.startswith("L_ret")]
    for a, b in zip(marks, marks[1:] + [len(ls)]):
        seg = [l for l in ls[a:b] if l and not l.startswith(".") and not l.startswith(" ")]
        c, nm = estimate(seg)
        if nm: print(f"{ls[a]:28s} est {c:6d} cyc, mfma {nm:4d} ({16*nm})")

if __name__ == "__main__":
    for a in sys.argv[2:]:
        k, v = a.split("=", 1)
        globals()[k] = eval(v)
    build(sys.argv[1])
```

```python
import sys, math, struct
from sched import *
from asmlib import kernel_desc

NAME = "standalone__gqa_block_cached__near_ridge"
SLOT = 12288
STAMP = False
NT = "nt"
NTW = ""
NTO = ""
OST = "sc1"
OLD = "sc1"
CODEPF = True
SKIPS = ()
WOPF = 'late'
OPF = 'plan'
NTP = ''
FAST = True
OFAST = ""
STAG = True
PART_OFF = 20 << 20
FLAG_OFF = 40 << 20
STAMP_OFF = 64 << 20
NSTAMP = 12
NODMA = 0
PLAN = None
VMLIM = 3
DBGST = None
TRACE = 0
KVPF = True
SNAKE = True
NOKV = 0
DROP = ()
STSET = 'q'
KSTAG = True
VERB = 0
FLAGPOS = 40
POLLPOS = 90
POLLLAT = 24
NBM = 4
WBEF = 1
NOBAR = 0

def f32(x): return "0x%08x" % struct.unpack("<I", struct.pack("<f", x))[0]
def vr(b, n=4): return f"v[{b}:{b+n-1}]"
def ar(b, n=4): return f"a[{b}:{b+n-1}]"
MF = "v_mfma_f32_16x16x32_bf16"

def srd(p, d, lo, hi, nbytes):
    p(f"s_mov_b32 s{d}, s{lo}\ns_and_b32 s{d+1}, s{hi}, 0xffff\ns_mov_b32 s{d+2}, {nbytes}\ns_mov_b32 s{d+3}, 0x00020000")

sK, sV, sWq, sX, sO, sF, sWo = 4, 8, 12, 16, 20, 24, 28
sP, sOUT, sDBG = 12, 16, 92
sPF = 76
sXCC = 50; sFASTF = 42
sTK1, sTK2 = 92, 94
TOKC = (0x9e3779b9, 0x7f4a7c15)
F2BASE = 256 * 256
sWAVE, sB, sH, sHG, sHL = 32, 33, 34, 35, 36
sM0W = 37
sKOFF = 38
sWR, sRD = 39, 40
sT, sD = 41, 42
sWOFF, sXOFF = 43, 44
sWW = 45
sTMP = 46
sLTHR = 3
sKK = 51
sSTAMP = 52
def stamp(p, i):
    if STAMP: p(f"{'s_memtime' if STAMP == 2 else 's_memrealtime'} s[{sSTAMP+2*i}:{sSTAMP+2*i+1}]")
CST = {5: 80, 6: 82, 9: 88, 10: 100}
_stamp0 = stamp
def stamp(p, i):
    _stamp0(p, i)
    if STAMP and i in CST: p(f"s_memtime s[{CST[i]}:{CST[i]+1}]")

def addptr(p, lo, sreg):
    p(f"s_add_u32 s{lo}, s{lo}, s{sreg}\ns_addc_u32 s{lo+1}, s{lo+1}, 0")
def ws_srd(p, d, sreg, const, nbytes):
    p(f"s_add_u32 s96, s90, s{sreg}\ns_addc_u32 s97, s91, 0")
    if const: p(f"s_add_u32 s96, s96, {const}\ns_addc_u32 s97, s97, 0")
    srd(p, d, 96, 97, nbytes)

vKD, vVD, vWD = 2, 5, 8
vXD = 11
vWOD = 11
vKL, vVL = 17, 19
vKA, vVA = 23, 25
vXR = 29
vWOL, vOL = 252, 30
vWOA = 23
vT0 = 31
vVB = 252
vPF = 168
vXC = 172
vF1, vF2 = 250, 251
vFLV = 8
vACC = 32
vQ = 176
vS = (32, 56); vP = (80, 92); vNM = 104; vONE = 116; vE = 120; vCK = 130; vR = 132; vL = (144, 156)
NE = 5
vB = 32
vRC = 136
aO = 0; aPOOL = 144; aC = 0
aX = 0; NXB = 6
def qfrag(qb, s): return vQ + (qb * 6 + s) * 4
def oacc(db, qb): return aO + (db * 3 + qb) * 4
def sreg(buf, qb, kb): return vS[buf] + (qb * 2 + kb) * 4
def bfrag(u, qb):
    if u < 6: return vr(vQ + (u * 3 + qb) * 4)
    k = (u - 6) * 3 + qb
    if k < 36: return vr(vB + k * 4)
    k -= 36
    return ar(120 + k * 4) if k < 6 else ar(192 + (k - 6) * 4)

XS0 = 5
def xpair(c): return XS0 + 2 * (c % 2)
WRING = [9, 10, 11, 1, 12]
def wslot(u): return WRING[u % 5]
def kvslot(kind, i): return 2 * (i % 6) if kind == 'K' else 2 * ((i + 1) % 6) + 1

def setup_dma(p):
    t = 240
    p(f"""
v_lshrrev_b32 v{t}, 3, v0
v_and_b32 v{t+1}, 7, v0
s_lshl_b32 s{sTMP}, s{sWAVE}, 3
s_lshl_b32 s{sTMP+1}, s{sB}, 2
s_add_u32 s{sTMP+1}, s{sTMP+1}, s{sWAVE}
s_mul_i32 s{sTMP+1}, s{sTMP+1}, {48*1280}
""")
    for half in range(2):
        p(f"""
v_lshrrev_b32 v{t+2}, 1, v{t}
v_add_u32 v{t+2}, {4*half}, v{t+2}
v_xor_b32 v{t+2}, v{t+2}, v{t+1}
v_lshlrev_b32 v{t+2}, 4, v{t+2}
v_add_u32 v{t+3}, {8*half}, v{t}
v_mul_u32_u24 v{t+3}, 1280, v{t+3}
v_add3_u32 v{vXD+half}, v{t+2}, v{t+3}, s{sTMP+1}
v_add_u32 v{vXD+2+half}, {20480-1024}, v{vXD+half}
v_add_u32 v{vXD+4+half}, {2*(20480-1024)}, v{vXD+half}
""")
def setup_dma2(p):
    t = 240
    p(f"s_mul_i32 s{sTMP+1}, s{sHL}, 384")
    for j in range(3):
        p(f"""
v_add_u32 v{t+2}, {8*j}, v{t}
v_mul_u32_u24 v{t+3}, 11, v{t+2}
v_lshrrev_b32 v{t+3}, 5, v{t+3}
v_mul_u32_u24 v{t+4}, 3, v{t+3}
v_sub_u32 v{t+4}, v{t+2}, v{t+4}
v_add_u32 v{t+3}, s{sTMP}, v{t+3}
v_bfe_u32 v{t+5}, v{t+3}, 2, 1
v_and_b32 v{t+6}, 2, v{t+3}
v_or_b32 v{t+5}, v{t+5}, v{t+6}
v_lshrrev_b32 v{t+6}, 1, v{t+3}
v_and_b32 v{t+6}, 4, v{t+6}
v_or_b32 v{t+5}, v{t+5}, v{t+6}
v_xor_b32 v{t+5}, v{t+5}, v{t+1}
v_lshlrev_b32 v{t+5}, 4, v{t+5}
v_lshl_add_u32 v{t+5}, v{t}, 7, v{t+5}
v_add_u32 v{vKD+j}, s{sM0W}, v{t+5}
v_and_b32 v{t+5}, 6, v{t+3}
v_xor_b32 v{t+5}, v{t+5}, v{t+1}
v_lshlrev_b32 v{t+5}, 4, v{t+5}
v_lshl_add_u32 v{t+6}, v{t}, 7, v{t+5}
v_add_u32 v{vVD+j}, s{sM0W}, v{t+6}
v_bfe_u32 v{t+6}, v{t+3}, 2, 2
v_lshlrev_b32 v{t+6}, 3, v{t+6}
v_lshrrev_b32 v{t+7}, 4, v{t+3}
v_lshl_add_u32 v{t+6}, v{t+7}, 2, v{t+6}
v_and_b32 v{t+7}, 3, v{t+3}
v_add_u32 v{t+6}, v{t+6}, v{t+7}
v_mul_u32_u24 v{t+6}, 12288, v{t+6}
v_lshl_add_u32 v{t+6}, v{t+4}, 7, v{t+6}
v_add3_u32 v{t+6}, v{t+6}, v{t+5}, s{sTMP+1}
v_subrev_u32 v{vWD+j}, {1024*j}, v{t+6}
""")

vPO, vPWO = 1, 249
def setup_pf2(p):
    t = 224
    p(f"""
v_mul_u32_u24 v{t}, 2731, v0
v_lshrrev_b32 v{t}, 16, v{t}
v_mul_u32_u24 v{t+1}, 24, v{t}
v_sub_u32 v{t+1}, v0, v{t+1}
v_mul_u32_u24 v{t}, 12288, v{t}
v_lshl_add_u32 v{t}, v{t+1}, 7, v{t}
s_mul_i32 s{sTMP+1}, s{sHL}, 73728
s_add_u32 s{sTMP+1}, s{sTMP+1}, s{sM0W}
v_add_u32 v{t}, s{sTMP+1}, v{t}
v_cmp_gt_u32 vcc, 48, v0
v_mov_b32 v{t+3}, 0x7f000000
v_cndmask_b32 v{vPO}, v{t+3}, v{t}, vcc
s_mul_i32 s{sTMP+1}, s{sHL}, 320
s_sub_u32 s96, s84, s{sTMP+1}
s_subb_u32 s97, s85, 0
s_lshr_b32 s{sTMP+1}, s2, 3
s_lshl_b32 s{sTMP+1}, s{sTMP+1}, 2
s_add_u32 s{sTMP+1}, s{sTMP+1}, s{sWAVE}
s_mul_i32 s{sTMP+1}, s{sTMP+1}, {60*128}
s_add_u32 s96, s96, s{sTMP+1}
s_addc_u32 s97, s97, 0
v_lshlrev_b32 v{vPWO}, 7, v0
""")
    srd(p, sPF, 96, 97, 60 * 128)
def pf_o():
    r = []
    for k in range(3):
        r += [S(f"s_mov_b32 s{sTMP+2}, {k*24576}"), Item('M', f"buffer_load_dword v248, v{vPO}, s[{sO}:{sO+3}], s{sTMP+2} offen {NTP}", tag="dummy")]
    return r
def pf_wo():
    return [Item('M', f"buffer_load_dword v248, v{vPWO}, s[{sPF}:{sPF+3}], 0 offen {NTO}", tag="dummy")]
def pf_items(n):
    if n == 'PO': return pf_o()
    if n == 'PW': return pf_wo()

def setup_reads(p):
    t = 240
    p(f"""
v_and_b32 v{t}, 15, v0
v_lshrrev_b32 v{t+1}, 4, v0
v_lshrrev_b32 v{t+2}, 1, v{t}
v_xor_b32 v{t+2}, v{t+2}, v{t+1}
v_lshlrev_b32 v{t+5}, 4, v{t+2}
v_and_b32 v{t+3}, 7, v{t}
v_lshl_add_u32 v{t+5}, v{t+3}, 7, v{t+5}
v_lshrrev_b32 v{t+3}, 3, v{t}
v_mul_u32_u24 v{t+3}, 12288, v{t+3}
v_add3_u32 v{t+5}, v{t+5}, v{t+3}, s{sM0W}
v_add_u32 v{vXR}, {XS0*SLOT}, v{t+5}
v_xor_b32 v{vXR+1}, 64, v{vXR}
v_bfe_u32 v{t+3}, v{t+2}, 1, 1
v_and_b32 v{t+4}, 1, v{t+2}
v_lshl_add_u32 v{t+3}, v{t+4}, 1, v{t+3}
v_and_b32 v{t+4}, 4, v{t+2}
v_or_b32 v{t+3}, v{t+3}, v{t+4}
v_lshlrev_b32 v{t+3}, 4, v{t+3}
v_mul_u32_u24 v{t+4}, 384, v{t}
v_add_u32 v{vKL}, v{t+3}, v{t+4}
v_xor_b32 v{vKL+1}, 64, v{vKL}
v_lshrrev_b32 v{t+2}, 2, v0
v_mul_u32_u24 v{t+3}, 384, v{t+2}
v_bfe_u32 v{t+4}, v{t+2}, 1, 2
v_lshl_add_u32 v{t+3}, v{t+4}, 5, v{t+3}
v_and_b32 v{t+4}, 3, v0
v_lshl_add_u32 v{vVL}, v{t+4}, 3, v{t+3}
v_xor_b32 v{vVL+1}, 32, v{vVL}
v_xor_b32 v{vVL+2}, 64, v{vVL}
v_xor_b32 v{vVL+3}, 96, v{vVL}
""")

def wrap_add(s, inc, lim):
    return L(f"s_add_u32 s{s}, s{s}, {inc}\ns_cmp_ge_u32 s{s}, {lim}\ns_cselect_b32 s{sTMP+3}, {lim}, 0\ns_sub_u32 s{s}, s{s}, s{sTMP+3}")


def S(t, **k): return Item('S', t, **k)
def wrap_items(s, inc, lim):
    return [S(f"s_add_u32 s{s}, s{s}, {inc}"), S(f"s_cmp_ge_u32 s{s}, {lim}\ns_cselect_b32 s{sTMP+3}, {lim}, 0\ns_sub_u32 s{s}, s{s}, s{sTMP+3}")]
def wrap0_items(s, inc, lim, zero="0"):
    return [S(f"s_add_u32 s{s}, s{s}, {inc}"), S(f"s_cmp_ge_u32 s{s}, {lim}\ns_cselect_b32 s{s}, {zero}, s{s}")]

def dma_tile(kind, pre, so, tag=None, post=()):
    vd, sr, pol = {'K': (vKD, sK, NT), 'V': (vVD, sV, NT), 'W': (vWD, sWq, NTW)}[kind]
    g = [S(x) for x in pre]
    for j in range(3):
        g.append(Item('M', f"buffer_load_dwordx4 v{vd+j}, s[{sr}:{sr+3}], {so} offen offset:{1024*j} {pol} lds", tag=tag))
    return g + list(post)
def dma_kv_static(kind, i):
    so = sKK if kind == 'K' else sKOFF
    return dma_tile(kind, [f"s_add_u32 m0, s{sM0W}, {kvslot(kind,i)*SLOT}"], f"s{so}", f"{kind}{i}", wrap0_items(so, SLOT, 32 * SLOT))
def dma_w(u):
    return dma_tile('W', [f"s_add_u32 m0, s{sM0W}, {wslot(u)*SLOT}"], f"s{sWOFF}", f"W{u}", wrap0_items(sWOFF, 32 * 12288, 640 * 12288))
def dma_x(c):
    g = []
    base = xpair(c)
    for half in range(2):
        g.append(S(f"s_add_u32 m0, s{sM0W}, {(base+half)*SLOT}"))
        for qb in range(3):
            g.append(Item('M', f"buffer_load_dwordx4 v{vXD+2*qb+half}, s[{sX}:{sX+3}], s{sXOFF} offen offset:{1024*qb} {NTW} lds", tag=f"X{c}"))
    return g + wrap0_items(sXOFF, 128, 1280)
def xfrag(c, ks, qb): return aX + (c % NXB) * 24 + (ks * 3 + qb) * 4
def read_x(c):
    off = (xpair(c) - XS0) * SLOT
    return [Item('L', f"ds_read_b128 {ar(xfrag(c,ks,qb))}, v{vXR+ks} offset:{off + qb*1024}") for ks in range(2) for qb in range(3)]
def flat(p, items):
    for it in items: p.cur += it.ins

def snake(mf, k): return mf[::-1] if (SNAKE and k & 1) else mf
class Pool:
    def __init__(self, size): self.n = 0; self.size = size
    def next(self):
        r = aPOOL + 4 * (self.n % self.size); self.n += 1; return r

def vunit_reads(buf, db, base_imm=0, va=None):
    va = vVA if va is None else va
    return [f"ds_read_b64_tr_b16 {ar(buf,2)}, v{va+(db&3)} offset:{base_imm + (db>>2)*128}",
            f"ds_read_b64_tr_b16 {ar(buf+2,2)}, v{va+(db&3)} offset:{base_imm + (db>>2)*128 + 6144}"]
def kunit_reads(buf, kb, ds, imm=0):
    return [f"ds_read_b128 {ar(buf)}, v{vKA+(ds&1)} offset:{imm + kb*6144 + (ds>>1)*128}"]

T = 4
RGAP = 6
class Stream:
    def __init__(self, tail=()):
        self.mf = []; self.items = []; self.resA = set()
        for u in tail: self.add_unit(u, True)
    def n(self): return len(self.mf)
    def add_unit(self, u, noread=False):
        u['first'] = len(self.mf)
        if u.get('reads') or u.get('needwait'): self.resA.add(len(self.mf) - 1)
        for k, m in enumerate(u['mf']): self.mf.append((u.get('head', []) if k == 0 else [], m))
    def reads(self, units, lo, hi, after=()):
        its = []
        tot = sum(len(u['reads']) for u in units); k = 0
        for u in units:
            g = lo + (hi - lo + 1) * k // tot
            for r in u['reads']:
                it = Item('L', r, lo=lo, hi=max(lo, min(hi, u['first'] - 5)), target=g, after=list(after) + ([(its[-1], 0)] if its else []))
                it.use = u['first']
                its.append(it); k += 1
        self.items += its
        return its
    def barrier(self, g, wait):
        w = Item('S', [I(x) for x in wait], lo=g, hi=g + 2, target=g)
        b = Item('S', "s_barrier", lo=g + 1, hi=g + 3, after=[(w, 1)])
        self.items += [w, b]
        return b
    def add(self, its): self.items += its; return its
    def emit(self, keep=0, name=""):
        mf = self.mf[:len(self.mf) - keep] if keep else self.mf
        out = pack(mf, self.items, self.resA, name)
        for it in self.items:
            if hasattr(it, 'use'):
                d = set(it.ins[0].dst)
                assert it.gap < it.use, (name, it.ins[0].text)
                for g in range(it.gap + 1, it.use):
                    assert not (d & set(self.mf[g][1].src)), ("pool WAR", name, it.ins[0].text, it.gap, g)
        return out

SCHED = 0
def set_sched():
    global PRO, PRO2, QS
    if SCHED == 0:
        PRO = ['X0', 'W0', 'W1', 'W2']
        PRO2 = ['X1']
        QS = {
            0: (['W3'], None, []),
            1: (['W4', 'W5'], 1, ['X2']),
            2: (['W6'], None, ['X3']),
            3: (['W7'], 2, ['X4']),
            4: (['W8'], 3, ['X5']),
            5: (['W9', 'K0', 'K1'], None, []),
            6: (['W10'], 4, ['X6']),
            7: (['W11'], 5, ['X7']),
            8: (['W12', 'V0', 'K2'], None, []),
            9: (['W13'], 6, ['X8']),
            10: (['W14'], 7, ['X9']),
            11: (['W15'], None, []),
            12: (['W16'], 8, ['V1', 'K3']),
            13: (['W17'], 9, []),
            14: (['W18'], None, []),
            15: (['W19', 'V2', 'K4'], None, []),
            16: (['V3'], None, []),
            17: (['K5'], None, []),
            18: (['V4'], None, []),
            19: ([], None, []),
        }
    elif SCHED == 3:
        PRO = ['X0', 'W0', 'W1', 'W2']
        PRO2 = ['X1']
        QS = {
            0: (['W3'], None, []),
            1: (['W4', 'W5'], 1, ['X2']),
            2: (['W6'], None, ['X3']),
            3: (['W7'], 2, ['X4']),
            4: (['W8', 'K0'], 3, ['X5']),
            5: (['W9'], None, ['K1']),
            6: (['W10'], 4, ['X6']),
            7: (['W11', 'V0'], 5, ['X7']),
            8: (['W12'], 6, ['X8']),
            9: (['W13', 'K2'], 7, ['X9']),
            10: (['W14'], 8, ['V1']),
            11: (['W15'], 9, []),
            12: (['W16', 'K3'], None, []),
            13: (['W17'], None, ['V2']),
            14: (['W18'], None, []),
            15: (['W19', 'K4'], None, []),
            16: ([], None, ['V3']),
            17: ([], None, []),
            18: (['K5'], None, []),
            19: ([], None, ['V4']),
        }
    elif SCHED == 4:
        PRO = ['X0', 'W0', 'W1', 'W2']
        PRO2 = ['X1']
        QS = {
            0: (['W3'], None, []),
            1: (['W4', 'W5'], 1, ['X2']),
            2: (['W6'], None, ['X3']),
            3: (['W7'], 2, ['X4']),
            4: (['W8'], 3, ['X5']),
            5: (['W9'], None, []),
            6: (['W10'], 4, ['X6']),
            7: (['W11', 'K0'], 5, ['X7']),
            8: (['W12'], 6, ['X8']),
            9: (['W13'], 7, ['X9']),
            10: (['W14', 'K1'], 8, []),
            11: (['W15'], 9, []),
            12: (['W16', 'V0'], None, []),
            13: (['W17'], None, []),
            14: (['W18', 'K2'], None, []),
            15: (['W19'], None, []),
            16: (['V1'], None, []),
            17: (['K3'], None, []),
            18: (['V2'], None, []),
            19: (['K4', 'V3'], None, ['K5', 'V4']),
        }
def issue(name):
    if name[0] == 'P': return pf_items(name)
    k, i = name[0], int(name[1:])
    return dma_x(i) if k == 'X' else dma_w(i) if k == 'W' else dma_kv_static(k, i)

def check_sched():
    occ = {}
    xread = {0: -1}
    for u, (e, xr, l) in QS.items():
        if xr is not None: xread[xr] = u
    def slots(n):
        k, i = n[0], int(n[1:])
        return [xpair(i), xpair(i) + 1] if k == 'X' else [wslot(i)] if k == 'W' else [kvslot(k, i)]
    def put(n, u, late):
        if n[0] == 'P': return
        for s in slots(n):
            o = occ.get(s)
            if o:
                k, i = o[0], int(o[1:])
                if k == 'W': assert i <= u - 1, (n, u, o)
                elif k == 'X': assert xread[i] < u or (xread[i] == u and late), (n, u, o)
                else: assert False, (n, u, o)
            occ[s] = n
    seq = []
    for n in PRO: put(n, -2, False); seq.append(n)
    for n in PRO2: put(n, -1, True); seq.append(n)
    for u in range(20):
        e, xr, l = QS[u]
        for n in e: put(n, u, False); seq.append(n)
        for n in l: put(n, u, True); seq.append(n)
        if xr is not None:
            assert xr * 2 > u and (xr - NXB) * 2 + 1 < u, (xr, u)
    assert [n for n in seq if n[0] == 'W'] == [f"W{i}" for i in range(20)]
    assert [n for n in seq if n[0] == 'X'] == [f"X{i}" for i in range(10)]
    assert [n for n in seq if n[0] in 'KV'] == ['K0', 'K1', 'V0', 'K2', 'V1', 'K3', 'V2', 'K4', 'V3', 'K5', 'V4']

def qproj(p, pool):
    set_sched()
    if isinstance(WOPF, int): QS[WOPF] = (QS[WOPF][0] + ['PW'],) + QS[WOPF][1:]
    if isinstance(OPF, int): QS[OPF] = (QS[OPF][0] + ['PO'],) + QS[OPF][1:]
    check_sched()
    for n in PRO:
        if n == 'W0': setup_dma2(p)
        flat(p, issue(n))
    setup_reads(p)
    setup_pf2(p)
    p("WAITVM X0")
    if STSET in 'qQ': stamp(p, 1)
    flat(p, read_x(0))
    if any(n[0] == 'X' and xpair(int(n[1:])) == xpair(0) for n in PRO2): p("s_waitcnt lgkmcnt(0)")
    for n in PRO2: flat(p, issue(n))
    p(f"""
s_add_u32 s{sTK1}, s{sTK1}, {TOKC[0]}
s_addc_u32 s{sTK1+1}, s{sTK1+1}, {TOKC[1]}
s_add_u32 s{sTK2}, s{sTK2}, {TOKC[0]}
s_addc_u32 s{sTK2+1}, s{sTK2+1}, {TOKC[1]}
s_xor_b32 s{sXCC}, s{sXCC}, s{sTK1}
v_mov_b32 v240, s{sXCC}
v_mov_b32 v241, s{sTK1+1}
s_lshl_b64 exec, 1, s{sHL}
buffer_store_dwordx2 v[240:241], v{vF1}, s[{sF}:{sF+3}], 0 offen offset:128 sc1
s_mov_b64 exec, -1
""")
    for uu in range(4): p(f"v_add_u32 v{vVA+uu}, {wslot(0)*SLOT}, v{vVL+uu}")
    p("WAITVM W0\ns_barrier")
    st = Stream()
    tiles = []
    for u in range(20):
        c, ks = u >> 1, u & 1
        va = vVA if u % 2 == 0 else vVB
        units = []
        for db in range(12):
            buf = pool.next()
            mf = []
            for qb in range(3):
                d = vACC + (db * 3 + qb) * 4
                mf.append(I(f"{MF} {vr(d)}, {ar(buf)}, {ar(xfrag(c,ks,qb))}, {vr(d) if u else 0}"))
            units.append(dict(reads=vunit_reads(buf, db, 0, va), mf=snake(mf, db)))
            st.add_unit(units[-1])
        tiles.append(units)
    prevdma = None
    for u in range(20):
        g0 = 36 * u - 3 * T
        if u == 0:
            for un in tiles[0][:T]:
                for r in un['reads']: p(r)
            st.reads(tiles[0][T:], 0, g0 + 36 - RGAP)
            bar = None; glo = 0
        else:
            w = [f"WAITVM W{u}", "s_waitcnt lgkmcnt(0)"]
            if STAMP and STSET == 'Q' and u % 2 == 0 and u <= 16:
                k = [2, 3, 4, 6, 7, 8, 9, 10][u // 2 - 1]
                w.append(f"s_memrealtime s[{sSTAMP+2*k}:{sSTAMP+2*k+1}]")
            if STAMP and STSET == 'q' and u in (5, 10, 15): w.append(f"{'s_memtime' if STAMP == 2 else 's_memrealtime'} s[{sSTAMP+2*(1+u//5)}:{sSTAMP+2*(1+u//5)+1}]")
            bar = st.barrier(g0, w)
            st.reads(tiles[u], g0 + 1, g0 + 36 - RGAP, [(bar, 0)])
            glo = g0 + 2
        if u < 19:
            va = vVA if (u + 1) % 2 == 0 else vVB
            st.add(chain([Item('V', f"v_add_u32 v{va+uu}, {wslot(u+1)*SLOT}, v{vVL+uu}") for uu in range(4)], glo + 6, g0 + 30))
        e, xr, l = QS[u]
        f1 = [g for n in e for g in issue(n)]
        nx = [g for n in l for g in issue(n)]
        seq = []
        if f1:
            chain(f1, glo, glo + 12)
            if bar: f1[0].after.append((bar, 1))
            seq += f1
        if xr is not None:
            rd = [S(f"WAITVM X{xr}")] + read_x(xr)
            chain(rd, g0 + 14, g0 + 22)
            seq += rd
            if nx: nx = [Item('V', f"v_accvgpr_read_b32 v{vT0}, a{xfrag(xr,1,2)}", after=[(rd[-1], 4)])] + nx
        if nx:
            chain(nx, g0 + 24, g0 + 35)
            seq += nx
        for k in range(len(seq)):
            pv = seq[k - 1] if k else prevdma
            if pv is not None and not any(a is pv for a, _ in seq[k].after): seq[k].after.append((pv, 1))
            seq[k].hi = g0 + 50 if seq[k].kind != 'L' else g0 + 30
        if seq: prevdma = seq[-1]
        st.add(seq)
    p.cur += st.emit(name="qproj")
    SC = math.log2(math.e) / math.sqrt(192.0)
    p(f"s_mov_b32 s{sTMP+2}, {f32(SC)}\ns_mov_b32 s{sTMP+3}, {f32(SC)}")
    for s in range(6):
        for qb in range(3):
            a = vACC + ((2 * s) * 3 + qb) * 4; b = vACC + ((2 * s + 1) * 3 + qb) * 4
            q = qfrag(qb, s)
            for r in (a, a + 2, b, b + 2):
                p(f"v_pk_mul_f32 {vr(r,2)}, {vr(r,2)}, s[{sTMP+2}:{sTMP+3}]")
            p(f"v_cvt_pk_bf16_f32 v{q}, v{a}, v{a+1}\nv_cvt_pk_bf16_f32 v{q+1}, v{a+2}, v{a+3}")
            p(f"v_cvt_pk_bf16_f32 v{q+2}, v{b}, v{b+1}\nv_cvt_pk_bf16_f32 v{q+3}, v{b+2}, v{b+3}")
    for s in range(6):
        for qb in range(3):
            q = qfrag(qb, s)
            p(f"v_permlane16_swap_b32 v{q}, v{q+2}\nv_permlane16_swap_b32 v{q+1}, v{q+3}")

def qk_units(pool, buf, zero=False, imm=0):
    units = []
    for kb in range(2):
        for ds in range(6):
            pb = pool.next()
            mf = []
            for qb in range(3):
                d = sreg(buf, qb, kb)
                c = vr(d) if ds else (0 if zero else vr(vNM + 4 * qb))
                mf.append(I(f"{MF} {vr(d)}, {ar(pb)}, {vr(qfrag(qb,ds))}, {c}"))
            units.append(dict(reads=kunit_reads(pb, kb, ds, imm), mf=snake(mf, ds)))
    return units
def rs_unit(buf, zero=False):
    return dict(reads=None, mf=[I(f"{MF} {vr(vL[buf]+4*qb)}, {vr(vONE)}, {vr(vP[buf]+4*qb)}, {0 if zero else vr(vL[buf^1]+4*qb)}") for qb in range(3)])
def pv_units(pool, buf, zero=False, imm=0):
    units = []
    for db in range(12):
        pb = pool.next()
        mf = [I(f"{MF} {ar(oacc(db,qb))}, {ar(pb)}, {vr(vP[buf]+4*qb)}, {0 if zero else ar(oacc(db,qb))}") for qb in range(3)]
        units.append(dict(reads=vunit_reads(pb, db, SLOT + imm), mf=snake(mf, db)))
    return units

PAIRS = [(qb, kb, h) for kb in range(2) for qb in range(3) for h in range(2)]
def softmax_items(buf, n0, n1, lo, hi):
    ex = []; cv = []
    for n in range(n0, n1):
        qb, kb, h = PAIRS[n]
        s = sreg(buf, qb, kb) + 2 * h
        e = vE + 2 * (n % NE)
        a = Item('E', f"v_exp_f32 v{e}, v{s}"); b = Item('E', f"v_exp_f32 v{e+1}, v{s+1}")
        if len(cv) >= NE: a.after.append((cv[-NE], 1))
        ex += [a, b]
        cv.append(Item('V', f"v_cvt_pk_bf16_f32 v{vP[buf]+4*qb+2*kb+h}, v{e}, v{e+1}", lo=lo, hi=hi, after=[(b, 1)]))
    chain(ex, lo, hi - 1)
    for e in ex: e.hi = hi
    for k, c in enumerate(cv): c.target = ex[2 * k + 1].target + 1
    return ex + cv
SPLIT = 6
LTHR = 2.0 ** 40
def rowmax(p, buf, qb, dst):
    s0, s1 = sreg(buf, qb, 0), sreg(buf, qb, 1)
    p(f"""
v_max3_f32 v{dst}, v{s0}, v{s0+1}, v{s0+2}
v_max3_f32 v{dst}, v{dst}, v{s0+3}, v{s1}
v_max3_f32 v{dst}, v{dst}, v{s1+1}, v{s1+2}
v_max_f32 v{dst}, v{dst}, v{s1+3}
v_mov_b32 v{vR+8}, v{dst}
v_permlane32_swap_b32 v{dst}, v{vR+8}
v_max_f32 v{dst}, v{dst}, v{vR+8}
v_mov_b32 v{vR+8}, v{dst}
v_permlane16_swap_b32 v{dst}, v{vR+8}
v_max_f32 v{dst}, v{dst}, v{vR+8}
""")

def rare_path(p, label, buf):
    p.reset_state()
    p(f"{label}:\ns_nop 15")
    for qb in range(3):
        d = vR + qb
        rowmax(p, buf, qb, d)
        p(f"v_max_f32 v{d}, 0, v{d}")
        for r in range(4): p(f"v_sub_f32 v{vNM+4*qb+r}, v{vNM+4*qb+r}, v{d}")
        for bb in (buf, buf ^ 1):
            for r in range(8): p(f"v_sub_f32 v{sreg(bb,qb,0)+r}, v{sreg(bb,qb,0)+r}, v{d}")
        p(f"v_exp_f32_e64 v{vR+4+qb}, -v{d}")
    for qb in range(3):
        for r in range(4): p(f"v_mul_f32 v{vL[buf^1]+4*qb+r}, v{vL[buf^1]+4*qb+r}, v{vR+4+qb}")
        for r in [oacc(db, qb) + r for db in range(12) for r in range(4)]:
            p(f"v_accvgpr_read_b32 v{vR+9}, a{r}\nv_mul_f32 v{vR+9}, v{vR+9}, v{vR+4+qb}\nv_accvgpr_write_b32 a{r}, v{vR+9}")
    for (qb, kb, h) in PAIRS:
        s = sreg(buf, qb, kb) + 2 * h
        p(f"v_exp_f32 v{vE}, v{s}\nv_exp_f32 v{vE+1}, v{s+1}\nv_cvt_pk_bf16_f32 v{vP[buf]+4*qb+2*kb+h}, v{vE}, v{vE+1}")
    p.cur += rs_unit(buf)['mf']
    p(f"s_nop 15\ns_setpc_b64 s[98:99]")
    p.flush()

GSZ = 20480
TRAMPS = []
OUTL = []
def goff(G): return ((G + 4) % 8) * GSZ
def dma_wo(m0a, m0b, tag):
    g = []
    for j in range(5):
        if j == 0: g.append(S(m0a))
        if j == 4: g.append(S(m0b))
        g.append(Item('M', f"buffer_load_dwordx4 v{vWOD+j}, s[{sWo}:{sWo+3}], s{sWOFF} offen offset:{1024*(j%4)} {NTO} lds", tag=tag))
    return g + wrap0_items(sWOFF, 64 * 1280, 768 * 1280)
def dma_wo_static(G):
    sl = goff(G)
    return dma_wo(f"s_add_u32 m0, s{sWW}, {sl}", f"s_add_u32 m0, s{sWW}, {sl+4096}", f"G{G}")

def setup_oproj(p):
    t = 136
    p(f"s_mul_i32 s{sTMP}, s{sWAVE}, {16*1280}")
    for j in range(5):
        p(f"""
v_add_u32 v{t}, {64*j}, v0
v_mul_u32_u24 v{t+1}, 205, v{t}
v_lshrrev_b32 v{t+1}, 12, v{t+1}
v_mul_u32_u24 v{t+2}, 20, v{t+1}
v_sub_u32 v{t+2}, v{t}, v{t+2}
v_lshrrev_b32 v{t+3}, 1, v{t+1}
v_and_b32 v{t+3}, 2, v{t+3}
v_xor_b32 v{t+2}, v{t+2}, v{t+3}
v_mul_u32_u24 v{t+1}, 1280, v{t+1}
v_lshl_add_u32 v{t+1}, v{t+2}, 4, v{t+1}
v_add_u32 v{t+1}, s{sTMP}, v{t+1}
v_subrev_u32 v{vWOD+j}, {1024*(j%4)}, v{t+1}
""")
    p(f"""
v_lshrrev_b32 v{t}, 2, v0
v_mul_u32_u24 v{t}, 320, v{t}
v_and_b32 v{t+1}, 3, v0
v_lshl_add_u32 v{t}, v{t+1}, 3, v{t}
v_and_b32 v{t+1}, 16, v0
v_lshlrev_b32 v{t+1}, 1, v{t+1}
v_add_u32 v{vWOL}, v{t}, v{t+1}
v_sub_u32 v{vWOL+1}, v{t}, v{t+1}
v_lshlrev_b32 v{vOL}, 4, v0
v_add_u32 v{vOL}, s{sM0W}, v{vOL}
s_mul_i32 s{sWW}, s{sWAVE}, 5120
s_mul_i32 s{sWOFF}, s{sHL}, {192*1280}
""")
    p(f"""
s_lshl_b32 s{sTMP}, s{sB}, 2
s_add_u32 s{sTMP}, s{sTMP}, s{sHL}
s_lshl_b32 s{sTMP}, s{sTMP}, 2
s_add_u32 s{sTMP}, s{sTMP}, s{sWAVE}
s_mul_i32 s{sTMP+1}, s{sTMP}, {8*15360}
""")
    ws_srd(p, sP, sTMP + 1, PART_OFF, 8 * 15360)
    p(f"""
s_lshl_b32 s{sTMP}, s{sB}, 2
s_add_u32 s{sTMP}, s{sTMP}, s{sWAVE}
s_mul_i32 s{sTMP}, s{sTMP}, {48*1280}
s_mul_i32 s{sTMP+1}, s{sHL}, 320
s_add_u32 s{sTMP}, s{sTMP}, s{sTMP+1}
""")
    addptr(p, 86, sTMP)
    srd(p, sOUT, 86, 87, 47 * 1280 + 320)

def attention(p, pool):
    for r in range(4): p(f"v_mov_b32 v{vONE+r}, 0x3f803f80")
    for db in range(12 - T, 12):
        for r in range(12): p(f"v_accvgpr_write_b32 a{oacc(db,0)+r}, 0")
    setup_oproj(p)
    p(f"s_mov_b32 s{sLTHR}, {f32(LTHR)}")
    for u in range(2): p(f"v_mov_b32 v{vKA+u}, v{vKL+u}")
    p("WAITVM V0")
    p("s_waitcnt lgkmcnt(0)\ns_barrier")
    st = Stream()
    qk = qk_units(pool, 0, zero=True)
    for u in qk: st.add_unit(u)
    for u in qk[:4]: p(u['reads'][0])
    st.reads(qk[4:], 0, 22)
    p.cur += st.emit(name="qk0")
    for qb in range(3):
        d = vR + qb
        rowmax(p, 0, qb, d)
        for r in range(4): p(f"v_sub_f32 v{vNM+4*qb+r}, 0, v{d}")
        for r in range(8): p(f"v_sub_f32 v{sreg(0,qb,0)+r}, v{sreg(0,qb,0)+r}, v{d}")
    skipmask = sum(1 << s for s in SKIPS)
    assert all(s % 2 == 1 and s <= 25 for s in SKIPS) and len(SKIPS) <= 2
    p(f"""
s_mov_b32 s{sWR}, s{sM0W}
s_mov_b32 s{sRD}, 0
s_mov_b32 s{sT}, 1
""")
    for u in range(4): p(f"v_mov_b32 v{vVA+u}, v{vVL+u}")
    def kv_issue(par, nok=False):
        dk = dma_tile('K', [f"s_mov_b32 m0, s{sWR}"], f"s{sKK}") if not nok else []
        dv = dma_tile('V', [f"s_add_u32 m0, s{sWR}, {SLOT}"], f"s{sKOFF}")
        post = [S(f"s_mov_b32 s{sKOFF}, s{sKK}")] + wrap0_items(sKK, SLOT, 32 * SLOT)
        if par and not SKIPS: post.append(S(f"s_cmp_eq_u32 s{sT}, 25\ns_cselect_b32 s{sKK}, {32*SLOT}, s{sKK}"))
        return dk + dv + post + wrap0_items(sWR, 2 * SLOT, 12 * SLOT, f"s{sM0W}")
    def step(t_par, tail, mode, vm, extra=(), endi=()):
        cur, nxt = t_par, t_par ^ 1
        first = mode == 'first'; last = mode == 'last'
        imm = 0 if t_par else 2 * SLOT
        st = Stream(tail)
        pre = []
        qk = [] if last else qk_units(pool, nxt, imm=imm)
        pv = pv_units(pool, cur, zero=first, imm=imm)
        rs = rs_unit(cur, zero=first)
        if not first:
            ret = p.newlabel("L_ret"); tr = p.newlabel("L_tramp")
            TRAMPS.append((tr, ret, cur))
            pv[0]['head'] = L(f"s_cbranch_vccnz {tr}\n{ret}:")
        order = qk[:9] + [rs] + qk[9:] + pv if not first else qk + [rs] + pv
        for u in order: st.add_unit(u)
        keep = 0 if last else 3 * T
        n = st.n() - keep
        wait = [f"s_waitcnt vmcnt({vm}) lgkmcnt(0)"]
        if first:
            pre = L("s_waitcnt lgkmcnt(0)\ns_barrier") + [I(u['reads'][0]) for u in qk[:4]]
            kr = st.reads(qk[4:], 0, 20); bar = None
        else:
            bar = st.barrier(0, wait)
            kr = st.reads(qk, 1, 33, [(bar, 0)]) if qk else []
        aft = ([(bar, 0)] if bar else []) + ([(kr[-1], 0)] if kr else [])
        if t_par:
            va = chain([Item('V', f"v_add_u32 v{vVA+u}, s{sRD}, v{vVL+u}") for u in range(4)], 0, 3 if last else 20)
            st.add(va); aft.append((va[-1], 1))
        vlo = (kr[-1].target + 2) if kr else 3
        st.reads(pv, vlo, (n - 12) if not last else 36, aft)
        if not t_par:
            up = wrap0_items(sRD, 4 * SLOT, 12 * SLOT) + [Item('V', f"v_add_u32 v{vKA+u}, s{sRD}, v{vKL+u}") for u in range(2)]
            up[0].after += [(kr[-1], 1)]
            st.add(chain(up, rs['first'], n - 4))
        dm = []
        if mode in ('first', 'A'):
            dm += kv_issue(t_par)
            chain(dm, 2, 30)
            for x in dm: x.hi = n - 8
        if extra:
            chain(extra, (rs['first'] + 4) if last else 2, n - 1 if last else 50); dm += extra
            for x in extra: x.hi = n - 1
        if dm and bar: dm[0].after.append((bar, 1))
        st.add(dm)
        st.add(softmax_items(cur, 0 if first else SPLIT, 12, 0, rs['first'] - 2))
        if not first:
            mx = Item('V', f"v_max3_f32 v{vCK}, v{vL[cur]}, v{vL[cur]+4}, v{vL[cur]+8}", lo=min(rs['first'] + 6, pv[0]['first'] - 1), hi=pv[0]['first'] - 1)
            cm = Item('V', f"v_cmp_nge_f32 vcc, s{sLTHR}, v{vCK}", after=[(mx, 0)], hi=pv[0]['first'] - 1)
            st.add([mx, cm])
        if not last: st.add(softmax_items(nxt, 0, SPLIT, pv[0]['first'] + 1, n - 1))
        if endi: st.add(chain(list(endi), n - 3, n - 1, 0))
        body = st.emit(keep, name=mode)
        return pre + body, ([] if last else [dict(mf=u['mf'], needwait=False) for u in pv[12 - T:]])
    ins, tail0 = step(0, [], 'first', 0)
    p.cur += ins
    sv = pool.n; pool.n -= 12
    tail = [dict(mf=u['mf']) for u in pv_units(pool, 0)[12 - T:]]
    assert pool.n == sv
    txt = lambda tl: [[i.text for i in u['mf']] for u in tl]
    lp = p.newlabel("L_attA"); le = p.newlabel("L_attE"); ls = p.newlabel("L_attS")
    VMA = VMLIM if VMLIM is not None else 12 if SKIPS else 24
    b1, tail1 = step(1, tail, 'A', VMA)
    b2, tail2 = step(0, tail1, 'A', VMA, endi=[S(f"s_add_u32 s{sT}, s{sT}, 2"), S(f"s_cmp_lt_u32 s{sT}, 27")])
    assert txt(tail2) == txt(tail)
    if SKIPS:
        bs, tails = step(1, tail, 'skip', 12)
        assert txt(tails) == txt(tail1)
        p.loop(L(f"{lp}:\ns_bitcmp1_b32 {skipmask}, s{sT}\ns_cbranch_scc1 {ls}") + b1 + L(f"{le}:") + b2 + L(f"s_cbranch_scc1 {lp}"))
        q = Prog(); q.st = p.st.clone()
        q.cur = L(f"{ls}:") + bs + L(f"s_branch {le}")
        OUTL.append(q.text())
    else:
        tr = []
        if TRACE:
            tr = L(f"s_memrealtime s[54:55]\ns_memtime s[56:57]\ns_waitcnt lgkmcnt(0)\nv_writelane_b32 v174, s54, s{sT}\nv_writelane_b32 v175, s56, s{sT}".replace("v_writelane_b32 v174, s54, s%d" % sT, "s_mov_b32 m0, s%d\nv_writelane_b32 v174, s54, m0" % sT).replace("v_writelane_b32 v175, s56, s%d" % sT, "v_writelane_b32 v175, s56, m0"))
        p.loop(L(f"{lp}:") + tr + b1 + b2 + L(f"s_cbranch_scc1 {lp}"))
        if TRACE:
            p(f"s_mov_b32 s{sTMP}, 0")
            ws_srd(p, 56, sTMP, STAMP_OFF + 65536, 1 << 20)
            p(f"s_lshl_b32 s{sTMP}, s2, 2\ns_add_u32 s{sTMP}, s{sTMP}, s{sWAVE}\ns_lshl_b32 s{sTMP}, s{sTMP}, 9\nv_lshlrev_b32 v{vT0}, 3, v0")
            p(f"buffer_store_dwordx2 v[174:175], v{vT0}, s[56:59], s{sTMP} offen")
    stamp(p, 6)
    p("L_att27:")
    cnt = lambda its: sum(1 for x in its if x.kind == 'M')
    NSK = len(SKIPS)
    pf = (pf_wo() if WOPF == 'late' else []) + (pf_o() if OPF == 'late' else [])
    xc = [Item('M', f"buffer_load_dwordx2 v[{vXC}:{vXC+1}], v{vF1}, s[{sF}:{sF+3}], 0 offen offset:128 sc1")]
    po = pf_o()
    plan = {0: PLAN or {27: ['x', 'p', 'o0'], 28: ['o1'], 29: ['o2', 0], 30: [1, 2], 31: [3, 4]},
            1: {27: ['x', 'kv'], 28: ['p', 0], 29: [1, 2], 30: [3, 4], 31: [5, 6]},
            2: {27: ['x', 'kv'], 28: ['kv'], 29: ['p', 0], 30: [1, 2], 31: [3, 4]}}[NSK]
    global NEXTG
    NEXTG = max(a for v in plan.values() for a in v if isinstance(a, int)) + 1
    log = []
    for pr in range(27, 32 - NSK): log += [pr] * 6
    nxtpair = 32 - NSK
    tl = tail
    for t in range(27, 32):
        vm = len(log) - 1 - max(k for k, x in enumerate(log) if x == t)
        ex = []
        for a in plan[t]:
            if a == 'kv':
                its = kv_issue(0, nok=(nxtpair == 31)); log += [nxtpair] * cnt(its); nxtpair += 1
            else:
                its = xc if a == 'x' else pf if a == 'p' else po[2*int(a[1]):2*int(a[1])+2] if isinstance(a, str) else dma_wo_static(a); log += [-1] * cnt(its)
            ex += its
        ins, tl = step(t & 1, tl, 'last' if t == 31 else 'P', min(vm, 63), ex); p.cur += ins

def o_epilogue(p, pol):
    for qb in range(3): p(f"v_rcp_f32 v{vRC+2*qb}, v{vL[1]+4*qb}")
    p(f"s_mul_i32 s{sXOFF}, s{sHL}, 73728")
    n = 0
    for s in range(6):
        for qb in range(3):
            t = 32 + 8 * (n % 4); n += 1
            d = vQ + (s * 3 + qb) * 4
            for r in range(4):
                p(f"v_accvgpr_read_b32 v{t+r}, a{oacc(2*s,qb)+r}")
                p(f"v_accvgpr_read_b32 v{t+4+r}, a{oacc(2*s+1,qb)+r}")
            for r in range(0, 8, 2):
                p(f"v_pk_mul_f32 {vr(t+r,2)}, {vr(t+r,2)}, {vr(vRC+2*qb,2)} op_sel_hi:[1,0]")
            for r in range(4):
                p(f"v_cvt_pk_bf16_f32 v{d+r}, v{t+2*r}, v{t+2*r+1}")
            p(f"buffer_store_dwordx4 {vr(d)}, v{vOL}, s[{sO}:{sO+3}], s{sXOFF} offen offset:{1024*qb} {pol}", "OST")
        flat(p, wrap0_items(sXOFF, 12288, 24 * 12288))

def handshake_and_store(p):
    if not FAST:
        o_epilogue(p, "sc1"); p(f"s_mov_b32 s{sFASTF}, 0"); return
    p(f"s_mov_b32 s{sXCC+1}, s{sTK1+1}\nv_cmp_ne_u64 vcc, s[{sXCC}:{sXCC+1}], v[{vXC}:{vXC+1}]\ns_mov_b32 s{sFASTF}, 1\ns_cbranch_vccnz L_slowst")
    p.flush()
    q = Prog(); q.st = p.st.clone()
    q(f"L_slowst:\ns_mov_b32 s{sFASTF}, 0")
    o_epilogue(q, "sc1")
    q("s_branch L_stdone")
    OUTL.append(q.text())
    o_epilogue(p, OFAST)
    p("L_stdone:")

def set_flag(vfl, sidx, tk, fast=False):
    st = f"buffer_store_dwordx2 v[{vFLV}:{vFLV+1}], v{vfl}, s[{sF}:{sF+3}], 0 offen"
    pre = f"v_mov_b32 v{vFLV}, s{tk}\nv_mov_b32 v{vFLV+1}, s{tk+1}\ns_lshl_b64 exec, 1, s{sidx}\n"
    if not fast:
        return L(pre + st + " sc1\ns_mov_b64 exec, -1")
    OUTL.append(f"L_slowfl:\n{st} sc1\ns_branch L_fldone\n")
    return L(pre + f"s_cmp_eq_u32 s{sFASTF}, 0\ns_cbranch_scc1 L_slowfl\n{st}\nL_fldone:\ns_mov_b64 exec, -1")

def poll(p, voff, tk, sidx):
    lp = f"L_poll_{sidx}"; dn = f"L_pd_{sidx}"
    p(f"s_mov_b32 s{sTMP}, 0x20000")
    p.flush()
    p.raw(f"""{lp}:
buffer_load_dwordx2 v[{vFLV}:{vFLV+1}], v{voff}, s[{sF}:{sF+3}], 0 offen sc1
s_waitcnt vmcnt(0)
v_cmp_ne_u64 vcc, s[{tk}:{tk+1}], v[{vFLV}:{vFLV+1}]
s_cbranch_vccz {dn}
s_sub_u32 s{sTMP}, s{sTMP}, 1
s_cmp_lg_u32 s{sTMP}, 0
s_cbranch_scc1 {lp}
{dn}:""")
    p("s_waitcnt vmcnt(0)")
def bump_epoch(p, voff, tk, sidx):
    ne = p.newlabel("L_ne")
    p(f"s_cmp_lg_u32 s{sidx}, 0\ns_cbranch_scc1 {ne}\nv_mov_b32 v{vFLV}, s{tk}\nv_mov_b32 v{vFLV+1}, s{tk+1}\ns_mov_b64 exec, 1")
    p.flush()
    p.raw(f"buffer_store_dwordx2 v[{vFLV}:{vFLV+1}], v{voff}, s[{sF}:{sF+3}], 0 offen offset:64 sc1")
    p(f"s_mov_b64 exec, -1\n{ne}:")

def load_b(u):
    g = [Item('M', f"buffer_load_dwordx4 {bfrag(u,qb)}, v{vOL}, s[{sO}:{sO+3}], s{sXOFF} offen offset:{1024*qb} {OLD}") for qb in range(3)]
    return g + wrap0_items(sXOFF, 12288, 24 * 12288)

def cacc(nb, qb): return aC + (nb * 3 + qb) * 4
vWA = (20, 22, 24, 26)
def oproj(p):
    pool = Pool(12)
    NM = NBM
    def unit(G, ks, nb, va, imm):
        u = 2 * G + ks
        pb = pool.next()
        a = va + (nb & 1)
        rd = [f"ds_read_b64_tr_b16 {ar(pb,2)}, v{a} offset:{imm+ks*10240+nb*32}", f"ds_read_b64_tr_b16 {ar(pb+2,2)}, v{a} offset:{imm+ks*10240+nb*32+5120}"]
        mf = [I(f"{MF} {ar(cacc(nb,qb))}, {ar(pb)}, {bfrag(u,qb)}, {ar(cacc(nb,qb)) if u else 0}") for qb in range(3)]
        return dict(reads=rd, mf=snake(mf, pool.n))
    def seta(va, off): return [Item('V', f"v_add_u32 v{va+k}, {off}, v{vWOL+k}") for k in range(2)]
    NG = 12 - NM
    U = [[unit(G, ks, nb, vWA[G & 1], 0) for ks in range(2) for nb in range(10)] for G in range(NG)]
    assert all(goff(G + 1) == goff(G) + GSZ for G in range(NG, 11))
    F = [[unit(G, ks, nb, vWA[2 + (G - NG) // 2], ((G - NG) % 2) * GSZ) for G in range(NG, 12) for ks in range(2)] for nb in range(10)]
    flat(p, seta(vWA[0], goff(0)) + seta(vWA[2], goff(NG)) + seta(vWA[3], goff(NG) + 2 * GSZ))
    p(f"v_lshlrev_b32 v{vT0}, 4, v0\ns_mul_i32 s{sT}, s{sHG}, 15360")
    p("WAITVM G0\ns_waitcnt lgkmcnt(0)\ns_barrier")
    st = Stream()
    for G in range(NG):
        for u in U[G]: st.add_unit(u)
    for nb in range(10):
        for u in F[nb]: st.add_unit(u)
    for u in U[0][:T]:
        for r in u['reads']: p(r)
    mem = []
    def addmem(its, lo, hi, after=None):
        chain(its, lo, hi)
        for x in its: x.hi = 10 ** 9
        if after: its[0].after.append(after)
        if mem: its[0].after.append((mem[-1], 1))
        mem.extend(its); st.add(its)
    bars = {}
    for G in range(NG + 1):
        g0 = 60 * G - 3 * T
        tile = U[G] if G < NG else [u for nb in range(10) for u in F[nb]]
        last = g0 + 60 - RGAP if G < NG else st.n() - 14
        if G == 0:
            st.reads(U[0][T:], 0, last)
        else:
            w = [f"WAITVM G{G if G < NG else 11}", "s_waitcnt lgkmcnt(0)"]
            if STAMP and STSET == 'o' and G in (3, 5, 8): w.append(f"s_memrealtime s[{sSTAMP+2*{3:1,5:2,8:3}[G]}:{sSTAMP+2*{3:1,5:2,8:3}[G]+1}]")
            bars[G] = st.barrier(g0, w)
            st.reads(tile, g0 + 1, last, [(bars[G], 0)])
        if G + 1 < NG:
            st.add(chain(seta(vWA[(G + 1) & 1], goff(G + 1)), max(g0, 0) + 20, g0 + 50))
    first_w = [x for G in range(NEXTG, 8) for x in dma_wo_static(G)]
    fl = [Item('M', [I("WAITVM OST")] + set_flag(vF1, sHL, sTK1, True))]
    nw = WBEF * 9
    if first_w[:nw]: addmem(first_w[:nw], 0, FLAGPOS - 2)
    addmem(fl, FLAGPOS, FLAGPOS)
    if first_w[nw:]: addmem(first_w[nw:], FLAGPOS + 2, POLLPOS - 12)
    addmem(dma_wo_static(8), POLLPOS - 12, POLLPOS - 2, (bars[1], 1))
    addmem([Item('M', f"buffer_load_dwordx2 v[{vFLV}:{vFLV+1}], v{vF1}, s[{sF}:{sF+3}], 0 offen sc1")], POLLPOS, POLLPOS)
    ck = [Item('V', f"v_cmp_ne_u64 vcc, s[{sTK1}:{sTK1+1}], v[{vFLV}:{vFLV+1}]")]
    addmem(ck, POLLPOS + POLLLAT, POLLPOS + POLLLAT)
    stp = [I(f"s_memrealtime s[{sSTAMP+18}:{sSTAMP+19}]"), I(f"s_memtime s[{CST[9]}:{CST[9]+1}]")] if STAMP else []
    stq = [I(f"s_memrealtime s[{sSTAMP+16}:{sSTAMP+17}]")] if STAMP else []
    addmem([Item('S', stq + L("s_cbranch_vccnz L_spin1\nL_spin1r:") + stp)], POLLPOS + POLLLAT + 3, POLLPOS + POLLLAT + 3)
    q = Prog(); q("L_spin1:"); poll(q, vF1, sTK1, "sp1"); q("s_branch L_spin1r"); OUTL.append(q.text())
    b0 = POLLPOS + POLLLAT + 4
    addmem([g for u in range(6, 10) for g in load_b(u)], b0, b0 + 30)
    addmem(dma_wo_static(9), b0 + 30, b0 + 44, (bars[2], 1))
    addmem([g for u in range(10, 14) for g in load_b(u)], b0 + 44, b0 + 84)
    addmem(dma_wo_static(10), b0 + 84, b0 + 98, (bars[3], 1))
    addmem([g for u in range(14, 18) for g in load_b(u)], b0 + 98, b0 + 140)
    addmem(dma_wo_static(11), b0 + 140, b0 + 154, (bars[4], 1))
    addmem([g for u in range(18, 24) for g in load_b(u)], b0 + 154, b0 + 220)
    def gran(m, qb, k):
        t = vQ + 12 * (k % 4)
        its = [Item('V', f"v_accvgpr_read_b32 v{t+h*4+r}, a{cacc(2*m+h,qb)+r}") for h in range(2) for r in range(4)]
        its += [Item('V', f"v_cvt_pk_bf16_f32 v{t+8+r}, v{t+2*r}, v{t+2*r+1}") for r in range(4)]
        j = m * 3 + qb
        if j % 4 == 0: its.append(S(f"s_add_u32 s{sTMP+1}, s{sT}, {j*1024}"))
        its.append(Item('M', f"buffer_store_dwordx4 {vr(t+8)}, v{vT0}, s[{sP}:{sP+3}], s{sTMP+1} offen offset:{(j%4)*1024} sc1"))
        return its
    k = 0
    for m in range(4):
        lo = F[2 * m + 2][0]['first'] + 4; hi = F[2 * m + 3][-1]['first'] + 2
        its = []
        for qb in range(3): its += gran(m, qb, k); k += 1
        addmem(its, lo, hi)
    p.cur += st.emit(name="oproj")
    if STSET == 'o': stamp(p, 4)
    for qb in range(3): flat(p, gran(4, qb, k)); k += 1

def final_reduce(p):
    p(f"""
s_lshl_b32 s{sTMP}, s{sHG}, 10
v_add_u32 v2, s{sTMP}, v{vT0}
v_and_b32 v3, 15, v0
v_mul_u32_u24 v3, 1280, v3
v_bfe_u32 v4, v0, 4, 1
v_lshl_add_u32 v3, v4, 5, v3
v_lshrrev_b32 v4, 5, v0
v_lshl_add_u32 v3, v4, 4, v3
s_mov_b32 s{sT}, 0xffff0000
s_waitcnt vmcnt(0)
""")
    p.cur += set_flag(vF2, sHG, sTK2)
    stamp(p, 10)
    poll(p, vF2, sTK2, "sp2")
    for i in range(2):
        if i == 1: p(f"s_cmp_eq_u32 s{sHG}, 7\ns_cselect_b32 s{sTMP+2}, 0x1000000, 0")
        for g in range(8):
            p(f"s_mov_b32 s{sTMP+1}, {g*15360}" if i == 0 else f"s_add_u32 s{sTMP+1}, s{sTMP+2}, {g*15360 + 8192}")
            p(f"buffer_load_dwordx4 {vr(32+(i*8+g)*4)}, v2, s[{sP}:{sP+3}], s{sTMP+1} offen sc1")
    for i in range(2):
        acc = 100 + i * 8
        p(f"""
s_add_u32 s{sTMP}, s{sHG}, {8*i}
s_mul_i32 s{sTMP+1}, s{sTMP}, 11
s_lshr_b32 s{sTMP+1}, s{sTMP+1}, 5
s_mul_i32 s{sTMP+3}, s{sTMP+1}, 3
s_sub_u32 s{sTMP+3}, s{sTMP}, s{sTMP+3}
s_mul_i32 s{sTMP+3}, s{sTMP+3}, {16*1280}
s_lshl_b32 s{sTMP+1}, s{sTMP+1}, 6
s_add_u32 s{sTMP+1}, s{sTMP+1}, s{sTMP+3}
""")
        if i == 1: p(f"s_add_u32 s{sTMP+1}, s{sTMP+1}, s{sTMP+2}")
        for g in range(8):
            b = 32 + (i * 8 + g) * 4
            for r in range(4):
                if g == 0:
                    p(f"v_lshlrev_b32 v{acc+2*r}, 16, v{b+r}\nv_and_b32 v{acc+2*r+1}, s{sT}, v{b+r}")
                else:
                    p(f"v_lshlrev_b32 v{120+2*r}, 16, v{b+r}\nv_and_b32 v{121+2*r}, s{sT}, v{b+r}")
            if g:
                for r in range(8): p(f"v_add_f32 v{acc+r}, v{acc+r}, v{120+r}")
        o = 132 + 4 * i
        for r in range(4): p(f"v_cvt_pk_bf16_f32 v{o+r}, v{acc+2*r}, v{acc+2*r+1}")
        p(f"v_permlane16_swap_b32 v{o}, v{o+2}\nv_permlane16_swap_b32 v{o+1}, v{o+3}")
        p(f"buffer_store_dwordx4 {vr(o)}, v3, s[{sOUT}:{sOUT+3}], s{sTMP+1} offen")
    bump_epoch(p, vF1, sTK1, sHL)
    bump_epoch(p, vF2, sTK2, sHG)

def store_stamps(p):
    if not STAMP: return
    p("s_waitcnt vmcnt(0)")
    stamp(p, 11)
    if DBGST is not None:
        lab = p.newlabel("L_nodbg")
        p("s_load_dwordx2 s[96:97], s[0:1], 48\ns_waitcnt lgkmcnt(0)")
        srd(p, sK, 96, 97, 256)
        p(f"s_cmp_lg_u32 s{sWAVE}, 0\ns_cbranch_scc1 {lab}\ns_cmp_lg_u32 s2, {DBGST}\ns_cbranch_scc1 {lab}")
        p("s_mov_b64 exec, 1\nv_mov_b32 v2, 0")
        for i in range(NSTAMP):
            p(f"s_sub_u32 s{sTMP}, s{sSTAMP+2*i}, s{sSTAMP}\nv_mov_b32 v4, s{sTMP}")
            p(f"buffer_store_dword v4, v2, s[{sK}:{sK+3}], 0 offen offset:{4*i}\ns_nop 1")
        p(f"s_sub_u32 s{sTMP}, s82, s80\nv_mov_b32 v4, s{sTMP}\nbuffer_store_dword v4, v2, s[{sK}:{sK+3}], 0 offen offset:48\ns_nop 1")
        p(f"s_sub_u32 s{sTMP}, s100, s88\nv_mov_b32 v4, s{sTMP}\nbuffer_store_dword v4, v2, s[{sK}:{sK+3}], 0 offen offset:52\ns_waitcnt vmcnt(0)")
        p(f"{lab}:")
        return
    p(f"s_mov_b32 s{sTMP}, 0")
    ws_srd(p, sK, sTMP, STAMP_OFF, 65536)
    lab = p.newlabel("L_nost")
    p("s_waitcnt lgkmcnt(0)")
    p(f"s_cmp_lg_u32 s{sWAVE}, 0\ns_cbranch_scc1 {lab}")
    p(f"s_lshl_b32 s{sTMP}, s2, 7\nv_mov_b32 v2, s{sTMP}")
    p("s_mov_b64 exec, 1")
    for i in range(NSTAMP):
        p(f"v_mov_b32 v4, s{sSTAMP+2*i}\nv_mov_b32 v5, s{sSTAMP+2*i+1}")
        p(f"buffer_store_dwordx2 v[4:5], v2, s[{sK}:{sK+3}], 0 offen offset:{8*i}")
        p("s_nop 1")
    for i, r in enumerate(CST.values()):
        p(f"v_mov_b32 v4, s{r}\nv_mov_b32 v5, s{r+1}")
        p(f"buffer_store_dwordx2 v[4:5], v2, s[{sK}:{sK+3}], 0 offen offset:{8*(NSTAMP+i)}")
        p("s_nop 1")
    p("s_waitcnt vmcnt(0)")
    p(f"{lab}:")

def kernel(p):
    name = NAME + "_kernel"
    p.raw(f".globl {name}\n.p2align 8\n.type {name},@function\n{name}:")
    p("s_cmp_ge_u32 s2, 256\ns_cbranch_scc1 L_end")
    stamp(p, 0)
    p(f"""
s_load_dwordx8 s[76:83], s[0:1], 0
s_load_dwordx8 s[84:91], s[0:1], 32
v_lshrrev_b32 v1, 6, v0
v_and_b32 v0, 63, v0
v_readfirstlane_b32 s{sWAVE}, v1
s_and_b32 s{sHG}, s2, 7
s_lshr_b32 s{sB}, s2, 5
s_bfe_u32 s{sHL}, s2, 0x20003
s_lshl_b32 s{sH}, s{sHG}, 2
s_add_u32 s{sH}, s{sH}, s{sHL}
s_mul_i32 s{sM0W}, s{sWAVE}, 3072
s_getreg_b32 s{sXCC}, hwreg(HW_REG_XCC_ID, 0, 4)
""")
    if KSTAG:
        p(f"s_mul_i32 s{sKK}, s2, 11\ns_lshr_b32 s{sTMP+2}, s2, 5\ns_add_u32 s{sKK}, s{sKK}, s{sTMP+2}\ns_and_b32 s{sKK}, s{sKK}, 31\ns_mul_i32 s{sKK}, s{sKK}, {SLOT}")
    else:
        p(f"s_mov_b32 s{sKK}, 0")
    p(f"s_mov_b32 s{sKOFF}, s{sKK}")
    if STAG:
        p(f"""
s_mul_i32 s{sTMP+1}, s{sHL}, 5
s_lshr_b32 s{sTMP+1}, s{sTMP+1}, 1
s_mul_i32 s{sTMP+2}, s{sB}, 5
s_lshr_b32 s{sTMP+2}, s{sTMP+2}, 2
s_add_u32 s{sTMP+1}, s{sTMP+1}, s{sTMP+2}
s_cmp_ge_u32 s{sTMP+1}, 10
s_cselect_b32 s{sTMP+2}, 10, 0
s_sub_u32 s{sTMP+1}, s{sTMP+1}, s{sTMP+2}
s_lshl_b32 s{sXOFF}, s{sTMP+1}, 7
s_mul_i32 s{sWOFF}, s{sTMP+1}, {64*12288}
""")
    else:
        p(f"s_mov_b32 s{sXOFF}, 0\ns_mov_b32 s{sWOFF}, 0")
    setup_dma(p)
    srd(p, sX, 76, 77, 1536 * 1280)
    p(f"s_mov_b32 s{sTMP+1}, 0")
    ws_srd(p, sF, sTMP + 1, FLAG_OFF, F2BASE + 128 * 128)
    p(f"""
s_lshl_b32 s{sTMP+1}, s{sB}, 3
s_add_u32 s{sTMP+1}, s{sTMP+1}, s{sHG}
s_lshl_b32 s{sTMP+1}, s{sTMP+1}, 2
s_add_u32 s{sTMP+1}, s{sTMP+1}, s{sWAVE}
s_lshl_b32 s{sTMP+1}, s{sTMP+1}, 8
s_lshl_b32 s{sTMP+2}, s{sB}, 2
s_add_u32 s{sTMP+2}, s{sTMP+2}, s{sHL}
s_lshl_b32 s{sTMP+2}, s{sTMP+2}, 2
s_add_u32 s{sTMP+2}, s{sTMP+2}, s{sWAVE}
s_lshl_b32 s{sTMP+2}, s{sTMP+2}, 7
s_add_u32 s{sTMP+2}, s{sTMP+2}, {F2BASE}
v_and_b32 v248, 3, v0
v_lshl_add_u32 v{vF1}, v248, 3, s{sTMP+1}
v_and_b32 v248, 7, v0
v_lshl_add_u32 v{vF2}, v248, 3, s{sTMP+2}
s_add_u32 s{sTMP+1}, s{sTMP+1}, 64
s_add_u32 s{sTMP+2}, s{sTMP+2}, 64
s_load_dwordx2 s[{sTK1}:{sTK1+1}], s[96:97], s{sTMP+1}
s_load_dwordx2 s[{sTK2}:{sTK2+1}], s[96:97], s{sTMP+2}
""")
    lab = p.newlabel("L_nopf")
    p(f"s_cmp_lg_u32 s{sWAVE}, 0\ns_cbranch_scc1 {lab}")
    if CODEPF:
        p(f"""
s_mov_b64 exec, -1
s_getpc_b64 s[98:99]
s_lshr_b32 s{sTMP+1}, s2, 3
s_mul_i32 s{sTMP+1}, s{sTMP+1}, {12*128}
v_lshlrev_b32 v252, 7, v0
v_add_u32 v252, s{sTMP+1}, v252
v_mov_b32 v253, s99
v_add_co_u32 v252, vcc, s98, v252
v_addc_co_u32 v253, vcc, 0, v253, vcc
s_mov_b64 exec, 0xfff
""")
        p.flush()
        p.raw("global_load_dword v254, v[252:253], off")
    p(f"s_mov_b64 exec, -1\n{lab}:")
    p(f"""
s_lshl_b32 s{sTMP+2}, s{sB}, 5
s_add_u32 s{sTMP+2}, s{sTMP+2}, s{sH}
s_mul_i32 s{sTMP+1}, s{sTMP+2}, 393216
""")
    addptr(p, 78, sTMP + 1); addptr(p, 80, sTMP + 1)
    srd(p, sK, 78, 79, 393216); srd(p, sV, 80, 81, 393216)
    p(f"s_sub_u32 s{sTMP+2}, s{sTMP+2}, s{sHL}\ns_mul_i32 s{sTMP+1}, s{sTMP+2}, 73728")
    ws_srd(p, sO, sTMP + 1, 0, 4 * 73728)
    p(f"s_mul_i32 s{sTMP+1}, s{sHG}, 1536")
    addptr(p, 82, sTMP + 1)
    srd(p, sWq, 82, 83, 639 * 12288 + 1536)
    p(f"s_mul_i32 s{sTMP+1}, s{sHG}, {768*1280}\ns_mul_i32 s{sTMP+2}, s{sHL}, 320\ns_add_u32 s{sTMP+1}, s{sTMP+1}, s{sTMP+2}")
    addptr(p, 84, sTMP + 1)
    srd(p, sWo, 84, 85, 767 * 1280 + 320)
    pool = Pool(12)
    qproj(p, pool)
    stamp(p, 5)
    if STSET != 'Q':
        attention(p, pool)
        stamp(p, 7)
        handshake_and_store(p)
        oproj(p)
        final_reduce(p)
    store_stamps(p)
    p("L_end:\ns_endpgm")
    for t in OUTL: p.raw(t)
    for tr, ret, cur in TRAMPS: p.raw(f"{tr}:\ns_call_b64 s[98:99], L_rare{cur}\ns_branch {ret}")
    rare_path(p, "L_rare0", 0)
    rare_path(p, "L_rare1", 1)
    p.raw(".fill 64, 4, 0xbf800000" if STSET != 'Q' else ".fill 12288, 4, 0xbf800000")
    return kernel_desc(name, vgpr=512, accum=256)

def build(path):
    p = Prog()
    p.raw("""; GQA block (q-proj, attention over cached K/V, out-proj) for gfx950: one fused kernel
; @launch grid=(256,1,1) block=(256,1,1) lds=163840
.amdgcn_target "amdgcn-amd-amdhsa--gfx950"
.text""")
    d = kernel(p)
    p.raw('.section .rodata,"a"\n.p2align 6\n' + d)
    txt = p.text()
    if NODMA:
        txt = "\n".join(l for l in txt.split("\n") if not (l.startswith("buffer_load_dwordx4") and (NODMA == 2 or l.endswith("lds"))))
        txt = txt.replace("s_cbranch_vccnz L_tramp", "s_cbranch_execz L_tramp")
    if DROP:
        out = []; on = False
        for l in txt.split("\n"):
            if l.startswith("L_attA") or l.startswith("L_attS"): on = True
            if l.startswith("L_att27") or l.startswith("L_slow"): on = False
            if on and any(l.startswith(d) for d in DROP): continue
            out.append(l)
        txt = "\n".join(out).replace("s_cbranch_vccnz L_tramp", "s_cbranch_execz L_tramp")
    if NOKV:
        txt = "\n".join(l for l in txt.split("\n") if not (l.startswith("buffer_load_dwordx4") and ("s[4:7]" in l or "s[8:11]" in l)))
    if NOBAR:
        txt = txt.replace("s_barrier\n", "")
    open(path, "w").write(txt)
    if VERB:
        for w in WARN: print("WARN", w)
    ls = txt.split("\n")
    marks = [k for k, l in enumerate(ls) if l.endswith(":") and not l.startswith("L_ret")]
    for a, b in zip(marks, marks[1:] + [len(ls)]):
        seg = [l for l in ls[a:b] if l and not l.startswith(".") and not l.startswith(" ")]
        c, nm = estimate(seg)
        if nm: print(f"{ls[a]:28s} est {c:6d} cyc, mfma {nm:4d} ({16*nm})")

if __name__ == "__main__":
    for a in sys.argv[2:]:
        k, v = a.split("=", 1)
        globals()[k] = eval(v)
    build(sys.argv[1])
```

```python
import sys, math, struct
from sched import *
from asmlib import kernel_desc

NAME = "standalone__gqa_block_cached__near_ridge"
SLOT = 12288
STAMP = False
NT = "nt"
NTW = ""
NTO = ""
OST = "sc1"
OLD = "sc1"
CODEPF = True
SKIPS = ()
WOPF = 'late'
OPF = 'plan'
NTP = ''
FAST = False
OFAST = ""
STAG = True
PART_OFF = 20 << 20
FLAG_OFF = 40 << 20
STAMP_OFF = 64 << 20
NSTAMP = 12
NODMA = 0
OUTP = ''
PH = 3
PLAN = None
VMLIM = 2
DBGST = None
TRACE = 0
KVPF = True
SNAKE = True
NOKV = 0
DROP = ()
STSET = 'q'
KSTAG = True
VERB = 0
NBM = 3
NST = 4
OCH = [(0,'W5'),(0,'W6'),(4,'W7'),(20,'F0'),(56,'W8'),(70,'P0'),(100,'F1'),(120,'C0'),(124,'B0'),(166,'P1'),(168,'S4'),(174,'S5'),(182,'W9'),(196,'W10'),
       (230,'C1'),(234,'B1'),(290,'F2'),(294,'W11'),(350,'P2'),(410,'C2'),(414,'B2')]
NOBAR = 0

def f32(x): return "0x%08x" % struct.unpack("<I", struct.pack("<f", x))[0]
def vr(b, n=4): return f"v[{b}:{b+n-1}]"
def ar(b, n=4): return f"a[{b}:{b+n-1}]"
MF = "v_mfma_f32_16x16x32_bf16"

def srd(p, d, lo, hi, nbytes):
    p(f"s_mov_b32 s{d}, s{lo}\ns_and_b32 s{d+1}, s{hi}, 0xffff\ns_mov_b32 s{d+2}, {nbytes}\ns_mov_b32 s{d+3}, 0x00020000")

sK, sV, sWq, sX, sO, sF, sWo = 4, 8, 12, 16, 20, 24, 28
sP, sOUT, sDBG = 12, 16, 92
sPF = 76
sXCC = 50; sFASTF = 42
sTK1, sTK2 = 92, 94
TOKC = (0x9e3779b9, 0x7f4a7c15)
F2BASE = 256 * 128
sWAVE, sB, sH, sHG, sHL = 32, 33, 34, 35, 36
sM0W = 37
sKOFF = 38
sWR, sRD = 39, 40
sT, sD = 41, 42
sWOFF, sXOFF = 43, 44
sWW = 45
sTMP = 46
sLTHR = 3
sKK = 51
sSTAMP = 52
def stamp(p, i):
    if STAMP: p(f"{'s_memtime' if STAMP == 2 else 's_memrealtime'} s[{sSTAMP+2*i}:{sSTAMP+2*i+1}]")
CST = {5: 80, 6: 82, 9: 88, 10: 100}
_stamp0 = stamp
def stamp(p, i):
    _stamp0(p, i)
    if STAMP and i in CST: p(f"s_memtime s[{CST[i]}:{CST[i]+1}]")

def addptr(p, lo, sreg):
    p(f"s_add_u32 s{lo}, s{lo}, s{sreg}\ns_addc_u32 s{lo+1}, s{lo+1}, 0")
def ws_srd(p, d, sreg, const, nbytes):
    p(f"s_add_u32 s96, s90, s{sreg}\ns_addc_u32 s97, s91, 0")
    if const: p(f"s_add_u32 s96, s96, {const}\ns_addc_u32 s97, s97, 0")
    srd(p, d, 96, 97, nbytes)

vKD, vVD, vWD = 2, 5, 8
vXD = 11
vWOD = 11
vKL, vVL = 17, 19
vKA, vVA = 23, 25
vXR = 29
vWOL, vOL = 252, 30
vWOA = 23
vT0 = 31
vVB = 252
vPF = 168
vXC = 172
vF1, vF2 = 250, 251
vFLV = 28
vACC = 32
vQ = 176
vS = (32, 56); vP = (80, 92); vNM = 104; vONE = 116; vE = 120; vCK = 130; vR = 132; vL = (144, 156)
NE = 5
vB = 32
vRC = 136
aO = 0; aPOOL = 144; aC = 0
aX = 0; NXB = 6
def qfrag(qb, s): return vQ + (qb * 6 + s) * 4
def oacc(db, qb): return aO + (db * 3 + qb) * 4
def sreg(buf, qb, kb): return vS[buf] + (qb * 2 + kb) * 4
def bfrag(u, qb):
    if u < 6: return vr(vQ + (u * 3 + qb) * 4)
    k = (u - 6) * 3 + qb
    if k < 36: return vr(vB + k * 4)
    k -= 36
    return ar(120 + k * 4) if k < 6 else ar(192 + (k - 6) * 4)

LAYOUT = 0
XS0 = 5
def xpair(c): return XS0 + 2 * (c % 2) if LAYOUT == 0 else {1: 7, 2: 9, 0: 11}[c % 3]
WRING = [9, 10, 11, 1, 12]
def wslot(u): return WRING[u % 5] if LAYOUT == 0 else ([0, 2, 3, 4, 5, 6, 1][u % 7] if u < 14 else u - 7)
POST = []
def kvslot(kind, i): return 2 * (i % 6) if kind == 'K' else 2 * ((i + 1) % 6) + 1

def setup_dma(p):
    t = 240
    p(f"""
v_lshrrev_b32 v{t}, 3, v0
v_and_b32 v{t+1}, 7, v0
s_lshl_b32 s{sTMP}, s{sWAVE}, 3
s_lshl_b32 s{sTMP+1}, s{sB}, 2
s_add_u32 s{sTMP+1}, s{sTMP+1}, s{sWAVE}
s_mul_i32 s{sTMP+1}, s{sTMP+1}, {48*1280}
""")
    for half in range(2):
        p(f"""
v_lshrrev_b32 v{t+2}, 1, v{t}
v_add_u32 v{t+2}, {4*half}, v{t+2}
v_xor_b32 v{t+2}, v{t+2}, v{t+1}
v_lshlrev_b32 v{t+2}, 4, v{t+2}
v_add_u32 v{t+3}, {8*half}, v{t}
v_mul_u32_u24 v{t+3}, 1280, v{t+3}
v_add3_u32 v{vXD+half}, v{t+2}, v{t+3}, s{sTMP+1}
v_add_u32 v{vXD+2+half}, {20480-1024}, v{vXD+half}
v_add_u32 v{vXD+4+half}, {2*(20480-1024)}, v{vXD+half}
""")
def setup_dma2(p):
    t = 240
    p(f"s_mul_i32 s{sTMP+1}, s{sHL}, 384")
    for j in range(3):
        p(f"""
v_add_u32 v{t+2}, {8*j}, v{t}
v_mul_u32_u24 v{t+3}, 11, v{t+2}
v_lshrrev_b32 v{t+3}, 5, v{t+3}
v_mul_u32_u24 v{t+4}, 3, v{t+3}
v_sub_u32 v{t+4}, v{t+2}, v{t+4}
v_add_u32 v{t+3}, s{sTMP}, v{t+3}
v_bfe_u32 v{t+5}, v{t+3}, 2, 1
v_and_b32 v{t+6}, 2, v{t+3}
v_or_b32 v{t+5}, v{t+5}, v{t+6}
v_lshrrev_b32 v{t+6}, 1, v{t+3}
v_and_b32 v{t+6}, 4, v{t+6}
v_or_b32 v{t+5}, v{t+5}, v{t+6}
v_xor_b32 v{t+5}, v{t+5}, v{t+1}
v_lshlrev_b32 v{t+5}, 4, v{t+5}
v_lshl_add_u32 v{t+5}, v{t}, 7, v{t+5}
v_add_u32 v{vKD+j}, s{sM0W}, v{t+5}
v_and_b32 v{t+5}, 6, v{t+3}
v_xor_b32 v{t+5}, v{t+5}, v{t+1}
v_lshlrev_b32 v{t+5}, 4, v{t+5}
v_lshl_add_u32 v{t+6}, v{t}, 7, v{t+5}
v_add_u32 v{vVD+j}, s{sM0W}, v{t+6}
v_bfe_u32 v{t+6}, v{t+3}, 2, 2
v_lshlrev_b32 v{t+6}, 3, v{t+6}
v_lshrrev_b32 v{t+7}, 4, v{t+3}
v_lshl_add_u32 v{t+6}, v{t+7}, 2, v{t+6}
v_and_b32 v{t+7}, 3, v{t+3}
v_add_u32 v{t+6}, v{t+6}, v{t+7}
v_mul_u32_u24 v{t+6}, 12288, v{t+6}
v_lshl_add_u32 v{t+6}, v{t+4}, 7, v{t+6}
v_add3_u32 v{t+6}, v{t+6}, v{t+5}, s{sTMP+1}
v_subrev_u32 v{vWD+j}, {1024*j}, v{t+6}
""")

vPO, vPWO = 1, 249
def setup_pf2(p):
    t = 224
    p(f"""
s_mul_i32 s{sTMP+1}, s{sHL}, 320
s_sub_u32 s96, s84, s{sTMP+1}
s_subb_u32 s97, s85, 0
s_lshr_b32 s{sTMP+1}, s2, 3
s_lshl_b32 s{sTMP+1}, s{sTMP+1}, 2
s_add_u32 s{sTMP+1}, s{sTMP+1}, s{sWAVE}
s_mul_i32 s{sTMP+1}, s{sTMP+1}, {60*128}
s_add_u32 s96, s96, s{sTMP+1}
s_addc_u32 s97, s97, 0
v_lshlrev_b32 v{vPWO}, 7, v0
""")
    srd(p, sPF, 96, 97, 60 * 128)
def pf_wo():
    return [Item('M', f"buffer_load_dword v248, v{vPWO}, s[{sPF}:{sPF+3}], 0 offen {NTO}", tag="dummy")]
def pf_items(n):
    if n == 'PW': return pf_wo()

def setup_reads(p):
    t = 240
    p(f"""
v_and_b32 v{t}, 15, v0
v_lshrrev_b32 v{t+1}, 4, v0
v_lshrrev_b32 v{t+2}, 1, v{t}
v_xor_b32 v{t+2}, v{t+2}, v{t+1}
v_lshlrev_b32 v{t+5}, 4, v{t+2}
v_and_b32 v{t+3}, 7, v{t}
v_lshl_add_u32 v{t+5}, v{t+3}, 7, v{t+5}
v_lshrrev_b32 v{t+3}, 3, v{t}
v_mul_u32_u24 v{t+3}, 12288, v{t+3}
v_add3_u32 v{t+5}, v{t+5}, v{t+3}, s{sM0W}
v_add_u32 v{vXR}, {XS0*SLOT}, v{t+5}
v_xor_b32 v{vXR+1}, 64, v{vXR}
v_bfe_u32 v{t+3}, v{t+2}, 1, 1
v_and_b32 v{t+4}, 1, v{t+2}
v_lshl_add_u32 v{t+3}, v{t+4}, 1, v{t+3}
v_and_b32 v{t+4}, 4, v{t+2}
v_or_b32 v{t+3}, v{t+3}, v{t+4}
v_lshlrev_b32 v{t+3}, 4, v{t+3}
v_mul_u32_u24 v{t+4}, 384, v{t}
v_add_u32 v{vKL}, v{t+3}, v{t+4}
v_xor_b32 v{vKL+1}, 64, v{vKL}
v_lshrrev_b32 v{t+2}, 2, v0
v_mul_u32_u24 v{t+3}, 384, v{t+2}
v_bfe_u32 v{t+4}, v{t+2}, 1, 2
v_lshl_add_u32 v{t+3}, v{t+4}, 5, v{t+3}
v_and_b32 v{t+4}, 3, v0
v_lshl_add_u32 v{vVL}, v{t+4}, 3, v{t+3}
v_xor_b32 v{vVL+1}, 32, v{vVL}
v_xor_b32 v{vVL+2}, 64, v{vVL}
v_xor_b32 v{vVL+3}, 96, v{vVL}
""")

def wrap_add(s, inc, lim):
    return L(f"s_add_u32 s{s}, s{s}, {inc}\ns_cmp_ge_u32 s{s}, {lim}\ns_cselect_b32 s{sTMP+3}, {lim}, 0\ns_sub_u32 s{s}, s{s}, s{sTMP+3}")


def S(t, **k): return Item('S', t, **k)
def wrap_items(s, inc, lim):
    return [S(f"s_add_u32 s{s}, s{s}, {inc}"), S(f"s_cmp_ge_u32 s{s}, {lim}\ns_cselect_b32 s{sTMP+3}, {lim}, 0\ns_sub_u32 s{s}, s{s}, s{sTMP+3}")]
def wrap0_items(s, inc, lim, zero="0"):
    return [S(f"s_add_u32 s{s}, s{s}, {inc}"), S(f"s_cmp_ge_u32 s{s}, {lim}\ns_cselect_b32 s{s}, {zero}, s{s}")]

def dma_tile(kind, pre, so, tag=None, post=()):
    vd, sr, pol = {'K': (vKD, sK, NT), 'V': (vVD, sV, NT), 'W': (vWD, sWq, NTW)}[kind]
    g = [S(x) for x in pre]
    for j in range(3):
        g.append(Item('M', f"buffer_load_dwordx4 v{vd+j}, s[{sr}:{sr+3}], {so} offen offset:{1024*j} {pol} lds", tag=tag))
    return g + list(post)
def dma_kv_static(kind, i):
    so = sKK if kind == 'K' else sKOFF
    return dma_tile(kind, [f"s_add_u32 m0, s{sM0W}, {kvslot(kind,i)*SLOT}"], f"s{so}", f"{kind}{i}", wrap0_items(so, SLOT, 32 * SLOT))
def dma_w(u):
    return dma_tile('W', [f"s_add_u32 m0, s{sM0W}, {wslot(u)*SLOT}"], f"s{sWOFF}", f"W{u}", wrap0_items(sWOFF, 32 * 12288, 640 * 12288))
def dma_x(c):
    g = []
    base = xpair(c)
    for half in range(2):
        g.append(S(f"s_add_u32 m0, s{sM0W}, {(base+half)*SLOT}"))
        for qb in range(3):
            g.append(Item('M', f"buffer_load_dwordx4 v{vXD+2*qb+half}, s[{sX}:{sX+3}], s{sXOFF} offen offset:{1024*qb} {NTW} lds", tag=f"X{c}"))
    return g + wrap0_items(sXOFF, 128, 1280)
def xfrag(c, ks, qb): return aX + (c % NXB) * 24 + (ks * 3 + qb) * 4
def read_x(c):
    off = (xpair(c) - XS0) * SLOT
    return [Item('L', f"ds_read_b128 {ar(xfrag(c,ks,qb))}, v{vXR+ks} offset:{off + qb*1024}") for ks in range(2) for qb in range(3)]
def flat(p, items):
    for it in items: p.cur += it.ins

def snake(mf, k): return mf[::-1] if (SNAKE and k & 1) else mf
class Pool:
    def __init__(self, size): self.n = 0; self.size = size
    def next(self):
        r = aPOOL + 4 * (self.n % self.size); self.n += 1; return r

def vunit_reads(buf, db, base_imm=0, va=None):
    va = vVA if va is None else va
    return [f"ds_read_b64_tr_b16 {ar(buf,2)}, v{va+(db&3)} offset:{base_imm + (db>>2)*128}",
            f"ds_read_b64_tr_b16 {ar(buf+2,2)}, v{va+(db&3)} offset:{base_imm + (db>>2)*128 + 6144}"]
def kunit_reads(buf, kb, ds, imm=0):
    return [f"ds_read_b128 {ar(buf)}, v{vKA+(ds&1)} offset:{imm + kb*6144 + (ds>>1)*128}"]

T = 4
RGAP = 6
class Stream:
    def __init__(self, tail=()):
        self.mf = []; self.items = []; self.resA = set()
        for u in tail: self.add_unit(u, True)
    def n(self): return len(self.mf)
    def add_unit(self, u, noread=False):
        u['first'] = len(self.mf)
        if u.get('reads') or u.get('needwait'): self.resA.add(len(self.mf) - 1)
        for k, m in enumerate(u['mf']): self.mf.append((u.get('head', []) if k == 0 else [], m))
    def reads(self, units, lo, hi, after=()):
        its = []
        tot = sum(len(u['reads']) for u in units); k = 0
        for u in units:
            g = lo + (hi - lo + 1) * k // tot
            for r in u['reads']:
                it = Item('L', r, lo=lo, hi=max(lo, min(hi, u['first'] - 5)), target=g, after=list(after) + ([(its[-1], 0)] if its else []))
                it.use = u['first']
                its.append(it); k += 1
        self.items += its
        return its
    def barrier(self, g, wait):
        w = Item('S', [I(x) for x in wait], lo=g, hi=g + 2, target=g)
        b = Item('S', "s_barrier", lo=g + 1, hi=g + 3, after=[(w, 1)])
        self.items += [w, b]
        return b
    def add(self, its): self.items += its; return its
    def emit(self, keep=0, name=""):
        mf = self.mf[:len(self.mf) - keep] if keep else self.mf
        out = pack(mf, self.items, self.resA, name)
        for it in self.items:
            if hasattr(it, 'use'):
                d = set(it.ins[0].dst)
                assert it.gap < it.use, (name, it.ins[0].text)
                for g in range(it.gap + 1, it.use):
                    assert not (d & set(self.mf[g][1].src)), ("pool WAR", name, it.ins[0].text, it.gap, g)
        return out

SCHED = 0
def set_sched():
    global PRO, PRO2, QS, POST, LAYOUT, XS0
    if SCHED == 0:
        PRO = ['X0', 'W0', 'W1', 'W2']
        PRO2 = ['X1']
        QS = {
            0: (['W3'], None, []),
            1: (['W4', 'W5'], 1, ['X2']),
            2: (['W6'], None, ['X3']),
            3: (['W7'], 2, ['X4']),
            4: (['W8'], 3, ['X5']),
            5: (['W9', 'K0', 'K1'], None, []),
            6: (['W10'], 4, ['X6']),
            7: (['W11'], 5, ['X7']),
            8: (['W12', 'V0', 'K2'], None, []),
            9: (['W13'], 6, ['X8']),
            10: (['W14'], 7, ['X9']),
            11: (['W15'], None, []),
            12: (['W16'], 8, ['V1', 'K3']),
            13: (['W17'], 9, []),
            14: (['W18'], None, []),
            15: (['W19', 'V2', 'K4'], None, []),
            16: (['V3'], None, []),
            17: (['K5'], None, []),
            18: (['V4'], None, []),
            19: ([], None, []),
        }
    elif SCHED == 5:
        PRO = ['X0', 'W0', 'W1', 'X1']
        PRO2 = ['W2', 'W3']
        QS = {
            0: (['X2', 'W4'], None, []),
            1: (['W5'], 1, ['X3']),
            2: (['W6'], None, []),
            3: (['W7'], 2, ['X4']),
            4: (['W8'], None, []),
            5: (['W9'], 3, ['X5']),
            6: (['W10'], 4, ['X6']),
            7: (['W11', 'K0'], 5, ['X7']),
            8: (['W12', 'K1'], 6, ['X8']),
            9: (['W13'], 7, ['X9']),
            10: (['W14', 'V0'], 8, []),
            11: (['W15', 'K2'], 9, []),
            12: (['W16', 'V1'], None, []),
            13: (['W17'], None, ['K3']),
            14: (['W18'], None, []),
            15: (['W19', 'V2'], None, []),
            16: (['K4'], None, []),
            17: (['V3'], None, []),
            18: (['K5'], None, []),
            19: (['V4'], None, []),
        }
    elif SCHED in (6, 7, 8):
        LAYOUT = 1; XS0 = 7
        PRO = ['X0', 'W0', 'W1', 'W2']
        PRO2 = ['X1']
        QS = {
            0: (['W3'], None, ['X2']),
            1: (['W4'], 1, ['W5']),
            2: (['X3'], None, ['W6']),
            3: (['W7'], 2, ['X4']),
            4: (['W8'], None, ['W9']),
            5: (['X5'], 3, ['W10']),
            6: (['X6', 'W11'], 4, []),
            7: (['X7', 'W12'], 5, []),
            8: (['X8', 'W13'], 6, []),
            9: (['X9'], 7, ['W14', 'W15']),
            10: ([], 8, ['W16', 'W17']),
            11: ([], 9, ['W18', 'W19']),
        }
        kv = {6: {12: 'K0', 13: 'K1', 14: 'V0', 15: 'K2', 16: 'V1', 17: 'K3', 18: 'V2', 19: 'K4'},
              7: {12: 'K0', 13: 'K1', 15: 'V0', 16: 'K2', 18: 'V1', 19: 'K3'},
              8: {12: 'K0', 14: 'K1', 16: 'V0', 18: 'K2'}}[SCHED]
        for u in range(12, 20): QS[u] = ([kv[u]] if u in kv else [], None, [])
        POST = [n for n in ['K0', 'K1', 'V0', 'K2', 'V1', 'K3', 'V2', 'K4', 'V3', 'K5', 'V4'] if n not in kv.values()]
    elif SCHED == 3:
        PRO = ['X0', 'W0', 'W1', 'W2']
        PRO2 = ['X1']
        QS = {
            0: (['W3'], None, []),
            1: (['W4', 'W5'], 1, ['X2']),
            2: (['W6'], None, ['X3']),
            3: (['W7'], 2, ['X4']),
            4: (['W8', 'K0'], 3, ['X5']),
            5: (['W9'], None, ['K1']),
            6: (['W10'], 4, ['X6']),
            7: (['W11', 'V0'], 5, ['X7']),
            8: (['W12'], 6, ['X8']),
            9: (['W13', 'K2'], 7, ['X9']),
            10: (['W14'], 8, ['V1']),
            11: (['W15'], 9, []),
            12: (['W16', 'K3'], None, []),
            13: (['W17'], None, ['V2']),
            14: (['W18'], None, []),
            15: (['W19', 'K4'], None, []),
            16: ([], None, ['V3']),
            17: ([], None, []),
            18: (['K5'], None, []),
            19: ([], None, ['V4']),
        }
    elif SCHED == 4:
        PRO = ['X0', 'W0', 'W1', 'W2']
        PRO2 = ['X1']
        QS = {
            0: (['W3'], None, []),
            1: (['W4', 'W5'], 1, ['X2']),
            2: (['W6'], None, ['X3']),
            3: (['W7'], 2, ['X4']),
            4: (['W8'], 3, ['X5']),
            5: (['W9'], None, []),
            6: (['W10'], 4, ['X6']),
            7: (['W11', 'K0'], 5, ['X7']),
            8: (['W12'], 6, ['X8']),
            9: (['W13'], 7, ['X9']),
            10: (['W14', 'K1'], 8, []),
            11: (['W15'], 9, []),
            12: (['W16', 'V0'], None, []),
            13: (['W17'], None, []),
            14: (['W18', 'K2'], None, []),
            15: (['W19'], None, []),
            16: (['V1'], None, []),
            17: (['K3'], None, []),
            18: (['V2'], None, []),
            19: (['K4', 'V3'], None, ['K5', 'V4']),
        }
def issue(name):
    if name[0] == 'P': return pf_items(name)
    k, i = name[0], int(name[1:])
    return dma_x(i) if k == 'X' else dma_w(i) if k == 'W' else dma_kv_static(k, i)

def check_sched():
    occ = {}
    xread = {0: -1}
    for u, (e, xr, l) in QS.items():
        if xr is not None: xread[xr] = u
    def slots(n):
        k, i = n[0], int(n[1:])
        return [xpair(i), xpair(i) + 1] if k == 'X' else [wslot(i)] if k == 'W' else [kvslot(k, i)]
    def put(n, u, late):
        if n[0] == 'P': return
        for s in slots(n):
            o = occ.get(s)
            if o:
                k, i = o[0], int(o[1:])
                if k == 'W': assert i <= u - 1, (n, u, o)
                elif k == 'X': assert xread[i] < u or (xread[i] == u and late), (n, u, o)
                else: assert False, (n, u, o)
            occ[s] = n
    seq = []
    for n in PRO: put(n, -2, False); seq.append(n)
    for n in PRO2: put(n, -1, True); seq.append(n)
    for u in range(20):
        e, xr, l = QS[u]
        for n in e: put(n, u, False); seq.append(n)
        for n in l: put(n, u, True); seq.append(n)
        if xr is not None:
            assert xr * 2 > u and (xr - NXB) * 2 + 1 < u, (xr, u)
    for n in POST: put(n, 19, True); seq.append(n)
    assert [n for n in seq if n[0] == 'W'] == [f"W{i}" for i in range(20)]
    assert [n for n in seq if n[0] == 'X'] == [f"X{i}" for i in range(10)]
    assert [n for n in seq if n[0] in 'KV'] == ['K0', 'K1', 'V0', 'K2', 'V1', 'K3', 'V2', 'K4', 'V3', 'K5', 'V4']

def qproj(p, pool):
    set_sched()
    if isinstance(WOPF, int): QS[WOPF] = (QS[WOPF][0] + ['PW'],) + QS[WOPF][1:]
    check_sched()
    for n in PRO:
        if n == 'W0': setup_dma2(p)
        flat(p, issue(n))
    setup_reads(p)
    setup_pf2(p)
    p("WAITVM X0")
    if STSET in 'qQ': stamp(p, 1)
    flat(p, read_x(0))
    if any(n[0] == 'X' and xpair(int(n[1:])) == xpair(0) for n in PRO2): p("s_waitcnt lgkmcnt(0)")
    for n in PRO2: flat(p, issue(n))
    p(f"""
s_add_u32 s{sTK1}, s{sTK1}, {TOKC[0]}
s_addc_u32 s{sTK1+1}, s{sTK1+1}, {TOKC[1]}
s_add_u32 s{sTK2}, s{sTK2}, {TOKC[0]}
s_addc_u32 s{sTK2+1}, s{sTK2+1}, {TOKC[1]}
""")
    for uu in range(4): p(f"v_add_u32 v{vVA+uu}, {wslot(0)*SLOT}, v{vVL+uu}")
    p("WAITVM W0\ns_barrier")
    st = Stream()
    tiles = []
    for u in range(20):
        c, ks = u >> 1, u & 1
        va = vVA if u % 2 == 0 else vVB
        units = []
        for db in range(12):
            buf = pool.next()
            mf = []
            for qb in range(3):
                d = vACC + (db * 3 + qb) * 4
                mf.append(I(f"{MF} {vr(d)}, {ar(buf)}, {ar(xfrag(c,ks,qb))}, {vr(d) if u else 0}"))
            units.append(dict(reads=vunit_reads(buf, db, 0, va), mf=snake(mf, db)))
            st.add_unit(units[-1])
        tiles.append(units)
    prevdma = None
    for u in range(20):
        g0 = 36 * u - 3 * T
        if u == 0:
            for un in tiles[0][:T]:
                for r in un['reads']: p(r)
            st.reads(tiles[0][T:], 0, g0 + 36 - RGAP)
            bar = None; glo = 0
        else:
            w = [f"WAITVM W{u}", "s_waitcnt lgkmcnt(0)"]
            if STAMP and STSET == 'Q' and u % 2 == 0 and u <= 16:
                k = [2, 3, 4, 6, 7, 8, 9, 10][u // 2 - 1]
                w.append(f"s_memrealtime s[{sSTAMP+2*k}:{sSTAMP+2*k+1}]")
            if STAMP and STSET == 'q' and u in (5, 10, 15): w.append(f"{'s_memtime' if STAMP == 2 else 's_memrealtime'} s[{sSTAMP+2*(1+u//5)}:{sSTAMP+2*(1+u//5)+1}]")
            bar = st.barrier(g0, w)
            st.reads(tiles[u], g0 + 1, g0 + 36 - RGAP, [(bar, 0)])
            glo = g0 + 2
        if u < 19:
            va = vVA if (u + 1) % 2 == 0 else vVB
            st.add(chain([Item('V', f"v_add_u32 v{va+uu}, {wslot(u+1)*SLOT}, v{vVL+uu}") for uu in range(4)], glo + 6, g0 + 30))
        e, xr, l = QS[u]
        f1 = [g for n in e for g in issue(n)]
        nx = [g for n in l for g in issue(n)]
        seq = []
        if f1:
            chain(f1, glo, glo + 12)
            if bar: f1[0].after.append((bar, 1))
            seq += f1
        if xr is not None:
            rd = [S(f"WAITVM X{xr}")] + read_x(xr)
            chain(rd, g0 + 14, g0 + 22)
            seq += rd
            if nx: nx = [Item('V', f"v_accvgpr_read_b32 v{vT0}, a{xfrag(xr,1,2)}", after=[(rd[-1], 4)])] + nx
        if nx:
            chain(nx, g0 + 24, g0 + 35)
            seq += nx
        for k in range(len(seq)):
            pv = seq[k - 1] if k else prevdma
            if pv is not None and not any(a is pv for a, _ in seq[k].after): seq[k].after.append((pv, 1))
            seq[k].hi = g0 + 50 if seq[k].kind != 'L' else g0 + 30
        if seq: prevdma = seq[-1]
        st.add(seq)
    p.cur += st.emit(name="qproj")
    post = [x for n in POST for x in issue(n)]
    SC = math.log2(math.e) / math.sqrt(192.0)
    p(f"s_mov_b32 s{sTMP+2}, {f32(SC)}\ns_mov_b32 s{sTMP+3}, {f32(SC)}")
    for s in range(6):
        for qb in range(3):
            a = vACC + ((2 * s) * 3 + qb) * 4; b = vACC + ((2 * s + 1) * 3 + qb) * 4
            q = qfrag(qb, s)
            for r in (a, a + 2, b, b + 2):
                p(f"v_pk_mul_f32 {vr(r,2)}, {vr(r,2)}, s[{sTMP+2}:{sTMP+3}]")
            p(f"v_cvt_pk_bf16_f32 v{q}, v{a}, v{a+1}\nv_cvt_pk_bf16_f32 v{q+1}, v{a+2}, v{a+3}")
            p(f"v_cvt_pk_bf16_f32 v{q+2}, v{b}, v{b+1}\nv_cvt_pk_bf16_f32 v{q+3}, v{b+2}, v{b+3}")
            k0 = len(post) * (s * 3 + qb) // 18; k1 = len(post) * (s * 3 + qb + 1) // 18
            flat(p, post[k0:k1])
    for s in range(6):
        for qb in range(3):
            q = qfrag(qb, s)
            p(f"v_permlane16_swap_b32 v{q}, v{q+2}\nv_permlane16_swap_b32 v{q+1}, v{q+3}")

def qk_units(pool, buf, zero=False, imm=0):
    units = []
    for kb in range(2):
        for ds in range(6):
            pb = pool.next()
            mf = []
            for qb in range(3):
                d = sreg(buf, qb, kb)
                c = vr(d) if ds else (0 if zero else vr(vNM + 4 * qb))
                mf.append(I(f"{MF} {vr(d)}, {ar(pb)}, {vr(qfrag(qb,ds))}, {c}"))
            units.append(dict(reads=kunit_reads(pb, kb, ds, imm), mf=snake(mf, ds)))
    return units
def rs_unit(buf, zero=False):
    return dict(reads=None, mf=[I(f"{MF} {vr(vL[buf]+4*qb)}, {vr(vONE)}, {vr(vP[buf]+4*qb)}, {0 if zero else vr(vL[buf^1]+4*qb)}") for qb in range(3)])
def pv_units(pool, buf, zero=False, imm=0):
    units = []
    for db in range(12):
        pb = pool.next()
        mf = [I(f"{MF} {ar(oacc(db,qb))}, {ar(pb)}, {vr(vP[buf]+4*qb)}, {0 if zero else ar(oacc(db,qb))}") for qb in range(3)]
        units.append(dict(reads=vunit_reads(pb, db, SLOT + imm), mf=snake(mf, db)))
    return units

PAIRS = [(qb, kb, h) for kb in range(2) for qb in range(3) for h in range(2)]
def softmax_items(buf, n0, n1, lo, hi):
    ex = []; cv = []
    for n in range(n0, n1):
        qb, kb, h = PAIRS[n]
        s = sreg(buf, qb, kb) + 2 * h
        e = vE + 2 * (n % NE)
        a = Item('E', f"v_exp_f32 v{e}, v{s}"); b = Item('E', f"v_exp_f32 v{e+1}, v{s+1}")
        if len(cv) >= NE: a.after.append((cv[-NE], 1))
        ex += [a, b]
        cv.append(Item('V', f"v_cvt_pk_bf16_f32 v{vP[buf]+4*qb+2*kb+h}, v{e}, v{e+1}", lo=lo, hi=hi, after=[(b, 1)]))
    chain(ex, lo, hi - 1)
    for e in ex: e.hi = hi
    for k, c in enumerate(cv): c.target = ex[2 * k + 1].target + 1
    return ex + cv
SPLIT = 6
LTHR = 2.0 ** 40
def rowmax(p, buf, qb, dst):
    s0, s1 = sreg(buf, qb, 0), sreg(buf, qb, 1)
    p(f"""
v_max3_f32 v{dst}, v{s0}, v{s0+1}, v{s0+2}
v_max3_f32 v{dst}, v{dst}, v{s0+3}, v{s1}
v_max3_f32 v{dst}, v{dst}, v{s1+1}, v{s1+2}
v_max_f32 v{dst}, v{dst}, v{s1+3}
v_mov_b32 v{vR+8}, v{dst}
v_permlane32_swap_b32 v{dst}, v{vR+8}
v_max_f32 v{dst}, v{dst}, v{vR+8}
v_mov_b32 v{vR+8}, v{dst}
v_permlane16_swap_b32 v{dst}, v{vR+8}
v_max_f32 v{dst}, v{dst}, v{vR+8}
""")

def rare_path(p, label, buf):
    p.reset_state()
    p(f"{label}:\ns_nop 15")
    for qb in range(3):
        d = vR + qb
        rowmax(p, buf, qb, d)
        p(f"v_max_f32 v{d}, 0, v{d}")
        for r in range(4): p(f"v_sub_f32 v{vNM+4*qb+r}, v{vNM+4*qb+r}, v{d}")
        for bb in (buf, buf ^ 1):
            for r in range(8): p(f"v_sub_f32 v{sreg(bb,qb,0)+r}, v{sreg(bb,qb,0)+r}, v{d}")
        p(f"v_exp_f32_e64 v{vR+4+qb}, -v{d}")
    for qb in range(3):
        for r in range(4): p(f"v_mul_f32 v{vL[buf^1]+4*qb+r}, v{vL[buf^1]+4*qb+r}, v{vR+4+qb}")
        for r in [oacc(db, qb) + r for db in range(12) for r in range(4)]:
            p(f"v_accvgpr_read_b32 v{vR+9}, a{r}\nv_mul_f32 v{vR+9}, v{vR+9}, v{vR+4+qb}\nv_accvgpr_write_b32 a{r}, v{vR+9}")
    for (qb, kb, h) in PAIRS:
        s = sreg(buf, qb, kb) + 2 * h
        p(f"v_exp_f32 v{vE}, v{s}\nv_exp_f32 v{vE+1}, v{s+1}\nv_cvt_pk_bf16_f32 v{vP[buf]+4*qb+2*kb+h}, v{vE}, v{vE+1}")
    p.cur += rs_unit(buf)['mf']
    p(f"s_nop 15\ns_setpc_b64 s[98:99]")
    p.flush()

GSZ = 20480
TRAMPS = []
OUTL = []
sHI = 84
def gic(G): return (0, G) if G < 3 else (1 + (G - 3) % 3, (G - 3) // 3)
def goff(G): return ((G + 4) % 8) * GSZ
def dma_wo_static(G):
    sl = goff(G); i, c = gic(G)
    g = [S(f"s_add_u32 s{sWOFF}, s{sHI+i}, {c}"), S(f"s_mul_i32 s{sWOFF}, s{sWOFF}, {64*1280}")]
    for j in range(5):
        if j == 0: g.append(S(f"s_add_u32 m0, s{sWW}, {sl}"))
        if j == 4: g.append(S(f"s_add_u32 m0, s{sWW}, {sl+4096}"))
        g.append(Item('M', f"buffer_load_dwordx4 v{vWOD+j}, s[{sWo}:{sWo+3}], s{sWOFF} offen offset:{1024*(j%4)} {NTO} lds", tag=f"G{G}"))
    return g

def setup_oproj(p):
    t = 136
    p(f"s_mul_i32 s{sTMP}, s{sWAVE}, {16*1280}")
    for j in range(5):
        p(f"""
v_add_u32 v{t}, {64*j}, v0
v_mul_u32_u24 v{t+1}, 205, v{t}
v_lshrrev_b32 v{t+1}, 12, v{t+1}
v_mul_u32_u24 v{t+2}, 20, v{t+1}
v_sub_u32 v{t+2}, v{t}, v{t+2}
v_lshrrev_b32 v{t+3}, 1, v{t+1}
v_and_b32 v{t+3}, 2, v{t+3}
v_xor_b32 v{t+2}, v{t+2}, v{t+3}
v_mul_u32_u24 v{t+1}, 1280, v{t+1}
v_lshl_add_u32 v{t+1}, v{t+2}, 4, v{t+1}
v_add_u32 v{t+1}, s{sTMP}, v{t+1}
v_subrev_u32 v{vWOD+j}, {1024*(j%4)}, v{t+1}
""")
    p(f"""
v_lshrrev_b32 v{t}, 2, v0
v_mul_u32_u24 v{t}, 320, v{t}
v_and_b32 v{t+1}, 3, v0
v_lshl_add_u32 v{t}, v{t+1}, 3, v{t}
v_and_b32 v{t+1}, 16, v0
v_lshlrev_b32 v{t+1}, 1, v{t+1}
v_add_u32 v{vWOL}, v{t}, v{t+1}
v_sub_u32 v{vWOL+1}, v{t}, v{t+1}
v_lshlrev_b32 v{vOL}, 4, v0
v_add_u32 v{vOL}, s{sM0W}, v{vOL}
s_mul_i32 s{sWW}, s{sWAVE}, 5120
""")
    p(f"""
s_lshl_b32 s{sTMP}, s{sB}, 2
s_add_u32 s{sTMP}, s{sTMP}, s{sHL}
s_lshl_b32 s{sTMP}, s{sTMP}, 2
s_add_u32 s{sTMP}, s{sTMP}, s{sWAVE}
s_mul_i32 s{sTMP+1}, s{sTMP}, {8*15360}
""")
    ws_srd(p, sP, sTMP + 1, PART_OFF, 8 * 15360)
    p(f"""
s_lshl_b32 s{sTMP}, s{sB}, 2
s_add_u32 s{sTMP}, s{sTMP}, s{sWAVE}
s_mul_i32 s{sTMP}, s{sTMP}, {48*1280}
s_mul_i32 s{sTMP+1}, s{sHL}, 320
s_add_u32 s{sTMP}, s{sTMP}, s{sTMP+1}
""")
    addptr(p, 86, sTMP)
    srd(p, sOUT, 86, 87, 47 * 1280 + 320)
    for i in range(4):
        p(f"s_add_u32 s{sHI+i}, s{sHL}, {i}\ns_and_b32 s{sHI+i}, s{sHI+i}, 3\ns_mul_i32 s{sHI+i}, s{sHI+i}, 3")

def attention(p, pool):
    for r in range(4): p(f"v_mov_b32 v{vONE+r}, 0x3f803f80")
    for db in range(12 - T, 12):
        for r in range(12): p(f"v_accvgpr_write_b32 a{oacc(db,0)+r}, 0")
    setup_oproj(p)
    p(f"s_mov_b32 s{sLTHR}, {f32(LTHR)}")
    for u in range(2): p(f"v_mov_b32 v{vKA+u}, v{vKL+u}")
    p("WAITVM V0")
    p("s_waitcnt lgkmcnt(0)\ns_barrier")
    st = Stream()
    qk = qk_units(pool, 0, zero=True)
    for u in qk: st.add_unit(u)
    for u in qk[:4]: p(u['reads'][0])
    st.reads(qk[4:], 0, 22)
    p.cur += st.emit(name="qk0")
    for qb in range(3):
        d = vR + qb
        rowmax(p, 0, qb, d)
        for r in range(4): p(f"v_sub_f32 v{vNM+4*qb+r}, 0, v{d}")
        for r in range(8): p(f"v_sub_f32 v{sreg(0,qb,0)+r}, v{sreg(0,qb,0)+r}, v{d}")
    skipmask = sum(1 << s for s in SKIPS)
    assert all(s % 2 == 1 and s <= 25 for s in SKIPS) and len(SKIPS) <= 2
    p(f"""
s_mov_b32 s{sWR}, s{sM0W}
s_mov_b32 s{sRD}, 0
s_mov_b32 s{sT}, 1
""")
    for u in range(4): p(f"v_mov_b32 v{vVA+u}, v{vVL+u}")
    def kv_issue(par, nok=False):
        dk = dma_tile('K', [f"s_mov_b32 m0, s{sWR}"], f"s{sKK}") if not nok else []
        dv = dma_tile('V', [f"s_add_u32 m0, s{sWR}, {SLOT}"], f"s{sKOFF}")
        post = [S(f"s_mov_b32 s{sKOFF}, s{sKK}")] + wrap0_items(sKK, SLOT, 32 * SLOT)
        if par and not SKIPS: post.append(S(f"s_cmp_eq_u32 s{sT}, 25\ns_cselect_b32 s{sKK}, {32*SLOT}, s{sKK}"))
        return dk + dv + post + wrap0_items(sWR, 2 * SLOT, 12 * SLOT, f"s{sM0W}")
    def step(t_par, tail, mode, vm, extra=(), endi=()):
        cur, nxt = t_par, t_par ^ 1
        first = mode == 'first'; last = mode == 'last'
        imm = 0 if t_par else 2 * SLOT
        st = Stream(tail)
        pre = []
        qk = [] if last else qk_units(pool, nxt, imm=imm)
        pv = pv_units(pool, cur, zero=first, imm=imm)
        rs = rs_unit(cur, zero=first)
        if not first:
            ret = p.newlabel("L_ret"); tr = p.newlabel("L_tramp")
            TRAMPS.append((tr, ret, cur))
            pv[0]['head'] = L(f"s_cbranch_vccnz {tr}\n{ret}:")
        order = qk[:9] + [rs] + qk[9:] + pv if not first else qk + [rs] + pv
        for u in order: st.add_unit(u)
        keep = 0 if last else 3 * T
        n = st.n() - keep
        wait = [f"s_waitcnt vmcnt({vm}) lgkmcnt(0)"]
        if first:
            pre = L("s_waitcnt lgkmcnt(0)\ns_barrier") + [I(u['reads'][0]) for u in qk[:4]]
            kr = st.reads(qk[4:], 0, 20); bar = None
        else:
            bar = st.barrier(0, wait)
            kr = st.reads(qk, 1, 33, [(bar, 0)]) if qk else []
        aft = ([(bar, 0)] if bar else []) + ([(kr[-1], 0)] if kr else [])
        if t_par:
            va = chain([Item('V', f"v_add_u32 v{vVA+u}, s{sRD}, v{vVL+u}") for u in range(4)], 0, 3 if last else 20)
            st.add(va); aft.append((va[-1], 1))
        vlo = (kr[-1].target + 2) if kr else 3
        st.reads(pv, vlo, (n - 12) if not last else 36, aft)
        if not t_par:
            up = wrap0_items(sRD, 4 * SLOT, 12 * SLOT) + [Item('V', f"v_add_u32 v{vKA+u}, s{sRD}, v{vKL+u}") for u in range(2)]
            up[0].after += [(kr[-1], 1)]
            st.add(chain(up, rs['first'], n - 4))
        dm = []
        if mode in ('first', 'A'):
            dm += kv_issue(t_par)
            chain(dm, 2, 30)
            for x in dm: x.hi = n - 8
        if extra:
            chain(extra, (rs['first'] + 4) if last else 2, n - 1 if last else 50); dm += extra
            for x in extra: x.hi = n - 1
        if dm and bar: dm[0].after.append((bar, 1))
        st.add(dm)
        st.add(softmax_items(cur, 0 if first else SPLIT, 12, 0, rs['first'] - 2))
        if not first:
            mx = Item('V', f"v_max3_f32 v{vCK}, v{vL[cur]}, v{vL[cur]+4}, v{vL[cur]+8}", lo=min(rs['first'] + 6, pv[0]['first'] - 1), hi=pv[0]['first'] - 1)
            cm = Item('V', f"v_cmp_nge_f32 vcc, s{sLTHR}, v{vCK}", after=[(mx, 0)], hi=pv[0]['first'] - 1)
            st.add([mx, cm])
        if not last: st.add(softmax_items(nxt, 0, SPLIT, pv[0]['first'] + 1, n - 1))
        if endi: st.add(chain(list(endi), n - 3, n - 1, 0))
        body = st.emit(keep, name=mode)
        return pre + body, ([] if last else [dict(mf=u['mf'], needwait=False) for u in pv[12 - T:]])
    ins, tail0 = step(0, [], 'first', 0)
    p.cur += ins
    sv = pool.n; pool.n -= 12
    tail = [dict(mf=u['mf']) for u in pv_units(pool, 0)[12 - T:]]
    assert pool.n == sv
    txt = lambda tl: [[i.text for i in u['mf']] for u in tl]
    lp = p.newlabel("L_attA"); le = p.newlabel("L_attE"); ls = p.newlabel("L_attS")
    VMA = VMLIM if VMLIM is not None else 12 if SKIPS else 24
    b1, tail1 = step(1, tail, 'A', VMA)
    b2, tail2 = step(0, tail1, 'A', VMA, endi=[S(f"s_add_u32 s{sT}, s{sT}, 2"), S(f"s_cmp_lt_u32 s{sT}, 27")])
    assert txt(tail2) == txt(tail)
    if SKIPS:
        bs, tails = step(1, tail, 'skip', 12)
        assert txt(tails) == txt(tail1)
        p.loop(L(f"{lp}:\ns_bitcmp1_b32 {skipmask}, s{sT}\ns_cbranch_scc1 {ls}") + b1 + L(f"{le}:") + b2 + L(f"s_cbranch_scc1 {lp}"))
        q = Prog(); q.st = p.st.clone()
        q.cur = L(f"{ls}:") + bs + L(f"s_branch {le}")
        OUTL.append(q.text())
    else:
        tr = []
        if TRACE:
            tr = L(f"s_memrealtime s[54:55]\ns_memtime s[56:57]\ns_waitcnt lgkmcnt(0)\nv_writelane_b32 v174, s54, s{sT}\nv_writelane_b32 v175, s56, s{sT}".replace("v_writelane_b32 v174, s54, s%d" % sT, "s_mov_b32 m0, s%d\nv_writelane_b32 v174, s54, m0" % sT).replace("v_writelane_b32 v175, s56, s%d" % sT, "v_writelane_b32 v175, s56, m0"))
        p.loop(L(f"{lp}:") + tr + b1 + b2 + L(f"s_cbranch_scc1 {lp}"))
        if TRACE:
            p(f"s_mov_b32 s{sTMP}, 0")
            ws_srd(p, 56, sTMP, STAMP_OFF + 65536, 1 << 20)
            p(f"s_lshl_b32 s{sTMP}, s2, 2\ns_add_u32 s{sTMP}, s{sTMP}, s{sWAVE}\ns_lshl_b32 s{sTMP}, s{sTMP}, 9\nv_lshlrev_b32 v{vT0}, 3, v0")
            p(f"buffer_store_dwordx2 v[174:175], v{vT0}, s[56:59], s{sTMP} offen")
    stamp(p, 6)
    p("L_att27:")
    cnt = lambda its: sum(1 for x in its if x.kind == 'M')
    NSK = len(SKIPS)
    pf = (pf_wo() if WOPF == 'late' else [])
    plan = {0: PLAN or {27: ['p'], 28: [0], 29: [1, 2], 30: [3, 4], 31: [5, 6]},
            1: {27: ['kv'], 28: ['p', 0], 29: [1, 2], 30: [3, 4], 31: [5, 6]},
            2: {27: ['kv'], 28: ['kv'], 29: ['p', 0], 30: [1, 2], 31: [3, 4]}}[NSK]
    global NEXTG
    NEXTG = max(a for v in plan.values() for a in v if isinstance(a, int)) + 1
    log = []
    for pr in range(27, 32 - NSK): log += [pr] * 6
    nxtpair = 32 - NSK
    tl = tail
    for t in range(27, 32):
        vm = len(log) - 1 - max(k for k, x in enumerate(log) if x == t)
        ex = []
        for a in plan[t]:
            if a == 'kv':
                its = kv_issue(0, nok=(nxtpair == 31)); log += [nxtpair] * cnt(its); nxtpair += 1
            else:
                its = pf if a == 'p' else dma_wo_static(a); log += [-1] * cnt(its)
            ex += its
        ins, tl = step(t & 1, tl, 'last' if t == 31 else 'P', min(vm, 63), ex); p.cur += ins

def o_store(s):
    return [S(f"s_add_u32 s{sXOFF}, s{sKOFF}, {s*12288}")] + [
        Item('M', f"buffer_store_dwordx4 {bfrag(s,qb)}, v{vOL}, s[{sO}:{sO+3}], s{sXOFF} offen offset:{1024*qb} sc1", tag=f"OST{s>>1}") for qb in range(3)]
def o_epilogue(p):
    for qb in range(3): p(f"v_rcp_f32 v{vRC+2*qb}, v{vL[1]+4*qb}")
    p(f"s_mul_i32 s{sKOFF}, s{sHL}, 73728")
    n = 0
    for s in range(6):
        st = o_store(s)
        if s < NST: flat(p, st[:1])
        for qb in range(3):
            t = 32 + 8 * (n % 4); n += 1
            d = vQ + (s * 3 + qb) * 4
            for r in range(4):
                p(f"v_accvgpr_read_b32 v{t+r}, a{oacc(2*s,qb)+r}")
                p(f"v_accvgpr_read_b32 v{t+4+r}, a{oacc(2*s+1,qb)+r}")
            for r in range(0, 8, 2):
                p(f"v_pk_mul_f32 {vr(t+r,2)}, {vr(t+r,2)}, {vr(vRC+2*qb,2)} op_sel_hi:[1,0]")
            for r in range(4):
                p(f"v_cvt_pk_bf16_f32 v{d+r}, v{t+2*r}, v{t+2*r+1}")
            if s < NST: flat(p, st[1 + qb:2 + qb])

vTK = 6
def set_flag(vfl, sidx, off=0):
    return L(f"s_lshl_b64 exec, 1, s{sidx}\nbuffer_store_dwordx2 v[{vTK}:{vTK+1}], v{vfl}, s[{sF}:{sF+3}], 0 offen offset:{off} sc1\ns_mov_b64 exec, -1")

def poll(p, voff, tk, sidx, off=0):
    lp = f"L_poll_{sidx}"; dn = f"L_pd_{sidx}"
    p(f"s_mov_b32 s{sTMP}, 0x20000")
    p.flush()
    p.raw(f"""{lp}:
buffer_load_dwordx2 v[{vFLV}:{vFLV+1}], v{voff}, s[{sF}:{sF+3}], 0 offen offset:{off} sc1
s_waitcnt vmcnt(0)
v_cmp_ne_u64 vcc, s[{tk}:{tk+1}], v[{vFLV}:{vFLV+1}]
s_cbranch_vccz {dn}
s_sub_u32 s{sTMP}, s{sTMP}, 1
s_cmp_lg_u32 s{sTMP}, 0
s_cbranch_scc1 {lp}
{dn}:""")
    p("s_waitcnt vmcnt(0)")
def bump_epoch(p, voff, tk, sidx):
    ne = p.newlabel("L_ne")
    p(f"s_cmp_lg_u32 s{sidx}, 0\ns_cbranch_scc1 {ne}\nv_mov_b32 v{vFLV}, s{tk}\nv_mov_b32 v{vFLV+1}, s{tk+1}\ns_mov_b64 exec, 1")
    p.flush()
    p.raw(f"buffer_store_dwordx2 v[{vFLV}:{vFLV+1}], v{voff}, s[{sF}:{sF+3}], 0 offen offset:96 sc1")
    p(f"s_mov_b64 exec, -1\n{ne}:")

def load_g(G):
    i, c = gic(G)
    g = [S(f"s_add_u32 s{sXOFF}, s{sHI+i}, {c}"), S(f"s_mul_i32 s{sXOFF}, s{sXOFF}, 24576")]
    for ks in range(2):
        if ks: g.append(S(f"s_add_u32 s{sXOFF}, s{sXOFF}, 12288"))
        g += [Item('M', f"buffer_load_dwordx4 {bfrag(2*G+ks,qb)}, v{vOL}, s[{sO}:{sO+3}], s{sXOFF} offen offset:{1024*qb} {OLD}") for qb in range(3)]
    return g

def cacc(nb, qb): return aC + (nb * 3 + qb) * 4
vWA = (20, 22, 24, 26)
def oproj(p):
    pool = Pool(12)
    NM = NBM
    def unit(G, ks, nb, va, imm):
        u = 2 * G + ks
        pb = pool.next()
        a = va + (nb & 1)
        rd = [f"ds_read_b64_tr_b16 {ar(pb,2)}, v{a} offset:{imm+ks*10240+nb*32}", f"ds_read_b64_tr_b16 {ar(pb+2,2)}, v{a} offset:{imm+ks*10240+nb*32+5120}"]
        mf = [I(f"{MF} {ar(cacc(nb,qb))}, {ar(pb)}, {bfrag(u,qb)}, {ar(cacc(nb,qb)) if u else 0}") for qb in range(3)]
        return dict(reads=rd, mf=snake(mf, pool.n))
    def seta(va, off): return [Item('V', f"v_add_u32 v{va+k}, {off}, v{vWOL+k}") for k in range(2)]
    NG = 12 - NM
    U = [[unit(G, ks, nb, vWA[G & 1], 0) for ks in range(2) for nb in range(10)] for G in range(NG)]
    assert all(goff(G + 1) == goff(G) + GSZ for G in range(NG, 11))
    F = [[unit(G, ks, nb, vWA[2 + (G - NG) // 2], ((G - NG) % 2) * GSZ) for G in range(NG, 12) for ks in range(2)] for nb in range(10)]
    flat(p, seta(vWA[0], goff(0)) + seta(vWA[2], goff(NG)) + seta(vWA[3], goff(NG) + 2 * GSZ))
    p(f"v_lshlrev_b32 v{vT0}, 4, v0\ns_mul_i32 s{sT}, s{sHG}, 15360\nv_mov_b32 v{vTK}, s{sTK1}\nv_mov_b32 v{vTK+1}, s{sTK1+1}")
    p("WAITVM G0\ns_waitcnt lgkmcnt(0)\ns_barrier")
    st = Stream()
    for G in range(NG):
        for u in U[G]: st.add_unit(u)
    for nb in range(10):
        for u in F[nb]: st.add_unit(u)
    for u in U[0][:T]:
        for r in u['reads']: p(r)
    mem = []
    def addmem(its, lo, hi, after=None):
        chain(its, lo, hi)
        for x in its: x.hi = 10 ** 9
        if after: its[0].after.append(after)
        if mem: its[0].after.append((mem[-1], 1))
        mem.extend(its); st.add(its)
    bars = {}
    for G in range(NG + 1):
        g0 = 60 * G - 3 * T
        tile = U[G] if G < NG else [u for nb in range(10) for u in F[nb]]
        last = g0 + 60 - RGAP if G < NG else st.n() - 14
        if G == 0:
            st.reads(U[0][T:], 0, last)
        else:
            w = [f"WAITVM G{G if G < NG else 11}", "s_waitcnt lgkmcnt(0)"]
            if STAMP and STSET == 'o' and G in (3, 6, 8): w.append(f"s_memrealtime s[{sSTAMP+2*{3:1,6:2,8:3}[G]}:{sSTAMP+2*{3:1,6:2,8:3}[G]+1}]")
            bars[G] = st.barrier(g0, w)
            st.reads(tile, g0 + 1, last, [(bars[G], 0)])
        if G + 1 < NG:
            st.add(chain(seta(vWA[(G + 1) & 1], goff(G + 1)), max(g0, 0) + 20, g0 + 50))
    pv = {0: 2, 1: 4, 2: 8}
    for pos, act in OCH:
        k, n = act[0], int(act[1:])
        if k == 'W':
            if n >= NEXTG: addmem(dma_wo_static(n), pos, pos + 12, (bars[n - 7], 1) if n >= 8 else None)
        elif k == 'F': addmem([Item('M', [I(f"WAITVM OST{n}")] + set_flag(vF1, sHL, 32 * n))], pos, pos)
        elif k == 'P': addmem([Item('M', f"buffer_load_dwordx2 v[{pv[n]}:{pv[n]+1}], v{vF1}, s[{sF}:{sF+3}], 0 offen offset:{32*n} sc1")], pos, pos)
        elif k == 'C':
            addmem([Item('V', f"v_cmp_ne_u64 vcc, s[{sTK1}:{sTK1+1}], v[{pv[n]}:{pv[n]+1}]")], pos, pos)
            stp = [I(f"s_memrealtime s[{sSTAMP+18}:{sSTAMP+19}]"), I(f"s_memtime s[{CST[9]}:{CST[9]+1}]")] if STAMP and n == 0 else []
            stq = [I(f"s_memrealtime s[{sSTAMP+16}:{sSTAMP+17}]")] if STAMP and n == 0 else []
            addmem([Item('S', stq + L(f"s_cbranch_vccnz L_spin{n}\nL_spinr{n}:") + stp)], pos + 3, pos + 3)
            q = Prog(); q(f"L_spin{n}:"); poll(q, vF1, sTK1, f"o{n}", 32 * n); q(f"s_branch L_spinr{n}"); OUTL.append(q.text())
        elif k == 'B': addmem([x for G in range(3 + 3 * n, 6 + 3 * n) for x in load_g(G)], pos, pos + 40)
        elif k == 'S': addmem(o_store(n), pos, pos + 6)
    def gran(m, qb, k):
        t = vQ + 12 * (k % 4)
        its = [Item('V', f"v_accvgpr_read_b32 v{t+h*4+r}, a{cacc(2*m+h,qb)+r}") for h in range(2) for r in range(4)]
        its += [Item('V', f"v_cvt_pk_bf16_f32 v{t+8+r}, v{t+2*r}, v{t+2*r+1}") for r in range(4)]
        j = m * 3 + qb
        if j % 4 == 0: its.append(S(f"s_add_u32 s{sTMP+1}, s{sT}, {j*1024}"))
        its.append(Item('M', f"buffer_store_dwordx4 {vr(t+8)}, v{vT0}, s[{sP}:{sP+3}], s{sTMP+1} offen offset:{(j%4)*1024} sc1"))
        return its
    k = 0
    for m in range(4):
        lo = F[2 * m + 2][0]['first'] + 4; hi = F[2 * m + 3][-1]['first'] + 2
        its = []
        for qb in range(3): its += gran(m, qb, k); k += 1
        addmem(its, lo, hi)
    p.cur += st.emit(name="oproj")
    for it in mem:
        if it.kind == 'M' and it.ins[0].op == 'buffer_load_dwordx4' and it.ins[0].dst:
            d = set(it.ins[0].dst)
            fu = min(g for g, (h, m) in enumerate(st.mf) if d & set(m.src))
            assert it.gap < fu, (it.ins[0].text, it.gap, fu)
    if STSET == 'o': stamp(p, 4)
    for qb in range(3): flat(p, gran(4, qb, k)); k += 1

def final_reduce(p):
    p(f"""
s_lshl_b32 s{sTMP}, s{sHG}, 10
v_add_u32 v2, s{sTMP}, v{vT0}
v_and_b32 v3, 15, v0
v_mul_u32_u24 v3, 1280, v3
v_bfe_u32 v4, v0, 4, 1
v_lshl_add_u32 v3, v4, 5, v3
v_lshrrev_b32 v4, 5, v0
v_lshl_add_u32 v3, v4, 4, v3
s_mov_b32 s{sT}, 0xffff0000
v_mov_b32 v{vTK}, s{sTK2}
v_mov_b32 v{vTK+1}, s{sTK2+1}
s_waitcnt vmcnt(0)
""")
    p.cur += set_flag(vF2, sHG)
    stamp(p, 10)
    poll(p, vF2, sTK2, "sp2")
    for i in range(2):
        if i == 1: p(f"s_cmp_eq_u32 s{sHG}, 7\ns_cselect_b32 s{sTMP+2}, 0x1000000, 0")
        for g in range(8):
            p(f"s_mov_b32 s{sTMP+1}, {g*15360}" if i == 0 else f"s_add_u32 s{sTMP+1}, s{sTMP+2}, {g*15360 + 8192}")
            p(f"buffer_load_dwordx4 {vr(32+(i*8+g)*4)}, v2, s[{sP}:{sP+3}], s{sTMP+1} offen sc1")
    for i in range(2):
        acc = 100 + i * 8
        p(f"""
s_add_u32 s{sTMP}, s{sHG}, {8*i}
s_mul_i32 s{sTMP+1}, s{sTMP}, 11
s_lshr_b32 s{sTMP+1}, s{sTMP+1}, 5
s_mul_i32 s{sTMP+3}, s{sTMP+1}, 3
s_sub_u32 s{sTMP+3}, s{sTMP}, s{sTMP+3}
s_mul_i32 s{sTMP+3}, s{sTMP+3}, {16*1280}
s_lshl_b32 s{sTMP+1}, s{sTMP+1}, 6
s_add_u32 s{sTMP+1}, s{sTMP+1}, s{sTMP+3}
""")
        if i == 1: p(f"s_add_u32 s{sTMP+1}, s{sTMP+1}, s{sTMP+2}")
        for g in range(8):
            b = 32 + (i * 8 + g) * 4
            for r in range(4):
                if g == 0:
                    p(f"v_lshlrev_b32 v{acc+2*r}, 16, v{b+r}\nv_and_b32 v{acc+2*r+1}, s{sT}, v{b+r}")
                else:
                    p(f"v_lshlrev_b32 v{120+2*r}, 16, v{b+r}\nv_and_b32 v{121+2*r}, s{sT}, v{b+r}")
            if g:
                for r in range(8): p(f"v_add_f32 v{acc+r}, v{acc+r}, v{120+r}")
        o = 132 + 4 * i
        for r in range(4): p(f"v_cvt_pk_bf16_f32 v{o+r}, v{acc+2*r}, v{acc+2*r+1}")
        p(f"v_permlane16_swap_b32 v{o}, v{o+2}\nv_permlane16_swap_b32 v{o+1}, v{o+3}")
        p(f"buffer_store_dwordx4 {vr(o)}, v3, s[{sOUT}:{sOUT+3}], s{sTMP+1} offen {OUTP}")
    bump_epoch(p, vF1, sTK1, sHL)
    bump_epoch(p, vF2, sTK2, sHG)

def store_stamps(p):
    if not STAMP: return
    p("s_waitcnt vmcnt(0)")
    stamp(p, 11)
    if DBGST is not None:
        lab = p.newlabel("L_nodbg")
        p("s_load_dwordx2 s[96:97], s[0:1], 48\ns_waitcnt lgkmcnt(0)")
        srd(p, sK, 96, 97, 256)
        p(f"s_cmp_lg_u32 s{sWAVE}, 0\ns_cbranch_scc1 {lab}\ns_cmp_lg_u32 s2, {DBGST}\ns_cbranch_scc1 {lab}")
        p("s_mov_b64 exec, 1\nv_mov_b32 v2, 0")
        for i in range(NSTAMP):
            p(f"s_sub_u32 s{sTMP}, s{sSTAMP+2*i}, s{sSTAMP}\nv_mov_b32 v4, s{sTMP}")
            p(f"buffer_store_dword v4, v2, s[{sK}:{sK+3}], 0 offen offset:{4*i}\ns_nop 1")
        p(f"s_sub_u32 s{sTMP}, s82, s80\nv_mov_b32 v4, s{sTMP}\nbuffer_store_dword v4, v2, s[{sK}:{sK+3}], 0 offen offset:48\ns_nop 1")
        p(f"s_sub_u32 s{sTMP}, s100, s88\nv_mov_b32 v4, s{sTMP}\nbuffer_store_dword v4, v2, s[{sK}:{sK+3}], 0 offen offset:52\ns_waitcnt vmcnt(0)")
        p(f"{lab}:")
        return
    p(f"s_mov_b32 s{sTMP}, 0")
    ws_srd(p, sK, sTMP, STAMP_OFF, 65536)
    lab = p.newlabel("L_nost")
    p("s_waitcnt lgkmcnt(0)")
    p(f"s_cmp_lg_u32 s{sWAVE}, 0\ns_cbranch_scc1 {lab}")
    p(f"s_lshl_b32 s{sTMP}, s2, 7\nv_mov_b32 v2, s{sTMP}")
    p("s_mov_b64 exec, 1")
    for i in range(NSTAMP):
        p(f"v_mov_b32 v4, s{sSTAMP+2*i}\nv_mov_b32 v5, s{sSTAMP+2*i+1}")
        p(f"buffer_store_dwordx2 v[4:5], v2, s[{sK}:{sK+3}], 0 offen offset:{8*i}")
        p("s_nop 1")
    for i, r in enumerate(CST.values()):
        p(f"v_mov_b32 v4, s{r}\nv_mov_b32 v5, s{r+1}")
        p(f"buffer_store_dwordx2 v[4:5], v2, s[{sK}:{sK+3}], 0 offen offset:{8*(NSTAMP+i)}")
        p("s_nop 1")
    p("s_waitcnt vmcnt(0)")
    p(f"{lab}:")

def kernel(p):
    set_sched()
    name = NAME + "_kernel"
    p.raw(f".globl {name}\n.p2align 8\n.type {name},@function\n{name}:")
    p("s_cmp_ge_u32 s2, 256\ns_cbranch_scc1 L_end")
    stamp(p, 0)
    p(f"""
s_load_dwordx8 s[76:83], s[0:1], 0
s_load_dwordx8 s[84:91], s[0:1], 32
v_lshrrev_b32 v1, 6, v0
v_and_b32 v0, 63, v0
v_readfirstlane_b32 s{sWAVE}, v1
s_and_b32 s{sHG}, s2, 7
s_lshr_b32 s{sB}, s2, 5
s_bfe_u32 s{sHL}, s2, 0x20003
s_lshl_b32 s{sH}, s{sHG}, 2
s_add_u32 s{sH}, s{sH}, s{sHL}
s_mul_i32 s{sM0W}, s{sWAVE}, 3072
""")
    if KSTAG:
        p(f"s_mul_i32 s{sKK}, s2, 11\ns_lshr_b32 s{sTMP+2}, s2, 5\ns_add_u32 s{sKK}, s{sKK}, s{sTMP+2}\ns_and_b32 s{sKK}, s{sKK}, 31\ns_mul_i32 s{sKK}, s{sKK}, {SLOT}")
    else:
        p(f"s_mov_b32 s{sKK}, 0")
    p(f"s_mov_b32 s{sKOFF}, s{sKK}")
    if STAG and PH:
        tab = sum((((k % PH) * 10 + PH // 2) // PH) << (4 * k) for k in range(11))
        p(f"""
s_add_u32 s{sTMP+1}, s{sB}, s{sHL}
s_lshl_b32 s{sTMP+1}, s{sTMP+1}, 2
s_mov_b32 s96, {tab & 0xffffffff}
s_mov_b32 s97, {tab >> 32}
s_lshr_b64 s[96:97], s[96:97], s{sTMP+1}
s_and_b32 s{sTMP+1}, s96, 15
s_lshl_b32 s{sXOFF}, s{sTMP+1}, 7
s_mul_i32 s{sWOFF}, s{sTMP+1}, {64*12288}
""")
    elif STAG:
        p(f"""
s_mul_i32 s{sTMP+1}, s{sHL}, 5
s_lshr_b32 s{sTMP+1}, s{sTMP+1}, 1
s_mul_i32 s{sTMP+2}, s{sB}, 5
s_lshr_b32 s{sTMP+2}, s{sTMP+2}, 2
s_add_u32 s{sTMP+1}, s{sTMP+1}, s{sTMP+2}
s_cmp_ge_u32 s{sTMP+1}, 10
s_cselect_b32 s{sTMP+2}, 10, 0
s_sub_u32 s{sTMP+1}, s{sTMP+1}, s{sTMP+2}
s_lshl_b32 s{sXOFF}, s{sTMP+1}, 7
s_mul_i32 s{sWOFF}, s{sTMP+1}, {64*12288}
""")
    else:
        p(f"s_mov_b32 s{sXOFF}, 0\ns_mov_b32 s{sWOFF}, 0")
    setup_dma(p)
    srd(p, sX, 76, 77, 1536 * 1280)
    p(f"s_mov_b32 s{sTMP+1}, 0")
    ws_srd(p, sF, sTMP + 1, FLAG_OFF, F2BASE + 128 * 128)
    p(f"""
s_lshl_b32 s{sTMP+1}, s{sB}, 3
s_add_u32 s{sTMP+1}, s{sTMP+1}, s{sHG}
s_lshl_b32 s{sTMP+1}, s{sTMP+1}, 2
s_add_u32 s{sTMP+1}, s{sTMP+1}, s{sWAVE}
s_lshl_b32 s{sTMP+1}, s{sTMP+1}, 7
s_lshl_b32 s{sTMP+2}, s{sB}, 2
s_add_u32 s{sTMP+2}, s{sTMP+2}, s{sHL}
s_lshl_b32 s{sTMP+2}, s{sTMP+2}, 2
s_add_u32 s{sTMP+2}, s{sTMP+2}, s{sWAVE}
s_lshl_b32 s{sTMP+2}, s{sTMP+2}, 7
s_add_u32 s{sTMP+2}, s{sTMP+2}, {F2BASE}
v_and_b32 v248, 3, v0
v_lshl_add_u32 v{vF1}, v248, 3, s{sTMP+1}
v_and_b32 v248, 7, v0
v_lshl_add_u32 v{vF2}, v248, 3, s{sTMP+2}
s_add_u32 s{sTMP+1}, s{sTMP+1}, 96
s_add_u32 s{sTMP+2}, s{sTMP+2}, 96
s_load_dwordx2 s[{sTK1}:{sTK1+1}], s[96:97], s{sTMP+1}
s_load_dwordx2 s[{sTK2}:{sTK2+1}], s[96:97], s{sTMP+2}
""")
    lab = p.newlabel("L_nopf")
    p(f"s_cmp_lg_u32 s{sWAVE}, 0\ns_cbranch_scc1 {lab}")
    if CODEPF:
        p(f"""
s_mov_b64 exec, -1
s_getpc_b64 s[98:99]
s_lshr_b32 s{sTMP+1}, s2, 3
s_mul_i32 s{sTMP+1}, s{sTMP+1}, {12*128}
v_lshlrev_b32 v252, 7, v0
v_add_u32 v252, s{sTMP+1}, v252
v_mov_b32 v253, s99
v_add_co_u32 v252, vcc, s98, v252
v_addc_co_u32 v253, vcc, 0, v253, vcc
s_mov_b64 exec, 0xfff
""")
        p.flush()
        p.raw("global_load_dword v254, v[252:253], off")
    p(f"s_mov_b64 exec, -1\n{lab}:")
    p(f"""
s_lshl_b32 s{sTMP+2}, s{sB}, 5
s_add_u32 s{sTMP+2}, s{sTMP+2}, s{sH}
s_mul_i32 s{sTMP+1}, s{sTMP+2}, 393216
""")
    addptr(p, 78, sTMP + 1); addptr(p, 80, sTMP + 1)
    srd(p, sK, 78, 79, 393216); srd(p, sV, 80, 81, 393216)
    p(f"s_sub_u32 s{sTMP+2}, s{sTMP+2}, s{sHL}\ns_mul_i32 s{sTMP+1}, s{sTMP+2}, 73728")
    ws_srd(p, sO, sTMP + 1, 0, 4 * 73728)
    p(f"s_mul_i32 s{sTMP+1}, s{sHG}, 1536")
    addptr(p, 82, sTMP + 1)
    srd(p, sWq, 82, 83, 639 * 12288 + 1536)
    p(f"s_mul_i32 s{sTMP+1}, s{sHG}, {768*1280}\ns_mul_i32 s{sTMP+2}, s{sHL}, 320\ns_add_u32 s{sTMP+1}, s{sTMP+1}, s{sTMP+2}")
    addptr(p, 84, sTMP + 1)
    srd(p, sWo, 84, 85, 767 * 1280 + 320)
    pool = Pool(12)
    qproj(p, pool)
    stamp(p, 5)
    if STSET != 'Q':
        attention(p, pool)
        stamp(p, 7)
        o_epilogue(p)
        oproj(p)
        final_reduce(p)
    store_stamps(p)
    p("L_end:\ns_endpgm")
    for t in OUTL: p.raw(t)
    for tr, ret, cur in TRAMPS: p.raw(f"{tr}:\ns_call_b64 s[98:99], L_rare{cur}\ns_branch {ret}")
    rare_path(p, "L_rare0", 0)
    rare_path(p, "L_rare1", 1)
    p.raw(".fill 64, 4, 0xbf800000" if STSET != 'Q' else ".fill 12288, 4, 0xbf800000")
    return kernel_desc(name, vgpr=512, accum=256)

def build(path):
    p = Prog()
    p.raw("""; GQA block (q-proj, attention over cached K/V, out-proj) for gfx950: one fused kernel
; @launch grid=(256,1,1) block=(256,1,1) lds=163840
.amdgcn_target "amdgcn-amd-amdhsa--gfx950"
.text""")
    d = kernel(p)
    p.raw('.section .rodata,"a"\n.p2align 6\n' + d)
    txt = p.text()
    if NODMA:
        txt = "\n".join(l for l in txt.split("\n") if not (l.startswith("buffer_load_dwordx4") and (NODMA == 2 or l.endswith("lds"))))
        txt = txt.replace("s_cbranch_vccnz L_tramp", "s_cbranch_execz L_tramp")
    if DROP:
        out = []; on = False
        for l in txt.split("\n"):
            if l.startswith("L_attA") or l.startswith("L_attS"): on = True
            if l.startswith("L_att27") or l.startswith("L_slow"): on = False
            if on and any(l.startswith(d) for d in DROP): continue
            out.append(l)
        txt = "\n".join(out).replace("s_cbranch_vccnz L_tramp", "s_cbranch_execz L_tramp")
    if NOKV:
        txt = "\n".join(l for l in txt.split("\n") if not (l.startswith("buffer_load_dwordx4") and ("s[4:7]" in l or "s[8:11]" in l)))
    if NOBAR:
        txt = txt.replace("s_barrier\n", "")
    open(path, "w").write(txt)
    if VERB:
        for w in WARN: print("WARN", w)
    ls = txt.split("\n")
    marks = [k for k, l in enumerate(ls) if l.endswith(":") and not l.startswith("L_ret")]
    for a, b in zip(marks, marks[1:] + [len(ls)]):
        seg = [l for l in ls[a:b] if l and not l.startswith(".") and not l.startswith(" ")]
        c, nm = estimate(seg)
        if nm: print(f"{ls[a]:28s} est {c:6d} cyc, mfma {nm:4d} ({16*nm})")

if __name__ == "__main__":
    for a in sys.argv[2:]:
        k, v = a.split("=", 1)
        globals()[k] = eval(v)
    build(sys.argv[1])
```

```python
import sys, math, struct
from sched import *
from asmlib import kernel_desc

NAME = "standalone__gqa_block_cached__near_ridge"
SLOT = 12288
GSZ = 20480
NT = "nt"
CODEPF = True
PH = 3
VMLIM = 2
DMAHI = 30
SNAKE = True
KSTAG = True
NDB = 4
NBM = 3
NST = 4
NEO = 2
SCHED = 1
KVSPAN = 120
PLAN = {27: ['kv', 'r'], 28: ['p'], 29: [0, 1], 30: [2, 3, 4], 31: [5, 6]}
OCH = [(0,'W7'),(10,'F0'),(56,'W8'),(84,'P0'),(100,'F1'),(104,'C0'),(108,'b3'),(124,'W9'),(150,'b4'),(176,'S4'),(184,'S5'),(192,'b5'),(210,'W10'),(226,'P1'),(256,'C1'),(260,'b6'),
       (274,'F2'),(280,'W11'),(300,'b7'),(320,'P2'),(322,'b8'),(350,'C2'),(354,'b9'),(380,'b10'),(405,'b11')]
LATESET = True
LOCAL = True
NLOC = 4
NBA = 3
FAPOS = 105
GS = 6
PART_OFF = 20 << 20
FLAG_OFF = 40 << 20
WS_SIZE = 41 << 20
STAMP_OFF = 64 << 20
ST = {}
NSTAMP = 12
DBGST = None
TRACE = 0
NODMA = 0
QONLY = 0
VERB = 0
OOB = 0x7f000000

def f32(x): return "0x%08x" % struct.unpack("<I", struct.pack("<f", x))[0]
def vr(b, n=4): return f"v[{b}:{b+n-1}]"
def ar(b, n=4): return f"a[{b}:{b+n-1}]"
def sr(b, n=4): return f"s[{b}:{b+n-1}]"
MF = "v_mfma_f32_16x16x32_bf16"
def srd(p, d, lo, nbytes):
    p(f"s_mov_b32 s{d}, s{lo}\ns_and_b32 s{d+1}, s{lo+1}, 0xffff\ns_mov_b32 s{d+2}, {nbytes}\ns_mov_b32 s{d+3}, 0x00020000")

sLTHR = 3
sK, sV, sWq, sX, sWS, sWo, sOUT = 4, 8, 12, 16, 20, 24, 28
sWAVE, sB, sSC, sHG, sHL = 32, 33, 34, 35, 36
sM0W, sKOFF, sWR, sRD, sT, sKK = 37, 38, 39, 40, 41, 42
sWOFF, sXOFF, sWW = 43, 44, 45
sTMP = 46
sSTAMP = 52
sHI = 76
sTK1, sTK2 = 92, 94
TOKC = (0x9e3779b9, 0x7f4a7c15)
F2BASE = 256 * 256
CST = {'Qend': 80, 'Lend': 82, 'C0b': 88, 'ACK': 100}
def stp(name):
    r = []
    if name in ST: r.append(I(f"s_memrealtime s[{sSTAMP+2*ST[name]}:{sSTAMP+2*ST[name]+1}]"))
    if ST and name in CST: r.append(I(f"s_memtime s[{CST[name]}:{CST[name]+1}]"))
    return r

vKD, vVD, vWD = 2, 5, 8
vXD = 11
vWOD, vPWO = 11, 16
vKL, vVL = 17, 19
vKA, vVA = 23, 25
vXR = 29
vOL, vPT = 30, 31
vT0 = 31
vDUM = 248
vF1, vF2 = 250, 251
vVB = 252
vWOL, vOUT = 252, 254
vACC = 32; vQ = 176
vS = (32, 56); vP = (80, 92); vNM = 104; vE = 120; vCK = 130; vR = 132; vL = (144, 156)
NE = 5
vB = 32; vRC = 136; vTK = 6; vTK2 = 18; vFLV = 28
vWA = (20, 22, 24, 26)
aO = 0; aPOOL = 144; aC = 0; aX = 0; NXB = 6; aONE = 240; aPARK = 244
PARK = [vWOD + j for j in range(5)] + [vPWO, vWOL, vWOL + 1, vOL, vPT, vOUT]
def qfrag(qb, s): return vQ + (qb * 6 + s) * 4
def qacc(db, qb): return vACC + (db * 3 + qb) * 4
def oacc(db, qb): return aO + (db * 3 + qb) * 4
def cacc(nb, qb): return aC + (nb * 3 + qb) * 4
def sreg(buf, qb, kb): return vS[buf] + (qb * 2 + kb) * 4
def bfrag(u, qb):
    if u < 6: return vr(vQ + (u * 3 + qb) * 4)
    k = (u - 6) * 3 + qb
    if k < 36: return vr(vB + k * 4)
    k -= 36
    return ar(120 + k * 4) if k < 6 else ar(192 + (k - 6) * 4)

XS0 = 5
def xpair(c): return XS0 + 2 * (c % 2)
WRING = [9, 10, 11, 1, 12]
def wslot(u): return WRING[u % 5]
def kvslot(kind, i): return 2 * (i % 6) if kind == 'K' else 2 * ((i + 1) % 6) + 1
def gic(G): return (0, G) if G < 3 else (1 + (G - 3) % 3, (G - 3) // 3)
def goff(G): return ((G + 4) % 8) * GSZ
TRAMPS = []; OUTL = []

def tile_rows(p, t, j):
    p(f"""
v_add_u32 v{t+2}, {8*j}, v{t}
v_mul_u32_u24 v{t+3}, 11, v{t+2}
v_lshrrev_b32 v{t+3}, 5, v{t+3}
v_mul_u32_u24 v{t+4}, 3, v{t+3}
v_sub_u32 v{t+4}, v{t+2}, v{t+4}
v_add_u32 v{t+3}, s{sTMP}, v{t+3}
v_and_b32 v{t+5}, 6, v{t+3}
v_xor_b32 v{t+5}, v{t+5}, v{t+1}
v_lshlrev_b32 v{t+5}, 4, v{t+5}
""")
def setup_first(p):
    t = 240
    p(f"""
v_lshrrev_b32 v{t}, 3, v0
v_and_b32 v{t+1}, 7, v0
s_lshl_b32 s{sTMP}, s{sWAVE}, 3
s_lshl_b32 s{sTMP+1}, s{sB}, 2
s_add_u32 s{sTMP+1}, s{sTMP+1}, s{sWAVE}
s_mul_i32 s{sTMP+4}, s{sTMP+1}, {48*1280}
s_lshl_b32 s{sTMP+2}, s{sHG}, 2
s_add_u32 s{sTMP+5}, s{sTMP+2}, s{sHL}
s_mul_i32 s{sTMP+2}, s{sTMP+5}, 384
""")
    for half in range(2):
        p(f"""
v_lshrrev_b32 v{t+2}, 1, v{t}
v_add_u32 v{t+2}, {4*half}, v{t+2}
v_xor_b32 v{t+2}, v{t+2}, v{t+1}
v_lshlrev_b32 v{t+2}, 4, v{t+2}
v_add_u32 v{t+3}, {8*half}, v{t}
v_mul_u32_u24 v{t+3}, 1280, v{t+3}
v_add3_u32 v{vXD+half}, v{t+2}, v{t+3}, s{sTMP+4}
v_add_u32 v{vXD+2+half}, {20480-1024}, v{vXD+half}
v_add_u32 v{vXD+4+half}, {2*(20480-1024)}, v{vXD+half}
""")
    for j in range(3):
        tile_rows(p, t, j)
        p(f"""
v_bfe_u32 v{t+6}, v{t+3}, 2, 2
v_lshlrev_b32 v{t+6}, 3, v{t+6}
v_lshrrev_b32 v{t+7}, 4, v{t+3}
v_lshl_add_u32 v{t+6}, v{t+7}, 2, v{t+6}
v_and_b32 v{t+7}, 3, v{t+3}
v_add_u32 v{t+6}, v{t+6}, v{t+7}
v_mul_u32_u24 v{t+6}, 12288, v{t+6}
v_lshl_add_u32 v{t+6}, v{t+4}, 7, v{t+6}
v_add3_u32 v{t+6}, v{t+6}, v{t+5}, s{sTMP+2}
v_subrev_u32 v{vWD+j}, {1024*j}, v{t+6}
""")
def setup_reads(p):
    t = 232
    p(f"""
v_and_b32 v{t}, 15, v0
v_lshrrev_b32 v{t+1}, 4, v0
v_lshrrev_b32 v{t+2}, 1, v{t}
v_xor_b32 v{t+2}, v{t+2}, v{t+1}
v_lshlrev_b32 v{t+5}, 4, v{t+2}
v_and_b32 v{t+3}, 7, v{t}
v_lshl_add_u32 v{t+5}, v{t+3}, 7, v{t+5}
v_lshrrev_b32 v{t+3}, 3, v{t}
v_mul_u32_u24 v{t+3}, 12288, v{t+3}
v_add3_u32 v{t+5}, v{t+5}, v{t+3}, s{sM0W}
v_add_u32 v{vXR}, {XS0*SLOT}, v{t+5}
v_xor_b32 v{vXR+1}, 64, v{vXR}
v_bfe_u32 v{t+3}, v{t+2}, 1, 1
v_and_b32 v{t+4}, 1, v{t+2}
v_lshl_add_u32 v{t+3}, v{t+4}, 1, v{t+3}
v_and_b32 v{t+4}, 4, v{t+2}
v_or_b32 v{t+3}, v{t+3}, v{t+4}
v_lshlrev_b32 v{t+3}, 4, v{t+3}
v_mul_u32_u24 v{t+4}, 384, v{t}
v_add_u32 v{vKL}, v{t+3}, v{t+4}
v_xor_b32 v{vKL+1}, 64, v{vKL}
v_mov_b32 v{vKA}, v{vKL}
v_mov_b32 v{vKA+1}, v{vKL+1}
v_lshrrev_b32 v{t+2}, 2, v0
v_mul_u32_u24 v{t+3}, 384, v{t+2}
v_bfe_u32 v{t+4}, v{t+2}, 1, 2
v_lshl_add_u32 v{t+3}, v{t+4}, 5, v{t+3}
v_and_b32 v{t+4}, 3, v0
v_lshl_add_u32 v{vVL}, v{t+4}, 3, v{t+3}
v_xor_b32 v{vVL+1}, 32, v{vVL}
v_xor_b32 v{vVL+2}, 64, v{vVL}
v_xor_b32 v{vVL+3}, 96, v{vVL}
""")
def setup_rest(p):
    t = 240
    p(f"""
s_lshl_b32 s{sTMP+1}, s{sB}, 3
s_add_u32 s{sTMP+1}, s{sTMP+1}, s{sHG}
s_lshl_b32 s96, s{sTMP+1}, 2
s_add_u32 s{sTMP+1}, s96, s{sWAVE}
s_lshl_b32 s{sTMP+1}, s{sTMP+1}, 8
s_add_u32 s{sTMP+1}, s{sTMP+1}, {FLAG_OFF}
s_lshl_b32 s{sTMP+2}, s{sB}, 2
s_add_u32 s{sTMP+2}, s{sTMP+2}, s{sHL}
s_lshl_b32 s{sTMP+2}, s{sTMP+2}, 2
s_add_u32 s97, s{sTMP+2}, s{sWAVE}
s_lshl_b32 s{sTMP+2}, s97, 8
s_add_u32 s{sTMP+2}, s{sTMP+2}, {FLAG_OFF + F2BASE}
v_and_b32 v{t+2}, 3, v0
v_lshl_add_u32 v{vF1}, v{t+2}, 3, s{sTMP+1}
v_and_b32 v{t+2}, 15, v0
v_lshl_add_u32 v{vF2}, v{t+2}, 3, s{sTMP+2}
s_add_u32 s{sTMP+1}, s{sTMP+1}, 96
s_add_u32 s{sTMP+2}, s{sTMP+2}, 128
s_load_dwordx2 s[{sTK1}:{sTK1+1}], s[90:91], s{sTMP+1}
s_load_dwordx2 s[{sTK2}:{sTK2+1}], s[90:91], s{sTMP+2}
s_add_u32 s{sTMP+1}, s96, s{sHL}
s_mul_i32 s{sTMP+1}, s{sTMP+1}, 393216
s_add_u32 s78, s78, s{sTMP+1}
s_addc_u32 s79, s79, 0
s_add_u32 s80, s80, s{sTMP+1}
s_addc_u32 s81, s81, 0
""")
    srd(p, sK, 78, 393216); srd(p, sV, 80, 393216)
    srd(p, sWS, 90, WS_SIZE); srd(p, sWo, 84, 6144 * 1280); srd(p, sOUT, 86, 1536 * 1280)
    for j in range(3):
        tile_rows(p, t, j)
        p(f"""
v_lshl_add_u32 v{t+6}, v{t}, 7, v{t+5}
v_add_u32 v{vVD+j}, s{sM0W}, v{t+6}
v_bfe_u32 v{t+5}, v{t+3}, 2, 1
v_and_b32 v{t+6}, 2, v{t+3}
v_or_b32 v{t+5}, v{t+5}, v{t+6}
v_lshrrev_b32 v{t+6}, 1, v{t+3}
v_and_b32 v{t+6}, 4, v{t+6}
v_or_b32 v{t+5}, v{t+5}, v{t+6}
v_xor_b32 v{t+5}, v{t+5}, v{t+1}
v_lshlrev_b32 v{t+5}, 4, v{t+5}
v_lshl_add_u32 v{t+5}, v{t}, 7, v{t+5}
v_add_u32 v{vKD+j}, s{sM0W}, v{t+5}
""")
    t = 232
    park = lambda r, v: p(f"v_accvgpr_write_b32 a{aPARK + PARK.index(r)}, v{v}")
    u = 224
    p(f"""
s_mul_i32 s{sTMP+1}, s{sHG}, {768*1280}
s_mul_i32 s{sTMP+2}, s{sHL}, 320
s_mul_i32 s{sTMP+3}, s{sWAVE}, {16*1280}
s_add_u32 s{sTMP+3}, s{sTMP+3}, s{sTMP+1}
s_add_u32 s{sTMP+3}, s{sTMP+3}, s{sTMP+2}
""")
    for j in range(5):
        p(f"""
v_add_u32 v{u}, {64*j}, v0
v_mul_u32_u24 v{u+1}, 205, v{u}
v_lshrrev_b32 v{u+1}, 12, v{u+1}
v_mul_u32_u24 v{u+2}, 20, v{u+1}
v_sub_u32 v{u+2}, v{u}, v{u+2}
v_lshrrev_b32 v{u+3}, 1, v{u+1}
v_and_b32 v{u+3}, 2, v{u+3}
v_xor_b32 v{u+2}, v{u+2}, v{u+3}
v_mul_u32_u24 v{u+1}, 1280, v{u+1}
v_lshl_add_u32 v{u+1}, v{u+2}, 4, v{u+1}
v_add_u32 v{u+1}, s{sTMP+3}, v{u+1}
v_subrev_u32 v{u+1}, {1024*(j%4)}, v{u+1}
""")
        park(vWOD + j, u + 1)
    p(f"""
s_lshr_b32 s{sTMP+3}, s2, 3
s_lshl_b32 s{sTMP+3}, s{sTMP+3}, 2
s_add_u32 s{sTMP+3}, s{sTMP+3}, s{sWAVE}
s_mul_i32 s{sTMP+3}, s{sTMP+3}, {60*128}
s_add_u32 s{sTMP+3}, s{sTMP+3}, s{sTMP+1}
v_lshlrev_b32 v{u}, 7, v0
v_add_u32 v{u}, s{sTMP+3}, v{u}
v_cmp_gt_u32 vcc, 60, v0
v_mov_b32 v{u+1}, {OOB}
v_cndmask_b32 v{u}, v{u+1}, v{u}, vcc
""")
    park(vPWO, u)
    p(f"""
v_mul_u32_u24 v{u}, 320, v{t+2}
v_lshl_add_u32 v{u}, v{t+4}, 3, v{u}
v_and_b32 v{u+1}, 16, v0
v_lshlrev_b32 v{u+1}, 1, v{u+1}
v_add_u32 v{u+2}, v{u}, v{u+1}
v_sub_u32 v{u+3}, v{u}, v{u+1}
""")
    park(vWOL, u + 2); park(vWOL + 1, u + 3)
    p(f"""
s_mul_i32 s96, s96, 73728
s_add_u32 s96, s96, s{sM0W}
s_mul_i32 s97, s97, {8*15360}
s_add_u32 s97, s97, {PART_OFF}
v_lshlrev_b32 v{u}, 4, v0
v_add_u32 v{u+2}, s96, v{u}
v_add_u32 v{u+3}, s97, v{u}
""")
    park(vOL, u + 2); park(vPT, u + 3)
    p(f"""
s_add_u32 s{sTMP+2}, s{sTMP+2}, s{sTMP+4}
v_mul_u32_u24 v{u}, 1280, v{t}
v_add3_u32 v{u}, v{u}, v{u+1}, s{sTMP+2}
v_lshrrev_b32 v{u+2}, 5, v0
v_lshl_add_u32 v{u}, v{u+2}, 4, v{u}
""")
    park(vOUT, u)
    p(f"v_mov_b32 v{u}, 0x3f803f80")
    for r in range(4): p(f"v_accvgpr_write_b32 a{aONE+r}, v{u}")
    for i in range(4):
        p(f"s_add_u32 s{sHI+i}, s{sHL}, {i}\ns_and_b32 s{sHI+i}, s{sHI+i}, 3\ns_mul_i32 s{sHI+i}, s{sHI+i}, 3")
    SC = math.log2(math.e) / math.sqrt(192.0)
    p(f"""
s_mul_i32 s{sWW}, s{sWAVE}, 5120
s_mov_b32 s{sLTHR}, {f32(LTHR)}
s_mov_b32 s{sSC}, {f32(SC)}
s_add_u32 s{sWR}, s{sM0W}, {10*SLOT}
s_mov_b32 s{sRD}, 0
s_mov_b32 s{sT}, 1
""")

def S(t, **k): return Item('S', t, **k)
def V(t, **k): return Item('V', t, **k)
def wrap0(s, inc, lim, zero="0"):
    return [S(f"s_add_u32 s{s}, s{s}, {inc}"), S(f"s_cmp_ge_u32 s{s}, {lim}\ns_cselect_b32 s{s}, {zero}, s{s}")]
def dma_tile(kind, pre, so, tag=None, post=()):
    vd, srn, pol = {'K': (vKD, sK, NT), 'V': (vVD, sV, NT), 'W': (vWD, sWq, "")}[kind]
    g = [S(x) for x in pre]
    for j in range(3):
        g.append(Item('M', f"buffer_load_dwordx4 v{vd+j}, {sr(srn)}, {so} offen offset:{1024*j} {pol} lds", tag=tag))
    return g + list(post)
def dma_kv_static(kind, i):
    so = sKK if kind == 'K' else sKOFF
    return dma_tile(kind, [f"s_add_u32 m0, s{sM0W}, {kvslot(kind,i)*SLOT}"], f"s{so}", f"{kind}{i}", wrap0(so, SLOT, 32 * SLOT))
def dma_w(u):
    return dma_tile('W', [f"s_add_u32 m0, s{sM0W}, {wslot(u)*SLOT}"], f"s{sWOFF}", f"W{u}", wrap0(sWOFF, 32 * 12288, 640 * 12288))
def dma_x(c):
    g = []
    for half in range(2):
        g.append(S(f"s_add_u32 m0, s{sM0W}, {(xpair(c)+half)*SLOT}"))
        for qb in range(3):
            g.append(Item('M', f"buffer_load_dwordx4 v{vXD+2*qb+half}, {sr(sX)}, s{sXOFF} offen offset:{1024*qb} lds", tag=f"X{c}"))
    return g + wrap0(sXOFF, 128, 1280)
def kv_issue(nok=False):
    dk = dma_tile('K', [f"s_mov_b32 m0, s{sWR}"], f"s{sKK}") if not nok else []
    dv = dma_tile('V', [f"s_add_u32 m0, s{sWR}, {SLOT}"], f"s{sKOFF}")
    if nok: return dv
    return dk + dv + [S(f"s_mov_b32 s{sKOFF}, s{sKK}")] + wrap0(sKK, SLOT, 32 * SLOT) + wrap0(sWR, 2 * SLOT, 12 * SLOT, f"s{sM0W}")
def dma_wo(G):
    sl = goff(G); i, c = gic(G)
    g = [S(f"s_add_u32 s{sWOFF}, s{sHI+i}, {c}"), S(f"s_mul_i32 s{sWOFF}, s{sWOFF}, {64*1280}")]
    for j in range(5):
        if j == 0: g.append(S(f"s_add_u32 m0, s{sWW}, {sl}"))
        if j == 4: g.append(S(f"s_add_u32 m0, s{sWW}, {sl+4096}"))
        g.append(Item('M', f"buffer_load_dwordx4 v{vWOD+j}, {sr(sWo)}, s{sWOFF} offen offset:{1024*(j%4)} lds", tag=f"G{G}"))
    return g
def xfrag(c, ks, qb): return aX + (c % NXB) * 24 + (ks * 3 + qb) * 4
def read_x(c):
    off = (xpair(c) - XS0) * SLOT
    return [Item('L', f"ds_read_b128 {ar(xfrag(c,ks,qb))}, v{vXR+ks} offset:{off + qb*1024}") for ks in range(2) for qb in range(3)]
def flat(p, items):
    for it in items: p.cur += it.ins
def snake(mf, k): return mf[::-1] if (SNAKE and k & 1) else mf
class Pool:
    def __init__(self, size): self.n = 0; self.size = size
    def next(self):
        r = aPOOL + 4 * (self.n % self.size); self.n += 1; return r
def vunit_reads(buf, db, imm, va):
    return [f"ds_read_b64_tr_b16 {ar(buf,2)}, v{va+(db&3)} offset:{imm + (db>>2)*128}",
            f"ds_read_b64_tr_b16 {ar(buf+2,2)}, v{va+(db&3)} offset:{imm + (db>>2)*128 + 6144}"]

T = 4
RGAP = 6
class Stream:
    def __init__(self, tail=()):
        self.mf = []; self.items = []; self.resA = set()
        for u in tail: self.add_unit(u)
    def n(self): return len(self.mf)
    def add_unit(self, u):
        u['first'] = len(self.mf)
        if u.get('reads'): self.resA.add(len(self.mf) - 1)
        for k, m in enumerate(u['mf']): self.mf.append((u.get('head', []) if k == 0 else [], m))
    def reads(self, units, lo, hi, after=()):
        its = []
        tot = sum(len(u['reads']) for u in units); k = 0
        for u in units:
            g = lo + (hi - lo + 1) * k // tot
            for r in u['reads']:
                it = Item('L', r, lo=lo, hi=max(lo, min(hi, u['first'] - 5)), target=g, after=list(after) + ([(its[-1], 0)] if its else []))
                it.use = u['first']
                its.append(it); k += 1
        self.items += its
        return its
    def barrier(self, g, wait, after=()):
        w = Item('S', [x if isinstance(x, I) else I(x) for x in wait], lo=g, hi=g + 2, target=g, after=after)
        b = Item('S', "s_barrier", lo=g + 1, hi=g + 3, after=[(w, 1)])
        self.items += [w, b]
        return b
    def add(self, its): self.items += its; return its
    def emit(self, keep=0, name=""):
        mf = self.mf[:len(self.mf) - keep] if keep else self.mf
        out = pack(mf, self.items, self.resA, name)
        for it in self.items:
            if hasattr(it, 'use'):
                d = set(it.ins[0].dst)
                assert it.gap < it.use, (name, it.ins[0].text)
                for g in range(it.gap + 1, it.use):
                    assert not (d & set(self.mf[g][1].src)), ("pool WAR", name, it.ins[0].text, it.gap, g)
        return out

def qk_unit(pool, buf, kb, ds, c0, imm, k):
    pb = pool.next()
    mf = []
    for qb in range(3):
        d = sreg(buf, qb, kb)
        c = vr(d) if ds else (0 if c0 else vr(vNM + 4 * qb))
        mf.append(I(f"{MF} {vr(d)}, {ar(pb)}, {vr(qfrag(qb,ds))}, {c}"))
    return dict(reads=[f"ds_read_b128 {ar(pb)}, v{vKA+(ds&1)} offset:{imm + kb*6144 + (ds>>1)*128}"], mf=snake(mf, k))
def qk_units(pool, buf, imm, zero=()):
    return [qk_unit(pool, buf, kb, ds, kb in zero, imm, ds) for kb in range(2) for ds in range(6)]
def rs_unit(buf, zero=False):
    return dict(reads=None, mf=[I(f"{MF} {vr(vL[buf]+4*qb)}, {ar(aONE)}, {vr(vP[buf]+4*qb)}, {0 if zero else vr(vL[buf^1]+4*qb)}") for qb in range(3)])
def pv_units(pool, buf, imm, zero=False):
    units = []
    for db in range(12):
        pb = pool.next()
        z = zero and db < 12 - T
        mf = [I(f"{MF} {ar(oacc(db,qb))}, {ar(pb)}, {vr(vP[buf]+4*qb)}, {0 if z else ar(oacc(db,qb))}") for qb in range(3)]
        units.append(dict(reads=vunit_reads(pb, db, SLOT + imm, vVA), mf=snake(mf, db)))
    return units
PAIRS = [(qb, kb, h) for kb in range(2) for qb in range(3) for h in range(2)]
def softmax_items(buf, n0, n1, lo, hi, pre=None):
    ex = []; cv = []; ex0 = []
    for n in range(n0, n1):
        qb, kb, h = PAIRS[n]
        s = sreg(buf, qb, kb) + 2 * h
        e = vE + 2 * (n % NE)
        a = Item('E', f"v_exp_f32 v{e}, v{s}"); b = Item('E', f"v_exp_f32 v{e+1}, v{s+1}")
        if len(cv) >= NE: a.after.append((cv[-NE], 1))
        if pre:
            for k, x in enumerate((a, b)):
                sub = V(f"v_add_f32 v{s+k}, v{s+k}, v{vNM+4*qb}", lo=lo, hi=hi, after=[(pre, 1)])
                x.after.append((sub, 1)); ex0.append((sub, x))
        ex += [a, b]
        cv.append(V(f"v_cvt_pk_bf16_f32 v{vP[buf]+4*qb+2*kb+h}, v{e}, v{e+1}", lo=lo, hi=hi, after=[(b, 1)]))
    chain(ex, lo, hi - 1)
    for e in ex: e.hi = hi
    for k, c in enumerate(cv): c.target = ex[2 * k + 1].target + 1
    for sub, x in ex0: sub.target = max(lo, x.target - 2)
    return [s for s, _ in ex0] + ex + cv
SPLIT = 6
LTHR = 2.0 ** 40
def rowmax_text(buf, qb, d, t):
    s0, s1 = sreg(buf, qb, 0), sreg(buf, qb, 1)
    return [f"v_max3_f32 v{d}, v{s0}, v{s0+1}, v{s0+2}", f"v_max3_f32 v{t}, v{s1}, v{s1+1}, v{s1+2}",
            f"v_max3_f32 v{d}, v{d}, v{s0+3}, v{s1+3}", f"v_max_f32 v{d}, v{d}, v{t}",
            f"v_mov_b32 v{t}, v{d}", f"v_permlane32_swap_b32 v{d}, v{t}", f"v_max_f32 v{d}, v{d}, v{t}",
            f"v_mov_b32 v{t}, v{d}", f"v_permlane16_swap_b32 v{d}, v{t}", f"v_max_f32 v{d}, v{d}, v{t}"]
def rare_path(p, label, buf):
    p.reset_state()
    p(f"{label}:\ns_nop 15")
    for qb in range(3):
        d = vR + qb
        p("\n".join(rowmax_text(buf, qb, d, vR + 8)))
        p(f"v_max_f32 v{d}, 0, v{d}")
        for r in range(4): p(f"v_sub_f32 v{vNM+4*qb+r}, v{vNM+4*qb+r}, v{d}")
        for bb in (buf, buf ^ 1):
            for r in range(8): p(f"v_sub_f32 v{sreg(bb,qb,0)+r}, v{sreg(bb,qb,0)+r}, v{d}")
        p(f"v_exp_f32_e64 v{vR+4+qb}, -v{d}")
    for qb in range(3):
        for r in range(4): p(f"v_mul_f32 v{vL[buf^1]+4*qb+r}, v{vL[buf^1]+4*qb+r}, v{vR+4+qb}")
        for r in [oacc(db, qb) + r for db in range(12) for r in range(4)]:
            p(f"v_accvgpr_read_b32 v{vR+9}, a{r}\nv_mul_f32 v{vR+9}, v{vR+9}, v{vR+4+qb}\nv_accvgpr_write_b32 a{r}, v{vR+9}")
    for (qb, kb, h) in PAIRS:
        s = sreg(buf, qb, kb) + 2 * h
        p(f"v_exp_f32 v{vE}, v{s}\nv_exp_f32 v{vE+1}, v{s+1}\nv_cvt_pk_bf16_f32 v{vP[buf]+4*qb+2*kb+h}, v{vE}, v{vE+1}")
    p.cur += rs_unit(buf)['mf']
    p(f"s_nop 15\ns_setpc_b64 s[98:99]")
    p.flush()

KVPRE = ['K0', 'K1', 'V0', 'K2', 'V1', 'K3', 'V2', 'K4', 'V3']
def get_sched():
    PRO = ['X0', 'W0', 'W1', 'W2']; PRO2 = ['X1']
    QS = {0: (['W3'], None, []), 1: (['W4', 'W5'], 1, ['X2']), 2: (['W6'], None, ['X3']), 3: (['W7'], 2, ['X4']), 4: (['W8'], 3, ['X5']),
          5: (['W9', 'K0', 'K1'], None, []), 6: (['W10'], 4, ['X6']), 7: (['W11'], 5, ['X7']), 8: (['W12', 'V0', 'K2'], None, []),
          9: (['W13'], 6, ['X8']), 10: (['W14'], 7, ['X9']), 11: (['W15'], None, []), 12: (['W16'], 8, []), 13: (['W17'], 9, []),
          14: (['W18'], None, []), 15: (['W19'], None, []), 16: (['V1', 'K3', 'V2', 'K4', 'V3'], None, [])}
    if SCHED == 1:
        QS[5] = (['W9'], None, []); QS[8] = (['W12', 'K0', 'K1'], None, []); QS[11] = (['W15', 'V0', 'K2'], None, [])
    if SCHED == 2:
        QS[5] = (['W9'], None, []); QS[8] = (['W12'], None, []); QS[11] = (['W15', 'K0', 'K1'], None, [])
        QS[15] = (['W19', 'V0', 'K2'], None, [])
    if SCHED == 3:
        QS[13] = (['W17'], 9, ['V1', 'K3']); QS[16] = (['V2', 'K4', 'V3'], None, [])
    return PRO, PRO2, QS
def issue(name):
    k, i = name[0], int(name[1:])
    return dma_x(i) if k == 'X' else dma_w(i) if k == 'W' else dma_kv_static(k, i)
def check_sched(PRO, PRO2, QS):
    occ = {}; xread = {0: -1}
    for u, (e, xr, l) in QS.items():
        if xr is not None: xread[xr] = u
    def put(n, u, late):
        k, i = n[0], int(n[1:])
        for s in ([xpair(i), xpair(i) + 1] if k == 'X' else [wslot(i)] if k == 'W' else [kvslot(k, i)]):
            o = occ.get(s)
            if o:
                k2, i2 = o[0], int(o[1:])
                if k2 == 'W': assert i2 <= u - 1, (n, u, o)
                elif k2 == 'X': assert xread[i2] < u or (xread[i2] == u and late), (n, u, o)
                else: assert False, (n, u, o)
            occ[s] = n
    seq = []
    for n in PRO: put(n, -2, False); seq.append(n)
    for n in PRO2: put(n, -1.5, True); seq.append(n)
    for u in sorted(QS):
        e, xr, l = QS[u]
        for n in e: put(n, u, False); seq.append(n)
        for n in l: put(n, u, True); seq.append(n)
        if xr is not None: assert min(xr * 2, 20 - NDB) > u and (xr - NXB) * 2 + 1 < u, (xr, u)
    assert [n for n in seq if n[0] == 'W'] == [f"W{i}" for i in range(20)]
    assert [n for n in seq if n[0] == 'X'] == [f"X{i}" for i in range(10)]
    assert [n for n in seq if n[0] in 'KV'] == KVPRE
    assert seq.index('K0') < seq.index('W19')

def front(p, pool):
    assert NDB == 4
    PRO, PRO2, QS = get_sched()
    check_sched(PRO, PRO2, QS)
    for n in PRO: flat(p, issue(n))
    setup_reads(p)
    for uu in range(4): p(f"v_add_u32 v{vVA+uu}, {wslot(0)*SLOT}, v{vVL+uu}")
    q = Prog(); setup_rest(q)
    ntok = max(k for k, x in enumerate(q.cur) if x.kind == 'smem') + 1
    p.cur += q.cur[:ntok]
    late = []
    for x in q.cur[ntok:]:
        if x.op in ('s_addc_u32', 'v_cndmask_b32'): late[-1].ins.append(x)
        else: late.append(Item('V' if x.kind == 'valu' else 'S', [x]))
    if not LATESET: flat(p, late); late = []
    p("WAITVM X0"); p.cur += stp('X0')
    flat(p, read_x(0))
    for n in PRO2: flat(p, issue(n))
    p(f"""
s_add_u32 s{sTK1}, s{sTK1}, {TOKC[0]}
s_addc_u32 s{sTK1+1}, s{sTK1+1}, {TOKC[1]}
s_add_u32 s{sTK2}, s{sTK2}, {TOKC[0]}
s_addc_u32 s{sTK2+1}, s{sTK2+1}, {TOKC[1]}
""")
    p("WAITVM W0\ns_barrier")
    st = Stream()
    if late:
        chain(late, 0, 36 * 8)
        for x in late: x.dense = True; x.target = 0
        st.add(late)
        kvset = [x for x in late if set(x.ins[0].dst) & {('v', vKD + 2)}][0]
    NU = 20 - NDB
    def wunit(u, db, va, imm, k):
        buf = pool.next()
        mf = [I(f"{MF} {vr(qacc(db,qb))}, {ar(buf)}, {ar(xfrag(u>>1,u&1,qb))}, {vr(qacc(db,qb)) if u else 0}") for qb in range(3)]
        return dict(reads=vunit_reads(buf, db, imm, va), mf=snake(mf, k))
    tiles = [[wunit(u, db, vVA if u % 2 == 0 else vVB, 0, db) for db in range(12)] for u in range(NU)]
    sa = {16: (vVA, 0), 17: (vVA, SLOT), 19: (vVA, 2 * SLOT), 18: (vVB, 0)}
    sup = [wunit(u, db, sa[u][0], sa[u][1], k) for db in range(12) for k, u in enumerate((16, 17, 19, 18))]
    tiles.append(sup)
    qk0 = [qk_unit(pool, 0, kb, ds, True, 0, kb) for ds in range(6) for kb in range(2)]
    qk1 = qk_units(pool, 1, 2 * SLOT, zero=(0,))
    rs = rs_unit(0, zero=True)
    pv = pv_units(pool, 0, 2 * SLOT, zero=True)
    for tl in tiles + [qk0, qk1, [rs], pv]:
        for un in tl: st.add_unit(un)
    n = st.n() - 3 * T
    prevdma = None
    for u in range(NU + 1):
        g0 = 36 * u - 3 * T
        span = 36 if u < NU else 36 * NDB
        if u == 0:
            for un in tiles[0][:T]:
                for r in un['reads']: p(r)
            rd = st.reads(tiles[0][T:], 0, g0 + 36 - RGAP)
            bar = None; glo = 0
        else:
            bar = st.barrier(g0, [f"WAITVM W{u if u < NU else 19}", "s_waitcnt lgkmcnt(0)"] + stp(f"u{u}"))
            aft = [(bar, 0)]
            if u == NU:
                vb = chain([V(f"v_add_u32 v{vVB+uu}, {wslot(18)*SLOT}, v{vVL+uu}") for uu in range(4)], g0 - 4, g0 + 1)
                vb[0].after.append((rd[-1], 1)); st.add(vb)
                for x in vb: x.hi = g0 + 4
            rd = st.reads(tiles[u], g0 + 1, g0 + span - (RGAP if u < NU else 0), aft)
            if u == NU:
                for x in rd[6:8]: x.after.append((vb[-1], 1))
            glo = g0 + 2
        if u < NU:
            va = vVA if (u + 1) % 2 == 0 else vVB
            st.add(chain([V(f"v_add_u32 v{va+uu}, {wslot(u+1)*SLOT}, v{vVL+uu}") for uu in range(4)], glo + 6, g0 + 30))
        e, xr, l = QS[u]
        f1 = [g for nm in e for g in issue(nm)]
        nx = [g for nm in l for g in issue(nm)]
        seq = []
        if f1:
            chain(f1, glo, glo + (12 if u < NU else KVSPAN))
            if bar: f1[0].after.append((bar, 1))
            if late and 'K0' in e: f1[0].after.append((kvset, 1))
            seq += f1
        if xr is not None:
            rx = [S(f"WAITVM X{xr}")] + read_x(xr)
            chain(rx, g0 + 14, g0 + 22)
            seq += rx
            if nx: nx = [V(f"v_accvgpr_read_b32 v{vT0}, a{xfrag(xr,1,2)}", after=[(rx[-1], 4)])] + nx
        if nx:
            chain(nx, g0 + 24, g0 + 35); seq += nx
        for k in range(len(seq)):
            pvs = seq[k - 1] if k else prevdma
            if pvs is not None and not any(a is pvs for a, _ in seq[k].after): seq[k].after.append((pvs, 1))
            seq[k].hi = g0 + span + 14 if seq[k].kind != 'L' else g0 + 30
        if seq: prevdma = seq[-1]
        st.add(seq)
    wlast = rd[-1]
    assert oacc(12 - T, 0) == xfrag(4, 0, 0)
    st.add(chain([V(f"v_accvgpr_write_b32 a{oacc(12-T,0)+r}, 0") for r in range(12 * T)], 36 * 12 + 4, 36 * 16 - 20))
    cprev = None
    for s in range(6):
        its = []
        for qb in range(3):
            a, b, q = qacc(2 * s, qb), qacc(2 * s + 1, qb), qfrag(qb, s)
            its += [V(f"v_mul_f32 v{r}, s{sSC}, v{r}") for r in list(range(a, a + 4)) + list(range(b, b + 4))]
            its += [V(f"v_cvt_pk_bf16_f32 v{q+k}, v{r}, v{r+1}") for k, r in enumerate((a, a + 2, b, b + 2))]
        for qb in range(3):
            q = qfrag(qb, s)
            its += [V(f"v_permlane16_swap_b32 v{q}, v{q+2}"), V(f"v_permlane16_swap_b32 v{q+1}, v{q+3}")]
        lo = sup[8 * s + 7]['first'] + 5
        dl = qk0[2 * s]['first'] - 2 if s else qk0[0]['first'] - 2
        chain(its, lo, min(lo + 26, dl), 0)
        for x in its: x.hi = dl; x.dense = True; x.target = lo
        if cprev: its[0].after.append((cprev, 0))
        cprev = its[-1]; st.add(its)
    q0 = qk0[0]['first']
    kr0 = st.reads(qk0, q0 - 11, q0 + 14, [(wlast, 0)])
    gx = q0 + 20
    barx = st.barrier(gx, ["WAITVM V0", "s_waitcnt lgkmcnt(0)"] + stp('Qend'), after=[(kr0[-1], 1), (prevdma, 1)])
    kr1 = st.reads(qk1, gx + 1, qk1[0]['first'] + 18, [(barx, 0)])
    va = chain([V(f"v_mov_b32 v{vVA+u}, v{vVL+u}") for u in range(4)], q0, q0 + 20); va[0].after.append((wlast, 1)); st.add(va)
    for x in va: x.hi = qk1[6]['first']
    st.reads(pv, kr1[-1].target + 2, n - 12, [(kr1[-1], 0), (va[-1], 1)])
    dm = chain(kv_issue(), qk0[10]['first'], qk0[10]['first'] + 14); dm[0].after.append((barx, 1)); st.add(dm)
    for x in dm: x.hi = n - 8
    lo = qk1[0]['first'] + 3; dl = qk1[6]['first'] - 2
    cols = [[V(t) for t in rowmax_text(0, qb, vR + qb, vR + 4 + qb)] for qb in range(3)]
    rm = [cols[qb][k] for k in range(10) for qb in range(3)]
    rm += [V(f"v_sub_f32 v{vNM+4*qb+r}, 0, v{vR+qb}") for r in range(4) for qb in range(3)]
    chain(rm, lo, dl, 0); st.add(rm)
    for x in rm: x.dense = True; x.target = lo
    st.add(softmax_items(0, 0, 12, lo + 10, rs['first'] - 2, pre=rm[32]))
    st.add(softmax_items(1, 0, SPLIT, pv[0]['first'] + 1, n - 1, pre=rm[-1]))
    up = wrap0(sRD, 4 * SLOT, 12 * SLOT) + [V(f"v_add_u32 v{vKA+u}, s{sRD}, v{vKL+u}") for u in range(2)]
    up[0].after += [(kr1[-1], 1), (dm[-1], 1)]
    st.add(chain(up, pv[0]['first'], n - 2))
    p.cur += st.emit(3 * T, name="front")
    return [dict(mf=u['mf']) for u in pv[12 - T:]]

def o_store(s):
    return [S(f"s_add_u32 s{sXOFF}, s{sKOFF}, {s*12288}")] + [
        Item('M', f"buffer_store_dwordx4 {bfrag(s,qb)}, v{vOL}, {sr(sWS)}, s{sXOFF} offen offset:{1024*qb} sc1", tag=f"OST{s>>1}") for qb in range(3)]
def o_chunk(s):
    its = []
    stv = o_store(s)
    if s < NST: its.append(stv[0])
    for qb in range(3):
        t = 32 + 8 * ((s * 3 + qb) % 3); d = vQ + (s * 3 + qb) * 4
        its += [V(f"v_accvgpr_read_b32 v{t+4*h+r}, a{oacc(2*s+h,qb)+r}") for h in range(2) for r in range(4)]
        its += [V(f"v_mul_f32 v{t+r}, v{t+r}, v{vRC+qb}") for r in range(8)]
        its += [V(f"v_cvt_pk_bf16_f32 v{d+r}, v{t+2*r}, v{t+2*r+1}") for r in range(4)]
        if s < NST: its.append(stv[1 + qb])
    return its

def attention(p, pool, tail):
    def step(t_par, tail, mode, vm, extra=(), endi=()):
        cur, nxt = t_par, t_par ^ 1
        last = mode == 'last'
        imm = 0 if t_par else 2 * SLOT
        st = Stream(tail)
        qk = [] if last else qk_units(pool, nxt, imm)
        pv = pv_units(pool, cur, imm)
        rs = rs_unit(cur)
        ret = p.newlabel("L_ret"); tr = p.newlabel("L_tramp")
        TRAMPS.append((tr, ret, cur))
        pv[0]['head'] = L(f"s_cbranch_vccnz {tr}\n{ret}:")
        for u in qk[:9] + [rs] + qk[9:] + pv: st.add_unit(u)
        keep = 0 if last else 3 * T
        n = st.n() - keep
        bar = st.barrier(0, [f"s_waitcnt vmcnt({vm}) lgkmcnt(0)"])
        kr = st.reads(qk, 1, 33, [(bar, 0)]) if qk else []
        aft = [(bar, 0)] + ([(kr[-1], 0)] if kr else [])
        if t_par:
            va = chain([V(f"v_add_u32 v{vVA+u}, s{sRD}, v{vVL+u}") for u in range(4)], 0, 3 if last else 20)
            st.add(va); aft.append((va[-1], 1))
        st.reads(pv, (kr[-1].target + 2) if kr else 3, (n - 12) if not last else 30, aft)
        if not t_par:
            up = wrap0(sRD, 4 * SLOT, 12 * SLOT) + [V(f"v_add_u32 v{vKA+u}, s{sRD}, v{vKL+u}") for u in range(2)]
            up[0].after += [(kr[-1], 1)]
            st.add(chain(up, rs['first'], n - 4))
        dm = []
        if mode == 'A':
            dm = chain(kv_issue(), 2, DMAHI)
            for x in dm: x.hi = n - 8
        if extra:
            dm = chain(list(extra), (rs['first'] + 4) if last else 2, n - 1 if last else 50)
            for x in dm: x.hi = n - 1
        if dm: dm[0].after.append((bar, 1))
        st.add(dm)
        st.add(softmax_items(cur, SPLIT, 12, 0, rs['first'] - 2))
        pf = pv[0]['first']
        mx = V(f"v_max3_f32 v{vCK}, v{vL[cur]}, v{vL[cur]+4}, v{vL[cur]+8}", lo=min(rs['first'] + 6, pf - 1), hi=pf - 1)
        st.add([mx, V(f"v_cmp_nge_f32 vcc, s{sLTHR}, v{vCK}", after=[(mx, 0)], hi=pf - 1)])
        if not last: st.add(softmax_items(nxt, 0, SPLIT, pf + 1, n - 1))
        else:
            rc = chain([S(f"s_mul_i32 s{sKOFF}, s{sHL}, 73728")] + [Item('E', f"v_rcp_f32 v{vRC+qb}, v{vL[1]+4*qb}") for qb in range(3)], pf, pf + 6)
            prev = rc[-1]; st.add(rc)
            for x in rc: x.hi = n - 1
            for s in range(NEO):
                its = o_chunk(s); lo = pv[2 * s + 1]['first'] + 6
                chain(its, lo, lo + 10 + 10 * s)
                for x in its: x.hi = n - 1; x.dense = True; x.target = lo
                its[0].after.append((prev, 1)); prev = its[-1]; st.add(its)
        if endi: st.add(chain(list(endi), n - 3, n - 1, 0))
        return st.emit(keep, name=mode), ([] if last else [dict(mf=u['mf']) for u in pv[12 - T:]])
    txt = lambda tl: [[i.text for i in u['mf']] for u in tl]
    lp = "L_attA"
    b1, tail1 = step(1, tail, 'A', VMLIM)
    b2, tail2 = step(0, tail1, 'A', VMLIM, endi=[S(f"s_add_u32 s{sT}, s{sT}, 2"), S(f"s_cmp_lt_u32 s{sT}, 27")])
    assert txt(tail2) == txt(tail) and VMLIM <= 18
    tr = []
    if TRACE: tr = L(f"s_memrealtime s[54:55]\ns_memtime s[56:57]\ns_waitcnt lgkmcnt(0)\ns_mov_b32 m0, s{sT}\nv_writelane_b32 v174, s54, m0\nv_writelane_b32 v175, s56, m0")
    p.loop(L(f"{lp}:") + tr + b1 + b2 + L(f"s_cbranch_scc1 {lp}"))
    if TRACE:
        p(f"s_add_u32 s96, s90, {STAMP_OFF + 65536}\ns_addc_u32 s97, s91, 0"); srd(p, 56, 96, 1 << 20)
        p(f"s_lshl_b32 s{sTMP}, s2, 2\ns_add_u32 s{sTMP}, s{sTMP}, s{sWAVE}\ns_lshl_b32 s{sTMP}, s{sTMP}, 9\nv_lshlrev_b32 v{vT0}, 3, v0")
        p(f"buffer_store_dwordx2 v[174:175], v{vT0}, s[56:59], s{sTMP} offen")
    p.cur += stp('Lend')
    p("L_att27:")
    cnt = lambda its: sum(1 for x in its if x.kind == 'M')
    log = [pr for pr in range(27, 31) for _ in range(6)]
    tl = tail
    for t in range(27, 32):
        vm = len(log) - 1 - max(k for k, x in enumerate(log) if x == t)
        if t == 27: vm = min(vm, VMLIM)
        ex = []
        for a in PLAN[t]:
            if a == 'kv': its = kv_issue(nok=True); log += [31] * cnt(its)
            else:
                if a == 'r': its = [V(f"v_accvgpr_read_b32 v{r}, a{aPARK+k}") for k, r in enumerate(PARK)]
                elif a == 'p':
                    its = [Item('M', f"buffer_load_dword v{vDUM}, v{vPWO}, {sr(sWo)}, 0 offen", tag="dummy")]
                    if LOCAL: its.append(Item('M', f"buffer_load_dword v{vDUM}, v{vF1}, {sr(sWS)}, 0 offen offset:128 sc1", tag="dummy"))
                else:
                    assert t >= {0: 28, 1: 28, 2: 29, 3: 29, 4: 30, 5: 31, 6: 31}[a]
                    its = dma_wo(a)
                log += [-1] * cnt(its)
            ex += its
        ins, tl = step(t & 1, tl, 'last' if t == 31 else 'P', min(vm, 63), ex); p.cur += ins
    p.cur += stp('Aend')
    for s in range(NEO, 6): flat(p, o_chunk(s))

def set_flag(vfl, sidx, off=0, local=False, vt=None):
    vt = vt or vTK
    st = f"buffer_store_dwordx2 v[{vt}:{vt+1}], v{vfl}, {sr(sWS)}, 0 offen offset:"
    return L(f"s_lshl_b64 exec, 1, s{sidx}\n" + (f"{st}{off+128}\n" if local else "") + f"{st}{off} sc1\ns_mov_b64 exec, -1")
def spin(name, voff, tk, off):
    one = lambda o: f"""buffer_load_dwordx2 v[{vFLV}:{vFLV+1}], v{voff}, {sr(sWS)}, 0 offen offset:{o} sc1
s_waitcnt vmcnt(0)
v_cmp_ne_u64 vcc, s[{tk}:{tk+1}], v[{vFLV}:{vFLV+1}]
s_cbranch_vccz L_spinr{name}
"""
    OUTL.append(f"""L_spin{name}:
s_mov_b32 s{sTMP}, 0x10000
L_poll{name}:
""" + (one(off + 128) * NLOC if LOCAL else "") + one(off) + f"""s_sub_u32 s{sTMP}, s{sTMP}, 1
s_cmp_lg_u32 s{sTMP}, 0
s_cbranch_scc1 L_poll{name}
s_branch L_spinr{name}
""")
def bump_epoch(p, voff, tk, sidx, off):
    ne = p.newlabel("L_ne")
    p(f"s_cmp_lg_u32 s{sidx}, 0\ns_cbranch_scc1 {ne}\nv_mov_b32 v{vFLV}, s{tk}\nv_mov_b32 v{vFLV+1}, s{tk+1}\ns_mov_b64 exec, 1")
    p.flush()
    p.raw(f"buffer_store_dwordx2 v[{vFLV}:{vFLV+1}], v{voff}, {sr(sWS)}, 0 offen offset:{off} sc1")
    p(f"s_mov_b64 exec, -1\ns_nop 1\n{ne}:")
def load_g(G):
    i, c = gic(G)
    g = [S(f"s_add_u32 s{sXOFF}, s{sHI+i}, {c}"), S(f"s_mul_i32 s{sXOFF}, s{sXOFF}, 24576")]
    for ks in range(2):
        if ks: g.append(S(f"s_add_u32 s{sXOFF}, s{sXOFF}, 12288"))
        g += [Item('M', f"buffer_load_dwordx4 {bfrag(2*G+ks,qb)}, v{vOL}, {sr(sWS)}, s{sXOFF} offen offset:{1024*qb} sc1") for qb in range(3)]
    return g

def oproj(p):
    pool = Pool(12)
    NEXTG = max(a for v in PLAN.values() for a in v if isinstance(a, int)) + 1
    def unit(G, ks, nb, va, imm):
        u = 2 * G + ks; pb = pool.next(); a = va + (nb & 1)
        rd = [f"ds_read_b64_tr_b16 {ar(pb,2)}, v{a} offset:{imm+ks*10240+nb*32}", f"ds_read_b64_tr_b16 {ar(pb+2,2)}, v{a} offset:{imm+ks*10240+nb*32+5120}"]
        mf = [I(f"{MF} {ar(cacc(nb,qb))}, {ar(pb)}, {bfrag(u,qb)}, {ar(cacc(nb,qb)) if u else 0}") for qb in range(3)]
        return dict(reads=rd, mf=snake(mf, pool.n))
    def seta(va, off): return [V(f"v_add_u32 v{va+k}, {off}, v{vWOL+k}") for k in range(2)]
    NG = 6
    def un2(G, ks, nb): return unit(G, ks, nb, vWA[2 + (G - NG) // 3], ((G - NG) % 3) * GSZ)
    assert all(goff(G + 1) == goff(G) + GSZ for G in range(NG, 11))
    U = [[unit(G, ks, nb, vWA[G & 1], 0) for ks in range(2) for nb in range(10)] for G in range(NG)]
    A1 = [un2(G, ks, nb) for G in range(6, 9) for ks in range(2) for nb in range(6 if G >= GS else 10)]
    A2 = [un2(G, ks, nb) for G in range(9, 12 - NBA) for ks in range(2) for nb in range(6)]
    F = [[un2(G, ks, nb) for G in range(12 - NBA if nb < 6 else GS, 12) for ks in range(2)] for nb in range(10)]
    tiles = U + [A1, A2 + [u for nb in range(10) for u in F[nb]]]
    flat(p, seta(vWA[0], goff(0)))
    p(f"s_mul_i32 s{sT}, s{sHG}, 15360\nv_mov_b32 v{vTK}, s{sTK1}\nv_mov_b32 v{vTK+1}, s{sTK1+1}")
    p("WAITVM G0\ns_waitcnt lgkmcnt(0)\ns_barrier"); p.cur += stp('G0')
    st = Stream()
    for tl in tiles:
        for u in tl: st.add_unit(u)
    for u in U[0][:T]:
        for r in u['reads']: p(r)
    st.add(chain(seta(vWA[2], goff(6)) + seta(vWA[3], goff(9)) + [V(f"v_mov_b32 v{vTK2}, s{sTK2}"), V(f"v_mov_b32 v{vTK2+1}, s{sTK2+1}")], 200, 300))
    mem = []
    def addmem(its, lo, hi, after=None):
        chain(its, lo, hi)
        for x in its: x.hi = 10 ** 9
        if after: its[0].after.append(after)
        if mem: its[0].after.append((mem[-1], 1))
        mem.extend(its); st.add(its)
    bars = {}
    for k, tl in enumerate(tiles):
        g0 = tl[0]['first'] - 3 * T
        last = tiles[k + 1][0]['first'] - 3 * T - RGAP if k + 1 < len(tiles) else st.n() - 14
        if k == 0: st.reads(U[0][T:], 0, last)
        else:
            bars[k] = st.barrier(g0, [f"WAITVM G{k if k < 6 else 8 if k == 6 else 11}", "s_waitcnt lgkmcnt(0)"] + stp(f"G{k if k <= 6 else 9}"))
            st.reads(tl, g0 + 1, last, [(bars[k], 0)])
        if k + 1 < NG: st.add(chain(seta(vWA[(k + 1) & 1], goff(k + 1)), max(g0, 0) + 20, g0 + 50))
    pv = {0: 2, 1: 4, 2: 8}
    wit = {}
    for pos, act in OCH:
        k, n = act[0], int(act[1:])
        if k == 'W':
            if n >= NEXTG:
                addmem(dma_wo(n), pos, pos + 12, (bars[n - 7], 1) if n >= 8 else None); wit[n] = mem[-1]
        elif k == 'F': addmem([Item('M', [I(f"WAITVM OST{n}")] + stp(f"F{n}") + set_flag(vF1, sHL, 32 * n, LOCAL))], pos, pos)
        elif k == 'P': addmem([Item('M', f"buffer_load_dwordx2 v[{pv[n]}:{pv[n]+1}], v{vF1}, {sr(sWS)}, 0 offen offset:{32*n + (128 if LOCAL else 0)} sc1")], pos, pos)
        elif k == 'C':
            addmem([V(f"v_cmp_ne_u64 vcc, s[{sTK1}:{sTK1+1}], v[{pv[n]}:{pv[n]+1}]")], pos, pos)
            addmem([Item('S', stp(f"C{n}a") + L(f"s_cbranch_vccnz L_spin{n}\nL_spinr{n}:") + stp(f"C{n}b"))], pos + 3, pos + 3)
            spin(n, vF1, sTK1, 32 * n)
        elif k == 'B': addmem([x for G in range(3 + 3 * n, 6 + 3 * n) for x in load_g(G)], pos, pos + 40)
        elif k == 'b': addmem(load_g(n), pos, pos + 14)
        elif k == 'S':
            assert n >= NST
            addmem(o_store(n), pos, pos + 6)
    def gran(m, qb, k):
        t = vQ + 12 * (k % 4); j = m * 3 + qb
        its = [V(f"v_accvgpr_read_b32 v{t+h*4+r}, a{cacc(2*m+h,qb)+r}") for h in range(2) for r in range(4)]
        its += [V(f"v_cvt_pk_bf16_f32 v{t+8+r}, v{t+2*r}, v{t+2*r+1}") for r in range(4)]
        if j % 4 == 0: its.append(S(f"s_add_u32 s{sTMP+1}, s{sT}, {j*1024}"))
        its.append(Item('M', f"buffer_store_dwordx4 {vr(t+8)}, v{vPT}, {sr(sWS)}, s{sTMP+1} offen offset:{(j%4)*1024} sc1", tag="PA" if m < 3 else "PB"))
        return its
    k = 0
    for m in range(4):
        its = []
        for qb in range(3): its += gran(m, qb, k); k += 1
        lo = F[2 * m + 2][0]['first'] + 4
        fa = [Item('M', [I("WAITVM PA")] + stp('FA') + set_flag(vF2, sHG, 0, vt=vTK2))]
        fp = min(F[6][0]['first'] + FAPOS, st.n() - 1)
        if m == 3 and fp <= lo: addmem(fa, fp, fp)
        addmem(its, lo, lo + 24)
        if m == 3 and fp > lo: addmem(fa, fp, fp)
    p.cur += st.emit(name="oproj")
    for it in mem:
        if it.kind == 'M' and it.ins[0].op == 'buffer_load_dwordx4' and it.ins[0].dst:
            d = set(it.ins[0].dst)
            assert it.gap < min(g for g, (h, m) in enumerate(st.mf) if d & set(m.src)), it.ins[0].text
    for n, it in wit.items(): assert it.gap < bars[n if n < 6 else 6 if n < 9 else 7].gap - 1, n
    assert set(wit) | set(range(NEXTG)) == set(range(12))
    p.cur += stp('E')
    for qb in range(3): flat(p, gran(4, qb, k)); k += 1

def final_reduce(p):
    sDONE, sNEW, sO2 = sKK, sWR, sRD
    ld = f"buffer_load_dwordx2 v[{vFLV}:{vFLV+1}], v{vF2}, {sr(sWS)}, 0 offen sc1"
    p(f"""
{ld}
s_lshl_b32 s{sTMP}, s{sHG}, 10
v_add_u32 v2, s{sTMP}, v{vPT}
s_cmp_eq_u32 s{sHG}, 7
s_cselect_b32 s{sO2}, {OOB}, 0
s_cselect_b32 s{sDONE}, 0xff00, 0
s_mov_b32 s{sT}, 0xffff0000
s_mov_b32 s{sTMP}, 0x20000
WAITVM PB
""")
    p.cur += set_flag(vF2, sHG, 64, vt=vTK2); p.cur += stp('ACK')
    p("s_waitcnt vmcnt(1)\ns_branch L_fin2")
    p.flush()
    t = f"""L_fin:
{ld}
s_waitcnt vmcnt(0)
L_fin2:
v_cmp_eq_u64 vcc, s[{sTK2}:{sTK2+1}], v[{vFLV}:{vFLV+1}]
s_nop 4
s_and_b32 s{sNEW}, vcc_lo, 0xffff
s_andn2_b32 s{sNEW}, s{sNEW}, s{sDONE}
s_or_b32 s{sDONE}, s{sDONE}, s{sNEW}
"""
    for g in range(16):
        t += f"""s_bitcmp0_b32 s{sNEW}, {g}
s_cbranch_scc1 L_fs{g}
s_mov_b32 s{sTMP+1}, {(g%8)*15360 + (g//8)*8192}
buffer_load_dwordx4 {vr(32+g*4)}, v2, {sr(sWS)}, s{sTMP+1} offen sc1
L_fs{g}:
"""
    t += f"""s_cmp_eq_u32 s{sDONE}, 0xffff
s_cbranch_scc1 L_find
s_sub_u32 s{sTMP}, s{sTMP}, 1
s_cmp_lg_u32 s{sTMP}, 0
s_cbranch_scc1 L_fin
L_find:"""
    p.raw(t)
    p.cur += stp('P2')
    for i in range(2):
        p(f"""
s_add_u32 s{sTMP}, s{sHG}, {8*i}
s_mul_i32 s{sTMP+1}, s{sTMP}, 11
s_lshr_b32 s{sTMP+1}, s{sTMP+1}, 5
s_mul_i32 s{sTMP+3}, s{sTMP+1}, 3
s_sub_u32 s{sTMP+3}, s{sTMP}, s{sTMP+3}
s_mul_i32 s{sTMP+3}, s{sTMP+3}, {16*1280}
s_lshl_b32 s{sTMP+1}, s{sTMP+1}, 6
s_add_u32 s{sTMP+4+i}, s{sTMP+1}, s{sTMP+3}
""")
    p(f"s_add_u32 s{sTMP+5}, s{sTMP+5}, s{sO2}\ns_and_b32 s{sNEW}, s{sNEW}, 0xff\ns_cbranch_scc0 L_fa\ns_waitcnt vmcnt(0)\nL_fa:")
    for i in range(2):
        acc = 100 + i * 8
        if i: p("s_waitcnt vmcnt(1)")
        for g in range(8):
            b = 32 + (i * 8 + g) * 4
            for r in range(4):
                d = acc if g == 0 else 120
                p(f"v_lshlrev_b32 v{d+2*r}, 16, v{b+r}\nv_and_b32 v{d+1+2*r}, s{sT}, v{b+r}")
            if g:
                for r in range(8): p(f"v_add_f32 v{acc+r}, v{acc+r}, v{120+r}")
        o = 132 + 4 * i
        for r in range(4): p(f"v_cvt_pk_bf16_f32 v{o+r}, v{acc+2*r}, v{acc+2*r+1}")
        p(f"v_permlane16_swap_b32 v{o}, v{o+2}\nv_permlane16_swap_b32 v{o+1}, v{o+3}")
        p(f"buffer_store_dwordx4 {vr(o)}, v{vOUT}, {sr(sOUT)}, s{sTMP+4+i} offen")
    bump_epoch(p, vF1, sTK1, sHL, 96)
    bump_epoch(p, vF2, sTK2, sHG, 128)

def store_stamps(p):
    if not ST: return
    p("s_waitcnt vmcnt(0)"); p.cur += stp('end')
    lab = p.newlabel("L_nost")
    if DBGST is not None:
        p("s_load_dwordx2 s[96:97], s[0:1], 48\ns_waitcnt lgkmcnt(0)"); srd(p, sK, 96, 256)
        p(f"s_cmp_lg_u32 s{sWAVE}, 0\ns_cbranch_scc1 {lab}\ns_cmp_lg_u32 s2, {DBGST}\ns_cbranch_scc1 {lab}")
        p("s_mov_b64 exec, 1\nv_mov_b32 v2, 0")
        for i in range(NSTAMP):
            p(f"s_sub_u32 s{sTMP}, s{sSTAMP+2*i}, s{sSTAMP}\nv_mov_b32 v4, s{sTMP}\nbuffer_store_dword v4, v2, {sr(sK)}, 0 offen offset:{4*i}\ns_nop 1")
        p(f"s_waitcnt vmcnt(0)\n{lab}:")
        return
    p(f"s_add_u32 s96, s90, {STAMP_OFF}\ns_addc_u32 s97, s91, 0"); srd(p, sK, 96, 65536)
    p("s_waitcnt lgkmcnt(0)")
    p(f"s_cmp_lg_u32 s{sWAVE}, 0\ns_cbranch_scc1 {lab}")
    p(f"s_lshl_b32 s{sTMP}, s2, 7\nv_mov_b32 v2, s{sTMP}\ns_mov_b64 exec, 1")
    for i, r in enumerate([sSTAMP + 2 * i for i in range(NSTAMP)] + list(CST.values())):
        p(f"v_mov_b32 v4, s{r}\nv_mov_b32 v5, s{r+1}\nbuffer_store_dwordx2 v[4:5], v2, {sr(sK)}, 0 offen offset:{8*i}\ns_nop 1")
    p(f"s_waitcnt vmcnt(0)\n{lab}:")

def kernel(p):
    name = NAME + "_kernel"
    p.raw(f".globl {name}\n.p2align 8\n.type {name},@function\n{name}:")
    p("s_cmp_ge_u32 s2, 256\ns_cbranch_scc1 L_end")
    p.cur += stp('start')
    p(f"""
s_load_dwordx8 s[76:83], s[0:1], 0
s_load_dwordx8 s[84:91], s[0:1], 32
v_lshrrev_b32 v1, 6, v0
v_and_b32 v0, 63, v0
v_readfirstlane_b32 s{sWAVE}, v1
""")
    if CODEPF:
        p(f"""
s_getpc_b64 s[98:99]
s_lshr_b32 s{sTMP+1}, s2, 3
s_mul_i32 s{sTMP+1}, s{sTMP+1}, {12*128}
v_mul_u32_u24 v252, 3, v1
v_add_lshl_u32 v252, v252, v0, 7
v_add_u32 v252, s{sTMP+1}, v252
v_mov_b32 v253, s99
v_add_co_u32 v252, vcc, s98, v252
v_addc_co_u32 v253, vcc, 0, v253, vcc
s_mov_b64 exec, 7
global_load_dword v{vDUM}, v[252:253], off
s_mov_b64 exec, -1
""", "dummy")
    tab = sum((((k % PH) * 10 + PH // 2) // PH) << (4 * k) for k in range(11))
    p(f"""
s_and_b32 s{sHG}, s2, 7
s_lshr_b32 s{sB}, s2, 5
s_bfe_u32 s{sHL}, s2, 0x20003
s_mul_i32 s{sM0W}, s{sWAVE}, 3072
s_add_u32 s{sTMP+1}, s{sB}, s{sHL}
s_lshl_b32 s{sTMP+1}, s{sTMP+1}, 2
s_mov_b32 s96, {tab & 0xffffffff}
s_mov_b32 s97, {tab >> 32}
s_lshr_b64 s[96:97], s[96:97], s{sTMP+1}
s_and_b32 s{sTMP+1}, s96, 15
s_lshl_b32 s{sXOFF}, s{sTMP+1}, 7
s_mul_i32 s{sWOFF}, s{sTMP+1}, {64*12288}
""")
    if KSTAG: p(f"s_mul_i32 s{sKK}, s2, 11\ns_add_u32 s{sKK}, s{sKK}, s{sB}\ns_and_b32 s{sKK}, s{sKK}, 31\ns_mul_i32 s{sKK}, s{sKK}, {SLOT}")
    else: p(f"s_mov_b32 s{sKK}, 0")
    p(f"s_mov_b32 s{sKOFF}, s{sKK}")
    setup_first(p)
    srd(p, sX, 76, 1536 * 1280); srd(p, sWq, 82, 640 * 12288)
    pool = Pool(12)
    tail = front(p, pool)
    if not QONLY:
        attention(p, pool, tail)
        oproj(p)
        final_reduce(p)
    store_stamps(p)
    p("L_end:\ns_endpgm")
    for t in OUTL: p.raw(t)
    for tr, ret, cur in TRAMPS: p.raw(f"{tr}:\ns_call_b64 s[98:99], L_rare{cur}\ns_branch {ret}")
    rare_path(p, "L_rare0", 0)
    rare_path(p, "L_rare1", 1)
    p.raw(".fill 64, 4, 0xbf800000" if not QONLY else ".fill 12288, 4, 0xbf800000")
    return kernel_desc(name, vgpr=512, accum=256)

def build(path):
    p = Prog()
    p.raw("""; GQA block (q-proj, attention over cached K/V, out-proj) for gfx950: one fused kernel
; @launch grid=(256,1,1) block=(256,1,1) lds=163840
.amdgcn_target "amdgcn-amd-amdhsa--gfx950"
.text""")
    d = kernel(p)
    p.raw('.section .rodata,"a"\n.p2align 6\n' + d)
    txt = p.text()
    if NODMA:
        txt = "\n".join(l for l in txt.split("\n") if not (l.startswith("buffer_load_dwordx4")))
        txt = txt.replace("s_cbranch_vccnz L_tramp", "s_cbranch_execz L_tramp")
    if ST: txt = txt.replace(".amdgcn_target", "; stamps " + repr(ST) + "\n.amdgcn_target", 1)
    open(path, "w").write(txt)
    if VERB:
        import collections
        print(collections.Counter(w.split(':')[0] for w in WARN))
        if VERB > 1:
            for w in WARN: print("WARN", w)
        ls = txt.split("\n")
        marks = [k for k, l in enumerate(ls) if l.endswith(":") and not l.startswith("L_ret")]
        for a, b in zip(marks, marks[1:] + [len(ls)]):
            seg = [l for l in ls[a:b] if l and not l.startswith(".") and not l.startswith(" ")]
            c, nm = estimate(seg)
            if nm: print(f"{ls[a][:28]:28s} est {c:6d} cyc, mfma {nm:4d} ({16*nm})")

STD = {'start': 0, 'X0': 1, 'u8': 2, 'u16': 3, 'E': 4, 'Qend': 5, 'Lend': 6, 'Aend': 7, 'C0b': 8, 'G6': 9, 'ACK': 10, 'end': 11}
if __name__ == "__main__":
    for a in sys.argv[2:]:
        k, v = a.split("=", 1)
        globals()[k] = eval(v)
    build(sys.argv[1])
```

```python
import sys, math, struct
from sched import *
from asmlib import kernel_desc

NAME = "standalone__gqa_block_cached__near_ridge"
SLOT = 12288
GSZ = 20480
NT = "nt"
CODEPF = True
PH = 3
VMLIM = 3
DMAHI = 30
SNAKE = True
KSTAG = True
NDB = 4
NBM = 3
NST = 4
NEO = 2
SCHED = 1
KVSPAN = 120
PLAN = {27: ['kv', 'r', 'l'], 28: ['kv', 0, 1], 29: ['kv', 2, 3], 30: [4], 31: [5, 6]}
OCH = [(0,'W7'),(10,'F0'),(56,'W8'),(84,'P0'),(100,'F1'),(104,'C0'),(108,'b3'),(124,'W9'),(150,'b4'),(176,'S4'),(184,'S5'),(192,'b5'),(210,'W10'),(226,'P1'),(256,'C1'),(260,'b6'),
       (274,'F2'),(280,'W11'),(300,'b7'),(320,'P2'),(322,'b8'),(350,'C2'),(354,'b9'),(380,'b10'),(405,'b11')]
LATESET = True
AMP = None
RAMP = ()
D0 = 2
PWQ = None
VMTAIL = None
LOCAL = True
NLOC = 4
NBA = 3
FAPOS = 74
GS = 6
PART_OFF = 20 << 20
FLAG_OFF = 40 << 20
WS_SIZE = 41 << 20
STAMP_OFF = 64 << 20
ST = {}
NSTAMP = 12
DBGST = None
TRACE = 0
NODMA = 0
QONLY = 0
VERB = 0
OOB = 0x7f000000

def f32(x): return "0x%08x" % struct.unpack("<I", struct.pack("<f", x))[0]
def vr(b, n=4): return f"v[{b}:{b+n-1}]"
def ar(b, n=4): return f"a[{b}:{b+n-1}]"
def sr(b, n=4): return f"s[{b}:{b+n-1}]"
MF = "v_mfma_f32_16x16x32_bf16"
def srd(p, d, lo, nbytes):
    p(f"s_mov_b32 s{d}, s{lo}\ns_and_b32 s{d+1}, s{lo+1}, 0xffff\ns_mov_b32 s{d+2}, {nbytes}\ns_mov_b32 s{d+3}, 0x00020000")

sLTHR = 3
sK, sV, sWq, sX, sWS, sWo, sOUT = 4, 8, 12, 16, 20, 24, 28
sWAVE, sB, sSC, sHG, sHL = 32, 33, 34, 35, 36
sM0W, sKOFF, sWR, sRD, sT, sKK = 37, 38, 39, 40, 41, 42
sWOFF, sXOFF, sWW = 43, 44, 45
sTMP = 46
sSTAMP = 52
sHI = 76
sTK1, sTK2 = 92, 94
TOKC = (0x9e3779b9, 0x7f4a7c15)
F2BASE = 256 * 256
CST = {'Qend': 80, 'Lend': 82, 'C0b': 88, 'ACK': 100}
def stp(name):
    r = []
    if name in ST: r.append(I(f"s_memrealtime s[{sSTAMP+2*ST[name]}:{sSTAMP+2*ST[name]+1}]"))
    if ST and name in CST: r.append(I(f"s_memtime s[{CST[name]}:{CST[name]+1}]"))
    return r

vKD, vVD, vWD = 2, 5, 8
vXD = 11
vWOD, vPWO = 11, 16
vKL, vVL = 17, 19
vKA, vVA = 23, 25
vXR = 29
vOL, vPT = 30, 31
vT0 = 31
vDUM = 248
vF1, vF2 = 250, 251
vVB = 252
vWOL, vOUT = 252, 254
vACC = 32; vQ = 176
vS = (32, 56); vP = (80, 92); vNM = 104; vE = 120; vCK = 130; vR = 132; vL = (144, 156)
NE = 5
vB = 32; vRC = 136; vTK = 6; vTK2 = 18; vFLV = 28
vWA = (20, 22, 24, 26)
aO = 0; aPOOL = 144; aC = 0; aX = 0; NXB = 6; aONE = 240; aPARK = 244
PARK = [vWOD + j for j in range(5)] + [vPWO, vWOL, vWOL + 1, vOL, vPT, vOUT]
def qfrag(qb, s): return vQ + (qb * 6 + s) * 4
def qacc(db, qb): return vACC + (db * 3 + qb) * 4
def oacc(db, qb): return aO + (db * 3 + qb) * 4
def cacc(nb, qb): return aC + (nb * 3 + qb) * 4
def sreg(buf, qb, kb): return vS[buf] + (qb * 2 + kb) * 4
def bfrag(u, qb):
    if u < 6: return vr(vQ + (u * 3 + qb) * 4)
    k = (u - 6) * 3 + qb
    if k < 36: return vr(vB + k * 4)
    k -= 36
    return ar(120 + k * 4) if k < 6 else ar(192 + (k - 6) * 4)

XS0 = 5
def xpair(c): return XS0 + 2 * (c % 2)
WRING = [9, 10, 11, 1, 12]
def wslot(u): return WRING[u % 5]
def kvslot(kind, i): return 2 * (i % 6) if kind == 'K' else 2 * ((i + 1) % 6) + 1
def gic(G): return (0, G) if G < 3 else (1 + (G - 3) % 3, (G - 3) // 3)
def goff(G): return ((G + 4) % 8) * GSZ
TRAMPS = []; OUTL = []

def tile_rows(p, t, j):
    p(f"""
v_add_u32 v{t+2}, {8*j}, v{t}
v_mul_u32_u24 v{t+3}, 11, v{t+2}
v_lshrrev_b32 v{t+3}, 5, v{t+3}
v_mul_u32_u24 v{t+4}, 3, v{t+3}
v_sub_u32 v{t+4}, v{t+2}, v{t+4}
v_add_u32 v{t+3}, s{sTMP}, v{t+3}
v_and_b32 v{t+5}, 6, v{t+3}
v_xor_b32 v{t+5}, v{t+5}, v{t+1}
v_lshlrev_b32 v{t+5}, 4, v{t+5}
""")
def setup_first(p):
    t = 240
    p(f"""
v_lshrrev_b32 v{t}, 3, v0
v_and_b32 v{t+1}, 7, v0
s_lshl_b32 s{sTMP}, s{sWAVE}, 3
s_lshl_b32 s{sTMP+1}, s{sB}, 2
s_add_u32 s{sTMP+1}, s{sTMP+1}, s{sWAVE}
s_mul_i32 s{sTMP+4}, s{sTMP+1}, {48*1280}
s_lshl_b32 s{sTMP+2}, s{sHG}, 2
s_add_u32 s{sTMP+5}, s{sTMP+2}, s{sHL}
s_mul_i32 s{sTMP+2}, s{sTMP+5}, 384
""")
    for half in range(2):
        p(f"""
v_lshrrev_b32 v{t+2}, 1, v{t}
v_add_u32 v{t+2}, {4*half}, v{t+2}
v_xor_b32 v{t+2}, v{t+2}, v{t+1}
v_lshlrev_b32 v{t+2}, 4, v{t+2}
v_add_u32 v{t+3}, {8*half}, v{t}
v_mul_u32_u24 v{t+3}, 1280, v{t+3}
v_add3_u32 v{vXD+half}, v{t+2}, v{t+3}, s{sTMP+4}
v_add_u32 v{vXD+2+half}, {20480-1024}, v{vXD+half}
v_add_u32 v{vXD+4+half}, {2*(20480-1024)}, v{vXD+half}
""")
    for j in range(3):
        tile_rows(p, t, j)
        p(f"""
v_bfe_u32 v{t+6}, v{t+3}, 2, 2
v_lshlrev_b32 v{t+6}, 3, v{t+6}
v_lshrrev_b32 v{t+7}, 4, v{t+3}
v_lshl_add_u32 v{t+6}, v{t+7}, 2, v{t+6}
v_and_b32 v{t+7}, 3, v{t+3}
v_add_u32 v{t+6}, v{t+6}, v{t+7}
v_mul_u32_u24 v{t+6}, 12288, v{t+6}
v_lshl_add_u32 v{t+6}, v{t+4}, 7, v{t+6}
v_add3_u32 v{t+6}, v{t+6}, v{t+5}, s{sTMP+2}
v_subrev_u32 v{vWD+j}, {1024*j}, v{t+6}
""")
def setup_reads(p):
    t = 232
    p(f"""
v_and_b32 v{t}, 15, v0
v_lshrrev_b32 v{t+1}, 4, v0
v_lshrrev_b32 v{t+2}, 1, v{t}
v_xor_b32 v{t+2}, v{t+2}, v{t+1}
v_lshlrev_b32 v{t+5}, 4, v{t+2}
v_and_b32 v{t+3}, 7, v{t}
v_lshl_add_u32 v{t+5}, v{t+3}, 7, v{t+5}
v_lshrrev_b32 v{t+3}, 3, v{t}
v_mul_u32_u24 v{t+3}, 12288, v{t+3}
v_add3_u32 v{t+5}, v{t+5}, v{t+3}, s{sM0W}
v_add_u32 v{vXR}, {XS0*SLOT}, v{t+5}
v_xor_b32 v{vXR+1}, 64, v{vXR}
v_bfe_u32 v{t+3}, v{t+2}, 1, 1
v_and_b32 v{t+4}, 1, v{t+2}
v_lshl_add_u32 v{t+3}, v{t+4}, 1, v{t+3}
v_and_b32 v{t+4}, 4, v{t+2}
v_or_b32 v{t+3}, v{t+3}, v{t+4}
v_lshlrev_b32 v{t+3}, 4, v{t+3}
v_mul_u32_u24 v{t+4}, 384, v{t}
v_add_u32 v{vKL}, v{t+3}, v{t+4}
v_xor_b32 v{vKL+1}, 64, v{vKL}
v_mov_b32 v{vKA}, v{vKL}
v_mov_b32 v{vKA+1}, v{vKL+1}
v_lshrrev_b32 v{t+2}, 2, v0
v_mul_u32_u24 v{t+3}, 384, v{t+2}
v_bfe_u32 v{t+4}, v{t+2}, 1, 2
v_lshl_add_u32 v{t+3}, v{t+4}, 5, v{t+3}
v_and_b32 v{t+4}, 3, v0
v_lshl_add_u32 v{vVL}, v{t+4}, 3, v{t+3}
v_xor_b32 v{vVL+1}, 32, v{vVL}
v_xor_b32 v{vVL+2}, 64, v{vVL}
v_xor_b32 v{vVL+3}, 96, v{vVL}
""")
def setup_rest(p):
    t = 240
    p(f"""
s_lshl_b32 s{sTMP+1}, s{sB}, 3
s_add_u32 s{sTMP+1}, s{sTMP+1}, s{sHG}
s_lshl_b32 s96, s{sTMP+1}, 2
s_add_u32 s{sTMP+1}, s96, s{sWAVE}
s_lshl_b32 s{sTMP+1}, s{sTMP+1}, 8
s_add_u32 s{sTMP+1}, s{sTMP+1}, {FLAG_OFF}
s_lshl_b32 s{sTMP+2}, s{sB}, 2
s_add_u32 s{sTMP+2}, s{sTMP+2}, s{sHL}
s_lshl_b32 s{sTMP+2}, s{sTMP+2}, 2
s_add_u32 s97, s{sTMP+2}, s{sWAVE}
s_lshl_b32 s{sTMP+2}, s97, 8
s_add_u32 s{sTMP+2}, s{sTMP+2}, {FLAG_OFF + F2BASE}
v_and_b32 v{t+2}, 3, v0
v_lshl_add_u32 v{vF1}, v{t+2}, 3, s{sTMP+1}
v_and_b32 v{t+2}, 15, v0
v_lshl_add_u32 v{vF2}, v{t+2}, 3, s{sTMP+2}
s_add_u32 s{sTMP+1}, s{sTMP+1}, 96
s_add_u32 s{sTMP+2}, s{sTMP+2}, 128
s_load_dwordx2 s[{sTK1}:{sTK1+1}], s[90:91], s{sTMP+1}
s_load_dwordx2 s[{sTK2}:{sTK2+1}], s[90:91], s{sTMP+2}
s_add_u32 s{sTMP+1}, s96, s{sHL}
s_mul_i32 s{sTMP+1}, s{sTMP+1}, 393216
s_add_u32 s78, s78, s{sTMP+1}
s_addc_u32 s79, s79, 0
s_add_u32 s80, s80, s{sTMP+1}
s_addc_u32 s81, s81, 0
""")
    srd(p, sK, 78, 393216); srd(p, sV, 80, 393216)
    srd(p, sWS, 90, WS_SIZE); srd(p, sWo, 84, 6144 * 1280); srd(p, sOUT, 86, 1536 * 1280)
    for j in range(3):
        tile_rows(p, t, j)
        p(f"""
v_lshl_add_u32 v{t+6}, v{t}, 7, v{t+5}
v_add_u32 v{vVD+j}, s{sM0W}, v{t+6}
v_bfe_u32 v{t+5}, v{t+3}, 2, 1
v_and_b32 v{t+6}, 2, v{t+3}
v_or_b32 v{t+5}, v{t+5}, v{t+6}
v_lshrrev_b32 v{t+6}, 1, v{t+3}
v_and_b32 v{t+6}, 4, v{t+6}
v_or_b32 v{t+5}, v{t+5}, v{t+6}
v_xor_b32 v{t+5}, v{t+5}, v{t+1}
v_lshlrev_b32 v{t+5}, 4, v{t+5}
v_lshl_add_u32 v{t+5}, v{t}, 7, v{t+5}
v_add_u32 v{vKD+j}, s{sM0W}, v{t+5}
""")
    t = 232
    park = lambda r, v: p(f"v_accvgpr_write_b32 a{aPARK + PARK.index(r)}, v{v}")
    u = 224
    p(f"""
s_mul_i32 s{sTMP+1}, s{sHG}, {768*1280}
s_mul_i32 s{sTMP+2}, s{sHL}, 320
s_mul_i32 s{sTMP+3}, s{sWAVE}, {16*1280}
s_add_u32 s{sTMP+3}, s{sTMP+3}, s{sTMP+1}
s_add_u32 s{sTMP+3}, s{sTMP+3}, s{sTMP+2}
""")
    for j in range(5):
        p(f"""
v_add_u32 v{u}, {64*j}, v0
v_mul_u32_u24 v{u+1}, 205, v{u}
v_lshrrev_b32 v{u+1}, 12, v{u+1}
v_mul_u32_u24 v{u+2}, 20, v{u+1}
v_sub_u32 v{u+2}, v{u}, v{u+2}
v_lshrrev_b32 v{u+3}, 1, v{u+1}
v_and_b32 v{u+3}, 2, v{u+3}
v_xor_b32 v{u+2}, v{u+2}, v{u+3}
v_mul_u32_u24 v{u+1}, 1280, v{u+1}
v_lshl_add_u32 v{u+1}, v{u+2}, 4, v{u+1}
v_add_u32 v{u+1}, s{sTMP+3}, v{u+1}
v_subrev_u32 v{u+1}, {1024*(j%4)}, v{u+1}
""")
        park(vWOD + j, u + 1)
    p(f"""
s_lshr_b32 s{sTMP+3}, s2, 3
s_lshl_b32 s{sTMP+3}, s{sTMP+3}, 2
s_add_u32 s{sTMP+3}, s{sTMP+3}, s{sWAVE}
s_mul_i32 s{sTMP+3}, s{sTMP+3}, {60*128}
s_add_u32 s{sTMP+3}, s{sTMP+3}, s{sTMP+1}
v_lshlrev_b32 v{u}, 7, v0
v_add_u32 v{u}, s{sTMP+3}, v{u}
v_cmp_gt_u32 vcc, 60, v0
v_mov_b32 v{u+1}, {OOB}
v_cndmask_b32 v{u}, v{u+1}, v{u}, vcc
""")
    park(vPWO, u)
    p(f"""
v_mul_u32_u24 v{u}, 320, v{t+2}
v_lshl_add_u32 v{u}, v{t+4}, 3, v{u}
v_and_b32 v{u+1}, 16, v0
v_lshlrev_b32 v{u+1}, 1, v{u+1}
v_add_u32 v{u+2}, v{u}, v{u+1}
v_sub_u32 v{u+3}, v{u}, v{u+1}
""")
    park(vWOL, u + 2); park(vWOL + 1, u + 3)
    p(f"""
s_mul_i32 s96, s96, 73728
s_add_u32 s96, s96, s{sM0W}
s_mul_i32 s97, s97, {8*15360}
s_add_u32 s97, s97, {PART_OFF}
v_lshlrev_b32 v{u}, 4, v0
v_add_u32 v{u+2}, s96, v{u}
v_add_u32 v{u+3}, s97, v{u}
""")
    park(vOL, u + 2); park(vPT, u + 3)
    p(f"""
s_add_u32 s{sTMP+2}, s{sTMP+2}, s{sTMP+4}
v_mul_u32_u24 v{u}, 1280, v{t}
v_add3_u32 v{u}, v{u}, v{u+1}, s{sTMP+2}
v_lshrrev_b32 v{u+2}, 5, v0
v_lshl_add_u32 v{u}, v{u+2}, 4, v{u}
""")
    park(vOUT, u)
    p(f"v_mov_b32 v{u}, 0x3f803f80")
    for r in range(4): p(f"v_accvgpr_write_b32 a{aONE+r}, v{u}")
    for i in range(4):
        p(f"s_add_u32 s{sHI+i}, s{sHL}, {i}\ns_and_b32 s{sHI+i}, s{sHI+i}, 3\ns_mul_i32 s{sHI+i}, s{sHI+i}, 3")
    SC = math.log2(math.e) / math.sqrt(192.0)
    p(f"""
s_mul_i32 s{sWW}, s{sWAVE}, 5120
s_mov_b32 s{sLTHR}, {f32(LTHR)}
s_mov_b32 s{sSC}, {f32(SC)}
s_add_u32 s{sWR}, s{sM0W}, {2*(D0+1)*SLOT}
s_mov_b32 s{sRD}, 0
s_mov_b32 s{sT}, 1
""")

def S(t, **k): return Item('S', t, **k)
def V(t, **k): return Item('V', t, **k)
def wrap0(s, inc, lim, zero="0"):
    return [S(f"s_add_u32 s{s}, s{s}, {inc}"), S(f"s_cmp_ge_u32 s{s}, {lim}\ns_cselect_b32 s{s}, {zero}, s{s}")]
def dma_tile(kind, pre, so, tag=None, post=()):
    vd, srn, pol = {'K': (vKD, sK, NT), 'V': (vVD, sV, NT), 'W': (vWD, sWq, "")}[kind]
    g = [S(x) for x in pre]
    for j in range(3):
        g.append(Item('M', f"buffer_load_dwordx4 v{vd+j}, {sr(srn)}, {so} offen offset:{1024*j} {pol} lds", tag=tag))
    return g + list(post)
def dma_kv_static(kind, i):
    so = sKK if kind == 'K' else sKOFF
    return dma_tile(kind, [f"s_add_u32 m0, s{sM0W}, {kvslot(kind,i)*SLOT}"], f"s{so}", f"{kind}{i}", wrap0(so, SLOT, 32 * SLOT))
def dma_w(u):
    return dma_tile('W', [f"s_add_u32 m0, s{sM0W}, {wslot(u)*SLOT}"], f"s{sWOFF}", f"W{u}", wrap0(sWOFF, 32 * 12288, 640 * 12288))
def dma_x(c):
    g = []
    for half in range(2):
        g.append(S(f"s_add_u32 m0, s{sM0W}, {(xpair(c)+half)*SLOT}"))
        for qb in range(3):
            g.append(Item('M', f"buffer_load_dwordx4 v{vXD+2*qb+half}, {sr(sX)}, s{sXOFF} offen offset:{1024*qb} lds", tag=f"X{c}"))
    return g + wrap0(sXOFF, 128, 1280)
def kv_issue(nok=False):
    dk = dma_tile('K', [f"s_mov_b32 m0, s{sWR}"], f"s{sKK}") if not nok else []
    dv = dma_tile('V', [f"s_add_u32 m0, s{sWR}, {SLOT}"], f"s{sKOFF}")
    if nok: return dv
    return dk + dv + [S(f"s_mov_b32 s{sKOFF}, s{sKK}")] + wrap0(sKK, SLOT, 32 * SLOT) + wrap0(sWR, 2 * SLOT, 12 * SLOT, f"s{sM0W}")
def dma_wo(G):
    sl = goff(G); i, c = gic(G)
    g = [S(f"s_add_u32 s{sWOFF}, s{sHI+i}, {c}"), S(f"s_mul_i32 s{sWOFF}, s{sWOFF}, {64*1280}")]
    for j in range(5):
        if j == 0: g.append(S(f"s_add_u32 m0, s{sWW}, {sl}"))
        if j == 4: g.append(S(f"s_add_u32 m0, s{sWW}, {sl+4096}"))
        g.append(Item('M', f"buffer_load_dwordx4 v{vWOD+j}, {sr(sWo)}, s{sWOFF} offen offset:{1024*(j%4)} lds", tag=f"G{G}"))
    return g
def xfrag(c, ks, qb): return aX + (c % NXB) * 24 + (ks * 3 + qb) * 4
def read_x(c):
    off = (xpair(c) - XS0) * SLOT
    return [Item('L', f"ds_read_b128 {ar(xfrag(c,ks,qb))}, v{vXR+ks} offset:{off + qb*1024}") for ks in range(2) for qb in range(3)]
def flat(p, items):
    for it in items: p.cur += it.ins
def snake(mf, k): return mf[::-1] if (SNAKE and k & 1) else mf
class Pool:
    def __init__(self, size): self.n = 0; self.size = size
    def next(self):
        r = aPOOL + 4 * (self.n % self.size); self.n += 1; return r
def vunit_reads(buf, db, imm, va):
    return [f"ds_read_b64_tr_b16 {ar(buf,2)}, v{va+(db&3)} offset:{imm + (db>>2)*128}",
            f"ds_read_b64_tr_b16 {ar(buf+2,2)}, v{va+(db&3)} offset:{imm + (db>>2)*128 + 6144}"]

T = 4
RGAP = 6
class Stream:
    def __init__(self, tail=()):
        self.mf = []; self.items = []; self.resA = set()
        for u in tail: self.add_unit(u)
    def n(self): return len(self.mf)
    def add_unit(self, u):
        u['first'] = len(self.mf)
        if u.get('reads'): self.resA.add(len(self.mf) - 1)
        for k, m in enumerate(u['mf']): self.mf.append((u.get('head', []) if k == 0 else [], m))
    def reads(self, units, lo, hi, after=()):
        its = []
        tot = sum(len(u['reads']) for u in units); k = 0
        for u in units:
            g = lo + (hi - lo + 1) * k // tot
            for r in u['reads']:
                it = Item('L', r, lo=lo, hi=max(lo, min(hi, u['first'] - 5)), target=g, after=list(after) + ([(its[-1], 0)] if its else []))
                it.use = u['first']
                its.append(it); k += 1
        self.items += its
        return its
    def barrier(self, g, wait, after=()):
        w = Item('S', [x if isinstance(x, I) else I(x) for x in wait], lo=g, hi=g + 2, target=g, after=after)
        b = Item('S', "s_barrier", lo=g + 1, hi=g + 3, after=[(w, 1)])
        self.items += [w, b]
        return b
    def add(self, its): self.items += its; return its
    def emit(self, keep=0, name=""):
        mf = self.mf[:len(self.mf) - keep] if keep else self.mf
        out = pack(mf, self.items, self.resA, name)
        for it in self.items:
            if hasattr(it, 'use'):
                d = set(it.ins[0].dst)
                assert it.gap < it.use, (name, it.ins[0].text)
                for g in range(it.gap + 1, it.use):
                    assert not (d & set(self.mf[g][1].src)), ("pool WAR", name, it.ins[0].text, it.gap, g)
        return out

def qk_unit(pool, buf, kb, ds, c0, imm, k):
    pb = pool.next()
    mf = []
    for qb in range(3):
        d = sreg(buf, qb, kb)
        c = vr(d) if ds else (0 if c0 else vr(vNM + 4 * qb))
        mf.append(I(f"{MF} {vr(d)}, {ar(pb)}, {vr(qfrag(qb,ds))}, {c}"))
    return dict(reads=[f"ds_read_b128 {ar(pb)}, v{vKA+(ds&1)} offset:{imm + kb*6144 + (ds>>1)*128}"], mf=snake(mf, k))
def qk_units(pool, buf, imm, zero=()):
    return [qk_unit(pool, buf, kb, ds, kb in zero, imm, ds) for kb in range(2) for ds in range(6)]
def rs_unit(buf, zero=False):
    return dict(reads=None, mf=[I(f"{MF} {vr(vL[buf]+4*qb)}, {ar(aONE)}, {vr(vP[buf]+4*qb)}, {0 if zero else vr(vL[buf^1]+4*qb)}") for qb in range(3)])
def pv_units(pool, buf, imm, zero=False):
    units = []
    for db in range(12):
        pb = pool.next()
        z = zero and db < 12 - T
        mf = [I(f"{MF} {ar(oacc(db,qb))}, {ar(pb)}, {vr(vP[buf]+4*qb)}, {0 if z else ar(oacc(db,qb))}") for qb in range(3)]
        units.append(dict(reads=vunit_reads(pb, db, SLOT + imm, vVA), mf=snake(mf, db)))
    return units
PAIRS = [(qb, kb, h) for kb in range(2) for qb in range(3) for h in range(2)]
def softmax_items(buf, n0, n1, lo, hi, pre=None):
    ex = []; cv = []; ex0 = []
    for n in range(n0, n1):
        qb, kb, h = PAIRS[n]
        s = sreg(buf, qb, kb) + 2 * h
        e = vE + 2 * (n % NE)
        a = Item('E', f"v_exp_f32 v{e}, v{s}"); b = Item('E', f"v_exp_f32 v{e+1}, v{s+1}")
        if len(cv) >= NE: a.after.append((cv[-NE], 1))
        if pre:
            for k, x in enumerate((a, b)):
                sub = V(f"v_add_f32 v{s+k}, v{s+k}, v{vNM+4*qb}", lo=lo, hi=hi, after=[(pre, 1)])
                x.after.append((sub, 1)); ex0.append((sub, x))
        ex += [a, b]
        cv.append(V(f"v_cvt_pk_bf16_f32 v{vP[buf]+4*qb+2*kb+h}, v{e}, v{e+1}", lo=lo, hi=hi, after=[(b, 1)]))
    chain(ex, lo, hi - 1)
    for e in ex: e.hi = hi
    for k, c in enumerate(cv): c.target = ex[2 * k + 1].target + 1
    for sub, x in ex0: sub.target = max(lo, x.target - 2)
    return [s for s, _ in ex0] + ex + cv
SPLIT = 6
LTHR = 2.0 ** 40
def rowmax_text(buf, qb, d, t):
    s0, s1 = sreg(buf, qb, 0), sreg(buf, qb, 1)
    return [f"v_max3_f32 v{d}, v{s0}, v{s0+1}, v{s0+2}", f"v_max3_f32 v{t}, v{s1}, v{s1+1}, v{s1+2}",
            f"v_max3_f32 v{d}, v{d}, v{s0+3}, v{s1+3}", f"v_max_f32 v{d}, v{d}, v{t}",
            f"v_mov_b32 v{t}, v{d}", f"v_permlane32_swap_b32 v{d}, v{t}", f"v_max_f32 v{d}, v{d}, v{t}",
            f"v_mov_b32 v{t}, v{d}", f"v_permlane16_swap_b32 v{d}, v{t}", f"v_max_f32 v{d}, v{d}, v{t}"]
def rare_path(p, label, buf):
    p.reset_state()
    p(f"{label}:\ns_nop 15")
    for qb in range(3):
        d = vR + qb
        p("\n".join(rowmax_text(buf, qb, d, vR + 8)))
        p(f"v_max_f32 v{d}, 0, v{d}")
        for r in range(4): p(f"v_sub_f32 v{vNM+4*qb+r}, v{vNM+4*qb+r}, v{d}")
        for bb in (buf, buf ^ 1):
            for r in range(8): p(f"v_sub_f32 v{sreg(bb,qb,0)+r}, v{sreg(bb,qb,0)+r}, v{d}")
        p(f"v_exp_f32_e64 v{vR+4+qb}, -v{d}")
    for qb in range(3):
        for r in range(4): p(f"v_mul_f32 v{vL[buf^1]+4*qb+r}, v{vL[buf^1]+4*qb+r}, v{vR+4+qb}")
        for r in [oacc(db, qb) + r for db in range(12) for r in range(4)]:
            p(f"v_accvgpr_read_b32 v{vR+9}, a{r}\nv_mul_f32 v{vR+9}, v{vR+9}, v{vR+4+qb}\nv_accvgpr_write_b32 a{r}, v{vR+9}")
    for (qb, kb, h) in PAIRS:
        s = sreg(buf, qb, kb) + 2 * h
        p(f"v_exp_f32 v{vE}, v{s}\nv_exp_f32 v{vE+1}, v{s+1}\nv_cvt_pk_bf16_f32 v{vP[buf]+4*qb+2*kb+h}, v{vE}, v{vE+1}")
    p.cur += rs_unit(buf)['mf']
    p(f"s_nop 15\ns_setpc_b64 s[98:99]")
    p.flush()

KVPRE = ['K0', 'K1', 'V0', 'K2', 'V1', 'K3', 'V2', 'K4', 'V3']
def get_sched():
    PRO = ['X0', 'W0', 'W1', 'W2']; PRO2 = ['X1']
    QS = {0: (['W3'], None, []), 1: (['W4', 'W5'], 1, ['X2']), 2: (['W6'], None, ['X3']), 3: (['W7'], 2, ['X4']), 4: (['W8'], 3, ['X5']),
          5: (['W9', 'K0', 'K1'], None, []), 6: (['W10'], 4, ['X6']), 7: (['W11'], 5, ['X7']), 8: (['W12', 'V0', 'K2'], None, []),
          9: (['W13'], 6, ['X8']), 10: (['W14'], 7, ['X9']), 11: (['W15'], None, []), 12: (['W16'], 8, []), 13: (['W17'], 9, []),
          14: (['W18'], None, []), 15: (['W19'], None, []), 16: (['V1', 'K3', 'V2', 'K4', 'V3'], None, [])}
    if SCHED == 1:
        QS[5] = (['W9'], None, []); QS[8] = (['W12', 'K0', 'K1'], None, []); QS[11] = (['W15', 'V0', 'K2'], None, [])
    if SCHED == 2:
        QS[5] = (['W9'], None, []); QS[8] = (['W12'], None, []); QS[11] = (['W15', 'K0', 'K1'], None, [])
        QS[15] = (['W19', 'V0', 'K2'], None, [])
    if SCHED == 3:
        QS[13] = (['W17'], 9, ['V1', 'K3']); QS[16] = (['V2', 'K4', 'V3'], None, [])
    keep = KVPRE[:1 + 2 * D0]
    for u in QS: QS[u] = tuple([n for n in part if n[0] not in 'KV' or n in keep] if isinstance(part, list) else part for part in QS[u])
    if QKV:
        for u in QS: QS[u] = tuple([n for n in part if n[0] not in 'KV'] if isinstance(part, list) else part for part in QS[u])
        for u, l in QKV.items(): QS[u] = (QS[u][0] + l,) + QS[u][1:]
    return PRO, PRO2, QS
QKV = {11: ['K0', 'K1'], 16: ['V0', 'K2', 'V1', 'P0']}
def pf_wo(v): return [Item('M', f"buffer_load_dword v{vDUM}, v{v}, {sr(sWo)}, 0 offen", tag="dummy")]
def issue(name):
    if name == 'P0': return [V(f"v_accvgpr_read_b32 v1, a{aPARK + PARK.index(vPWO)}")] + pf_wo(1)
    k, i = name[0], int(name[1:])
    return dma_x(i) if k == 'X' else dma_w(i) if k == 'W' else dma_kv_static(k, i)
def check_sched(PRO, PRO2, QS):
    occ = {}; xread = {0: -1}
    for u, (e, xr, l) in QS.items():
        if xr is not None: xread[xr] = u
    def put(n, u, late):
        k, i = n[0], int(n[1:])
        if k == 'P': return
        for s in ([xpair(i), xpair(i) + 1] if k == 'X' else [wslot(i)] if k == 'W' else [kvslot(k, i)]):
            o = occ.get(s)
            if o:
                k2, i2 = o[0], int(o[1:])
                if k2 == 'W': assert i2 <= u - 1, (n, u, o)
                elif k2 == 'X': assert xread[i2] < u or (xread[i2] == u and late), (n, u, o)
                else: assert False, (n, u, o)
            occ[s] = n
    seq = []
    for n in PRO: put(n, -2, False); seq.append(n)
    for n in PRO2: put(n, -1.5, True); seq.append(n)
    for u in sorted(QS):
        e, xr, l = QS[u]
        for n in e: put(n, u, False); seq.append(n)
        for n in l: put(n, u, True); seq.append(n)
        if xr is not None: assert min(xr * 2, 20 - NDB) > u and (xr - NXB) * 2 + 1 < u, (xr, u)
    assert [n for n in seq if n[0] == 'W'] == [f"W{i}" for i in range(20)]
    assert [n for n in seq if n[0] == 'X'] == [f"X{i}" for i in range(10)]
    assert [n for n in seq if n[0] in 'KV'] == KVPRE[:1 + 2 * D0]
    assert seq.index('K0') < seq.index('W19')

def front(p, pool):
    assert NDB == 4
    PRO, PRO2, QS = get_sched()
    check_sched(PRO, PRO2, QS)
    for n in PRO: flat(p, issue(n))
    setup_reads(p)
    for uu in range(4): p(f"v_add_u32 v{vVA+uu}, {wslot(0)*SLOT}, v{vVL+uu}")
    q = Prog(); setup_rest(q)
    ntok = max(k for k, x in enumerate(q.cur) if x.kind == 'smem') + 1
    p.cur += q.cur[:ntok]
    late = []
    for x in q.cur[ntok:]:
        if x.op in ('s_addc_u32', 'v_cndmask_b32'): late[-1].ins.append(x)
        else: late.append(Item('V' if x.kind == 'valu' else 'S', [x]))
    if not LATESET: flat(p, late); late = []
    p("WAITVM X0"); p.cur += stp('X0')
    flat(p, read_x(0))
    for n in PRO2: flat(p, issue(n))
    p(f"""
s_add_u32 s{sTK1}, s{sTK1}, {TOKC[0]}
s_addc_u32 s{sTK1+1}, s{sTK1+1}, {TOKC[1]}
s_add_u32 s{sTK2}, s{sTK2}, {TOKC[0]}
s_addc_u32 s{sTK2+1}, s{sTK2+1}, {TOKC[1]}
""")
    p("WAITVM W0\ns_barrier")
    st = Stream()
    if late:
        chain(late, 0, 36 * 8)
        for x in late: x.dense = True; x.target = 0
        st.add(late)
        kvset = [x for x in late if set(x.ins[0].dst) & {('v', vKD + 2)}][0]
    NU = 20 - NDB
    def wunit(u, db, va, imm, k):
        buf = pool.next()
        mf = [I(f"{MF} {vr(qacc(db,qb))}, {ar(buf)}, {ar(xfrag(u>>1,u&1,qb))}, {vr(qacc(db,qb)) if u else 0}") for qb in range(3)]
        return dict(reads=vunit_reads(buf, db, imm, va), mf=snake(mf, k))
    tiles = [[wunit(u, db, vVA if u % 2 == 0 else vVB, 0, db) for db in range(12)] for u in range(NU)]
    sa = {16: (vVA, 0), 17: (vVA, SLOT), 19: (vVA, 2 * SLOT), 18: (vVB, 0)}
    sup = [wunit(u, db, sa[u][0], sa[u][1], k) for db in range(12) for k, u in enumerate((16, 17, 19, 18))]
    tiles.append(sup)
    qk0 = [qk_unit(pool, 0, kb, ds, True, 0, kb) for ds in range(6) for kb in range(2)]
    qk1 = qk_units(pool, 1, 2 * SLOT, zero=(0,))
    rs = rs_unit(0, zero=True)
    pv = pv_units(pool, 0, 2 * SLOT, zero=True)
    for tl in tiles + [qk0, qk1, [rs], pv]:
        for un in tl: st.add_unit(un)
    n = st.n() - 3 * T
    prevdma = None
    for u in range(NU + 1):
        g0 = 36 * u - 3 * T
        span = 36 if u < NU else 36 * NDB
        if u == 0:
            for un in tiles[0][:T]:
                for r in un['reads']: p(r)
            rd = st.reads(tiles[0][T:], 0, g0 + 36 - RGAP)
            bar = None; glo = 0
        else:
            bar = st.barrier(g0, [f"WAITVM W{u if u < NU else 19}", "s_waitcnt lgkmcnt(0)"] + stp(f"u{u}"))
            aft = [(bar, 0)]
            if u == NU:
                vb = chain([V(f"v_add_u32 v{vVB+uu}, {wslot(18)*SLOT}, v{vVL+uu}") for uu in range(4)], g0 - 4, g0 + 1)
                vb[0].after.append((rd[-1], 1)); st.add(vb)
                for x in vb: x.hi = g0 + 4
            rd = st.reads(tiles[u], g0 + 1, g0 + span - (RGAP if u < NU else 0), aft)
            if u == NU:
                for x in rd[6:8]: x.after.append((vb[-1], 1))
            glo = g0 + 2
        if u < NU:
            va = vVA if (u + 1) % 2 == 0 else vVB
            st.add(chain([V(f"v_add_u32 v{va+uu}, {wslot(u+1)*SLOT}, v{vVL+uu}") for uu in range(4)], glo + 6, g0 + 30))
        e, xr, l = QS[u]
        f1 = [g for nm in e for g in issue(nm)]
        nx = [g for nm in l for g in issue(nm)]
        seq = []
        if f1:
            chain(f1, glo, glo + (12 if u < NU else KVSPAN))
            if bar: f1[0].after.append((bar, 1))
            if late and 'K0' in e: f1[0].after.append((kvset, 1))
            if late and 'P0' in e: f1[0].after.append((late[-1], 1))
            seq += f1
        if xr is not None:
            rx = [S(f"WAITVM X{xr}")] + read_x(xr)
            chain(rx, g0 + 14, g0 + 22)
            seq += rx
            if nx: nx = [V(f"v_accvgpr_read_b32 v{vT0}, a{xfrag(xr,1,2)}", after=[(rx[-1], 4)])] + nx
        if nx:
            chain(nx, g0 + 24, g0 + 35); seq += nx
        for k in range(len(seq)):
            pvs = seq[k - 1] if k else prevdma
            if pvs is not None and not any(a is pvs for a, _ in seq[k].after): seq[k].after.append((pvs, 1))
            seq[k].hi = g0 + span + 14 if seq[k].kind != 'L' else g0 + 30
        if seq: prevdma = seq[-1]
        st.add(seq)
    wlast = rd[-1]
    assert oacc(12 - T, 0) == xfrag(4, 0, 0)
    st.add(chain([V(f"v_accvgpr_write_b32 a{oacc(12-T,0)+r}, 0") for r in range(12 * T)], 36 * 12 + 4, 36 * 16 - 20))
    cprev = None
    for s in range(6):
        its = []
        for qb in range(3):
            a, b, q = qacc(2 * s, qb), qacc(2 * s + 1, qb), qfrag(qb, s)
            its += [V(f"v_mul_f32 v{r}, s{sSC}, v{r}") for r in list(range(a, a + 4)) + list(range(b, b + 4))]
            its += [V(f"v_cvt_pk_bf16_f32 v{q+k}, v{r}, v{r+1}") for k, r in enumerate((a, a + 2, b, b + 2))]
        for qb in range(3):
            q = qfrag(qb, s)
            its += [V(f"v_permlane16_swap_b32 v{q}, v{q+2}"), V(f"v_permlane16_swap_b32 v{q+1}, v{q+3}")]
        lo = sup[8 * s + 7]['first'] + 5
        dl = qk0[2 * s]['first'] - 2 if s else qk0[0]['first'] - 2
        chain(its, lo, min(lo + 26, dl), 0)
        for x in its: x.hi = dl; x.dense = True; x.target = lo
        if cprev: its[0].after.append((cprev, 0))
        cprev = its[-1]; st.add(its)
    q0 = qk0[0]['first']
    kr0 = st.reads(qk0, q0 - 11, q0 + 14, [(wlast, 0)])
    gx = q0 + 20
    barx = st.barrier(gx, ["WAITVM V0", "s_waitcnt lgkmcnt(0)"] + stp('Qend'), after=[(kr0[-1], 1), (prevdma, 1)])
    kr1 = st.reads(qk1, gx + 1, qk1[0]['first'] + 18, [(barx, 0)])
    va = chain([V(f"v_mov_b32 v{vVA+u}, v{vVL+u}") for u in range(4)], q0, q0 + 20); va[0].after.append((wlast, 1)); st.add(va)
    for x in va: x.hi = qk1[6]['first']
    st.reads(pv, kr1[-1].target + 2, n - 12, [(kr1[-1], 0), (va[-1], 1)])
    dm = chain(kv_issue(), qk0[10]['first'], qk0[10]['first'] + 14); dm[0].after.append((barx, 1)); st.add(dm)
    for x in dm: x.hi = n - 8
    lo = qk1[0]['first'] + 3; dl = qk1[6]['first'] - 2
    cols = [[V(t) for t in rowmax_text(0, qb, vR + qb, vR + 4 + qb)] for qb in range(3)]
    rm = [cols[qb][k] for k in range(10) for qb in range(3)]
    rm += [V(f"v_sub_f32 v{vNM+4*qb+r}, 0, v{vR+qb}") for r in range(4) for qb in range(3)]
    chain(rm, lo, dl, 0); st.add(rm)
    for x in rm: x.dense = True; x.target = lo
    st.add(softmax_items(0, 0, 12, lo + 10, rs['first'] - 2, pre=rm[32]))
    st.add(softmax_items(1, 0, SPLIT, pv[0]['first'] + 1, n - 1, pre=rm[-1]))
    up = wrap0(sRD, 4 * SLOT, 12 * SLOT) + [V(f"v_add_u32 v{vKA+u}, s{sRD}, v{vKL+u}") for u in range(2)]
    up[0].after += [(kr1[-1], 1), (dm[-1], 1)]
    st.add(chain(up, pv[0]['first'], n - 2))
    p.cur += st.emit(3 * T, name="front")
    return [dict(mf=u['mf']) for u in pv[12 - T:]]

def o_store(s):
    return [S(f"s_add_u32 s{sXOFF}, s{sKOFF}, {s*12288}")] + [
        Item('M', f"buffer_store_dwordx4 {bfrag(s,qb)}, v{vOL}, {sr(sWS)}, s{sXOFF} offen offset:{1024*qb} sc1", tag=f"OST{s>>1}") for qb in range(3)]
def o_chunk(s):
    its = []
    stv = o_store(s)
    if s < NST: its.append(stv[0])
    for qb in range(3):
        t = 32 + 8 * ((s * 3 + qb) % 3); d = vQ + (s * 3 + qb) * 4
        its += [V(f"v_accvgpr_read_b32 v{t+4*h+r}, a{oacc(2*s+h,qb)+r}") for h in range(2) for r in range(4)]
        its += [V(f"v_mul_f32 v{t+r}, v{t+r}, v{vRC+qb}") for r in range(8)]
        its += [V(f"v_cvt_pk_bf16_f32 v{d+r}, v{t+2*r}, v{t+2*r+1}") for r in range(4)]
        if s < NST: its.append(stv[1 + qb])
    return its

def attention(p, pool, tail):
    def step(t_par, tail, mode, vm, extra=(), endi=()):
        cur, nxt = t_par, t_par ^ 1
        last = mode == 'last'
        imm = 0 if t_par else 2 * SLOT
        st = Stream(tail)
        qk = [] if last else qk_units(pool, nxt, imm)
        pv = pv_units(pool, cur, imm)
        rs = rs_unit(cur)
        ret = p.newlabel("L_ret"); tr = p.newlabel("L_tramp")
        TRAMPS.append((tr, ret, cur))
        pv[0]['head'] = L(f"s_cbranch_vccnz {tr}\n{ret}:")
        for u in qk[:9] + [rs] + qk[9:] + pv: st.add_unit(u)
        keep = 0 if last else 3 * T
        n = st.n() - keep
        w = [f"s_waitcnt vmcnt({vm}) lgkmcnt(0)"]
        if mode == 'A' and RAMP:
            lr = p.newlabel("L_rp")
            for (tmax, v2) in RAMP: w += [f"s_cmp_gt_u32 s{sT}, {tmax}", f"s_cbranch_scc1 {lr}", f"s_waitcnt vmcnt({v2})"]
            w += [f"{lr}:"]
        bar = st.barrier(0, w)
        kr = st.reads(qk, 1, 33, [(bar, 0)]) if qk else []
        aft = [(bar, 0)] + ([(kr[-1], 0)] if kr else [])
        if t_par:
            va = chain([V(f"v_add_u32 v{vVA+u}, s{sRD}, v{vVL+u}") for u in range(4)], 0, 3 if last else 20)
            st.add(va); aft.append((va[-1], 1))
        st.reads(pv, (kr[-1].target + 2) if kr else 3, (n - 12) if not last else 30, aft)
        if not t_par:
            up = wrap0(sRD, 4 * SLOT, 12 * SLOT) + [V(f"v_add_u32 v{vKA+u}, s{sRD}, v{vKL+u}") for u in range(2)]
            up[0].after += [(kr[-1], 1)]
            st.add(chain(up, rs['first'], n - 4))
        dm = []
        if mode == 'A':
            dm = chain(kv_issue(), 2, DMAHI)
            for x in dm: x.hi = n - 8
        if extra:
            fx = [x for x in extra if getattr(x, 'fixed', False)]; fr = [x for x in extra if not getattr(x, 'fixed', False)]
            if fr:
                chain(fr, (rs['first'] + 4) if last else (DMAHI + 2 if fx else 2), n - 1 if last else (68 if fx else 56))
                if fx: fr[0].after.append((fx[-1], 1))
            dm = fx + fr
            for x in dm: x.hi = n - 1
        if dm: dm[0].after.append((bar, 1))
        st.add(dm)
        st.add(softmax_items(cur, SPLIT, 12, 0, rs['first'] - 2))
        pf = pv[0]['first']
        mx = V(f"v_max3_f32 v{vCK}, v{vL[cur]}, v{vL[cur]+4}, v{vL[cur]+8}", lo=min(rs['first'] + 6, pf - 1), hi=pf - 1)
        st.add([mx, V(f"v_cmp_nge_f32 vcc, s{sLTHR}, v{vCK}", after=[(mx, 0)], hi=pf - 1)])
        if not last: st.add(softmax_items(nxt, 0, SPLIT, pf + 1, n - 1))
        else:
            rc = chain([S(f"s_mul_i32 s{sKOFF}, s{sHL}, 73728")] + [Item('E', f"v_rcp_f32 v{vRC+qb}, v{vL[1]+4*qb}") for qb in range(3)], pf, pf + 6)
            prev = rc[-1]; st.add(rc)
            for x in rc: x.hi = n - 1
            for s in range(NEO):
                its = o_chunk(s); lo = pv[2 * s + 1]['first'] + 6
                chain(its, lo, lo + 10 + 10 * s)
                for x in its: x.hi = n - 1; x.dense = True; x.target = lo
                its[0].after.append((prev, 1)); prev = its[-1]; st.add(its)
        if endi: st.add(chain(list(endi), n - 3, n - 1, 0))
        return st.emit(keep, name=mode), ([] if last else [dict(mf=u['mf']) for u in pv[12 - T:]])
    txt = lambda tl: [[i.text for i in u['mf']] for u in tl]
    lp = "L_attA"
    b1, tail1 = step(1, tail, 'A', VMLIM)
    b2, tail2 = step(0, tail1, 'A', VMLIM, endi=[S(f"s_add_u32 s{sT}, s{sT}, 2"), S(f"s_cmp_lt_u32 s{sT}, 27")])
    assert txt(tail2) == txt(tail) and VMLIM <= 6 * (D0 - 1)
    tr = []
    if TRACE: tr = L(f"s_memrealtime s[84:85]\ns_waitcnt lgkmcnt(0)\ns_mov_b32 m0, s{sT}\nv_writelane_b32 v174, s84, m0")
    p.loop(L(f"{lp}:") + tr + b1 + b2 + L(f"s_cbranch_scc1 {lp}"))
    if TRACE:
        p(f"s_add_u32 s96, s90, {STAMP_OFF + 65536}\ns_addc_u32 s97, s91, 0"); srd(p, 84, 96, 1 << 20)
        p(f"s_lshl_b32 s{sTMP}, s2, 2\ns_add_u32 s{sTMP}, s{sTMP}, s{sWAVE}\ns_lshl_b32 s{sTMP}, s{sTMP}, 9\nv_lshlrev_b32 v{vT0}, 3, v0")
        p(f"buffer_store_dwordx2 v[174:175], v{vT0}, s[84:87], s{sTMP} offen")
    p.cur += stp('Lend')
    p("L_att27:")
    cnt = lambda its: sum(1 for x in its if x.kind == 'M')
    log = [pr for pr in range(27, 27 + D0) for _ in range(6)]
    nxt = 27 + D0
    tl = tail
    for t in range(27, 32):
        vm = len(log) - 1 - max(k for k, x in enumerate(log) if x == t)
        lastkv = max(k for k, x in enumerate(log) if x >= 0)
        if 'kv' in PLAN[t] or (VMTAIL and t < VMTAIL): vm = min(vm, VMLIM + len(log) - 1 - lastkv)
        ex = []
        for a in PLAN[t]:
            if a == 'kv': its = kv_issue(nok=(nxt == 31)); log += [nxt] * cnt(its); nxt += 1
            else:
                if a == 'r': its = [V(f"v_accvgpr_read_b32 v{r}, a{aPARK+k}") for k, r in enumerate(PARK)]
                elif a == 'p': its = pf_wo(vPWO)
                elif a == 'l': its = [Item('M', f"buffer_load_dword v{vDUM}, v{vF1}, {sr(sWS)}, 0 offen offset:128 sc1", tag="dummy")]
                else:
                    assert t >= {0: 28, 1: 28, 2: 29, 3: 29, 4: 30, 5: 31, 6: 31}[a]
                    its = dma_wo(a)
                log += [-1] * cnt(its)
            if a == 'kv':
                chain(its, 2, DMAHI)
                for x in its: x.fixed = True
            ex += its
        ins, tl = step(t & 1, tl, 'last' if t == 31 else 'P', min(vm, 63), ex); p.cur += ins
    assert nxt == 32
    p.cur += stp('Aend')
    for s in range(NEO, 6): flat(p, o_chunk(s))

def set_flag(vfl, sidx, off=0, local=False, vt=None):
    vt = vt or vTK
    st = f"buffer_store_dwordx2 v[{vt}:{vt+1}], v{vfl}, {sr(sWS)}, 0 offen offset:"
    return L(f"s_lshl_b64 exec, 1, s{sidx}\n" + (f"{st}{off+128}\n" if local else "") + f"{st}{off} sc1\ns_mov_b64 exec, -1")
def spin(name, voff, tk, off):
    one = lambda o: f"""buffer_load_dwordx2 v[{vFLV}:{vFLV+1}], v{voff}, {sr(sWS)}, 0 offen offset:{o} sc1
s_waitcnt vmcnt(0)
v_cmp_ne_u64 vcc, s[{tk}:{tk+1}], v[{vFLV}:{vFLV+1}]
s_cbranch_vccz L_spinr{name}
"""
    OUTL.append(f"""L_spin{name}:
s_mov_b32 s{sTMP}, 0x10000
L_poll{name}:
""" + (one(off + 128) * NLOC if LOCAL else "") + one(off) + f"""s_sub_u32 s{sTMP}, s{sTMP}, 1
s_cmp_lg_u32 s{sTMP}, 0
s_cbranch_scc1 L_poll{name}
s_branch L_spinr{name}
""")
def bump_epoch(p, voff, tk, sidx, off):
    ne = p.newlabel("L_ne")
    p(f"s_cmp_lg_u32 s{sidx}, 0\ns_cbranch_scc1 {ne}\nv_mov_b32 v{vFLV}, s{tk}\nv_mov_b32 v{vFLV+1}, s{tk+1}\ns_mov_b64 exec, 1")
    p.flush()
    p.raw(f"buffer_store_dwordx2 v[{vFLV}:{vFLV+1}], v{voff}, {sr(sWS)}, 0 offen offset:{off} sc1")
    p(f"s_mov_b64 exec, -1\ns_nop 1\n{ne}:")
def load_g(G):
    i, c = gic(G)
    g = [S(f"s_add_u32 s{sXOFF}, s{sHI+i}, {c}"), S(f"s_mul_i32 s{sXOFF}, s{sXOFF}, 24576")]
    for ks in range(2):
        if ks: g.append(S(f"s_add_u32 s{sXOFF}, s{sXOFF}, 12288"))
        g += [Item('M', f"buffer_load_dwordx4 {bfrag(2*G+ks,qb)}, v{vOL}, {sr(sWS)}, s{sXOFF} offen offset:{1024*qb} sc1") for qb in range(3)]
    return g

def oproj(p):
    pool = Pool(12)
    NEXTG = max(a for v in PLAN.values() for a in v if isinstance(a, int)) + 1
    def unit(G, ks, nb, va, imm):
        u = 2 * G + ks; pb = pool.next(); a = va + (nb & 1)
        rd = [f"ds_read_b64_tr_b16 {ar(pb,2)}, v{a} offset:{imm+ks*10240+nb*32}", f"ds_read_b64_tr_b16 {ar(pb+2,2)}, v{a} offset:{imm+ks*10240+nb*32+5120}"]
        mf = [I(f"{MF} {ar(cacc(nb,qb))}, {ar(pb)}, {bfrag(u,qb)}, {ar(cacc(nb,qb)) if u else 0}") for qb in range(3)]
        return dict(reads=rd, mf=snake(mf, pool.n))
    def seta(va, off): return [V(f"v_add_u32 v{va+k}, {off}, v{vWOL+k}") for k in range(2)]
    NG = 6
    def un2(G, ks, nb): return unit(G, ks, nb, vWA[2 + (G - NG) // 3], ((G - NG) % 3) * GSZ)
    assert all(goff(G + 1) == goff(G) + GSZ for G in range(NG, 11))
    U = [[unit(G, ks, nb, vWA[G & 1], 0) for ks in range(2) for nb in range(10)] for G in range(NG)]
    A1 = [un2(G, ks, nb) for G in range(6, 9) for ks in range(2) for nb in range(6 if G >= GS else 10)]
    A2 = [un2(G, ks, nb) for G in range(9, 12 - NBA) for ks in range(2) for nb in range(6)]
    F = [[un2(G, ks, nb) for G in range(12 - NBA if nb < 6 else GS, 12) for ks in range(2)] for nb in range(10)]
    tiles = U + [A1, A2 + [u for nb in range(10) for u in F[nb]]]
    flat(p, seta(vWA[0], goff(0)))
    p(f"s_mul_i32 s{sT}, s{sHG}, 15360\nv_mov_b32 v{vTK}, s{sTK1}\nv_mov_b32 v{vTK+1}, s{sTK1+1}")
    p("WAITVM G0\ns_waitcnt lgkmcnt(0)\ns_barrier"); p.cur += stp('G0')
    st = Stream()
    for tl in tiles:
        for u in tl: st.add_unit(u)
    for u in U[0][:T]:
        for r in u['reads']: p(r)
    st.add(chain(seta(vWA[2], goff(6)) + seta(vWA[3], goff(9)) + [V(f"v_mov_b32 v{vTK2}, s{sTK2}"), V(f"v_mov_b32 v{vTK2+1}, s{sTK2+1}")], 200, 300))
    mem = []
    def addmem(its, lo, hi, after=None):
        chain(its, lo, hi)
        for x in its: x.hi = 10 ** 9
        if after: its[0].after.append(after)
        if mem: its[0].after.append((mem[-1], 1))
        mem.extend(its); st.add(its)
    bars = {}
    for k, tl in enumerate(tiles):
        g0 = tl[0]['first'] - 3 * T
        last = tiles[k + 1][0]['first'] - 3 * T - RGAP if k + 1 < len(tiles) else st.n() - 14
        if k == 0: st.reads(U[0][T:], 0, last)
        else:
            bars[k] = st.barrier(g0, [f"WAITVM G{k if k < 6 else 8 if k == 6 else 11}", "s_waitcnt lgkmcnt(0)"] + stp(f"G{k if k <= 6 else 9}"))
            st.reads(tl, g0 + 1, last, [(bars[k], 0)])
        if k + 1 < NG: st.add(chain(seta(vWA[(k + 1) & 1], goff(k + 1)), max(g0, 0) + 20, g0 + 50))
    pv = {0: 2, 1: 4, 2: 8}
    wit = {}
    for pos, act in OCH:
        k, n = act[0], int(act[1:])
        if k == 'W':
            if n >= NEXTG:
                addmem(dma_wo(n), pos, pos + 12, (bars[n - 7], 1) if n >= 8 else None); wit[n] = mem[-1]
        elif k == 'F': addmem([Item('M', [I(f"WAITVM OST{n}")] + stp(f"F{n}") + set_flag(vF1, sHL, 32 * n, LOCAL))], pos, pos)
        elif k == 'P': addmem([Item('M', f"buffer_load_dwordx2 v[{pv[n]}:{pv[n]+1}], v{vF1}, {sr(sWS)}, 0 offen offset:{32*n + (128 if LOCAL else 0)} sc1")], pos, pos)
        elif k == 'C':
            addmem([V(f"v_cmp_ne_u64 vcc, s[{sTK1}:{sTK1+1}], v[{pv[n]}:{pv[n]+1}]")], pos, pos)
            addmem([Item('S', stp(f"C{n}a") + L(f"s_cbranch_vccnz L_spin{n}\nL_spinr{n}:") + stp(f"C{n}b"))], pos + 3, pos + 3)
            spin(n, vF1, sTK1, 32 * n)
        elif k == 'B': addmem([x for G in range(3 + 3 * n, 6 + 3 * n) for x in load_g(G)], pos, pos + 40)
        elif k == 'b': addmem(load_g(n), pos, pos + 14)
        elif k == 'S':
            assert n >= NST
            addmem(o_store(n), pos, pos + 6)
    def gran(m, qb, k):
        t = vQ + 12 * (k % 4); j = m * 3 + qb
        its = [V(f"v_accvgpr_read_b32 v{t+h*4+r}, a{cacc(2*m+h,qb)+r}") for h in range(2) for r in range(4)]
        its += [V(f"v_cvt_pk_bf16_f32 v{t+8+r}, v{t+2*r}, v{t+2*r+1}") for r in range(4)]
        if j % 4 == 0: its.append(S(f"s_add_u32 s{sTMP+1}, s{sT}, {j*1024}"))
        its.append(Item('M', f"buffer_store_dwordx4 {vr(t+8)}, v{vPT}, {sr(sWS)}, s{sTMP+1} offen offset:{(j%4)*1024} sc1", tag="PA" if m < 3 else "PB"))
        return its
    k = 0
    for m in range(4):
        its = []
        for qb in range(3): its += gran(m, qb, k); k += 1
        lo = F[2 * m + 2][0]['first'] + 4
        fa = [Item('M', [I("WAITVM PA")] + stp('FA') + set_flag(vF2, sHG, 0, vt=vTK2))]
        fp = min(F[6][0]['first'] + FAPOS, st.n() - 1)
        if m == 3 and fp <= lo: addmem(fa, fp, fp)
        addmem(its, lo, lo + 24)
        if m == 3 and fp > lo: addmem(fa, fp, fp)
    p.cur += st.emit(name="oproj")
    for it in mem:
        if it.kind == 'M' and it.ins[0].op == 'buffer_load_dwordx4' and it.ins[0].dst:
            d = set(it.ins[0].dst)
            assert it.gap < min(g for g, (h, m) in enumerate(st.mf) if d & set(m.src)), it.ins[0].text
    for n, it in wit.items(): assert it.gap < bars[n if n < 6 else 6 if n < 9 else 7].gap - 1, n
    assert set(wit) | set(range(NEXTG)) == set(range(12))
    p.cur += stp('E')
    for qb in range(3): flat(p, gran(4, qb, k)); k += 1

def final_reduce(p):
    sDONE, sNEW, sO2 = sKK, sWR, sRD
    ld = f"buffer_load_dwordx2 v[{vFLV}:{vFLV+1}], v{vF2}, {sr(sWS)}, 0 offen sc1"
    p(f"""
{ld}
s_lshl_b32 s{sTMP}, s{sHG}, 10
v_add_u32 v2, s{sTMP}, v{vPT}
s_cmp_eq_u32 s{sHG}, 7
s_cselect_b32 s{sO2}, {OOB}, 0
s_cselect_b32 s{sDONE}, 0xff00, 0
s_mov_b32 s{sT}, 0xffff0000
s_mov_b32 s{sTMP}, 0x20000
WAITVM PB
""")
    p.cur += set_flag(vF2, sHG, 64, vt=vTK2); p.cur += stp('ACK')
    p("s_waitcnt vmcnt(1)\ns_branch L_fin2")
    p.flush()
    t = f"""L_fin:
{ld}
s_waitcnt vmcnt(0)
L_fin2:
v_cmp_eq_u64 vcc, s[{sTK2}:{sTK2+1}], v[{vFLV}:{vFLV+1}]
s_nop 4
s_and_b32 s{sNEW}, vcc_lo, 0xffff
s_andn2_b32 s{sNEW}, s{sNEW}, s{sDONE}
s_or_b32 s{sDONE}, s{sDONE}, s{sNEW}
"""
    for g in range(16):
        t += f"""s_bitcmp0_b32 s{sNEW}, {g}
s_cbranch_scc1 L_fs{g}
s_mov_b32 s{sTMP+1}, {(g%8)*15360 + (g//8)*8192}
buffer_load_dwordx4 {vr(32+g*4)}, v2, {sr(sWS)}, s{sTMP+1} offen sc1
L_fs{g}:
"""
    t += f"""s_cmp_eq_u32 s{sDONE}, 0xffff
s_cbranch_scc1 L_find
s_sub_u32 s{sTMP}, s{sTMP}, 1
s_cmp_lg_u32 s{sTMP}, 0
s_cbranch_scc1 L_fin
L_find:"""
    p.raw(t)
    p.cur += stp('P2')
    for i in range(2):
        p(f"""
s_add_u32 s{sTMP}, s{sHG}, {8*i}
s_mul_i32 s{sTMP+1}, s{sTMP}, 11
s_lshr_b32 s{sTMP+1}, s{sTMP+1}, 5
s_mul_i32 s{sTMP+3}, s{sTMP+1}, 3
s_sub_u32 s{sTMP+3}, s{sTMP}, s{sTMP+3}
s_mul_i32 s{sTMP+3}, s{sTMP+3}, {16*1280}
s_lshl_b32 s{sTMP+1}, s{sTMP+1}, 6
s_add_u32 s{sTMP+4+i}, s{sTMP+1}, s{sTMP+3}
""")
    p(f"s_add_u32 s{sTMP+5}, s{sTMP+5}, s{sO2}\ns_and_b32 s{sNEW}, s{sNEW}, 0xff\ns_cbranch_scc0 L_fa\ns_waitcnt vmcnt(0)\nL_fa:")
    for i in range(2):
        acc = 100 + i * 8
        if i: p("s_waitcnt vmcnt(1)")
        for g in range(8):
            b = 32 + (i * 8 + g) * 4
            for r in range(4):
                d = acc if g == 0 else 120
                p(f"v_lshlrev_b32 v{d+2*r}, 16, v{b+r}\nv_and_b32 v{d+1+2*r}, s{sT}, v{b+r}")
            if g:
                for r in range(8): p(f"v_add_f32 v{acc+r}, v{acc+r}, v{120+r}")
        o = 132 + 4 * i
        for r in range(4): p(f"v_cvt_pk_bf16_f32 v{o+r}, v{acc+2*r}, v{acc+2*r+1}")
        p(f"v_permlane16_swap_b32 v{o}, v{o+2}\nv_permlane16_swap_b32 v{o+1}, v{o+3}")
        p(f"buffer_store_dwordx4 {vr(o)}, v{vOUT}, {sr(sOUT)}, s{sTMP+4+i} offen")
    bump_epoch(p, vF1, sTK1, sHL, 96)
    bump_epoch(p, vF2, sTK2, sHG, 128)

def store_stamps(p):
    if not ST: return
    p("s_waitcnt vmcnt(0)"); p.cur += stp('end')
    lab = p.newlabel("L_nost")
    if AMP:
        a, b = sSTAMP + 2 * ST[AMP[0]], sSTAMP + 2 * ST[AMP[1]]; e = sSTAMP + 2 * ST['end']
        p(f"""s_waitcnt lgkmcnt(0)
s_cmp_lg_u32 s2, 100
s_cbranch_scc1 {lab}
s_sub_u32 s{sTMP}, s{b}, s{a}
s_lshl_b32 s{sTMP}, s{sTMP}, 3
s_min_u32 s{sTMP}, s{sTMP}, 100000
L_amp:
s_memrealtime s[96:97]
s_waitcnt lgkmcnt(0)
s_sub_u32 s{sTMP+1}, s96, s{e}
s_cmp_lt_u32 s{sTMP+1}, s{sTMP}
s_cbranch_scc1 L_amp
{lab}:""")
        return
    if DBGST is not None:
        p("s_load_dwordx2 s[96:97], s[0:1], 48\ns_waitcnt lgkmcnt(0)"); srd(p, sK, 96, 256)
        p(f"s_cmp_lg_u32 s{sWAVE}, 0\ns_cbranch_scc1 {lab}\ns_cmp_lg_u32 s2, {DBGST}\ns_cbranch_scc1 {lab}")
        p("s_mov_b64 exec, 1\nv_mov_b32 v2, 0")
        for i in range(NSTAMP):
            p(f"s_sub_u32 s{sTMP}, s{sSTAMP+2*i}, s{sSTAMP}\nv_mov_b32 v4, s{sTMP}\nbuffer_store_dword v4, v2, {sr(sK)}, 0 offen offset:{4*i}\ns_nop 1")
        p(f"s_waitcnt vmcnt(0)\n{lab}:")
        return
    p(f"s_add_u32 s96, s90, {STAMP_OFF}\ns_addc_u32 s97, s91, 0"); srd(p, sK, 96, 65536)
    p("s_waitcnt lgkmcnt(0)")
    p(f"s_cmp_lg_u32 s{sWAVE}, 0\ns_cbranch_scc1 {lab}")
    p(f"s_lshl_b32 s{sTMP}, s2, 7\nv_mov_b32 v2, s{sTMP}\ns_mov_b64 exec, 1")
    for i, r in enumerate([sSTAMP + 2 * i for i in range(NSTAMP)] + list(CST.values())):
        p(f"v_mov_b32 v4, s{r}\nv_mov_b32 v5, s{r+1}\nbuffer_store_dwordx2 v[4:5], v2, {sr(sK)}, 0 offen offset:{8*i}\ns_nop 1")
    p(f"s_waitcnt vmcnt(0)\n{lab}:")

def kernel(p):
    name = NAME + "_kernel"
    p.raw(f".globl {name}\n.p2align 8\n.type {name},@function\n{name}:")
    p("s_cmp_ge_u32 s2, 256\ns_cbranch_scc1 L_end")
    p.cur += stp('start')
    p(f"""
s_load_dwordx8 s[76:83], s[0:1], 0
s_load_dwordx8 s[84:91], s[0:1], 32
v_lshrrev_b32 v1, 6, v0
v_and_b32 v0, 63, v0
v_readfirstlane_b32 s{sWAVE}, v1
""")
    if CODEPF:
        p(f"""
s_getpc_b64 s[98:99]
s_lshr_b32 s{sTMP+1}, s2, 3
s_mul_i32 s{sTMP+1}, s{sTMP+1}, {12*128}
v_mul_u32_u24 v252, 3, v1
v_add_lshl_u32 v252, v252, v0, 7
v_add_u32 v252, s{sTMP+1}, v252
v_mov_b32 v253, s99
v_add_co_u32 v252, vcc, s98, v252
v_addc_co_u32 v253, vcc, 0, v253, vcc
s_mov_b64 exec, 7
global_load_dword v{vDUM}, v[252:253], off
s_mov_b64 exec, -1
""", "dummy")
    tab = sum((((k % PH) * 10 + PH // 2) // PH) << (4 * k) for k in range(11))
    p(f"""
s_and_b32 s{sHG}, s2, 7
s_lshr_b32 s{sB}, s2, 5
s_bfe_u32 s{sHL}, s2, 0x20003
s_mul_i32 s{sM0W}, s{sWAVE}, 3072
s_add_u32 s{sTMP+1}, s{sB}, s{sHL}
s_lshl_b32 s{sTMP+1}, s{sTMP+1}, 2
s_mov_b32 s96, {tab & 0xffffffff}
s_mov_b32 s97, {tab >> 32}
s_lshr_b64 s[96:97], s[96:97], s{sTMP+1}
s_and_b32 s{sTMP+1}, s96, 15
s_lshl_b32 s{sXOFF}, s{sTMP+1}, 7
s_mul_i32 s{sWOFF}, s{sTMP+1}, {64*12288}
""")
    if KSTAG: p(f"s_mul_i32 s{sKK}, s2, 11\ns_add_u32 s{sKK}, s{sKK}, s{sB}\ns_and_b32 s{sKK}, s{sKK}, 31\ns_mul_i32 s{sKK}, s{sKK}, {SLOT}")
    else: p(f"s_mov_b32 s{sKK}, 0")
    p(f"s_mov_b32 s{sKOFF}, s{sKK}")
    setup_first(p)
    srd(p, sX, 76, 1536 * 1280); srd(p, sWq, 82, 640 * 12288)
    pool = Pool(12)
    tail = front(p, pool)
    if not QONLY:
        attention(p, pool, tail)
        oproj(p)
        final_reduce(p)
    store_stamps(p)
    p("L_end:\ns_endpgm")
    for t in OUTL: p.raw(t)
    for tr, ret, cur in TRAMPS: p.raw(f"{tr}:\ns_call_b64 s[98:99], L_rare{cur}\ns_branch {ret}")
    rare_path(p, "L_rare0", 0)
    rare_path(p, "L_rare1", 1)
    p.raw(".fill 64, 4, 0xbf800000" if not QONLY else ".fill 12288, 4, 0xbf800000")
    return kernel_desc(name, vgpr=512, accum=256)

def build(path):
    p = Prog()
    p.raw("""; GQA block (q-proj, attention over cached K/V, out-proj) for gfx950: one fused kernel
; @launch grid=(256,1,1) block=(256,1,1) lds=163840
.amdgcn_target "amdgcn-amd-amdhsa--gfx950"
.text""")
    d = kernel(p)
    p.raw('.section .rodata,"a"\n.p2align 6\n' + d)
    txt = p.text()
    if NODMA:
        txt = "\n".join(l for l in txt.split("\n") if not (l.startswith("buffer_load_dwordx4")))
        txt = txt.replace("s_cbranch_vccnz L_tramp", "s_cbranch_execz L_tramp")
    if ST: txt = txt.replace(".amdgcn_target", "; stamps " + repr(ST) + "\n.amdgcn_target", 1)
    open(path, "w").write(txt)
    if VERB:
        import collections
        print(collections.Counter(w.split(':')[0] for w in WARN))
        if VERB > 1:
            for w in WARN: print("WARN", w)
        ls = txt.split("\n")
        marks = [k for k, l in enumerate(ls) if l.endswith(":") and not l.startswith("L_ret")]
        for a, b in zip(marks, marks[1:] + [len(ls)]):
            seg = [l for l in ls[a:b] if l and not l.startswith(".") and not l.startswith(" ")]
            c, nm = estimate(seg)
            if nm: print(f"{ls[a][:28]:28s} est {c:6d} cyc, mfma {nm:4d} ({16*nm})")

STD = {'start': 0, 'X0': 1, 'u8': 2, 'u16': 3, 'E': 4, 'Qend': 5, 'Lend': 6, 'Aend': 7, 'C0b': 8, 'G6': 9, 'ACK': 10, 'end': 11}
if __name__ == "__main__":
    for a in sys.argv[2:]:
        k, v = a.split("=", 1)
        globals()[k] = eval(v)
    build(sys.argv[1])
```

```python
import sys, math, struct
from sched import *
from asmlib import kernel_desc

NAME = "standalone__gqa_block_cached__near_ridge"
SLOT = 12288
GSZ = 20480
NT = "nt"
CODEPF = True
PH = 3
VMLIM = 3
DMAHI = 30
SNAKE = True
KSTAG = True
NDB = 4
NBM = 3
NST = 4
NEO = 2
SCHED = 1
KVSPAN = 120
PLAN = {27: ['kv', 'r', 'l'], 28: ['kv', 0, 1], 29: ['kv', 2, 3], 30: [4], 31: [5, 6]}
OCH = [(0,'W7'),(10,'F0'),(56,'W8'),(84,'P0'),(100,'F1'),(104,'C0'),(108,'b3'),(124,'W9'),(150,'b4'),(176,'S4'),(184,'S5'),(192,'b5'),(210,'W10'),(226,'P1'),(256,'C1'),(260,'b6'),
       (274,'F2'),(280,'W11'),(300,'b7'),(320,'P2'),(322,'b8'),(350,'C2'),(354,'b9'),(380,'b10'),(405,'b11')]
LATESET = True
XPF = 0
XFIRST = True
AMP = None
RAMP = ()
D0 = 2
PWQ = None
VMTAIL = None
LOCAL = True
NLOC = 4
NBA = 3
FAPOS = 74
GS = 6
PART_OFF = 20 << 20
FLAG_OFF = 40 << 20
WS_SIZE = 41 << 20
STAMP_OFF = 64 << 20
ST = {}
NSTAMP = 12
DBGST = None
TRACE = 0
NODMA = 0
QONLY = 0
VERB = 0
OOB = 0x7f000000

def f32(x): return "0x%08x" % struct.unpack("<I", struct.pack("<f", x))[0]
def vr(b, n=4): return f"v[{b}:{b+n-1}]"
def ar(b, n=4): return f"a[{b}:{b+n-1}]"
def sr(b, n=4): return f"s[{b}:{b+n-1}]"
MF = "v_mfma_f32_16x16x32_bf16"
def srd(p, d, lo, nbytes):
    p(f"s_mov_b32 s{d}, s{lo}\ns_and_b32 s{d+1}, s{lo+1}, 0xffff\ns_mov_b32 s{d+2}, {nbytes}\ns_mov_b32 s{d+3}, 0x00020000")

sLTHR = 3
sK, sV, sWq, sX, sWS, sWo, sOUT = 4, 8, 12, 16, 20, 24, 28
sWAVE, sB, sSC, sHG, sHL = 32, 33, 34, 35, 36
sM0W, sKOFF, sWR, sRD, sT, sKK = 37, 38, 39, 40, 41, 42
sWOFF, sXOFF, sWW = 43, 44, 45
sTMP = 46
sSTAMP = 52
sHI = 76
sTK1, sTK2 = 92, 94
TOKC = (0x9e3779b9, 0x7f4a7c15)
F2BASE = 256 * 256
CST = {'Qend': 80, 'Lend': 82, 'C0b': 88, 'ACK': 100}
def stp(name):
    r = []
    if name in ST: r.append(I(f"s_memrealtime s[{sSTAMP+2*ST[name]}:{sSTAMP+2*ST[name]+1}]"))
    if ST and name in CST: r.append(I(f"s_memtime s[{CST[name]}:{CST[name]+1}]"))
    return r

vKD, vVD, vWD = 2, 5, 8
vXD = 11
vWOD, vPWO = 11, 16
vKL, vVL = 17, 19
vKA, vVA = 23, 25
vXR = 29
vOL, vPT = 30, 31
vT0 = 31
vDUM = 248
vF1, vF2 = 250, 251
vVB = 252
vWOL, vOUT = 252, 254
vACC = 32; vQ = 176
vS = (32, 56); vP = (80, 92); vNM = 104; vE = 120; vCK = 130; vR = 132; vL = (144, 156)
NE = 5
vB = 32; vRC = 136; vTK = 6; vTK2 = 18; vFLV = 28
vWA = (20, 22, 24, 26)
aO = 0; aPOOL = 144; aC = 0; aX = 0; NXB = 6; aONE = 240; aPARK = 244
PARK = [vWOD + j for j in range(5)] + [vPWO, vWOL, vWOL + 1, vOL, vPT, vOUT]
def qfrag(qb, s): return vQ + (qb * 6 + s) * 4
def qacc(db, qb): return vACC + (db * 3 + qb) * 4
def oacc(db, qb): return aO + (db * 3 + qb) * 4
def cacc(nb, qb): return aC + (nb * 3 + qb) * 4
def sreg(buf, qb, kb): return vS[buf] + (qb * 2 + kb) * 4
def bfrag(u, qb):
    if u < 6: return vr(vQ + (u * 3 + qb) * 4)
    k = (u - 6) * 3 + qb
    if k < 36: return vr(vB + k * 4)
    k -= 36
    return ar(120 + k * 4) if k < 6 else ar(192 + (k - 6) * 4)

XS0 = 5
def xpair(c): return XS0 + 2 * (c % 2)
WRING = [9, 10, 11, 1, 12]
def wslot(u): return WRING[u % 5]
def kvslot(kind, i): return 2 * (i % 6) if kind == 'K' else 2 * ((i + 1) % 6) + 1
def gic(G): return (0, G) if G < 3 else (1 + (G - 3) % 3, (G - 3) // 3)
def goff(G): return ((G + 4) % 8) * GSZ
TRAMPS = []; OUTL = []

def tile_rows(p, t, j):
    p(f"""
v_add_u32 v{t+2}, {8*j}, v{t}
v_mul_u32_u24 v{t+3}, 11, v{t+2}
v_lshrrev_b32 v{t+3}, 5, v{t+3}
v_mul_u32_u24 v{t+4}, 3, v{t+3}
v_sub_u32 v{t+4}, v{t+2}, v{t+4}
v_add_u32 v{t+3}, s{sTMP}, v{t+3}
v_and_b32 v{t+5}, 6, v{t+3}
v_xor_b32 v{t+5}, v{t+5}, v{t+1}
v_lshlrev_b32 v{t+5}, 4, v{t+5}
""")
def setup_first(p):
    t = 240
    p(f"""
v_lshrrev_b32 v{t}, 3, v0
v_and_b32 v{t+1}, 7, v0
s_lshl_b32 s{sTMP}, s{sWAVE}, 3
s_lshl_b32 s{sTMP+1}, s{sB}, 2
s_add_u32 s{sTMP+1}, s{sTMP+1}, s{sWAVE}
s_mul_i32 s{sTMP+4}, s{sTMP+1}, {48*1280}
s_lshl_b32 s{sTMP+2}, s{sHG}, 2
s_add_u32 s{sTMP+5}, s{sTMP+2}, s{sHL}
s_mul_i32 s{sTMP+2}, s{sTMP+5}, 384
""")
    for half in range(2):
        p(f"""
v_lshrrev_b32 v{t+2}, 1, v{t}
v_add_u32 v{t+2}, {4*half}, v{t+2}
v_xor_b32 v{t+2}, v{t+2}, v{t+1}
v_lshlrev_b32 v{t+2}, 4, v{t+2}
v_add_u32 v{t+3}, {8*half}, v{t}
v_mul_u32_u24 v{t+3}, 1280, v{t+3}
v_add3_u32 v{vXD+half}, v{t+2}, v{t+3}, s{sTMP+4}
v_add_u32 v{vXD+2+half}, {20480-1024}, v{vXD+half}
v_add_u32 v{vXD+4+half}, {2*(20480-1024)}, v{vXD+half}
""")
    if XFIRST:
        p.cur += stp('s0')
        srd(p, sX, 76, 1536 * 1280); p.cur += stp('s1')
        xpf = f"""s_lshl_b32 s96, s2, 2
s_add_u32 s96, s96, s{sWAVE}
s_mul_i32 s96, s96, 1920
v_lshlrev_b32 v{t+2}, 7, v0
s_mov_b64 exec, 0x7fff
buffer_load_dword v{vDUM}, v{t+2}, {sr(sX)}, s96 offen
s_mov_b64 exec, -1"""
        if XPF == 1: p(xpf, "dummy")
        flat(p, issue('X0'))
        if XPF == 2: p(xpf, "dummy")
    for j in range(3):
        tile_rows(p, t, j)
        p(f"""
v_bfe_u32 v{t+6}, v{t+3}, 2, 2
v_lshlrev_b32 v{t+6}, 3, v{t+6}
v_lshrrev_b32 v{t+7}, 4, v{t+3}
v_lshl_add_u32 v{t+6}, v{t+7}, 2, v{t+6}
v_and_b32 v{t+7}, 3, v{t+3}
v_add_u32 v{t+6}, v{t+6}, v{t+7}
v_mul_u32_u24 v{t+6}, 12288, v{t+6}
v_lshl_add_u32 v{t+6}, v{t+4}, 7, v{t+6}
v_add3_u32 v{t+6}, v{t+6}, v{t+5}, s{sTMP+2}
v_subrev_u32 v{vWD+j}, {1024*j}, v{t+6}
""")
def setup_reads(p):
    t = 232
    p(f"""
v_and_b32 v{t}, 15, v0
v_lshrrev_b32 v{t+1}, 4, v0
v_lshrrev_b32 v{t+2}, 1, v{t}
v_xor_b32 v{t+2}, v{t+2}, v{t+1}
v_lshlrev_b32 v{t+5}, 4, v{t+2}
v_and_b32 v{t+3}, 7, v{t}
v_lshl_add_u32 v{t+5}, v{t+3}, 7, v{t+5}
v_lshrrev_b32 v{t+3}, 3, v{t}
v_mul_u32_u24 v{t+3}, 12288, v{t+3}
v_add3_u32 v{t+5}, v{t+5}, v{t+3}, s{sM0W}
v_add_u32 v{vXR}, {XS0*SLOT}, v{t+5}
v_xor_b32 v{vXR+1}, 64, v{vXR}
v_bfe_u32 v{t+3}, v{t+2}, 1, 1
v_and_b32 v{t+4}, 1, v{t+2}
v_lshl_add_u32 v{t+3}, v{t+4}, 1, v{t+3}
v_and_b32 v{t+4}, 4, v{t+2}
v_or_b32 v{t+3}, v{t+3}, v{t+4}
v_lshlrev_b32 v{t+3}, 4, v{t+3}
v_mul_u32_u24 v{t+4}, 384, v{t}
v_add_u32 v{vKL}, v{t+3}, v{t+4}
v_xor_b32 v{vKL+1}, 64, v{vKL}
v_mov_b32 v{vKA}, v{vKL}
v_mov_b32 v{vKA+1}, v{vKL+1}
v_lshrrev_b32 v{t+2}, 2, v0
v_mul_u32_u24 v{t+3}, 384, v{t+2}
v_bfe_u32 v{t+4}, v{t+2}, 1, 2
v_lshl_add_u32 v{t+3}, v{t+4}, 5, v{t+3}
v_and_b32 v{t+4}, 3, v0
v_lshl_add_u32 v{vVL}, v{t+4}, 3, v{t+3}
v_xor_b32 v{vVL+1}, 32, v{vVL}
v_xor_b32 v{vVL+2}, 64, v{vVL}
v_xor_b32 v{vVL+3}, 96, v{vVL}
""")
def setup_rest(p):
    t = 240
    p(f"""
s_lshl_b32 s{sTMP+1}, s{sB}, 3
s_add_u32 s{sTMP+1}, s{sTMP+1}, s{sHG}
s_lshl_b32 s96, s{sTMP+1}, 2
s_add_u32 s{sTMP+1}, s96, s{sWAVE}
s_lshl_b32 s{sTMP+1}, s{sTMP+1}, 8
s_add_u32 s{sTMP+1}, s{sTMP+1}, {FLAG_OFF}
s_lshl_b32 s{sTMP+2}, s{sB}, 2
s_add_u32 s{sTMP+2}, s{sTMP+2}, s{sHL}
s_lshl_b32 s{sTMP+2}, s{sTMP+2}, 2
s_add_u32 s97, s{sTMP+2}, s{sWAVE}
s_lshl_b32 s{sTMP+2}, s97, 8
s_add_u32 s{sTMP+2}, s{sTMP+2}, {FLAG_OFF + F2BASE}
v_and_b32 v{t+2}, 3, v0
v_lshl_add_u32 v{vF1}, v{t+2}, 3, s{sTMP+1}
v_and_b32 v{t+2}, 15, v0
v_lshl_add_u32 v{vF2}, v{t+2}, 3, s{sTMP+2}
s_add_u32 s{sTMP+1}, s{sTMP+1}, 96
s_add_u32 s{sTMP+2}, s{sTMP+2}, 128
s_load_dwordx2 s[{sTK1}:{sTK1+1}], s[90:91], s{sTMP+1}
s_load_dwordx2 s[{sTK2}:{sTK2+1}], s[90:91], s{sTMP+2}
s_add_u32 s{sTMP+1}, s96, s{sHL}
s_mul_i32 s{sTMP+1}, s{sTMP+1}, 393216
s_add_u32 s78, s78, s{sTMP+1}
s_addc_u32 s79, s79, 0
s_add_u32 s80, s80, s{sTMP+1}
s_addc_u32 s81, s81, 0
""")
    srd(p, sK, 78, 393216); srd(p, sV, 80, 393216)
    srd(p, sWS, 90, WS_SIZE); srd(p, sWo, 84, 6144 * 1280); srd(p, sOUT, 86, 1536 * 1280)
    for j in range(3):
        tile_rows(p, t, j)
        p(f"""
v_lshl_add_u32 v{t+6}, v{t}, 7, v{t+5}
v_add_u32 v{vVD+j}, s{sM0W}, v{t+6}
v_bfe_u32 v{t+5}, v{t+3}, 2, 1
v_and_b32 v{t+6}, 2, v{t+3}
v_or_b32 v{t+5}, v{t+5}, v{t+6}
v_lshrrev_b32 v{t+6}, 1, v{t+3}
v_and_b32 v{t+6}, 4, v{t+6}
v_or_b32 v{t+5}, v{t+5}, v{t+6}
v_xor_b32 v{t+5}, v{t+5}, v{t+1}
v_lshlrev_b32 v{t+5}, 4, v{t+5}
v_lshl_add_u32 v{t+5}, v{t}, 7, v{t+5}
v_add_u32 v{vKD+j}, s{sM0W}, v{t+5}
""")
    t = 232
    park = lambda r, v: p(f"v_accvgpr_write_b32 a{aPARK + PARK.index(r)}, v{v}")
    u = 224
    p(f"""
s_mul_i32 s{sTMP+1}, s{sHG}, {768*1280}
s_mul_i32 s{sTMP+2}, s{sHL}, 320
s_mul_i32 s{sTMP+3}, s{sWAVE}, {16*1280}
s_add_u32 s{sTMP+3}, s{sTMP+3}, s{sTMP+1}
s_add_u32 s{sTMP+3}, s{sTMP+3}, s{sTMP+2}
""")
    for j in range(5):
        p(f"""
v_add_u32 v{u}, {64*j}, v0
v_mul_u32_u24 v{u+1}, 205, v{u}
v_lshrrev_b32 v{u+1}, 12, v{u+1}
v_mul_u32_u24 v{u+2}, 20, v{u+1}
v_sub_u32 v{u+2}, v{u}, v{u+2}
v_lshrrev_b32 v{u+3}, 1, v{u+1}
v_and_b32 v{u+3}, 2, v{u+3}
v_xor_b32 v{u+2}, v{u+2}, v{u+3}
v_mul_u32_u24 v{u+1}, 1280, v{u+1}
v_lshl_add_u32 v{u+1}, v{u+2}, 4, v{u+1}
v_add_u32 v{u+1}, s{sTMP+3}, v{u+1}
v_subrev_u32 v{u+1}, {1024*(j%4)}, v{u+1}
""")
        park(vWOD + j, u + 1)
    p(f"""
s_lshr_b32 s{sTMP+3}, s2, 3
s_lshl_b32 s{sTMP+3}, s{sTMP+3}, 2
s_add_u32 s{sTMP+3}, s{sTMP+3}, s{sWAVE}
s_mul_i32 s{sTMP+3}, s{sTMP+3}, {60*128}
s_add_u32 s{sTMP+3}, s{sTMP+3}, s{sTMP+1}
v_lshlrev_b32 v{u}, 7, v0
v_add_u32 v{u}, s{sTMP+3}, v{u}
v_cmp_gt_u32 vcc, 60, v0
v_mov_b32 v{u+1}, {OOB}
v_cndmask_b32 v{u}, v{u+1}, v{u}, vcc
""")
    park(vPWO, u)
    p(f"""
v_mul_u32_u24 v{u}, 320, v{t+2}
v_lshl_add_u32 v{u}, v{t+4}, 3, v{u}
v_and_b32 v{u+1}, 16, v0
v_lshlrev_b32 v{u+1}, 1, v{u+1}
v_add_u32 v{u+2}, v{u}, v{u+1}
v_sub_u32 v{u+3}, v{u}, v{u+1}
""")
    park(vWOL, u + 2); park(vWOL + 1, u + 3)
    p(f"""
s_mul_i32 s96, s96, 73728
s_add_u32 s96, s96, s{sM0W}
s_mul_i32 s97, s97, {8*15360}
s_add_u32 s97, s97, {PART_OFF}
v_lshlrev_b32 v{u}, 4, v0
v_add_u32 v{u+2}, s96, v{u}
v_add_u32 v{u+3}, s97, v{u}
""")
    park(vOL, u + 2); park(vPT, u + 3)
    p(f"""
s_add_u32 s{sTMP+2}, s{sTMP+2}, s{sTMP+4}
v_mul_u32_u24 v{u}, 1280, v{t}
v_add3_u32 v{u}, v{u}, v{u+1}, s{sTMP+2}
v_lshrrev_b32 v{u+2}, 5, v0
v_lshl_add_u32 v{u}, v{u+2}, 4, v{u}
""")
    park(vOUT, u)
    p(f"v_mov_b32 v{u}, 0x3f803f80")
    for r in range(4): p(f"v_accvgpr_write_b32 a{aONE+r}, v{u}")
    for i in range(4):
        p(f"s_add_u32 s{sHI+i}, s{sHL}, {i}\ns_and_b32 s{sHI+i}, s{sHI+i}, 3\ns_mul_i32 s{sHI+i}, s{sHI+i}, 3")
    SC = math.log2(math.e) / math.sqrt(192.0)
    p(f"""
s_mul_i32 s{sWW}, s{sWAVE}, 5120
s_mov_b32 s{sLTHR}, {f32(LTHR)}
s_mov_b32 s{sSC}, {f32(SC)}
s_add_u32 s{sWR}, s{sM0W}, {2*(D0+1)*SLOT}
s_mov_b32 s{sRD}, 0
s_mov_b32 s{sT}, 1
""")

def S(t, **k): return Item('S', t, **k)
def V(t, **k): return Item('V', t, **k)
def wrap0(s, inc, lim, zero="0"):
    return [S(f"s_add_u32 s{s}, s{s}, {inc}"), S(f"s_cmp_ge_u32 s{s}, {lim}\ns_cselect_b32 s{s}, {zero}, s{s}")]
def dma_tile(kind, pre, so, tag=None, post=()):
    vd, srn, pol = {'K': (vKD, sK, NT), 'V': (vVD, sV, NT), 'W': (vWD, sWq, "")}[kind]
    g = [S(x) for x in pre]
    for j in range(3):
        g.append(Item('M', f"buffer_load_dwordx4 v{vd+j}, {sr(srn)}, {so} offen offset:{1024*j} {pol} lds", tag=tag))
    return g + list(post)
def dma_kv_static(kind, i):
    so = sKK if kind == 'K' else sKOFF
    return dma_tile(kind, [f"s_add_u32 m0, s{sM0W}, {kvslot(kind,i)*SLOT}"], f"s{so}", f"{kind}{i}", wrap0(so, SLOT, 32 * SLOT))
def dma_w(u):
    return dma_tile('W', [f"s_add_u32 m0, s{sM0W}, {wslot(u)*SLOT}"], f"s{sWOFF}", f"W{u}", wrap0(sWOFF, 32 * 12288, 640 * 12288))
def dma_x(c):
    g = []
    for half in range(2):
        g.append(S(f"s_add_u32 m0, s{sM0W}, {(xpair(c)+half)*SLOT}"))
        for qb in range(3):
            g.append(Item('M', f"buffer_load_dwordx4 v{vXD+2*qb+half}, {sr(sX)}, s{sXOFF} offen offset:{1024*qb} lds", tag=f"X{c}"))
    return g + wrap0(sXOFF, 128, 1280)
def kv_issue(nok=False):
    dk = dma_tile('K', [f"s_mov_b32 m0, s{sWR}"], f"s{sKK}") if not nok else []
    dv = dma_tile('V', [f"s_add_u32 m0, s{sWR}, {SLOT}"], f"s{sKOFF}")
    if nok: return dv
    return dk + dv + [S(f"s_mov_b32 s{sKOFF}, s{sKK}")] + wrap0(sKK, SLOT, 32 * SLOT) + wrap0(sWR, 2 * SLOT, 12 * SLOT, f"s{sM0W}")
def dma_wo(G):
    sl = goff(G); i, c = gic(G)
    g = [S(f"s_add_u32 s{sWOFF}, s{sHI+i}, {c}"), S(f"s_mul_i32 s{sWOFF}, s{sWOFF}, {64*1280}")]
    for j in range(5):
        if j == 0: g.append(S(f"s_add_u32 m0, s{sWW}, {sl}"))
        if j == 4: g.append(S(f"s_add_u32 m0, s{sWW}, {sl+4096}"))
        g.append(Item('M', f"buffer_load_dwordx4 v{vWOD+j}, {sr(sWo)}, s{sWOFF} offen offset:{1024*(j%4)} lds", tag=f"G{G}"))
    return g
def xfrag(c, ks, qb): return aX + (c % NXB) * 24 + (ks * 3 + qb) * 4
def read_x(c):
    off = (xpair(c) - XS0) * SLOT
    return [Item('L', f"ds_read_b128 {ar(xfrag(c,ks,qb))}, v{vXR+ks} offset:{off + qb*1024}") for ks in range(2) for qb in range(3)]
def flat(p, items):
    for it in items: p.cur += it.ins
def snake(mf, k): return mf[::-1] if (SNAKE and k & 1) else mf
class Pool:
    def __init__(self, size): self.n = 0; self.size = size
    def next(self):
        r = aPOOL + 4 * (self.n % self.size); self.n += 1; return r
def vunit_reads(buf, db, imm, va):
    return [f"ds_read_b64_tr_b16 {ar(buf,2)}, v{va+(db&3)} offset:{imm + (db>>2)*128}",
            f"ds_read_b64_tr_b16 {ar(buf+2,2)}, v{va+(db&3)} offset:{imm + (db>>2)*128 + 6144}"]

T = 4
RGAP = 6
class Stream:
    def __init__(self, tail=()):
        self.mf = []; self.items = []; self.resA = set()
        for u in tail: self.add_unit(u)
    def n(self): return len(self.mf)
    def add_unit(self, u):
        u['first'] = len(self.mf)
        if u.get('reads'): self.resA.add(len(self.mf) - 1)
        for k, m in enumerate(u['mf']): self.mf.append((u.get('head', []) if k == 0 else [], m))
    def reads(self, units, lo, hi, after=()):
        its = []
        tot = sum(len(u['reads']) for u in units); k = 0
        for u in units:
            g = lo + (hi - lo + 1) * k // tot
            for r in u['reads']:
                it = Item('L', r, lo=lo, hi=max(lo, min(hi, u['first'] - 5)), target=g, after=list(after) + ([(its[-1], 0)] if its else []))
                it.use = u['first']
                its.append(it); k += 1
        self.items += its
        return its
    def barrier(self, g, wait, after=()):
        w = Item('S', [x if isinstance(x, I) else I(x) for x in wait], lo=g, hi=g + 2, target=g, after=after)
        b = Item('S', "s_barrier", lo=g + 1, hi=g + 3, after=[(w, 1)])
        self.items += [w, b]
        return b
    def add(self, its): self.items += its; return its
    def emit(self, keep=0, name=""):
        mf = self.mf[:len(self.mf) - keep] if keep else self.mf
        out = pack(mf, self.items, self.resA, name)
        for it in self.items:
            if hasattr(it, 'use'):
                d = set(it.ins[0].dst)
                assert it.gap < it.use, (name, it.ins[0].text)
                for g in range(it.gap + 1, it.use):
                    assert not (d & set(self.mf[g][1].src)), ("pool WAR", name, it.ins[0].text, it.gap, g)
        return out

def qk_unit(pool, buf, kb, ds, c0, imm, k):
    pb = pool.next()
    mf = []
    for qb in range(3):
        d = sreg(buf, qb, kb)
        c = vr(d) if ds else (0 if c0 else vr(vNM + 4 * qb))
        mf.append(I(f"{MF} {vr(d)}, {ar(pb)}, {vr(qfrag(qb,ds))}, {c}"))
    return dict(reads=[f"ds_read_b128 {ar(pb)}, v{vKA+(ds&1)} offset:{imm + kb*6144 + (ds>>1)*128}"], mf=snake(mf, k))
def qk_units(pool, buf, imm, zero=()):
    return [qk_unit(pool, buf, kb, ds, kb in zero, imm, ds) for kb in range(2) for ds in range(6)]
def rs_unit(buf, zero=False):
    return dict(reads=None, mf=[I(f"{MF} {vr(vL[buf]+4*qb)}, {ar(aONE)}, {vr(vP[buf]+4*qb)}, {0 if zero else vr(vL[buf^1]+4*qb)}") for qb in range(3)])
def pv_units(pool, buf, imm, zero=False):
    units = []
    for db in range(12):
        pb = pool.next()
        z = zero and db < 12 - T
        mf = [I(f"{MF} {ar(oacc(db,qb))}, {ar(pb)}, {vr(vP[buf]+4*qb)}, {0 if z else ar(oacc(db,qb))}") for qb in range(3)]
        units.append(dict(reads=vunit_reads(pb, db, SLOT + imm, vVA), mf=snake(mf, db)))
    return units
PAIRS = [(qb, kb, h) for kb in range(2) for qb in range(3) for h in range(2)]
def softmax_items(buf, n0, n1, lo, hi, pre=None):
    ex = []; cv = []; ex0 = []
    for n in range(n0, n1):
        qb, kb, h = PAIRS[n]
        s = sreg(buf, qb, kb) + 2 * h
        e = vE + 2 * (n % NE)
        a = Item('E', f"v_exp_f32 v{e}, v{s}"); b = Item('E', f"v_exp_f32 v{e+1}, v{s+1}")
        if len(cv) >= NE: a.after.append((cv[-NE], 1))
        if pre:
            for k, x in enumerate((a, b)):
                sub = V(f"v_add_f32 v{s+k}, v{s+k}, v{vNM+4*qb}", lo=lo, hi=hi, after=[(pre, 1)])
                x.after.append((sub, 1)); ex0.append((sub, x))
        ex += [a, b]
        cv.append(V(f"v_cvt_pk_bf16_f32 v{vP[buf]+4*qb+2*kb+h}, v{e}, v{e+1}", lo=lo, hi=hi, after=[(b, 1)]))
    chain(ex, lo, hi - 1)
    for e in ex: e.hi = hi
    for k, c in enumerate(cv): c.target = ex[2 * k + 1].target + 1
    for sub, x in ex0: sub.target = max(lo, x.target - 2)
    return [s for s, _ in ex0] + ex + cv
SPLIT = 6
LTHR = 2.0 ** 40
def rowmax_text(buf, qb, d, t):
    s0, s1 = sreg(buf, qb, 0), sreg(buf, qb, 1)
    return [f"v_max3_f32 v{d}, v{s0}, v{s0+1}, v{s0+2}", f"v_max3_f32 v{t}, v{s1}, v{s1+1}, v{s1+2}",
            f"v_max3_f32 v{d}, v{d}, v{s0+3}, v{s1+3}", f"v_max_f32 v{d}, v{d}, v{t}",
            f"v_mov_b32 v{t}, v{d}", f"v_permlane32_swap_b32 v{d}, v{t}", f"v_max_f32 v{d}, v{d}, v{t}",
            f"v_mov_b32 v{t}, v{d}", f"v_permlane16_swap_b32 v{d}, v{t}", f"v_max_f32 v{d}, v{d}, v{t}"]
def rare_path(p, label, buf):
    p.reset_state()
    p(f"{label}:\ns_nop 15")
    for qb in range(3):
        d = vR + qb
        p("\n".join(rowmax_text(buf, qb, d, vR + 8)))
        p(f"v_max_f32 v{d}, 0, v{d}")
        for r in range(4): p(f"v_sub_f32 v{vNM+4*qb+r}, v{vNM+4*qb+r}, v{d}")
        for bb in (buf, buf ^ 1):
            for r in range(8): p(f"v_sub_f32 v{sreg(bb,qb,0)+r}, v{sreg(bb,qb,0)+r}, v{d}")
        p(f"v_exp_f32_e64 v{vR+4+qb}, -v{d}")
    for qb in range(3):
        for r in range(4): p(f"v_mul_f32 v{vL[buf^1]+4*qb+r}, v{vL[buf^1]+4*qb+r}, v{vR+4+qb}")
        for r in [oacc(db, qb) + r for db in range(12) for r in range(4)]:
            p(f"v_accvgpr_read_b32 v{vR+9}, a{r}\nv_mul_f32 v{vR+9}, v{vR+9}, v{vR+4+qb}\nv_accvgpr_write_b32 a{r}, v{vR+9}")
    for (qb, kb, h) in PAIRS:
        s = sreg(buf, qb, kb) + 2 * h
        p(f"v_exp_f32 v{vE}, v{s}\nv_exp_f32 v{vE+1}, v{s+1}\nv_cvt_pk_bf16_f32 v{vP[buf]+4*qb+2*kb+h}, v{vE}, v{vE+1}")
    p.cur += rs_unit(buf)['mf']
    p(f"s_nop 15\ns_setpc_b64 s[98:99]")
    p.flush()

KVPRE = ['K0', 'K1', 'V0', 'K2', 'V1', 'K3', 'V2', 'K4', 'V3']
def get_sched():
    PRO = ['X0', 'W0', 'W1', 'W2']; PRO2 = ['X1']
    QS = {0: (['W3'], None, []), 1: (['W4', 'W5'], 1, ['X2']), 2: (['W6'], None, ['X3']), 3: (['W7'], 2, ['X4']), 4: (['W8'], 3, ['X5']),
          5: (['W9', 'K0', 'K1'], None, []), 6: (['W10'], 4, ['X6']), 7: (['W11'], 5, ['X7']), 8: (['W12', 'V0', 'K2'], None, []),
          9: (['W13'], 6, ['X8']), 10: (['W14'], 7, ['X9']), 11: (['W15'], None, []), 12: (['W16'], 8, []), 13: (['W17'], 9, []),
          14: (['W18'], None, []), 15: (['W19'], None, []), 16: (['V1', 'K3', 'V2', 'K4', 'V3'], None, [])}
    if SCHED == 1:
        QS[5] = (['W9'], None, []); QS[8] = (['W12', 'K0', 'K1'], None, []); QS[11] = (['W15', 'V0', 'K2'], None, [])
    if SCHED == 2:
        QS[5] = (['W9'], None, []); QS[8] = (['W12'], None, []); QS[11] = (['W15', 'K0', 'K1'], None, [])
        QS[15] = (['W19', 'V0', 'K2'], None, [])
    if SCHED == 3:
        QS[13] = (['W17'], 9, ['V1', 'K3']); QS[16] = (['V2', 'K4', 'V3'], None, [])
    if SCHED in (4, 5, 6):
        PRO = ['X0', 'W0', 'W1']; PRO2 = ['X1']
        if SCHED == 4:
            QS.update({0: (['W2', 'W3'], None, []), 1: (['X2'], 1, ['W4']), 2: (['W5', 'X3'], None, ['W6']), 3: (['W7'], 2, ['X4']), 4: (['W8'], None, []),
                       5: (['W9'], 3, ['X5']), 6: (['W10'], 4, ['X6']), 7: (['W11'], 5, ['X7']), 8: (['W12'], None, [])})
        if SCHED == 5:
            PRO2 = []
            QS.update({0: (['X1', 'W2'], None, ['W3']), 1: (['X2'], 1, ['W4']), 2: (['W5', 'X3'], None, ['W6']), 3: (['W7'], 2, ['X4']), 4: (['W8'], None, []),
                       5: (['W9'], 3, ['X5']), 6: (['W10'], 4, ['X6']), 7: (['W11'], 5, ['X7']), 8: (['W12'], None, [])})
        if SCHED == 6:
            PRO2 = ['X1', 'W2']
            QS.update({0: (['W3', 'X2'], None, ['W4']), 1: (['W5'], 1, ['X3']), 2: (['W6'], None, []), 3: (['W7'], 2, ['X4']), 4: (['W8'], 3, ['X5']),
                       5: (['W9'], None, []), 6: (['W10'], 4, ['X6']), 7: (['W11'], 5, ['X7']), 8: (['W12'], None, [])})
    keep = KVPRE[:1 + 2 * D0]
    for u in QS: QS[u] = tuple([n for n in part if n[0] not in 'KV' or n in keep] if isinstance(part, list) else part for part in QS[u])
    if QKV:
        for u in QS: QS[u] = tuple([n for n in part if n[0] not in 'KV'] if isinstance(part, list) else part for part in QS[u])
        for u, l in QKV.items(): QS[u] = (QS[u][0] + l,) + QS[u][1:]
    return PRO, PRO2, QS
QKV = {11: ['K0', 'K1'], 16: ['V0', 'K2', 'V1', 'P0']}
def pf_wo(v): return [Item('M', f"buffer_load_dword v{vDUM}, v{v}, {sr(sWo)}, 0 offen", tag="dummy")]
def issue(name):
    if name == 'P0': return [V(f"v_accvgpr_read_b32 v1, a{aPARK + PARK.index(vPWO)}")] + pf_wo(1)
    k, i = name[0], int(name[1:])
    return dma_x(i) if k == 'X' else dma_w(i) if k == 'W' else dma_kv_static(k, i)
def check_sched(PRO, PRO2, QS):
    occ = {}; xread = {0: -1}
    for u, (e, xr, l) in QS.items():
        if xr is not None: xread[xr] = u
    def put(n, u, late):
        k, i = n[0], int(n[1:])
        if k == 'P': return
        for s in ([xpair(i), xpair(i) + 1] if k == 'X' else [wslot(i)] if k == 'W' else [kvslot(k, i)]):
            o = occ.get(s)
            if o:
                k2, i2 = o[0], int(o[1:])
                if k2 == 'W': assert i2 <= u - 1, (n, u, o)
                elif k2 == 'X': assert xread[i2] < u or (xread[i2] == u and late), (n, u, o)
                else: assert False, (n, u, o)
            occ[s] = n
    seq = []
    for n in PRO: put(n, -2, False); seq.append(n)
    for n in PRO2: put(n, -1.5, True); seq.append(n)
    for u in sorted(QS):
        e, xr, l = QS[u]
        for n in e: put(n, u, False); seq.append(n)
        for n in l: put(n, u, True); seq.append(n)
        if xr is not None: assert min(xr * 2, 20 - NDB) > u and (xr - NXB) * 2 + 1 < u, (xr, u)
    assert [n for n in seq if n[0] == 'W'] == [f"W{i}" for i in range(20)]
    assert [n for n in seq if n[0] == 'X'] == [f"X{i}" for i in range(10)]
    assert [n for n in seq if n[0] in 'KV'] == KVPRE[:1 + 2 * D0]
    assert seq.index('K0') < seq.index('W19')

def front(p, pool):
    assert NDB == 4
    PRO, PRO2, QS = get_sched()
    check_sched(PRO, PRO2, QS)
    q = Prog(); setup_rest(q)
    ntok = max(k for k, x in enumerate(q.cur) if x.kind == 'smem') + 1
    for n in PRO[1:]: flat(p, issue(n))
    p.cur += q.cur[:ntok]
    p.cur += stp('s2')
    setup_reads(p)
    for uu in range(4): p(f"v_add_u32 v{vVA+uu}, {wslot(0)*SLOT}, v{vVL+uu}")
    late = []
    for x in q.cur[ntok:]:
        if x.op in ('s_addc_u32', 'v_cndmask_b32'): late[-1].ins.append(x)
        else: late.append(Item('V' if x.kind == 'valu' else 'S', [x]))
    if not LATESET: flat(p, late); late = []
    p("WAITVM X0"); p.cur += stp('X0')
    flat(p, read_x(0))
    for n in PRO2: flat(p, issue(n))
    p(f"""
s_add_u32 s{sTK1}, s{sTK1}, {TOKC[0]}
s_addc_u32 s{sTK1+1}, s{sTK1+1}, {TOKC[1]}
s_add_u32 s{sTK2}, s{sTK2}, {TOKC[0]}
s_addc_u32 s{sTK2+1}, s{sTK2+1}, {TOKC[1]}
""")
    p("WAITVM W0\ns_waitcnt lgkmcnt(0)\ns_barrier"); p.cur += stp('u0')
    st = Stream()
    if late:
        chain(late, 0, 36 * 8)
        for x in late: x.dense = True; x.target = 0
        st.add(late)
        kvset = [x for x in late if set(x.ins[0].dst) & {('v', vKD + 2)}][0]
    NU = 20 - NDB
    def wunit(u, db, va, imm, k):
        buf = pool.next()
        mf = [I(f"{MF} {vr(qacc(db,qb))}, {ar(buf)}, {ar(xfrag(u>>1,u&1,qb))}, {vr(qacc(db,qb)) if u else 0}") for qb in range(3)]
        return dict(reads=vunit_reads(buf, db, imm, va), mf=snake(mf, k))
    tiles = [[wunit(u, db, vVA if u % 2 == 0 else vVB, 0, db) for db in range(12)] for u in range(NU)]
    sa = {16: (vVA, 0), 17: (vVA, SLOT), 19: (vVA, 2 * SLOT), 18: (vVB, 0)}
    sup = [wunit(u, db, sa[u][0], sa[u][1], k) for db in range(12) for k, u in enumerate((16, 17, 19, 18))]
    tiles.append(sup)
    qk0 = [qk_unit(pool, 0, kb, ds, True, 0, kb) for ds in range(6) for kb in range(2)]
    qk1 = qk_units(pool, 1, 2 * SLOT, zero=(0,))
    rs = rs_unit(0, zero=True)
    pv = pv_units(pool, 0, 2 * SLOT, zero=True)
    for tl in tiles + [qk0, qk1, [rs], pv]:
        for un in tl: st.add_unit(un)
    n = st.n() - 3 * T
    prevdma = None
    for u in range(NU + 1):
        g0 = 36 * u - 3 * T
        span = 36 if u < NU else 36 * NDB
        if u == 0:
            for un in tiles[0][:T]:
                for r in un['reads']: p(r)
            rd = st.reads(tiles[0][T:], 0, g0 + 36 - RGAP)
            bar = None; glo = 0
        else:
            bar = st.barrier(g0, [f"WAITVM W{u if u < NU else 19}", "s_waitcnt lgkmcnt(0)"] + stp(f"u{u}"))
            aft = [(bar, 0)]
            if u == NU:
                vb = chain([V(f"v_add_u32 v{vVB+uu}, {wslot(18)*SLOT}, v{vVL+uu}") for uu in range(4)], g0 - 4, g0 + 1)
                vb[0].after.append((rd[-1], 1)); st.add(vb)
                for x in vb: x.hi = g0 + 4
            rd = st.reads(tiles[u], g0 + 1, g0 + span - (RGAP if u < NU else 0), aft)
            if u == NU:
                for x in rd[6:8]: x.after.append((vb[-1], 1))
            glo = g0 + 2
        if u < NU:
            va = vVA if (u + 1) % 2 == 0 else vVB
            st.add(chain([V(f"v_add_u32 v{va+uu}, {wslot(u+1)*SLOT}, v{vVL+uu}") for uu in range(4)], glo + 6, g0 + 30))
        e, xr, l = QS[u]
        f1 = [g for nm in e for g in issue(nm)]
        nx = [g for nm in l for g in issue(nm)]
        seq = []
        if f1:
            chain(f1, glo, glo + (12 if u < NU else KVSPAN))
            if bar: f1[0].after.append((bar, 1))
            if late and 'K0' in e: f1[0].after.append((kvset, 1))
            if late and 'P0' in e: f1[0].after.append((late[-1], 1))
            seq += f1
        if xr is not None:
            rx = [S(f"WAITVM X{xr}")] + read_x(xr)
            chain(rx, g0 + 14, g0 + 22)
            seq += rx
            if nx: nx = [V(f"v_accvgpr_read_b32 v{vT0}, a{xfrag(xr,1,2)}", after=[(rx[-1], 4)])] + nx
        if nx:
            chain(nx, g0 + 24, g0 + 35); seq += nx
        for k in range(len(seq)):
            pvs = seq[k - 1] if k else prevdma
            if pvs is not None and not any(a is pvs for a, _ in seq[k].after): seq[k].after.append((pvs, 1))
            seq[k].hi = g0 + span + 14 if seq[k].kind != 'L' else g0 + 30
        if seq: prevdma = seq[-1]
        st.add(seq)
    wlast = rd[-1]
    assert oacc(12 - T, 0) == xfrag(4, 0, 0)
    st.add(chain([V(f"v_accvgpr_write_b32 a{oacc(12-T,0)+r}, 0") for r in range(12 * T)], 36 * 12 + 4, 36 * 16 - 20))
    cprev = None
    for s in range(6):
        its = []
        for qb in range(3):
            a, b, q = qacc(2 * s, qb), qacc(2 * s + 1, qb), qfrag(qb, s)
            its += [V(f"v_mul_f32 v{r}, s{sSC}, v{r}") for r in list(range(a, a + 4)) + list(range(b, b + 4))]
            its += [V(f"v_cvt_pk_bf16_f32 v{q+k}, v{r}, v{r+1}") for k, r in enumerate((a, a + 2, b, b + 2))]
        for qb in range(3):
            q = qfrag(qb, s)
            its += [V(f"v_permlane16_swap_b32 v{q}, v{q+2}"), V(f"v_permlane16_swap_b32 v{q+1}, v{q+3}")]
        lo = sup[8 * s + 7]['first'] + 5
        dl = qk0[2 * s]['first'] - 2 if s else qk0[0]['first'] - 2
        chain(its, lo, min(lo + 26, dl), 0)
        for x in its: x.hi = dl; x.dense = True; x.target = lo
        if cprev: its[0].after.append((cprev, 0))
        cprev = its[-1]; st.add(its)
    q0 = qk0[0]['first']
    kr0 = st.reads(qk0, q0 - 11, q0 + 14, [(wlast, 0)])
    gx = q0 + 20
    barx = st.barrier(gx, ["WAITVM V0", "s_waitcnt lgkmcnt(0)"] + stp('Qend'), after=[(kr0[-1], 1), (prevdma, 1)])
    kr1 = st.reads(qk1, gx + 1, qk1[0]['first'] + 18, [(barx, 0)])
    va = chain([V(f"v_mov_b32 v{vVA+u}, v{vVL+u}") for u in range(4)], q0, q0 + 20); va[0].after.append((wlast, 1)); st.add(va)
    for x in va: x.hi = qk1[6]['first']
    st.reads(pv, kr1[-1].target + 2, n - 12, [(kr1[-1], 0), (va[-1], 1)])
    dm = chain(kv_issue(), qk0[10]['first'], qk0[10]['first'] + 14); dm[0].after.append((barx, 1)); st.add(dm)
    for x in dm: x.hi = n - 8
    lo = qk1[0]['first'] + 3; dl = qk1[6]['first'] - 2
    cols = [[V(t) for t in rowmax_text(0, qb, vR + qb, vR + 4 + qb)] for qb in range(3)]
    rm = [cols[qb][k] for k in range(10) for qb in range(3)]
    rm += [V(f"v_sub_f32 v{vNM+4*qb+r}, 0, v{vR+qb}") for r in range(4) for qb in range(3)]
    chain(rm, lo, dl, 0); st.add(rm)
    for x in rm: x.dense = True; x.target = lo
    st.add(softmax_items(0, 0, 12, lo + 10, rs['first'] - 2, pre=rm[32]))
    st.add(softmax_items(1, 0, SPLIT, pv[0]['first'] + 1, n - 1, pre=rm[-1]))
    up = wrap0(sRD, 4 * SLOT, 12 * SLOT) + [V(f"v_add_u32 v{vKA+u}, s{sRD}, v{vKL+u}") for u in range(2)]
    up[0].after += [(kr1[-1], 1), (dm[-1], 1)]
    st.add(chain(up, pv[0]['first'], n - 2))
    p.cur += st.emit(3 * T, name="front")
    return [dict(mf=u['mf']) for u in pv[12 - T:]]

def o_store(s):
    return [S(f"s_add_u32 s{sXOFF}, s{sKOFF}, {s*12288}")] + [
        Item('M', f"buffer_store_dwordx4 {bfrag(s,qb)}, v{vOL}, {sr(sWS)}, s{sXOFF} offen offset:{1024*qb} sc1", tag=f"OST{s>>1}") for qb in range(3)]
def o_chunk(s):
    its = []
    stv = o_store(s)
    if s < NST: its.append(stv[0])
    for qb in range(3):
        t = 32 + 8 * ((s * 3 + qb) % 3); d = vQ + (s * 3 + qb) * 4
        its += [V(f"v_accvgpr_read_b32 v{t+4*h+r}, a{oacc(2*s+h,qb)+r}") for h in range(2) for r in range(4)]
        its += [V(f"v_mul_f32 v{t+r}, v{t+r}, v{vRC+qb}") for r in range(8)]
        its += [V(f"v_cvt_pk_bf16_f32 v{d+r}, v{t+2*r}, v{t+2*r+1}") for r in range(4)]
        if s < NST: its.append(stv[1 + qb])
    return its

def attention(p, pool, tail):
    def step(t_par, tail, mode, vm, extra=(), endi=()):
        cur, nxt = t_par, t_par ^ 1
        last = mode == 'last'
        imm = 0 if t_par else 2 * SLOT
        st = Stream(tail)
        qk = [] if last else qk_units(pool, nxt, imm)
        pv = pv_units(pool, cur, imm)
        rs = rs_unit(cur)
        ret = p.newlabel("L_ret"); tr = p.newlabel("L_tramp")
        TRAMPS.append((tr, ret, cur))
        pv[0]['head'] = L(f"s_cbranch_vccnz {tr}\n{ret}:")
        for u in qk[:9] + [rs] + qk[9:] + pv: st.add_unit(u)
        keep = 0 if last else 3 * T
        n = st.n() - keep
        w = [f"s_waitcnt vmcnt({vm}) lgkmcnt(0)"]
        if mode == 'A' and RAMP:
            lr = p.newlabel("L_rp")
            for (tmax, v2) in RAMP: w += [f"s_cmp_gt_u32 s{sT}, {tmax}", f"s_cbranch_scc1 {lr}", f"s_waitcnt vmcnt({v2})"]
            w += [f"{lr}:"]
        bar = st.barrier(0, w)
        kr = st.reads(qk, 1, 33, [(bar, 0)]) if qk else []
        aft = [(bar, 0)] + ([(kr[-1], 0)] if kr else [])
        if t_par:
            va = chain([V(f"v_add_u32 v{vVA+u}, s{sRD}, v{vVL+u}") for u in range(4)], 0, 3 if last else 20)
            st.add(va); aft.append((va[-1], 1))
        st.reads(pv, (kr[-1].target + 2) if kr else 3, (n - 12) if not last else 30, aft)
        if not t_par:
            up = wrap0(sRD, 4 * SLOT, 12 * SLOT) + [V(f"v_add_u32 v{vKA+u}, s{sRD}, v{vKL+u}") for u in range(2)]
            up[0].after += [(kr[-1], 1)]
            st.add(chain(up, rs['first'], n - 4))
        dm = []
        if mode == 'A':
            dm = chain(kv_issue(), 2, DMAHI)
            for x in dm: x.hi = n - 8
        if extra:
            fx = [x for x in extra if getattr(x, 'fixed', False)]; fr = [x for x in extra if not getattr(x, 'fixed', False)]
            if fr:
                chain(fr, (rs['first'] + 4) if last else (DMAHI + 2 if fx else 2), n - 1 if last else (68 if fx else 56))
                if fx: fr[0].after.append((fx[-1], 1))
            dm = fx + fr
            for x in dm: x.hi = n - 1
        if dm: dm[0].after.append((bar, 1))
        st.add(dm)
        st.add(softmax_items(cur, SPLIT, 12, 0, rs['first'] - 2))
        pf = pv[0]['first']
        mx = V(f"v_max3_f32 v{vCK}, v{vL[cur]}, v{vL[cur]+4}, v{vL[cur]+8}", lo=min(rs['first'] + 6, pf - 1), hi=pf - 1)
        st.add([mx, V(f"v_cmp_nge_f32 vcc, s{sLTHR}, v{vCK}", after=[(mx, 0)], hi=pf - 1)])
        if not last: st.add(softmax_items(nxt, 0, SPLIT, pf + 1, n - 1))
        else:
            rc = chain([S(f"s_mul_i32 s{sKOFF}, s{sHL}, 73728")] + [Item('E', f"v_rcp_f32 v{vRC+qb}, v{vL[1]+4*qb}") for qb in range(3)], pf, pf + 6)
            prev = rc[-1]; st.add(rc)
            for x in rc: x.hi = n - 1
            for s in range(NEO):
                its = o_chunk(s); lo = pv[2 * s + 1]['first'] + 6
                chain(its, lo, lo + 10 + 10 * s)
                for x in its: x.hi = n - 1; x.dense = True; x.target = lo
                its[0].after.append((prev, 1)); prev = its[-1]; st.add(its)
        if endi: st.add(chain(list(endi), n - 3, n - 1, 0))
        return st.emit(keep, name=mode), ([] if last else [dict(mf=u['mf']) for u in pv[12 - T:]])
    txt = lambda tl: [[i.text for i in u['mf']] for u in tl]
    lp = "L_attA"
    b1, tail1 = step(1, tail, 'A', VMLIM)
    b2, tail2 = step(0, tail1, 'A', VMLIM, endi=[S(f"s_add_u32 s{sT}, s{sT}, 2"), S(f"s_cmp_lt_u32 s{sT}, 27")])
    assert txt(tail2) == txt(tail) and VMLIM <= 6 * (D0 - 1)
    tr = []
    if TRACE: tr = L(f"s_memrealtime s[84:85]\ns_waitcnt lgkmcnt(0)\ns_mov_b32 m0, s{sT}\nv_writelane_b32 v174, s84, m0")
    p.loop(L(f"{lp}:") + tr + b1 + b2 + L(f"s_cbranch_scc1 {lp}"))
    if TRACE:
        p(f"s_add_u32 s96, s90, {STAMP_OFF + 65536}\ns_addc_u32 s97, s91, 0"); srd(p, 84, 96, 1 << 20)
        p(f"s_lshl_b32 s{sTMP}, s2, 2\ns_add_u32 s{sTMP}, s{sTMP}, s{sWAVE}\ns_lshl_b32 s{sTMP}, s{sTMP}, 9\nv_lshlrev_b32 v{vT0}, 3, v0")
        p(f"buffer_store_dwordx2 v[174:175], v{vT0}, s[84:87], s{sTMP} offen")
    p.cur += stp('Lend')
    p("L_att27:")
    cnt = lambda its: sum(1 for x in its if x.kind == 'M')
    log = [pr for pr in range(27, 27 + D0) for _ in range(6)]
    nxt = 27 + D0
    tl = tail
    for t in range(27, 32):
        vm = len(log) - 1 - max(k for k, x in enumerate(log) if x == t)
        lastkv = max(k for k, x in enumerate(log) if x >= 0)
        if 'kv' in PLAN[t] or (VMTAIL and t < VMTAIL): vm = min(vm, VMLIM + len(log) - 1 - lastkv)
        ex = []
        for a in PLAN[t]:
            if a == 'kv': its = kv_issue(nok=(nxt == 31)); log += [nxt] * cnt(its); nxt += 1
            else:
                if a == 'r': its = [V(f"v_accvgpr_read_b32 v{r}, a{aPARK+k}") for k, r in enumerate(PARK)]
                elif a == 'p': its = pf_wo(vPWO)
                elif a == 'l': its = [Item('M', f"buffer_load_dword v{vDUM}, v{vF1}, {sr(sWS)}, 0 offen offset:128 sc1", tag="dummy")]
                else:
                    assert t >= {0: 28, 1: 28, 2: 29, 3: 29, 4: 30, 5: 31, 6: 31}[a]
                    its = dma_wo(a)
                log += [-1] * cnt(its)
            if a == 'kv':
                chain(its, 2, DMAHI)
                for x in its: x.fixed = True
            ex += its
        ins, tl = step(t & 1, tl, 'last' if t == 31 else 'P', min(vm, 63), ex); p.cur += ins
    assert nxt == 32
    p.cur += stp('Aend')
    for s in range(NEO, 6): flat(p, o_chunk(s))

def set_flag(vfl, sidx, off=0, local=False, vt=None):
    vt = vt or vTK
    st = f"buffer_store_dwordx2 v[{vt}:{vt+1}], v{vfl}, {sr(sWS)}, 0 offen offset:"
    return L(f"s_lshl_b64 exec, 1, s{sidx}\n" + (f"{st}{off+128}\n" if local else "") + f"{st}{off} sc1\ns_mov_b64 exec, -1")
def spin(name, voff, tk, off):
    one = lambda o: f"""buffer_load_dwordx2 v[{vFLV}:{vFLV+1}], v{voff}, {sr(sWS)}, 0 offen offset:{o} sc1
s_waitcnt vmcnt(0)
v_cmp_ne_u64 vcc, s[{tk}:{tk+1}], v[{vFLV}:{vFLV+1}]
s_cbranch_vccz L_spinr{name}
"""
    OUTL.append(f"""L_spin{name}:
s_mov_b32 s{sTMP}, 0x10000
L_poll{name}:
""" + (one(off + 128) * NLOC if LOCAL else "") + one(off) + f"""s_sub_u32 s{sTMP}, s{sTMP}, 1
s_cmp_lg_u32 s{sTMP}, 0
s_cbranch_scc1 L_poll{name}
s_branch L_spinr{name}
""")
def bump_epoch(p, voff, tk, sidx, off):
    ne = p.newlabel("L_ne")
    p(f"s_cmp_lg_u32 s{sidx}, 0\ns_cbranch_scc1 {ne}\nv_mov_b32 v{vFLV}, s{tk}\nv_mov_b32 v{vFLV+1}, s{tk+1}\ns_mov_b64 exec, 1")
    p.flush()
    p.raw(f"buffer_store_dwordx2 v[{vFLV}:{vFLV+1}], v{voff}, {sr(sWS)}, 0 offen offset:{off} sc1")
    p(f"s_mov_b64 exec, -1\ns_nop 1\n{ne}:")
def load_g(G):
    i, c = gic(G)
    g = [S(f"s_add_u32 s{sXOFF}, s{sHI+i}, {c}"), S(f"s_mul_i32 s{sXOFF}, s{sXOFF}, 24576")]
    for ks in range(2):
        if ks: g.append(S(f"s_add_u32 s{sXOFF}, s{sXOFF}, 12288"))
        g += [Item('M', f"buffer_load_dwordx4 {bfrag(2*G+ks,qb)}, v{vOL}, {sr(sWS)}, s{sXOFF} offen offset:{1024*qb} sc1") for qb in range(3)]
    return g

def oproj(p):
    pool = Pool(12)
    NEXTG = max(a for v in PLAN.values() for a in v if isinstance(a, int)) + 1
    def unit(G, ks, nb, va, imm):
        u = 2 * G + ks; pb = pool.next(); a = va + (nb & 1)
        rd = [f"ds_read_b64_tr_b16 {ar(pb,2)}, v{a} offset:{imm+ks*10240+nb*32}", f"ds_read_b64_tr_b16 {ar(pb+2,2)}, v{a} offset:{imm+ks*10240+nb*32+5120}"]
        mf = [I(f"{MF} {ar(cacc(nb,qb))}, {ar(pb)}, {bfrag(u,qb)}, {ar(cacc(nb,qb)) if u else 0}") for qb in range(3)]
        return dict(reads=rd, mf=snake(mf, pool.n))
    def seta(va, off): return [V(f"v_add_u32 v{va+k}, {off}, v{vWOL+k}") for k in range(2)]
    NG = 6
    def un2(G, ks, nb): return unit(G, ks, nb, vWA[2 + (G - NG) // 3], ((G - NG) % 3) * GSZ)
    assert all(goff(G + 1) == goff(G) + GSZ for G in range(NG, 11))
    U = [[unit(G, ks, nb, vWA[G & 1], 0) for ks in range(2) for nb in range(10)] for G in range(NG)]
    A1 = [un2(G, ks, nb) for G in range(6, 9) for ks in range(2) for nb in range(6 if G >= GS else 10)]
    A2 = [un2(G, ks, nb) for G in range(9, 12 - NBA) for ks in range(2) for nb in range(6)]
    F = [[un2(G, ks, nb) for G in range(12 - NBA if nb < 6 else GS, 12) for ks in range(2)] for nb in range(10)]
    tiles = U + [A1, A2 + [u for nb in range(10) for u in F[nb]]]
    flat(p, seta(vWA[0], goff(0)))
    p(f"s_mul_i32 s{sT}, s{sHG}, 15360\nv_mov_b32 v{vTK}, s{sTK1}\nv_mov_b32 v{vTK+1}, s{sTK1+1}")
    p("WAITVM G0\ns_waitcnt lgkmcnt(0)\ns_barrier"); p.cur += stp('G0')
    st = Stream()
    for tl in tiles:
        for u in tl: st.add_unit(u)
    for u in U[0][:T]:
        for r in u['reads']: p(r)
    st.add(chain(seta(vWA[2], goff(6)) + seta(vWA[3], goff(9)) + [V(f"v_mov_b32 v{vTK2}, s{sTK2}"), V(f"v_mov_b32 v{vTK2+1}, s{sTK2+1}")], 200, 300))
    mem = []
    def addmem(its, lo, hi, after=None):
        chain(its, lo, hi)
        for x in its: x.hi = 10 ** 9
        if after: its[0].after.append(after)
        if mem: its[0].after.append((mem[-1], 1))
        mem.extend(its); st.add(its)
    bars = {}
    for k, tl in enumerate(tiles):
        g0 = tl[0]['first'] - 3 * T
        last = tiles[k + 1][0]['first'] - 3 * T - RGAP if k + 1 < len(tiles) else st.n() - 14
        if k == 0: st.reads(U[0][T:], 0, last)
        else:
            bars[k] = st.barrier(g0, [f"WAITVM G{k if k < 6 else 8 if k == 6 else 11}", "s_waitcnt lgkmcnt(0)"] + stp(f"G{k if k <= 6 else 9}"))
            st.reads(tl, g0 + 1, last, [(bars[k], 0)])
        if k + 1 < NG: st.add(chain(seta(vWA[(k + 1) & 1], goff(k + 1)), max(g0, 0) + 20, g0 + 50))
    pv = {0: 2, 1: 4, 2: 8}
    wit = {}
    for pos, act in OCH:
        k, n = act[0], int(act[1:])
        if k == 'W':
            if n >= NEXTG:
                addmem(dma_wo(n), pos, pos + 12, (bars[n - 7], 1) if n >= 8 else None); wit[n] = mem[-1]
        elif k == 'F': addmem([Item('M', [I(f"WAITVM OST{n}")] + stp(f"F{n}") + set_flag(vF1, sHL, 32 * n, LOCAL))], pos, pos)
        elif k == 'P': addmem([Item('M', f"buffer_load_dwordx2 v[{pv[n]}:{pv[n]+1}], v{vF1}, {sr(sWS)}, 0 offen offset:{32*n + (128 if LOCAL else 0)} sc1")], pos, pos)
        elif k == 'C':
            addmem([V(f"v_cmp_ne_u64 vcc, s[{sTK1}:{sTK1+1}], v[{pv[n]}:{pv[n]+1}]")], pos, pos)
            addmem([Item('S', stp(f"C{n}a") + L(f"s_cbranch_vccnz L_spin{n}\nL_spinr{n}:") + stp(f"C{n}b"))], pos + 3, pos + 3)
            spin(n, vF1, sTK1, 32 * n)
        elif k == 'B': addmem([x for G in range(3 + 3 * n, 6 + 3 * n) for x in load_g(G)], pos, pos + 40)
        elif k == 'b': addmem(load_g(n), pos, pos + 14)
        elif k == 'S':
            assert n >= NST
            addmem(o_store(n), pos, pos + 6)
    def gran(m, qb, k):
        t = vQ + 12 * (k % 4); j = m * 3 + qb
        its = [V(f"v_accvgpr_read_b32 v{t+h*4+r}, a{cacc(2*m+h,qb)+r}") for h in range(2) for r in range(4)]
        its += [V(f"v_cvt_pk_bf16_f32 v{t+8+r}, v{t+2*r}, v{t+2*r+1}") for r in range(4)]
        if j % 4 == 0: its.append(S(f"s_add_u32 s{sTMP+1}, s{sT}, {j*1024}"))
        its.append(Item('M', f"buffer_store_dwordx4 {vr(t+8)}, v{vPT}, {sr(sWS)}, s{sTMP+1} offen offset:{(j%4)*1024} sc1", tag="PA" if m < 3 else "PB"))
        return its
    k = 0
    for m in range(4):
        its = []
        for qb in range(3): its += gran(m, qb, k); k += 1
        lo = F[2 * m + 2][0]['first'] + 4
        fa = [Item('M', [I("WAITVM PA")] + stp('FA') + set_flag(vF2, sHG, 0, vt=vTK2))]
        fp = min(F[6][0]['first'] + FAPOS, st.n() - 1)
        if m == 3 and fp <= lo: addmem(fa, fp, fp)
        addmem(its, lo, lo + 24)
        if m == 3 and fp > lo: addmem(fa, fp, fp)
    p.cur += st.emit(name="oproj")
    for it in mem:
        if it.kind == 'M' and it.ins[0].op == 'buffer_load_dwordx4' and it.ins[0].dst:
            d = set(it.ins[0].dst)
            assert it.gap < min(g for g, (h, m) in enumerate(st.mf) if d & set(m.src)), it.ins[0].text
    for n, it in wit.items(): assert it.gap < bars[n if n < 6 else 6 if n < 9 else 7].gap - 1, n
    assert set(wit) | set(range(NEXTG)) == set(range(12))
    p.cur += stp('E')
    for qb in range(3): flat(p, gran(4, qb, k)); k += 1

def final_reduce(p):
    sDONE, sNEW, sO2 = sKK, sWR, sRD
    ld = f"buffer_load_dwordx2 v[{vFLV}:{vFLV+1}], v{vF2}, {sr(sWS)}, 0 offen sc1"
    p(f"""
{ld}
s_lshl_b32 s{sTMP}, s{sHG}, 10
v_add_u32 v2, s{sTMP}, v{vPT}
s_cmp_eq_u32 s{sHG}, 7
s_cselect_b32 s{sO2}, {OOB}, 0
s_cselect_b32 s{sDONE}, 0xff00, 0
s_mov_b32 s{sT}, 0xffff0000
s_mov_b32 s{sTMP}, 0x20000
WAITVM PB
""")
    p.cur += set_flag(vF2, sHG, 64, vt=vTK2); p.cur += stp('ACK')
    p("s_waitcnt vmcnt(1)\ns_branch L_fin2")
    p.flush()
    t = f"""L_fin:
{ld}
s_waitcnt vmcnt(0)
L_fin2:
v_cmp_eq_u64 vcc, s[{sTK2}:{sTK2+1}], v[{vFLV}:{vFLV+1}]
s_nop 4
s_and_b32 s{sNEW}, vcc_lo, 0xffff
s_andn2_b32 s{sNEW}, s{sNEW}, s{sDONE}
s_or_b32 s{sDONE}, s{sDONE}, s{sNEW}
"""
    for g in range(16):
        t += f"""s_bitcmp0_b32 s{sNEW}, {g}
s_cbranch_scc1 L_fs{g}
s_mov_b32 s{sTMP+1}, {(g%8)*15360 + (g//8)*8192}
buffer_load_dwordx4 {vr(32+g*4)}, v2, {sr(sWS)}, s{sTMP+1} offen sc1
L_fs{g}:
"""
    t += f"""s_cmp_eq_u32 s{sDONE}, 0xffff
s_cbranch_scc1 L_find
s_sub_u32 s{sTMP}, s{sTMP}, 1
s_cmp_lg_u32 s{sTMP}, 0
s_cbranch_scc1 L_fin
L_find:"""
    p.raw(t)
    p.cur += stp('P2')
    for i in range(2):
        p(f"""
s_add_u32 s{sTMP}, s{sHG}, {8*i}
s_mul_i32 s{sTMP+1}, s{sTMP}, 11
s_lshr_b32 s{sTMP+1}, s{sTMP+1}, 5
s_mul_i32 s{sTMP+3}, s{sTMP+1}, 3
s_sub_u32 s{sTMP+3}, s{sTMP}, s{sTMP+3}
s_mul_i32 s{sTMP+3}, s{sTMP+3}, {16*1280}
s_lshl_b32 s{sTMP+1}, s{sTMP+1}, 6
s_add_u32 s{sTMP+4+i}, s{sTMP+1}, s{sTMP+3}
""")
    p(f"s_add_u32 s{sTMP+5}, s{sTMP+5}, s{sO2}\ns_and_b32 s{sNEW}, s{sNEW}, 0xff\ns_cbranch_scc0 L_fa\ns_waitcnt vmcnt(0)\nL_fa:")
    for i in range(2):
        acc = 100 + i * 8
        if i: p("s_waitcnt vmcnt(1)")
        for g in range(8):
            b = 32 + (i * 8 + g) * 4
            for r in range(4):
                d = acc if g == 0 else 120
                p(f"v_lshlrev_b32 v{d+2*r}, 16, v{b+r}\nv_and_b32 v{d+1+2*r}, s{sT}, v{b+r}")
            if g:
                for r in range(8): p(f"v_add_f32 v{acc+r}, v{acc+r}, v{120+r}")
        o = 132 + 4 * i
        for r in range(4): p(f"v_cvt_pk_bf16_f32 v{o+r}, v{acc+2*r}, v{acc+2*r+1}")
        p(f"v_permlane16_swap_b32 v{o}, v{o+2}\nv_permlane16_swap_b32 v{o+1}, v{o+3}")
        p(f"buffer_store_dwordx4 {vr(o)}, v{vOUT}, {sr(sOUT)}, s{sTMP+4+i} offen")
    bump_epoch(p, vF1, sTK1, sHL, 96)
    bump_epoch(p, vF2, sTK2, sHG, 128)

def store_stamps(p):
    if not ST: return
    p("s_waitcnt vmcnt(0)"); p.cur += stp('end')
    lab = p.newlabel("L_nost")
    if AMP:
        a, b = sSTAMP + 2 * ST[AMP[0]], sSTAMP + 2 * ST[AMP[1]]; e = sSTAMP + 2 * ST['end']
        p(f"""s_waitcnt lgkmcnt(0)
s_cmp_lg_u32 s2, 100
s_cbranch_scc1 {lab}
s_sub_u32 s{sTMP}, s{b}, s{a}
s_lshl_b32 s{sTMP}, s{sTMP}, 3
s_min_u32 s{sTMP}, s{sTMP}, 100000
L_amp:
s_memrealtime s[96:97]
s_waitcnt lgkmcnt(0)
s_sub_u32 s{sTMP+1}, s96, s{e}
s_cmp_lt_u32 s{sTMP+1}, s{sTMP}
s_cbranch_scc1 L_amp
{lab}:""")
        return
    if DBGST is not None:
        p("s_load_dwordx2 s[96:97], s[0:1], 48\ns_waitcnt lgkmcnt(0)"); srd(p, sK, 96, 256)
        p(f"s_cmp_lg_u32 s{sWAVE}, 0\ns_cbranch_scc1 {lab}\ns_cmp_lg_u32 s2, {DBGST}\ns_cbranch_scc1 {lab}")
        p("s_mov_b64 exec, 1\nv_mov_b32 v2, 0")
        for i in range(NSTAMP):
            p(f"s_sub_u32 s{sTMP}, s{sSTAMP+2*i}, s{sSTAMP}\nv_mov_b32 v4, s{sTMP}\nbuffer_store_dword v4, v2, {sr(sK)}, 0 offen offset:{4*i}\ns_nop 1")
        p(f"s_waitcnt vmcnt(0)\n{lab}:")
        return
    p(f"s_add_u32 s96, s90, {STAMP_OFF}\ns_addc_u32 s97, s91, 0"); srd(p, sK, 96, 65536)
    p("s_waitcnt lgkmcnt(0)")
    p(f"s_cmp_lg_u32 s{sWAVE}, 0\ns_cbranch_scc1 {lab}")
    p(f"s_lshl_b32 s{sTMP}, s2, 7\nv_mov_b32 v2, s{sTMP}\ns_mov_b64 exec, 1")
    for i, r in enumerate([sSTAMP + 2 * i for i in range(NSTAMP)] + list(CST.values())):
        p(f"v_mov_b32 v4, s{r}\nv_mov_b32 v5, s{r+1}\nbuffer_store_dwordx2 v[4:5], v2, {sr(sK)}, 0 offen offset:{8*i}\ns_nop 1")
    p(f"s_waitcnt vmcnt(0)\n{lab}:")

def kernel(p):
    name = NAME + "_kernel"
    p.raw(f".globl {name}\n.p2align 8\n.type {name},@function\n{name}:")
    p("s_cmp_ge_u32 s2, 256\ns_cbranch_scc1 L_end")
    p.cur += stp('start')
    p(f"""
s_load_dwordx8 s[76:83], s[0:1], 0
s_load_dwordx8 s[84:91], s[0:1], 32
v_lshrrev_b32 v1, 6, v0
v_and_b32 v0, 63, v0
v_readfirstlane_b32 s{sWAVE}, v1
""")
    if CODEPF:
        p(f"""
s_getpc_b64 s[98:99]
s_lshr_b32 s{sTMP+1}, s2, 3
s_mul_i32 s{sTMP+1}, s{sTMP+1}, {12*128}
v_mul_u32_u24 v252, 3, v1
v_add_lshl_u32 v252, v252, v0, 7
v_add_u32 v252, s{sTMP+1}, v252
v_mov_b32 v253, s99
v_add_co_u32 v252, vcc, s98, v252
v_addc_co_u32 v253, vcc, 0, v253, vcc
s_mov_b64 exec, 7
global_load_dword v{vDUM}, v[252:253], off
s_mov_b64 exec, -1
""", "dummy")
    tab = sum((((k % PH) * 10 + PH // 2) // PH) << (4 * k) for k in range(11))
    p(f"""
s_and_b32 s{sHG}, s2, 7
s_lshr_b32 s{sB}, s2, 5
s_bfe_u32 s{sHL}, s2, 0x20003
s_mul_i32 s{sM0W}, s{sWAVE}, 3072
s_add_u32 s{sTMP+1}, s{sB}, s{sHL}
s_lshl_b32 s{sTMP+1}, s{sTMP+1}, 2
s_mov_b32 s96, {tab & 0xffffffff}
s_mov_b32 s97, {tab >> 32}
s_lshr_b64 s[96:97], s[96:97], s{sTMP+1}
s_and_b32 s{sTMP+1}, s96, 15
s_lshl_b32 s{sXOFF}, s{sTMP+1}, 7
s_mul_i32 s{sWOFF}, s{sTMP+1}, {64*12288}
""")
    if KSTAG: p(f"s_mul_i32 s{sKK}, s2, 11\ns_add_u32 s{sKK}, s{sKK}, s{sB}\ns_and_b32 s{sKK}, s{sKK}, 31\ns_mul_i32 s{sKK}, s{sKK}, {SLOT}")
    else: p(f"s_mov_b32 s{sKK}, 0")
    p(f"s_mov_b32 s{sKOFF}, s{sKK}")
    setup_first(p)
    if not XFIRST:
        p.cur += stp('s0')
        srd(p, sX, 76, 1536 * 1280); p.cur += stp('s1')
    srd(p, sWq, 82, 640 * 12288)
    pool = Pool(12)
    tail = front(p, pool)
    if not QONLY:
        attention(p, pool, tail)
        oproj(p)
        final_reduce(p)
    store_stamps(p)
    p("L_end:\ns_endpgm")
    for t in OUTL: p.raw(t)
    for tr, ret, cur in TRAMPS: p.raw(f"{tr}:\ns_call_b64 s[98:99], L_rare{cur}\ns_branch {ret}")
    rare_path(p, "L_rare0", 0)
    rare_path(p, "L_rare1", 1)
    p.raw(".fill 64, 4, 0xbf800000" if not QONLY else ".fill 12288, 4, 0xbf800000")
    return kernel_desc(name, vgpr=512, accum=256)

def build(path):
    p = Prog()
    p.raw("""; GQA block (q-proj, attention over cached K/V, out-proj) for gfx950: one fused kernel
; @launch grid=(256,1,1) block=(256,1,1) lds=163840
.amdgcn_target "amdgcn-amd-amdhsa--gfx950"
.text""")
    d = kernel(p)
    p.raw('.section .rodata,"a"\n.p2align 6\n' + d)
    txt = p.text()
    if NODMA:
        txt = "\n".join(l for l in txt.split("\n") if not (l.startswith("buffer_load_dwordx4")))
        txt = txt.replace("s_cbranch_vccnz L_tramp", "s_cbranch_execz L_tramp")
    if ST: txt = txt.replace(".amdgcn_target", "; stamps " + repr(ST) + "\n.amdgcn_target", 1)
    open(path, "w").write(txt)
    if VERB:
        import collections
        print(collections.Counter(w.split(':')[0] for w in WARN))
        if VERB > 1:
            for w in WARN: print("WARN", w)
        ls = txt.split("\n")
        marks = [k for k, l in enumerate(ls) if l.endswith(":") and not l.startswith("L_ret")]
        for a, b in zip(marks, marks[1:] + [len(ls)]):
            seg = [l for l in ls[a:b] if l and not l.startswith(".") and not l.startswith(" ")]
            c, nm = estimate(seg)
            if nm: print(f"{ls[a][:28]:28s} est {c:6d} cyc, mfma {nm:4d} ({16*nm})")

STD = {'start': 0, 'X0': 1, 'u8': 2, 'u16': 3, 'E': 4, 'Qend': 5, 'Lend': 6, 'Aend': 7, 'C0b': 8, 'G6': 9, 'ACK': 10, 'end': 11}
if __name__ == "__main__":
    for a in sys.argv[2:]:
        k, v = a.split("=", 1)
        globals()[k] = eval(v)
    build(sys.argv[1])
```

```python
import sys, math, struct
from sched import *
from asmlib import kernel_desc

NAME = "standalone__gqa_block_cached__near_ridge"
SLOT = 12288
GSZ = 20480
NT = "nt"
CODEPF = True
PH = 3
VMLIM = 2
DMAHI = 22
SNAKE = True
KSTAG = True
NDB = 4
NBM = 3
NST = 4
NEO = 2
SCHED = 1
KVSPAN = 120
PLAN = {27: ['kv', 'r', 'l'], 28: [0, 1], 29: [2, 3], 30: [4]}
OCH = [(0,'W5'),(20,'W6'),(50,'S2'),(66,'F0'),(76,'S3'),(100,'W7'),(124,'P0'),(144,'C0'),(148,'b3'),(164,'F1'),(168,'W8'),(186,'b4'),(204,'S4'),(212,'S5'),(222,'b5'),(240,'P1'),(244,'W9'),
       (270,'C1'),(274,'b6'),(292,'F2'),(296,'W10'),(314,'b7'),(332,'P2'),(334,'b8'),(352,'W11'),(372,'C2'),(376,'b9'),(396,'b10'),(416,'b11')]
LATESET = True
PRE31 = (5,)
SP30 = 9
XPF = 0
XFIRST = True
AMP = None
RAMP = ()
D0 = 4
PWQ = None
VMTAIL = None
LOCAL = True
NLOC = 4
NBA = 3
FAPOS = 74
GS = 6
PART_OFF = 20 << 20
FLAG_OFF = 40 << 20
WS_SIZE = 41 << 20
STAMP_OFF = 64 << 20
ST = {}
NSTAMP = 12
DBGST = None
TRACE = 0
NODMA = 0
QONLY = 0
VERB = 0
OOB = 0x7f000000

def f32(x): return "0x%08x" % struct.unpack("<I", struct.pack("<f", x))[0]
def vr(b, n=4): return f"v[{b}:{b+n-1}]"
def ar(b, n=4): return f"a[{b}:{b+n-1}]"
def sr(b, n=4): return f"s[{b}:{b+n-1}]"
MF = "v_mfma_f32_16x16x32_bf16"
def srd(p, d, lo, nbytes):
    p(f"s_mov_b32 s{d}, s{lo}\ns_and_b32 s{d+1}, s{lo+1}, 0xffff\ns_mov_b32 s{d+2}, {nbytes}\ns_mov_b32 s{d+3}, 0x00020000")

sLTHR = 3
sK, sV, sWq, sX, sWS, sWo, sOUT = 4, 8, 12, 16, 20, 24, 28
sWAVE, sB, sSC, sHG, sHL = 32, 33, 34, 35, 36
sM0W, sKOFF, sWR, sRD, sT, sKK = 37, 38, 39, 40, 41, 42
sWOFF, sXOFF, sWW = 43, 44, 45
sTMP = 46
sSTAMP = 52
sHI = 76
sTK1, sTK2 = 92, 94
TOKC = (0x9e3779b9, 0x7f4a7c15)
F2BASE = 256 * 256
CST = {'Qend': 80, 'Lend': 82, 'C0b': 88, 'ACK': 100}
def stp(name):
    r = []
    if name in ST: r.append(I(f"s_memrealtime s[{sSTAMP+2*ST[name]}:{sSTAMP+2*ST[name]+1}]"))
    if ST and name in CST: r.append(I(f"s_memtime s[{CST[name]}:{CST[name]+1}]"))
    return r

vKD, vVD, vWD = 2, 5, 8
vXD = 11
vWOD, vPWO = 11, 16
vKL, vVL = 17, 19
vKA, vVA = 23, 25
vXR = 29
vOL, vPT = 30, 31
vT0 = 31
vDUM = 248
vF1, vF2 = 250, 251
vVB = 252
vWOL, vOUT = 252, 254
vACC = 32; vQ = 176
vS = (32, 56); vP = (80, 92); vNM = 104; vE = 120; vCK = 130; vR = 132; vL = (144, 156)
NE = 5
vB = 32; vRC = 136; vTK = 6; vTK2 = 18; vFLV = 28
vWA = (23, 20, 25, 16)
vRCS = (1, 10, 249)
vC = 56
aO = 0; aPOOL = 144; aC = 0; aX = 0; NXB = 6; aONE = 240; aPARK = 244
PARK = [vWOD + j for j in range(5)] + [vPWO, vWOL, vWOL + 1, vOL, vPT, vOUT]
def qfrag(qb, s): return vQ + (qb * 6 + s) * 4
def qacc(db, qb): return vACC + (db * 3 + qb) * 4
def oacc(db, qb): return aO + (db * 3 + qb) * 4
def cacc(nb, qb): return vC + (nb * 3 + qb) * 4
def sreg(buf, qb, kb): return vS[buf] + (qb * 2 + kb) * 4
def bfrag(u, qb):
    if u < 6: return vr(vQ + (u * 3 + qb) * 4)
    k = (u - 6) * 3 + qb
    if k < 16: return ar(192 + k * 4)
    k -= 16
    return ar(k * 4) if k < 36 else vr(32 + (k - 36) * 4)

XS0 = 5
def xpair(c): return XS0 + 2 * (c % 2)
WRING = [9, 10, 11, 1, 12]
def wslot(u): return WRING[u % 5]
def kvslot(kind, i): return 2 * (i % 6) if kind == 'K' else 2 * ((i + 1) % 6) + 1
def gic(G): return (0, G) if G < 3 else (1 + (G - 3) % 3, (G - 3) // 3)
def goff(G): return ((G + 4) % 8) * GSZ
TRAMPS = []; OUTL = []

def tile_rows(p, t, j):
    p(f"""
v_add_u32 v{t+2}, {8*j}, v{t}
v_mul_u32_u24 v{t+3}, 11, v{t+2}
v_lshrrev_b32 v{t+3}, 5, v{t+3}
v_mul_u32_u24 v{t+4}, 3, v{t+3}
v_sub_u32 v{t+4}, v{t+2}, v{t+4}
v_add_u32 v{t+3}, s{sTMP}, v{t+3}
v_and_b32 v{t+5}, 6, v{t+3}
v_xor_b32 v{t+5}, v{t+5}, v{t+1}
v_lshlrev_b32 v{t+5}, 4, v{t+5}
""")
def setup_first(p):
    t = 240
    p(f"""
v_lshrrev_b32 v{t}, 3, v0
v_and_b32 v{t+1}, 7, v0
s_lshl_b32 s{sTMP}, s{sWAVE}, 3
s_lshl_b32 s{sTMP+1}, s{sB}, 2
s_add_u32 s{sTMP+1}, s{sTMP+1}, s{sWAVE}
s_mul_i32 s{sTMP+4}, s{sTMP+1}, {48*1280}
s_lshl_b32 s{sTMP+2}, s{sHG}, 2
s_add_u32 s{sTMP+5}, s{sTMP+2}, s{sHL}
s_mul_i32 s{sTMP+2}, s{sTMP+5}, 384
""")
    for half in range(2):
        p(f"""
v_lshrrev_b32 v{t+2}, 1, v{t}
v_add_u32 v{t+2}, {4*half}, v{t+2}
v_xor_b32 v{t+2}, v{t+2}, v{t+1}
v_lshlrev_b32 v{t+2}, 4, v{t+2}
v_add_u32 v{t+3}, {8*half}, v{t}
v_mul_u32_u24 v{t+3}, 1280, v{t+3}
v_add3_u32 v{vXD+half}, v{t+2}, v{t+3}, s{sTMP+4}
v_add_u32 v{vXD+2+half}, {20480-1024}, v{vXD+half}
v_add_u32 v{vXD+4+half}, {2*(20480-1024)}, v{vXD+half}
""")
    if XFIRST:
        p.cur += stp('s0')
        srd(p, sX, 76, 1536 * 1280); p.cur += stp('s1')
        xpf = f"""s_lshl_b32 s96, s2, 2
s_add_u32 s96, s96, s{sWAVE}
s_mul_i32 s96, s96, 1920
v_lshlrev_b32 v{t+2}, 7, v0
s_mov_b64 exec, 0x7fff
buffer_load_dword v{vDUM}, v{t+2}, {sr(sX)}, s96 offen
s_mov_b64 exec, -1"""
        if XPF == 1: p(xpf, "dummy")
        flat(p, issue('X0'))
        if XPF == 2: p(xpf, "dummy")
    for j in range(3):
        tile_rows(p, t, j)
        p(f"""
v_bfe_u32 v{t+6}, v{t+3}, 2, 2
v_lshlrev_b32 v{t+6}, 3, v{t+6}
v_lshrrev_b32 v{t+7}, 4, v{t+3}
v_lshl_add_u32 v{t+6}, v{t+7}, 2, v{t+6}
v_and_b32 v{t+7}, 3, v{t+3}
v_add_u32 v{t+6}, v{t+6}, v{t+7}
v_mul_u32_u24 v{t+6}, 12288, v{t+6}
v_lshl_add_u32 v{t+6}, v{t+4}, 7, v{t+6}
v_add3_u32 v{t+6}, v{t+6}, v{t+5}, s{sTMP+2}
v_subrev_u32 v{vWD+j}, {1024*j}, v{t+6}
""")
def setup_reads(p):
    t = 232
    p(f"""
v_and_b32 v{t}, 15, v0
v_lshrrev_b32 v{t+1}, 4, v0
v_lshrrev_b32 v{t+2}, 1, v{t}
v_xor_b32 v{t+2}, v{t+2}, v{t+1}
v_lshlrev_b32 v{t+5}, 4, v{t+2}
v_and_b32 v{t+3}, 7, v{t}
v_lshl_add_u32 v{t+5}, v{t+3}, 7, v{t+5}
v_lshrrev_b32 v{t+3}, 3, v{t}
v_mul_u32_u24 v{t+3}, 12288, v{t+3}
v_add3_u32 v{t+5}, v{t+5}, v{t+3}, s{sM0W}
v_add_u32 v{vXR}, {XS0*SLOT}, v{t+5}
v_xor_b32 v{vXR+1}, 64, v{vXR}
v_bfe_u32 v{t+3}, v{t+2}, 1, 1
v_and_b32 v{t+4}, 1, v{t+2}
v_lshl_add_u32 v{t+3}, v{t+4}, 1, v{t+3}
v_and_b32 v{t+4}, 4, v{t+2}
v_or_b32 v{t+3}, v{t+3}, v{t+4}
v_lshlrev_b32 v{t+3}, 4, v{t+3}
v_mul_u32_u24 v{t+4}, 384, v{t}
v_add_u32 v{vKL}, v{t+3}, v{t+4}
v_xor_b32 v{vKL+1}, 64, v{vKL}
v_mov_b32 v{vKA}, v{vKL}
v_mov_b32 v{vKA+1}, v{vKL+1}
v_lshrrev_b32 v{t+2}, 2, v0
v_mul_u32_u24 v{t+3}, 384, v{t+2}
v_bfe_u32 v{t+4}, v{t+2}, 1, 2
v_lshl_add_u32 v{t+3}, v{t+4}, 5, v{t+3}
v_and_b32 v{t+4}, 3, v0
v_lshl_add_u32 v{vVL}, v{t+4}, 3, v{t+3}
v_xor_b32 v{vVL+1}, 32, v{vVL}
v_xor_b32 v{vVL+2}, 64, v{vVL}
v_xor_b32 v{vVL+3}, 96, v{vVL}
""")
def setup_rest(p):
    t = 240
    p(f"""
s_lshl_b32 s{sTMP+1}, s{sB}, 3
s_add_u32 s{sTMP+1}, s{sTMP+1}, s{sHG}
s_lshl_b32 s96, s{sTMP+1}, 2
s_add_u32 s{sTMP+1}, s96, s{sWAVE}
s_lshl_b32 s{sTMP+1}, s{sTMP+1}, 8
s_add_u32 s{sTMP+1}, s{sTMP+1}, {FLAG_OFF}
s_lshl_b32 s{sTMP+2}, s{sB}, 2
s_add_u32 s{sTMP+2}, s{sTMP+2}, s{sHL}
s_lshl_b32 s{sTMP+2}, s{sTMP+2}, 2
s_add_u32 s97, s{sTMP+2}, s{sWAVE}
s_lshl_b32 s{sTMP+2}, s97, 8
s_add_u32 s{sTMP+2}, s{sTMP+2}, {FLAG_OFF + F2BASE}
v_and_b32 v{t+2}, 3, v0
v_lshl_add_u32 v{vF1}, v{t+2}, 3, s{sTMP+1}
v_and_b32 v{t+2}, 15, v0
v_lshl_add_u32 v{vF2}, v{t+2}, 3, s{sTMP+2}
s_add_u32 s{sTMP+1}, s{sTMP+1}, 96
s_add_u32 s{sTMP+2}, s{sTMP+2}, 128
s_load_dwordx2 s[{sTK1}:{sTK1+1}], s[90:91], s{sTMP+1}
s_load_dwordx2 s[{sTK2}:{sTK2+1}], s[90:91], s{sTMP+2}
s_add_u32 s{sTMP+1}, s96, s{sHL}
s_mul_i32 s{sTMP+1}, s{sTMP+1}, 393216
s_add_u32 s78, s78, s{sTMP+1}
s_addc_u32 s79, s79, 0
s_add_u32 s80, s80, s{sTMP+1}
s_addc_u32 s81, s81, 0
""")
    srd(p, sK, 78, 393216); srd(p, sV, 80, 393216)
    srd(p, sWS, 90, WS_SIZE); srd(p, sWo, 84, 6144 * 1280); srd(p, sOUT, 86, 1536 * 1280)
    for j in range(3):
        tile_rows(p, t, j)
        p(f"""
v_lshl_add_u32 v{t+6}, v{t}, 7, v{t+5}
v_add_u32 v{vVD+j}, s{sM0W}, v{t+6}
v_bfe_u32 v{t+5}, v{t+3}, 2, 1
v_and_b32 v{t+6}, 2, v{t+3}
v_or_b32 v{t+5}, v{t+5}, v{t+6}
v_lshrrev_b32 v{t+6}, 1, v{t+3}
v_and_b32 v{t+6}, 4, v{t+6}
v_or_b32 v{t+5}, v{t+5}, v{t+6}
v_xor_b32 v{t+5}, v{t+5}, v{t+1}
v_lshlrev_b32 v{t+5}, 4, v{t+5}
v_lshl_add_u32 v{t+5}, v{t}, 7, v{t+5}
v_add_u32 v{vKD+j}, s{sM0W}, v{t+5}
""")
    t = 232
    park = lambda r, v: p(f"v_accvgpr_write_b32 a{aPARK + PARK.index(r)}, v{v}")
    u = 224
    p(f"""
s_mul_i32 s{sTMP+1}, s{sHG}, {768*1280}
s_mul_i32 s{sTMP+2}, s{sHL}, 320
s_mul_i32 s{sTMP+3}, s{sWAVE}, {16*1280}
s_add_u32 s{sTMP+3}, s{sTMP+3}, s{sTMP+1}
s_add_u32 s{sTMP+3}, s{sTMP+3}, s{sTMP+2}
""")
    for j in range(5):
        p(f"""
v_add_u32 v{u}, {64*j}, v0
v_mul_u32_u24 v{u+1}, 205, v{u}
v_lshrrev_b32 v{u+1}, 12, v{u+1}
v_mul_u32_u24 v{u+2}, 20, v{u+1}
v_sub_u32 v{u+2}, v{u}, v{u+2}
v_lshrrev_b32 v{u+3}, 1, v{u+1}
v_and_b32 v{u+3}, 2, v{u+3}
v_xor_b32 v{u+2}, v{u+2}, v{u+3}
v_mul_u32_u24 v{u+1}, 1280, v{u+1}
v_lshl_add_u32 v{u+1}, v{u+2}, 4, v{u+1}
v_add_u32 v{u+1}, s{sTMP+3}, v{u+1}
v_subrev_u32 v{u+1}, {1024*(j%4)}, v{u+1}
""")
        park(vWOD + j, u + 1)
    p(f"""
s_lshr_b32 s{sTMP+3}, s2, 3
s_lshl_b32 s{sTMP+3}, s{sTMP+3}, 2
s_add_u32 s{sTMP+3}, s{sTMP+3}, s{sWAVE}
s_mul_i32 s{sTMP+3}, s{sTMP+3}, {60*128}
s_add_u32 s{sTMP+3}, s{sTMP+3}, s{sTMP+1}
v_lshlrev_b32 v{u}, 7, v0
v_add_u32 v{u}, s{sTMP+3}, v{u}
v_cmp_gt_u32 vcc, 60, v0
v_mov_b32 v{u+1}, {OOB}
v_cndmask_b32 v{u}, v{u+1}, v{u}, vcc
""")
    park(vPWO, u)
    p(f"""
v_mul_u32_u24 v{u}, 320, v{t+2}
v_lshl_add_u32 v{u}, v{t+4}, 3, v{u}
v_and_b32 v{u+1}, 16, v0
v_lshlrev_b32 v{u+1}, 1, v{u+1}
v_add_u32 v{u+2}, v{u}, v{u+1}
v_sub_u32 v{u+3}, v{u}, v{u+1}
""")
    park(vWOL, u + 2); park(vWOL + 1, u + 3)
    p(f"""
s_mul_i32 s96, s96, 73728
s_add_u32 s96, s96, s{sM0W}
s_mul_i32 s97, s97, {8*15360}
s_add_u32 s97, s97, {PART_OFF}
v_lshlrev_b32 v{u}, 4, v0
v_add_u32 v{u+2}, s96, v{u}
v_add_u32 v{u+3}, s97, v{u}
""")
    park(vOL, u + 2); park(vPT, u + 3)
    p(f"""
s_add_u32 s{sTMP+2}, s{sTMP+2}, s{sTMP+4}
v_mul_u32_u24 v{u}, 1280, v{t}
v_add3_u32 v{u}, v{u}, v{u+1}, s{sTMP+2}
v_lshrrev_b32 v{u+2}, 5, v0
v_lshl_add_u32 v{u}, v{u+2}, 4, v{u}
""")
    park(vOUT, u)
    p(f"v_mov_b32 v{u}, 0x3f803f80")
    for r in range(4): p(f"v_accvgpr_write_b32 a{aONE+r}, v{u}")
    for i in range(4):
        p(f"s_add_u32 s{sHI+i}, s{sHL}, {i}\ns_and_b32 s{sHI+i}, s{sHI+i}, 3\ns_mul_i32 s{sHI+i}, s{sHI+i}, 3")
    SC = math.log2(math.e) / math.sqrt(192.0)
    p(f"""
s_mul_i32 s{sWW}, s{sWAVE}, 5120
s_mov_b32 s{sLTHR}, {f32(LTHR)}
s_mov_b32 s{sSC}, {f32(SC)}
s_add_u32 s{sWR}, s{sM0W}, {2*(D0+1)*SLOT}
s_mov_b32 s{sRD}, 0
s_mov_b32 s{sT}, 1
""")

def S(t, **k): return Item('S', t, **k)
def V(t, **k): return Item('V', t, **k)
def wrap0(s, inc, lim, zero="0"):
    return [S(f"s_add_u32 s{s}, s{s}, {inc}"), S(f"s_cmp_ge_u32 s{s}, {lim}\ns_cselect_b32 s{s}, {zero}, s{s}")]
def dma_tile(kind, pre, so, tag=None, post=()):
    vd, srn, pol = {'K': (vKD, sK, NT), 'V': (vVD, sV, NT), 'W': (vWD, sWq, "")}[kind]
    g = [S(x) for x in pre]
    for j in range(3):
        g.append(Item('M', f"buffer_load_dwordx4 v{vd+j}, {sr(srn)}, {so} offen offset:{1024*j} {pol} lds", tag=tag))
    return g + list(post)
def dma_kv_static(kind, i):
    so = sKK if kind == 'K' else sKOFF
    return dma_tile(kind, [f"s_add_u32 m0, s{sM0W}, {kvslot(kind,i)*SLOT}"], f"s{so}", f"{kind}{i}", wrap0(so, SLOT, 32 * SLOT))
def dma_w(u):
    return dma_tile('W', [f"s_add_u32 m0, s{sM0W}, {wslot(u)*SLOT}"], f"s{sWOFF}", f"W{u}", wrap0(sWOFF, 32 * 12288, 640 * 12288))
def dma_x(c):
    g = []
    for half in range(2):
        g.append(S(f"s_add_u32 m0, s{sM0W}, {(xpair(c)+half)*SLOT}"))
        for qb in range(3):
            g.append(Item('M', f"buffer_load_dwordx4 v{vXD+2*qb+half}, {sr(sX)}, s{sXOFF} offen offset:{1024*qb} lds", tag=f"X{c}"))
    return g + wrap0(sXOFF, 128, 1280)
def kv_issue(nok=False):
    dk = dma_tile('K', [f"s_mov_b32 m0, s{sWR}"], f"s{sKK}") if not nok else []
    dv = dma_tile('V', [f"s_add_u32 m0, s{sWR}, {SLOT}"], f"s{sKOFF}")
    if nok: return dv
    return dk + dv + [S(f"s_mov_b32 s{sKOFF}, s{sKK}")] + wrap0(sKK, SLOT, 32 * SLOT) + wrap0(sWR, 2 * SLOT, 12 * SLOT, f"s{sM0W}")
def dma_wo(G):
    sl = goff(G); i, c = gic(G)
    g = [S(f"s_add_u32 s{sWOFF}, s{sHI+i}, {c}"), S(f"s_mul_i32 s{sWOFF}, s{sWOFF}, {64*1280}")]
    for j in range(5):
        if j == 0: g.append(S(f"s_add_u32 m0, s{sWW}, {sl}"))
        if j == 4: g.append(S(f"s_add_u32 m0, s{sWW}, {sl+4096}"))
        g.append(Item('M', f"buffer_load_dwordx4 v{vWOD+j}, {sr(sWo)}, s{sWOFF} offen offset:{1024*(j%4)} lds", tag=f"G{G}"))
    return g
def xfrag(c, ks, qb): return aX + (c % NXB) * 24 + (ks * 3 + qb) * 4
def read_x(c):
    off = (xpair(c) - XS0) * SLOT
    return [Item('L', f"ds_read_b128 {ar(xfrag(c,ks,qb))}, v{vXR+ks} offset:{off + qb*1024}") for ks in range(2) for qb in range(3)]
def flat(p, items):
    for it in items: p.cur += it.ins
def snake(mf, k): return mf[::-1] if (SNAKE and k & 1) else mf
class Pool:
    def __init__(self, size): self.n = 0; self.size = size
    def next(self):
        r = aPOOL + 4 * (self.n % self.size); self.n += 1; return r
def vunit_reads(buf, db, imm, va):
    return [f"ds_read_b64_tr_b16 {ar(buf,2)}, v{va+(db&3)} offset:{imm + (db>>2)*128}",
            f"ds_read_b64_tr_b16 {ar(buf+2,2)}, v{va+(db&3)} offset:{imm + (db>>2)*128 + 6144}"]

T = 4
RGAP = 6
class Stream:
    def __init__(self, tail=()):
        self.mf = []; self.items = []; self.resA = set()
        for u in tail: self.add_unit(u)
    def n(self): return len(self.mf)
    def add_unit(self, u):
        u['first'] = len(self.mf)
        if u.get('reads'): self.resA.add(len(self.mf) - 1)
        for k, m in enumerate(u['mf']): self.mf.append((u.get('head', []) if k == 0 else [], m))
    def reads(self, units, lo, hi, after=()):
        its = []
        tot = sum(len(u['reads']) for u in units); k = 0
        for u in units:
            g = lo + (hi - lo + 1) * k // tot
            for r in u['reads']:
                it = Item('L', r, lo=lo, hi=max(lo, min(hi, u['first'] - 5)), target=g, after=list(after) + ([(its[-1], 0)] if its else []))
                it.use = u['first']
                its.append(it); k += 1
        self.items += its
        return its
    def barrier(self, g, wait, after=()):
        w = Item('S', [x if isinstance(x, I) else I(x) for x in wait], lo=g, hi=g + 2, target=g, after=after)
        b = Item('S', "s_barrier", lo=g + 1, hi=g + 3, after=[(w, 1)])
        self.items += [w, b]
        return b
    def add(self, its): self.items += its; return its
    def emit(self, keep=0, name=""):
        mf = self.mf[:len(self.mf) - keep] if keep else self.mf
        out = pack(mf, self.items, self.resA, name)
        for it in self.items:
            if hasattr(it, 'use'):
                d = set(it.ins[0].dst)
                assert it.gap < it.use, (name, it.ins[0].text)
                for g in range(it.gap + 1, it.use):
                    assert not (d & set(self.mf[g][1].src)), ("pool WAR", name, it.ins[0].text, it.gap, g)
        return out

def qk_unit(pool, buf, kb, ds, c0, imm, k):
    pb = pool.next()
    mf = []
    for qb in range(3):
        d = sreg(buf, qb, kb)
        c = vr(d) if ds else (0 if c0 else vr(vNM + 4 * qb))
        mf.append(I(f"{MF} {vr(d)}, {ar(pb)}, {vr(qfrag(qb,ds))}, {c}"))
    return dict(reads=[f"ds_read_b128 {ar(pb)}, v{vKA+(ds&1)} offset:{imm + kb*6144 + (ds>>1)*128}"], mf=snake(mf, k))
def qk_units(pool, buf, imm, zero=()):
    return [qk_unit(pool, buf, kb, ds, kb in zero, imm, ds) for kb in range(2) for ds in range(6)]
def rs_unit(buf, zero=False):
    return dict(reads=None, mf=[I(f"{MF} {vr(vL[buf]+4*qb)}, {ar(aONE)}, {vr(vP[buf]+4*qb)}, {0 if zero else vr(vL[buf^1]+4*qb)}") for qb in range(3)])
def pv_units(pool, buf, imm, zero=False):
    units = []
    for db in range(12):
        pb = pool.next()
        z = zero and db < 12 - T
        mf = [I(f"{MF} {ar(oacc(db,qb))}, {ar(pb)}, {vr(vP[buf]+4*qb)}, {0 if z else ar(oacc(db,qb))}") for qb in range(3)]
        units.append(dict(reads=vunit_reads(pb, db, SLOT + imm, vVA), mf=snake(mf, db)))
    return units
PAIRS = [(qb, kb, h) for kb in range(2) for qb in range(3) for h in range(2)]
def softmax_items(buf, n0, n1, lo, hi, pre=None):
    ex = []; cv = []; ex0 = []
    for n in range(n0, n1):
        qb, kb, h = PAIRS[n]
        s = sreg(buf, qb, kb) + 2 * h
        e = vE + 2 * (n % NE)
        a = Item('E', f"v_exp_f32 v{e}, v{s}"); b = Item('E', f"v_exp_f32 v{e+1}, v{s+1}")
        if len(cv) >= NE: a.after.append((cv[-NE], 1))
        if pre:
            for k, x in enumerate((a, b)):
                sub = V(f"v_add_f32 v{s+k}, v{s+k}, v{vNM+4*qb}", lo=lo, hi=hi, after=[(pre, 1)])
                x.after.append((sub, 1)); ex0.append((sub, x))
        ex += [a, b]
        cv.append(V(f"v_cvt_pk_bf16_f32 v{vP[buf]+4*qb+2*kb+h}, v{e}, v{e+1}", lo=lo, hi=hi, after=[(b, 1)]))
    chain(ex, lo, hi - 1)
    for e in ex: e.hi = hi
    for k, c in enumerate(cv): c.target = ex[2 * k + 1].target + 1
    for sub, x in ex0: sub.target = max(lo, x.target - 2)
    return [s for s, _ in ex0] + ex + cv
SPLIT = 6
LTHR = 2.0 ** 40
def rowmax_text(buf, qb, d, t):
    s0, s1 = sreg(buf, qb, 0), sreg(buf, qb, 1)
    return [f"v_max3_f32 v{d}, v{s0}, v{s0+1}, v{s0+2}", f"v_max3_f32 v{t}, v{s1}, v{s1+1}, v{s1+2}",
            f"v_max3_f32 v{d}, v{d}, v{s0+3}, v{s1+3}", f"v_max_f32 v{d}, v{d}, v{t}",
            f"v_mov_b32 v{t}, v{d}", f"v_permlane32_swap_b32 v{d}, v{t}", f"v_max_f32 v{d}, v{d}, v{t}",
            f"v_mov_b32 v{t}, v{d}", f"v_permlane16_swap_b32 v{d}, v{t}", f"v_max_f32 v{d}, v{d}, v{t}"]
def rare_path(p, label, buf):
    p.reset_state()
    p(f"{label}:\ns_nop 15")
    for qb in range(3):
        d = vR + qb
        p("\n".join(rowmax_text(buf, qb, d, vR + 8)))
        p(f"v_max_f32 v{d}, 0, v{d}")
        for r in range(4): p(f"v_sub_f32 v{vNM+4*qb+r}, v{vNM+4*qb+r}, v{d}")
        for bb in (buf, buf ^ 1):
            for r in range(8): p(f"v_sub_f32 v{sreg(bb,qb,0)+r}, v{sreg(bb,qb,0)+r}, v{d}")
        p(f"v_exp_f32_e64 v{vR+4+qb}, -v{d}")
    for qb in range(3):
        for r in range(4): p(f"v_mul_f32 v{vL[buf^1]+4*qb+r}, v{vL[buf^1]+4*qb+r}, v{vR+4+qb}")
        for r in [oacc(db, qb) + r for db in range(12) for r in range(4)]:
            p(f"v_accvgpr_read_b32 v{vR+9}, a{r}\nv_mul_f32 v{vR+9}, v{vR+9}, v{vR+4+qb}\nv_accvgpr_write_b32 a{r}, v{vR+9}")
    for (qb, kb, h) in PAIRS:
        s = sreg(buf, qb, kb) + 2 * h
        p(f"v_exp_f32 v{vE}, v{s}\nv_exp_f32 v{vE+1}, v{s+1}\nv_cvt_pk_bf16_f32 v{vP[buf]+4*qb+2*kb+h}, v{vE}, v{vE+1}")
    p.cur += rs_unit(buf)['mf']
    p(f"s_nop 15\ns_setpc_b64 s[98:99]")
    p.flush()

KVPRE = ['K0', 'K1', 'V0', 'K2', 'V1', 'K3', 'V2', 'K4', 'V3']
def get_sched():
    PRO = ['X0', 'W0', 'W1', 'W2']; PRO2 = ['X1']
    QS = {0: (['W3'], None, []), 1: (['W4', 'W5'], 1, ['X2']), 2: (['W6'], None, ['X3']), 3: (['W7'], 2, ['X4']), 4: (['W8'], 3, ['X5']),
          5: (['W9', 'K0', 'K1'], None, []), 6: (['W10'], 4, ['X6']), 7: (['W11'], 5, ['X7']), 8: (['W12', 'V0', 'K2'], None, []),
          9: (['W13'], 6, ['X8']), 10: (['W14'], 7, ['X9']), 11: (['W15'], None, []), 12: (['W16'], 8, []), 13: (['W17'], 9, []),
          14: (['W18'], None, []), 15: (['W19'], None, []), 16: (['V1', 'K3', 'V2', 'K4', 'V3'], None, [])}
    if SCHED == 1:
        QS[5] = (['W9'], None, []); QS[8] = (['W12', 'K0', 'K1'], None, []); QS[11] = (['W15', 'V0', 'K2'], None, [])
    if SCHED == 2:
        QS[5] = (['W9'], None, []); QS[8] = (['W12'], None, []); QS[11] = (['W15', 'K0', 'K1'], None, [])
        QS[15] = (['W19', 'V0', 'K2'], None, [])
    if SCHED == 3:
        QS[13] = (['W17'], 9, ['V1', 'K3']); QS[16] = (['V2', 'K4', 'V3'], None, [])
    if SCHED in (4, 5, 6):
        PRO = ['X0', 'W0', 'W1']; PRO2 = ['X1']
        if SCHED == 4:
            QS.update({0: (['W2', 'W3'], None, []), 1: (['X2'], 1, ['W4']), 2: (['W5', 'X3'], None, ['W6']), 3: (['W7'], 2, ['X4']), 4: (['W8'], None, []),
                       5: (['W9'], 3, ['X5']), 6: (['W10'], 4, ['X6']), 7: (['W11'], 5, ['X7']), 8: (['W12'], None, [])})
        if SCHED == 5:
            PRO2 = []
            QS.update({0: (['X1', 'W2'], None, ['W3']), 1: (['X2'], 1, ['W4']), 2: (['W5', 'X3'], None, ['W6']), 3: (['W7'], 2, ['X4']), 4: (['W8'], None, []),
                       5: (['W9'], 3, ['X5']), 6: (['W10'], 4, ['X6']), 7: (['W11'], 5, ['X7']), 8: (['W12'], None, [])})
        if SCHED == 6:
            PRO2 = ['X1', 'W2']
            QS.update({0: (['W3', 'X2'], None, ['W4']), 1: (['W5'], 1, ['X3']), 2: (['W6'], None, []), 3: (['W7'], 2, ['X4']), 4: (['W8'], 3, ['X5']),
                       5: (['W9'], None, []), 6: (['W10'], 4, ['X6']), 7: (['W11'], 5, ['X7']), 8: (['W12'], None, [])})
    keep = KVPRE[:1 + 2 * D0]
    for u in QS: QS[u] = tuple([n for n in part if n[0] not in 'KV' or n in keep] if isinstance(part, list) else part for part in QS[u])
    if QKV:
        for u in QS: QS[u] = tuple([n for n in part if n[0] not in 'KV'] if isinstance(part, list) else part for part in QS[u])
        for u, l in QKV.items(): QS[u] = (QS[u][0] + l,) + QS[u][1:]
    return PRO, PRO2, QS
QKV = {8: ['K0', 'K1'], 11: ['V0', 'K2'], 14: ['V1', 'K3'], 16: ['V2', 'K4', 'V3', 'P0']}
def pf_wo(v): return [Item('M', f"buffer_load_dword v{vDUM}, v{v}, {sr(sWo)}, 0 offen", tag="dummy")]
def issue(name):
    if name == 'P0': return [V(f"v_accvgpr_read_b32 v1, a{aPARK + PARK.index(vPWO)}")] + pf_wo(1)
    k, i = name[0], int(name[1:])
    return dma_x(i) if k == 'X' else dma_w(i) if k == 'W' else dma_kv_static(k, i)
def check_sched(PRO, PRO2, QS):
    occ = {}; xread = {0: -1}
    for u, (e, xr, l) in QS.items():
        if xr is not None: xread[xr] = u
    def put(n, u, late):
        k, i = n[0], int(n[1:])
        if k == 'P': return
        for s in ([xpair(i), xpair(i) + 1] if k == 'X' else [wslot(i)] if k == 'W' else [kvslot(k, i)]):
            o = occ.get(s)
            if o:
                k2, i2 = o[0], int(o[1:])
                if k2 == 'W': assert i2 <= u - 1, (n, u, o)
                elif k2 == 'X': assert xread[i2] < u or (xread[i2] == u and late), (n, u, o)
                else: assert False, (n, u, o)
            occ[s] = n
    seq = []
    for n in PRO: put(n, -2, False); seq.append(n)
    for n in PRO2: put(n, -1.5, True); seq.append(n)
    for u in sorted(QS):
        e, xr, l = QS[u]
        for n in e: put(n, u, False); seq.append(n)
        for n in l: put(n, u, True); seq.append(n)
        if xr is not None: assert min(xr * 2, 20 - NDB) > u and (xr - NXB) * 2 + 1 < u, (xr, u)
    assert [n for n in seq if n[0] == 'W'] == [f"W{i}" for i in range(20)]
    assert [n for n in seq if n[0] == 'X'] == [f"X{i}" for i in range(10)]
    assert [n for n in seq if n[0] in 'KV'] == KVPRE[:1 + 2 * D0]
    assert seq.index('K0') < seq.index('W19')

def front(p, pool):
    assert NDB == 4
    PRO, PRO2, QS = get_sched()
    check_sched(PRO, PRO2, QS)
    q = Prog(); setup_rest(q)
    ntok = max(k for k, x in enumerate(q.cur) if x.kind == 'smem') + 1
    for n in PRO[1:]: flat(p, issue(n))
    p.cur += q.cur[:ntok]
    p.cur += stp('s2')
    setup_reads(p)
    for uu in range(4): p(f"v_add_u32 v{vVA+uu}, {wslot(0)*SLOT}, v{vVL+uu}")
    late = []
    for x in q.cur[ntok:]:
        if x.op in ('s_addc_u32', 'v_cndmask_b32'): late[-1].ins.append(x)
        else: late.append(Item('V' if x.kind == 'valu' else 'S', [x]))
    if not LATESET: flat(p, late); late = []
    p("WAITVM X0"); p.cur += stp('X0')
    flat(p, read_x(0))
    for n in PRO2: flat(p, issue(n))
    p(f"""
s_add_u32 s{sTK1}, s{sTK1}, {TOKC[0]}
s_addc_u32 s{sTK1+1}, s{sTK1+1}, {TOKC[1]}
s_add_u32 s{sTK2}, s{sTK2}, {TOKC[0]}
s_addc_u32 s{sTK2+1}, s{sTK2+1}, {TOKC[1]}
""")
    p("WAITVM W0\ns_waitcnt lgkmcnt(0)\ns_barrier"); p.cur += stp('u0')
    st = Stream()
    if late:
        chain(late, 0, 36 * 8)
        for x in late: x.dense = True; x.target = 0
        st.add(late)
        kvset = [x for x in late if set(x.ins[0].dst) & {('v', vKD + 2)}][0]
    NU = 20 - NDB
    def wunit(u, db, va, imm, k):
        buf = pool.next()
        mf = [I(f"{MF} {vr(qacc(db,qb))}, {ar(buf)}, {ar(xfrag(u>>1,u&1,qb))}, {vr(qacc(db,qb)) if u else 0}") for qb in range(3)]
        return dict(reads=vunit_reads(buf, db, imm, va), mf=snake(mf, k))
    tiles = [[wunit(u, db, vVA if u % 2 == 0 else vVB, 0, db) for db in range(12)] for u in range(NU)]
    sa = {16: (vVA, 0), 17: (vVA, SLOT), 19: (vVA, 2 * SLOT), 18: (vVB, 0)}
    sup = [wunit(u, db, sa[u][0], sa[u][1], k) for db in range(12) for k, u in enumerate((16, 17, 19, 18))]
    tiles.append(sup)
    qk0 = [qk_unit(pool, 0, kb, ds, True, 0, kb) for ds in range(6) for kb in range(2)]
    qk1 = qk_units(pool, 1, 2 * SLOT, zero=(0,))
    rs = rs_unit(0, zero=True)
    pv = pv_units(pool, 0, 2 * SLOT, zero=True)
    for tl in tiles + [qk0, qk1, [rs], pv]:
        for un in tl: st.add_unit(un)
    n = st.n() - 3 * T
    prevdma = None
    for u in range(NU + 1):
        g0 = 36 * u - 3 * T
        span = 36 if u < NU else 36 * NDB
        if u == 0:
            for un in tiles[0][:T]:
                for r in un['reads']: p(r)
            rd = st.reads(tiles[0][T:], 0, g0 + 36 - RGAP)
            bar = None; glo = 0
        else:
            bar = st.barrier(g0, [f"WAITVM W{u if u < NU else 19}", "s_waitcnt lgkmcnt(0)"] + stp(f"u{u}"))
            aft = [(bar, 0)]
            if u == NU:
                vb = chain([V(f"v_add_u32 v{vVB+uu}, {wslot(18)*SLOT}, v{vVL+uu}") for uu in range(4)], g0 - 4, g0 + 1)
                vb[0].after.append((rd[-1], 1)); st.add(vb)
                for x in vb: x.hi = g0 + 4
            rd = st.reads(tiles[u], g0 + 1, g0 + span - (RGAP if u < NU else 0), aft)
            if u == NU:
                for x in rd[6:8]: x.after.append((vb[-1], 1))
            glo = g0 + 2
        if u < NU:
            va = vVA if (u + 1) % 2 == 0 else vVB
            st.add(chain([V(f"v_add_u32 v{va+uu}, {wslot(u+1)*SLOT}, v{vVL+uu}") for uu in range(4)], glo + 6, g0 + 30))
        e, xr, l = QS[u]
        f1 = [g for nm in e for g in issue(nm)]
        nx = [g for nm in l for g in issue(nm)]
        seq = []
        if f1:
            chain(f1, glo, glo + (12 if u < NU else KVSPAN))
            if bar: f1[0].after.append((bar, 1))
            if late and 'K0' in e: f1[0].after.append((kvset, 1))
            if late and 'P0' in e: f1[0].after.append((late[-1], 1))
            seq += f1
        if xr is not None:
            rx = [S(f"WAITVM X{xr}")] + read_x(xr)
            chain(rx, g0 + 14, g0 + 22)
            seq += rx
            if nx: nx = [V(f"v_accvgpr_read_b32 v{vT0}, a{xfrag(xr,1,2)}", after=[(rx[-1], 4)])] + nx
        if nx:
            chain(nx, g0 + 24, g0 + 35); seq += nx
        for k in range(len(seq)):
            pvs = seq[k - 1] if k else prevdma
            if pvs is not None and not any(a is pvs for a, _ in seq[k].after): seq[k].after.append((pvs, 1))
            seq[k].hi = g0 + span + 14 if seq[k].kind != 'L' else g0 + 30
        if seq: prevdma = seq[-1]
        st.add(seq)
    wlast = rd[-1]
    assert oacc(12 - T, 0) == xfrag(4, 0, 0)
    st.add(chain([V(f"v_accvgpr_write_b32 a{oacc(12-T,0)+r}, 0") for r in range(12 * T)], 36 * 12 + 4, 36 * 16 - 20))
    cprev = None
    for s in range(6):
        its = []
        for qb in range(3):
            a, b, q = qacc(2 * s, qb), qacc(2 * s + 1, qb), qfrag(qb, s)
            its += [V(f"v_mul_f32 v{r}, s{sSC}, v{r}") for r in list(range(a, a + 4)) + list(range(b, b + 4))]
            its += [V(f"v_cvt_pk_bf16_f32 v{q+k}, v{r}, v{r+1}") for k, r in enumerate((a, a + 2, b, b + 2))]
        for qb in range(3):
            q = qfrag(qb, s)
            its += [V(f"v_permlane16_swap_b32 v{q}, v{q+2}"), V(f"v_permlane16_swap_b32 v{q+1}, v{q+3}")]
        lo = sup[8 * s + 7]['first'] + 5
        dl = qk0[2 * s]['first'] - 2 if s else qk0[0]['first'] - 2
        chain(its, lo, min(lo + 26, dl), 0)
        for x in its: x.hi = dl; x.dense = True; x.target = lo
        if cprev: its[0].after.append((cprev, 0))
        cprev = its[-1]; st.add(its)
    q0 = qk0[0]['first']
    kr0 = st.reads(qk0, q0 - 11, q0 + 14, [(wlast, 0)])
    gx = q0 + 20
    barx = st.barrier(gx, ["WAITVM V0", "s_waitcnt lgkmcnt(0)"] + stp('Qend'), after=[(kr0[-1], 1), (prevdma, 1)])
    kr1 = st.reads(qk1, gx + 1, qk1[0]['first'] + 18, [(barx, 0)])
    va = chain([V(f"v_mov_b32 v{vVA+u}, v{vVL+u}") for u in range(4)], q0, q0 + 20); va[0].after.append((wlast, 1)); st.add(va)
    for x in va: x.hi = qk1[6]['first']
    st.reads(pv, kr1[-1].target + 2, n - 12, [(kr1[-1], 0), (va[-1], 1)])
    dm = chain(kv_issue(), qk0[10]['first'], qk0[10]['first'] + 14); dm[0].after.append((barx, 1)); st.add(dm)
    for x in dm: x.hi = n - 8
    lo = qk1[0]['first'] + 3; dl = qk1[6]['first'] - 2
    cols = [[V(t) for t in rowmax_text(0, qb, vR + qb, vR + 4 + qb)] for qb in range(3)]
    rm = [cols[qb][k] for k in range(10) for qb in range(3)]
    rm += [V(f"v_sub_f32 v{vNM+4*qb+r}, 0, v{vR+qb}") for r in range(4) for qb in range(3)]
    chain(rm, lo, dl, 0); st.add(rm)
    for x in rm: x.dense = True; x.target = lo
    st.add(softmax_items(0, 0, 12, lo + 10, rs['first'] - 2, pre=rm[32]))
    st.add(softmax_items(1, 0, SPLIT, pv[0]['first'] + 1, n - 1, pre=rm[-1]))
    up = wrap0(sRD, 4 * SLOT, 12 * SLOT) + [V(f"v_add_u32 v{vKA+u}, s{sRD}, v{vKL+u}") for u in range(2)]
    up[0].after += [(kr1[-1], 1), (dm[-1], 1)]
    st.add(chain(up, pv[0]['first'], n - 2))
    p.cur += st.emit(3 * T, name="front")
    return [dict(mf=u['mf']) for u in pv[12 - T:]]

def o_store(s):
    return [S(f"s_add_u32 s{sXOFF}, s{sKOFF}, {s*12288}")] + [
        Item('M', f"buffer_store_dwordx4 {bfrag(s,qb)}, v{vOL}, {sr(sWS)}, s{sXOFF} offen offset:{1024*qb} sc1", tag=f"OST{s>>1}") for qb in range(3)]
def o_conv(s, qb):
    t = 32 + 8 * ((s * 3 + qb) % 3); d = vQ + (s * 3 + qb) * 4
    its = [V(f"v_accvgpr_read_b32 v{t+4*h+r}, a{oacc(2*s+h,qb)+r}") for h in range(2) for r in range(4)]
    its += [V(f"v_mul_f32 v{t+r}, v{t+r}, v{vRCS[qb]}") for r in range(8)]
    its += [V(f"v_cvt_pk_bf16_f32 v{d+r}, v{t+2*r}, v{t+2*r+1}") for r in range(4)]
    return its

def check_items(cur, lo, hi):
    mx = V(f"v_max3_f32 v{vCK}, v{vL[cur]}, v{vL[cur]+4}, v{vL[cur]+8}", lo=min(lo, hi), hi=hi)
    return [mx, V(f"v_cmp_nge_f32 vcc, s{sLTHR}, v{vCK}", after=[(mx, 0)], hi=hi)]
def rare_head(p, cur):
    ret = p.newlabel("L_ret"); tr = p.newlabel("L_tramp")
    TRAMPS.append((tr, ret, cur))
    return L(f"s_cbranch_vccnz {tr}\n{ret}:")
def attention(p, pool, tail):
    def step(t_par, tail, mode, vm, extra=(), endi=(), final=False):
        cur, nxt = t_par, t_par ^ 1
        imm = 0 if t_par else 2 * SLOT
        st = Stream(tail)
        qk = qk_units(pool, nxt, imm)
        pv = pv_units(pool, cur, imm)
        rs = rs_unit(cur)
        pv[0]['head'] = rare_head(p, cur)
        for u in qk[:9] + [rs] + qk[9:] + pv: st.add_unit(u)
        n = st.n() - 3 * T
        bar = st.barrier(0, [f"s_waitcnt vmcnt({vm}) lgkmcnt(0)"])
        kr = st.reads(qk, 1, 33 if not final else 28, [(bar, 0)])
        aft = [(bar, 0), (kr[-1], 0)]
        if t_par:
            va = chain([V(f"v_add_u32 v{vVA+u}, s{sRD}, v{vVL+u}") for u in range(4)], 0, 20)
            st.add(va); aft.append((va[-1], 1))
        vrd = st.reads(pv, kr[-1].target + 2, n - (12 if not final else 20), aft)
        if final:
            up = wrap0(sRD, 4 * SLOT, 12 * SLOT) + [V(f"v_add_u32 v{vVA+u}, s{sRD}, v{vVL+u}") for u in range(4)]
            up[2].after.append((vrd[-1], 1))
            st.add(chain(up, n - 24, n - 1))
        elif not t_par:
            up = wrap0(sRD, 4 * SLOT, 12 * SLOT) + [V(f"v_add_u32 v{vKA+u}, s{sRD}, v{vKL+u}") for u in range(2)]
            up[0].after += [(kr[-1], 1)]
            st.add(chain(up, rs['first'], n - 4))
        dm = []
        if mode == 'A':
            dm = chain(kv_issue(), 2, DMAHI)
            for x in dm: x.hi = n - 8
        if extra:
            fx = [x for x in extra if getattr(x, 'fixed', False)]; fr = [x for x in extra if not getattr(x, 'fixed', False)]
            if fr:
                chain(fr, DMAHI + 2 if fx else 2, 68 if fx else (56 if not final else 30))
                if fx: fr[0].after.append((fx[-1], 1))
            dm = fx + fr
            for x in dm: x.hi = n - 1
        if dm: dm[0].after.append((bar, 1))
        st.add(dm)
        st.add(softmax_items(cur, SPLIT, 12, 0, rs['first'] - 2))
        pf = pv[0]['first']
        st.add(check_items(cur, rs['first'] + 6, pf - 1))
        st.add(softmax_items(nxt, 0, SPLIT if not final else SP30, pf + (1 if not final else 0), n - 1))
        if endi: st.add(chain(list(endi), n - 3, n - 1, 0))
        return st.emit(3 * T, name=mode), [dict(mf=u['mf']) for u in pv[12 - T:]]
    txt = lambda tl: [[i.text for i in u['mf']] for u in tl]
    lp = "L_attA"
    b1, tail1 = step(1, tail, 'A', VMLIM)
    b2, tail2 = step(0, tail1, 'A', VMLIM, endi=[S(f"s_add_u32 s{sT}, s{sT}, 2"), S(f"s_cmp_lt_u32 s{sT}, 27")])
    assert txt(tail2) == txt(tail) and VMLIM <= 6 * (D0 - 1)
    tr = []
    if TRACE: tr = L(f"s_memrealtime s[84:85]\ns_waitcnt lgkmcnt(0)\ns_mov_b32 m0, s{sT}\nv_writelane_b32 v174, s84, m0")
    p.loop(L(f"{lp}:") + tr + b1 + b2 + L(f"s_cbranch_scc1 {lp}"))
    if TRACE:
        p(f"s_add_u32 s96, s90, {STAMP_OFF + 65536}\ns_addc_u32 s97, s91, 0"); srd(p, 84, 96, 1 << 20)
        p(f"s_lshl_b32 s{sTMP}, s2, 2\ns_add_u32 s{sTMP}, s{sTMP}, s{sWAVE}\ns_lshl_b32 s{sTMP}, s{sTMP}, 9\nv_lshlrev_b32 v{vT0}, 3, v0")
        p(f"buffer_store_dwordx2 v[174:175], v{vT0}, s[84:87], s{sTMP} offen")
    p.cur += stp('Lend')
    p("L_att27:")
    cnt = lambda its: sum(1 for x in its if x.kind == 'M')
    log = [pr for pr in range(27, 27 + D0) for _ in range(6)]
    nxt = 27 + D0
    tl = tail
    for t in range(27, 31):
        vm = len(log) - 1 - max(k for k, x in enumerate(log) if x == t)
        lastkv = max(k for k, x in enumerate(log) if x >= 0)
        if 'kv' in PLAN[t] or (VMTAIL and t < VMTAIL): vm = min(vm, VMLIM + len(log) - 1 - lastkv)
        ex = []
        for a in PLAN[t]:
            if a == 'kv': its = kv_issue(nok=(nxt == 31)); log += [nxt] * cnt(its); nxt += 1
            else:
                if a == 'r': its = [V(f"v_accvgpr_read_b32 v{r}, a{aPARK+k}") for k, r in enumerate(PARK)]
                elif a == 'p': its = pf_wo(vPWO)
                elif a == 'l': its = [Item('M', f"buffer_load_dword v{vDUM}, v{vF1}, {sr(sWS)}, 0 offen offset:128 sc1", tag="dummy")]
                else:
                    assert t >= {0: 28, 1: 28, 2: 29, 3: 29, 4: 30, 5: 31, 6: 31}[a]
                    its = dma_wo(a)
                log += [-1] * cnt(its)
            if a == 'kv':
                chain(its, 2, DMAHI)
                for x in its: x.fixed = True
            ex += its
        ins, tl = step(t & 1, tl, 'P', min(vm, 63), ex, final=(t == 30)); p.cur += ins
    assert nxt == 32
    return tl, len(log) - 1 - max(k for k, x in enumerate(log) if x == 31)

def set_flag(vfl, sidx, off=0, local=False, vt=None):
    vt = vt or vTK
    st = f"buffer_store_dwordx2 v[{vt}:{vt+1}], v{vfl}, {sr(sWS)}, 0 offen offset:"
    return L(f"s_lshl_b64 exec, 1, s{sidx}\n" + (f"{st}{off+128}\n" if local else "") + f"{st}{off} sc1\ns_mov_b64 exec, -1")
def spin(name, voff, tk, off):
    one = lambda o: f"""buffer_load_dwordx2 v[{vFLV}:{vFLV+1}], v{voff}, {sr(sWS)}, 0 offen offset:{o} sc1
s_waitcnt vmcnt(0)
v_cmp_ne_u64 vcc, s[{tk}:{tk+1}], v[{vFLV}:{vFLV+1}]
s_cbranch_vccz L_spinr{name}
"""
    OUTL.append(f"""L_spin{name}:
s_mov_b32 s{sTMP}, 0x10000
L_poll{name}:
""" + (one(off + 128) * NLOC if LOCAL else "") + one(off) + f"""s_sub_u32 s{sTMP}, s{sTMP}, 1
s_cmp_lg_u32 s{sTMP}, 0
s_cbranch_scc1 L_poll{name}
s_branch L_spinr{name}
""")
def bump_epoch(p, voff, tk, sidx, off):
    ne = p.newlabel("L_ne")
    p(f"s_cmp_lg_u32 s{sidx}, 0\ns_cbranch_scc1 {ne}\nv_mov_b32 v{vFLV}, s{tk}\nv_mov_b32 v{vFLV+1}, s{tk+1}\ns_mov_b64 exec, 1")
    p.flush()
    p.raw(f"buffer_store_dwordx2 v[{vFLV}:{vFLV+1}], v{voff}, {sr(sWS)}, 0 offen offset:{off} sc1")
    p(f"s_mov_b64 exec, -1\ns_nop 1\n{ne}:")
def load_g(G):
    i, c = gic(G)
    g = [S(f"s_add_u32 s{sXOFF}, s{sHI+i}, {c}"), S(f"s_mul_i32 s{sXOFF}, s{sXOFF}, 24576")]
    for ks in range(2):
        if ks: g.append(S(f"s_add_u32 s{sXOFF}, s{sXOFF}, 12288"))
        g += [Item('M', f"buffer_load_dwordx4 {bfrag(2*G+ks,qb)}, v{vOL}, {sr(sWS)}, s{sXOFF} offen offset:{1024*qb} sc1") for qb in range(3)]
    return g

def oproj(p, pool, tail, vm31):
    NEXTG = max(a for v in PLAN.values() for a in v if isinstance(a, int)) + 1
    st = Stream(tail[:2])
    rs = rs_unit(1); st.add_unit(rs)
    for u in tail[2:]: st.add_unit(u)
    apv = pv_units(pool, 1, 0)
    apv[0]['head'] = rare_head(p, 1)
    for u in apv: st.add_unit(u)
    Z = st.n()
    def unit(G, ks, nb, va, imm):
        u = 2 * G + ks; pb = pool.next(); a = va + (nb & 1)
        rd = [f"ds_read_b64_tr_b16 {ar(pb,2)}, v{a} offset:{imm+ks*10240+nb*32}", f"ds_read_b64_tr_b16 {ar(pb+2,2)}, v{a} offset:{imm+ks*10240+nb*32+5120}"]
        mf = [I(f"{MF} {vr(cacc(nb,qb))}, {ar(pb)}, {bfrag(u,qb)}, {vr(cacc(nb,qb)) if u else 0}") for qb in range(3)]
        return dict(reads=rd, mf=snake(mf, pool.n))
    def seta(va, off): return [V(f"v_add_u32 v{va+k}, {off}, v{vWOL+k}") for k in range(2)]
    NG = 6
    def un2(G, ks, nb): return unit(G, ks, nb, vWA[2 + (G - NG) // 3], ((G - NG) % 3) * GSZ)
    assert all(goff(G + 1) == goff(G) + GSZ for G in range(NG, 11))
    U = [[unit(G, ks, nb, vWA[G & 1], 0) for ks in range(2) for nb in range(10)] for G in range(NG)]
    A1 = [un2(G, ks, nb) for G in range(6, 9) for ks in range(2) for nb in range(6 if G >= GS else 10)]
    A2 = [un2(G, ks, nb) for G in range(9, 12 - NBA) for ks in range(2) for nb in range(6)]
    F = [[un2(G, ks, nb) for G in range(12 - NBA if nb < 6 else GS, 12) for ks in range(2)] for nb in range(10)]
    tiles = U + [A1, A2 + [u for nb in range(10) for u in F[nb]]]
    if ST: U[0][0]['head'] = stp('Aend')
    for tl in tiles:
        for u in tl: st.add_unit(u)
    bar0 = st.barrier(0, ["WAITVM G0", f"s_waitcnt vmcnt({vm31}) lgkmcnt(0)"])
    pf = apv[0]['first']
    vrd = st.reads(apv, 1, pf + 14, [(bar0, 0)])
    st.add(softmax_items(1, SP30, 12, 0, rs['first'] - 1))
    st.add(check_items(1, rs['first'] + 5, pf - 1))
    sa0 = chain(seta(vWA[0], goff(0)) + [V(f"v_mov_b32 v{vTK}, s{sTK1}"), V(f"v_mov_b32 v{vTK+1}, s{sTK1+1}")], rs['first'], pf - 1); st.add(sa0)
    for x in sa0: x.hi = pf + 12
    rc = chain([S(f"s_mul_i32 s{sKOFF}, s{sHL}, 73728"), S(f"s_mul_i32 s{sT}, s{sHG}, 15360")] + [Item('E', f"v_rcp_f32 v{vRCS[qb]}, v{vL[1]+4*qb}") for qb in range(3)], pf, pf + 6)
    for x in rc: x.hi = pf + 10
    st.add(rc)
    mem = []
    def addmem(its, lo, hi, after=None):
        chain(its, lo, hi)
        for x in its: x.hi = 10 ** 9
        if after: its[0].after.append(after)
        if mem: its[0].after.append((mem[-1], 1))
        mem.extend(its); st.add(its)
    wit = {}
    for k, G in enumerate(PRE31):
        addmem(dma_wo(G), 4 + 10 * k, 12 + 10 * k, (bar0, 1)); wit[G] = mem[-1]
        for x in mem: x.hi = pf + 9
    prev = rc[-1]; conv = {}
    for sx in range(6):
        stv = o_store(sx)
        for qb in range(3):
            its = o_conv(sx, qb)
            lo = min(apv[2 * sx + 1]['first'] + 6, Z + 2)
            if sx < NEO:
                k = sx * 3 + qb; a = apv[1]['first'] + 6
                dl = max(lo, a + (Z - 3 - a) * (k + 1) // (3 * NEO))
            else: dl = Z + 30 * sx - 3
            chain(its, lo, dl, 0)
            for x in its: x.dense = True; x.target = lo
            its[0].after.append((prev, 1 if prev.kind != 'V' else 0)); prev = its[-1]; st.add(its)
            conv[sx, qb] = its[-1]
            if sx < NEO:
                o = ([stv[0]] if qb == 0 else []) + [stv[1 + qb]]
                o[-1].after.append((its[-1], 1)); addmem(o, lo, dl + 1)
                for x in o: x.hi = dl + 1
                o[-1].target = dl + 1
    st.add(chain(seta(vWA[2], goff(6)) + seta(vWA[3], goff(9)) + [V(f"v_mov_b32 v{vTK2}, s{sTK2}"), V(f"v_mov_b32 v{vTK2+1}, s{sTK2+1}")], Z + 200, Z + 300))
    bars = {0: bar0}
    for k, tl in enumerate(tiles):
        g0 = tl[0]['first'] - 3 * T
        last = tiles[k + 1][0]['first'] - 3 * T - RGAP if k + 1 < len(tiles) else st.n() - 14
        if k == 0: st.reads(U[0], g0 + 1, last, [(vrd[-1], 0), (sa0[1], 1)])
        else:
            bars[k] = st.barrier(g0, [f"WAITVM G{k if k < 6 else 8 if k == 6 else 11}", "s_waitcnt lgkmcnt(0)"] + stp(f"G{k if k <= 6 else 9}"))
            st.reads(tl, g0 + 1, last, [(bars[k], 0)])
        if k + 1 < NG: st.add(chain(seta(vWA[(k + 1) & 1], goff(k + 1)), g0 + 20, g0 + 50))
    pv = {0: 2, 1: 4, 2: 8}
    for pos, act in OCH:
        k, n = act[0], int(act[1:]); pos += Z
        if k == 'W':
            if n >= NEXTG and n not in wit:
                addmem(dma_wo(n), pos, pos + 12, (bars[0 if n < 7 else max(n - 7, 1)], 1)); wit[n] = mem[-1]
        elif k == 'F': addmem([Item('M', [I(f"WAITVM OST{n}")] + stp(f"F{n}") + set_flag(vF1, sHL, 32 * n, LOCAL))], pos, pos)
        elif k == 'P': addmem([Item('M', f"buffer_load_dwordx2 v[{pv[n]}:{pv[n]+1}], v{vF1}, {sr(sWS)}, 0 offen offset:{32*n + (128 if LOCAL else 0)} sc1")], pos, pos)
        elif k == 'C':
            addmem([V(f"v_cmp_ne_u64 vcc, s[{sTK1}:{sTK1+1}], v[{pv[n]}:{pv[n]+1}]")], pos, pos)
            addmem([Item('S', stp(f"C{n}a") + L(f"s_cbranch_vccnz L_spin{n}\nL_spinr{n}:") + stp(f"C{n}b"))], pos + 3, pos + 3)
            spin(n, vF1, sTK1, 32 * n)
        elif k == 'B': addmem([x for G in range(3 + 3 * n, 6 + 3 * n) for x in load_g(G)], pos, pos + 40)
        elif k == 'b': addmem(load_g(n), pos, pos + 14, (conv[5, 2], 1) if n >= 6 else (conv[0, 2], 1))
        elif k == 'S':
            assert n >= NEO
            o = o_store(n)
            for qb in range(3): o[1 + qb].after.append((conv[n, qb], 1))
            addmem(o, pos, pos + 6)
    def gran(m, qb, k):
        t = vQ + 12 * (k % 4); j = m * 3 + qb
        its = [V(f"v_cvt_pk_bf16_f32 v{t+8+r}, v{cacc(2*m+(r>>1),qb)+2*(r&1)}, v{cacc(2*m+(r>>1),qb)+2*(r&1)+1}") for r in range(4)]
        if j % 4 == 0: its.append(S(f"s_add_u32 s{sTMP+1}, s{sT}, {j*1024}"))
        its.append(Item('M', f"buffer_store_dwordx4 {vr(t+8)}, v{vPT}, {sr(sWS)}, s{sTMP+1} offen offset:{(j%4)*1024} sc1", tag="PA" if m < 3 else "PB"))
        return its
    k = 0
    for m in range(4):
        its = []
        for qb in range(3): its += gran(m, qb, k); k += 1
        lo = F[2 * m + 2][0]['first'] + 4
        fa = [Item('M', [I("WAITVM PA")] + stp('FA') + set_flag(vF2, sHG, 0, vt=vTK2))]
        fp = min(F[6][0]['first'] + FAPOS, st.n() - 1)
        if m == 3 and fp <= lo: addmem(fa, fp, fp)
        addmem(its, lo, lo + 14)
        if m == 3 and fp > lo: addmem(fa, fp, fp)
    p.cur += st.emit(name="oproj")
    for it in mem:
        if it.kind == 'M' and it.ins[0].op == 'buffer_load_dwordx4' and it.ins[0].dst:
            d = set(it.ins[0].dst)
            assert it.gap < min(g for g, (h, m) in enumerate(st.mf) if g >= Z and d & set(m.srcAB)), it.ins[0].text
    for n, it in wit.items(): assert it.gap < bars[n if n < 6 else 6 if n < 9 else 7].gap - 1, n
    assert set(wit) | set(range(NEXTG)) == set(range(12))
    p.cur += stp('E')
    for qb in range(3): flat(p, gran(4, qb, k)); k += 1

def final_reduce(p):
    sDONE, sNEW, sO2 = sKK, sWR, sRD
    ld = f"buffer_load_dwordx2 v[{vFLV}:{vFLV+1}], v{vF2}, {sr(sWS)}, 0 offen sc1"
    p(f"""
{ld}
s_lshl_b32 s{sTMP}, s{sHG}, 10
v_add_u32 v2, s{sTMP}, v{vPT}
s_cmp_eq_u32 s{sHG}, 7
s_cselect_b32 s{sO2}, {OOB}, 0
s_cselect_b32 s{sDONE}, 0xff00, 0
s_mov_b32 s{sT}, 0xffff0000
s_mov_b32 s{sTMP}, 0x20000
WAITVM PB
""")
    p.cur += set_flag(vF2, sHG, 64, vt=vTK2); p.cur += stp('ACK')
    p("s_waitcnt vmcnt(1)\ns_branch L_fin2")
    p.flush()
    t = f"""L_fin:
{ld}
s_waitcnt vmcnt(0)
L_fin2:
v_cmp_eq_u64 vcc, s[{sTK2}:{sTK2+1}], v[{vFLV}:{vFLV+1}]
s_nop 4
s_and_b32 s{sNEW}, vcc_lo, 0xffff
s_andn2_b32 s{sNEW}, s{sNEW}, s{sDONE}
s_or_b32 s{sDONE}, s{sDONE}, s{sNEW}
"""
    for g in range(16):
        t += f"""s_bitcmp0_b32 s{sNEW}, {g}
s_cbranch_scc1 L_fs{g}
s_mov_b32 s{sTMP+1}, {(g%8)*15360 + (g//8)*8192}
buffer_load_dwordx4 {vr(32+g*4)}, v2, {sr(sWS)}, s{sTMP+1} offen sc1
L_fs{g}:
"""
    t += f"""s_cmp_eq_u32 s{sDONE}, 0xffff
s_cbranch_scc1 L_find
s_sub_u32 s{sTMP}, s{sTMP}, 1
s_cmp_lg_u32 s{sTMP}, 0
s_cbranch_scc1 L_fin
L_find:"""
    p.raw(t)
    p.cur += stp('P2')
    for i in range(2):
        p(f"""
s_add_u32 s{sTMP}, s{sHG}, {8*i}
s_mul_i32 s{sTMP+1}, s{sTMP}, 11
s_lshr_b32 s{sTMP+1}, s{sTMP+1}, 5
s_mul_i32 s{sTMP+3}, s{sTMP+1}, 3
s_sub_u32 s{sTMP+3}, s{sTMP}, s{sTMP+3}
s_mul_i32 s{sTMP+3}, s{sTMP+3}, {16*1280}
s_lshl_b32 s{sTMP+1}, s{sTMP+1}, 6
s_add_u32 s{sTMP+4+i}, s{sTMP+1}, s{sTMP+3}
""")
    p(f"s_add_u32 s{sTMP+5}, s{sTMP+5}, s{sO2}\ns_and_b32 s{sNEW}, s{sNEW}, 0xff\ns_cbranch_scc0 L_fa\ns_waitcnt vmcnt(0)\nL_fa:")
    for i in range(2):
        acc = 100 + i * 8
        if i: p("s_waitcnt vmcnt(1)")
        for g in range(8):
            b = 32 + (i * 8 + g) * 4
            for r in range(4):
                d = acc if g == 0 else 120
                p(f"v_lshlrev_b32 v{d+2*r}, 16, v{b+r}\nv_and_b32 v{d+1+2*r}, s{sT}, v{b+r}")
            if g:
                for r in range(8): p(f"v_add_f32 v{acc+r}, v{acc+r}, v{120+r}")
        o = 132 + 4 * i
        for r in range(4): p(f"v_cvt_pk_bf16_f32 v{o+r}, v{acc+2*r}, v{acc+2*r+1}")
        p(f"v_permlane16_swap_b32 v{o}, v{o+2}\nv_permlane16_swap_b32 v{o+1}, v{o+3}")
        p(f"buffer_store_dwordx4 {vr(o)}, v{vOUT}, {sr(sOUT)}, s{sTMP+4+i} offen")
    bump_epoch(p, vF1, sTK1, sHL, 96)
    bump_epoch(p, vF2, sTK2, sHG, 128)

def store_stamps(p):
    if not ST: return
    p("s_waitcnt vmcnt(0)"); p.cur += stp('end')
    lab = p.newlabel("L_nost")
    if AMP:
        a, b = sSTAMP + 2 * ST[AMP[0]], sSTAMP + 2 * ST[AMP[1]]; e = sSTAMP + 2 * ST['end']
        p(f"""s_waitcnt lgkmcnt(0)
s_cmp_lg_u32 s2, 100
s_cbranch_scc1 {lab}
s_sub_u32 s{sTMP}, s{b}, s{a}
s_lshl_b32 s{sTMP}, s{sTMP}, 3
s_min_u32 s{sTMP}, s{sTMP}, 100000
L_amp:
s_memrealtime s[96:97]
s_waitcnt lgkmcnt(0)
s_sub_u32 s{sTMP+1}, s96, s{e}
s_cmp_lt_u32 s{sTMP+1}, s{sTMP}
s_cbranch_scc1 L_amp
{lab}:""")
        return
    if DBGST is not None:
        p("s_load_dwordx2 s[96:97], s[0:1], 48\ns_waitcnt lgkmcnt(0)"); srd(p, sK, 96, 256)
        p(f"s_cmp_lg_u32 s{sWAVE}, 0\ns_cbranch_scc1 {lab}\ns_cmp_lg_u32 s2, {DBGST}\ns_cbranch_scc1 {lab}")
        p("s_mov_b64 exec, 1\nv_mov_b32 v2, 0")
        for i in range(NSTAMP):
            p(f"s_sub_u32 s{sTMP}, s{sSTAMP+2*i}, s{sSTAMP}\nv_mov_b32 v4, s{sTMP}\nbuffer_store_dword v4, v2, {sr(sK)}, 0 offen offset:{4*i}\ns_nop 1")
        p(f"s_waitcnt vmcnt(0)\n{lab}:")
        return
    p(f"s_add_u32 s96, s90, {STAMP_OFF}\ns_addc_u32 s97, s91, 0"); srd(p, sK, 96, 65536)
    p("s_waitcnt lgkmcnt(0)")
    p(f"s_cmp_lg_u32 s{sWAVE}, 0\ns_cbranch_scc1 {lab}")
    p(f"s_lshl_b32 s{sTMP}, s2, 7\nv_mov_b32 v2, s{sTMP}\ns_mov_b64 exec, 1")
    for i, r in enumerate([sSTAMP + 2 * i for i in range(NSTAMP)] + list(CST.values())):
        p(f"v_mov_b32 v4, s{r}\nv_mov_b32 v5, s{r+1}\nbuffer_store_dwordx2 v[4:5], v2, {sr(sK)}, 0 offen offset:{8*i}\ns_nop 1")
    p(f"s_waitcnt vmcnt(0)\n{lab}:")

def kernel(p):
    name = NAME + "_kernel"
    p.raw(f".globl {name}\n.p2align 8\n.type {name},@function\n{name}:")
    p("s_cmp_ge_u32 s2, 256\ns_cbranch_scc1 L_end")
    p.cur += stp('start')
    p(f"""
s_load_dwordx8 s[76:83], s[0:1], 0
s_load_dwordx8 s[84:91], s[0:1], 32
v_lshrrev_b32 v1, 6, v0
v_and_b32 v0, 63, v0
v_readfirstlane_b32 s{sWAVE}, v1
""")
    if CODEPF:
        p(f"""
s_getpc_b64 s[98:99]
s_lshr_b32 s{sTMP+1}, s2, 3
s_mul_i32 s{sTMP+1}, s{sTMP+1}, {12*128}
v_mul_u32_u24 v252, 3, v1
v_add_lshl_u32 v252, v252, v0, 7
v_add_u32 v252, s{sTMP+1}, v252
v_mov_b32 v253, s99
v_add_co_u32 v252, vcc, s98, v252
v_addc_co_u32 v253, vcc, 0, v253, vcc
s_mov_b64 exec, 7
global_load_dword v{vDUM}, v[252:253], off
s_mov_b64 exec, -1
""", "dummy")
    tab = sum((((k % PH) * 10 + PH // 2) // PH) << (4 * k) for k in range(11))
    p(f"""
s_and_b32 s{sHG}, s2, 7
s_lshr_b32 s{sB}, s2, 5
s_bfe_u32 s{sHL}, s2, 0x20003
s_mul_i32 s{sM0W}, s{sWAVE}, 3072
s_add_u32 s{sTMP+1}, s{sB}, s{sHL}
s_lshl_b32 s{sTMP+1}, s{sTMP+1}, 2
s_mov_b32 s96, {tab & 0xffffffff}
s_mov_b32 s97, {tab >> 32}
s_lshr_b64 s[96:97], s[96:97], s{sTMP+1}
s_and_b32 s{sTMP+1}, s96, 15
s_lshl_b32 s{sXOFF}, s{sTMP+1}, 7
s_mul_i32 s{sWOFF}, s{sTMP+1}, {64*12288}
""")
    if KSTAG: p(f"s_mul_i32 s{sKK}, s2, 11\ns_add_u32 s{sKK}, s{sKK}, s{sB}\ns_and_b32 s{sKK}, s{sKK}, 31\ns_mul_i32 s{sKK}, s{sKK}, {SLOT}")
    else: p(f"s_mov_b32 s{sKK}, 0")
    p(f"s_mov_b32 s{sKOFF}, s{sKK}")
    setup_first(p)
    if not XFIRST:
        p.cur += stp('s0')
        srd(p, sX, 76, 1536 * 1280); p.cur += stp('s1')
    srd(p, sWq, 82, 640 * 12288)
    pool = Pool(12)
    tail = front(p, pool)
    if not QONLY:
        tail, vm31 = attention(p, pool, tail)
        oproj(p, pool, tail, vm31)
        final_reduce(p)
    store_stamps(p)
    p("L_end:\ns_endpgm")
    for t in OUTL: p.raw(t)
    for tr, ret, cur in TRAMPS: p.raw(f"{tr}:\ns_call_b64 s[98:99], L_rare{cur}\ns_branch {ret}")
    rare_path(p, "L_rare0", 0)
    rare_path(p, "L_rare1", 1)
    p.raw(".fill 64, 4, 0xbf800000" if not QONLY else ".fill 12288, 4, 0xbf800000")
    return kernel_desc(name, vgpr=512, accum=256)

def build(path):
    p = Prog()
    p.raw("""; GQA block (q-proj, attention over cached K/V, out-proj) for gfx950: one fused kernel
; @launch grid=(256,1,1) block=(256,1,1) lds=163840
.amdgcn_target "amdgcn-amd-amdhsa--gfx950"
.text""")
    d = kernel(p)
    p.raw('.section .rodata,"a"\n.p2align 6\n' + d)
    txt = p.text()
    if NODMA:
        txt = "\n".join(l for l in txt.split("\n") if not (l.startswith("buffer_load_dwordx4")))
        txt = txt.replace("s_cbranch_vccnz L_tramp", "s_cbranch_execz L_tramp")
    if ST: txt = txt.replace(".amdgcn_target", "; stamps " + repr(ST) + "\n.amdgcn_target", 1)
    open(path, "w").write(txt)
    if VERB:
        import collections
        print(collections.Counter(w.split(':')[0] for w in WARN))
        if VERB > 1:
            for w in WARN: print("WARN", w)
        ls = txt.split("\n")
        marks = [k for k, l in enumerate(ls) if l.endswith(":") and not l.startswith("L_ret")]
        for a, b in zip(marks, marks[1:] + [len(ls)]):
            seg = [l for l in ls[a:b] if l and not l.startswith(".") and not l.startswith(" ")]
            c, nm = estimate(seg)
            if nm: print(f"{ls[a][:28]:28s} est {c:6d} cyc, mfma {nm:4d} ({16*nm})")

STD = {'start': 0, 'X0': 1, 'u8': 2, 'u16': 3, 'E': 4, 'Qend': 5, 'Lend': 6, 'Aend': 7, 'C0b': 8, 'G6': 9, 'ACK': 10, 'end': 11}
if __name__ == "__main__":
    for a in sys.argv[2:]:
        k, v = a.split("=", 1)
        globals()[k] = eval(v)
    build(sys.argv[1])
```

```python
import sys, math, struct
from sched import *
from asmlib import kernel_desc

NAME = "standalone__gqa_block_cached__near_ridge"
SLOT = 12288
GSZ = 20480
NT = "nt"
CODEPF = True
PH = 3
VMLIM = 2
DMAHI = 22
SNAKE = True
KSTAG = True
NDB = 4
NBM = 3
NST = 4
NEO = 2
SCHED = 1
KVSPAN = 120
PLAN = {27: ['kv', 'r', 'l'], 28: ['kv', 0, 1], 29: [2, 3], 30: [4]}
OCH = [(0,'W6'),(50,'S2'),(62,'F0'),(76,'S3'),(90,'W7'),(114,'P0'),(132,'C0'),(136,'b3'),(160,'F1'),(164,'b4'),(188,'S4'),(196,'S5'),(210,'b5'),(234,'P1'),(236,'W8'),(258,'C1'),
       (262,'b6'),(284,'F2'),(288,'b7'),(310,'W9'),(332,'P2'),(334,'b8'),(356,'C2'),(360,'b9'),(382,'W10'),(404,'b10'),(426,'W11'),(448,'b11')]
LATESET = True
WHI = 62
LOOPS = [(9, (5,), 62), (27, (5,), 52)]
SPW = 20
OWN = True
WIN = (5,)
PRE31 = (5,)
SP30 = 9
XPF = 0
XFIRST = True
AMP = None
RAMP = ()
D0 = 3
PWQ = None
VMTAIL = None
LOCAL = True
NLOC = 4
NBA = 2
FAPOS = 74
GS = 6
PART_OFF = 20 << 20
FLAG_OFF = 40 << 20
WS_SIZE = 41 << 20
STAMP_OFF = 64 << 20
ST = {}
NSTAMP = 12
DBGST = None
TRACE = 0
NODMA = 0
QONLY = 0
VERB = 0
OOB = 0x7f000000

def f32(x): return "0x%08x" % struct.unpack("<I", struct.pack("<f", x))[0]
def vr(b, n=4): return f"v[{b}:{b+n-1}]"
def ar(b, n=4): return f"a[{b}:{b+n-1}]"
def sr(b, n=4): return f"s[{b}:{b+n-1}]"
MF = "v_mfma_f32_16x16x32_bf16"
def srd(p, d, lo, nbytes):
    p(f"s_mov_b32 s{d}, s{lo}\ns_and_b32 s{d+1}, s{lo+1}, 0xffff\ns_mov_b32 s{d+2}, {nbytes}\ns_mov_b32 s{d+3}, 0x00020000")

sLTHR = 3
sK, sV, sWq, sX, sWS, sWo, sOUT = 4, 8, 12, 16, 20, 24, 28
sWAVE, sB, sSC, sHG, sHL = 32, 33, 34, 35, 36
sM0W, sKOFF, sWR, sRD, sT, sKK = 37, 38, 39, 40, 41, 42
sWOFF, sXOFF, sWW = 43, 44, 45
sTMP = 46
sSTAMP = 52
sHI = 76
sTK1, sTK2 = 92, 94
TOKC = (0x9e3779b9, 0x7f4a7c15)
F2BASE = 256 * 256
CST = {'Qend': 80, 'Lend': 82, 'C0b': 88, 'ACK': 100}
def stp(name):
    r = []
    if name in ST: r.append(I(f"s_memrealtime s[{sSTAMP+2*ST[name]}:{sSTAMP+2*ST[name]+1}]"))
    if ST and name in CST: r.append(I(f"s_memtime s[{CST[name]}:{CST[name]+1}]"))
    return r

vKD, vVD, vWD = 2, 5, 8
vXD = 11
vWOD, vPWO = 11, 16
vKL, vVL = 17, 19
vKA, vVA = 23, 25
vXR = 29
vOL, vPT = 30, 31
vT0 = 31
vDUM = 248
vF1, vF2 = 250, 251
vVB = 252
vWOL, vOUT = 252, 254
vACC = 32; vQ = 176
vS = (32, 56); vP = (80, 92); vNM = 104; vE = 120; vCK = 130; vR = 132; vL = (144, 156)
NE = 5
vB = 32; vRC = 136; vTK = 6; vTK2 = 18; vFLV = 28
vWA = (23, 20, 25, 16)
vRCS = (1, 10, 249)
vC = 56
aO = 0; aPOOL = 144; aC = 0; aX = 0; NXB = 6; aONE = 240; aPARK = 244
PARK = [vWOD + j for j in range(5)] + [vPWO, vWOL, vWOL + 1, vOL, vPT, vOUT]
def qfrag(qb, s): return vQ + (qb * 6 + s) * 4
def qacc(db, qb): return vACC + (db * 3 + qb) * 4
def oacc(db, qb): return aO + (db * 3 + qb) * 4
def cacc(nb, qb): return vC + (nb * 3 + qb) * 4
def sreg(buf, qb, kb): return vS[buf] + (qb * 2 + kb) * 4
def bfrag(u, qb):
    if u < 6: return vr(vQ + (u * 3 + qb) * 4)
    k = (u - 6) * 3 + qb
    if k < 16: return ar(192 + k * 4)
    k -= 16
    return ar(k * 4) if k < 36 else vr(32 + (k - 36) * 4)

XS0 = 5
def xpair(c): return XS0 + 2 * (c % 2)
WRING = [9, 10, 11, 1, 12]
def wslot(u): return WRING[u % 5]
def kvslot(kind, i): return 2 * (i % 6) if kind == 'K' else 2 * ((i + 1) % 6) + 1
def gic(G): return (0, G) if G < 3 else (1 + (G - 3) % 3, (G - 3) // 3)
def goff(G): return ((G + 4) % 8) * GSZ
TRAMPS = []; OUTL = []

def tile_rows(p, t, j):
    p(f"""
v_add_u32 v{t+2}, {8*j}, v{t}
v_mul_u32_u24 v{t+3}, 11, v{t+2}
v_lshrrev_b32 v{t+3}, 5, v{t+3}
v_mul_u32_u24 v{t+4}, 3, v{t+3}
v_sub_u32 v{t+4}, v{t+2}, v{t+4}
v_add_u32 v{t+3}, s{sTMP}, v{t+3}
v_and_b32 v{t+5}, 6, v{t+3}
v_xor_b32 v{t+5}, v{t+5}, v{t+1}
v_lshlrev_b32 v{t+5}, 4, v{t+5}
""")
def setup_first(p):
    t = 240
    p(f"""
v_lshrrev_b32 v{t}, 3, v0
v_and_b32 v{t+1}, 7, v0
s_lshl_b32 s{sTMP}, s{sWAVE}, 3
s_lshl_b32 s{sTMP+1}, s{sB}, 2
s_add_u32 s{sTMP+1}, s{sTMP+1}, s{sWAVE}
s_mul_i32 s{sTMP+4}, s{sTMP+1}, {48*1280}
s_lshl_b32 s{sTMP+2}, s{sHG}, 2
s_add_u32 s{sTMP+5}, s{sTMP+2}, s{sHL}
s_mul_i32 s{sTMP+2}, s{sTMP+5}, 384
""")
    for half in range(2):
        p(f"""
v_lshrrev_b32 v{t+2}, 1, v{t}
v_add_u32 v{t+2}, {4*half}, v{t+2}
v_xor_b32 v{t+2}, v{t+2}, v{t+1}
v_lshlrev_b32 v{t+2}, 4, v{t+2}
v_add_u32 v{t+3}, {8*half}, v{t}
v_mul_u32_u24 v{t+3}, 1280, v{t+3}
v_add3_u32 v{vXD+half}, v{t+2}, v{t+3}, s{sTMP+4}
v_add_u32 v{vXD+2+half}, {20480-1024}, v{vXD+half}
v_add_u32 v{vXD+4+half}, {2*(20480-1024)}, v{vXD+half}
""")
    if XFIRST:
        p.cur += stp('s0')
        srd(p, sX, 76, 1536 * 1280); p.cur += stp('s1')
        xpf = f"""s_lshl_b32 s96, s2, 2
s_add_u32 s96, s96, s{sWAVE}
s_mul_i32 s96, s96, 1920
v_lshlrev_b32 v{t+2}, 7, v0
s_mov_b64 exec, 0x7fff
buffer_load_dword v{vDUM}, v{t+2}, {sr(sX)}, s96 offen
s_mov_b64 exec, -1"""
        if XPF == 1: p(xpf, "dummy")
        flat(p, issue('X0'))
        if XPF == 2: p(xpf, "dummy")
    for j in range(3):
        tile_rows(p, t, j)
        p(f"""
v_bfe_u32 v{t+6}, v{t+3}, 2, 2
v_lshlrev_b32 v{t+6}, 3, v{t+6}
v_lshrrev_b32 v{t+7}, 4, v{t+3}
v_lshl_add_u32 v{t+6}, v{t+7}, 2, v{t+6}
v_and_b32 v{t+7}, 3, v{t+3}
v_add_u32 v{t+6}, v{t+6}, v{t+7}
v_mul_u32_u24 v{t+6}, 12288, v{t+6}
v_lshl_add_u32 v{t+6}, v{t+4}, 7, v{t+6}
v_add3_u32 v{t+6}, v{t+6}, v{t+5}, s{sTMP+2}
v_subrev_u32 v{vWD+j}, {1024*j}, v{t+6}
""")
def setup_reads(p):
    t = 232
    p(f"""
v_and_b32 v{t}, 15, v0
v_lshrrev_b32 v{t+1}, 4, v0
v_lshrrev_b32 v{t+2}, 1, v{t}
v_xor_b32 v{t+2}, v{t+2}, v{t+1}
v_lshlrev_b32 v{t+5}, 4, v{t+2}
v_and_b32 v{t+3}, 7, v{t}
v_lshl_add_u32 v{t+5}, v{t+3}, 7, v{t+5}
v_lshrrev_b32 v{t+3}, 3, v{t}
v_mul_u32_u24 v{t+3}, 12288, v{t+3}
v_add3_u32 v{t+5}, v{t+5}, v{t+3}, s{sM0W}
v_add_u32 v{vXR}, {XS0*SLOT}, v{t+5}
v_xor_b32 v{vXR+1}, 64, v{vXR}
v_bfe_u32 v{t+3}, v{t+2}, 1, 1
v_and_b32 v{t+4}, 1, v{t+2}
v_lshl_add_u32 v{t+3}, v{t+4}, 1, v{t+3}
v_and_b32 v{t+4}, 4, v{t+2}
v_or_b32 v{t+3}, v{t+3}, v{t+4}
v_lshlrev_b32 v{t+3}, 4, v{t+3}
v_mul_u32_u24 v{t+4}, 384, v{t}
v_add_u32 v{vKL}, v{t+3}, v{t+4}
v_xor_b32 v{vKL+1}, 64, v{vKL}
v_mov_b32 v{vKA}, v{vKL}
v_mov_b32 v{vKA+1}, v{vKL+1}
v_lshrrev_b32 v{t+2}, 2, v0
v_mul_u32_u24 v{t+3}, 384, v{t+2}
v_bfe_u32 v{t+4}, v{t+2}, 1, 2
v_lshl_add_u32 v{t+3}, v{t+4}, 5, v{t+3}
v_and_b32 v{t+4}, 3, v0
v_lshl_add_u32 v{vVL}, v{t+4}, 3, v{t+3}
v_xor_b32 v{vVL+1}, 32, v{vVL}
v_xor_b32 v{vVL+2}, 64, v{vVL}
v_xor_b32 v{vVL+3}, 96, v{vVL}
""")
def setup_rest(p):
    t = 240
    p(f"""
s_lshl_b32 s{sTMP+1}, s{sB}, 3
s_add_u32 s{sTMP+1}, s{sTMP+1}, s{sHG}
s_lshl_b32 s96, s{sTMP+1}, 2
s_add_u32 s{sTMP+1}, s96, s{sWAVE}
s_lshl_b32 s{sTMP+1}, s{sTMP+1}, 8
s_add_u32 s{sTMP+1}, s{sTMP+1}, {FLAG_OFF}
s_lshl_b32 s{sTMP+2}, s{sB}, 2
s_add_u32 s{sTMP+2}, s{sTMP+2}, s{sHL}
s_lshl_b32 s{sTMP+2}, s{sTMP+2}, 2
s_add_u32 s97, s{sTMP+2}, s{sWAVE}
s_lshl_b32 s{sTMP+2}, s97, 8
s_add_u32 s{sTMP+2}, s{sTMP+2}, {FLAG_OFF + F2BASE}
v_and_b32 v{t+2}, 3, v0
v_lshl_add_u32 v{vF1}, v{t+2}, 3, s{sTMP+1}
v_and_b32 v{t+2}, 15, v0
v_lshl_add_u32 v{vF2}, v{t+2}, 3, s{sTMP+2}
s_add_u32 s{sTMP+1}, s{sTMP+1}, 96
s_add_u32 s{sTMP+2}, s{sTMP+2}, 128
s_load_dwordx2 s[{sTK1}:{sTK1+1}], s[90:91], s{sTMP+1}
s_load_dwordx2 s[{sTK2}:{sTK2+1}], s[90:91], s{sTMP+2}
s_add_u32 s{sTMP+1}, s96, s{sHL}
s_mul_i32 s{sTMP+1}, s{sTMP+1}, 393216
s_add_u32 s78, s78, s{sTMP+1}
s_addc_u32 s79, s79, 0
s_add_u32 s80, s80, s{sTMP+1}
s_addc_u32 s81, s81, 0
""")
    srd(p, sK, 78, 393216); srd(p, sV, 80, 393216)
    srd(p, sWS, 90, WS_SIZE); srd(p, sWo, 84, 6144 * 1280); srd(p, sOUT, 86, 1536 * 1280)
    for j in range(3):
        tile_rows(p, t, j)
        p(f"""
v_lshl_add_u32 v{t+6}, v{t}, 7, v{t+5}
v_add_u32 v{vVD+j}, s{sM0W}, v{t+6}
v_bfe_u32 v{t+5}, v{t+3}, 2, 1
v_and_b32 v{t+6}, 2, v{t+3}
v_or_b32 v{t+5}, v{t+5}, v{t+6}
v_lshrrev_b32 v{t+6}, 1, v{t+3}
v_and_b32 v{t+6}, 4, v{t+6}
v_or_b32 v{t+5}, v{t+5}, v{t+6}
v_xor_b32 v{t+5}, v{t+5}, v{t+1}
v_lshlrev_b32 v{t+5}, 4, v{t+5}
v_lshl_add_u32 v{t+5}, v{t}, 7, v{t+5}
v_add_u32 v{vKD+j}, s{sM0W}, v{t+5}
""")
    t = 232
    park = lambda r, v: p(f"v_accvgpr_write_b32 a{aPARK + PARK.index(r)}, v{v}")
    u = 224
    p(f"""
s_mul_i32 s{sTMP+1}, s{sHG}, {768*1280}
s_mul_i32 s{sTMP+2}, s{sHL}, 320
s_mul_i32 s{sTMP+3}, s{sWAVE}, {16*1280}
s_add_u32 s{sTMP+3}, s{sTMP+3}, s{sTMP+1}
s_add_u32 s{sTMP+3}, s{sTMP+3}, s{sTMP+2}
""")
    for j in range(5):
        p(f"""
v_add_u32 v{u}, {64*j}, v0
v_mul_u32_u24 v{u+1}, 205, v{u}
v_lshrrev_b32 v{u+1}, 12, v{u+1}
v_mul_u32_u24 v{u+2}, 20, v{u+1}
v_sub_u32 v{u+2}, v{u}, v{u+2}
v_lshrrev_b32 v{u+3}, 1, v{u+1}
v_and_b32 v{u+3}, 2, v{u+3}
v_xor_b32 v{u+2}, v{u+2}, v{u+3}
v_mul_u32_u24 v{u+1}, 1280, v{u+1}
v_lshl_add_u32 v{u+1}, v{u+2}, 4, v{u+1}
v_add_u32 v{u+1}, s{sTMP+3}, v{u+1}
v_subrev_u32 v{u+1}, {1024*(j%4)}, v{u+1}
""")
        park(vWOD + j, u + 1)
    p(f"""
s_lshr_b32 s{sTMP+3}, s2, 3
s_lshl_b32 s{sTMP+3}, s{sTMP+3}, 2
s_add_u32 s{sTMP+3}, s{sTMP+3}, s{sWAVE}
s_mul_i32 s{sTMP+3}, s{sTMP+3}, {60*128}
s_add_u32 s{sTMP+3}, s{sTMP+3}, s{sTMP+1}
v_lshlrev_b32 v{u}, 7, v0
v_add_u32 v{u}, s{sTMP+3}, v{u}
v_cmp_gt_u32 vcc, 60, v0
v_mov_b32 v{u+1}, {OOB}
v_cndmask_b32 v{u}, v{u+1}, v{u}, vcc
""")
    park(vPWO, u)
    p(f"""
v_mul_u32_u24 v{u}, 320, v{t+2}
v_lshl_add_u32 v{u}, v{t+4}, 3, v{u}
v_and_b32 v{u+1}, 16, v0
v_lshlrev_b32 v{u+1}, 1, v{u+1}
v_add_u32 v{u+2}, v{u}, v{u+1}
v_sub_u32 v{u+3}, v{u}, v{u+1}
""")
    park(vWOL, u + 2); park(vWOL + 1, u + 3)
    p(f"""
s_mul_i32 s96, s96, 73728
s_add_u32 s96, s96, s{sM0W}
s_mul_i32 s97, s97, {8*15360}
s_add_u32 s97, s97, {PART_OFF}
v_lshlrev_b32 v{u}, 4, v0
v_add_u32 v{u+2}, s96, v{u}
v_add_u32 v{u+3}, s97, v{u}
""")
    park(vOL, u + 2); park(vPT, u + 3)
    p(f"""
s_add_u32 s{sTMP+2}, s{sTMP+2}, s{sTMP+4}
v_mul_u32_u24 v{u}, 1280, v{t}
v_add3_u32 v{u}, v{u}, v{u+1}, s{sTMP+2}
v_lshrrev_b32 v{u+2}, 5, v0
v_lshl_add_u32 v{u}, v{u+2}, 4, v{u}
""")
    park(vOUT, u)
    p(f"v_mov_b32 v{u}, 0x3f803f80\nv_cmp_eq_u32 vcc, 0, v{t+4}\nv_cndmask_b32 v{u}, 0, v{u}, vcc")
    for r in range(4): p(f"v_accvgpr_write_b32 a{aONE+r}, v{u}")
    for i in range(4):
        p(f"s_add_u32 s{sHI+i}, s{sHL}, {i}\ns_and_b32 s{sHI+i}, s{sHI+i}, 3\ns_mul_i32 s{sHI+i}, s{sHI+i}, 3")
    SC = math.log2(math.e) / math.sqrt(192.0)
    p(f"""
s_mul_i32 s{sWW}, s{sWAVE}, 5120
s_mov_b32 s{sLTHR}, {f32(LTHR)}
s_mov_b32 s{sSC}, {f32(SC)}
s_add_u32 s{sWR}, s{sM0W}, {2*(D0+1)*SLOT}
s_mov_b32 s{sRD}, 0
s_mov_b32 s{sT}, 1
""")

def S(t, **k): return Item('S', t, **k)
def V(t, **k): return Item('V', t, **k)
def wrap0(s, inc, lim, zero="0"):
    return [S(f"s_add_u32 s{s}, s{s}, {inc}"), S(f"s_cmp_ge_u32 s{s}, {lim}\ns_cselect_b32 s{s}, {zero}, s{s}")]
def dma_tile(kind, pre, so, tag=None, post=()):
    vd, srn, pol = {'K': (vKD, sK, NT), 'V': (vVD, sV, NT), 'W': (vWD, sWq, "")}[kind]
    g = [S(x) for x in pre]
    for j in range(3):
        g.append(Item('M', f"buffer_load_dwordx4 v{vd+j}, {sr(srn)}, {so} offen offset:{1024*j} {pol} lds", tag=tag))
    return g + list(post)
def dma_kv_static(kind, i):
    so = sKK if kind == 'K' else sKOFF
    return dma_tile(kind, [f"s_add_u32 m0, s{sM0W}, {kvslot(kind,i)*SLOT}"], f"s{so}", f"{kind}{i}", wrap0(so, SLOT, 32 * SLOT))
def dma_w(u):
    return dma_tile('W', [f"s_add_u32 m0, s{sM0W}, {wslot(u)*SLOT}"], f"s{sWOFF}", f"W{u}", wrap0(sWOFF, 32 * 12288, 640 * 12288))
def dma_x(c):
    g = []
    for half in range(2):
        g.append(S(f"s_add_u32 m0, s{sM0W}, {(xpair(c)+half)*SLOT}"))
        for qb in range(3):
            g.append(Item('M', f"buffer_load_dwordx4 v{vXD+2*qb+half}, {sr(sX)}, s{sXOFF} offen offset:{1024*qb} lds", tag=f"X{c}"))
    return g + wrap0(sXOFF, 128, 1280)
def spread_kv(its, lo, hi):
    ms = [x for x in its if x.kind == 'M']
    chain(its, lo, hi)
    for k, x in enumerate(ms):
        x.target = lo + 1 + (hi - lo) * k // 5
        w = WIN[k % len(WIN)] - 1
        x.ins = [I(f"s_waitcnt vmcnt({w})")] + x.ins; x.needA = True
    t = lo
    for x in reversed(its):
        if x.kind == 'M': t = x.target
        elif any(its.index(y) > its.index(x) for y in ms): x.target = max(lo, t - 3)
        else: x.target = hi + 1
    return its
def kv_issue(nok=False):
    dk = dma_tile('K', [f"s_mov_b32 m0, s{sWR}"], f"s{sKK}") if not nok else []
    dv = dma_tile('V', [f"s_add_u32 m0, s{sWR}, {SLOT}"], f"s{sKOFF}")
    if nok: return dv
    return dk + dv + [S(f"s_mov_b32 s{sKOFF}, s{sKK}")] + wrap0(sKK, SLOT, 32 * SLOT) + wrap0(sWR, 2 * SLOT, 12 * SLOT, f"s{sM0W}")
def dma_wo(G):
    sl = goff(G); i, c = gic(G)
    g = [S(f"s_add_u32 s{sWOFF}, s{sHI+i}, {c}"), S(f"s_mul_i32 s{sWOFF}, s{sWOFF}, {64*1280}")]
    for j in range(5):
        if j == 0: g.append(S(f"s_add_u32 m0, s{sWW}, {sl}"))
        if j == 4: g.append(S(f"s_add_u32 m0, s{sWW}, {sl+4096}"))
        g.append(Item('M', f"buffer_load_dwordx4 v{vWOD+j}, {sr(sWo)}, s{sWOFF} offen offset:{1024*(j%4)} lds", tag=f"G{G}"))
    return g
def xfrag(c, ks, qb): return aX + (c % NXB) * 24 + (ks * 3 + qb) * 4
def read_x(c):
    off = (xpair(c) - XS0) * SLOT
    return [Item('L', f"ds_read_b128 {ar(xfrag(c,ks,qb))}, v{vXR+ks} offset:{off + qb*1024}") for ks in range(2) for qb in range(3)]
def flat(p, items):
    for it in items: p.cur += it.ins
def snake(mf, k): return mf[::-1] if (SNAKE and k & 1) else mf
class Pool:
    def __init__(self, size): self.n = 0; self.size = size
    def next(self):
        r = aPOOL + 4 * (self.n % self.size); self.n += 1; return r
def vunit_reads(buf, db, imm, va):
    return [f"ds_read_b64_tr_b16 {ar(buf,2)}, v{va+(db&3)} offset:{imm + (db>>2)*128}",
            f"ds_read_b64_tr_b16 {ar(buf+2,2)}, v{va+(db&3)} offset:{imm + (db>>2)*128 + 6144}"]

T = 4
RGAP = 6
class Stream:
    def __init__(self, tail=()):
        self.mf = []; self.items = []; self.resA = set()
        for u in tail: self.add_unit(u)
    def n(self): return len(self.mf)
    def add_unit(self, u):
        u['first'] = len(self.mf)
        if u.get('reads'): self.resA.add(len(self.mf) - 1)
        for k, m in enumerate(u['mf']): self.mf.append((u.get('head', []) if k == 0 else [], m))
    def reads(self, units, lo, hi, after=()):
        its = []
        tot = sum(len(u['reads']) for u in units); k = 0
        for u in units:
            g = lo + (hi - lo + 1) * k // tot
            for r in u['reads']:
                it = Item('L', r, lo=lo, hi=max(lo, min(hi, u['first'] - 5)), target=g, after=list(after) + ([(its[-1], 0)] if its else []))
                it.use = u['first']
                its.append(it); k += 1
        self.items += its
        return its
    def barrier(self, g, wait, after=()):
        w = Item('S', [x if isinstance(x, I) else I(x) for x in wait], lo=g, hi=g + 2, target=g, after=after)
        b = Item('S', "s_barrier", lo=g + 1, hi=g + 3, after=[(w, 1)])
        self.items += [w, b]
        return b
    def add(self, its): self.items += its; return its
    def emit(self, keep=0, name=""):
        mf = self.mf[:len(self.mf) - keep] if keep else self.mf
        out = pack(mf, self.items, self.resA, name)
        for it in self.items:
            if hasattr(it, 'use'):
                d = set(it.ins[0].dst)
                assert it.gap < it.use, (name, it.ins[0].text)
                for g in range(it.gap + 1, it.use):
                    assert not (d & set(self.mf[g][1].src)), ("pool WAR", name, it.ins[0].text, it.gap, g)
        return out

def qk_unit(pool, buf, kb, ds, c0, imm, k):
    pb = pool.next()
    mf = []
    for qb in range(3):
        d = sreg(buf, qb, kb)
        c = vr(d) if ds else (0 if c0 else vr(vNM + 4 * qb))
        mf.append(I(f"{MF} {vr(d)}, {ar(pb)}, {vr(qfrag(qb,ds))}, {c}"))
    return dict(reads=[f"ds_read_b128 {ar(pb)}, v{vKA+(ds&1)} offset:{imm + kb*6144 + (ds>>1)*128}"], mf=snake(mf, k))
def qk_units(pool, buf, imm, zero=()):
    return [qk_unit(pool, buf, kb, ds, kb in zero, imm, ds) for kb in range(2) for ds in range(6)]
def rs_unit(buf, zero=False):
    return dict(reads=None, mf=[I(f"{MF} {vr(vL[buf]+4*qb)}, {ar(aONE)}, {vr(vP[buf]+4*qb)}, {0 if zero else vr(vL[buf^1]+4*qb)}") for qb in range(3)])
def pv_units(pool, buf, imm, zero=False):
    units = []
    for db in range(12):
        pb = pool.next()
        z = zero and db < 12 - T
        mf = [I(f"{MF} {ar(oacc(db,qb))}, {ar(pb)}, {vr(vP[buf]+4*qb)}, {0 if z else ar(oacc(db,qb))}") for qb in range(3)]
        units.append(dict(reads=vunit_reads(pb, db, SLOT + imm, vVA), mf=snake(mf, db)))
    return units
PAIRS = [(qb, kb, h) for kb in range(2) for qb in range(3) for h in range(2)]
def softmax_items(buf, n0, n1, lo, hi, pre=None):
    ex = []; cv = []; ex0 = []
    for n in range(n0, n1):
        qb, kb, h = PAIRS[n]
        s = sreg(buf, qb, kb) + 2 * h
        e = vE + 2 * (n % NE)
        a = Item('E', f"v_exp_f32 v{e}, v{s}"); b = Item('E', f"v_exp_f32 v{e+1}, v{s+1}")
        if len(cv) >= NE: a.after.append((cv[-NE], 1))
        if pre:
            for k, x in enumerate((a, b)):
                sub = V(f"v_add_f32 v{s+k}, v{s+k}, v{vNM+4*qb}", lo=lo, hi=hi, after=[(pre, 1)])
                x.after.append((sub, 1)); ex0.append((sub, x))
        ex += [a, b]
        cv.append(V(f"v_cvt_pk_bf16_f32 v{vP[buf]+4*qb+2*kb+h}, v{e}, v{e+1}", lo=lo, hi=hi, after=[(b, 1)]))
    chain(ex, lo, hi - 1)
    for e in ex: e.hi = hi
    for k, c in enumerate(cv): c.target = ex[2 * k + 1].target + 1
    for sub, x in ex0: sub.target = max(lo, x.target - 2)
    return [s for s, _ in ex0] + ex + cv
SPLIT = 6
LTHR = 2.0 ** 40
def rowmax_text(buf, qb, d, t):
    s0, s1 = sreg(buf, qb, 0), sreg(buf, qb, 1)
    return [f"v_max3_f32 v{d}, v{s0}, v{s0+1}, v{s0+2}", f"v_max3_f32 v{t}, v{s1}, v{s1+1}, v{s1+2}",
            f"v_max3_f32 v{d}, v{d}, v{s0+3}, v{s1+3}", f"v_max_f32 v{d}, v{d}, v{t}",
            f"v_mov_b32 v{t}, v{d}", f"v_permlane32_swap_b32 v{d}, v{t}", f"v_max_f32 v{d}, v{d}, v{t}",
            f"v_mov_b32 v{t}, v{d}", f"v_permlane16_swap_b32 v{d}, v{t}", f"v_max_f32 v{d}, v{d}, v{t}"]
def rare_path(p, label, buf):
    p.reset_state()
    p(f"{label}:\ns_nop 15")
    for qb in range(3):
        d = vR + qb
        p("\n".join(rowmax_text(buf, qb, d, vR + 8)))
        p(f"v_max_f32 v{d}, 0, v{d}")
        for r in range(4): p(f"v_sub_f32 v{vNM+4*qb+r}, v{vNM+4*qb+r}, v{d}")
        for bb in (buf, buf ^ 1):
            for r in range(8): p(f"v_sub_f32 v{sreg(bb,qb,0)+r}, v{sreg(bb,qb,0)+r}, v{d}")
        p(f"v_exp_f32_e64 v{vR+4+qb}, -v{d}")
    for qb in range(3):
        for r in range(4): p(f"v_mul_f32 v{vL[buf^1]+4*qb+r}, v{vL[buf^1]+4*qb+r}, v{vR+4+qb}")
        for r in [oacc(db, qb) + r for db in range(12) for r in range(4)]:
            p(f"v_accvgpr_read_b32 v{vR+9}, a{r}\nv_mul_f32 v{vR+9}, v{vR+9}, v{vR+4+qb}\nv_accvgpr_write_b32 a{r}, v{vR+9}")
    for (qb, kb, h) in PAIRS:
        s = sreg(buf, qb, kb) + 2 * h
        p(f"v_exp_f32 v{vE}, v{s}\nv_exp_f32 v{vE+1}, v{s+1}\nv_cvt_pk_bf16_f32 v{vP[buf]+4*qb+2*kb+h}, v{vE}, v{vE+1}")
    p.cur += rs_unit(buf)['mf']
    p(f"s_nop 15\ns_setpc_b64 s[98:99]")
    p.flush()

KVPRE = ['K0', 'K1', 'V0', 'K2', 'V1', 'K3', 'V2', 'K4', 'V3']
def get_sched():
    PRO = ['X0', 'W0', 'W1', 'W2']; PRO2 = ['X1']
    QS = {0: (['W3'], None, []), 1: (['W4', 'W5'], 1, ['X2']), 2: (['W6'], None, ['X3']), 3: (['W7'], 2, ['X4']), 4: (['W8'], 3, ['X5']),
          5: (['W9', 'K0', 'K1'], None, []), 6: (['W10'], 4, ['X6']), 7: (['W11'], 5, ['X7']), 8: (['W12', 'V0', 'K2'], None, []),
          9: (['W13'], 6, ['X8']), 10: (['W14'], 7, ['X9']), 11: (['W15'], None, []), 12: (['W16'], 8, []), 13: (['W17'], 9, []),
          14: (['W18'], None, []), 15: (['W19'], None, []), 16: (['V1', 'K3', 'V2', 'K4', 'V3'], None, [])}
    if SCHED == 1:
        QS[5] = (['W9'], None, []); QS[8] = (['W12', 'K0', 'K1'], None, []); QS[11] = (['W15', 'V0', 'K2'], None, [])
    if SCHED == 2:
        QS[5] = (['W9'], None, []); QS[8] = (['W12'], None, []); QS[11] = (['W15', 'K0', 'K1'], None, [])
        QS[15] = (['W19', 'V0', 'K2'], None, [])
    if SCHED == 3:
        QS[13] = (['W17'], 9, ['V1', 'K3']); QS[16] = (['V2', 'K4', 'V3'], None, [])
    if SCHED in (4, 5, 6):
        PRO = ['X0', 'W0', 'W1']; PRO2 = ['X1']
        if SCHED == 4:
            QS.update({0: (['W2', 'W3'], None, []), 1: (['X2'], 1, ['W4']), 2: (['W5', 'X3'], None, ['W6']), 3: (['W7'], 2, ['X4']), 4: (['W8'], None, []),
                       5: (['W9'], 3, ['X5']), 6: (['W10'], 4, ['X6']), 7: (['W11'], 5, ['X7']), 8: (['W12'], None, [])})
        if SCHED == 5:
            PRO2 = []
            QS.update({0: (['X1', 'W2'], None, ['W3']), 1: (['X2'], 1, ['W4']), 2: (['W5', 'X3'], None, ['W6']), 3: (['W7'], 2, ['X4']), 4: (['W8'], None, []),
                       5: (['W9'], 3, ['X5']), 6: (['W10'], 4, ['X6']), 7: (['W11'], 5, ['X7']), 8: (['W12'], None, [])})
        if SCHED == 6:
            PRO2 = ['X1', 'W2']
            QS.update({0: (['W3', 'X2'], None, ['W4']), 1: (['W5'], 1, ['X3']), 2: (['W6'], None, []), 3: (['W7'], 2, ['X4']), 4: (['W8'], 3, ['X5']),
                       5: (['W9'], None, []), 6: (['W10'], 4, ['X6']), 7: (['W11'], 5, ['X7']), 8: (['W12'], None, [])})
    keep = KVPRE[:1 + 2 * D0]
    for u in QS: QS[u] = tuple([n for n in part if n[0] not in 'KV' or n in keep] if isinstance(part, list) else part for part in QS[u])
    if QKV:
        for u in QS: QS[u] = tuple([n for n in part if n[0] not in 'KV'] if isinstance(part, list) else part for part in QS[u])
        for u, l in QKV.items(): QS[u] = (QS[u][0] + l,) + QS[u][1:]
    return PRO, PRO2, QS
QKV = {8: ['K0', 'K1'], 11: ['V0', 'K2'], 16: ['V1', 'K3', 'V2', 'P0']}
def pf_wo(v): return [Item('M', f"buffer_load_dword v{vDUM}, v{v}, {sr(sWo)}, 0 offen", tag="dummy")]
def issue(name):
    if name == 'P0': return [V(f"v_accvgpr_read_b32 v1, a{aPARK + PARK.index(vPWO)}")] + pf_wo(1)
    k, i = name[0], int(name[1:])
    return dma_x(i) if k == 'X' else dma_w(i) if k == 'W' else dma_kv_static(k, i)
def check_sched(PRO, PRO2, QS):
    occ = {}; xread = {0: -1}
    for u, (e, xr, l) in QS.items():
        if xr is not None: xread[xr] = u
    def put(n, u, late):
        k, i = n[0], int(n[1:])
        if k == 'P': return
        for s in ([xpair(i), xpair(i) + 1] if k == 'X' else [wslot(i)] if k == 'W' else [kvslot(k, i)]):
            o = occ.get(s)
            if o:
                k2, i2 = o[0], int(o[1:])
                if k2 == 'W': assert i2 <= u - 1, (n, u, o)
                elif k2 == 'X': assert xread[i2] < u or (xread[i2] == u and late), (n, u, o)
                else: assert False, (n, u, o)
            occ[s] = n
    seq = []
    for n in PRO: put(n, -2, False); seq.append(n)
    for n in PRO2: put(n, -1.5, True); seq.append(n)
    for u in sorted(QS):
        e, xr, l = QS[u]
        for n in e: put(n, u, False); seq.append(n)
        for n in l: put(n, u, True); seq.append(n)
        if xr is not None: assert min(xr * 2, 20 - NDB) > u and (xr - NXB) * 2 + 1 < u, (xr, u)
    assert [n for n in seq if n[0] == 'W'] == [f"W{i}" for i in range(20)]
    assert [n for n in seq if n[0] == 'X'] == [f"X{i}" for i in range(10)]
    assert [n for n in seq if n[0] in 'KV'] == KVPRE[:1 + 2 * D0]
    assert seq.index('K0') < seq.index('W19')

def front(p, pool):
    assert NDB == 4
    PRO, PRO2, QS = get_sched()
    check_sched(PRO, PRO2, QS)
    q = Prog(); setup_rest(q)
    ntok = max(k for k, x in enumerate(q.cur) if x.kind == 'smem') + 1
    for n in PRO[1:]: flat(p, issue(n))
    p.cur += q.cur[:ntok]
    p.cur += stp('s2')
    setup_reads(p)
    for uu in range(4): p(f"v_add_u32 v{vVA+uu}, {wslot(0)*SLOT}, v{vVL+uu}")
    late = []
    for x in q.cur[ntok:]:
        if x.op in ('s_addc_u32', 'v_cndmask_b32'): late[-1].ins.append(x)
        else: late.append(Item('V' if x.kind == 'valu' else 'S', [x]))
    if not LATESET: flat(p, late); late = []
    p("WAITVM X0"); p.cur += stp('X0')
    flat(p, read_x(0))
    for n in PRO2: flat(p, issue(n))
    p(f"""
s_add_u32 s{sTK1}, s{sTK1}, {TOKC[0]}
s_addc_u32 s{sTK1+1}, s{sTK1+1}, {TOKC[1]}
s_add_u32 s{sTK2}, s{sTK2}, {TOKC[0]}
s_addc_u32 s{sTK2+1}, s{sTK2+1}, {TOKC[1]}
""")
    p("WAITVM W0\ns_waitcnt lgkmcnt(0)\ns_barrier"); p.cur += stp('u0')
    st = Stream()
    if late:
        chain(late, 0, 36 * 12)
        for x in late: x.dense = True; x.target = 0
        st.add(late)
        kvset = [x for x in late if set(x.ins[0].dst) & {('v', vKD + 2)}][0]
    NU = 20 - NDB
    def wunit(u, db, va, imm, k):
        buf = pool.next()
        mf = [I(f"{MF} {vr(qacc(db,qb))}, {ar(buf)}, {ar(xfrag(u>>1,u&1,qb))}, {vr(qacc(db,qb)) if u else 0}") for qb in range(3)]
        return dict(reads=vunit_reads(buf, db, imm, va), mf=snake(mf, k))
    tiles = [[wunit(u, db, vVA if u % 2 == 0 else vVB, 0, db) for db in range(12)] for u in range(NU)]
    sa = {16: (vVA, 0), 17: (vVA, SLOT), 19: (vVA, 2 * SLOT), 18: (vVB, 0)}
    sup = [wunit(u, db, sa[u][0], sa[u][1], k) for db in range(12) for k, u in enumerate((16, 17, 19, 18))]
    tiles.append(sup)
    qk0 = [qk_unit(pool, 0, kb, ds, True, 0, kb) for ds in range(6) for kb in range(2)]
    qk1 = qk_units(pool, 1, 2 * SLOT, zero=(0,))
    rs = rs_unit(0, zero=True)
    pv = pv_units(pool, 0, 2 * SLOT, zero=True)
    for tl in tiles + [qk0, qk1, [rs], pv]:
        for un in tl: st.add_unit(un)
    n = st.n() - 3 * T
    prevdma = None
    for u in range(NU + 1):
        g0 = 36 * u - 3 * T
        span = 36 if u < NU else 36 * NDB
        if u == 0:
            for un in tiles[0][:T]:
                for r in un['reads']: p(r)
            rd = st.reads(tiles[0][T:], 0, g0 + 36 - RGAP)
            bar = None; glo = 0
        else:
            bar = st.barrier(g0, [f"WAITVM W{u if u < NU else 19}", "s_waitcnt lgkmcnt(0)"] + stp(f"u{u}"))
            aft = [(bar, 0)]
            if u == NU:
                vb = chain([V(f"v_add_u32 v{vVB+uu}, {wslot(18)*SLOT}, v{vVL+uu}") for uu in range(4)], g0 - 4, g0 + 1)
                vb[0].after.append((rd[-1], 1)); st.add(vb)
                for x in vb: x.hi = g0 + 4
            rd = st.reads(tiles[u], g0 + 1, g0 + span - (RGAP if u < NU else 0), aft)
            if u == NU:
                for x in rd[6:8]: x.after.append((vb[-1], 1))
            glo = g0 + 2
        if u < NU:
            va = vVA if (u + 1) % 2 == 0 else vVB
            st.add(chain([V(f"v_add_u32 v{va+uu}, {wslot(u+1)*SLOT}, v{vVL+uu}") for uu in range(4)], glo + 6, g0 + 30))
        e, xr, l = QS[u]
        f1 = [g for nm in e for g in issue(nm)]
        nx = [g for nm in l for g in issue(nm)]
        seq = []
        if f1:
            chain(f1, glo, glo + (12 if u < NU else KVSPAN))
            if bar: f1[0].after.append((bar, 1))
            if late and 'K0' in e: f1[0].after.append((kvset, 1))
            if late and 'P0' in e: f1[0].after.append((late[-1], 1))
            seq += f1
        if xr is not None:
            rx = [S(f"WAITVM X{xr}")] + read_x(xr)
            chain(rx, g0 + 14, g0 + 22)
            seq += rx
            if nx: nx = [V(f"v_accvgpr_read_b32 v{vT0}, a{xfrag(xr,1,2)}", after=[(rx[-1], 4)])] + nx
        if nx:
            chain(nx, g0 + 24, g0 + 35); seq += nx
        for k in range(len(seq)):
            pvs = seq[k - 1] if k else prevdma
            if pvs is not None and not any(a is pvs for a, _ in seq[k].after): seq[k].after.append((pvs, 1))
            seq[k].hi = g0 + span + 14 if seq[k].kind != 'L' else g0 + 30
        if seq: prevdma = seq[-1]
        st.add(seq)
    wlast = rd[-1]
    assert oacc(12 - T, 0) == xfrag(4, 0, 0)
    st.add(chain([V(f"v_accvgpr_write_b32 a{oacc(12-T,0)+r}, 0") for r in range(12 * T)], 36 * 12 + 4, 36 * 16 - 20))
    cprev = None
    for s in range(6):
        its = []
        for qb in range(3):
            a, b, q = qacc(2 * s, qb), qacc(2 * s + 1, qb), qfrag(qb, s)
            its += [V(f"v_mul_f32 v{r}, s{sSC}, v{r}") for r in list(range(a, a + 4)) + list(range(b, b + 4))]
            its += [V(f"v_cvt_pk_bf16_f32 v{q+k}, v{r}, v{r+1}") for k, r in enumerate((a, a + 2, b, b + 2))]
        for qb in range(3):
            q = qfrag(qb, s)
            its += [V(f"v_permlane16_swap_b32 v{q}, v{q+2}"), V(f"v_permlane16_swap_b32 v{q+1}, v{q+3}")]
        lo = sup[8 * s + 7]['first'] + 5
        dl = qk0[2 * s]['first'] - 2 if s else qk0[0]['first'] - 2
        chain(its, lo, min(lo + 26, dl), 0)
        for x in its: x.hi = dl; x.dense = True; x.target = lo
        if cprev: its[0].after.append((cprev, 0))
        cprev = its[-1]; st.add(its)
    q0 = qk0[0]['first']
    kr0 = st.reads(qk0, q0 - 11, q0 + 14, [(wlast, 0)])
    gx = q0 + 20
    barx = st.barrier(gx, ["WAITVM V0", "s_waitcnt lgkmcnt(0)"] + stp('Qend'), after=[(kr0[-1], 1), (prevdma, 1)])
    kr1 = st.reads(qk1, gx + 1, qk1[0]['first'] + 18, [(barx, 0)])
    va = chain([V(f"v_mov_b32 v{vVA+u}, v{vVL+u}") for u in range(4)], q0, q0 + 20); va[0].after.append((wlast, 1)); st.add(va)
    for x in va: x.hi = qk1[6]['first']
    st.reads(pv, kr1[-1].target + 2, n - 12, [(kr1[-1], 0), (va[-1], 1)])
    dm = chain(kv_issue(), qk0[10]['first'], qk0[10]['first'] + 14); dm[0].after.append((barx, 1)); st.add(dm)
    for x in dm: x.hi = n - 8
    lo = qk1[0]['first'] + 3; dl = qk1[6]['first'] - 2
    cols = [[V(t) for t in rowmax_text(0, qb, vR + qb, vR + 4 + qb)] for qb in range(3)]
    rm = [cols[qb][k] for k in range(10) for qb in range(3)]
    rm += [V(f"v_sub_f32 v{vNM+4*qb+r}, 0, v{vR+qb}") for r in range(4) for qb in range(3)]
    chain(rm, lo, dl, 0); st.add(rm)
    for x in rm: x.dense = True; x.target = lo
    st.add(softmax_items(0, 0, 12, lo + 10, rs['first'] - 2, pre=rm[32]))
    st.add(softmax_items(1, 0, SPLIT, pv[0]['first'] + 1, n - 1, pre=rm[-1]))
    up = wrap0(sRD, 4 * SLOT, 12 * SLOT) + [V(f"v_add_u32 v{vKA+u}, s{sRD}, v{vKL+u}") for u in range(2)]
    up[0].after += [(kr1[-1], 1), (dm[-1], 1)]
    st.add(chain(up, pv[0]['first'], n - 2))
    p.cur += st.emit(3 * T, name="front")
    return [dict(mf=u['mf']) for u in pv[12 - T:]]

def o_store(s):
    return [S(f"s_add_u32 s{sXOFF}, s{sKOFF}, {s*12288}")] + [
        Item('M', f"buffer_store_dwordx4 {bfrag(s,qb)}, v{vOL}, {sr(sWS)}, s{sXOFF} offen offset:{1024*qb} sc1", tag=f"OST{s>>1}") for qb in range(3)]
def o_conv(s, qb):
    t = 32 + 8 * ((s * 3 + qb) % 3); d = vQ + (s * 3 + qb) * 4
    its = [V(f"v_accvgpr_read_b32 v{t+4*h+r}, a{oacc(2*s+h,qb)+r}") for h in range(2) for r in range(4)]
    its += [V(f"v_mul_f32 v{t+r}, v{t+r}, v{vRCS[qb]}") for r in range(8)]
    its += [V(f"v_cvt_pk_bf16_f32 v{d+r}, v{t+2*r}, v{t+2*r+1}") for r in range(4)]
    return its

def check_items(cur, lo, hi):
    mx = V(f"v_max3_f32 v{vCK}, v{vL[cur]}, v{vL[cur]+4}, v{vL[cur]+8}", lo=min(lo, hi), hi=hi)
    return [mx, V(f"v_cmp_nge_f32 vcc, s{sLTHR}, v{vCK}", after=[(mx, 0)], hi=hi)]
def rare_head(p, cur):
    ret = p.newlabel("L_ret"); tr = p.newlabel("L_tramp")
    TRAMPS.append((tr, ret, cur))
    return L(f"s_cbranch_vccnz {tr}\n{ret}:")
def attention(p, pool, tail):
    def step(t_par, tail, mode, vm, extra=(), endi=(), final=False):
        cur, nxt = t_par, t_par ^ 1
        imm = 0 if t_par else 2 * SLOT
        st = Stream(tail)
        qk = qk_units(pool, nxt, imm)
        pv = pv_units(pool, cur, imm)
        rs = rs_unit(cur)
        pv[0]['head'] = rare_head(p, cur)
        for u in qk[:9] + [rs] + qk[9:] + pv: st.add_unit(u)
        n = st.n() - 3 * T
        bar = st.barrier(0, [f"s_waitcnt vmcnt({vm}) lgkmcnt(0)"])
        kr = st.reads(qk, 1, 33 if not final else 28, [(bar, 0)])
        aft = [(bar, 0), (kr[-1], 0)]
        if t_par:
            va = chain([V(f"v_add_u32 v{vVA+u}, s{sRD}, v{vVL+u}") for u in range(4)], 0, 20)
            st.add(va); aft.append((va[-1], 1))
        vrd = st.reads(pv, kr[-1].target + 2, n - (12 if not final else 20), aft)
        if final:
            up = wrap0(sRD, 4 * SLOT, 12 * SLOT) + [V(f"v_add_u32 v{vVA+u}, s{sRD}, v{vVL+u}") for u in range(4)]
            up[2].after.append((vrd[-1], 1))
            st.add(chain(up, n - 24, n - 1))
        elif not t_par:
            up = wrap0(sRD, 4 * SLOT, 12 * SLOT) + [V(f"v_add_u32 v{vKA+u}, s{sRD}, v{vKL+u}") for u in range(2)]
            up[0].after += [(kr[-1], 1)]
            st.add(chain(up, rs['first'], n - 4))
        dm = []
        if mode == 'A':
            dm = chain(kv_issue(), 2, DMAHI) if not WIN else spread_kv(kv_issue(), 2, WHI)
            for x in dm: x.hi = n - (8 if not WIN else 4)
        if extra:
            fx = [x for x in extra if getattr(x, 'fixed', False)]; fr = [x for x in extra if not getattr(x, 'fixed', False)]
            if fr:
                chain(fr, DMAHI + 2 if fx else 2, 68 if fx else (56 if not final else 30))
                if fx: fr[0].after.append((fx[-1], 1))
            dm = fx + fr
            for x in dm: x.hi = n - 1
        if dm: dm[0].after.append((bar, 1))
        st.add(dm)
        st.add(softmax_items(cur, SPLIT, 12, 0, rs['first'] - 2))
        pf = pv[0]['first']
        st.add(check_items(cur, rs['first'] + 6, pf - 1))
        st.add(softmax_items(nxt, 0, SPLIT if not final else SP30, pf + (1 if not final else 0), n - 1))
        if endi: st.add(chain(list(endi), n - 3, n - 1, 0))
        return st.emit(3 * T, name=mode), [dict(mf=u['mf']) for u in pv[12 - T:]]
    txt = lambda tl: [[i.text for i in u['mf']] for u in tl]
    global WIN
    VMA = VMLIM if not WIN else 6 * (D0 - 1)
    tr = []
    if TRACE: tr = L(f"s_memrealtime s[84:85]\ns_waitcnt lgkmcnt(0)\ns_mov_b32 m0, s{sT}\nv_writelane_b32 v174, s84, m0")
    global WHI
    for k, (tend, w, wh) in enumerate(LOOPS or [(27, WIN, WHI)]):
        WIN = w; WHI = wh
        lp = f"L_attA{k}"
        b1, tail1 = step(1, tail, 'A', VMA)
        b2, tail2 = step(0, tail1, 'A', VMA, endi=[S(f"s_add_u32 s{sT}, s{sT}, 2"), S(f"s_cmp_lt_u32 s{sT}, {tend}")])
        assert txt(tail2) == txt(tail) and VMLIM <= 6 * (D0 - 1) and tend % 2 == 1
        p.loop(L(f"{lp}:") + [I(x.text) for x in tr] + b1 + b2 + L(f"s_cbranch_scc1 {lp}"))
    assert tend == 27
    if TRACE:
        p(f"s_add_u32 s96, s90, {STAMP_OFF + 65536}\ns_addc_u32 s97, s91, 0"); srd(p, 84, 96, 1 << 20)
        p(f"s_lshl_b32 s{sTMP}, s2, 2\ns_add_u32 s{sTMP}, s{sTMP}, s{sWAVE}\ns_lshl_b32 s{sTMP}, s{sTMP}, 9\nv_lshlrev_b32 v{vT0}, 3, v0")
        p(f"buffer_store_dwordx2 v[174:175], v{vT0}, s[84:87], s{sTMP} offen")
    p.cur += stp('Lend')
    p("L_att27:")
    cnt = lambda its: sum(1 for x in its if x.kind == 'M')
    log = [pr for pr in range(27, 27 + D0) for _ in range(6)]
    nxt = 27 + D0
    tl = tail
    for t in range(27, 31):
        vm = len(log) - 1 - max(k for k, x in enumerate(log) if x == t)
        lastkv = max(k for k, x in enumerate(log) if x >= 0)
        if not WIN and 'kv' in PLAN[t]: vm = min(vm, VMLIM + len(log) - 1 - lastkv)
        ex = []
        for a in PLAN[t]:
            if a == 'kv': its = kv_issue(nok=(nxt == 31)); log += [nxt] * cnt(its); nxt += 1
            else:
                if a == 'r': its = [V(f"v_accvgpr_read_b32 v{r}, a{aPARK+k}") for k, r in enumerate(PARK)]
                elif a == 'p': its = pf_wo(vPWO)
                elif a == 'l': its = [Item('M', f"buffer_load_dword v{vDUM}, v{vF1}, {sr(sWS)}, 0 offen offset:128 sc1", tag="dummy")]
                else:
                    assert t >= {0: 28, 1: 28, 2: 29, 3: 29, 4: 30, 5: 31, 6: 31}[a]
                    its = dma_wo(a)
                log += [-1] * cnt(its)
            if a == 'kv':
                if WIN: spread_kv(its, 2, 62 if len(PLAN[t]) == 1 or cnt(its) == 3 else 40)
                else: chain(its, 2, DMAHI)
                for x in its: x.fixed = True
            ex += its
        ins, tl = step(t & 1, tl, 'P', min(vm, 63), ex, final=(t == 30)); p.cur += ins
    assert nxt == 32
    return tl, len(log) - 1 - max(k for k, x in enumerate(log) if x == 31)

def set_flag(vfl, sidx, off=0, local=False, vt=None):
    vt = vt or vTK
    st = f"buffer_store_dwordx2 v[{vt}:{vt+1}], v{vfl}, {sr(sWS)}, 0 offen offset:"
    return L(f"s_lshl_b64 exec, 1, s{sidx}\n" + (f"{st}{off+128}\n" if local else "") + f"{st}{off} sc1\ns_mov_b64 exec, -1")
def spin(name, voff, tk, off):
    one = lambda o: f"""buffer_load_dwordx2 v[{vFLV}:{vFLV+1}], v{voff}, {sr(sWS)}, 0 offen offset:{o} sc1
s_waitcnt vmcnt(0)
v_cmp_ne_u64 vcc, s[{tk}:{tk+1}], v[{vFLV}:{vFLV+1}]
s_cbranch_vccz L_spinr{name}
"""
    OUTL.append(f"""L_spin{name}:
s_mov_b32 s{sTMP}, 0x10000
L_poll{name}:
""" + (one(off + 128) * NLOC if LOCAL else "") + one(off) + f"""s_sub_u32 s{sTMP}, s{sTMP}, 1
s_cmp_lg_u32 s{sTMP}, 0
s_cbranch_scc1 L_poll{name}
s_branch L_spinr{name}
""")
def bump_epoch(p, voff, tk, sidx, off):
    ne = p.newlabel("L_ne")
    p(f"s_cmp_lg_u32 s{sidx}, 0\ns_cbranch_scc1 {ne}\nv_mov_b32 v{vFLV}, s{tk}\nv_mov_b32 v{vFLV+1}, s{tk+1}\ns_mov_b64 exec, 1")
    p.flush()
    p.raw(f"buffer_store_dwordx2 v[{vFLV}:{vFLV+1}], v{voff}, {sr(sWS)}, 0 offen offset:{off} sc1")
    p(f"s_mov_b64 exec, -1\ns_nop 1\n{ne}:")
def load_g(G):
    i, c = gic(G)
    g = [S(f"s_add_u32 s{sXOFF}, s{sHI+i}, {c}"), S(f"s_mul_i32 s{sXOFF}, s{sXOFF}, 24576")]
    for ks in range(2):
        if ks: g.append(S(f"s_add_u32 s{sXOFF}, s{sXOFF}, 12288"))
        g += [Item('M', f"buffer_load_dwordx4 {bfrag(2*G+ks,qb)}, v{vOL}, {sr(sWS)}, s{sXOFF} offen offset:{1024*qb} sc1") for qb in range(3)]
    return g

def oproj(p, pool, tail, vm31):
    NEXTG = max(a for v in PLAN.values() for a in v if isinstance(a, int)) + 1
    st = Stream(tail[:2])
    rs = rs_unit(1); st.add_unit(rs)
    for u in tail[2:]: st.add_unit(u)
    apv = pv_units(pool, 1, 0)
    apv[0]['head'] = rare_head(p, 1)
    for u in apv: st.add_unit(u)
    Z = st.n()
    def unit(G, ks, nb, va, imm):
        u = 2 * G + ks; pb = pool.next(); a = va + (nb & 1)
        rd = [f"ds_read_b64_tr_b16 {ar(pb,2)}, v{a} offset:{imm+ks*10240+nb*32}", f"ds_read_b64_tr_b16 {ar(pb+2,2)}, v{a} offset:{imm+ks*10240+nb*32+5120}"]
        mf = [I(f"{MF} {vr(cacc(nb,qb))}, {ar(pb)}, {bfrag(u,qb)}, {vr(cacc(nb,qb)) if u else 0}") for qb in range(3)]
        return dict(reads=rd, mf=snake(mf, pool.n))
    def seta(va, off): return [V(f"v_add_u32 v{va+k}, {off}, v{vWOL+k}") for k in range(2)]
    NG = 6
    def un2(G, ks, nb): return unit(G, ks, nb, vWA[2 + (G - NG) // 3], ((G - NG) % 3) * GSZ)
    assert all(goff(G + 1) == goff(G) + GSZ for G in range(NG, 11))
    U = [[unit(G, ks, nb, vWA[G & 1], 0) for ks in range(2) for nb in range(10)] for G in range(NG)]
    NL = 12 - NBA
    A = [[un2(G, ks, nb) for ks in range(2) for nb in range(6 if G >= GS else 10)] for G in range(6, NL)]
    F = [[un2(G, ks, nb) for G in range(NL if nb < 6 else GS, 12) for ks in range(2)] for nb in range(10)]
    tiles = U + A + [[u for nb in range(10) for u in F[nb]]]
    if ST: U[0][0]['head'] = stp('Aend')
    for tl in tiles:
        for u in tl: st.add_unit(u)
    bar0 = st.barrier(0, ["WAITVM G0", f"s_waitcnt vmcnt({vm31}) lgkmcnt(0)"])
    pf = apv[0]['first']
    vrd = st.reads(apv, 1, pf + 14, [(bar0, 0)])
    st.add(softmax_items(1, SP30, 12, 0, rs['first'] - 1))
    st.add(check_items(1, rs['first'] + 5, pf - 1))
    sa0 = chain(seta(vWA[0], goff(0)) + [V(f"v_mov_b32 v{vTK}, s{sTK1}"), V(f"v_mov_b32 v{vTK+1}, s{sTK1+1}")], rs['first'], pf - 1); st.add(sa0)
    for x in sa0: x.hi = pf + 12
    rc = chain([S(f"s_mul_i32 s{sKOFF}, s{sHL}, 73728"), S(f"s_mul_i32 s{sT}, s{sHG}, 15360")] + [Item('E', f"v_rcp_f32 v{vRCS[qb]}, v{vL[1]+4*qb}") for qb in range(3)], pf, pf + 6)
    for x in rc: x.hi = pf + 10
    st.add(rc)
    mem = []
    def addmem(its, lo, hi, after=None):
        chain(its, lo, hi)
        for x in its: x.hi = 10 ** 9
        if after: its[0].after.append(after)
        if mem: its[0].after.append((mem[-1], 1))
        mem.extend(its); st.add(its)
    wit = {}
    for k, G in enumerate(PRE31):
        addmem(dma_wo(G), 4 + 10 * k, 12 + 10 * k, (bar0, 1)); wit[G] = mem[-1]
        for x in mem: x.hi = pf + 9
    prev = rc[-1]; conv = {}
    for sx in range(6):
        stv = o_store(sx)
        for qb in range(3):
            its = o_conv(sx, qb)
            lo = min(apv[2 * sx + 1]['first'] + 6, Z + 2)
            if sx < NEO:
                k = sx * 3 + qb; a = apv[1]['first'] + 6
                dl = max(lo, a + (Z - 3 - a) * (k + 1) // (3 * NEO))
            else: dl = Z + 30 * sx - 3
            chain(its, lo, dl, 0)
            for x in its: x.dense = True; x.target = lo
            its[0].after.append((prev, 1 if prev.kind != 'V' else 0)); prev = its[-1]; st.add(its)
            conv[sx, qb] = its[-1]
            if sx < NEO:
                o = ([stv[0]] if qb == 0 else []) + [stv[1 + qb]]
                o[-1].after.append((its[-1], 1)); addmem(o, lo, dl + 1)
                for x in o: x.hi = dl + 1
                o[-1].target = dl + 1
    st.add(chain(seta(vWA[2], goff(6)) + seta(vWA[3], goff(9)) + [V(f"v_mov_b32 v{vTK2}, s{sTK2}"), V(f"v_mov_b32 v{vTK2+1}, s{sTK2+1}")], Z + 200, Z + 300))
    bars = {0: bar0}
    for k, tl in enumerate(tiles):
        g0 = tl[0]['first'] - 3 * T
        last = tiles[k + 1][0]['first'] - 3 * T - (RGAP if k < 4 else 0) if k + 1 < len(tiles) else st.n() - 14
        if k == 0: rdl = st.reads(U[0], g0 + 1, last, [(vrd[-1], 0), (sa0[1], 1)])
        else:
            bars[k] = st.barrier(g0, [f"WAITVM G{k if k < NL else 11}"] + (["s_waitcnt lgkmcnt(0)"] if k <= 4 else ["s_nop 0"]) + stp(f"G{k}"))
            rdl = st.reads(tl, g0 + 1, last, [(bars[k], 0), (rdl[-1], 0)])
        if k + 1 < NG: st.add(chain(seta(vWA[(k + 1) & 1], goff(k + 1)), g0 + 20, g0 + 50))
    pv = {0: 2, 1: 4, 2: 8}
    for pos, act in OCH:
        k, n = act[0], int(act[1:]); pos += Z
        if k == 'W':
            if n >= NEXTG and n not in wit:
                addmem(dma_wo(n), pos, pos + SPW, (bars[0 if n < 7 else max(n - 7, 1)], 1)); wit[n] = mem[-1]
        elif k == 'F': addmem([Item('M', [I(f"WAITVM OST{n}")] + stp(f"F{n}") + set_flag(vF1, sHL, 32 * n, LOCAL))], pos, pos)
        elif k == 'P': addmem([Item('M', f"buffer_load_dwordx2 v[{pv[n]}:{pv[n]+1}], v{vF1}, {sr(sWS)}, 0 offen offset:{32*n + (128 if LOCAL else 0)} sc1")], pos, pos)
        elif k == 'C':
            addmem([V(f"v_cmp_ne_u64 vcc, s[{sTK1}:{sTK1+1}], v[{pv[n]}:{pv[n]+1}]")], pos, pos)
            addmem([Item('S', stp(f"C{n}a") + L(f"s_cbranch_vccnz L_spin{n}\nL_spinr{n}:") + stp(f"C{n}b"))], pos + 3, pos + 3)
            spin(n, vF1, sTK1, 32 * n)
        elif k == 'B': addmem([x for G in range(3 + 3 * n, 6 + 3 * n) for x in load_g(G)], pos, pos + 40)
        elif k == 'b': addmem(load_g(n), pos, pos + SPW, (conv[5, 2], 1) if n >= 6 else (conv[0, 2], 1))
        elif k == 'S':
            assert n >= NEO
            o = o_store(n)
            for qb in range(3): o[1 + qb].after.append((conv[n, qb], 1))
            addmem(o, pos, pos + 6)
    def gran(m, qb, k):
        t = vQ + 12 * (k % 4); j = m * 3 + qb
        its = [V(f"v_cvt_pk_bf16_f32 v{t+8+r}, v{cacc(2*m+(r>>1),qb)+2*(r&1)}, v{cacc(2*m+(r>>1),qb)+2*(r&1)+1}") for r in range(4)]
        if j % 4 == 0: its.append(S(f"s_add_u32 s{sTMP+1}, s{sT}, {j*1024}"))
        so = sTMP + 1
        if OWN:
            so = sTMP + 3
            its.append(S(f"s_cmp_eq_u32 s{sHG}, {j&7}\ns_cselect_b32 s{so}, {OOB}, s{sTMP+1}\ns_cbranch_scc1 L_own{j}\nL_ownr{j}:"))
            OUTL.append(f"L_own{j}:\n" + "".join(f"v_mov_b32 v{40+8*(j>>3)+4*h+r}, v{cacc(2*m+h,qb)+r}\n" for h in range(2) for r in range(4)) + f"s_branch L_ownr{j}\n")
        its.append(Item('M', f"buffer_store_dwordx4 {vr(t+8)}, v{vPT}, {sr(sWS)}, s{so} offen offset:{(j%4)*1024} sc1", tag="PA" if m < 3 else "PB"))
        return its
    k = 0
    for m in range(4):
        its = []
        for qb in range(3): its += gran(m, qb, k); k += 1
        lo = F[2 * m + 2][0]['first'] + 4
        fa = [Item('M', [I("WAITVM PA")] + stp('FA') + set_flag(vF2, sHG, 0, vt=vTK2))]
        fp = min(F[6][0]['first'] + FAPOS, st.n() - 1)
        if m == 3 and fp <= lo: addmem(fa, fp, fp)
        addmem(its, lo, lo + 14)
        if m == 3 and fp > lo: addmem(fa, fp, fp)
    p.cur += st.emit(name="oproj")
    for it in mem:
        if it.kind == 'M' and it.ins[0].op == 'buffer_load_dwordx4' and it.ins[0].dst:
            d = set(it.ins[0].dst)
            assert it.gap < min(g for g, (h, m) in enumerate(st.mf) if g >= Z and d & set(m.srcAB)), it.ins[0].text
    for n, it in wit.items(): assert it.gap < bars[min(n, NL)].gap - 1, n
    assert set(wit) | set(range(NEXTG)) == set(range(12))
    p.cur += stp('E')
    for qb in range(3): flat(p, gran(4, qb, k)); k += 1

def final_reduce(p):
    sDONE, sNEW, sO2, sOWNB, sOOB = sKK, sWR, sRD, sWOFF, sXOFF
    ld = f"buffer_load_dwordx2 v[{vFLV}:{vFLV+1}], v{vF2}, {sr(sWS)}, 0 offen sc1"
    p(f"""
{ld}
s_lshl_b32 s{sTMP}, s{sHG}, 10
v_add_u32 v2, s{sTMP}, v{vPT}
s_cmp_eq_u32 s{sHG}, 7
s_cselect_b32 s{sO2}, {OOB}, 0
s_cselect_b32 s{sDONE}, 0xff00, 0
s_mov_b32 s{sT}, 0xffff0000
s_lshl_b32 s{sOWNB}, 0x101, s{sHG}
s_mov_b32 s{sOOB}, {OOB}
s_mov_b32 s{sTMP}, 0x20000
WAITVM PB
""")
    p.cur += set_flag(vF2, sHG, 64, vt=vTK2); p.cur += stp('ACK')
    p("s_waitcnt vmcnt(1)\ns_branch L_fin2")
    p.flush()
    t = f"""L_fin:
{ld}
s_waitcnt vmcnt(0)
L_fin2:
v_cmp_eq_u64 vcc, s[{sTK2}:{sTK2+1}], v[{vFLV}:{vFLV+1}]
s_nop 4
s_and_b32 s{sNEW}, vcc_lo, 0xffff
{"s_or_b32 s%d, s%d, s%d" % (sNEW, sNEW, sOWNB) if OWN else ""}
s_andn2_b32 s{sNEW}, s{sNEW}, s{sDONE}
s_or_b32 s{sDONE}, s{sDONE}, s{sNEW}
"""
    for g in range(16):
        t += f"""s_bitcmp0_b32 s{sNEW}, {g}
s_cbranch_scc1 L_fs{g}
s_cmp_eq_u32 s{sHG}, {g%8 if OWN else 99}
s_cselect_b32 s{sTMP+1}, s{sOOB}, {(g%8)*15360 + (g//8)*8192}
buffer_load_dwordx4 {vr(56+g*4)}, v2, {sr(sWS)}, s{sTMP+1} offen sc1
L_fs{g}:
"""
    t += f"""s_cmp_eq_u32 s{sDONE}, 0xffff
s_cbranch_scc1 L_find
s_sub_u32 s{sTMP}, s{sTMP}, 1
s_cmp_lg_u32 s{sTMP}, 0
s_cbranch_scc1 L_fin
L_find:"""
    p.raw(t)
    p.cur += stp('P2')
    for i in range(2):
        p(f"""
s_add_u32 s{sTMP}, s{sHG}, {8*i}
s_mul_i32 s{sTMP+1}, s{sTMP}, 11
s_lshr_b32 s{sTMP+1}, s{sTMP+1}, 5
s_mul_i32 s{sTMP+3}, s{sTMP+1}, 3
s_sub_u32 s{sTMP+3}, s{sTMP}, s{sTMP+3}
s_mul_i32 s{sTMP+3}, s{sTMP+3}, {16*1280}
s_lshl_b32 s{sTMP+1}, s{sTMP+1}, 6
s_add_u32 s{sTMP+4+i}, s{sTMP+1}, s{sTMP+3}
""")
    p(f"s_add_u32 s{sTMP+5}, s{sTMP+5}, s{sO2}\ns_and_b32 s{sNEW}, s{sNEW}, 0xff\ns_cbranch_scc0 L_fa\ns_waitcnt vmcnt(0)\nL_fa:")
    for i in range(2):
        acc = 40 + i * 8
        if i: p("s_waitcnt vmcnt(1)")
        for g in range(8):
            b = 56 + (i * 8 + g) * 4
            for r in range(4):
                d = acc if g == 0 and not OWN else 120
                p(f"v_lshlrev_b32 v{d+2*r}, 16, v{b+r}\nv_and_b32 v{d+1+2*r}, s{sT}, v{b+r}")
            if g or OWN:
                for r in range(8): p(f"v_add_f32 v{acc+r}, v{acc+r}, v{120+r}")
        o = 132 + 4 * i
        for r in range(4): p(f"v_cvt_pk_bf16_f32 v{o+r}, v{acc+2*r}, v{acc+2*r+1}")
        p(f"v_permlane16_swap_b32 v{o}, v{o+2}\nv_permlane16_swap_b32 v{o+1}, v{o+3}")
        p(f"buffer_store_dwordx4 {vr(o)}, v{vOUT}, {sr(sOUT)}, s{sTMP+4+i} offen")
    bump_epoch(p, vF1, sTK1, sHL, 96)
    bump_epoch(p, vF2, sTK2, sHG, 128)

def store_stamps(p):
    if not ST: return
    p("s_waitcnt vmcnt(0)"); p.cur += stp('end')
    lab = p.newlabel("L_nost")
    if AMP:
        a, b = sSTAMP + 2 * ST[AMP[0]], sSTAMP + 2 * ST[AMP[1]]; e = sSTAMP + 2 * ST['end']
        p(f"""s_waitcnt lgkmcnt(0)
s_cmp_lg_u32 s2, 100
s_cbranch_scc1 {lab}
s_sub_u32 s{sTMP}, s{b}, s{a}
s_lshl_b32 s{sTMP}, s{sTMP}, 3
s_min_u32 s{sTMP}, s{sTMP}, 100000
L_amp:
s_memrealtime s[96:97]
s_waitcnt lgkmcnt(0)
s_sub_u32 s{sTMP+1}, s96, s{e}
s_cmp_lt_u32 s{sTMP+1}, s{sTMP}
s_cbranch_scc1 L_amp
{lab}:""")
        return
    if DBGST is not None:
        p("s_load_dwordx2 s[96:97], s[0:1], 48\ns_waitcnt lgkmcnt(0)"); srd(p, sK, 96, 256)
        p(f"s_cmp_lg_u32 s{sWAVE}, 0\ns_cbranch_scc1 {lab}\ns_cmp_lg_u32 s2, {DBGST}\ns_cbranch_scc1 {lab}")
        p("s_mov_b64 exec, 1\nv_mov_b32 v2, 0")
        for i in range(NSTAMP):
            p(f"s_sub_u32 s{sTMP}, s{sSTAMP+2*i}, s{sSTAMP}\nv_mov_b32 v4, s{sTMP}\nbuffer_store_dword v4, v2, {sr(sK)}, 0 offen offset:{4*i}\ns_nop 1")
        p(f"s_waitcnt vmcnt(0)\n{lab}:")
        return
    p(f"s_add_u32 s96, s90, {STAMP_OFF}\ns_addc_u32 s97, s91, 0"); srd(p, sK, 96, 65536)
    p("s_waitcnt lgkmcnt(0)")
    p(f"s_cmp_lg_u32 s{sWAVE}, 0\ns_cbranch_scc1 {lab}")
    p(f"s_lshl_b32 s{sTMP}, s2, 7\nv_mov_b32 v2, s{sTMP}\ns_mov_b64 exec, 1")
    for i, r in enumerate([sSTAMP + 2 * i for i in range(NSTAMP)] + list(CST.values())):
        p(f"v_mov_b32 v4, s{r}\nv_mov_b32 v5, s{r+1}\nbuffer_store_dwordx2 v[4:5], v2, {sr(sK)}, 0 offen offset:{8*i}\ns_nop 1")
    p(f"s_waitcnt vmcnt(0)\n{lab}:")

def kernel(p):
    name = NAME + "_kernel"
    p.raw(f".globl {name}\n.p2align 8\n.type {name},@function\n{name}:")
    p("s_cmp_ge_u32 s2, 256\ns_cbranch_scc1 L_end")
    p.cur += stp('start')
    p(f"""
s_load_dwordx8 s[76:83], s[0:1], 0
s_load_dwordx8 s[84:91], s[0:1], 32
v_lshrrev_b32 v1, 6, v0
v_and_b32 v0, 63, v0
v_readfirstlane_b32 s{sWAVE}, v1
""")
    if CODEPF:
        p(f"""
s_getpc_b64 s[98:99]
s_lshr_b32 s{sTMP+1}, s2, 3
s_mul_i32 s{sTMP+1}, s{sTMP+1}, {13*128}
v_mul_u32_u24 v252, 3, v1
v_add_lshl_u32 v252, v252, v0, 7
v_add_u32 v252, s{sTMP+1}, v252
v_mov_b32 v253, s99
v_add_co_u32 v252, vcc, s98, v252
v_addc_co_u32 v253, vcc, 0, v253, vcc
s_mov_b64 exec, 15
global_load_dword v{vDUM}, v[252:253], off
s_mov_b64 exec, -1
""", "dummy")
    tab = sum((((k % PH) * 10 + PH // 2) // PH) << (4 * k) for k in range(11))
    p(f"""
s_and_b32 s{sHG}, s2, 7
s_lshr_b32 s{sB}, s2, 5
s_bfe_u32 s{sHL}, s2, 0x20003
s_mul_i32 s{sM0W}, s{sWAVE}, 3072
s_add_u32 s{sTMP+1}, s{sB}, s{sHL}
s_lshl_b32 s{sTMP+1}, s{sTMP+1}, 2
s_mov_b32 s96, {tab & 0xffffffff}
s_mov_b32 s97, {tab >> 32}
s_lshr_b64 s[96:97], s[96:97], s{sTMP+1}
s_and_b32 s{sTMP+1}, s96, 15
s_lshl_b32 s{sXOFF}, s{sTMP+1}, 7
s_mul_i32 s{sWOFF}, s{sTMP+1}, {64*12288}
""")
    if KSTAG: p(f"s_mul_i32 s{sKK}, s2, 11\ns_add_u32 s{sKK}, s{sKK}, s{sB}\ns_and_b32 s{sKK}, s{sKK}, 31\ns_mul_i32 s{sKK}, s{sKK}, {SLOT}")
    else: p(f"s_mov_b32 s{sKK}, 0")
    p(f"s_mov_b32 s{sKOFF}, s{sKK}")
    setup_first(p)
    if not XFIRST:
        p.cur += stp('s0')
        srd(p, sX, 76, 1536 * 1280); p.cur += stp('s1')
    srd(p, sWq, 82, 640 * 12288)
    pool = Pool(12)
    tail = front(p, pool)
    if not QONLY:
        tail, vm31 = attention(p, pool, tail)
        oproj(p, pool, tail, vm31)
        final_reduce(p)
    store_stamps(p)
    p("L_end:\ns_endpgm")
    for t in OUTL: p.raw(t)
    for tr, ret, cur in TRAMPS: p.raw(f"{tr}:\ns_call_b64 s[98:99], L_rare{cur}\ns_branch {ret}")
    rare_path(p, "L_rare0", 0)
    rare_path(p, "L_rare1", 1)
    p.raw(".fill 64, 4, 0xbf800000" if not QONLY else ".fill 12288, 4, 0xbf800000")
    return kernel_desc(name, vgpr=512, accum=256)

def build(path):
    p = Prog()
    p.raw("""; GQA block (q-proj, attention over cached K/V, out-proj) for gfx950: one fused kernel
; @launch grid=(256,1,1) block=(256,1,1) lds=163840
.amdgcn_target "amdgcn-amd-amdhsa--gfx950"
.text""")
    d = kernel(p)
    p.raw('.section .rodata,"a"\n.p2align 6\n' + d)
    txt = p.text()
    if NODMA:
        txt = "\n".join(l for l in txt.split("\n") if not (l.startswith("buffer_load_dwordx4")))
        txt = txt.replace("s_cbranch_vccnz L_tramp", "s_cbranch_execz L_tramp")
    if ST: txt = txt.replace(".amdgcn_target", "; stamps " + repr(ST) + "\n.amdgcn_target", 1)
    open(path, "w").write(txt)
    if VERB:
        import collections
        print(collections.Counter(w.split(':')[0] for w in WARN))
        if VERB > 1:
            for w in WARN: print("WARN", w)
        ls = txt.split("\n")
        marks = [k for k, l in enumerate(ls) if l.endswith(":") and not l.startswith("L_ret")]
        for a, b in zip(marks, marks[1:] + [len(ls)]):
            seg = [l for l in ls[a:b] if l and not l.startswith(".") and not l.startswith(" ")]
            c, nm = estimate(seg)
            if nm: print(f"{ls[a][:28]:28s} est {c:6d} cyc, mfma {nm:4d} ({16*nm})")

STD = {'start': 0, 'X0': 1, 'u8': 2, 'u16': 3, 'E': 4, 'Qend': 5, 'Lend': 6, 'Aend': 7, 'C0b': 8, 'G6': 9, 'ACK': 10, 'end': 11}
if __name__ == "__main__":
    for a in sys.argv[2:]:
        k, v = a.split("=", 1)
        globals()[k] = eval(v)
    build(sys.argv[1])
```

```python
import sys, math, struct
from sched import *
from asmlib import kernel_desc

NAME = "standalone__gqa_block_cached__near_ridge"
SLOT = 12288
GSZ = 20480
NT = "nt"
CODEPF = True
PH = 3
VMLIM = 2
DMAHI = 22
SNAKE = True
KSTAG = True
NDB = 4
NBM = 3
NST = 4
NEO = 2
SCHED = 10
KVSPAN = 150
PLAN = {27: ['kv', 'r', 'l'], 28: ['kv', 0, 1], 29: [2, 3], 30: [4]}
OCH = [(0,'W6'),(50,'S2'),(62,'F0'),(76,'S3'),(90,'W7'),(114,'P0'),(132,'C0'),(136,'b3'),(160,'F1'),(164,'b4'),(188,'S4'),(196,'S5'),(210,'b5'),(234,'P1'),(236,'W8'),(258,'C1'),
       (262,'b6'),(284,'F2'),(288,'b7'),(310,'W9'),(332,'P2'),(334,'b8'),(356,'C2'),(360,'b9'),(382,'W10'),(404,'b10'),(426,'W11'),(448,'b11')]
LATESET = True
TRI = False
ROT = True
LATEHI = 432
COMMON = 0
WHI = 62
LOOPS = [(9, (5,), 62), (27, (5, 5, 4), 62)]
SPW = 20
OWN = 1
WIN = (5,)
PRE31 = (5,)
SP30 = 9
XPF = 0
XFIRST = True
AMP = None
RAMP = ()
D0 = 3
PWQ = None
VMTAIL = None
LOCAL = True
NLOC = 4
NBA = 2
FAPOS = 74
GS = 6
PART_OFF = 20 << 20
FLAG_OFF = 40 << 20
WS_SIZE = 41 << 20
STAMP_OFF = 64 << 20
ST = {}
NSTAMP = 12
DBGST = None
TRACE = 0
NODMA = 0
QONLY = 0
VERB = 0
OOB = 0x7f000000

def f32(x): return "0x%08x" % struct.unpack("<I", struct.pack("<f", x))[0]
def vr(b, n=4): return f"v[{b}:{b+n-1}]"
def ar(b, n=4): return f"a[{b}:{b+n-1}]"
def sr(b, n=4): return f"s[{b}:{b+n-1}]"
MF = "v_mfma_f32_16x16x32_bf16"
def srd(p, d, lo, nbytes):
    p(f"s_mov_b32 s{d}, s{lo}\ns_and_b32 s{d+1}, s{lo+1}, 0xffff\ns_mov_b32 s{d+2}, {nbytes}\ns_mov_b32 s{d+3}, 0x00020000")

sLTHR = 3
sK, sV, sWq, sX, sWS, sWo, sOUT = 4, 8, 12, 16, 20, 24, 28
sWAVE, sB, sSC, sHG, sHL = 32, 33, 34, 35, 36
sM0W, sKOFF, sWR, sRD, sT, sKK = 37, 38, 39, 40, 41, 42
sWOFF, sXOFF, sWW = 43, 44, 45
sTMP = 46
sSTAMP = 52
sHI = 76
sTK1, sTK2 = 92, 94
sJ = 33
TOKC = (0x9e3779b9, 0x7f4a7c15)
F2BASE = 256 * 256
CST = {'Qend': 80, 'Lend': 82, 'C0b': 88, 'ACK': 100}
def stp(name):
    r = []
    if name in ST: r.append(I(f"s_memrealtime s[{sSTAMP+2*ST[name]}:{sSTAMP+2*ST[name]+1}]"))
    if ST and name in CST: r.append(I(f"s_memtime s[{CST[name]}:{CST[name]+1}]"))
    return r

vKD, vVD, vWD = 2, 5, 8
vXD = 11
vWOD, vPWO = 11, 16
vKL, vVL = 17, 19
vKA, vVA = 23, 25
vXR = 29
vOL, vPT = 30, 31
vT0 = 31
vDUM = 248
vF1, vF2 = 250, 251
vVB = 252
vWOL, vOUT = 252, 254
vACC = 32; vQ = 176
vS = (32, 56); vP = (80, 92); vNM = 104; vE = 120; vCK = 130; vR = 132; vL = (144, 156)
NE = 5
vB = 32; vRC = 136; vTK = 6; vTK2 = 18; vFLV = 28
vWA = (23, 20, 25, 16)
vRCS = (1, 10, 249)
vF2R = 22
vC = 56
aO = 0; aPOOL = 144; aC = 0; aX = 0; NXB = 6; aONE = 240; aPARK = 244
PARK = [vWOD + j for j in range(5)] + [vPWO, vWOL, vWOL + 1, vOL, vPT, vOUT]
def qfrag(qb, s): return vQ + (qb * 6 + s) * 4
def qacc(db, qb): return vACC + (db * 3 + qb) * 4
def oacc(db, qb): return aO + (db * 3 + qb) * 4
def cacc(nb, qb): return vC + (nb * 3 + qb) * 4
def sreg(buf, qb, kb): return vS[buf] + (qb * 2 + kb) * 4
def bfrag(u, qb):
    if u < 6: return vr(vQ + (u * 3 + qb) * 4)
    k = (u - 6) * 3 + qb
    if k < 16: return ar(192 + k * 4)
    k -= 16
    return ar(k * 4) if k < 36 else vr(32 + (k - 36) * 4)

LAYOUT = 2
def xs0(): return 5 if LAYOUT == 0 else 4
def xpair(c): return 5 + 2 * (c % 2) if LAYOUT == 0 else 6 - 2 * (c % 2)
WRING = [9, 10, 11, 1, 12]
def wslot(u):
    if LAYOUT == 0: return WRING[u % 5]
    return [1, 8, 9, 10, 11, 12][u % 6] if u < 14 else u - 8 if u < 16 else u - 7
def kvslot(kind, i): return 2 * (i % 6) if kind == 'K' else 2 * ((i + 1) % 6) + 1
def gic(G): return (0, G) if G < 3 else (1 + (G - 3) % 3, (G - 3) // 3)
def goff(G): return ((G + 4) % 8) * GSZ
TRAMPS = []; OUTL = []

def tile_rows(p, t, j):
    p(f"""
v_add_u32 v{t+2}, {8*j}, v{t}
v_mul_u32_u24 v{t+3}, 11, v{t+2}
v_lshrrev_b32 v{t+3}, 5, v{t+3}
v_mul_u32_u24 v{t+4}, 3, v{t+3}
v_sub_u32 v{t+4}, v{t+2}, v{t+4}
v_add_u32 v{t+3}, s{sTMP}, v{t+3}
v_and_b32 v{t+5}, 6, v{t+3}
v_xor_b32 v{t+5}, v{t+5}, v{t+1}
v_lshlrev_b32 v{t+5}, 4, v{t+5}
""")
def setup_first(p):
    t = 240
    p(f"""
v_lshrrev_b32 v{t}, 3, v0
v_and_b32 v{t+1}, 7, v0
s_lshl_b32 s{sTMP}, s{sWAVE}, 3
s_lshl_b32 s{sTMP+1}, s{sB}, 2
s_add_u32 s{sTMP+1}, s{sTMP+1}, s{sWAVE}
s_mul_i32 s{sTMP+4}, s{sTMP+1}, {48*1280}
s_lshl_b32 s{sTMP+2}, s{sHG}, 2
s_add_u32 s{sTMP+5}, s{sTMP+2}, s{sHL}
s_mul_i32 s{sTMP+2}, s{sTMP+5}, 384
""")
    for half in range(2):
        p(f"""
v_lshrrev_b32 v{t+2}, 1, v{t}
v_add_u32 v{t+2}, {4*half}, v{t+2}
v_xor_b32 v{t+2}, v{t+2}, v{t+1}
v_lshlrev_b32 v{t+2}, 4, v{t+2}
v_add_u32 v{t+3}, {8*half}, v{t}
v_mul_u32_u24 v{t+3}, 1280, v{t+3}
v_add3_u32 v{vXD+half}, v{t+2}, v{t+3}, s{sTMP+4}
v_add_u32 v{vXD+2+half}, {20480-1024}, v{vXD+half}
v_add_u32 v{vXD+4+half}, {2*(20480-1024)}, v{vXD+half}
""")
    if XFIRST:
        p.cur += stp('s0')
        srd(p, sX, 76, 1536 * 1280); p.cur += stp('s1')
        xpf = f"""s_lshl_b32 s96, s2, 2
s_add_u32 s96, s96, s{sWAVE}
s_mul_i32 s96, s96, 1920
v_lshlrev_b32 v{t+2}, 7, v0
s_mov_b64 exec, 0x7fff
buffer_load_dword v{vDUM}, v{t+2}, {sr(sX)}, s96 offen
s_mov_b64 exec, -1"""
        if XPF == 1: p(xpf, "dummy")
        flat(p, issue('X0'))
        if XPF == 2: p(xpf, "dummy")
    for j in range(3):
        tile_rows(p, t, j)
        p(f"""
v_bfe_u32 v{t+6}, v{t+3}, 2, 2
v_lshlrev_b32 v{t+6}, 3, v{t+6}
v_lshrrev_b32 v{t+7}, 4, v{t+3}
v_lshl_add_u32 v{t+6}, v{t+7}, 2, v{t+6}
v_and_b32 v{t+7}, 3, v{t+3}
v_add_u32 v{t+6}, v{t+6}, v{t+7}
v_mul_u32_u24 v{t+6}, 12288, v{t+6}
v_lshl_add_u32 v{t+6}, v{t+4}, 7, v{t+6}
v_add3_u32 v{t+6}, v{t+6}, v{t+5}, s{sTMP+2}
v_subrev_u32 v{vWD+j}, {1024*j}, v{t+6}
""")
def setup_reads(p):
    t = 232
    p(f"""
v_and_b32 v{t}, 15, v0
v_lshrrev_b32 v{t+1}, 4, v0
v_lshrrev_b32 v{t+2}, 1, v{t}
v_xor_b32 v{t+2}, v{t+2}, v{t+1}
v_lshlrev_b32 v{t+5}, 4, v{t+2}
v_and_b32 v{t+3}, 7, v{t}
v_lshl_add_u32 v{t+5}, v{t+3}, 7, v{t+5}
v_lshrrev_b32 v{t+3}, 3, v{t}
v_mul_u32_u24 v{t+3}, 12288, v{t+3}
v_add3_u32 v{t+5}, v{t+5}, v{t+3}, s{sM0W}
v_add_u32 v{vXR}, {xs0()*SLOT}, v{t+5}
v_xor_b32 v{vXR+1}, 64, v{vXR}
v_bfe_u32 v{t+3}, v{t+2}, 1, 1
v_and_b32 v{t+4}, 1, v{t+2}
v_lshl_add_u32 v{t+3}, v{t+4}, 1, v{t+3}
v_and_b32 v{t+4}, 4, v{t+2}
v_or_b32 v{t+3}, v{t+3}, v{t+4}
v_lshlrev_b32 v{t+3}, 4, v{t+3}
v_mul_u32_u24 v{t+4}, 384, v{t}
v_add_u32 v{vKL}, v{t+3}, v{t+4}
v_xor_b32 v{vKL+1}, 64, v{vKL}
v_mov_b32 v{vKA}, v{vKL}
v_mov_b32 v{vKA+1}, v{vKL+1}
v_lshrrev_b32 v{t+2}, 2, v0
v_mul_u32_u24 v{t+3}, 384, v{t+2}
v_bfe_u32 v{t+4}, v{t+2}, 1, 2
v_lshl_add_u32 v{t+3}, v{t+4}, 5, v{t+3}
v_and_b32 v{t+4}, 3, v0
v_lshl_add_u32 v{vVL}, v{t+4}, 3, v{t+3}
v_xor_b32 v{vVL+1}, 32, v{vVL}
v_xor_b32 v{vVL+2}, 64, v{vVL}
v_xor_b32 v{vVL+3}, 96, v{vVL}
""")
def setup_rest(p):
    t = 240
    p(f"""
s_lshl_b32 s{sTMP+1}, s{sB}, 3
s_add_u32 s{sTMP+1}, s{sTMP+1}, s{sHG}
s_lshl_b32 s96, s{sTMP+1}, 2
s_add_u32 s{sTMP+1}, s96, s{sWAVE}
s_lshl_b32 s{sTMP+1}, s{sTMP+1}, 8
s_add_u32 s{sTMP+1}, s{sTMP+1}, {FLAG_OFF}
s_lshl_b32 s{sTMP+2}, s{sB}, 2
s_add_u32 s{sTMP+2}, s{sTMP+2}, s{sHL}
s_lshl_b32 s{sTMP+2}, s{sTMP+2}, 2
s_add_u32 s97, s{sTMP+2}, s{sWAVE}
s_lshl_b32 s{sTMP+2}, s97, 8
s_add_u32 s{sTMP+2}, s{sTMP+2}, {FLAG_OFF + F2BASE}
v_and_b32 v{t+2}, 3, v0
v_lshl_add_u32 v{vF1}, v{t+2}, 3, s{sTMP+1}
v_and_b32 v{t+2}, 15, v0
v_lshl_add_u32 v{vF2}, v{t+2}, 3, s{sTMP+2}
s_add_u32 s{sTMP+1}, s{sTMP+1}, 96
s_add_u32 s{sTMP+2}, s{sTMP+2}, 192
s_mul_i32 s{sJ}, s97, {3 if ROT else 0}
s_add_u32 s{sJ}, s{sJ}, s{sHG}
s_and_b32 s{sJ}, s{sJ}, 7
s_load_dwordx2 s[{sTK1}:{sTK1+1}], s[90:91], s{sTMP+1}
s_load_dwordx2 s[{sTK2}:{sTK2+1}], s[90:91], s{sTMP+2}
s_add_u32 s{sTMP+1}, s96, s{sHL}
s_mul_i32 s{sTMP+1}, s{sTMP+1}, 393216
s_add_u32 s78, s78, s{sTMP+1}
s_addc_u32 s79, s79, 0
s_add_u32 s80, s80, s{sTMP+1}
s_addc_u32 s81, s81, 0
""")
    srd(p, sK, 78, 393216); srd(p, sV, 80, 393216)
    srd(p, sWS, 90, WS_SIZE); srd(p, sWo, 84, 6144 * 1280); srd(p, sOUT, 86, 1536 * 1280)
    for j in range(3):
        tile_rows(p, t, j)
        p(f"""
v_lshl_add_u32 v{t+6}, v{t}, 7, v{t+5}
v_add_u32 v{vVD+j}, s{sM0W}, v{t+6}
v_bfe_u32 v{t+5}, v{t+3}, 2, 1
v_and_b32 v{t+6}, 2, v{t+3}
v_or_b32 v{t+5}, v{t+5}, v{t+6}
v_lshrrev_b32 v{t+6}, 1, v{t+3}
v_and_b32 v{t+6}, 4, v{t+6}
v_or_b32 v{t+5}, v{t+5}, v{t+6}
v_xor_b32 v{t+5}, v{t+5}, v{t+1}
v_lshlrev_b32 v{t+5}, 4, v{t+5}
v_lshl_add_u32 v{t+5}, v{t}, 7, v{t+5}
v_add_u32 v{vKD+j}, s{sM0W}, v{t+5}
""")
    t = 232
    park = lambda r, v: p(f"v_accvgpr_write_b32 a{aPARK + PARK.index(r)}, v{v}")
    u = 224
    p(f"""
s_mul_i32 s{sTMP+1}, s{sHG}, {768*1280}
s_mul_i32 s{sTMP+2}, s{sHL}, 320
s_mul_i32 s{sTMP+3}, s{sWAVE}, {16*1280}
s_add_u32 s{sTMP+3}, s{sTMP+3}, s{sTMP+1}
s_add_u32 s{sTMP+3}, s{sTMP+3}, s{sTMP+2}
""")
    for j in range(5):
        p(f"""
v_add_u32 v{u}, {64*j}, v0
v_mul_u32_u24 v{u+1}, 205, v{u}
v_lshrrev_b32 v{u+1}, 12, v{u+1}
v_mul_u32_u24 v{u+2}, 20, v{u+1}
v_sub_u32 v{u+2}, v{u}, v{u+2}
v_lshrrev_b32 v{u+3}, 1, v{u+1}
v_and_b32 v{u+3}, 2, v{u+3}
v_xor_b32 v{u+2}, v{u+2}, v{u+3}
v_mul_u32_u24 v{u+1}, 1280, v{u+1}
v_lshl_add_u32 v{u+1}, v{u+2}, 4, v{u+1}
v_add_u32 v{u+1}, s{sTMP+3}, v{u+1}
v_subrev_u32 v{u+1}, {1024*(j%4)}, v{u+1}
""")
        park(vWOD + j, u + 1)
    p(f"""
s_lshr_b32 s{sTMP+3}, s2, 3
s_lshl_b32 s{sTMP+3}, s{sTMP+3}, 2
s_add_u32 s{sTMP+3}, s{sTMP+3}, s{sWAVE}
s_mul_i32 s{sTMP+3}, s{sTMP+3}, {60*128}
s_add_u32 s{sTMP+3}, s{sTMP+3}, s{sTMP+1}
v_lshlrev_b32 v{u}, 7, v0
v_add_u32 v{u}, s{sTMP+3}, v{u}
v_cmp_gt_u32 vcc, 60, v0
v_mov_b32 v{u+1}, {OOB}
v_cndmask_b32 v{u}, v{u+1}, v{u}, vcc
""")
    park(vPWO, u)
    p(f"""
v_mul_u32_u24 v{u}, 320, v{t+2}
v_lshl_add_u32 v{u}, v{t+4}, 3, v{u}
v_and_b32 v{u+1}, 16, v0
v_lshlrev_b32 v{u+1}, 1, v{u+1}
v_add_u32 v{u+2}, v{u}, v{u+1}
v_sub_u32 v{u+3}, v{u}, v{u+1}
""")
    park(vWOL, u + 2); park(vWOL + 1, u + 3)
    p(f"""
s_mul_i32 s96, s96, 73728
s_add_u32 s96, s96, s{sM0W}
s_mul_i32 s97, s97, {8*15360}
s_add_u32 s97, s97, {PART_OFF}
v_lshlrev_b32 v{u}, 4, v0
v_add_u32 v{u+2}, s96, v{u}
v_add_u32 v{u+3}, s97, v{u}
""")
    park(vOL, u + 2); park(vPT, u + 3)
    p(f"""
s_add_u32 s{sTMP+2}, s{sTMP+2}, s{sTMP+4}
v_mul_u32_u24 v{u}, 1280, v{t}
v_add3_u32 v{u}, v{u}, v{u+1}, s{sTMP+2}
v_lshrrev_b32 v{u+2}, 5, v0
v_lshl_add_u32 v{u}, v{u+2}, 4, v{u}
""")
    park(vOUT, u)
    p(f"v_mov_b32 v{u}, 0x3f803f80\nv_cmp_eq_u32 vcc, 0, v{t+4}\nv_cndmask_b32 v{u}, 0, v{u}, vcc")
    for r in range(4): p(f"v_accvgpr_write_b32 a{aONE+r}, v{u}")
    for i in range(4):
        p(f"s_add_u32 s{sHI+i}, s{sHL}, {i}\ns_and_b32 s{sHI+i}, s{sHI+i}, 3\ns_mul_i32 s{sHI+i}, s{sHI+i}, 3")
    SC = math.log2(math.e) / math.sqrt(192.0)
    p(f"""
s_mul_i32 s{sWW}, s{sWAVE}, 5120
s_mov_b32 s{sLTHR}, {f32(LTHR)}
s_mov_b32 s{sSC}, {f32(SC)}
s_add_u32 s{sWR}, s{sM0W}, {2*(D0+1)*SLOT}
s_mov_b32 s{sRD}, 0
s_mov_b32 s{sT}, 1
""")

def S(t, **k): return Item('S', t, **k)
def V(t, **k): return Item('V', t, **k)
def wrap0(s, inc, lim, zero="0"):
    return [S(f"s_add_u32 s{s}, s{s}, {inc}"), S(f"s_cmp_ge_u32 s{s}, {lim}\ns_cselect_b32 s{s}, {zero}, s{s}")]
def dma_tile(kind, pre, so, tag=None, post=()):
    vd, srn, pol = {'K': (vKD, sK, NT), 'V': (vVD, sV, NT), 'W': (vWD, sWq, "")}[kind]
    g = [S(x) for x in pre]
    for j in range(3):
        g.append(Item('M', f"buffer_load_dwordx4 v{vd+j}, {sr(srn)}, {so} offen offset:{1024*j} {pol} lds", tag=tag))
    return g + list(post)
def dma_kv_static(kind, i):
    so = sKK if kind == 'K' else sKOFF
    return dma_tile(kind, [f"s_add_u32 m0, s{sM0W}, {kvslot(kind,i)*SLOT}"], f"s{so}", f"{kind}{i}", wrap0(so, SLOT, 32 * SLOT))
def dma_w(u):
    return dma_tile('W', [f"s_add_u32 m0, s{sM0W}, {wslot(u)*SLOT}"], f"s{sWOFF}", f"W{u}",
                    wrap0(sWOFF, 32 * 12288, 640 * 12288) if not COMMON else
                    [S(f"s_add_u32 s{sWOFF}, s{sWOFF}, {32*12288}")] if u < 2 * COMMON - 1 else
                    [S(f"s_mul_i32 s{sWOFF}, s{sRD}, {64*12288}")] if u == 2 * COMMON - 1 else wrap0(sWOFF, 32 * 12288, (10 - COMMON) * 64 * 12288))
def dma_x(c):
    g = []
    for half in range(2):
        g.append(S(f"s_add_u32 m0, s{sM0W}, {(xpair(c)+half)*SLOT}"))
        for qb in range(3):
            g.append(Item('M', f"buffer_load_dwordx4 v{vXD+2*qb+half}, {sr(sX)}, s{sXOFF} offen offset:{1024*qb} lds", tag=f"X{c}"))
    if COMMON and c < COMMON - 1: return g + [S(f"s_add_u32 s{sXOFF}, s{sXOFF}, 128")]
    if COMMON and c == COMMON - 1: return g + [S(f"s_lshl_b32 s{sXOFF}, s{sRD}, 7")]
    return g + wrap0(sXOFF, 128, (10 - COMMON) * 128)
def spread_kv(its, lo, hi):
    ms = [x for x in its if x.kind == 'M']
    chain(its, lo, hi)
    for k, x in enumerate(ms):
        x.target = lo + 1 + (hi - lo) * k // 5
        w = WIN[k % len(WIN)] - 1
        x.ins = [I(f"s_waitcnt vmcnt({w})")] + x.ins; x.needA = True
    t = lo
    for x in reversed(its):
        if x.kind == 'M': t = x.target
        elif any(its.index(y) > its.index(x) for y in ms): x.target = max(lo, t - 3)
        else: x.target = hi + 1
    return its
def kv_issue(nok=False):
    dk = dma_tile('K', [f"s_mov_b32 m0, s{sWR}"], f"s{sKK}") if not nok else []
    dv = dma_tile('V', [f"s_add_u32 m0, s{sWR}, {SLOT}"], f"s{sKOFF}")
    if nok: return dv
    return dk + dv + [S(f"s_mov_b32 s{sKOFF}, s{sKK}")] + wrap0(sKK, SLOT, 32 * SLOT) + wrap0(sWR, 2 * SLOT, 12 * SLOT, f"s{sM0W}")
def dma_wo(G):
    sl = goff(G); i, c = gic(G)
    g = [S(f"s_add_u32 s{sWOFF}, s{sHI+i}, {c}"), S(f"s_mul_i32 s{sWOFF}, s{sWOFF}, {64*1280}")]
    for j in range(5):
        if j == 0: g.append(S(f"s_add_u32 m0, s{sWW}, {sl}"))
        if j == 4: g.append(S(f"s_add_u32 m0, s{sWW}, {sl+4096}"))
        g.append(Item('M', f"buffer_load_dwordx4 v{vWOD+j}, {sr(sWo)}, s{sWOFF} offen offset:{1024*(j%4)} lds", tag=f"G{G}"))
    return g
def xfrag(c, ks, qb): return aX + (c % NXB) * 24 + (ks * 3 + qb) * 4
def read_x(c):
    off = (xpair(c) - xs0()) * SLOT
    return [Item('L', f"ds_read_b128 {ar(xfrag(c,ks,qb))}, v{vXR+ks} offset:{off + qb*1024}") for ks in range(2) for qb in range(3)]
def flat(p, items):
    for it in items: p.cur += it.ins
def snake(mf, k): return mf[::-1] if (SNAKE and k & 1) else mf
class Pool:
    def __init__(self, size): self.n = 0; self.size = size
    def next(self):
        r = aPOOL + 4 * (self.n % self.size); self.n += 1; return r
def vunit_reads(buf, db, imm, va):
    return [f"ds_read_b64_tr_b16 {ar(buf,2)}, v{va+(db&3)} offset:{imm + (db>>2)*128}",
            f"ds_read_b64_tr_b16 {ar(buf+2,2)}, v{va+(db&3)} offset:{imm + (db>>2)*128 + 6144}"]

T = 4
RGAP = 6
class Stream:
    def __init__(self, tail=()):
        self.mf = []; self.items = []; self.resA = set()
        for u in tail: self.add_unit(u)
    def n(self): return len(self.mf)
    def add_unit(self, u):
        u['first'] = len(self.mf)
        if u.get('reads'): self.resA.add(len(self.mf) - 1)
        for k, m in enumerate(u['mf']): self.mf.append((u.get('head', []) if k == 0 else [], m))
    def reads(self, units, lo, hi, after=()):
        its = []
        tot = sum(len(u['reads']) for u in units); k = 0
        for u in units:
            g = lo + (hi - lo + 1) * k // tot
            for r in u['reads']:
                it = Item('L', r, lo=lo, hi=max(lo, min(hi, u['first'] - 5)), target=g, after=list(after) + ([(its[-1], 0)] if its else []))
                it.use = u['first']
                its.append(it); k += 1
        self.items += its
        return its
    def barrier(self, g, wait, after=()):
        w = Item('S', [x if isinstance(x, I) else I(x) for x in wait], lo=g, hi=g + 2, target=g, after=after)
        b = Item('S', "s_barrier", lo=g + 1, hi=g + 3, after=[(w, 1)])
        self.items += [w, b]
        return b
    def add(self, its): self.items += its; return its
    def emit(self, keep=0, name=""):
        mf = self.mf[:len(self.mf) - keep] if keep else self.mf
        out = pack(mf, self.items, self.resA, name)
        for it in self.items:
            if hasattr(it, 'use'):
                d = set(it.ins[0].dst)
                assert it.gap < it.use, (name, it.ins[0].text)
                for g in range(it.gap + 1, it.use):
                    assert not (d & set(self.mf[g][1].src)), ("pool WAR", name, it.ins[0].text, it.gap, g)
        return out

def qk_unit(pool, buf, kb, ds, c0, imm, k):
    pb = pool.next()
    mf = []
    for qb in range(3):
        d = sreg(buf, qb, kb)
        c = vr(d) if ds else (0 if c0 else vr(vNM + 4 * qb))
        mf.append(I(f"{MF} {vr(d)}, {ar(pb)}, {vr(qfrag(qb,ds))}, {c}"))
    return dict(reads=[f"ds_read_b128 {ar(pb)}, v{vKA+(ds&1)} offset:{imm + kb*6144 + (ds>>1)*128}"], mf=snake(mf, k))
def qk_units(pool, buf, imm, zero=()):
    return [qk_unit(pool, buf, kb, ds, kb in zero, imm, ds) for kb in range(2) for ds in range(6)]
def rs_unit(buf, zero=False):
    return dict(reads=None, mf=[I(f"{MF} {vr(vL[buf]+4*qb)}, {ar(aONE)}, {vr(vP[buf]+4*qb)}, {0 if zero else vr(vL[buf^1]+4*qb)}") for qb in range(3)])
def pv_units(pool, buf, imm, zero=False):
    units = []
    for db in range(12):
        pb = pool.next()
        z = zero and db < 12 - T
        mf = [I(f"{MF} {ar(oacc(db,qb))}, {ar(pb)}, {vr(vP[buf]+4*qb)}, {0 if z else ar(oacc(db,qb))}") for qb in range(3)]
        units.append(dict(reads=vunit_reads(pb, db, SLOT + imm, vVA), mf=snake(mf, db)))
    return units
PAIRS = [(qb, kb, h) for kb in range(2) for qb in range(3) for h in range(2)]
def softmax_items(buf, n0, n1, lo, hi, pre=None):
    ex = []; cv = []; ex0 = []
    for n in range(n0, n1):
        qb, kb, h = PAIRS[n]
        s = sreg(buf, qb, kb) + 2 * h
        e = vE + 2 * (n % NE)
        a = Item('E', f"v_exp_f32 v{e}, v{s}"); b = Item('E', f"v_exp_f32 v{e+1}, v{s+1}")
        if len(cv) >= NE: a.after.append((cv[-NE], 1))
        if pre:
            for k, x in enumerate((a, b)):
                sub = V(f"v_add_f32 v{s+k}, v{s+k}, v{vNM+4*qb}", lo=lo, hi=hi, after=[(pre, 1)])
                x.after.append((sub, 1)); ex0.append((sub, x))
        ex += [a, b]
        cv.append(V(f"v_cvt_pk_bf16_f32 v{vP[buf]+4*qb+2*kb+h}, v{e}, v{e+1}", lo=lo, hi=hi, after=[(b, 1)]))
    chain(ex, lo, hi - 1)
    for e in ex: e.hi = hi
    for k, c in enumerate(cv): c.target = ex[2 * k + 1].target + 1
    for sub, x in ex0: sub.target = max(lo, x.target - 2)
    return [s for s, _ in ex0] + ex + cv
SPLIT = 6
LTHR = 2.0 ** 40
def rowmax_text(buf, qb, d, t):
    s0, s1 = sreg(buf, qb, 0), sreg(buf, qb, 1)
    return [f"v_max3_f32 v{d}, v{s0}, v{s0+1}, v{s0+2}", f"v_max3_f32 v{t}, v{s1}, v{s1+1}, v{s1+2}",
            f"v_max3_f32 v{d}, v{d}, v{s0+3}, v{s1+3}", f"v_max_f32 v{d}, v{d}, v{t}",
            f"v_mov_b32 v{t}, v{d}", f"v_permlane32_swap_b32 v{d}, v{t}", f"v_max_f32 v{d}, v{d}, v{t}",
            f"v_mov_b32 v{t}, v{d}", f"v_permlane16_swap_b32 v{d}, v{t}", f"v_max_f32 v{d}, v{d}, v{t}"]
def rare_path(p, label, buf):
    p.reset_state()
    p(f"{label}:\ns_nop 15")
    for qb in range(3):
        d = vR + qb
        p("\n".join(rowmax_text(buf, qb, d, vR + 8)))
        p(f"v_max_f32 v{d}, 0, v{d}")
        for r in range(4): p(f"v_sub_f32 v{vNM+4*qb+r}, v{vNM+4*qb+r}, v{d}")
        for bb in (buf, buf ^ 1):
            for r in range(8): p(f"v_sub_f32 v{sreg(bb,qb,0)+r}, v{sreg(bb,qb,0)+r}, v{d}")
        p(f"v_exp_f32_e64 v{vR+4+qb}, -v{d}")
    for qb in range(3):
        for r in range(4): p(f"v_mul_f32 v{vL[buf^1]+4*qb+r}, v{vL[buf^1]+4*qb+r}, v{vR+4+qb}")
        for r in [oacc(db, qb) + r for db in range(12) for r in range(4)]:
            p(f"v_accvgpr_read_b32 v{vR+9}, a{r}\nv_mul_f32 v{vR+9}, v{vR+9}, v{vR+4+qb}\nv_accvgpr_write_b32 a{r}, v{vR+9}")
    for (qb, kb, h) in PAIRS:
        s = sreg(buf, qb, kb) + 2 * h
        p(f"v_exp_f32 v{vE}, v{s}\nv_exp_f32 v{vE+1}, v{s+1}\nv_cvt_pk_bf16_f32 v{vP[buf]+4*qb+2*kb+h}, v{vE}, v{vE+1}")
    p.cur += rs_unit(buf)['mf']
    p(f"s_nop 15\ns_setpc_b64 s[98:99]")
    p.flush()

KVPRE = ['K0', 'K1', 'V0', 'K2', 'V1', 'K3', 'V2', 'K4', 'V3']
def get_sched():
    PRO = ['X0', 'W0', 'W1', 'W2']; PRO2 = ['X1']
    QS = {0: (['W3'], None, []), 1: (['W4', 'W5'], 1, ['X2']), 2: (['W6'], None, ['X3']), 3: (['W7'], 2, ['X4']), 4: (['W8'], 3, ['X5']),
          5: (['W9', 'K0', 'K1'], None, []), 6: (['W10'], 4, ['X6']), 7: (['W11'], 5, ['X7']), 8: (['W12', 'V0', 'K2'], None, []),
          9: (['W13'], 6, ['X8']), 10: (['W14'], 7, ['X9']), 11: (['W15'], None, []), 12: (['W16'], 8, []), 13: (['W17'], 9, []),
          14: (['W18'], None, []), 15: (['W19'], None, []), 16: (['V1', 'K3', 'V2', 'K4', 'V3'], None, [])}
    if SCHED == 1:
        QS[5] = (['W9'], None, []); QS[8] = (['W12', 'K0', 'K1'], None, []); QS[11] = (['W15', 'V0', 'K2'], None, [])
    if SCHED == 2:
        QS[5] = (['W9'], None, []); QS[8] = (['W12'], None, []); QS[11] = (['W15', 'K0', 'K1'], None, [])
        QS[15] = (['W19', 'V0', 'K2'], None, [])
    if SCHED == 3:
        QS[13] = (['W17'], 9, ['V1', 'K3']); QS[16] = (['V2', 'K4', 'V3'], None, [])
    if SCHED in (4, 5, 6):
        PRO = ['X0', 'W0', 'W1']; PRO2 = ['X1']
        if SCHED == 4:
            QS.update({0: (['W2', 'W3'], None, []), 1: (['X2'], 1, ['W4']), 2: (['W5', 'X3'], None, ['W6']), 3: (['W7'], 2, ['X4']), 4: (['W8'], None, []),
                       5: (['W9'], 3, ['X5']), 6: (['W10'], 4, ['X6']), 7: (['W11'], 5, ['X7']), 8: (['W12'], None, [])})
        if SCHED == 5:
            PRO2 = []
            QS.update({0: (['X1', 'W2'], None, ['W3']), 1: (['X2'], 1, ['W4']), 2: (['W5', 'X3'], None, ['W6']), 3: (['W7'], 2, ['X4']), 4: (['W8'], None, []),
                       5: (['W9'], 3, ['X5']), 6: (['W10'], 4, ['X6']), 7: (['W11'], 5, ['X7']), 8: (['W12'], None, [])})
        if SCHED == 6:
            PRO2 = ['X1', 'W2']
            QS.update({0: (['W3', 'X2'], None, ['W4']), 1: (['W5'], 1, ['X3']), 2: (['W6'], None, []), 3: (['W7'], 2, ['X4']), 4: (['W8'], 3, ['X5']),
                       5: (['W9'], None, []), 6: (['W10'], 4, ['X6']), 7: (['W11'], 5, ['X7']), 8: (['W12'], None, [])})
    if SCHED == 7:
        QS.update({5: (['W9'], 4, ['X6']), 6: (['W10'], 5, ['X7']), 7: (['W11'], 6, ['X8']), 8: (['W12'], 7, ['X9']), 9: (['W13'], 8, []), 10: (['W14'], 9, []),
                   11: (['W15'], None, []), 12: (['W16'], None, []), 13: (['W17'], None, [])})
    if SCHED == 8:
        QS.update({5: (['W9'], None, []), 6: (['W10'], 4, ['X6']), 7: (['W11'], 5, ['X7']), 8: (['W12'], 6, ['X8']), 9: (['W13'], 7, ['X9']), 10: (['W14'], None, []),
                   11: (['W15'], 8, []), 12: (['W16'], 9, []), 13: (['W17'], None, [])})
    if SCHED == 9:
        QS.update({4: (['W8'], None, []), 5: (['W9'], 3, ['X5']), 6: (['W10'], None, []), 7: (['W11'], 4, ['X6']), 8: (['W12'], None, []), 9: (['W13'], 5, ['X7']), 10: (['W14'], None, []),
                   11: (['W15'], 6, ['X8']), 12: (['W16'], 7, ['X9']), 13: (['W17'], None, []), 14: (['W18'], 8, []), 15: (['W19'], 9, [])})
    if SCHED == 10:
        assert LAYOUT == 2 and D0 <= 3
        QS.update({5: (['W9'], 4, ['X6']), 6: (['W10'], 5, ['X7']), 7: (['W11'], 6, ['X8']), 8: (['W12'], 7, ['X9']), 9: (['W13'], 8, ['W14', 'W15']), 10: (['W16'], 9, ['W17']),
                   11: (['W18'], None, []), 12: (['W19'], None, []), 13: ([], None, []), 14: ([], None, []), 15: ([], None, [])})
    if SCHED == 11:
        assert LAYOUT == 2 and D0 <= 3
        QS.update({5: (['W9', 'W10'], None, []), 6: (['W11'], 4, ['X6']), 7: (['W12'], 5, ['X7']), 8: (['W13'], 6, ['X8']), 9: ([], 7, ['X9']), 10: ([], 8, ['W14', 'W15']),
                   11: (['W16'], 9, ['W17']), 12: (['W18', 'W19'], None, []), 13: ([], None, []), 14: ([], None, []), 15: ([], None, [])})
    keep = KVPRE[:1 + 2 * D0]
    for u in QS: QS[u] = tuple([n for n in part if n[0] not in 'KV' or n in keep] if isinstance(part, list) else part for part in QS[u])
    if QKV:
        for u in QS: QS[u] = tuple([n for n in part if n[0] not in 'KV'] if isinstance(part, list) else part for part in QS[u])
        for u, l in QKV.items(): QS[u] = (QS[u][0] + l,) + QS[u][1:]
    return PRO, PRO2, QS
QKV = {11: ['K0'], 12: ['K1'], 14: ['V0'], 15: ['K2'], 16: ['V1', 'K3', 'V2', 'P0']}
def pf_wo(v): return [Item('M', f"buffer_load_dword v{vDUM}, v{v}, {sr(sWo)}, 0 offen", tag="dummy")]
def issue(name):
    if name == 'P0': return [V(f"v_accvgpr_read_b32 v1, a{aPARK + PARK.index(vPWO)}")] + pf_wo(1)
    k, i = name[0], int(name[1:])
    return dma_x(i) if k == 'X' else dma_w(i) if k == 'W' else dma_kv_static(k, i)
def check_sched(PRO, PRO2, QS):
    occ = {}; xread = {0: -1}
    for u, (e, xr, l) in QS.items():
        if xr is not None: xread[xr] = u
    def put(n, u, late):
        k, i = n[0], int(n[1:])
        if k == 'P': return
        for s in ([xpair(i), xpair(i) + 1] if k == 'X' else [wslot(i)] if k == 'W' else [kvslot(k, i)]):
            o = occ.get(s)
            if o:
                k2, i2 = o[0], int(o[1:])
                if k2 == 'W': assert i2 <= u - 1, (n, u, o)
                elif k2 == 'X': assert xread[i2] < u or (xread[i2] == u and late), (n, u, o)
                else: assert False, (n, u, o)
            occ[s] = n
    seq = []
    for n in PRO: put(n, -2, False); seq.append(n)
    for n in PRO2: put(n, -1.5, True); seq.append(n)
    for u in sorted(QS):
        e, xr, l = QS[u]
        for n in e: put(n, u, False); seq.append(n)
        for n in l: put(n, u, True); seq.append(n)
        if xr is not None: assert min(xr * 2, 20 - NDB) > u and (xr - NXB) * 2 + 1 < u, (xr, u)
    assert [n for n in seq if n[0] == 'W'] == [f"W{i}" for i in range(20)]
    assert [n for n in seq if n[0] == 'X'] == [f"X{i}" for i in range(10)]
    assert [n for n in seq if n[0] in 'KV'] == KVPRE[:1 + 2 * D0] and 'K0' not in QS[16][0]

def front(p, pool):
    assert NDB == 4
    PRO, PRO2, QS = get_sched()
    check_sched(PRO, PRO2, QS)
    q = Prog(); setup_rest(q)
    ntok = max(k for k, x in enumerate(q.cur) if x.kind == 'smem') + 1
    for n in PRO[1:]: flat(p, issue(n))
    p.cur += q.cur[:ntok]
    p.cur += stp('s2')
    setup_reads(p)
    for uu in range(4): p(f"v_add_u32 v{vVA+uu}, {wslot(0)*SLOT}, v{vVL+uu}")
    late = []
    for x in q.cur[ntok:]:
        if x.op in ('s_addc_u32', 'v_cndmask_b32'): late[-1].ins.append(x)
        else: late.append(Item('V' if x.kind == 'valu' else 'S', [x]))
    if not LATESET: flat(p, late); late = []
    p("WAITVM X0"); p.cur += stp('X0')
    flat(p, read_x(0))
    for n in PRO2: flat(p, issue(n))
    p(f"""
s_add_u32 s{sTK1}, s{sTK1}, {TOKC[0]}
s_addc_u32 s{sTK1+1}, s{sTK1+1}, {TOKC[1]}
s_add_u32 s{sTK2}, s{sTK2}, {TOKC[0]}
s_addc_u32 s{sTK2+1}, s{sTK2+1}, {TOKC[1]}
""")
    p("WAITVM W0\ns_waitcnt lgkmcnt(0)\ns_barrier"); p.cur += stp('u0')
    st = Stream()
    if late:
        chain(late, 0, LATEHI)
        for x in late: x.dense = True; x.target = 0
        st.add(late)
        kvset = [x for x in late if set(x.ins[0].dst) & {('v', vKD + 2)}][0]
    NU = 20 - NDB
    def wunit(u, db, va, imm, k):
        buf = pool.next()
        mf = [I(f"{MF} {vr(qacc(db,qb))}, {ar(buf)}, {ar(xfrag(u>>1,u&1,qb))}, {vr(qacc(db,qb)) if u else 0}") for qb in range(3)]
        return dict(reads=vunit_reads(buf, db, imm, va), mf=snake(mf, k))
    tiles = [[wunit(u, db, vVA if u % 2 == 0 else vVB, 0, db) for db in range(12)] for u in range(NU)]
    sa = {16: (vVA, 0), 17: (vVA, SLOT), 19: (vVA, 2 * SLOT), 18: (vVB, 0)} if LAYOUT == 0 else {u: (vVA, (u - 16) * SLOT) for u in range(16, 20)}
    sup = [wunit(u, db, sa[u][0], sa[u][1], k) for db in range(12) for k, u in enumerate((16, 17, 19, 18))]
    tiles.append(sup)
    qk0 = [qk_unit(pool, 0, kb, ds, True, 0, kb) for ds in range(6) for kb in range(2)]
    qk1 = qk_units(pool, 1, 2 * SLOT, zero=(0,))
    rs = rs_unit(0, zero=True)
    pv = pv_units(pool, 0, 2 * SLOT, zero=True)
    for tl in tiles + [qk0, qk1, [rs], pv]:
        for un in tl: st.add_unit(un)
    n = st.n() - 3 * T
    prevdma = None
    for u in range(NU + 1):
        g0 = 36 * u - 3 * T
        span = 36 if u < NU else 36 * NDB
        if u == 0:
            for un in tiles[0][:T]:
                for r in un['reads']: p(r)
            rd = st.reads(tiles[0][T:], 0, g0 + 36 - RGAP)
            bar = None; glo = 0
        else:
            bar = st.barrier(g0, [f"WAITVM W{u if u < NU else 19}"] + (["WAITVM K0"] if u == NU else []) + ["s_waitcnt lgkmcnt(0)"] + stp(f"u{u}"))
            aft = [(bar, 0)]
            if u == NU and LAYOUT == 0:
                vb = chain([V(f"v_add_u32 v{vVB+uu}, {wslot(18)*SLOT}, v{vVL+uu}") for uu in range(4)], g0 - 4, g0 + 1)
                vb[0].after.append((rd[-1], 1)); st.add(vb)
                for x in vb: x.hi = g0 + 4
            rd = st.reads(tiles[u], g0 + 1, g0 + span - (RGAP if u < NU else 0), aft)
            if u == NU and LAYOUT == 0:
                for x in rd[6:8]: x.after.append((vb[-1], 1))
            glo = g0 + 2
        if u < NU:
            va = vVA if (u + 1) % 2 == 0 else vVB
            st.add(chain([V(f"v_add_u32 v{va+uu}, {wslot(u+1)*SLOT}, v{vVL+uu}") for uu in range(4)], glo + 6, g0 + 30))
        e, xr, l = QS[u]
        f1 = [g for nm in e for g in issue(nm)]
        nx = [g for nm in l for g in issue(nm)]
        seq = []
        if f1:
            chain(f1, glo, glo + (12 if u < NU else KVSPAN))
            if bar: f1[0].after.append((bar, 1))
            if late and 'K0' in e: f1[0].after.append((kvset, 1))
            if late and 'P0' in e: f1[0].after.append((late[-1], 1))
            seq += f1
        if xr is not None:
            rx = [S(f"WAITVM X{xr}")] + read_x(xr)
            chain(rx, g0 + 14, g0 + 22)
            seq += rx
            if nx: nx = [V(f"v_accvgpr_read_b32 v{vT0}, a{xfrag(xr,1,2)}", after=[(rx[-1], 4)])] + nx
        if nx:
            chain(nx, g0 + 24, g0 + 35); seq += nx
        for k in range(len(seq)):
            pvs = seq[k - 1] if k else prevdma
            if pvs is not None and not any(a is pvs for a, _ in seq[k].after): seq[k].after.append((pvs, 1))
            seq[k].hi = g0 + span + 14 if seq[k].kind != 'L' else g0 + 30
        if seq: prevdma = seq[-1]
        st.add(seq)
    wlast = rd[-1]
    assert oacc(12 - T, 0) == xfrag(4, 0, 0)
    st.add(chain([V(f"v_accvgpr_write_b32 a{oacc(12-T,0)+r}, 0") for r in range(12 * T)], 36 * 12 + 4, 36 * 16 - 20))
    cprev = None
    for s in range(6):
        its = []
        for qb in range(3):
            a, b, q = qacc(2 * s, qb), qacc(2 * s + 1, qb), qfrag(qb, s)
            its += [V(f"v_mul_f32 v{r}, s{sSC}, v{r}") for r in list(range(a, a + 4)) + list(range(b, b + 4))]
            its += [V(f"v_cvt_pk_bf16_f32 v{q+k}, v{r}, v{r+1}") for k, r in enumerate((a, a + 2, b, b + 2))]
        for qb in range(3):
            q = qfrag(qb, s)
            its += [V(f"v_permlane16_swap_b32 v{q}, v{q+2}"), V(f"v_permlane16_swap_b32 v{q+1}, v{q+3}")]
        lo = sup[8 * s + 7]['first'] + 5
        dl = qk0[2 * s]['first'] - 2 if s else qk0[0]['first'] - 2
        chain(its, lo, min(lo + 26, dl), 0)
        for x in its: x.hi = dl; x.dense = True; x.target = lo
        if cprev: its[0].after.append((cprev, 0))
        cprev = its[-1]; st.add(its)
    q0 = qk0[0]['first']
    kr0 = st.reads(qk0, q0 - 11, q0 + 14, [(wlast, 0)])
    gx = q0 + 20
    barx = st.barrier(gx, ["WAITVM V0", "s_waitcnt lgkmcnt(0)"] + stp('Qend'), after=[(kr0[-1], 1), (prevdma, 1)])
    kr1 = st.reads(qk1, gx + 1, qk1[0]['first'] + 18, [(barx, 0)])
    va = chain([V(f"v_mov_b32 v{vVA+u}, v{vVL+u}") for u in range(4)], q0, q0 + 20); va[0].after.append((wlast, 1)); st.add(va)
    for x in va: x.hi = qk1[6]['first']
    st.reads(pv, kr1[-1].target + 2, n - 12, [(kr1[-1], 0), (va[-1], 1)])
    dm = chain(kv_issue(), qk0[10]['first'], qk0[10]['first'] + 14); dm[0].after.append((barx, 1)); st.add(dm)
    for x in dm: x.hi = n - 8
    lo = qk1[0]['first'] + 3; dl = qk1[6]['first'] - 2
    cols = [[V(t) for t in rowmax_text(0, qb, vR + qb, vR + 4 + qb)] for qb in range(3)]
    rm = [cols[qb][k] for k in range(10) for qb in range(3)]
    rm += [V(f"v_sub_f32 v{vNM+4*qb+r}, 0, v{vR+qb}") for r in range(4) for qb in range(3)]
    chain(rm, lo, dl, 0); st.add(rm)
    for x in rm: x.dense = True; x.target = lo
    st.add(softmax_items(0, 0, 12, lo + 10, rs['first'] - 2, pre=rm[32]))
    st.add(softmax_items(1, 0, SPLIT, pv[0]['first'] + 1, n - 1, pre=rm[-1]))
    up = wrap0(sRD, 4 * SLOT, 12 * SLOT) + [V(f"v_add_u32 v{vKA+u}, s{sRD}, v{vKL+u}") for u in range(2)]
    up[0].after += [(kr1[-1], 1), (dm[-1], 1)]
    st.add(chain(up, pv[0]['first'], n - 2))
    p.cur += st.emit(3 * T, name="front")
    return [dict(mf=u['mf']) for u in pv[12 - T:]]

def o_store(s):
    return [S(f"s_add_u32 s{sXOFF}, s{sKOFF}, {s*12288}")] + [
        Item('M', f"buffer_store_dwordx4 {bfrag(s,qb)}, v{vOL}, {sr(sWS)}, s{sXOFF} offen offset:{1024*qb} sc1", tag=f"OST{s>>1}") for qb in range(3)]
def o_conv(s, qb):
    t = 32 + 8 * ((s * 3 + qb) % 3); d = vQ + (s * 3 + qb) * 4
    its = [V(f"v_accvgpr_read_b32 v{t+4*h+r}, a{oacc(2*s+h,qb)+r}") for h in range(2) for r in range(4)]
    its += [V(f"v_mul_f32 v{t+r}, v{t+r}, v{vRCS[qb]}") for r in range(8)]
    its += [V(f"v_cvt_pk_bf16_f32 v{d+r}, v{t+2*r}, v{t+2*r+1}") for r in range(4)]
    return its

def check_items(cur, lo, hi):
    mx = V(f"v_max3_f32 v{vCK}, v{vL[cur]}, v{vL[cur]+4}, v{vL[cur]+8}", lo=min(lo, hi), hi=hi)
    return [mx, V(f"v_cmp_nge_f32 vcc, s{sLTHR}, v{vCK}", after=[(mx, 0)], hi=hi)]
def rare_head(p, cur):
    ret = p.newlabel("L_ret"); tr = p.newlabel("L_tramp")
    TRAMPS.append((tr, ret, cur))
    return L(f"s_cbranch_vccnz {tr}\n{ret}:")
def attention(p, pool, tail):
    def step(t_par, tail, mode, vm, extra=(), endi=(), final=False):
        cur, nxt = t_par, t_par ^ 1
        imm = 0 if t_par else 2 * SLOT
        st = Stream(tail)
        qk = qk_units(pool, nxt, imm)
        pv = pv_units(pool, cur, imm)
        rs = rs_unit(cur)
        pv[0]['head'] = rare_head(p, cur)
        for u in qk[:9] + [rs] + qk[9:] + pv: st.add_unit(u)
        n = st.n() - 3 * T
        bar = st.barrier(0, [f"s_waitcnt vmcnt({vm}) lgkmcnt(0)"])
        kr = st.reads(qk, 1, 33 if not final else 28, [(bar, 0)])
        aft = [(bar, 0), (kr[-1], 0)]
        if t_par:
            va = chain([V(f"v_add_u32 v{vVA+u}, s{sRD}, v{vVL+u}") for u in range(4)], 0, 20)
            st.add(va); aft.append((va[-1], 1))
        vrd = st.reads(pv, kr[-1].target + 2, n - (12 if not final else 20), aft)
        if final:
            up = wrap0(sRD, 4 * SLOT, 12 * SLOT) + [V(f"v_add_u32 v{vVA+u}, s{sRD}, v{vVL+u}") for u in range(4)]
            up[2].after.append((vrd[-1], 1))
            st.add(chain(up, n - 24, n - 1))
        elif not t_par:
            up = wrap0(sRD, 4 * SLOT, 12 * SLOT) + [V(f"v_add_u32 v{vKA+u}, s{sRD}, v{vKL+u}") for u in range(2)]
            up[0].after += [(kr[-1], 1)]
            st.add(chain(up, rs['first'], n - 4))
        dm = []
        if mode == 'A':
            dm = chain(kv_issue(), 2, DMAHI) if not WIN else spread_kv(kv_issue(), 2, WHI)
            for x in dm: x.hi = n - (8 if not WIN else 4)
        if extra:
            fx = [x for x in extra if getattr(x, 'fixed', False)]; fr = [x for x in extra if not getattr(x, 'fixed', False)]
            if fr:
                chain(fr, DMAHI + 2 if fx else 2, 68 if fx else (56 if not final else 30))
                if fx: fr[0].after.append((fx[-1], 1))
            dm = fx + fr
            for x in dm: x.hi = n - 1
        if dm: dm[0].after.append((bar, 1))
        st.add(dm)
        st.add(softmax_items(cur, SPLIT, 12, 0, rs['first'] - 2))
        pf = pv[0]['first']
        st.add(check_items(cur, rs['first'] + 6, pf - 1))
        st.add(softmax_items(nxt, 0, SPLIT if not final else SP30, pf + (1 if not final else 0), n - 1))
        if endi: st.add(chain(list(endi), n - 3, n - 1, 0))
        return st.emit(3 * T, name=mode), [dict(mf=u['mf']) for u in pv[12 - T:]]
    txt = lambda tl: [[i.text for i in u['mf']] for u in tl]
    global WIN
    VMA = VMLIM if not WIN else 6 * (D0 - 1)
    tr = []
    if TRACE: tr = L(f"s_memrealtime s[84:85]\ns_waitcnt lgkmcnt(0)\ns_mov_b32 m0, s{sT}\nv_writelane_b32 v174, s84, m0")
    global WHI
    for k, (tend, w, wh) in enumerate(LOOPS or [(27, WIN, WHI)]):
        WIN = w; WHI = wh
        lp = f"L_attA{k}"
        b1, tail1 = step(1, tail, 'A', VMA)
        b2, tail2 = step(0, tail1, 'A', VMA, endi=[S(f"s_add_u32 s{sT}, s{sT}, 2"), S(f"s_cmp_lt_u32 s{sT}, {tend}")])
        assert txt(tail2) == txt(tail) and VMLIM <= 6 * (D0 - 1) and tend % 2 == 1
        p.loop(L(f"{lp}:") + [I(x.text) for x in tr] + b1 + b2 + L(f"s_cbranch_scc1 {lp}"))
    assert tend == 27
    if TRACE:
        p(f"s_add_u32 s96, s90, {STAMP_OFF + 65536}\ns_addc_u32 s97, s91, 0"); srd(p, 84, 96, 1 << 20)
        p(f"s_lshl_b32 s{sTMP}, s2, 2\ns_add_u32 s{sTMP}, s{sTMP}, s{sWAVE}\ns_lshl_b32 s{sTMP}, s{sTMP}, 9\nv_lshlrev_b32 v{vT0}, 3, v0")
        p(f"buffer_store_dwordx2 v[174:175], v{vT0}, s[84:87], s{sTMP} offen")
    p.cur += stp('Lend')
    p("L_att27:")
    cnt = lambda its: sum(1 for x in its if x.kind == 'M')
    log = [pr for pr in range(27, 27 + D0) for _ in range(6)]
    nxt = 27 + D0
    tl = tail
    for t in range(27, 31):
        vm = len(log) - 1 - max(k for k, x in enumerate(log) if x == t)
        lastkv = max(k for k, x in enumerate(log) if x >= 0)
        if not WIN and 'kv' in PLAN[t]: vm = min(vm, VMLIM + len(log) - 1 - lastkv)
        ex = []
        for a in PLAN[t]:
            if a == 'kv': its = kv_issue(nok=(nxt == 31)); log += [nxt] * cnt(its); nxt += 1
            else:
                if a == 'r': its = [V(f"v_accvgpr_read_b32 v{r}, a{aPARK+k}") for k, r in enumerate(PARK)]
                elif a == 'p': its = pf_wo(vPWO)
                elif a == 'l': its = [Item('M', f"buffer_load_dword v{vDUM}, v{vF1}, {sr(sWS)}, 0 offen offset:128 sc1", tag="dummy")]
                else:
                    assert t >= {0: 28, 1: 28, 2: 29, 3: 29, 4: 30, 5: 31, 6: 31}[a]
                    its = dma_wo(a)
                log += [-1] * cnt(its)
            if a == 'kv':
                if WIN: spread_kv(its, 2, 62 if len(PLAN[t]) == 1 or cnt(its) == 3 else 40)
                else: chain(its, 2, DMAHI)
                for x in its: x.fixed = True
            ex += its
        ins, tl = step(t & 1, tl, 'P', min(vm, 63), ex, final=(t == 30)); p.cur += ins
    assert nxt == 32
    return tl, len(log) - 1 - max(k for k, x in enumerate(log) if x == 31)

def set_flag(vfl, sidx, off=0, local=False, vt=None):
    vt = vt or vTK
    st = f"buffer_store_dwordx2 v[{vt}:{vt+1}], v{vfl}, {sr(sWS)}, 0 offen offset:"
    return L(f"s_lshl_b64 exec, 1, s{sidx}\n" + (f"{st}{off+128}\n" if local else "") + f"{st}{off} sc1\ns_mov_b64 exec, -1")
def spin(name, voff, tk, off):
    one = lambda o: f"""buffer_load_dwordx2 v[{vFLV}:{vFLV+1}], v{voff}, {sr(sWS)}, 0 offen offset:{o} sc1
s_waitcnt vmcnt(0)
v_cmp_ne_u64 vcc, s[{tk}:{tk+1}], v[{vFLV}:{vFLV+1}]
s_cbranch_vccz L_spinr{name}
"""
    OUTL.append(f"""L_spin{name}:
s_mov_b32 s{sTMP}, 0x10000
L_poll{name}:
""" + (one(off + 128) * NLOC if LOCAL else "") + one(off) + f"""s_sub_u32 s{sTMP}, s{sTMP}, 1
s_cmp_lg_u32 s{sTMP}, 0
s_cbranch_scc1 L_poll{name}
s_branch L_spinr{name}
""")
def bump_epoch(p, voff, tk, sidx, off):
    ne = p.newlabel("L_ne")
    p(f"s_cmp_lg_u32 s{sidx}, 0\ns_cbranch_scc1 {ne}\nv_mov_b32 v{vFLV}, s{tk}\nv_mov_b32 v{vFLV+1}, s{tk+1}\ns_mov_b64 exec, 1")
    p.flush()
    p.raw(f"buffer_store_dwordx2 v[{vFLV}:{vFLV+1}], v{voff}, {sr(sWS)}, 0 offen offset:{off} sc1")
    p(f"s_mov_b64 exec, -1\ns_nop 1\n{ne}:")
def load_g(G):
    i, c = gic(G)
    g = [S(f"s_add_u32 s{sXOFF}, s{sHI+i}, {c}"), S(f"s_mul_i32 s{sXOFF}, s{sXOFF}, 24576")]
    for ks in range(2):
        if ks: g.append(S(f"s_add_u32 s{sXOFF}, s{sXOFF}, 12288"))
        g += [Item('M', f"buffer_load_dwordx4 {bfrag(2*G+ks,qb)}, v{vOL}, {sr(sWS)}, s{sXOFF} offen offset:{1024*qb} sc1") for qb in range(3)]
    return g

def oproj(p, pool, tail, vm31):
    NEXTG = max(a for v in PLAN.values() for a in v if isinstance(a, int)) + 1
    st = Stream(tail[:2])
    rs = rs_unit(1); st.add_unit(rs)
    for u in tail[2:]: st.add_unit(u)
    apv = pv_units(pool, 1, 0)
    apv[0]['head'] = rare_head(p, 1)
    for u in apv: st.add_unit(u)
    Z = st.n()
    def unit(G, ks, nb, va, imm):
        u = 2 * G + ks; pb = pool.next(); a = va + (nb & 1)
        rd = [f"ds_read_b64_tr_b16 {ar(pb,2)}, v{a} offset:{imm+ks*10240+nb*32}", f"ds_read_b64_tr_b16 {ar(pb+2,2)}, v{a} offset:{imm+ks*10240+nb*32+5120}"]
        mf = [I(f"{MF} {vr(cacc(nb,qb))}, {ar(pb)}, {bfrag(u,qb)}, {vr(cacc(nb,qb)) if u else 0}") for qb in range(3)]
        return dict(reads=rd, mf=snake(mf, pool.n))
    def seta(va, off): return [V(f"v_add_u32 v{va+k}, {off}, v{vWOL+k}") for k in range(2)]
    NG = 6
    def un2(G, ks, nb): return unit(G, ks, nb, vWA[2 + (G - NG) // 3], ((G - NG) % 3) * GSZ)
    assert all(goff(G + 1) == goff(G) + GSZ for G in range(NG, 11))
    U = [[unit(G, ks, nb, vWA[G & 1], 0) for ks in range(2) for nb in range(10)] for G in range(NG)]
    NL = 12 - NBA
    A = [[un2(G, ks, nb) for ks in range(2) for nb in range(6 if G >= GS else 10)] for G in range(6, NL)]
    F = [[un2(G, ks, nb) for G in range(NL if nb < 6 else GS, 12) for ks in range(2)] for nb in range(10)]
    tiles = U + A + [[u for nb in range(10) for u in F[nb]]]
    if ST: U[0][0]['head'] = stp('Aend')
    for tl in tiles:
        for u in tl: st.add_unit(u)
    bar0 = st.barrier(0, ["WAITVM G0", f"s_waitcnt vmcnt({vm31}) lgkmcnt(0)"])
    pf = apv[0]['first']
    vrd = st.reads(apv, 1, pf + 14, [(bar0, 0)])
    st.add(softmax_items(1, SP30, 12, 0, rs['first'] - 1))
    st.add(check_items(1, rs['first'] + 5, pf - 1))
    sa0 = chain(seta(vWA[0], goff(0)) + [V(f"v_mov_b32 v{vTK}, s{sTK1}"), V(f"v_mov_b32 v{vTK+1}, s{sTK1+1}")], rs['first'], pf - 1); st.add(sa0)
    for x in sa0: x.hi = pf + 12
    rc = chain([S(f"s_mul_i32 s{sKOFF}, s{sHL}, 73728"), S(f"s_mul_i32 s{sT}, s{sHG}, 15360")] + [Item('E', f"v_rcp_f32 v{vRCS[qb]}, v{vL[1]+4*qb}") for qb in range(3)], pf, pf + 6)
    for x in rc: x.hi = pf + 10
    st.add(rc)
    mem = []
    def addmem(its, lo, hi, after=None):
        chain(its, lo, hi)
        for x in its: x.hi = 10 ** 9
        if after: its[0].after.append(after)
        if mem: its[0].after.append((mem[-1], 1))
        mem.extend(its); st.add(its)
    wit = {}
    for k, G in enumerate(PRE31):
        addmem(dma_wo(G), 4 + 10 * k, 12 + 10 * k, (bar0, 1)); wit[G] = mem[-1]
        for x in mem: x.hi = pf + 9
    prev = rc[-1]; conv = {}
    for sx in range(6):
        stv = o_store(sx)
        for qb in range(3):
            its = o_conv(sx, qb)
            lo = min(apv[2 * sx + 1]['first'] + 6, Z + 2)
            if sx < NEO:
                k = sx * 3 + qb; a = apv[1]['first'] + 6
                dl = max(lo, a + (Z - 3 - a) * (k + 1) // (3 * NEO))
            else: dl = Z + 30 * sx - 3
            chain(its, lo, dl, 0)
            for x in its: x.dense = True; x.target = lo
            its[0].after.append((prev, 1 if prev.kind != 'V' else 0)); prev = its[-1]; st.add(its)
            conv[sx, qb] = its[-1]
            if sx < NEO:
                o = ([stv[0]] if qb == 0 else []) + [stv[1 + qb]]
                o[-1].after.append((its[-1], 1)); addmem(o, lo, dl + 1)
                for x in o: x.hi = dl + 1
                o[-1].target = dl + 1
    st.add(chain(seta(vWA[2], goff(6)) + seta(vWA[3], goff(9)) + [V(f"v_mov_b32 v{vTK2}, s{sTK2}"), V(f"v_mov_b32 v{vTK2+1}, s{sTK2+1}"),
        S(f"s_cmp_ge_u32 s{sJ}, 4\ns_cselect_b32 s{sTMP+2}, 8, 0"), S(f"s_cmp_eq_u32 s{sJ}, 0\ns_cselect_b32 s{sTMP+2}, -8, s{sTMP+2}" if TRI else f"s_mov_b32 s{sTMP+2}, 8"),
        V(f"v_and_b32 v{vF2R}, 8, v0"), V(f"v_mul_i32_i24 v{vF2R}, s{sTMP+2}, v{vF2R}"), V(f"v_add_u32 v{vF2R}, v{vF2R}, v{vF2}")], Z + 200, Z + 300))
    bars = {0: bar0}
    for k, tl in enumerate(tiles):
        g0 = tl[0]['first'] - 3 * T
        last = tiles[k + 1][0]['first'] - 3 * T - (RGAP if k < 4 else 0) if k + 1 < len(tiles) else st.n() - 14
        if k == 0: rdl = st.reads(U[0], g0 + 1, last, [(vrd[-1], 0), (sa0[1], 1)])
        else:
            bars[k] = st.barrier(g0, [f"WAITVM G{k if k < NL else 11}"] + (["s_waitcnt lgkmcnt(0)"] if k <= 4 else ["s_nop 0"]) + stp(f"G{k}"))
            rdl = st.reads(tl, g0 + 1, last, [(bars[k], 0), (rdl[-1], 0)])
        if k + 1 < NG: st.add(chain(seta(vWA[(k + 1) & 1], goff(k + 1)), g0 + 20, g0 + 50))
    pv = {0: 2, 1: 4, 2: 8}
    for pos, act in OCH:
        k, n = act[0], int(act[1:]); pos += Z
        if k == 'W':
            if n >= NEXTG and n not in wit:
                addmem(dma_wo(n), pos, pos + SPW, (bars[0 if n < 7 else max(n - 7, 1)], 1)); wit[n] = mem[-1]
        elif k == 'F': addmem([Item('M', [I(f"WAITVM OST{n}")] + stp(f"F{n}") + set_flag(vF1, sHL, 32 * n, LOCAL))], pos, pos)
        elif k == 'P': addmem([Item('M', f"buffer_load_dwordx2 v[{pv[n]}:{pv[n]+1}], v{vF1}, {sr(sWS)}, 0 offen offset:{32*n + (128 if LOCAL else 0)} sc1")], pos, pos)
        elif k == 'C':
            addmem([V(f"v_cmp_ne_u64 vcc, s[{sTK1}:{sTK1+1}], v[{pv[n]}:{pv[n]+1}]")], pos, pos)
            addmem([Item('S', stp(f"C{n}a") + L(f"s_cbranch_vccnz L_spin{n}\nL_spinr{n}:") + stp(f"C{n}b"))], pos + 3, pos + 3)
            spin(n, vF1, sTK1, 32 * n)
        elif k == 'B': addmem([x for G in range(3 + 3 * n, 6 + 3 * n) for x in load_g(G)], pos, pos + 40)
        elif k == 'b': addmem(load_g(n), pos, pos + SPW, (conv[5, 2], 1) if n >= 6 else (conv[0, 2], 1))
        elif k == 'S':
            assert n >= NEO
            o = o_store(n)
            for qb in range(3): o[1 + qb].after.append((conv[n, qb], 1))
            addmem(o, pos, pos + 6)
    def gran(m, qb, k):
        t = vQ + 12 * (k % 4); j = m * 3 + qb
        its = [V(f"v_cvt_pk_bf16_f32 v{t+8+r}, v{cacc(2*m+(r>>1),qb)+2*(r&1)}, v{cacc(2*m+(r>>1),qb)+2*(r&1)+1}") for r in range(4)]
        if j % 4 == 0: its.append(S(f"s_add_u32 s{sTMP+1}, s{sT}, {j*1024}"))
        so = sTMP + 1; post = []
        if OWN:
            so = sTMP + 3
            if OWN == 2:
                its.append(S(f"s_cmp_eq_u32 s{sJ}, {j&7}\ns_cselect_b32 s{so}, {OOB}, s{sTMP+1}\ns_cselect_b64 s[96:97], -1, 0"))
                post = [V(f"v_cndmask_b32 v{40+8*(j>>3)+4*h+r}, v{40+8*(j>>3)+4*h+r}, v{cacc(2*m+h,qb)+r}, s[96:97]") for h in range(2) for r in range(4)]
            else:
                its.append(S(f"s_cmp_eq_u32 s{sJ}, {j&7}\ns_cselect_b32 s{so}, {OOB}, s{sTMP+1}\ns_cbranch_scc1 L_own{j}\nL_ownr{j}:"))
                OUTL.append(f"L_own{j}:\n" + "".join(f"v_mov_b32 v{40+8*(j>>3)+4*h+r}, v{cacc(2*m+h,qb)+r}\n" for h in range(2) for r in range(4)) + f"s_branch L_ownr{j}\n")
        its.append(Item('M', f"buffer_store_dwordx4 {vr(t+8)}, v{vPT}, {sr(sWS)}, s{so} offen offset:{(j%4)*1024} sc1", tag="PA" if m < 3 else f"P{m}"))
        if m == 4 and post: return its, [S(f"s_cmp_eq_u32 s{sJ}, {j&7}\ns_cselect_b64 s[96:97], -1, 0")] + post
        return its + post
    k = 0
    for m in range(4):
        its = []
        for qb in range(3): its += gran(m, qb, k); k += 1
        lo = F[2 * m + 2][0]['first'] + 4
        fa = [Item('M', [I("WAITVM PA")] + stp('FA') + set_flag(vF2, sHG, 0, vt=vTK2))]
        fp = min(F[6][0]['first'] + FAPOS, st.n() - 1)
        if m == 3 and fp <= lo: addmem(fa, fp, fp)
        addmem(its, lo, lo + (14 if OWN != 2 else 20))
        if m == 3 and fp > lo: addmem(fa, fp, fp)
    p.cur += st.emit(name="oproj")
    for it in mem:
        if it.kind == 'M' and it.ins[0].op == 'buffer_load_dwordx4' and it.ins[0].dst:
            d = set(it.ins[0].dst)
            assert it.gap < min(g for g, (h, m) in enumerate(st.mf) if g >= Z and d & set(m.srcAB)), it.ins[0].text
    for n, it in wit.items(): assert it.gap < bars[min(n, NL)].gap - 1, n
    assert set(wit) | set(range(NEXTG)) == set(range(12))
    p.cur += stp('E')
    if OWN == 2:
        gs = [gran(4, qb, k + qb) for qb in range(3)]
        for a, b in gs: flat(p, a)
        return [x for a, b in gs for x in b]
    for qb in range(3): flat(p, gran(4, qb, k)); k += 1
    return []

def final_reduce(p, rest):
    sDONE, sNEW, sO2, sOWNB, sOOB = sKK, sWR, sRD, sWOFF, sXOFF
    ld = f"buffer_load_dwordx2 v[{vFLV}:{vFLV+1}], v{vF2R}, {sr(sWS)}, 0 offen sc1"
    if TRI: p("WAITVM P3"); p.cur += set_flag(vF2, sHG, 64, vt=vTK2)
    p(f"""
{ld}
s_lshl_b32 s{sTMP}, s{sJ}, 10
v_add_u32 v2, s{sTMP}, v{vPT}
s_cmp_eq_u32 s{sJ}, 7
s_cselect_b32 s{sO2}, {OOB}, 0
s_cselect_b32 s{sDONE}, 0xff00, 0
s_mov_b32 s{sT}, 0xffff0000
s_lshl_b32 s{sOWNB}, 0x101, s{sHG}
s_mov_b32 s{sOOB}, {OOB}
s_mov_b32 s{sTMP}, 0x20000
""")
    flat(p, rest)
    p("WAITVM P4")
    p.cur += set_flag(vF2, sHG, 128, vt=vTK2); p.cur += stp('ACK')
    p("s_waitcnt vmcnt(1)\ns_branch L_fin2")
    p.flush()
    t = f"""L_fin:
{ld}
s_waitcnt vmcnt(0)
L_fin2:
v_cmp_eq_u64 vcc, s[{sTK2}:{sTK2+1}], v[{vFLV}:{vFLV+1}]
s_nop 4
s_and_b32 s{sNEW}, vcc_lo, 0xffff
{"s_or_b32 s%d, s%d, s%d" % (sNEW, sNEW, sOWNB) if OWN else ""}
s_andn2_b32 s{sNEW}, s{sNEW}, s{sDONE}
s_or_b32 s{sDONE}, s{sDONE}, s{sNEW}
"""
    for g in range(16):
        t += f"""s_bitcmp0_b32 s{sNEW}, {g}
s_cbranch_scc1 L_fs{g}
s_cmp_eq_u32 s{sHG}, {g%8 if OWN else 99}
s_cselect_b32 s{sTMP+1}, s{sOOB}, {(g%8)*15360 + (g//8)*8192}
buffer_load_dwordx4 {vr(56+g*4)}, v2, {sr(sWS)}, s{sTMP+1} offen sc1
L_fs{g}:
"""
    t += f"""s_cmp_eq_u32 s{sDONE}, 0xffff
s_cbranch_scc1 L_find
s_sub_u32 s{sTMP}, s{sTMP}, 1
s_cmp_lg_u32 s{sTMP}, 0
s_cbranch_scc1 L_fin
L_find:"""
    p.raw(t)
    p.cur += stp('P2')
    for i in range(2):
        p(f"""
s_add_u32 s{sTMP}, s{sJ}, {8*i}
s_mul_i32 s{sTMP+1}, s{sTMP}, 11
s_lshr_b32 s{sTMP+1}, s{sTMP+1}, 5
s_mul_i32 s{sTMP+3}, s{sTMP+1}, 3
s_sub_u32 s{sTMP+3}, s{sTMP}, s{sTMP+3}
s_mul_i32 s{sTMP+3}, s{sTMP+3}, {16*1280}
s_lshl_b32 s{sTMP+1}, s{sTMP+1}, 6
s_add_u32 s{sTMP+4+i}, s{sTMP+1}, s{sTMP+3}
""")
    p(f"s_add_u32 s{sTMP+5}, s{sTMP+5}, s{sO2}\ns_and_b32 s{sNEW}, s{sNEW}, 0xff\ns_cbranch_scc0 L_fa\ns_waitcnt vmcnt(0)\nL_fa:")
    for i in range(2):
        acc = 40 + i * 8
        if i: p("s_waitcnt vmcnt(1)")
        for g in range(8):
            b = 56 + (i * 8 + g) * 4
            for r in range(4):
                d = acc if g == 0 and not OWN else 120
                p(f"v_lshlrev_b32 v{d+2*r}, 16, v{b+r}\nv_and_b32 v{d+1+2*r}, s{sT}, v{b+r}")
            if g or OWN:
                for r in range(8): p(f"v_add_f32 v{acc+r}, v{acc+r}, v{120+r}")
        o = 132 + 4 * i
        for r in range(4): p(f"v_cvt_pk_bf16_f32 v{o+r}, v{acc+2*r}, v{acc+2*r+1}")
        p(f"v_permlane16_swap_b32 v{o}, v{o+2}\nv_permlane16_swap_b32 v{o+1}, v{o+3}")
        p(f"buffer_store_dwordx4 {vr(o)}, v{vOUT}, {sr(sOUT)}, s{sTMP+4+i} offen")
    bump_epoch(p, vF1, sTK1, sHL, 96)
    bump_epoch(p, vF2, sTK2, sHG, 192)

def store_stamps(p):
    if not ST: return
    p("s_waitcnt vmcnt(0)"); p.cur += stp('end')
    lab = p.newlabel("L_nost")
    if AMP:
        a, b = sSTAMP + 2 * ST[AMP[0]], sSTAMP + 2 * ST[AMP[1]]; e = sSTAMP + 2 * ST['end']
        p(f"""s_waitcnt lgkmcnt(0)
s_cmp_lg_u32 s2, 100
s_cbranch_scc1 {lab}
s_sub_u32 s{sTMP}, s{b}, s{a}
s_lshl_b32 s{sTMP}, s{sTMP}, 3
s_min_u32 s{sTMP}, s{sTMP}, 100000
L_amp:
s_memrealtime s[96:97]
s_waitcnt lgkmcnt(0)
s_sub_u32 s{sTMP+1}, s96, s{e}
s_cmp_lt_u32 s{sTMP+1}, s{sTMP}
s_cbranch_scc1 L_amp
{lab}:""")
        return
    if DBGST is not None:
        p("s_load_dwordx2 s[96:97], s[0:1], 48\ns_waitcnt lgkmcnt(0)"); srd(p, sK, 96, 256)
        p(f"s_cmp_lg_u32 s{sWAVE}, 0\ns_cbranch_scc1 {lab}\ns_cmp_lg_u32 s2, {DBGST}\ns_cbranch_scc1 {lab}")
        p("s_mov_b64 exec, 1\nv_mov_b32 v2, 0")
        for i in range(NSTAMP):
            p(f"s_sub_u32 s{sTMP}, s{sSTAMP+2*i}, s{sSTAMP}\nv_mov_b32 v4, s{sTMP}\nbuffer_store_dword v4, v2, {sr(sK)}, 0 offen offset:{4*i}\ns_nop 1")
        p(f"s_waitcnt vmcnt(0)\n{lab}:")
        return
    p(f"s_add_u32 s96, s90, {STAMP_OFF}\ns_addc_u32 s97, s91, 0"); srd(p, sK, 96, 65536)
    p("s_waitcnt lgkmcnt(0)")
    p(f"s_cmp_lg_u32 s{sWAVE}, 0\ns_cbranch_scc1 {lab}")
    p(f"s_lshl_b32 s{sTMP}, s2, 7\nv_mov_b32 v2, s{sTMP}\ns_mov_b64 exec, 1")
    for i, r in enumerate([sSTAMP + 2 * i for i in range(NSTAMP)] + list(CST.values())):
        p(f"v_mov_b32 v4, s{r}\nv_mov_b32 v5, s{r+1}\nbuffer_store_dwordx2 v[4:5], v2, {sr(sK)}, 0 offen offset:{8*i}\ns_nop 1")
    p(f"s_waitcnt vmcnt(0)\n{lab}:")

def kernel(p):
    name = NAME + "_kernel"
    p.raw(f".globl {name}\n.p2align 8\n.type {name},@function\n{name}:")
    p("s_cmp_ge_u32 s2, 256\ns_cbranch_scc1 L_end")
    p.cur += stp('start')
    p(f"""
s_load_dwordx8 s[76:83], s[0:1], 0
s_load_dwordx8 s[84:91], s[0:1], 32
v_lshrrev_b32 v1, 6, v0
v_and_b32 v0, 63, v0
v_readfirstlane_b32 s{sWAVE}, v1
""")
    if CODEPF:
        p(f"""
s_getpc_b64 s[98:99]
s_lshr_b32 s{sTMP+1}, s2, 3
s_mul_i32 s{sTMP+1}, s{sTMP+1}, {13*128}
v_mul_u32_u24 v252, 3, v1
v_add_lshl_u32 v252, v252, v0, 7
v_add_u32 v252, s{sTMP+1}, v252
v_mov_b32 v253, s99
v_add_co_u32 v252, vcc, s98, v252
v_addc_co_u32 v253, vcc, 0, v253, vcc
s_mov_b64 exec, 15
global_load_dword v{vDUM}, v[252:253], off
s_mov_b64 exec, -1
""", "dummy")
    tab = sum((((k % PH) * (10 - COMMON) + PH // 2) // PH) << (4 * k) for k in range(11))
    p(f"""
s_and_b32 s{sHG}, s2, 7
s_lshr_b32 s{sB}, s2, 5
s_bfe_u32 s{sHL}, s2, 0x20003
s_mul_i32 s{sM0W}, s{sWAVE}, 3072
s_add_u32 s{sTMP+1}, s{sB}, s{sHL}
s_lshl_b32 s{sTMP+1}, s{sTMP+1}, 2
s_mov_b32 s96, {tab & 0xffffffff}
s_mov_b32 s97, {tab >> 32}
s_lshr_b64 s[96:97], s[96:97], s{sTMP+1}
s_and_b32 s{sTMP+1}, s96, 15
s_lshl_b32 s{sXOFF}, s{sTMP+1}, 7
s_mul_i32 s{sWOFF}, s{sTMP+1}, {64*12288}
""")
    if COMMON: p(f"s_mov_b32 s{sRD}, s{sTMP+1}\ns_mov_b32 s{sXOFF}, {(10-COMMON)*128}\ns_mov_b32 s{sWOFF}, {(10-COMMON)*64*12288}")
    if KSTAG: p(f"s_mul_i32 s{sKK}, s2, 11\ns_add_u32 s{sKK}, s{sKK}, s{sB}\ns_and_b32 s{sKK}, s{sKK}, 31\ns_mul_i32 s{sKK}, s{sKK}, {SLOT}")
    else: p(f"s_mov_b32 s{sKK}, 0")
    p(f"s_mov_b32 s{sKOFF}, s{sKK}")
    setup_first(p)
    if not XFIRST:
        p.cur += stp('s0')
        srd(p, sX, 76, 1536 * 1280); p.cur += stp('s1')
    srd(p, sWq, 82, 640 * 12288)
    pool = Pool(12)
    tail = front(p, pool)
    if not QONLY:
        tail, vm31 = attention(p, pool, tail)
        rest = oproj(p, pool, tail, vm31)
        final_reduce(p, rest)
    store_stamps(p)
    p("L_end:\ns_endpgm")
    for t in OUTL: p.raw(t)
    for tr, ret, cur in TRAMPS: p.raw(f"{tr}:\ns_call_b64 s[98:99], L_rare{cur}\ns_branch {ret}")
    rare_path(p, "L_rare0", 0)
    rare_path(p, "L_rare1", 1)
    p.raw(".fill 64, 4, 0xbf800000" if not QONLY else ".fill 12288, 4, 0xbf800000")
    return kernel_desc(name, vgpr=512, accum=256)

def build(path):
    p = Prog()
    p.raw("""; GQA block (q-proj, attention over cached K/V, out-proj) for gfx950: one fused kernel
; @launch grid=(256,1,1) block=(256,1,1) lds=163840
.amdgcn_target "amdgcn-amd-amdhsa--gfx950"
.text""")
    d = kernel(p)
    p.raw('.section .rodata,"a"\n.p2align 6\n' + d)
    txt = p.text()
    if NODMA:
        txt = "\n".join(l for l in txt.split("\n") if not (l.startswith("buffer_load_dwordx4")))
        txt = txt.replace("s_cbranch_vccnz L_tramp", "s_cbranch_execz L_tramp")
    if ST: txt = txt.replace(".amdgcn_target", "; stamps " + repr(ST) + "\n.amdgcn_target", 1)
    open(path, "w").write(txt)
    if VERB:
        import collections
        print(collections.Counter(w.split(':')[0] for w in WARN))
        if VERB > 1:
            for w in WARN: print("WARN", w)
        ls = txt.split("\n")
        marks = [k for k, l in enumerate(ls) if l.endswith(":") and not l.startswith("L_ret")]
        for a, b in zip(marks, marks[1:] + [len(ls)]):
            seg = [l for l in ls[a:b] if l and not l.startswith(".") and not l.startswith(" ")]
            c, nm = estimate(seg)
            if nm: print(f"{ls[a][:28]:28s} est {c:6d} cyc, mfma {nm:4d} ({16*nm})")

STD = {'start': 0, 'X0': 1, 'u8': 2, 'u16': 3, 'E': 4, 'Qend': 5, 'Lend': 6, 'Aend': 7, 'C0b': 8, 'G6': 9, 'ACK': 10, 'end': 11}
if __name__ == "__main__":
    for a in sys.argv[2:]:
        k, v = a.split("=", 1)
        globals()[k] = eval(v)
    build(sys.argv[1])
```

```python
import sys, math, struct
from sched import *
from asmlib import kernel_desc

NAME = "standalone__gqa_block_cached__near_ridge"
SLOT = 12288
GSZ = 20480
NT = "nt"
CODEPF = True
PH = 3
VMLIM = 2
DMAHI = 22
SNAKE = True
KSTAG = True
NDB = 4
NBM = 3
NST = 4
NEO = 2
SCHED = 10
KVSPAN = 150
PLAN = {27: ['kv', 'r', 'l'], 28: ['kv', 0, 1], 29: [2, 3], 30: [4]}
OCH = [(0,'W6'),(50,'S2'),(62,'F0'),(76,'S3'),(90,'W7'),(114,'P0'),(132,'C0'),(136,'b3'),(160,'F1'),(164,'b4'),(188,'S4'),(196,'S5'),(210,'b5'),(234,'P1'),(236,'W8'),(258,'C1'),
       (262,'b6'),(284,'F2'),(288,'b7'),(310,'W9'),(332,'P2'),(334,'b8'),(356,'C2'),(360,'b9'),(382,'W10'),(404,'b10'),(426,'W11'),(448,'b11')]
LATESET = True
KG = 32
TRI = False
ROT = True
LATEHI = 432
COMMON = 0
WHI = 62
LOOPS = [(9, (5,), 62), (27, (5,), 54)]
SPW = 20
OWN = 1
WIN = (5,)
PRE31 = (5,)
SP30 = 9
XPF = 0
XFIRST = True
AMP = None
RAMP = ()
D0 = 3
PWQ = None
VMTAIL = None
LOCAL = True
NLOC = 4
NBA = 2
FAPOS = 74
GS = 6
PART_OFF = 20 << 20
FLAG_OFF = 40 << 20
WS_SIZE = 41 << 20
STAMP_OFF = 64 << 20
ST = {}
NSTAMP = 12
DBGST = None
TRACE = 0
NODMA = 0
QONLY = 0
VERB = 0
OOB = 0x7f000000

def f32(x): return "0x%08x" % struct.unpack("<I", struct.pack("<f", x))[0]
def vr(b, n=4): return f"v[{b}:{b+n-1}]"
def ar(b, n=4): return f"a[{b}:{b+n-1}]"
def sr(b, n=4): return f"s[{b}:{b+n-1}]"
MF = "v_mfma_f32_16x16x32_bf16"
def srd(p, d, lo, nbytes):
    p(f"s_mov_b32 s{d}, s{lo}\ns_and_b32 s{d+1}, s{lo+1}, 0xffff\ns_mov_b32 s{d+2}, {nbytes}\ns_mov_b32 s{d+3}, 0x00020000")

sLTHR = 3
sK, sV, sWq, sX, sWS, sWo, sOUT = 4, 8, 12, 16, 20, 24, 28
sWAVE, sB, sSC, sHG, sHL = 32, 33, 34, 35, 36
sM0W, sKOFF, sWR, sRD, sT, sKK = 37, 38, 39, 40, 41, 42
sWOFF, sXOFF, sWW = 43, 44, 45
sTMP = 46
sSTAMP = 52
sHI = 76
sTK1, sTK2 = 92, 94
sJ = 33
TOKC = (0x9e3779b9, 0x7f4a7c15)
F2BASE = 256 * 256
CST = {'Qend': 80, 'Lend': 82, 'C0b': 88, 'ACK': 100}
def stp(name):
    r = []
    if name in ST: r.append(I(f"s_memrealtime s[{sSTAMP+2*ST[name]}:{sSTAMP+2*ST[name]+1}]"))
    if ST and name in CST: r.append(I(f"s_memtime s[{CST[name]}:{CST[name]+1}]"))
    return r

vKD, vVD, vWD = 2, 5, 8
vXD = 11
vWOD, vPWO = 11, 16
vKL, vVL = 17, 19
vKA, vVA = 23, 25
vXR = 29
vOL, vPT = 30, 31
vT0 = 31
vDUM = 248
vF1, vF2 = 250, 251
vVB = 252
vWOL, vOUT = 252, 254
vACC = 32; vQ = 176
vS = (32, 56); vP = (80, 92); vNM = 104; vE = 120; vCK = 130; vR = 132; vL = (144, 156)
NE = 5
vB = 32; vRC = 136; vTK = 6; vTK2 = 18; vFLV = 28
vWA = (23, 20, 25, 16)
vRCS = (1, 10, 249)
vF2R = 22
vC = 56
aO = 0; aPOOL = 144; aC = 0; aX = 0; NXB = 6; aONE = 240; aPARK = 244
PARK = [vWOD + j for j in range(5)] + [vPWO, vWOL, vWOL + 1, vOL, vPT, vOUT]
def qfrag(qb, s): return vQ + (qb * 6 + s) * 4
def qacc(db, qb): return vACC + (db * 3 + qb) * 4
def oacc(db, qb): return aO + (db * 3 + qb) * 4
def cacc(nb, qb): return vC + (nb * 3 + qb) * 4
def sreg(buf, qb, kb): return vS[buf] + (qb * 2 + kb) * 4
def bfrag(u, qb):
    if u < 6: return vr(vQ + (u * 3 + qb) * 4)
    k = (u - 6) * 3 + qb
    if k < 16: return ar(192 + k * 4)
    k -= 16
    return ar(k * 4) if k < 36 else vr(32 + (k - 36) * 4)

LAYOUT = 2
def xs0(): return 5 if LAYOUT == 0 else 4
def xpair(c): return 5 + 2 * (c % 2) if LAYOUT == 0 else 6 - 2 * (c % 2)
WRING = [9, 10, 11, 1, 12]
def wslot(u):
    if LAYOUT == 0: return WRING[u % 5]
    return [1, 8, 9, 10, 11, 12][u % 6] if u < 14 else u - 8 if u < 16 else u - 7
def kvslot(kind, i): return 2 * (i % 6) if kind == 'K' else 2 * ((i + 1) % 6) + 1
def gic(G): return (0, G) if G < 3 else (1 + (G - 3) % 3, (G - 3) // 3)
def goff(G): return ((G + 4) % 8) * GSZ
TRAMPS = []; OUTL = []

def tile_rows(p, t, j):
    p(f"""
v_add_u32 v{t+2}, {8*j}, v{t}
v_mul_u32_u24 v{t+3}, 11, v{t+2}
v_lshrrev_b32 v{t+3}, 5, v{t+3}
v_mul_u32_u24 v{t+4}, 3, v{t+3}
v_sub_u32 v{t+4}, v{t+2}, v{t+4}
v_add_u32 v{t+3}, s{sTMP}, v{t+3}
v_and_b32 v{t+5}, 6, v{t+3}
v_xor_b32 v{t+5}, v{t+5}, v{t+1}
v_lshlrev_b32 v{t+5}, 4, v{t+5}
""")
def setup_first(p):
    t = 240
    p(f"""
v_lshrrev_b32 v{t}, 3, v0
v_and_b32 v{t+1}, 7, v0
s_lshl_b32 s{sTMP}, s{sWAVE}, 3
s_lshl_b32 s{sTMP+1}, s{sB}, 2
s_add_u32 s{sTMP+1}, s{sTMP+1}, s{sWAVE}
s_mul_i32 s{sTMP+4}, s{sTMP+1}, {48*1280}
s_lshl_b32 s{sTMP+2}, s{sHG}, 2
s_add_u32 s{sTMP+5}, s{sTMP+2}, s{sHL}
s_mul_i32 s{sTMP+2}, s{sTMP+5}, 384
""")
    for half in range(2):
        p(f"""
v_lshrrev_b32 v{t+2}, 1, v{t}
v_add_u32 v{t+2}, {4*half}, v{t+2}
v_xor_b32 v{t+2}, v{t+2}, v{t+1}
v_lshlrev_b32 v{t+2}, 4, v{t+2}
v_add_u32 v{t+3}, {8*half}, v{t}
v_mul_u32_u24 v{t+3}, 1280, v{t+3}
v_add3_u32 v{vXD+half}, v{t+2}, v{t+3}, s{sTMP+4}
v_add_u32 v{vXD+2+half}, {20480-1024}, v{vXD+half}
v_add_u32 v{vXD+4+half}, {2*(20480-1024)}, v{vXD+half}
""")
    if XFIRST:
        p.cur += stp('s0')
        srd(p, sX, 76, 1536 * 1280); p.cur += stp('s1')
        xpf = f"""s_lshl_b32 s96, s2, 2
s_add_u32 s96, s96, s{sWAVE}
s_mul_i32 s96, s96, 1920
v_lshlrev_b32 v{t+2}, 7, v0
s_mov_b64 exec, 0x7fff
buffer_load_dword v{vDUM}, v{t+2}, {sr(sX)}, s96 offen
s_mov_b64 exec, -1"""
        if XPF == 1: p(xpf, "dummy")
        flat(p, issue('X0'))
        if XPF == 2: p(xpf, "dummy")
    for j in range(3):
        tile_rows(p, t, j)
        p(f"""
v_bfe_u32 v{t+6}, v{t+3}, 2, 2
v_lshlrev_b32 v{t+6}, 3, v{t+6}
v_lshrrev_b32 v{t+7}, 4, v{t+3}
v_lshl_add_u32 v{t+6}, v{t+7}, 2, v{t+6}
v_and_b32 v{t+7}, 3, v{t+3}
v_add_u32 v{t+6}, v{t+6}, v{t+7}
v_mul_u32_u24 v{t+6}, 12288, v{t+6}
v_lshl_add_u32 v{t+6}, v{t+4}, 7, v{t+6}
v_add3_u32 v{t+6}, v{t+6}, v{t+5}, s{sTMP+2}
v_subrev_u32 v{vWD+j}, {1024*j}, v{t+6}
""")
def setup_reads(p):
    t = 232
    p(f"""
v_and_b32 v{t}, 15, v0
v_lshrrev_b32 v{t+1}, 4, v0
v_lshrrev_b32 v{t+2}, 1, v{t}
v_xor_b32 v{t+2}, v{t+2}, v{t+1}
v_lshlrev_b32 v{t+5}, 4, v{t+2}
v_and_b32 v{t+3}, 7, v{t}
v_lshl_add_u32 v{t+5}, v{t+3}, 7, v{t+5}
v_lshrrev_b32 v{t+3}, 3, v{t}
v_mul_u32_u24 v{t+3}, 12288, v{t+3}
v_add3_u32 v{t+5}, v{t+5}, v{t+3}, s{sM0W}
v_add_u32 v{vXR}, {xs0()*SLOT}, v{t+5}
v_xor_b32 v{vXR+1}, 64, v{vXR}
v_bfe_u32 v{t+3}, v{t+2}, 1, 1
v_and_b32 v{t+4}, 1, v{t+2}
v_lshl_add_u32 v{t+3}, v{t+4}, 1, v{t+3}
v_and_b32 v{t+4}, 4, v{t+2}
v_or_b32 v{t+3}, v{t+3}, v{t+4}
v_lshlrev_b32 v{t+3}, 4, v{t+3}
v_mul_u32_u24 v{t+4}, 384, v{t}
v_add_u32 v{vKL}, v{t+3}, v{t+4}
v_xor_b32 v{vKL+1}, 64, v{vKL}
v_mov_b32 v{vKA}, v{vKL}
v_mov_b32 v{vKA+1}, v{vKL+1}
v_lshrrev_b32 v{t+2}, 2, v0
v_mul_u32_u24 v{t+3}, 384, v{t+2}
v_bfe_u32 v{t+4}, v{t+2}, 1, 2
v_lshl_add_u32 v{t+3}, v{t+4}, 5, v{t+3}
v_and_b32 v{t+4}, 3, v0
v_lshl_add_u32 v{vVL}, v{t+4}, 3, v{t+3}
v_xor_b32 v{vVL+1}, 32, v{vVL}
v_xor_b32 v{vVL+2}, 64, v{vVL}
v_xor_b32 v{vVL+3}, 96, v{vVL}
""")
def setup_rest(p):
    t = 240
    p(f"""
s_lshl_b32 s{sTMP+1}, s{sB}, 3
s_add_u32 s{sTMP+1}, s{sTMP+1}, s{sHG}
s_lshl_b32 s96, s{sTMP+1}, 2
s_add_u32 s{sTMP+1}, s96, s{sWAVE}
s_lshl_b32 s{sTMP+1}, s{sTMP+1}, 8
s_add_u32 s{sTMP+1}, s{sTMP+1}, {FLAG_OFF}
s_lshl_b32 s{sTMP+2}, s{sB}, 2
s_add_u32 s{sTMP+2}, s{sTMP+2}, s{sHL}
s_lshl_b32 s{sTMP+2}, s{sTMP+2}, 2
s_add_u32 s97, s{sTMP+2}, s{sWAVE}
s_lshl_b32 s{sTMP+2}, s97, 8
s_add_u32 s{sTMP+2}, s{sTMP+2}, {FLAG_OFF + F2BASE}
v_and_b32 v{t+2}, 3, v0
v_lshl_add_u32 v{vF1}, v{t+2}, 3, s{sTMP+1}
v_and_b32 v{t+2}, 15, v0
v_lshl_add_u32 v{vF2}, v{t+2}, 3, s{sTMP+2}
s_add_u32 s{sTMP+1}, s{sTMP+1}, 96
s_add_u32 s{sTMP+2}, s{sTMP+2}, 192
s_mul_i32 s{sJ}, s97, {3 if ROT else 0}
s_add_u32 s{sJ}, s{sJ}, s{sHG}
s_and_b32 s{sJ}, s{sJ}, 7
s_load_dwordx2 s[{sTK1}:{sTK1+1}], s[90:91], s{sTMP+1}
s_load_dwordx2 s[{sTK2}:{sTK2+1}], s[90:91], s{sTMP+2}
s_add_u32 s{sTMP+1}, s96, s{sHL}
s_mul_i32 s{sTMP+1}, s{sTMP+1}, 393216
s_add_u32 s78, s78, s{sTMP+1}
s_addc_u32 s79, s79, 0
s_add_u32 s80, s80, s{sTMP+1}
s_addc_u32 s81, s81, 0
""")
    LG = KG.bit_length() - 1
    srd(p, sK, 78, 393216); srd(p, sV, 80, 393216)
    srd(p, sWS, 90, WS_SIZE); srd(p, sWo, 84, 6144 * 1280); srd(p, sOUT, 86, 1536 * 1280)
    for j in range(3):
        tile_rows(p, t, j)
        p(f"""
v_lshrrev_b32 v{t+7}, {LG}, v{t+3}
v_lshlrev_b32 v{t+7}, {LG+5}, v{t+7}
v_and_b32 v{t+6}, {KG-1}, v{t+3}
v_add_u32 v{t+7}, v{t+7}, v{t+6}
v_mul_u32_u24 v{t+7}, 384, v{t+7}
v_lshl_add_u32 v{t+7}, v{t+4}, 7, v{t+7}
v_subrev_u32 v{t+7}, {1024*j}, v{t+7}
v_add_u32 v{vVD+j}, v{t+7}, v{t+5}
v_bfe_u32 v{t+5}, v{t+3}, 2, 1
v_and_b32 v{t+6}, 2, v{t+3}
v_or_b32 v{t+5}, v{t+5}, v{t+6}
v_lshrrev_b32 v{t+6}, 1, v{t+3}
v_and_b32 v{t+6}, 4, v{t+6}
v_or_b32 v{t+5}, v{t+5}, v{t+6}
v_xor_b32 v{t+5}, v{t+5}, v{t+1}
v_lshl_add_u32 v{vKD+j}, v{t+5}, 4, v{t+7}
""")
    t = 232
    park = lambda r, v: p(f"v_accvgpr_write_b32 a{aPARK + PARK.index(r)}, v{v}")
    u = 224
    p(f"""
s_mul_i32 s{sTMP+1}, s{sHG}, {768*1280}
s_mul_i32 s{sTMP+2}, s{sHL}, 320
s_mul_i32 s{sTMP+3}, s{sWAVE}, {16*1280}
s_add_u32 s{sTMP+3}, s{sTMP+3}, s{sTMP+1}
s_add_u32 s{sTMP+3}, s{sTMP+3}, s{sTMP+2}
""")
    for j in range(5):
        p(f"""
v_add_u32 v{u}, {64*j}, v0
v_mul_u32_u24 v{u+1}, 205, v{u}
v_lshrrev_b32 v{u+1}, 12, v{u+1}
v_mul_u32_u24 v{u+2}, 20, v{u+1}
v_sub_u32 v{u+2}, v{u}, v{u+2}
v_lshrrev_b32 v{u+3}, 1, v{u+1}
v_and_b32 v{u+3}, 2, v{u+3}
v_xor_b32 v{u+2}, v{u+2}, v{u+3}
v_mul_u32_u24 v{u+1}, 1280, v{u+1}
v_lshl_add_u32 v{u+1}, v{u+2}, 4, v{u+1}
v_add_u32 v{u+1}, s{sTMP+3}, v{u+1}
v_subrev_u32 v{u+1}, {1024*(j%4)}, v{u+1}
""")
        park(vWOD + j, u + 1)
    p(f"""
s_lshr_b32 s{sTMP+3}, s2, 3
s_lshl_b32 s{sTMP+3}, s{sTMP+3}, 2
s_add_u32 s{sTMP+3}, s{sTMP+3}, s{sWAVE}
s_mul_i32 s{sTMP+3}, s{sTMP+3}, {60*128}
s_add_u32 s{sTMP+3}, s{sTMP+3}, s{sTMP+1}
v_lshlrev_b32 v{u}, 7, v0
v_add_u32 v{u}, s{sTMP+3}, v{u}
v_cmp_gt_u32 vcc, 60, v0
v_mov_b32 v{u+1}, {OOB}
v_cndmask_b32 v{u}, v{u+1}, v{u}, vcc
""")
    park(vPWO, u)
    p(f"""
v_mul_u32_u24 v{u}, 320, v{t+2}
v_lshl_add_u32 v{u}, v{t+4}, 3, v{u}
v_and_b32 v{u+1}, 16, v0
v_lshlrev_b32 v{u+1}, 1, v{u+1}
v_add_u32 v{u+2}, v{u}, v{u+1}
v_sub_u32 v{u+3}, v{u}, v{u+1}
""")
    park(vWOL, u + 2); park(vWOL + 1, u + 3)
    p(f"""
s_mul_i32 s96, s96, 73728
s_add_u32 s96, s96, s{sM0W}
s_mul_i32 s97, s97, {8*15360}
s_add_u32 s97, s97, {PART_OFF}
v_lshlrev_b32 v{u}, 4, v0
v_add_u32 v{u+2}, s96, v{u}
v_add_u32 v{u+3}, s97, v{u}
""")
    park(vOL, u + 2); park(vPT, u + 3)
    p(f"""
s_add_u32 s{sTMP+2}, s{sTMP+2}, s{sTMP+4}
v_mul_u32_u24 v{u}, 1280, v{t}
v_add3_u32 v{u}, v{u}, v{u+1}, s{sTMP+2}
v_lshrrev_b32 v{u+2}, 5, v0
v_lshl_add_u32 v{u}, v{u+2}, 4, v{u}
""")
    park(vOUT, u)
    p(f"v_mov_b32 v{u}, 0x3f803f80\nv_cmp_eq_u32 vcc, 0, v{t+4}\nv_cndmask_b32 v{u}, 0, v{u}, vcc")
    for r in range(4): p(f"v_accvgpr_write_b32 a{aONE+r}, v{u}")
    for i in range(4):
        p(f"s_add_u32 s{sHI+i}, s{sHL}, {i}\ns_and_b32 s{sHI+i}, s{sHI+i}, 3\ns_mul_i32 s{sHI+i}, s{sHI+i}, 3")
    SC = math.log2(math.e) / math.sqrt(192.0)
    p(f"""
s_mul_i32 s{sWW}, s{sWAVE}, 5120
s_mov_b32 s{sLTHR}, {f32(LTHR)}
s_mov_b32 s{sSC}, {f32(SC)}
s_add_u32 s{sWR}, s{sM0W}, {2*(D0+1)*SLOT}
s_mov_b32 s{sRD}, 0
s_mov_b32 s{sT}, 1
""")

def S(t, **k): return Item('S', t, **k)
def V(t, **k): return Item('V', t, **k)
def wrap0(s, inc, lim, zero="0"):
    return [S(f"s_add_u32 s{s}, s{s}, {inc}"), S(f"s_cmp_ge_u32 s{s}, {lim}\ns_cselect_b32 s{s}, {zero}, s{s}")]
def dma_tile(kind, pre, so, tag=None, post=()):
    vd, srn, pol = {'K': (vKD, sK, NT), 'V': (vVD, sV, NT), 'W': (vWD, sWq, "")}[kind]
    g = [S(x) for x in pre]
    for j in range(3):
        g.append(Item('M', f"buffer_load_dwordx4 v{vd+j}, {sr(srn)}, {so} offen offset:{1024*j} {pol} lds", tag=tag))
    return g + list(post)
def dma_kv_static(kind, i):
    so = sKK if kind == 'K' else sKOFF
    return dma_tile(kind, [f"s_add_u32 m0, s{sM0W}, {kvslot(kind,i)*SLOT}"], f"s{so}", f"{kind}{i}", wrap0(so, KG * 384, 32 * KG * 384))
def dma_w(u):
    return dma_tile('W', [f"s_add_u32 m0, s{sM0W}, {wslot(u)*SLOT}"], f"s{sWOFF}", f"W{u}",
                    wrap0(sWOFF, 32 * 12288, 640 * 12288) if not COMMON else
                    [S(f"s_add_u32 s{sWOFF}, s{sWOFF}, {32*12288}")] if u < 2 * COMMON - 1 else
                    [S(f"s_mul_i32 s{sWOFF}, s{sRD}, {64*12288}")] if u == 2 * COMMON - 1 else wrap0(sWOFF, 32 * 12288, (10 - COMMON) * 64 * 12288))
def dma_x(c):
    g = []
    for half in range(2):
        g.append(S(f"s_add_u32 m0, s{sM0W}, {(xpair(c)+half)*SLOT}"))
        for qb in range(3):
            g.append(Item('M', f"buffer_load_dwordx4 v{vXD+2*qb+half}, {sr(sX)}, s{sXOFF} offen offset:{1024*qb} lds", tag=f"X{c}"))
    if COMMON and c < COMMON - 1: return g + [S(f"s_add_u32 s{sXOFF}, s{sXOFF}, 128")]
    if COMMON and c == COMMON - 1: return g + [S(f"s_lshl_b32 s{sXOFF}, s{sRD}, 7")]
    return g + wrap0(sXOFF, 128, (10 - COMMON) * 128)
def spread_kv(its, lo, hi):
    ms = [x for x in its if x.kind == 'M']
    chain(its, lo, hi)
    for k, x in enumerate(ms):
        x.target = lo + 1 + (hi - lo) * k // 5
        w = WIN[k % len(WIN)] - 1
        x.ins = [I(f"s_waitcnt vmcnt({w})")] + x.ins; x.needA = True
    t = lo
    for x in reversed(its):
        if x.kind == 'M': t = x.target
        elif any(its.index(y) > its.index(x) for y in ms): x.target = max(lo, t - 3)
        else: x.target = hi + 1
    return its
def kv_issue(nok=False):
    dk = dma_tile('K', [f"s_mov_b32 m0, s{sWR}"], f"s{sKK}") if not nok else []
    dv = dma_tile('V', [f"s_add_u32 m0, s{sWR}, {SLOT}"], f"s{sKOFF}")
    if nok: return dv
    return dk + dv + [S(f"s_mov_b32 s{sKOFF}, s{sKK}")] + wrap0(sKK, KG * 384, 32 * KG * 384) + wrap0(sWR, 2 * SLOT, 12 * SLOT, f"s{sM0W}")
def dma_wo(G):
    sl = goff(G); i, c = gic(G)
    g = [S(f"s_add_u32 s{sWOFF}, s{sHI+i}, {c}"), S(f"s_mul_i32 s{sWOFF}, s{sWOFF}, {64*1280}")]
    for j in range(5):
        if j == 0: g.append(S(f"s_add_u32 m0, s{sWW}, {sl}"))
        if j == 4: g.append(S(f"s_add_u32 m0, s{sWW}, {sl+4096}"))
        g.append(Item('M', f"buffer_load_dwordx4 v{vWOD+j}, {sr(sWo)}, s{sWOFF} offen offset:{1024*(j%4)} lds", tag=f"G{G}"))
    return g
def xfrag(c, ks, qb): return aX + (c % NXB) * 24 + (ks * 3 + qb) * 4
def read_x(c):
    off = (xpair(c) - xs0()) * SLOT
    return [Item('L', f"ds_read_b128 {ar(xfrag(c,ks,qb))}, v{vXR+ks} offset:{off + qb*1024}") for ks in range(2) for qb in range(3)]
def flat(p, items):
    for it in items: p.cur += it.ins
def snake(mf, k): return mf[::-1] if (SNAKE and k & 1) else mf
class Pool:
    def __init__(self, size): self.n = 0; self.size = size
    def next(self):
        r = aPOOL + 4 * (self.n % self.size); self.n += 1; return r
def vunit_reads(buf, db, imm, va):
    return [f"ds_read_b64_tr_b16 {ar(buf,2)}, v{va+(db&3)} offset:{imm + (db>>2)*128}",
            f"ds_read_b64_tr_b16 {ar(buf+2,2)}, v{va+(db&3)} offset:{imm + (db>>2)*128 + 6144}"]

T = 4
RGAP = 6
class Stream:
    def __init__(self, tail=()):
        self.mf = []; self.items = []; self.resA = set()
        for u in tail: self.add_unit(u)
    def n(self): return len(self.mf)
    def add_unit(self, u):
        u['first'] = len(self.mf)
        if u.get('reads'): self.resA.add(len(self.mf) - 1)
        for k, m in enumerate(u['mf']): self.mf.append((u.get('head', []) if k == 0 else [], m))
    def reads(self, units, lo, hi, after=()):
        its = []
        tot = sum(len(u['reads']) for u in units); k = 0
        for u in units:
            g = lo + (hi - lo + 1) * k // tot
            for r in u['reads']:
                it = Item('L', r, lo=lo, hi=max(lo, min(hi, u['first'] - 5)), target=g, after=list(after) + ([(its[-1], 0)] if its else []))
                it.use = u['first']
                its.append(it); k += 1
        self.items += its
        return its
    def barrier(self, g, wait, after=()):
        w = Item('S', [x if isinstance(x, I) else I(x) for x in wait], lo=g, hi=g + 2, target=g, after=after)
        b = Item('S', "s_barrier", lo=g + 1, hi=g + 3, after=[(w, 1)])
        self.items += [w, b]
        return b
    def add(self, its): self.items += its; return its
    def emit(self, keep=0, name=""):
        mf = self.mf[:len(self.mf) - keep] if keep else self.mf
        out = pack(mf, self.items, self.resA, name)
        for it in self.items:
            if hasattr(it, 'use'):
                d = set(it.ins[0].dst)
                assert it.gap < it.use, (name, it.ins[0].text)
                for g in range(it.gap + 1, it.use):
                    assert not (d & set(self.mf[g][1].src)), ("pool WAR", name, it.ins[0].text, it.gap, g)
        return out

def qk_unit(pool, buf, kb, ds, c0, imm, k):
    pb = pool.next()
    mf = []
    for qb in range(3):
        d = sreg(buf, qb, kb)
        c = vr(d) if ds else (0 if c0 else vr(vNM + 4 * qb))
        mf.append(I(f"{MF} {vr(d)}, {ar(pb)}, {vr(qfrag(qb,ds))}, {c}"))
    return dict(reads=[f"ds_read_b128 {ar(pb)}, v{vKA+(ds&1)} offset:{imm + kb*6144 + (ds>>1)*128}"], mf=snake(mf, k))
def qk_units(pool, buf, imm, zero=()):
    return [qk_unit(pool, buf, kb, ds, kb in zero, imm, ds) for kb in range(2) for ds in range(6)]
def rs_unit(buf, zero=False):
    return dict(reads=None, mf=[I(f"{MF} {vr(vL[buf]+4*qb)}, {ar(aONE)}, {vr(vP[buf]+4*qb)}, {0 if zero else vr(vL[buf^1]+4*qb)}") for qb in range(3)])
def pv_units(pool, buf, imm, zero=False):
    units = []
    for db in range(12):
        pb = pool.next()
        z = zero and db < 12 - T
        mf = [I(f"{MF} {ar(oacc(db,qb))}, {ar(pb)}, {vr(vP[buf]+4*qb)}, {0 if z else ar(oacc(db,qb))}") for qb in range(3)]
        units.append(dict(reads=vunit_reads(pb, db, SLOT + imm, vVA), mf=snake(mf, db)))
    return units
PAIRS = [(qb, kb, h) for kb in range(2) for qb in range(3) for h in range(2)]
def softmax_items(buf, n0, n1, lo, hi, pre=None):
    ex = []; cv = []; ex0 = []
    for n in range(n0, n1):
        qb, kb, h = PAIRS[n]
        s = sreg(buf, qb, kb) + 2 * h
        e = vE + 2 * (n % NE)
        a = Item('E', f"v_exp_f32 v{e}, v{s}"); b = Item('E', f"v_exp_f32 v{e+1}, v{s+1}")
        if len(cv) >= NE: a.after.append((cv[-NE], 1))
        if pre:
            for k, x in enumerate((a, b)):
                sub = V(f"v_add_f32 v{s+k}, v{s+k}, v{vNM+4*qb}", lo=lo, hi=hi, after=[(pre, 1)])
                x.after.append((sub, 1)); ex0.append((sub, x))
        ex += [a, b]
        cv.append(V(f"v_cvt_pk_bf16_f32 v{vP[buf]+4*qb+2*kb+h}, v{e}, v{e+1}", lo=lo, hi=hi, after=[(b, 1)]))
    chain(ex, lo, hi - 1)
    for e in ex: e.hi = hi
    for k, c in enumerate(cv): c.target = ex[2 * k + 1].target + 1
    for sub, x in ex0: sub.target = max(lo, x.target - 2)
    return [s for s, _ in ex0] + ex + cv
SPLIT = 6
LTHR = 2.0 ** 40
def rowmax_text(buf, qb, d, t):
    s0, s1 = sreg(buf, qb, 0), sreg(buf, qb, 1)
    return [f"v_max3_f32 v{d}, v{s0}, v{s0+1}, v{s0+2}", f"v_max3_f32 v{t}, v{s1}, v{s1+1}, v{s1+2}",
            f"v_max3_f32 v{d}, v{d}, v{s0+3}, v{s1+3}", f"v_max_f32 v{d}, v{d}, v{t}",
            f"v_mov_b32 v{t}, v{d}", f"v_permlane32_swap_b32 v{d}, v{t}", f"v_max_f32 v{d}, v{d}, v{t}",
            f"v_mov_b32 v{t}, v{d}", f"v_permlane16_swap_b32 v{d}, v{t}", f"v_max_f32 v{d}, v{d}, v{t}"]
def rare_path(p, label, buf):
    p.reset_state()
    p(f"{label}:\ns_nop 15")
    for qb in range(3):
        d = vR + qb
        p("\n".join(rowmax_text(buf, qb, d, vR + 8)))
        p(f"v_max_f32 v{d}, 0, v{d}")
        for r in range(4): p(f"v_sub_f32 v{vNM+4*qb+r}, v{vNM+4*qb+r}, v{d}")
        for bb in (buf, buf ^ 1):
            for r in range(8): p(f"v_sub_f32 v{sreg(bb,qb,0)+r}, v{sreg(bb,qb,0)+r}, v{d}")
        p(f"v_exp_f32_e64 v{vR+4+qb}, -v{d}")
    for qb in range(3):
        for r in range(4): p(f"v_mul_f32 v{vL[buf^1]+4*qb+r}, v{vL[buf^1]+4*qb+r}, v{vR+4+qb}")
        for r in [oacc(db, qb) + r for db in range(12) for r in range(4)]:
            p(f"v_accvgpr_read_b32 v{vR+9}, a{r}\nv_mul_f32 v{vR+9}, v{vR+9}, v{vR+4+qb}\nv_accvgpr_write_b32 a{r}, v{vR+9}")
    for (qb, kb, h) in PAIRS:
        s = sreg(buf, qb, kb) + 2 * h
        p(f"v_exp_f32 v{vE}, v{s}\nv_exp_f32 v{vE+1}, v{s+1}\nv_cvt_pk_bf16_f32 v{vP[buf]+4*qb+2*kb+h}, v{vE}, v{vE+1}")
    p.cur += rs_unit(buf)['mf']
    p(f"s_nop 15\ns_setpc_b64 s[98:99]")
    p.flush()

KVPRE = ['K0', 'K1', 'V0', 'K2', 'V1', 'K3', 'V2', 'K4', 'V3']
def get_sched():
    PRO = ['X0', 'W0', 'W1', 'W2']; PRO2 = ['X1']
    QS = {0: (['W3'], None, []), 1: (['W4', 'W5'], 1, ['X2']), 2: (['W6'], None, ['X3']), 3: (['W7'], 2, ['X4']), 4: (['W8'], 3, ['X5']),
          5: (['W9', 'K0', 'K1'], None, []), 6: (['W10'], 4, ['X6']), 7: (['W11'], 5, ['X7']), 8: (['W12', 'V0', 'K2'], None, []),
          9: (['W13'], 6, ['X8']), 10: (['W14'], 7, ['X9']), 11: (['W15'], None, []), 12: (['W16'], 8, []), 13: (['W17'], 9, []),
          14: (['W18'], None, []), 15: (['W19'], None, []), 16: (['V1', 'K3', 'V2', 'K4', 'V3'], None, [])}
    if SCHED == 1:
        QS[5] = (['W9'], None, []); QS[8] = (['W12', 'K0', 'K1'], None, []); QS[11] = (['W15', 'V0', 'K2'], None, [])
    if SCHED == 2:
        QS[5] = (['W9'], None, []); QS[8] = (['W12'], None, []); QS[11] = (['W15', 'K0', 'K1'], None, [])
        QS[15] = (['W19', 'V0', 'K2'], None, [])
    if SCHED == 3:
        QS[13] = (['W17'], 9, ['V1', 'K3']); QS[16] = (['V2', 'K4', 'V3'], None, [])
    if SCHED in (4, 5, 6):
        PRO = ['X0', 'W0', 'W1']; PRO2 = ['X1']
        if SCHED == 4:
            QS.update({0: (['W2', 'W3'], None, []), 1: (['X2'], 1, ['W4']), 2: (['W5', 'X3'], None, ['W6']), 3: (['W7'], 2, ['X4']), 4: (['W8'], None, []),
                       5: (['W9'], 3, ['X5']), 6: (['W10'], 4, ['X6']), 7: (['W11'], 5, ['X7']), 8: (['W12'], None, [])})
        if SCHED == 5:
            PRO2 = []
            QS.update({0: (['X1', 'W2'], None, ['W3']), 1: (['X2'], 1, ['W4']), 2: (['W5', 'X3'], None, ['W6']), 3: (['W7'], 2, ['X4']), 4: (['W8'], None, []),
                       5: (['W9'], 3, ['X5']), 6: (['W10'], 4, ['X6']), 7: (['W11'], 5, ['X7']), 8: (['W12'], None, [])})
        if SCHED == 6:
            PRO2 = ['X1', 'W2']
            QS.update({0: (['W3', 'X2'], None, ['W4']), 1: (['W5'], 1, ['X3']), 2: (['W6'], None, []), 3: (['W7'], 2, ['X4']), 4: (['W8'], 3, ['X5']),
                       5: (['W9'], None, []), 6: (['W10'], 4, ['X6']), 7: (['W11'], 5, ['X7']), 8: (['W12'], None, [])})
    if SCHED == 7:
        QS.update({5: (['W9'], 4, ['X6']), 6: (['W10'], 5, ['X7']), 7: (['W11'], 6, ['X8']), 8: (['W12'], 7, ['X9']), 9: (['W13'], 8, []), 10: (['W14'], 9, []),
                   11: (['W15'], None, []), 12: (['W16'], None, []), 13: (['W17'], None, [])})
    if SCHED == 8:
        QS.update({5: (['W9'], None, []), 6: (['W10'], 4, ['X6']), 7: (['W11'], 5, ['X7']), 8: (['W12'], 6, ['X8']), 9: (['W13'], 7, ['X9']), 10: (['W14'], None, []),
                   11: (['W15'], 8, []), 12: (['W16'], 9, []), 13: (['W17'], None, [])})
    if SCHED == 9:
        QS.update({4: (['W8'], None, []), 5: (['W9'], 3, ['X5']), 6: (['W10'], None, []), 7: (['W11'], 4, ['X6']), 8: (['W12'], None, []), 9: (['W13'], 5, ['X7']), 10: (['W14'], None, []),
                   11: (['W15'], 6, ['X8']), 12: (['W16'], 7, ['X9']), 13: (['W17'], None, []), 14: (['W18'], 8, []), 15: (['W19'], 9, [])})
    if SCHED == 10:
        assert LAYOUT == 2 and D0 <= 3
        QS.update({5: (['W9'], 4, ['X6']), 6: (['W10'], 5, ['X7']), 7: (['W11'], 6, ['X8']), 8: (['W12'], 7, ['X9']), 9: (['W13'], 8, ['W14', 'W15']), 10: (['W16'], 9, ['W17']),
                   11: (['W18'], None, []), 12: (['W19'], None, []), 13: ([], None, []), 14: ([], None, []), 15: ([], None, [])})
    if SCHED == 11:
        assert LAYOUT == 2 and D0 <= 3
        QS.update({5: (['W9', 'W10'], None, []), 6: (['W11'], 4, ['X6']), 7: (['W12'], 5, ['X7']), 8: (['W13'], 6, ['X8']), 9: ([], 7, ['X9']), 10: ([], 8, ['W14', 'W15']),
                   11: (['W16'], 9, ['W17']), 12: (['W18', 'W19'], None, []), 13: ([], None, []), 14: ([], None, []), 15: ([], None, [])})
    keep = KVPRE[:1 + 2 * D0]
    for u in QS: QS[u] = tuple([n for n in part if n[0] not in 'KV' or n in keep] if isinstance(part, list) else part for part in QS[u])
    if QKV:
        for u in QS: QS[u] = tuple([n for n in part if n[0] not in 'KV'] if isinstance(part, list) else part for part in QS[u])
        for u, l in QKV.items(): QS[u] = (QS[u][0] + l,) + QS[u][1:]
    return PRO, PRO2, QS
QKV = {11: ['K0'], 12: ['K1'], 14: ['V0'], 15: ['K2'], 16: ['V1', 'K3', 'V2', 'P0']}
def pf_wo(v): return [Item('M', f"buffer_load_dword v{vDUM}, v{v}, {sr(sWo)}, 0 offen", tag="dummy")]
def issue(name):
    if name == 'P0': return [V(f"v_accvgpr_read_b32 v1, a{aPARK + PARK.index(vPWO)}")] + pf_wo(1)
    k, i = name[0], int(name[1:])
    return dma_x(i) if k == 'X' else dma_w(i) if k == 'W' else dma_kv_static(k, i)
def check_sched(PRO, PRO2, QS):
    occ = {}; xread = {0: -1}
    for u, (e, xr, l) in QS.items():
        if xr is not None: xread[xr] = u
    def put(n, u, late):
        k, i = n[0], int(n[1:])
        if k == 'P': return
        for s in ([xpair(i), xpair(i) + 1] if k == 'X' else [wslot(i)] if k == 'W' else [kvslot(k, i)]):
            o = occ.get(s)
            if o:
                k2, i2 = o[0], int(o[1:])
                if k2 == 'W': assert i2 <= u - 1, (n, u, o)
                elif k2 == 'X': assert xread[i2] < u or (xread[i2] == u and late), (n, u, o)
                else: assert False, (n, u, o)
            occ[s] = n
    seq = []
    for n in PRO: put(n, -2, False); seq.append(n)
    for n in PRO2: put(n, -1.5, True); seq.append(n)
    for u in sorted(QS):
        e, xr, l = QS[u]
        for n in e: put(n, u, False); seq.append(n)
        for n in l: put(n, u, True); seq.append(n)
        if xr is not None: assert min(xr * 2, 20 - NDB) > u and (xr - NXB) * 2 + 1 < u, (xr, u)
    assert [n for n in seq if n[0] == 'W'] == [f"W{i}" for i in range(20)]
    assert [n for n in seq if n[0] == 'X'] == [f"X{i}" for i in range(10)]
    assert [n for n in seq if n[0] in 'KV'] == KVPRE[:1 + 2 * D0] and 'K0' not in QS[16][0]

def front(p, pool):
    assert NDB == 4
    PRO, PRO2, QS = get_sched()
    check_sched(PRO, PRO2, QS)
    q = Prog(); setup_rest(q)
    ntok = max(k for k, x in enumerate(q.cur) if x.kind == 'smem') + 1
    for n in PRO[1:]: flat(p, issue(n))
    p.cur += q.cur[:ntok]
    p.cur += stp('s2')
    setup_reads(p)
    for uu in range(4): p(f"v_add_u32 v{vVA+uu}, {wslot(0)*SLOT}, v{vVL+uu}")
    late = []
    for x in q.cur[ntok:]:
        if x.op in ('s_addc_u32', 'v_cndmask_b32'): late[-1].ins.append(x)
        else: late.append(Item('V' if x.kind == 'valu' else 'S', [x]))
    if not LATESET: flat(p, late); late = []
    p("WAITVM X0"); p.cur += stp('X0')
    flat(p, read_x(0))
    for n in PRO2: flat(p, issue(n))
    p(f"""
s_add_u32 s{sTK1}, s{sTK1}, {TOKC[0]}
s_addc_u32 s{sTK1+1}, s{sTK1+1}, {TOKC[1]}
s_add_u32 s{sTK2}, s{sTK2}, {TOKC[0]}
s_addc_u32 s{sTK2+1}, s{sTK2+1}, {TOKC[1]}
""")
    p("WAITVM W0\ns_waitcnt lgkmcnt(0)\ns_barrier"); p.cur += stp('u0')
    st = Stream()
    if late:
        chain(late, 0, LATEHI)
        for x in late: x.dense = True; x.target = 0
        st.add(late)
        kvset = [x for x in late if set(x.ins[0].dst) & {('v', vKD + 2)}][0]
    NU = 20 - NDB
    def wunit(u, db, va, imm, k):
        buf = pool.next()
        mf = [I(f"{MF} {vr(qacc(db,qb))}, {ar(buf)}, {ar(xfrag(u>>1,u&1,qb))}, {vr(qacc(db,qb)) if u else 0}") for qb in range(3)]
        return dict(reads=vunit_reads(buf, db, imm, va), mf=snake(mf, k))
    tiles = [[wunit(u, db, vVA if u % 2 == 0 else vVB, 0, db) for db in range(12)] for u in range(NU)]
    sa = {16: (vVA, 0), 17: (vVA, SLOT), 19: (vVA, 2 * SLOT), 18: (vVB, 0)} if LAYOUT == 0 else {u: (vVA, (u - 16) * SLOT) for u in range(16, 20)}
    sup = [wunit(u, db, sa[u][0], sa[u][1], k) for db in range(12) for k, u in enumerate((16, 17, 19, 18))]
    tiles.append(sup)
    qk0 = [qk_unit(pool, 0, kb, ds, True, 0, kb) for ds in range(6) for kb in range(2)]
    qk1 = qk_units(pool, 1, 2 * SLOT, zero=(0,))
    rs = rs_unit(0, zero=True)
    pv = pv_units(pool, 0, 2 * SLOT, zero=True)
    for tl in tiles + [qk0, qk1, [rs], pv]:
        for un in tl: st.add_unit(un)
    n = st.n() - 3 * T
    prevdma = None
    for u in range(NU + 1):
        g0 = 36 * u - 3 * T
        span = 36 if u < NU else 36 * NDB
        if u == 0:
            for un in tiles[0][:T]:
                for r in un['reads']: p(r)
            rd = st.reads(tiles[0][T:], 0, g0 + 36 - RGAP)
            bar = None; glo = 0
        else:
            bar = st.barrier(g0, [f"WAITVM W{u if u < NU else 19}"] + (["WAITVM K0"] if u == NU else []) + ["s_waitcnt lgkmcnt(0)"] + stp(f"u{u}"))
            aft = [(bar, 0)]
            if u == NU and LAYOUT == 0:
                vb = chain([V(f"v_add_u32 v{vVB+uu}, {wslot(18)*SLOT}, v{vVL+uu}") for uu in range(4)], g0 - 4, g0 + 1)
                vb[0].after.append((rd[-1], 1)); st.add(vb)
                for x in vb: x.hi = g0 + 4
            rd = st.reads(tiles[u], g0 + 1, g0 + span - (RGAP if u < NU else 0), aft)
            if u == NU and LAYOUT == 0:
                for x in rd[6:8]: x.after.append((vb[-1], 1))
            glo = g0 + 2
        if u < NU:
            va = vVA if (u + 1) % 2 == 0 else vVB
            st.add(chain([V(f"v_add_u32 v{va+uu}, {wslot(u+1)*SLOT}, v{vVL+uu}") for uu in range(4)], glo + 6, g0 + 30))
        e, xr, l = QS[u]
        f1 = [g for nm in e for g in issue(nm)]
        nx = [g for nm in l for g in issue(nm)]
        seq = []
        if f1:
            chain(f1, glo, glo + (12 if u < NU else KVSPAN))
            if bar: f1[0].after.append((bar, 1))
            if late and 'K0' in e: f1[0].after.append((kvset, 1))
            if late and 'P0' in e: f1[0].after.append((late[-1], 1))
            seq += f1
        if xr is not None:
            rx = [S(f"WAITVM X{xr}")] + read_x(xr)
            chain(rx, g0 + 14, g0 + 22)
            seq += rx
            if nx: nx = [V(f"v_accvgpr_read_b32 v{vT0}, a{xfrag(xr,1,2)}", after=[(rx[-1], 4)])] + nx
        if nx:
            chain(nx, g0 + 24, g0 + 35); seq += nx
        for k in range(len(seq)):
            pvs = seq[k - 1] if k else prevdma
            if pvs is not None and not any(a is pvs for a, _ in seq[k].after): seq[k].after.append((pvs, 1))
            seq[k].hi = g0 + span + 14 if seq[k].kind != 'L' else g0 + 30
        if seq: prevdma = seq[-1]
        st.add(seq)
    wlast = rd[-1]
    assert oacc(12 - T, 0) == xfrag(4, 0, 0)
    st.add(chain([V(f"v_accvgpr_write_b32 a{oacc(12-T,0)+r}, 0") for r in range(12 * T)], 36 * 12 + 4, 36 * 16 - 20))
    cprev = None
    for s in range(6):
        its = []
        for qb in range(3):
            a, b, q = qacc(2 * s, qb), qacc(2 * s + 1, qb), qfrag(qb, s)
            its += [V(f"v_mul_f32 v{r}, s{sSC}, v{r}") for r in list(range(a, a + 4)) + list(range(b, b + 4))]
            its += [V(f"v_cvt_pk_bf16_f32 v{q+k}, v{r}, v{r+1}") for k, r in enumerate((a, a + 2, b, b + 2))]
        for qb in range(3):
            q = qfrag(qb, s)
            its += [V(f"v_permlane16_swap_b32 v{q}, v{q+2}"), V(f"v_permlane16_swap_b32 v{q+1}, v{q+3}")]
        lo = sup[8 * s + 7]['first'] + 5
        dl = qk0[2 * s]['first'] - 2 if s else qk0[0]['first'] - 2
        chain(its, lo, min(lo + 26, dl), 0)
        for x in its: x.hi = dl; x.dense = True; x.target = lo
        if cprev: its[0].after.append((cprev, 0))
        cprev = its[-1]; st.add(its)
    q0 = qk0[0]['first']
    kr0 = st.reads(qk0, q0 - 11, q0 + 14, [(wlast, 0)])
    gx = q0 + 20
    barx = st.barrier(gx, ["WAITVM V0", "s_waitcnt lgkmcnt(0)"] + stp('Qend'), after=[(kr0[-1], 1), (prevdma, 1)])
    kr1 = st.reads(qk1, gx + 1, qk1[0]['first'] + 18, [(barx, 0)])
    va = chain([V(f"v_mov_b32 v{vVA+u}, v{vVL+u}") for u in range(4)], q0, q0 + 20); va[0].after.append((wlast, 1)); st.add(va)
    for x in va: x.hi = qk1[6]['first']
    st.reads(pv, kr1[-1].target + 2, n - 12, [(kr1[-1], 0), (va[-1], 1)])
    dm = chain(kv_issue(), qk0[10]['first'], qk0[10]['first'] + 14); dm[0].after.append((barx, 1)); st.add(dm)
    for x in dm: x.hi = n - 8
    lo = qk1[0]['first'] + 3; dl = qk1[6]['first'] - 2
    cols = [[V(t) for t in rowmax_text(0, qb, vR + qb, vR + 4 + qb)] for qb in range(3)]
    rm = [cols[qb][k] for k in range(10) for qb in range(3)]
    rm += [V(f"v_sub_f32 v{vNM+4*qb+r}, 0, v{vR+qb}") for r in range(4) for qb in range(3)]
    chain(rm, lo, dl, 0); st.add(rm)
    for x in rm: x.dense = True; x.target = lo
    st.add(softmax_items(0, 0, 12, lo + 10, rs['first'] - 2, pre=rm[32]))
    st.add(softmax_items(1, 0, SPLIT, pv[0]['first'] + 1, n - 1, pre=rm[-1]))
    up = wrap0(sRD, 4 * SLOT, 12 * SLOT) + [V(f"v_add_u32 v{vKA+u}, s{sRD}, v{vKL+u}") for u in range(2)]
    up[0].after += [(kr1[-1], 1), (dm[-1], 1)]
    st.add(chain(up, pv[0]['first'], n - 2))
    p.cur += st.emit(3 * T, name="front")
    return [dict(mf=u['mf']) for u in pv[12 - T:]]

def o_store(s):
    return [S(f"s_add_u32 s{sXOFF}, s{sKOFF}, {s*12288}")] + [
        Item('M', f"buffer_store_dwordx4 {bfrag(s,qb)}, v{vOL}, {sr(sWS)}, s{sXOFF} offen offset:{1024*qb} sc1", tag=f"OST{s>>1}") for qb in range(3)]
def o_conv(s, qb):
    t = 32 + 8 * ((s * 3 + qb) % 3); d = vQ + (s * 3 + qb) * 4
    its = [V(f"v_accvgpr_read_b32 v{t+4*h+r}, a{oacc(2*s+h,qb)+r}") for h in range(2) for r in range(4)]
    its += [V(f"v_mul_f32 v{t+r}, v{t+r}, v{vRCS[qb]}") for r in range(8)]
    its += [V(f"v_cvt_pk_bf16_f32 v{d+r}, v{t+2*r}, v{t+2*r+1}") for r in range(4)]
    return its

def check_items(cur, lo, hi):
    mx = V(f"v_max3_f32 v{vCK}, v{vL[cur]}, v{vL[cur]+4}, v{vL[cur]+8}", lo=min(lo, hi), hi=hi)
    return [mx, V(f"v_cmp_nge_f32 vcc, s{sLTHR}, v{vCK}", after=[(mx, 0)], hi=hi)]
def rare_head(p, cur):
    ret = p.newlabel("L_ret"); tr = p.newlabel("L_tramp")
    TRAMPS.append((tr, ret, cur))
    return L(f"s_cbranch_vccnz {tr}\n{ret}:")
def attention(p, pool, tail):
    def step(t_par, tail, mode, vm, extra=(), endi=(), final=False):
        cur, nxt = t_par, t_par ^ 1
        imm = 0 if t_par else 2 * SLOT
        st = Stream(tail)
        qk = qk_units(pool, nxt, imm)
        pv = pv_units(pool, cur, imm)
        rs = rs_unit(cur)
        pv[0]['head'] = rare_head(p, cur)
        for u in qk[:9] + [rs] + qk[9:] + pv: st.add_unit(u)
        n = st.n() - 3 * T
        bar = st.barrier(0, [f"s_waitcnt vmcnt({vm}) lgkmcnt(0)"])
        kr = st.reads(qk, 1, 33 if not final else 28, [(bar, 0)])
        aft = [(bar, 0), (kr[-1], 0)]
        if t_par:
            va = chain([V(f"v_add_u32 v{vVA+u}, s{sRD}, v{vVL+u}") for u in range(4)], 0, 20)
            st.add(va); aft.append((va[-1], 1))
        vrd = st.reads(pv, kr[-1].target + 2, n - (12 if not final else 20), aft)
        if final:
            up = wrap0(sRD, 4 * SLOT, 12 * SLOT) + [V(f"v_add_u32 v{vVA+u}, s{sRD}, v{vVL+u}") for u in range(4)]
            up[2].after.append((vrd[-1], 1))
            st.add(chain(up, n - 24, n - 1))
        elif not t_par:
            up = wrap0(sRD, 4 * SLOT, 12 * SLOT) + [V(f"v_add_u32 v{vKA+u}, s{sRD}, v{vKL+u}") for u in range(2)]
            up[0].after += [(kr[-1], 1)]
            st.add(chain(up, rs['first'], n - 4))
        dm = []
        if mode == 'A':
            dm = chain(kv_issue(), 2, DMAHI) if not WIN else spread_kv(kv_issue(), 2, WHI)
            for x in dm: x.hi = n - (8 if not WIN else 4)
        if extra:
            fx = [x for x in extra if getattr(x, 'fixed', False)]; fr = [x for x in extra if not getattr(x, 'fixed', False)]
            if fr:
                chain(fr, DMAHI + 2 if fx else 2, 68 if fx else (56 if not final else 30))
                if fx: fr[0].after.append((fx[-1], 1))
            dm = fx + fr
            for x in dm: x.hi = n - 1
        if dm: dm[0].after.append((bar, 1))
        st.add(dm)
        st.add(softmax_items(cur, SPLIT, 12, 0, rs['first'] - 2))
        pf = pv[0]['first']
        st.add(check_items(cur, rs['first'] + 6, pf - 1))
        st.add(softmax_items(nxt, 0, SPLIT if not final else SP30, pf + (1 if not final else 0), n - 1))
        if endi: st.add(chain(list(endi), n - 3, n - 1, 0))
        return st.emit(3 * T, name=mode), [dict(mf=u['mf']) for u in pv[12 - T:]]
    txt = lambda tl: [[i.text for i in u['mf']] for u in tl]
    global WIN
    VMA = VMLIM if not WIN else 6 * (D0 - 1)
    tr = []
    if TRACE: tr = L(f"s_memrealtime s[84:85]\ns_waitcnt lgkmcnt(0)\ns_mov_b32 m0, s{sT}\nv_writelane_b32 v174, s84, m0")
    global WHI
    for k, (tend, w, wh) in enumerate(LOOPS or [(27, WIN, WHI)]):
        WIN = w; WHI = wh
        lp = f"L_attA{k}"
        b1, tail1 = step(1, tail, 'A', VMA)
        b2, tail2 = step(0, tail1, 'A', VMA, endi=[S(f"s_add_u32 s{sT}, s{sT}, 2"), S(f"s_cmp_lt_u32 s{sT}, {tend}")])
        assert txt(tail2) == txt(tail) and VMLIM <= 6 * (D0 - 1) and tend % 2 == 1
        p.loop(L(f"{lp}:") + [I(x.text) for x in tr] + b1 + b2 + L(f"s_cbranch_scc1 {lp}"))
    assert tend == 27
    if TRACE:
        p(f"s_add_u32 s96, s90, {STAMP_OFF + 65536}\ns_addc_u32 s97, s91, 0"); srd(p, 84, 96, 1 << 20)
        p(f"s_lshl_b32 s{sTMP}, s2, 2\ns_add_u32 s{sTMP}, s{sTMP}, s{sWAVE}\ns_lshl_b32 s{sTMP}, s{sTMP}, 9\nv_lshlrev_b32 v{vT0}, 3, v0")
        p(f"buffer_store_dwordx2 v[174:175], v{vT0}, s[84:87], s{sTMP} offen")
    p.cur += stp('Lend')
    p("L_att27:")
    cnt = lambda its: sum(1 for x in its if x.kind == 'M')
    log = [pr for pr in range(27, 27 + D0) for _ in range(6)]
    nxt = 27 + D0
    tl = tail
    for t in range(27, 31):
        vm = len(log) - 1 - max(k for k, x in enumerate(log) if x == t)
        lastkv = max(k for k, x in enumerate(log) if x >= 0)
        if not WIN and 'kv' in PLAN[t]: vm = min(vm, VMLIM + len(log) - 1 - lastkv)
        ex = []
        for a in PLAN[t]:
            if a == 'kv': its = kv_issue(nok=(nxt == 31)); log += [nxt] * cnt(its); nxt += 1
            else:
                if a == 'r': its = [V(f"v_accvgpr_read_b32 v{r}, a{aPARK+k}") for k, r in enumerate(PARK)]
                elif a == 'p': its = pf_wo(vPWO)
                elif a == 't':
                    its = [S(f"s_mul_i32 s{sTMP+2}, s{sHL}, 73728"), Item('M', f"buffer_load_dword v{vDUM}, v{vOL}, {sr(sWS)}, s{sTMP+2} offen sc1", tag="dummy"),
                           S(f"s_mul_i32 s{sTMP+2}, s{sHG}, 15360"), Item('M', f"buffer_load_dword v{vDUM}, v{vPT}, {sr(sWS)}, s{sTMP+2} offen sc1", tag="dummy")]
                elif a == 'u':
                    its = [Item('M', f"buffer_load_dword v{vDUM}, v{vOUT}, {sr(sOUT)}, 0 offen sc1", tag="dummy")]
                elif a == 'l': its = [Item('M', f"buffer_load_dword v{vDUM}, v{vF1}, {sr(sWS)}, 0 offen offset:128 sc1", tag="dummy")]
                else:
                    assert t >= {0: 28, 1: 28, 2: 29, 3: 29, 4: 30, 5: 31, 6: 31}[a]
                    its = dma_wo(a)
                log += [-1] * cnt(its)
            if a == 'kv':
                if WIN: spread_kv(its, 2, 62 if len(PLAN[t]) == 1 or cnt(its) == 3 else 40)
                else: chain(its, 2, DMAHI)
                for x in its: x.fixed = True
            ex += its
        ins, tl = step(t & 1, tl, 'P', min(vm, 63), ex, final=(t == 30)); p.cur += ins
    assert nxt == 32
    return tl, len(log) - 1 - max(k for k, x in enumerate(log) if x == 31)

def set_flag(vfl, sidx, off=0, local=False, vt=None):
    vt = vt or vTK
    st = f"buffer_store_dwordx2 v[{vt}:{vt+1}], v{vfl}, {sr(sWS)}, 0 offen offset:"
    return L(f"s_lshl_b64 exec, 1, s{sidx}\n" + (f"{st}{off+128}\n" if local else "") + f"{st}{off} sc1\ns_mov_b64 exec, -1")
def spin(name, voff, tk, off):
    one = lambda o: f"""buffer_load_dwordx2 v[{vFLV}:{vFLV+1}], v{voff}, {sr(sWS)}, 0 offen offset:{o} sc1
s_waitcnt vmcnt(0)
v_cmp_ne_u64 vcc, s[{tk}:{tk+1}], v[{vFLV}:{vFLV+1}]
s_cbranch_vccz L_spinr{name}
"""
    OUTL.append(f"""L_spin{name}:
s_mov_b32 s{sTMP}, 0x10000
L_poll{name}:
""" + (one(off + 128) * NLOC if LOCAL else "") + one(off) + f"""s_sub_u32 s{sTMP}, s{sTMP}, 1
s_cmp_lg_u32 s{sTMP}, 0
s_cbranch_scc1 L_poll{name}
s_branch L_spinr{name}
""")
def bump_epoch(p, voff, tk, sidx, off):
    ne = p.newlabel("L_ne")
    p(f"s_cmp_lg_u32 s{sidx}, 0\ns_cbranch_scc1 {ne}\nv_mov_b32 v{vFLV}, s{tk}\nv_mov_b32 v{vFLV+1}, s{tk+1}\ns_mov_b64 exec, 1")
    p.flush()
    p.raw(f"buffer_store_dwordx2 v[{vFLV}:{vFLV+1}], v{voff}, {sr(sWS)}, 0 offen offset:{off} sc1")
    p(f"s_mov_b64 exec, -1\ns_nop 1\n{ne}:")
def load_g(G):
    i, c = gic(G)
    g = [S(f"s_add_u32 s{sXOFF}, s{sHI+i}, {c}"), S(f"s_mul_i32 s{sXOFF}, s{sXOFF}, 24576")]
    for ks in range(2):
        if ks: g.append(S(f"s_add_u32 s{sXOFF}, s{sXOFF}, 12288"))
        g += [Item('M', f"buffer_load_dwordx4 {bfrag(2*G+ks,qb)}, v{vOL}, {sr(sWS)}, s{sXOFF} offen offset:{1024*qb} sc1") for qb in range(3)]
    return g

def oproj(p, pool, tail, vm31):
    NEXTG = max(a for v in PLAN.values() for a in v if isinstance(a, int)) + 1
    st = Stream(tail[:2])
    rs = rs_unit(1); st.add_unit(rs)
    for u in tail[2:]: st.add_unit(u)
    apv = pv_units(pool, 1, 0)
    apv[0]['head'] = rare_head(p, 1)
    for u in apv: st.add_unit(u)
    Z = st.n()
    def unit(G, ks, nb, va, imm):
        u = 2 * G + ks; pb = pool.next(); a = va + (nb & 1)
        rd = [f"ds_read_b64_tr_b16 {ar(pb,2)}, v{a} offset:{imm+ks*10240+nb*32}", f"ds_read_b64_tr_b16 {ar(pb+2,2)}, v{a} offset:{imm+ks*10240+nb*32+5120}"]
        mf = [I(f"{MF} {vr(cacc(nb,qb))}, {ar(pb)}, {bfrag(u,qb)}, {vr(cacc(nb,qb)) if u else 0}") for qb in range(3)]
        return dict(reads=rd, mf=snake(mf, pool.n))
    def seta(va, off): return [V(f"v_add_u32 v{va+k}, {off}, v{vWOL+k}") for k in range(2)]
    NG = 6
    def un2(G, ks, nb): return unit(G, ks, nb, vWA[2 + (G - NG) // 3], ((G - NG) % 3) * GSZ)
    assert all(goff(G + 1) == goff(G) + GSZ for G in range(NG, 11))
    U = [[unit(G, ks, nb, vWA[G & 1], 0) for ks in range(2) for nb in range(10)] for G in range(NG)]
    NL = 12 - NBA
    A = [[un2(G, ks, nb) for ks in range(2) for nb in range(6 if G >= GS else 10)] for G in range(6, NL)]
    F = [[un2(G, ks, nb) for G in range(NL if nb < 6 else GS, 12) for ks in range(2)] for nb in range(10)]
    tiles = U + A + [[u for nb in range(10) for u in F[nb]]]
    if ST: U[0][0]['head'] = stp('Aend')
    for tl in tiles:
        for u in tl: st.add_unit(u)
    bar0 = st.barrier(0, ["WAITVM G0", f"s_waitcnt vmcnt({vm31}) lgkmcnt(0)"])
    pf = apv[0]['first']
    vrd = st.reads(apv, 1, pf + 14, [(bar0, 0)])
    st.add(softmax_items(1, SP30, 12, 0, rs['first'] - 1))
    st.add(check_items(1, rs['first'] + 5, pf - 1))
    sa0 = chain(seta(vWA[0], goff(0)) + [V(f"v_mov_b32 v{vTK}, s{sTK1}"), V(f"v_mov_b32 v{vTK+1}, s{sTK1+1}")], rs['first'], pf - 1); st.add(sa0)
    for x in sa0: x.hi = pf + 12
    rc = chain([S(f"s_mul_i32 s{sKOFF}, s{sHL}, 73728"), S(f"s_mul_i32 s{sT}, s{sHG}, 15360")] + [Item('E', f"v_rcp_f32 v{vRCS[qb]}, v{vL[1]+4*qb}") for qb in range(3)], pf, pf + 6)
    for x in rc: x.hi = pf + 10
    st.add(rc)
    mem = []
    def addmem(its, lo, hi, after=None):
        chain(its, lo, hi)
        for x in its: x.hi = 10 ** 9
        if after: its[0].after.append(after)
        if mem: its[0].after.append((mem[-1], 1))
        mem.extend(its); st.add(its)
    wit = {}
    for k, G in enumerate(PRE31):
        addmem(dma_wo(G), 4 + 10 * k, 12 + 10 * k, (bar0, 1)); wit[G] = mem[-1]
        for x in mem: x.hi = pf + 9
    prev = rc[-1]; conv = {}
    for sx in range(6):
        stv = o_store(sx)
        for qb in range(3):
            its = o_conv(sx, qb)
            lo = min(apv[2 * sx + 1]['first'] + 6, Z + 2)
            if sx < NEO:
                k = sx * 3 + qb; a = apv[1]['first'] + 6
                dl = max(lo, a + (Z - 3 - a) * (k + 1) // (3 * NEO))
            else: dl = Z + 30 * sx - 3
            chain(its, lo, dl, 0)
            for x in its: x.dense = True; x.target = lo
            its[0].after.append((prev, 1 if prev.kind != 'V' else 0)); prev = its[-1]; st.add(its)
            conv[sx, qb] = its[-1]
            if sx < NEO:
                o = ([stv[0]] if qb == 0 else []) + [stv[1 + qb]]
                o[-1].after.append((its[-1], 1)); addmem(o, lo, dl + 1)
                for x in o: x.hi = dl + 1
                o[-1].target = dl + 1
    st.add(chain(seta(vWA[2], goff(6)) + seta(vWA[3], goff(9)) + [V(f"v_mov_b32 v{vTK2}, s{sTK2}"), V(f"v_mov_b32 v{vTK2+1}, s{sTK2+1}"),
        S(f"s_cmp_ge_u32 s{sJ}, 4\ns_cselect_b32 s{sTMP+2}, 8, 0"), S(f"s_cmp_eq_u32 s{sJ}, 0\ns_cselect_b32 s{sTMP+2}, -8, s{sTMP+2}" if TRI else f"s_mov_b32 s{sTMP+2}, 8"),
        V(f"v_and_b32 v{vF2R}, 8, v0"), V(f"v_mul_i32_i24 v{vF2R}, s{sTMP+2}, v{vF2R}"), V(f"v_add_u32 v{vF2R}, v{vF2R}, v{vF2}")], Z + 200, Z + 300))
    bars = {0: bar0}
    for k, tl in enumerate(tiles):
        g0 = tl[0]['first'] - 3 * T
        last = tiles[k + 1][0]['first'] - 3 * T - (RGAP if k < 4 else 0) if k + 1 < len(tiles) else st.n() - 14
        if k == 0: rdl = st.reads(U[0], g0 + 1, last, [(vrd[-1], 0), (sa0[1], 1)])
        else:
            bars[k] = st.barrier(g0, [f"WAITVM G{k if k < NL else 11}"] + (["s_waitcnt lgkmcnt(0)"] if k <= 4 else []) + stp(f"G{k}"))
            rdl = st.reads(tl, g0 + 1, last, [(bars[k], 0), (rdl[-1], 0)])
        if k + 1 < NG: st.add(chain(seta(vWA[(k + 1) & 1], goff(k + 1)), g0 + 20, g0 + 50))
    pv = {0: 2, 1: 4, 2: 8}
    for pos, act in OCH:
        k, n = act[0], int(act[1:]); pos += Z
        if k == 'W':
            if n >= NEXTG and n not in wit:
                addmem(dma_wo(n), pos, pos + SPW, (bars[0 if n < 7 else max(n - 7, 1)], 1)); wit[n] = mem[-1]
        elif k == 'F': addmem([Item('M', [I(f"WAITVM OST{n}")] + stp(f"F{n}") + set_flag(vF1, sHL, 32 * n, LOCAL))], pos, pos)
        elif k == 'P': addmem([Item('M', f"buffer_load_dwordx2 v[{pv[n]}:{pv[n]+1}], v{vF1}, {sr(sWS)}, 0 offen offset:{32*n + (128 if LOCAL else 0)} sc1")], pos, pos)
        elif k == 'C':
            addmem([V(f"v_cmp_ne_u64 vcc, s[{sTK1}:{sTK1+1}], v[{pv[n]}:{pv[n]+1}]")], pos, pos)
            addmem([Item('S', stp(f"C{n}a") + L(f"s_cbranch_vccnz L_spin{n}\nL_spinr{n}:") + stp(f"C{n}b"))], pos + 3, pos + 3)
            spin(n, vF1, sTK1, 32 * n)
        elif k == 'B': addmem([x for G in range(3 + 3 * n, 6 + 3 * n) for x in load_g(G)], pos, pos + 40)
        elif k == 'b': addmem(load_g(n), pos, pos + SPW, (conv[5, 2], 1) if n >= 6 else (conv[0, 2], 1))
        elif k == 'S':
            assert n >= NEO
            o = o_store(n)
            for qb in range(3): o[1 + qb].after.append((conv[n, qb], 1))
            addmem(o, pos, pos + 6)
    def gran(m, qb, k):
        t = vQ + 12 * (k % 4); j = m * 3 + qb
        its = [V(f"v_cvt_pk_bf16_f32 v{t+8+r}, v{cacc(2*m+(r>>1),qb)+2*(r&1)}, v{cacc(2*m+(r>>1),qb)+2*(r&1)+1}") for r in range(4)]
        if j % 4 == 0: its.append(S(f"s_add_u32 s{sTMP+1}, s{sT}, {j*1024}"))
        so = sTMP + 1; post = []
        if OWN:
            so = sTMP + 3
            if OWN == 2:
                its.append(S(f"s_cmp_eq_u32 s{sJ}, {j&7}\ns_cselect_b32 s{so}, {OOB}, s{sTMP+1}\ns_cselect_b64 s[96:97], -1, 0"))
                post = [V(f"v_cndmask_b32 v{40+8*(j>>3)+4*h+r}, v{40+8*(j>>3)+4*h+r}, v{cacc(2*m+h,qb)+r}, s[96:97]") for h in range(2) for r in range(4)]
            else:
                its.append(S(f"s_cmp_eq_u32 s{sJ}, {j&7}\ns_cselect_b32 s{so}, {OOB}, s{sTMP+1}\ns_cbranch_scc1 L_own{j}\nL_ownr{j}:"))
                OUTL.append(f"L_own{j}:\n" + "".join(f"v_mov_b32 v{40+8*(j>>3)+4*h+r}, v{cacc(2*m+h,qb)+r}\n" for h in range(2) for r in range(4)) + f"s_branch L_ownr{j}\n")
        its.append(Item('M', f"buffer_store_dwordx4 {vr(t+8)}, v{vPT}, {sr(sWS)}, s{so} offen offset:{(j%4)*1024} sc1", tag="PA" if m < 3 else f"P{m}"))
        if m == 4 and post: return its, [S(f"s_cmp_eq_u32 s{sJ}, {j&7}\ns_cselect_b64 s[96:97], -1, 0")] + post
        return its + post
    k = 0
    for m in range(4):
        its = []
        for qb in range(3): its += gran(m, qb, k); k += 1
        lo = F[2 * m + 2][0]['first'] + 4
        fa = [Item('M', [I("WAITVM PA")] + stp('FA') + set_flag(vF2, sHG, 0, vt=vTK2))]
        fp = min(F[6][0]['first'] + FAPOS, st.n() - 1)
        if m == 3 and fp <= lo: addmem(fa, fp, fp)
        addmem(its, lo, lo + (14 if OWN != 2 else 20))
        if m == 3 and fp > lo: addmem(fa, fp, fp)
    p.cur += st.emit(name="oproj")
    for it in mem:
        if it.kind == 'M' and it.ins[0].op == 'buffer_load_dwordx4' and it.ins[0].dst:
            d = set(it.ins[0].dst)
            assert it.gap < min(g for g, (h, m) in enumerate(st.mf) if g >= Z and d & set(m.srcAB)), it.ins[0].text
    for n, it in wit.items(): assert it.gap < bars[min(n, NL)].gap - 1, n
    assert set(wit) | set(range(NEXTG)) == set(range(12))
    p.cur += stp('E')
    if OWN == 2:
        gs = [gran(4, qb, k + qb) for qb in range(3)]
        for a, b in gs: flat(p, a)
        return [x for a, b in gs for x in b]
    for qb in range(3): flat(p, gran(4, qb, k)); k += 1
    return []

def final_reduce(p, rest):
    sDONE, sNEW, sO2, sOWNB, sOOB = sKK, sWR, sRD, sWOFF, sXOFF
    ld = f"buffer_load_dwordx2 v[{vFLV}:{vFLV+1}], v{vF2R}, {sr(sWS)}, 0 offen sc1"
    if TRI: p("WAITVM P3"); p.cur += set_flag(vF2, sHG, 64, vt=vTK2)
    p(f"""
{ld}
s_lshl_b32 s{sTMP}, s{sJ}, 10
v_add_u32 v2, s{sTMP}, v{vPT}
s_cmp_eq_u32 s{sJ}, 7
s_cselect_b32 s{sO2}, {OOB}, 0
s_cselect_b32 s{sDONE}, 0xff00, 0
s_mov_b32 s{sT}, 0xffff0000
s_lshl_b32 s{sOWNB}, 0x101, s{sHG}
s_mov_b32 s{sOOB}, {OOB}
s_mov_b32 s{sTMP}, 0x20000
""")
    flat(p, rest)
    p("WAITVM P4")
    p.cur += set_flag(vF2, sHG, 128, vt=vTK2); p.cur += stp('ACK')
    p("s_waitcnt vmcnt(1)\ns_branch L_fin2")
    p.flush()
    t = f"""L_fin:
{ld}
s_waitcnt vmcnt(0)
L_fin2:
v_cmp_eq_u64 vcc, s[{sTK2}:{sTK2+1}], v[{vFLV}:{vFLV+1}]
s_nop 4
s_and_b32 s{sNEW}, vcc_lo, 0xffff
{"s_or_b32 s%d, s%d, s%d" % (sNEW, sNEW, sOWNB) if OWN else ""}
s_andn2_b32 s{sNEW}, s{sNEW}, s{sDONE}
s_or_b32 s{sDONE}, s{sDONE}, s{sNEW}
"""
    for g in range(16):
        t += f"""s_bitcmp0_b32 s{sNEW}, {g}
s_cbranch_scc1 L_fs{g}
s_cmp_eq_u32 s{sHG}, {g%8 if OWN else 99}
s_cselect_b32 s{sTMP+1}, s{sOOB}, {(g%8)*15360 + (g//8)*8192}
buffer_load_dwordx4 {vr(56+g*4)}, v2, {sr(sWS)}, s{sTMP+1} offen sc1
L_fs{g}:
"""
    t += f"""s_cmp_eq_u32 s{sDONE}, 0xffff
s_cbranch_scc1 L_find
s_sub_u32 s{sTMP}, s{sTMP}, 1
s_cmp_lg_u32 s{sTMP}, 0
s_cbranch_scc1 L_fin
L_find:"""
    p.raw(t)
    p.cur += stp('P2')
    for i in range(2):
        p(f"""
s_add_u32 s{sTMP}, s{sJ}, {8*i}
s_mul_i32 s{sTMP+1}, s{sTMP}, 11
s_lshr_b32 s{sTMP+1}, s{sTMP+1}, 5
s_mul_i32 s{sTMP+3}, s{sTMP+1}, 3
s_sub_u32 s{sTMP+3}, s{sTMP}, s{sTMP+3}
s_mul_i32 s{sTMP+3}, s{sTMP+3}, {16*1280}
s_lshl_b32 s{sTMP+1}, s{sTMP+1}, 6
s_add_u32 s{sTMP+4+i}, s{sTMP+1}, s{sTMP+3}
""")
    p(f"s_add_u32 s{sTMP+5}, s{sTMP+5}, s{sO2}\ns_and_b32 s{sNEW}, s{sNEW}, 0xff\ns_cbranch_scc0 L_fa\ns_waitcnt vmcnt(0)\nL_fa:")
    for i in range(2):
        acc = 40 + i * 8
        if i: p("s_waitcnt vmcnt(1)")
        for g in range(8):
            b = 56 + (i * 8 + g) * 4
            for r in range(4):
                d = acc if g == 0 and not OWN else 120
                p(f"v_lshlrev_b32 v{d+2*r}, 16, v{b+r}\nv_and_b32 v{d+1+2*r}, s{sT}, v{b+r}")
            if g or OWN:
                for r in range(8): p(f"v_add_f32 v{acc+r}, v{acc+r}, v{120+r}")
        o = 132 + 4 * i
        for r in range(4): p(f"v_cvt_pk_bf16_f32 v{o+r}, v{acc+2*r}, v{acc+2*r+1}")
        p(f"v_permlane16_swap_b32 v{o}, v{o+2}\nv_permlane16_swap_b32 v{o+1}, v{o+3}")
        p(f"buffer_store_dwordx4 {vr(o)}, v{vOUT}, {sr(sOUT)}, s{sTMP+4+i} offen")
    bump_epoch(p, vF1, sTK1, sHL, 96)
    bump_epoch(p, vF2, sTK2, sHG, 192)

def store_stamps(p):
    if not ST: return
    p("s_waitcnt vmcnt(0)"); p.cur += stp('end')
    lab = p.newlabel("L_nost")
    if AMP:
        a, b = sSTAMP + 2 * ST[AMP[0]], sSTAMP + 2 * ST[AMP[1]]; e = sSTAMP + 2 * ST['end']
        p(f"""s_waitcnt lgkmcnt(0)
s_cmp_lg_u32 s2, 100
s_cbranch_scc1 {lab}
s_sub_u32 s{sTMP}, s{b}, s{a}
s_lshl_b32 s{sTMP}, s{sTMP}, 3
s_min_u32 s{sTMP}, s{sTMP}, 100000
L_amp:
s_memrealtime s[96:97]
s_waitcnt lgkmcnt(0)
s_sub_u32 s{sTMP+1}, s96, s{e}
s_cmp_lt_u32 s{sTMP+1}, s{sTMP}
s_cbranch_scc1 L_amp
{lab}:""")
        return
    if DBGST is not None:
        p("s_load_dwordx2 s[96:97], s[0:1], 48\ns_waitcnt lgkmcnt(0)"); srd(p, sK, 96, 256)
        p(f"s_cmp_lg_u32 s{sWAVE}, 0\ns_cbranch_scc1 {lab}\ns_cmp_lg_u32 s2, {DBGST}\ns_cbranch_scc1 {lab}")
        p("s_mov_b64 exec, 1\nv_mov_b32 v2, 0")
        for i in range(NSTAMP):
            p(f"s_sub_u32 s{sTMP}, s{sSTAMP+2*i}, s{sSTAMP}\nv_mov_b32 v4, s{sTMP}\nbuffer_store_dword v4, v2, {sr(sK)}, 0 offen offset:{4*i}\ns_nop 1")
        p(f"s_waitcnt vmcnt(0)\n{lab}:")
        return
    p(f"s_add_u32 s96, s90, {STAMP_OFF}\ns_addc_u32 s97, s91, 0"); srd(p, sK, 96, 65536)
    p("s_waitcnt lgkmcnt(0)")
    p(f"s_cmp_lg_u32 s{sWAVE}, 0\ns_cbranch_scc1 {lab}")
    p(f"s_lshl_b32 s{sTMP}, s2, 7\nv_mov_b32 v2, s{sTMP}\ns_mov_b64 exec, 1")
    for i, r in enumerate([sSTAMP + 2 * i for i in range(NSTAMP)] + list(CST.values())):
        p(f"v_mov_b32 v4, s{r}\nv_mov_b32 v5, s{r+1}\nbuffer_store_dwordx2 v[4:5], v2, {sr(sK)}, 0 offen offset:{8*i}\ns_nop 1")
    p(f"s_waitcnt vmcnt(0)\n{lab}:")

def kernel(p):
    name = NAME + "_kernel"
    p.raw(f".globl {name}\n.p2align 8\n.type {name},@function\n{name}:")
    p("s_cmp_ge_u32 s2, 256\ns_cbranch_scc1 L_end")
    p.cur += stp('start')
    p(f"""
s_load_dwordx8 s[76:83], s[0:1], 0
s_load_dwordx8 s[84:91], s[0:1], 32
v_lshrrev_b32 v1, 6, v0
v_and_b32 v0, 63, v0
v_readfirstlane_b32 s{sWAVE}, v1
""")
    if CODEPF:
        p(f"""
s_getpc_b64 s[98:99]
s_lshr_b32 s{sTMP+1}, s2, 3
s_mul_i32 s{sTMP+1}, s{sTMP+1}, {13*128}
v_mul_u32_u24 v252, 3, v1
v_add_lshl_u32 v252, v252, v0, 7
v_add_u32 v252, s{sTMP+1}, v252
v_mov_b32 v253, s99
v_add_co_u32 v252, vcc, s98, v252
v_addc_co_u32 v253, vcc, 0, v253, vcc
s_mov_b64 exec, 15
global_load_dword v{vDUM}, v[252:253], off
s_mov_b64 exec, -1
""", "dummy")
    tab = sum((((k % PH) * (10 - COMMON) + PH // 2) // PH) << (4 * k) for k in range(11))
    p(f"""
s_and_b32 s{sHG}, s2, 7
s_lshr_b32 s{sB}, s2, 5
s_bfe_u32 s{sHL}, s2, 0x20003
s_mul_i32 s{sM0W}, s{sWAVE}, 3072
s_add_u32 s{sTMP+1}, s{sB}, s{sHL}
s_lshl_b32 s{sTMP+1}, s{sTMP+1}, 2
s_mov_b32 s96, {tab & 0xffffffff}
s_mov_b32 s97, {tab >> 32}
s_lshr_b64 s[96:97], s[96:97], s{sTMP+1}
s_and_b32 s{sTMP+1}, s96, 15
s_lshl_b32 s{sXOFF}, s{sTMP+1}, 7
s_mul_i32 s{sWOFF}, s{sTMP+1}, {64*12288}
""")
    if COMMON: p(f"s_mov_b32 s{sRD}, s{sTMP+1}\ns_mov_b32 s{sXOFF}, {(10-COMMON)*128}\ns_mov_b32 s{sWOFF}, {(10-COMMON)*64*12288}")
    if KSTAG: p(f"s_mul_i32 s{sKK}, s2, 11\ns_add_u32 s{sKK}, s{sKK}, s{sB}\ns_and_b32 s{sKK}, s{sKK}, 31\ns_mul_i32 s{sKK}, s{sKK}, {KG*384}")
    else: p(f"s_mov_b32 s{sKK}, 0")
    p(f"s_mov_b32 s{sKOFF}, s{sKK}")
    setup_first(p)
    if not XFIRST:
        p.cur += stp('s0')
        srd(p, sX, 76, 1536 * 1280); p.cur += stp('s1')
    srd(p, sWq, 82, 640 * 12288)
    pool = Pool(12)
    tail = front(p, pool)
    if not QONLY:
        tail, vm31 = attention(p, pool, tail)
        rest = oproj(p, pool, tail, vm31)
        final_reduce(p, rest)
    store_stamps(p)
    p("L_end:\ns_endpgm")
    for t in OUTL: p.raw(t)
    for tr, ret, cur in TRAMPS: p.raw(f"{tr}:\ns_call_b64 s[98:99], L_rare{cur}\ns_branch {ret}")
    rare_path(p, "L_rare0", 0)
    rare_path(p, "L_rare1", 1)
    p.raw(".fill 64, 4, 0xbf800000" if not QONLY else ".fill 12288, 4, 0xbf800000")
    return kernel_desc(name, vgpr=512, accum=256)

def build(path):
    p = Prog()
    p.raw("""; GQA block (q-projection, attention over the cached K/V, out-projection) for gfx950 in one fused kernel.
; @launch grid=(256,1,1) block=(256,1,1) lds=163840
.amdgcn_target "amdgcn-amd-amdhsa--gfx950"
.text""")
    d = kernel(p)
    p.raw('.section .rodata,"a"\n.p2align 6\n' + d)
    txt = p.text()
    if NODMA:
        txt = "\n".join(l for l in txt.split("\n") if not (l.startswith("buffer_load_dwordx4")))
        txt = txt.replace("s_cbranch_vccnz L_tramp", "s_cbranch_execz L_tramp")
    if ST: txt = txt.replace(".amdgcn_target", "; stamps " + repr(ST) + "\n.amdgcn_target", 1)
    open(path, "w").write(txt)
    if VERB:
        import collections
        print(collections.Counter(w.split(':')[0] for w in WARN))
        if VERB > 1:
            for w in WARN: print("WARN", w)
        ls = txt.split("\n")
        marks = [k for k, l in enumerate(ls) if l.endswith(":") and not l.startswith("L_ret")]
        for a, b in zip(marks, marks[1:] + [len(ls)]):
            seg = [l for l in ls[a:b] if l and not l.startswith(".") and not l.startswith(" ")]
            c, nm = estimate(seg)
            if nm: print(f"{ls[a][:28]:28s} est {c:6d} cyc, mfma {nm:4d} ({16*nm})")

STD = {'start': 0, 'X0': 1, 'u8': 2, 'u16': 3, 'E': 4, 'Qend': 5, 'Lend': 6, 'Aend': 7, 'C0b': 8, 'G6': 9, 'ACK': 10, 'end': 11}
if __name__ == "__main__":
    for a in sys.argv[2:]:
        k, v = a.split("=", 1)
        globals()[k] = eval(v)
    build(sys.argv[1])
```

```python
import re, copy

_rng = re.compile(r'^(-|abs\()?([vas])(?:\[(\d+):(\d+)\]|(\d+))\)?$')
def regs_of(tok):
    tok = tok.strip()
    m = _rng.match(tok)
    if not m:
        if tok in ('vcc', 'exec', 'm0', 'scc'):
            return [(tok, 0)]
        if tok in ('vcc_lo', 'vcc_hi'): return [('vcc', 0)]
        return []
    k = m.group(2)
    if m.group(5) is not None:
        return [(k, int(m.group(5)))]
    return [(k, i) for i in range(int(m.group(3)), int(m.group(4)) + 1)]

TRANS = ('v_exp_f32', 'v_log_f32', 'v_rcp_f32', 'v_rsq_f32', 'v_sqrt_f32', 'v_sin_f32', 'v_cos_f32')

class I:
    def __init__(self, text, tag=None):
        self.text = text.strip()
        self.tag = tag
        t = self.text.split(';')[0].strip()
        self.is_label = t.endswith(':')
        self.kind = None
        self.dst = []; self.src = []; self.srcC = []; self.srcAB = []; self.data = []
        self.wide_store = False
        if not t or self.is_label or t.startswith('.'):
            self.kind = 'none'; self.op = ''
            return
        sp = t.split(None, 1)
        op = sp[0]; self.op = op
        rest = sp[1] if len(sp) > 1 else ''
        ops = [o.strip() for o in rest.split(',')] if rest else []
        mods = ''
        if ops:
            l = ops[-1].split()
            ops[-1] = l[0] if l else ''
            mods = ' '.join(l[1:])
        self.mods = mods
        R = regs_of
        if op.startswith('v_mfma'):
            self.kind = 'mfma'
            self.dst = R(ops[0]); self.srcAB = R(ops[1]) + R(ops[2]); self.srcC = R(ops[3])
            self.src = self.srcAB + self.srcC
            self.passes = 4 if '16x16x32' in op else 8
        elif op.startswith('ds_read') or op.startswith('ds_bpermute'):
            self.kind = 'ds'; self.dst = R(ops[0]); self.src = sum((R(o) for o in ops[1:]), [])
        elif op.startswith('ds_write'):
            self.kind = 'ds'; self.src = sum((R(o) for o in ops), [])
        elif op.startswith('buffer_load') or op.startswith('global_load'):
            self.kind = 'vmem'
            if 'lds' in mods.split() or '_lds_' in op:
                self.src = sum((R(o) for o in ops), []) + [('m0', 0)]
                self.dma = True
            else:
                self.dst = R(ops[0]); self.src = sum((R(o) for o in ops[1:]), [])
        elif op.startswith('buffer_store') or op.startswith('buffer_atomic'):
            self.kind = 'vmem'; self.src = sum((R(o) for o in ops), [])
            self.data = R(ops[0])
            if op.startswith('buffer_atomic') and 'sc0' in mods.split():
                self.dst = R(ops[0])
            self.wide_store = len(self.data) >= 3
        elif op.startswith('global_store') or op.startswith('global_atomic'):
            self.kind = 'vmem'; self.src = sum((R(o) for o in ops), [])
            self.data = R(ops[1]); self.wide_store = len(self.data) >= 3
        elif op in ('buffer_wbl2', 'buffer_inv'):
            self.kind = 'vmem'
        elif op.startswith('v_'):
            self.kind = 'valu'
            base = op.replace('_e32', '').replace('_e64', '')
            self.trans = base in TRANS
            if base.startswith('v_permlane'):
                self.dst = R(ops[0]) + R(ops[1]); self.src = list(self.dst); self.permlane = True
            elif base.startswith('v_add_co') or base.startswith('v_addc_co') or base.startswith('v_sub_co'):
                self.dst = R(ops[0]) + R(ops[1]); self.src = sum((R(o) for o in ops[2:]), [])
            elif base == 'v_nop':
                pass
            else:
                self.dst = R(ops[0]); self.src = sum((R(o) for o in ops[1:]), [])
                if base.startswith('v_fmac') or base.startswith('v_writelane'): self.src += self.dst
            self.rdlane = base.startswith('v_readfirstlane') or base.startswith('v_readlane')
        elif op.startswith('s_load') or op in ('s_memtime', 's_memrealtime'):
            self.kind = 'smem'; self.dst = R(ops[0]); self.src = sum((R(o) for o in ops[1:]), [])
        elif op == 's_nop':
            self.kind = 'nop'; self.n = int(ops[0], 0) + 1
        elif op == 's_waitcnt':
            self.kind = 'wait'
            m = re.search(r'vmcnt\((\d+)\)', t); self.vm = int(m.group(1)) if m else None
            m = re.search(r'lgkmcnt\((\d+)\)', t); self.lg = int(m.group(1)) if m else None
        elif op == 'WAITVM':
            self.kind = 'waitvm'; self.wtag = rest.strip()
        elif op.startswith('s_'):
            self.kind = 'salu'
            if op.startswith('s_cmp') or op.startswith('s_cbranch') or op in ('s_branch', 's_barrier', 's_endpgm', 's_setprio', 's_sleep'):
                self.src = sum((R(o) for o in ops), [])
            else:
                self.dst = R(ops[0]); self.src = sum((R(o) for o in ops[1:]), [])
        else:
            raise ValueError("unknown instr: " + t)

class State:
    def __init__(self):
        self.hist = []
        self.lds = []
        self.vm = []
        self.smem = set()
    def clone(self):
        s = State(); s.hist = [[i, d] for i, d in self.hist]; s.lds = list(self.lds); s.vm = list(self.vm); s.smem = set(self.smem)
        return s
    def advance(self, n):
        for h in self.hist: h[1] += n
        self.hist = [h for h in self.hist if h[1] < 24]

def need_ws(p, c):
    n = 0
    pd = set(p.dst)
    cs = set(c.src); cd = set(c.dst)
    if p.kind == 'valu':
        pv = {r for r in pd if r[0] in 'va'}
        ps = {r for r in pd if r[0] in ('s', 'vcc')}
        if c.kind == 'mfma' and pv & cs: n = max(n, 2)
        if c.kind == 'valu':
            if getattr(c, 'permlane', False) and pv & cs: n = max(n, 2)
            if c.rdlane and pv & cs: n = max(n, 1)
            if p.trans and pv & cs: n = max(n, 1)
            if ps & cs: n = max(n, 2)
            if ('vcc', 0) in ps and c.op.startswith('v_cndmask'): n = max(n, 2)
        if c.kind == 'vmem' and ps & cs: n = max(n, 5)
        if c.kind in ('salu',) and ps & cs: n = max(n, 1)
    elif p.kind == 'mfma':
        P = p.passes
        if c.kind == 'mfma':
            if pd & set(c.srcAB): n = max(n, {4: 8, 8: 12}[P])
            if pd & set(c.srcC):
                if not (c.srcC == p.dst and c.passes == P): n = max(n, {4: 6, 8: 10}[P])
            elif pd & cd: n = max(n, {4: 6, 8: 10}[P])
        elif c.kind in ('valu', 'vmem', 'ds'):
            if pd & (cs | cd): n = max(n, {4: 8, 8: 12}[P])
            if c.kind == 'valu' and set(p.srcC) & cd: n = max(n, {4: 3, 8: 7}[P])
    elif p.kind == 'salu':
        if ('m0', 0) in pd and c.kind == 'vmem' and ('m0', 0) in cs: n = max(n, 1)
    elif p.kind == 'vmem':
        if p.wide_store and set(p.data) & cd: n = max(n, 2)
    return n

def _next_mfma(instrs, i):
    for j in range(i, min(i + 8, len(instrs))):
        x = instrs[j]
        if x.kind == 'mfma': return x
        if x.is_label or x.op.startswith('s_cbranch') or x.op in ('s_branch', 's_barrier') or x.kind in ('wait', 'waitvm'): return None
    return None

def analyze(instrs, st):
    out = []
    prev_mfma = False
    for pos, ins in enumerate(instrs):
        lg = None; vm = None; nops = 0
        k = ins.kind
        hoist = None
        if prev_mfma and k not in ('none', 'mfma', 'wait', 'waitvm', 'nop'):
            hoist = _next_mfma(instrs, pos)
        if k != 'none': prev_mfma = (k == 'mfma')
        if k == 'none':
            out.append((None, None, 0)); continue
        if k == 'waitvm':
            idx = [i for i, (d, t) in enumerate(st.vm) if t == ins.wtag]
            if idx:
                vm = len(st.vm) - 1 - idx[-1]
                st.vm = st.vm[idx[-1] + 1:]
                st.advance(1)
            out.append((None, vm, 0)); continue
        if k == 'wait':
            if ins.lg is not None:
                if ins.lg == 0: st.smem = set()
                if len(st.lds) > ins.lg: st.lds = st.lds[len(st.lds) - ins.lg:] if ins.lg else []
            if ins.vm is not None and len(st.vm) > ins.vm:
                st.vm = st.vm[len(st.vm) - ins.vm:] if ins.vm else []
            st.advance(1)
            out.append((None, None, 0)); continue
        if k == 'nop':
            st.advance(ins.n); out.append((None, None, 0)); continue
        touch = set(ins.src) | set(ins.dst)
        if hoist is not None: touch |= set(hoist.src) | set(hoist.dst)
        if st.smem & touch:
            lg = 0
        idx = [i for i, d in enumerate(st.lds) if d & touch]
        if idx:
            n = len(st.lds) - 1 - idx[-1]
            lg = n if lg is None else min(lg, n)
        if lg is not None:
            lg = min(lg, 15)
            st.lds = st.lds[len(st.lds) - lg:] if lg else []
            if lg == 0: st.smem = set()
        idx = [i for i, (d, t) in enumerate(st.vm) if d & touch and not (k == 'vmem' and d == set(ins.dst) and t == 'dummy')]
        if idx:
            vm = min(len(st.vm) - 1 - idx[-1], 63)
            st.vm = st.vm[len(st.vm) - vm:] if vm else []
        if lg is not None or vm is not None:
            st.advance(1)
        for p, d in st.hist:
            nops = max(nops, need_ws(p, ins) - d)
        if nops > 0: st.advance(nops)
        st.advance(1)
        st.hist.append([ins, 0])
        if k == 'ds': st.lds.append(set(ins.dst))
        if k == 'vmem': st.vm.append((set(ins.dst), ins.tag))
        if k == 'smem': st.smem |= set(ins.dst)
        out.append((lg, vm, nops))
    return out

def render(instrs, ann):
    lines = []
    for ins, (lg, vm, nops) in zip(instrs, ann):
        w = []
        if vm is not None: w.append(f"vmcnt({min(vm,63)})")
        if lg is not None: w.append(f"lgkmcnt({lg})")
        if w: lines.append("s_waitcnt " + " ".join(w))
        while nops > 0:
            n = min(nops, 16); lines.append(f"s_nop {n-1}"); nops -= n
        if ins.kind != 'waitvm':
            lines.append(ins.text)
    return lines

def mn(a, b):
    if a is None: return b
    if b is None: return a
    return min(a, b)

class Prog:
    def __init__(self):
        self.lines = []
        self.st = State()
        self.cur = []
        self.uid = 0
    def __call__(self, s, tag=None):
        for l in s.split("\n"):
            if l.strip(): self.cur.append(I(l, tag))
    def add(self, ins): self.cur.append(ins)
    def flush(self):
        ann = analyze(self.cur, self.st)
        self.lines += render(self.cur, ann)
        self.cur = []
    def raw(self, s):
        self.flush(); self.lines += s.split("\n")
    def reset_state(self):
        self.flush(); self.st = State()
    def loop(self, body):
        self.flush()
        s1 = self.st.clone(); a1 = analyze(body, s1)
        s2 = s1.clone(); a2 = analyze(body, s2)
        s3 = s2.clone(); a3 = analyze(body, s3)
        ann = [(mn(mn(x[0], y[0]), z[0]), mn(mn(x[1], y[1]), z[1]), max(x[2], y[2], z[2])) for x, y, z in zip(a1, a2, a3)]
        self.lines += render(body, ann)
        self.st = s3
    def newlabel(self, p="L"):
        self.uid += 1; return f"{p}_{self.uid}"
    def text(self):
        self.flush(); return "\n".join(self.lines) + "\n"

def L(s, tag=None):
    return [I(l, tag) for l in s.split("\n") if l.strip()]

def interleave(mf, fill, lead=0):
    out = []
    tot = sum(c for c, _ in fill)
    n = len(mf)
    acc = 0.0; fi = 0
    for k, m in enumerate(mf):
        out += m
        target = tot * (k + 1) / n
        while fi < len(fill) and acc + fill[fi][0] * 0.5 <= target:
            out += fill[fi][1]; acc += fill[fi][0]; fi += 1
    while fi < len(fill):
        out += fill[fi][1]; fi += 1
    return out


class Item:
    def __init__(self, kind, text, lo=0, hi=10**9, target=None, after=(), tag=None):
        self.kind = kind
        self.ins = L(text, tag) if isinstance(text, str) else text
        self.lo = lo; self.hi = hi; self.target = target; self.after = list(after)
        self.gap = None

def chain(items, lo, hi, mind=1):
    n = len(items)
    for k, it in enumerate(items):
        it.lo = max(it.lo, lo); it.hi = min(it.hi, hi)
        it.target = lo + (hi - lo + 1) * k // max(n, 1)
        if k: it.after.append((items[k - 1], mind if items[k - 1].kind != it.kind or it.kind in 'EM' else 0))
    return items

WARN = []
def pack(mf, items, resA=(), name=""):
    n = len(mf)
    G = {g: dict(A=[], L=[], V=[], X=[], u=0) for g in range(0, n)}
    resA = set(resA)
    def scost(it, g):
        k = len([x for x in it.ins if x.kind != 'none'])
        if it.ins[0].kind == 'waitvm' and k > 1 and it.ins[1].kind == 'wait': k -= 0
        return k - (1 if (not G[g]['A'] and g not in resA) else 0)
    def fits(it, g):
        s = G[g]
        if s['X']: return False
        if getattr(it, 'bar', False) and (s['L'] or s['u'] > 1): return False
        if s.get('bar') and it.kind == 'L': return False
        if it.kind == 'S': return s['u'] + scost(it, g) <= 2
        if it.kind in 'EM':
            if s['u'] != 0: return False
            if getattr(it, 'needA', False) and (s['A'] or g in resA): return False
            if it.kind == 'M':
                for h in (g - 1, g + 1):
                    if h in G and any(x.kind == 'M' for x in G[h]['V']): return False
            return True
        return s['u'] <= 1
    def put(it, g, force=False):
        s = G[g]; it.gap = g
        if force: s['X'].append(it); s['u'] += 2; return
        if it.kind == 'S':
            s['u'] += scost(it, g); s['A'].append(it)
            if getattr(it, 'bar', False): s['bar'] = True; s['u'] += 1
        elif it.kind == 'L': s['L'].append(it); s['u'] += 1
        else:
            s['V'].append(it); s['u'] += 2 if it.kind in 'EM' else 1
            if getattr(it, 'needA', False): resA.add(g)
    idx = {id(it): i for i, it in enumerate(items)}
    order = sorted(range(len(items)), key=lambda i: (0 if items[i].kind == 'L' else 2 if getattr(items[i], 'dense', False) else 1, items[i].target if items[i].target is not None else items[i].lo, i))
    def place(i):
        it = items[i]
        if it.gap is not None: return
        lo = max(it.lo, 0); plo = 0
        for (a, d) in it.after:
            if a.gap is None: place(idx[id(a)])
            lo = max(lo, a.gap + d); plo = max(plo, a.gap)
        hi = min(it.hi, n - 1)
        t = max(lo, it.target if it.target is not None else lo)
        t = min(t, hi)
        cand = list(range(t, hi + 1)) + list(range(t - 1, lo - 1, -1))
        cand = [g for g in cand if g >= lo]
        if it.kind == 'V' and not getattr(it, 'dense', False):
            pref = [g for g in range(max(t, lo), min(t + 4, hi + 1)) if G[g]['u'] == 1]
            cand = pref + cand
        if it.kind == 'S':
            pref = [g for g in range(max(t, lo), min(t + 3, hi + 1)) if scost(it, g) == 0 or (G[g]['u'] == 1 and scost(it, g) == 1)]
            cand = pref + cand
        for g in cand:
            if fits(it, g):
                put(it, g); return
        assert plo <= hi, (name, it.ins[0].text, plo, hi)
        rng = range(max(plo, min(lo, hi)), hi + 1)
        g = min(rng, key=lambda g: (G[g]['u'], g))
        WARN.append(f"{name}: overflow {it.kind} {it.ins[0].text} at gap {g} (lo {lo} hi {hi})")
        put(it, g, True)
    for i in order: place(i)
    out = []
    for g, (head, m) in enumerate(mf):
        out.extend(head); out.append(m)
        s = G[g]
        for it in s['A'] + s['L'] + s['V'] + s['X']: out.extend(it.ins)
    return out

def estimate(lines):
    cyc = 0; t = 0; mfree = 0; vfree = 0; prev = None; nm = 0
    for l in lines:
        ins = I(l)
        if ins.kind == 'none': continue
        if ins.kind == 'mfma':
            t = max(t, mfree, vfree); mfree = t + 16; vfree = t + 8; t += 4; nm += 1
        elif ins.kind in ('salu', 'wait', 'smem'):
            t += 8 if ins.op.startswith('s_cbranch') else 4
        elif ins.kind == 'nop': t += 4 * ins.n
        else:
            t = max(t, vfree)
            if ins.kind in ('ds', 'vmem') and prev is not None and prev.kind == 'valu': t += 8
            c = 8 if (ins.kind == 'vmem' or (ins.kind == 'valu' and ins.trans)) else 4
            if ins.op.startswith('v_pk'): t = max(t, mfree); c = 8
            t += c; vfree = t
        prev = ins
    return max(t, mfree), nm

def fix_ll(text):
    ls = text.split("\n"); out = []
    for k, l in enumerate(ls):
        out.append(l)
        if l.startswith("v_mfma") and k + 2 < len(ls) and ls[k + 1].startswith("ds_read") and ls[k + 2].startswith("ds_read"):
            out.append("s_nop 0")
    return "\n".join(out)
```

```python
import sys, math, struct
from sched import *
from asmlib import kernel_desc

NAME = "standalone__gqa_block_cached__near_ridge"
SLOT = 12288
GSZ = 20480
NT = "nt"
CODEPF = True
PH = 3
VMLIM = 2
DMAHI = 22
SNAKE = True
KSTAG = True
NDB = 4
NBM = 3
NST = 4
NEO = 2
SCHED = 10
KVSPAN = 150
PLAN = {27: ['kv', 'r', 'l'], 28: ['kv', 0, 1], 29: [2, 3], 30: [4]}
OCH = [(0,'W6'),(50,'S2'),(62,'F0'),(76,'S3'),(90,'W7'),(114,'P0'),(132,'C0'),(136,'b3'),(160,'F1'),(164,'b4'),(188,'S4'),(196,'S5'),(210,'b5'),(234,'P1'),(236,'W8'),(258,'C1'),
       (262,'b6'),(284,'F2'),(288,'b7'),(310,'W9'),(332,'P2'),(334,'b8'),(356,'C2'),(360,'b9'),(382,'W10'),(404,'b10'),(426,'W11'),(448,'b11')]
LATESET = True
BARFIX = True
LLFIX = 0
QBAR = [1, 2, 3, 4, 5, 6, 7, 8, 9, 10, 11, 12, 14, 16]
OBAR = None
KG = 32
TRI = False
ROT = True
LATEHI = 432
COMMON = 0
WHI = 62
LOOPS = [(9, (6,), 62), (27, (5,), 54)]
SPW = 20
OWN = 1
WIN = (5,)
PRE31 = (5,)
SP30 = 9
XPF = 0
XFIRST = True
AMP = None
RAMP = ()
D0 = 3
PWQ = None
VMTAIL = None
LOCAL = True
NLOC = 4
NBA = 2
FAPOS = 74
GS = 6
PART_OFF = 20 << 20
FLAG_OFF = 40 << 20
WS_SIZE = 41 << 20
STAMP_OFF = 64 << 20
ST = {}
NSTAMP = 12
DBGST = None
TRACE = 0
NODMA = 0
QONLY = 0
VERB = 0
OOB = 0x7f000000

def f32(x): return "0x%08x" % struct.unpack("<I", struct.pack("<f", x))[0]
def vr(b, n=4): return f"v[{b}:{b+n-1}]"
def ar(b, n=4): return f"a[{b}:{b+n-1}]"
def sr(b, n=4): return f"s[{b}:{b+n-1}]"
MF = "v_mfma_f32_16x16x32_bf16"
def srd(p, d, lo, nbytes):
    p(f"s_mov_b32 s{d}, s{lo}\ns_and_b32 s{d+1}, s{lo+1}, 0xffff\ns_mov_b32 s{d+2}, {nbytes}\ns_mov_b32 s{d+3}, 0x00020000")

sLTHR = 3
sK, sV, sWq, sX, sWS, sWo, sOUT = 4, 8, 12, 16, 20, 24, 28
sWAVE, sB, sSC, sHG, sHL = 32, 33, 34, 35, 36
sM0W, sKOFF, sWR, sRD, sT, sKK = 37, 38, 39, 40, 41, 42
sWOFF, sXOFF, sWW = 43, 44, 45
sTMP = 46
sSTAMP = 52
sHI = 76
sTK1, sTK2 = 92, 94
sJ = 33
TOKC = (0x9e3779b9, 0x7f4a7c15)
F2BASE = 256 * 256
CST = {'Qend': 80, 'Lend': 82, 'C0b': 88, 'ACK': 100}
def stp(name):
    r = []
    if name in ST: r.append(I(f"s_memrealtime s[{sSTAMP+2*ST[name]}:{sSTAMP+2*ST[name]+1}]"))
    if ST and name in CST: r.append(I(f"s_memtime s[{CST[name]}:{CST[name]+1}]"))
    return r

vKD, vVD, vWD = 2, 5, 8
vXD = 11
vWOD, vPWO = 11, 16
vKL, vVL = 17, 19
vKA, vVA = 23, 25
vXR = 29
vOL, vPT = 30, 31
vT0 = 31
vDUM = 248
vF1, vF2 = 250, 251
vVB = 252
vWOL, vOUT = 252, 254
vACC = 32; vQ = 176
vS = (32, 56); vP = (80, 92); vNM = 104; vE = 120; vCK = 130; vR = 132; vL = (144, 156)
NE = 5
vB = 32; vRC = 136; vTK = 6; vTK2 = 18; vFLV = 28
vWA = (23, 20, 25, 16)
vRCS = (1, 10, 249)
vF2R = 22
vC = 56
aO = 0; aPOOL = 144; aC = 0; aX = 0; NXB = 6; aONE = 240; aPARK = 244
PARK = [vWOD + j for j in range(5)] + [vPWO, vWOL, vWOL + 1, vOL, vPT, vOUT]
def qfrag(qb, s): return vQ + (qb * 6 + s) * 4
def qacc(db, qb): return vACC + (db * 3 + qb) * 4
def oacc(db, qb): return aO + (db * 3 + qb) * 4
def cacc(nb, qb): return vC + (nb * 3 + qb) * 4
def sreg(buf, qb, kb): return vS[buf] + (qb * 2 + kb) * 4
def bfrag(u, qb):
    if u < 6: return vr(vQ + (u * 3 + qb) * 4)
    k = (u - 6) * 3 + qb
    if k < 16: return ar(192 + k * 4)
    k -= 16
    return ar(k * 4) if k < 36 else vr(32 + (k - 36) * 4)

LAYOUT = 2
def xs0(): return 5 if LAYOUT == 0 else 4
def xpair(c): return 5 + 2 * (c % 2) if LAYOUT == 0 else 6 - 2 * (c % 2)
WRING = [9, 10, 11, 1, 12]
def wslot(u):
    if LAYOUT == 0: return WRING[u % 5]
    return [1, 8, 9, 10, 11, 12][u % 6] if u < 14 else u - 8 if u < 16 else u - 7
def kvslot(kind, i): return 2 * (i % 6) if kind == 'K' else 2 * ((i + 1) % 6) + 1
def gic(G): return (0, G) if G < 3 else (1 + (G - 3) % 3, (G - 3) // 3)
def goff(G): return ((G + 4) % 8) * GSZ
TRAMPS = []; OUTL = []

def tile_rows(p, t, j):
    p(f"""
v_add_u32 v{t+2}, {8*j}, v{t}
v_mul_u32_u24 v{t+3}, 11, v{t+2}
v_lshrrev_b32 v{t+3}, 5, v{t+3}
v_mul_u32_u24 v{t+4}, 3, v{t+3}
v_sub_u32 v{t+4}, v{t+2}, v{t+4}
v_add_u32 v{t+3}, s{sTMP}, v{t+3}
v_and_b32 v{t+5}, 6, v{t+3}
v_xor_b32 v{t+5}, v{t+5}, v{t+1}
v_lshlrev_b32 v{t+5}, 4, v{t+5}
""")
def setup_first(p):
    t = 240
    p(f"""
v_lshrrev_b32 v{t}, 3, v0
v_and_b32 v{t+1}, 7, v0
s_lshl_b32 s{sTMP}, s{sWAVE}, 3
s_lshl_b32 s{sTMP+1}, s{sB}, 2
s_add_u32 s{sTMP+1}, s{sTMP+1}, s{sWAVE}
s_mul_i32 s{sTMP+4}, s{sTMP+1}, {48*1280}
s_lshl_b32 s{sTMP+2}, s{sHG}, 2
s_add_u32 s{sTMP+5}, s{sTMP+2}, s{sHL}
s_mul_i32 s{sTMP+2}, s{sTMP+5}, 384
""")
    for half in range(2):
        p(f"""
v_lshrrev_b32 v{t+2}, 1, v{t}
v_add_u32 v{t+2}, {4*half}, v{t+2}
v_xor_b32 v{t+2}, v{t+2}, v{t+1}
v_lshlrev_b32 v{t+2}, 4, v{t+2}
v_add_u32 v{t+3}, {8*half}, v{t}
v_mul_u32_u24 v{t+3}, 1280, v{t+3}
v_add3_u32 v{vXD+half}, v{t+2}, v{t+3}, s{sTMP+4}
v_add_u32 v{vXD+2+half}, {20480-1024}, v{vXD+half}
v_add_u32 v{vXD+4+half}, {2*(20480-1024)}, v{vXD+half}
""")
    if XFIRST:
        p.cur += stp('s0')
        srd(p, sX, 76, 1536 * 1280); p.cur += stp('s1')
        xpf = f"""s_lshl_b32 s96, s2, 2
s_add_u32 s96, s96, s{sWAVE}
s_mul_i32 s96, s96, 1920
v_lshlrev_b32 v{t+2}, 7, v0
s_mov_b64 exec, 0x7fff
buffer_load_dword v{vDUM}, v{t+2}, {sr(sX)}, s96 offen
s_mov_b64 exec, -1"""
        if XPF == 1: p(xpf, "dummy")
        flat(p, issue('X0'))
        if XPF == 2: p(xpf, "dummy")
    for j in range(3):
        tile_rows(p, t, j)
        p(f"""
v_bfe_u32 v{t+6}, v{t+3}, 2, 2
v_lshlrev_b32 v{t+6}, 3, v{t+6}
v_lshrrev_b32 v{t+7}, 4, v{t+3}
v_lshl_add_u32 v{t+6}, v{t+7}, 2, v{t+6}
v_and_b32 v{t+7}, 3, v{t+3}
v_add_u32 v{t+6}, v{t+6}, v{t+7}
v_mul_u32_u24 v{t+6}, 12288, v{t+6}
v_lshl_add_u32 v{t+6}, v{t+4}, 7, v{t+6}
v_add3_u32 v{t+6}, v{t+6}, v{t+5}, s{sTMP+2}
v_subrev_u32 v{vWD+j}, {1024*j}, v{t+6}
""")
def setup_reads(p):
    t = 232
    p(f"""
v_and_b32 v{t}, 15, v0
v_lshrrev_b32 v{t+1}, 4, v0
v_lshrrev_b32 v{t+2}, 1, v{t}
v_xor_b32 v{t+2}, v{t+2}, v{t+1}
v_lshlrev_b32 v{t+5}, 4, v{t+2}
v_and_b32 v{t+3}, 7, v{t}
v_lshl_add_u32 v{t+5}, v{t+3}, 7, v{t+5}
v_lshrrev_b32 v{t+3}, 3, v{t}
v_mul_u32_u24 v{t+3}, 12288, v{t+3}
v_add3_u32 v{t+5}, v{t+5}, v{t+3}, s{sM0W}
v_add_u32 v{vXR}, {xs0()*SLOT}, v{t+5}
v_xor_b32 v{vXR+1}, 64, v{vXR}
v_bfe_u32 v{t+3}, v{t+2}, 1, 1
v_and_b32 v{t+4}, 1, v{t+2}
v_lshl_add_u32 v{t+3}, v{t+4}, 1, v{t+3}
v_and_b32 v{t+4}, 4, v{t+2}
v_or_b32 v{t+3}, v{t+3}, v{t+4}
v_lshlrev_b32 v{t+3}, 4, v{t+3}
v_mul_u32_u24 v{t+4}, 384, v{t}
v_add_u32 v{vKL}, v{t+3}, v{t+4}
v_xor_b32 v{vKL+1}, 64, v{vKL}
v_mov_b32 v{vKA}, v{vKL}
v_mov_b32 v{vKA+1}, v{vKL+1}
v_lshrrev_b32 v{t+2}, 2, v0
v_mul_u32_u24 v{t+3}, 384, v{t+2}
v_bfe_u32 v{t+4}, v{t+2}, 1, 2
v_lshl_add_u32 v{t+3}, v{t+4}, 5, v{t+3}
v_and_b32 v{t+4}, 3, v0
v_lshl_add_u32 v{vVL}, v{t+4}, 3, v{t+3}
v_xor_b32 v{vVL+1}, 32, v{vVL}
v_xor_b32 v{vVL+2}, 64, v{vVL}
v_xor_b32 v{vVL+3}, 96, v{vVL}
""")
def setup_rest(p):
    t = 240
    p(f"""
s_lshl_b32 s{sTMP+1}, s{sB}, 3
s_add_u32 s{sTMP+1}, s{sTMP+1}, s{sHG}
s_lshl_b32 s96, s{sTMP+1}, 2
s_add_u32 s{sTMP+1}, s96, s{sWAVE}
s_lshl_b32 s{sTMP+1}, s{sTMP+1}, 8
s_add_u32 s{sTMP+1}, s{sTMP+1}, {FLAG_OFF}
s_lshl_b32 s{sTMP+2}, s{sB}, 2
s_add_u32 s{sTMP+2}, s{sTMP+2}, s{sHL}
s_lshl_b32 s{sTMP+2}, s{sTMP+2}, 2
s_add_u32 s97, s{sTMP+2}, s{sWAVE}
s_lshl_b32 s{sTMP+2}, s97, 8
s_add_u32 s{sTMP+2}, s{sTMP+2}, {FLAG_OFF + F2BASE}
v_and_b32 v{t+2}, 3, v0
v_lshl_add_u32 v{vF1}, v{t+2}, 3, s{sTMP+1}
v_and_b32 v{t+2}, 15, v0
v_lshl_add_u32 v{vF2}, v{t+2}, 3, s{sTMP+2}
s_add_u32 s{sTMP+1}, s{sTMP+1}, 96
s_add_u32 s{sTMP+2}, s{sTMP+2}, 192
s_mul_i32 s{sJ}, s97, {3 if ROT else 0}
s_add_u32 s{sJ}, s{sJ}, s{sHG}
s_and_b32 s{sJ}, s{sJ}, 7
s_load_dwordx2 s[{sTK1}:{sTK1+1}], s[90:91], s{sTMP+1}
s_load_dwordx2 s[{sTK2}:{sTK2+1}], s[90:91], s{sTMP+2}
s_add_u32 s{sTMP+1}, s96, s{sHL}
s_mul_i32 s{sTMP+1}, s{sTMP+1}, 393216
s_add_u32 s78, s78, s{sTMP+1}
s_addc_u32 s79, s79, 0
s_add_u32 s80, s80, s{sTMP+1}
s_addc_u32 s81, s81, 0
""")
    LG = KG.bit_length() - 1
    srd(p, sK, 78, 393216); srd(p, sV, 80, 393216)
    srd(p, sWS, 90, WS_SIZE); srd(p, sWo, 84, 6144 * 1280); srd(p, sOUT, 86, 1536 * 1280)
    for j in range(3):
        tile_rows(p, t, j)
        p(f"""
v_lshrrev_b32 v{t+7}, {LG}, v{t+3}
v_lshlrev_b32 v{t+7}, {LG+5}, v{t+7}
v_and_b32 v{t+6}, {KG-1}, v{t+3}
v_add_u32 v{t+7}, v{t+7}, v{t+6}
v_mul_u32_u24 v{t+7}, 384, v{t+7}
v_lshl_add_u32 v{t+7}, v{t+4}, 7, v{t+7}
v_subrev_u32 v{t+7}, {1024*j}, v{t+7}
v_add_u32 v{vVD+j}, v{t+7}, v{t+5}
v_bfe_u32 v{t+5}, v{t+3}, 2, 1
v_and_b32 v{t+6}, 2, v{t+3}
v_or_b32 v{t+5}, v{t+5}, v{t+6}
v_lshrrev_b32 v{t+6}, 1, v{t+3}
v_and_b32 v{t+6}, 4, v{t+6}
v_or_b32 v{t+5}, v{t+5}, v{t+6}
v_xor_b32 v{t+5}, v{t+5}, v{t+1}
v_lshl_add_u32 v{vKD+j}, v{t+5}, 4, v{t+7}
""")
    t = 232
    park = lambda r, v: p(f"v_accvgpr_write_b32 a{aPARK + PARK.index(r)}, v{v}")
    u = 224
    p(f"""
s_mul_i32 s{sTMP+1}, s{sHG}, {768*1280}
s_mul_i32 s{sTMP+2}, s{sHL}, 320
s_mul_i32 s{sTMP+3}, s{sWAVE}, {16*1280}
s_add_u32 s{sTMP+3}, s{sTMP+3}, s{sTMP+1}
s_add_u32 s{sTMP+3}, s{sTMP+3}, s{sTMP+2}
""")
    for j in range(5):
        p(f"""
v_add_u32 v{u}, {64*j}, v0
v_mul_u32_u24 v{u+1}, 205, v{u}
v_lshrrev_b32 v{u+1}, 12, v{u+1}
v_mul_u32_u24 v{u+2}, 20, v{u+1}
v_sub_u32 v{u+2}, v{u}, v{u+2}
v_lshrrev_b32 v{u+3}, 1, v{u+1}
v_and_b32 v{u+3}, 2, v{u+3}
v_xor_b32 v{u+2}, v{u+2}, v{u+3}
v_mul_u32_u24 v{u+1}, 1280, v{u+1}
v_lshl_add_u32 v{u+1}, v{u+2}, 4, v{u+1}
v_add_u32 v{u+1}, s{sTMP+3}, v{u+1}
v_subrev_u32 v{u+1}, {1024*(j%4)}, v{u+1}
""")
        park(vWOD + j, u + 1)
    p(f"""
s_lshr_b32 s{sTMP+3}, s2, 3
s_lshl_b32 s{sTMP+3}, s{sTMP+3}, 2
s_add_u32 s{sTMP+3}, s{sTMP+3}, s{sWAVE}
s_mul_i32 s{sTMP+3}, s{sTMP+3}, {60*128}
s_add_u32 s{sTMP+3}, s{sTMP+3}, s{sTMP+1}
v_lshlrev_b32 v{u}, 7, v0
v_add_u32 v{u}, s{sTMP+3}, v{u}
v_cmp_gt_u32 vcc, 60, v0
v_mov_b32 v{u+1}, {OOB}
v_cndmask_b32 v{u}, v{u+1}, v{u}, vcc
""")
    park(vPWO, u)
    p(f"""
v_mul_u32_u24 v{u}, 320, v{t+2}
v_lshl_add_u32 v{u}, v{t+4}, 3, v{u}
v_and_b32 v{u+1}, 16, v0
v_lshlrev_b32 v{u+1}, 1, v{u+1}
v_add_u32 v{u+2}, v{u}, v{u+1}
v_sub_u32 v{u+3}, v{u}, v{u+1}
""")
    park(vWOL, u + 2); park(vWOL + 1, u + 3)
    p(f"""
s_mul_i32 s96, s96, 73728
s_add_u32 s96, s96, s{sM0W}
s_mul_i32 s97, s97, {8*15360}
s_add_u32 s97, s97, {PART_OFF}
v_lshlrev_b32 v{u}, 4, v0
v_add_u32 v{u+2}, s96, v{u}
v_add_u32 v{u+3}, s97, v{u}
""")
    park(vOL, u + 2); park(vPT, u + 3)
    p(f"""
s_add_u32 s{sTMP+2}, s{sTMP+2}, s{sTMP+4}
v_mul_u32_u24 v{u}, 1280, v{t}
v_add3_u32 v{u}, v{u}, v{u+1}, s{sTMP+2}
v_lshrrev_b32 v{u+2}, 5, v0
v_lshl_add_u32 v{u}, v{u+2}, 4, v{u}
""")
    park(vOUT, u)
    p(f"v_mov_b32 v{u}, 0x3f803f80\nv_cmp_eq_u32 vcc, 0, v{t+4}\nv_cndmask_b32 v{u}, 0, v{u}, vcc")
    for r in range(4): p(f"v_accvgpr_write_b32 a{aONE+r}, v{u}")
    for i in range(4):
        p(f"s_add_u32 s{sHI+i}, s{sHL}, {i}\ns_and_b32 s{sHI+i}, s{sHI+i}, 3\ns_mul_i32 s{sHI+i}, s{sHI+i}, 3")
    SC = math.log2(math.e) / math.sqrt(192.0)
    p(f"""
s_mul_i32 s{sWW}, s{sWAVE}, 5120
s_mov_b32 s{sLTHR}, {f32(LTHR)}
s_mov_b32 s{sSC}, {f32(SC)}
s_add_u32 s{sWR}, s{sM0W}, {2*(D0+1)*SLOT}
s_mov_b32 s{sRD}, 0
s_mov_b32 s{sT}, 1
""")

def S(t, **k): return Item('S', t, **k)
def V(t, **k): return Item('V', t, **k)
def wrap0(s, inc, lim, zero="0"):
    return [S(f"s_add_u32 s{s}, s{s}, {inc}"), S(f"s_cmp_ge_u32 s{s}, {lim}\ns_cselect_b32 s{s}, {zero}, s{s}")]
def dma_tile(kind, pre, so, tag=None, post=()):
    vd, srn, pol = {'K': (vKD, sK, NT), 'V': (vVD, sV, NT), 'W': (vWD, sWq, "")}[kind]
    g = [S(x) for x in pre]
    for j in range(3):
        g.append(Item('M', f"buffer_load_dwordx4 v{vd+j}, {sr(srn)}, {so} offen offset:{1024*j} {pol} lds", tag=tag))
    return g + list(post)
def dma_kv_static(kind, i):
    so = sKK if kind == 'K' else sKOFF
    return dma_tile(kind, [f"s_add_u32 m0, s{sM0W}, {kvslot(kind,i)*SLOT}"], f"s{so}", f"{kind}{i}", wrap0(so, KG * 384, 32 * KG * 384))
def dma_w(u):
    return dma_tile('W', [f"s_add_u32 m0, s{sM0W}, {wslot(u)*SLOT}"], f"s{sWOFF}", f"W{u}",
                    wrap0(sWOFF, 32 * 12288, 640 * 12288) if not COMMON else
                    [S(f"s_add_u32 s{sWOFF}, s{sWOFF}, {32*12288}")] if u < 2 * COMMON - 1 else
                    [S(f"s_mul_i32 s{sWOFF}, s{sRD}, {64*12288}")] if u == 2 * COMMON - 1 else wrap0(sWOFF, 32 * 12288, (10 - COMMON) * 64 * 12288))
def dma_x(c):
    g = []
    for half in range(2):
        g.append(S(f"s_add_u32 m0, s{sM0W}, {(xpair(c)+half)*SLOT}"))
        for qb in range(3):
            g.append(Item('M', f"buffer_load_dwordx4 v{vXD+2*qb+half}, {sr(sX)}, s{sXOFF} offen offset:{1024*qb} lds", tag=f"X{c}"))
    if COMMON and c < COMMON - 1: return g + [S(f"s_add_u32 s{sXOFF}, s{sXOFF}, 128")]
    if COMMON and c == COMMON - 1: return g + [S(f"s_lshl_b32 s{sXOFF}, s{sRD}, 7")]
    return g + wrap0(sXOFF, 128, (10 - COMMON) * 128)
def spread_kv(its, lo, hi):
    ms = [x for x in its if x.kind == 'M']
    chain(its, lo, hi)
    for k, x in enumerate(ms):
        x.target = lo + 1 + (hi - lo) * k // 5
        w = WIN[k % len(WIN)] - 1
        x.ins = [I(f"s_waitcnt vmcnt({w})")] + x.ins; x.needA = True
    t = lo
    for x in reversed(its):
        if x.kind == 'M': t = x.target
        elif any(its.index(y) > its.index(x) for y in ms): x.target = max(lo, t - 3)
        else: x.target = hi + 1
    return its
def kv_issue(nok=False):
    dk = dma_tile('K', [f"s_mov_b32 m0, s{sWR}"], f"s{sKK}") if not nok else []
    dv = dma_tile('V', [f"s_add_u32 m0, s{sWR}, {SLOT}"], f"s{sKOFF}")
    if nok: return dv
    return dk + dv + [S(f"s_mov_b32 s{sKOFF}, s{sKK}")] + wrap0(sKK, KG * 384, 32 * KG * 384) + wrap0(sWR, 2 * SLOT, 12 * SLOT, f"s{sM0W}")
def dma_wo(G):
    sl = goff(G); i, c = gic(G)
    g = [S(f"s_add_u32 s{sWOFF}, s{sHI+i}, {c}"), S(f"s_mul_i32 s{sWOFF}, s{sWOFF}, {64*1280}")]
    for j in range(5):
        if j == 0: g.append(S(f"s_add_u32 m0, s{sWW}, {sl}"))
        if j == 4: g.append(S(f"s_add_u32 m0, s{sWW}, {sl+4096}"))
        g.append(Item('M', f"buffer_load_dwordx4 v{vWOD+j}, {sr(sWo)}, s{sWOFF} offen offset:{1024*(j%4)} lds", tag=f"G{G}"))
    return g
def xfrag(c, ks, qb): return aX + (c % NXB) * 24 + (ks * 3 + qb) * 4
def read_x(c):
    off = (xpair(c) - xs0()) * SLOT
    return [Item('L', f"ds_read_b128 {ar(xfrag(c,ks,qb))}, v{vXR+ks} offset:{off + qb*1024}") for ks in range(2) for qb in range(3)]
def flat(p, items):
    for it in items: p.cur += it.ins
def snake(mf, k): return mf[::-1] if (SNAKE and k & 1) else mf
class Pool:
    def __init__(self, size): self.n = 0; self.size = size
    def next(self):
        r = aPOOL + 4 * (self.n % self.size); self.n += 1; return r
def vunit_reads(buf, db, imm, va):
    return [f"ds_read_b64_tr_b16 {ar(buf,2)}, v{va+(db&3)} offset:{imm + (db>>2)*128}",
            f"ds_read_b64_tr_b16 {ar(buf+2,2)}, v{va+(db&3)} offset:{imm + (db>>2)*128 + 6144}"]

T = 4
RGAP = 6
class Stream:
    def __init__(self, tail=()):
        self.mf = []; self.items = []; self.resA = set()
        for u in tail: self.add_unit(u)
    def n(self): return len(self.mf)
    def add_unit(self, u):
        u['first'] = len(self.mf)
        if u.get('reads'): self.resA.add(len(self.mf) - 1)
        for k, m in enumerate(u['mf']): self.mf.append((u.get('head', []) if k == 0 else [], m))
    def reads(self, units, lo, hi, after=()):
        its = []
        tot = sum(len(u['reads']) for u in units); k = 0
        for u in units:
            g = lo + (hi - lo + 1) * k // tot
            for r in u['reads']:
                it = Item('L', r, lo=lo, hi=max(lo, min(hi, u['first'] - 5)), target=g, after=list(after) + ([(its[-1], 0)] if its else []))
                it.use = u['first']
                its.append(it); k += 1
        self.items += its
        return its
    def barrier(self, g, wait, after=()):
        w = Item('S', [x if isinstance(x, I) else I(x) for x in wait], lo=g, hi=g + 2, target=g, after=after)
        b = Item('S', "s_barrier", lo=g + 1, hi=g + 3, after=[(w, 1)])
        b.bar = BARFIX
        self.items += [w, b]
        return b
    def add(self, its): self.items += its; return its
    def emit(self, keep=0, name=""):
        mf = self.mf[:len(self.mf) - keep] if keep else self.mf
        out = pack(mf, self.items, self.resA, name)
        for it in self.items:
            if hasattr(it, 'use'):
                d = set(it.ins[0].dst)
                assert it.gap < it.use, (name, it.ins[0].text)
                for g in range(it.gap + 1, it.use):
                    assert not (d & set(self.mf[g][1].src)), ("pool WAR", name, it.ins[0].text, it.gap, g)
        return out

def qk_unit(pool, buf, kb, ds, c0, imm, k):
    pb = pool.next()
    mf = []
    for qb in range(3):
        d = sreg(buf, qb, kb)
        c = vr(d) if ds else (0 if c0 else vr(vNM + 4 * qb))
        mf.append(I(f"{MF} {vr(d)}, {ar(pb)}, {vr(qfrag(qb,ds))}, {c}"))
    return dict(reads=[f"ds_read_b128 {ar(pb)}, v{vKA+(ds&1)} offset:{imm + kb*6144 + (ds>>1)*128}"], mf=snake(mf, k))
def qk_units(pool, buf, imm, zero=()):
    return [qk_unit(pool, buf, kb, ds, kb in zero, imm, ds) for kb in range(2) for ds in range(6)]
def rs_unit(buf, zero=False):
    return dict(reads=None, mf=[I(f"{MF} {vr(vL[buf]+4*qb)}, {ar(aONE)}, {vr(vP[buf]+4*qb)}, {0 if zero else vr(vL[buf^1]+4*qb)}") for qb in range(3)])
def pv_units(pool, buf, imm, zero=False):
    units = []
    for db in range(12):
        pb = pool.next()
        z = zero and db < 12 - T
        mf = [I(f"{MF} {ar(oacc(db,qb))}, {ar(pb)}, {vr(vP[buf]+4*qb)}, {0 if z else ar(oacc(db,qb))}") for qb in range(3)]
        units.append(dict(reads=vunit_reads(pb, db, SLOT + imm, vVA), mf=snake(mf, db)))
    return units
PAIRS = [(qb, kb, h) for kb in range(2) for qb in range(3) for h in range(2)]
def softmax_items(buf, n0, n1, lo, hi, pre=None):
    ex = []; cv = []; ex0 = []
    for n in range(n0, n1):
        qb, kb, h = PAIRS[n]
        s = sreg(buf, qb, kb) + 2 * h
        e = vE + 2 * (n % NE)
        a = Item('E', f"v_exp_f32 v{e}, v{s}"); b = Item('E', f"v_exp_f32 v{e+1}, v{s+1}")
        if len(cv) >= NE: a.after.append((cv[-NE], 1))
        if pre:
            for k, x in enumerate((a, b)):
                sub = V(f"v_add_f32 v{s+k}, v{s+k}, v{vNM+4*qb}", lo=lo, hi=hi, after=[(pre, 1)])
                x.after.append((sub, 1)); ex0.append((sub, x))
        ex += [a, b]
        cv.append(V(f"v_cvt_pk_bf16_f32 v{vP[buf]+4*qb+2*kb+h}, v{e}, v{e+1}", lo=lo, hi=hi, after=[(b, 1)]))
    chain(ex, lo, hi - 1)
    for e in ex: e.hi = hi
    for k, c in enumerate(cv): c.target = ex[2 * k + 1].target + 1
    for sub, x in ex0: sub.target = max(lo, x.target - 2)
    return [s for s, _ in ex0] + ex + cv
SPLIT = 6
LTHR = 2.0 ** 40
def rowmax_text(buf, qb, d, t):
    s0, s1 = sreg(buf, qb, 0), sreg(buf, qb, 1)
    return [f"v_max3_f32 v{d}, v{s0}, v{s0+1}, v{s0+2}", f"v_max3_f32 v{t}, v{s1}, v{s1+1}, v{s1+2}",
            f"v_max3_f32 v{d}, v{d}, v{s0+3}, v{s1+3}", f"v_max_f32 v{d}, v{d}, v{t}",
            f"v_mov_b32 v{t}, v{d}", f"v_permlane32_swap_b32 v{d}, v{t}", f"v_max_f32 v{d}, v{d}, v{t}",
            f"v_mov_b32 v{t}, v{d}", f"v_permlane16_swap_b32 v{d}, v{t}", f"v_max_f32 v{d}, v{d}, v{t}"]
def rare_path(p, label, buf):
    p.reset_state()
    p(f"{label}:\ns_nop 15")
    for qb in range(3):
        d = vR + qb
        p("\n".join(rowmax_text(buf, qb, d, vR + 8)))
        p(f"v_max_f32 v{d}, 0, v{d}")
        for r in range(4): p(f"v_sub_f32 v{vNM+4*qb+r}, v{vNM+4*qb+r}, v{d}")
        for bb in (buf, buf ^ 1):
            for r in range(8): p(f"v_sub_f32 v{sreg(bb,qb,0)+r}, v{sreg(bb,qb,0)+r}, v{d}")
        p(f"v_exp_f32_e64 v{vR+4+qb}, -v{d}")
    for qb in range(3):
        for r in range(4): p(f"v_mul_f32 v{vL[buf^1]+4*qb+r}, v{vL[buf^1]+4*qb+r}, v{vR+4+qb}")
        for r in [oacc(db, qb) + r for db in range(12) for r in range(4)]:
            p(f"v_accvgpr_read_b32 v{vR+9}, a{r}\nv_mul_f32 v{vR+9}, v{vR+9}, v{vR+4+qb}\nv_accvgpr_write_b32 a{r}, v{vR+9}")
    for (qb, kb, h) in PAIRS:
        s = sreg(buf, qb, kb) + 2 * h
        p(f"v_exp_f32 v{vE}, v{s}\nv_exp_f32 v{vE+1}, v{s+1}\nv_cvt_pk_bf16_f32 v{vP[buf]+4*qb+2*kb+h}, v{vE}, v{vE+1}")
    p.cur += rs_unit(buf)['mf']
    p(f"s_nop 15\ns_setpc_b64 s[98:99]")
    p.flush()

KVPRE = ['K0', 'K1', 'V0', 'K2', 'V1', 'K3', 'V2', 'K4', 'V3']
def get_sched():
    PRO = ['X0', 'W0', 'W1', 'W2']; PRO2 = ['X1']
    QS = {0: (['W3'], None, []), 1: (['W4', 'W5'], 1, ['X2']), 2: (['W6'], None, ['X3']), 3: (['W7'], 2, ['X4']), 4: (['W8'], 3, ['X5']),
          5: (['W9', 'K0', 'K1'], None, []), 6: (['W10'], 4, ['X6']), 7: (['W11'], 5, ['X7']), 8: (['W12', 'V0', 'K2'], None, []),
          9: (['W13'], 6, ['X8']), 10: (['W14'], 7, ['X9']), 11: (['W15'], None, []), 12: (['W16'], 8, []), 13: (['W17'], 9, []),
          14: (['W18'], None, []), 15: (['W19'], None, []), 16: (['V1', 'K3', 'V2', 'K4', 'V3'], None, [])}
    if SCHED == 1:
        QS[5] = (['W9'], None, []); QS[8] = (['W12', 'K0', 'K1'], None, []); QS[11] = (['W15', 'V0', 'K2'], None, [])
    if SCHED == 2:
        QS[5] = (['W9'], None, []); QS[8] = (['W12'], None, []); QS[11] = (['W15', 'K0', 'K1'], None, [])
        QS[15] = (['W19', 'V0', 'K2'], None, [])
    if SCHED == 3:
        QS[13] = (['W17'], 9, ['V1', 'K3']); QS[16] = (['V2', 'K4', 'V3'], None, [])
    if SCHED in (4, 5, 6):
        PRO = ['X0', 'W0', 'W1']; PRO2 = ['X1']
        if SCHED == 4:
            QS.update({0: (['W2', 'W3'], None, []), 1: (['X2'], 1, ['W4']), 2: (['W5', 'X3'], None, ['W6']), 3: (['W7'], 2, ['X4']), 4: (['W8'], None, []),
                       5: (['W9'], 3, ['X5']), 6: (['W10'], 4, ['X6']), 7: (['W11'], 5, ['X7']), 8: (['W12'], None, [])})
        if SCHED == 5:
            PRO2 = []
            QS.update({0: (['X1', 'W2'], None, ['W3']), 1: (['X2'], 1, ['W4']), 2: (['W5', 'X3'], None, ['W6']), 3: (['W7'], 2, ['X4']), 4: (['W8'], None, []),
                       5: (['W9'], 3, ['X5']), 6: (['W10'], 4, ['X6']), 7: (['W11'], 5, ['X7']), 8: (['W12'], None, [])})
        if SCHED == 6:
            PRO2 = ['X1', 'W2']
            QS.update({0: (['W3', 'X2'], None, ['W4']), 1: (['W5'], 1, ['X3']), 2: (['W6'], None, []), 3: (['W7'], 2, ['X4']), 4: (['W8'], 3, ['X5']),
                       5: (['W9'], None, []), 6: (['W10'], 4, ['X6']), 7: (['W11'], 5, ['X7']), 8: (['W12'], None, [])})
    if SCHED == 7:
        QS.update({5: (['W9'], 4, ['X6']), 6: (['W10'], 5, ['X7']), 7: (['W11'], 6, ['X8']), 8: (['W12'], 7, ['X9']), 9: (['W13'], 8, []), 10: (['W14'], 9, []),
                   11: (['W15'], None, []), 12: (['W16'], None, []), 13: (['W17'], None, [])})
    if SCHED == 8:
        QS.update({5: (['W9'], None, []), 6: (['W10'], 4, ['X6']), 7: (['W11'], 5, ['X7']), 8: (['W12'], 6, ['X8']), 9: (['W13'], 7, ['X9']), 10: (['W14'], None, []),
                   11: (['W15'], 8, []), 12: (['W16'], 9, []), 13: (['W17'], None, [])})
    if SCHED == 9:
        QS.update({4: (['W8'], None, []), 5: (['W9'], 3, ['X5']), 6: (['W10'], None, []), 7: (['W11'], 4, ['X6']), 8: (['W12'], None, []), 9: (['W13'], 5, ['X7']), 10: (['W14'], None, []),
                   11: (['W15'], 6, ['X8']), 12: (['W16'], 7, ['X9']), 13: (['W17'], None, []), 14: (['W18'], 8, []), 15: (['W19'], 9, [])})
    if SCHED == 10:
        assert LAYOUT == 2 and D0 <= 3
        QS.update({5: (['W9'], 4, ['X6']), 6: (['W10'], 5, ['X7']), 7: (['W11'], 6, ['X8']), 8: (['W12'], 7, ['X9']), 9: (['W13'], 8, ['W14', 'W15']), 10: (['W16'], 9, ['W17']),
                   11: (['W18'], None, []), 12: (['W19'], None, []), 13: ([], None, []), 14: ([], None, []), 15: ([], None, [])})
    if SCHED == 11:
        assert LAYOUT == 2 and D0 <= 3
        QS.update({5: (['W9', 'W10'], None, []), 6: (['W11'], 4, ['X6']), 7: (['W12'], 5, ['X7']), 8: (['W13'], 6, ['X8']), 9: ([], 7, ['X9']), 10: ([], 8, ['W14', 'W15']),
                   11: (['W16'], 9, ['W17']), 12: (['W18', 'W19'], None, []), 13: ([], None, []), 14: ([], None, []), 15: ([], None, [])})
    keep = KVPRE[:1 + 2 * D0]
    for u in QS: QS[u] = tuple([n for n in part if n[0] not in 'KV' or n in keep] if isinstance(part, list) else part for part in QS[u])
    if QKV:
        for u in QS: QS[u] = tuple([n for n in part if n[0] not in 'KV'] if isinstance(part, list) else part for part in QS[u])
        for u, l in QKV.items(): QS[u] = (QS[u][0] + l,) + QS[u][1:]
    return PRO, PRO2, QS
QKV = {11: ['K0'], 12: ['K1'], 14: ['V0'], 15: ['K2'], 16: ['V1', 'K3', 'V2', 'P0']}
def pf_wo(v): return [Item('M', f"buffer_load_dword v{vDUM}, v{v}, {sr(sWo)}, 0 offen", tag="dummy")]
def issue(name):
    if name == 'P0': return [V(f"v_accvgpr_read_b32 v1, a{aPARK + PARK.index(vPWO)}")] + pf_wo(1)
    k, i = name[0], int(name[1:])
    return dma_x(i) if k == 'X' else dma_w(i) if k == 'W' else dma_kv_static(k, i)
def check_sched(PRO, PRO2, QS):
    occ = {}; xread = {0: -1}; qbar = set(QBAR or range(1, 17)); when = {}
    for u, (e, xr, l) in QS.items():
        if xr is not None: xread[xr] = u
    def put(n, u, late):
        k, i = n[0], int(n[1:])
        if k == 'P': return
        for s in ([xpair(i), xpair(i) + 1] if k == 'X' else [wslot(i)] if k == 'W' else [kvslot(k, i)]):
            o = occ.get(s)
            if o:
                k2, i2 = o[0], int(o[1:])
                lb = max([b for b in qbar if b <= u] + [0])
                if k2 == 'W': assert i2 <= lb - 1, (n, u, o)
                elif k2 == 'X': assert xread[i2] < lb or (xread[i2] == u and late), (n, u, o)
                else: assert False, (n, u, o)
            occ[s] = n
    seq = []
    for n in PRO: put(n, -2, False); seq.append(n)
    for n in PRO2: put(n, -1.5, True); seq.append(n)
    for u in sorted(QS):
        e, xr, l = QS[u]
        for n in e: put(n, u, False); seq.append(n); when[n] = u
        for n in l: put(n, u, True); seq.append(n); when[n] = u
        if xr is not None: assert min(xr * 2, 20 - NDB) > u and (xr - NXB) * 2 + 1 < u, (xr, u)
    for i in range(1, 20): assert when.get(f'W{i}', -1) < max(b for b in qbar if b <= min(i, 16)), i
    assert when['K0'] < max(qbar)
    assert [n for n in seq if n[0] == 'W'] == [f"W{i}" for i in range(20)]
    assert [n for n in seq if n[0] == 'X'] == [f"X{i}" for i in range(10)]
    assert [n for n in seq if n[0] in 'KV'] == KVPRE[:1 + 2 * D0] and 'K0' not in QS[16][0]

def front(p, pool):
    assert NDB == 4
    PRO, PRO2, QS = get_sched()
    check_sched(PRO, PRO2, QS)
    q = Prog(); setup_rest(q)
    ntok = max(k for k, x in enumerate(q.cur) if x.kind == 'smem') + 1
    for n in PRO[1:]: flat(p, issue(n))
    p.cur += q.cur[:ntok]
    p.cur += stp('s2')
    setup_reads(p)
    for uu in range(4): p(f"v_add_u32 v{vVA+uu}, {wslot(0)*SLOT}, v{vVL+uu}")
    late = []
    for x in q.cur[ntok:]:
        if x.op in ('s_addc_u32', 'v_cndmask_b32'): late[-1].ins.append(x)
        else: late.append(Item('V' if x.kind == 'valu' else 'S', [x]))
    if not LATESET: flat(p, late); late = []
    p("WAITVM X0"); p.cur += stp('X0')
    flat(p, read_x(0))
    for n in PRO2: flat(p, issue(n))
    p(f"""
s_add_u32 s{sTK1}, s{sTK1}, {TOKC[0]}
s_addc_u32 s{sTK1+1}, s{sTK1+1}, {TOKC[1]}
s_add_u32 s{sTK2}, s{sTK2}, {TOKC[0]}
s_addc_u32 s{sTK2+1}, s{sTK2+1}, {TOKC[1]}
""")
    p("WAITVM W0\ns_waitcnt lgkmcnt(0)\ns_barrier"); p.cur += stp('u0')
    st = Stream()
    if late:
        chain(late, 0, LATEHI)
        for x in late: x.dense = True; x.target = 0
        st.add(late)
        kvset = [x for x in late if set(x.ins[0].dst) & {('v', vKD + 2)}][0]
    NU = 20 - NDB
    def wunit(u, db, va, imm, k):
        buf = pool.next()
        mf = [I(f"{MF} {vr(qacc(db,qb))}, {ar(buf)}, {ar(xfrag(u>>1,u&1,qb))}, {vr(qacc(db,qb)) if u else 0}") for qb in range(3)]
        return dict(reads=vunit_reads(buf, db, imm, va), mf=snake(mf, k))
    tiles = [[wunit(u, db, vVA if u % 2 == 0 else vVB, 0, db) for db in range(12)] for u in range(NU)]
    sa = {16: (vVA, 0), 17: (vVA, SLOT), 19: (vVA, 2 * SLOT), 18: (vVB, 0)} if LAYOUT == 0 else {u: (vVA, (u - 16) * SLOT) for u in range(16, 20)}
    sup = [wunit(u, db, sa[u][0], sa[u][1], k) for db in range(12) for k, u in enumerate((16, 17, 19, 18))]
    tiles.append(sup)
    qk0 = [qk_unit(pool, 0, kb, ds, True, 0, kb) for ds in range(6) for kb in range(2)]
    qk1 = qk_units(pool, 1, 2 * SLOT, zero=(0,))
    rs = rs_unit(0, zero=True)
    pv = pv_units(pool, 0, 2 * SLOT, zero=True)
    for tl in tiles + [qk0, qk1, [rs], pv]:
        for un in tl: st.add_unit(un)
    n = st.n() - 3 * T
    prevdma = None
    qbar = set(QBAR or range(1, NU + 1))
    assert 1 in qbar
    for u in range(NU + 1):
        g0 = 36 * u - 3 * T
        span = 36 if u < NU else 36 * NDB
        if u == 0:
            for un in tiles[0][:T]:
                for r in un['reads']: p(r)
            rd = st.reads(tiles[0][T:], 0, g0 + 36 - RGAP)
            bar = None; glo = 0
        else:
            if u in qbar:
                cover = min([b for b in qbar if b > u] + [20]) - 1
                bar = st.barrier(g0, [f"WAITVM W{cover}"] + (["WAITVM K0"] if u == max(qbar) else []) + ["s_waitcnt lgkmcnt(0)"] + stp(f"u{u}"))
                aft = [(bar, 0)]
            else:
                bar = None; aft = [(rd[-1], 0)]
                if stp(f"u{u}"): st.add([Item('S', stp(f"u{u}"), lo=g0, hi=g0 + 3)])
            if u == NU and LAYOUT == 0:
                vb = chain([V(f"v_add_u32 v{vVB+uu}, {wslot(18)*SLOT}, v{vVL+uu}") for uu in range(4)], g0 - 4, g0 + 1)
                vb[0].after.append((rd[-1], 1)); st.add(vb)
                for x in vb: x.hi = g0 + 4
            rd = st.reads(tiles[u], g0 + 1, g0 + span - (RGAP if (u + 1) in qbar and u < NU else 0), aft)
            if u == NU and LAYOUT == 0:
                for x in rd[6:8]: x.after.append((vb[-1], 1))
            glo = g0 + 2
        if u < NU:
            va = vVA if (u + 1) % 2 == 0 else vVB
            st.add(chain([V(f"v_add_u32 v{va+uu}, {wslot(u+1)*SLOT}, v{vVL+uu}") for uu in range(4)], glo + 6, g0 + 30))
        e, xr, l = QS[u]
        f1 = [g for nm in e for g in issue(nm)]
        nx = [g for nm in l for g in issue(nm)]
        seq = []
        if f1:
            chain(f1, glo, glo + (12 if u < NU else KVSPAN))
            if bar: f1[0].after.append((bar, 1))
            if late and 'K0' in e: f1[0].after.append((kvset, 1))
            if late and 'P0' in e: f1[0].after.append((late[-1], 1))
            seq += f1
        if xr is not None:
            rx = [S(f"WAITVM X{xr}")] + read_x(xr)
            chain(rx, g0 + 14, g0 + 22)
            seq += rx
            if nx: nx = [V(f"v_accvgpr_read_b32 v{vT0}, a{xfrag(xr,1,2)}", after=[(rx[-1], 4)])] + nx
        if nx:
            chain(nx, g0 + 24, g0 + 35); seq += nx
        for k in range(len(seq)):
            pvs = seq[k - 1] if k else prevdma
            if pvs is not None and not any(a is pvs for a, _ in seq[k].after): seq[k].after.append((pvs, 1))
            seq[k].hi = g0 + span + 14 if seq[k].kind != 'L' else g0 + 30
        if seq: prevdma = seq[-1]
        st.add(seq)
    wlast = rd[-1]
    assert oacc(12 - T, 0) == xfrag(4, 0, 0)
    st.add(chain([V(f"v_accvgpr_write_b32 a{oacc(12-T,0)+r}, 0") for r in range(12 * T)], 36 * 12 + 4, 36 * 16 - 20))
    cprev = None
    for s in range(6):
        its = []
        for qb in range(3):
            a, b, q = qacc(2 * s, qb), qacc(2 * s + 1, qb), qfrag(qb, s)
            its += [V(f"v_mul_f32 v{r}, s{sSC}, v{r}") for r in list(range(a, a + 4)) + list(range(b, b + 4))]
            its += [V(f"v_cvt_pk_bf16_f32 v{q+k}, v{r}, v{r+1}") for k, r in enumerate((a, a + 2, b, b + 2))]
        for qb in range(3):
            q = qfrag(qb, s)
            its += [V(f"v_permlane16_swap_b32 v{q}, v{q+2}"), V(f"v_permlane16_swap_b32 v{q+1}, v{q+3}")]
        lo = sup[8 * s + 7]['first'] + 5
        dl = qk0[2 * s]['first'] - 2 if s else qk0[0]['first'] - 2
        chain(its, lo, min(lo + 26, dl), 0)
        for x in its: x.hi = dl; x.dense = True; x.target = lo
        if cprev: its[0].after.append((cprev, 0))
        cprev = its[-1]; st.add(its)
    q0 = qk0[0]['first']
    kr0 = st.reads(qk0, q0 - 11, q0 + 14, [(wlast, 0)])
    gx = q0 + 20
    barx = st.barrier(gx, ["WAITVM V0", "s_waitcnt lgkmcnt(0)"] + stp('Qend'), after=[(kr0[-1], 1), (prevdma, 1)])
    kr1 = st.reads(qk1, gx + 1, qk1[0]['first'] + 18, [(barx, 0)])
    va = chain([V(f"v_mov_b32 v{vVA+u}, v{vVL+u}") for u in range(4)], q0, q0 + 20); va[0].after.append((wlast, 1)); st.add(va)
    for x in va: x.hi = qk1[6]['first']
    st.reads(pv, kr1[-1].target + 2, n - 12, [(kr1[-1], 0), (va[-1], 1)])
    dm = chain(kv_issue(), qk0[10]['first'], qk0[10]['first'] + 14); dm[0].after.append((barx, 1)); st.add(dm)
    for x in dm: x.hi = n - 8
    lo = qk1[0]['first'] + 3; dl = qk1[6]['first'] - 2
    cols = [[V(t) for t in rowmax_text(0, qb, vR + qb, vR + 4 + qb)] for qb in range(3)]
    rm = [cols[qb][k] for k in range(10) for qb in range(3)]
    rm += [V(f"v_sub_f32 v{vNM+4*qb+r}, 0, v{vR+qb}") for r in range(4) for qb in range(3)]
    chain(rm, lo, dl, 0); st.add(rm)
    for x in rm: x.dense = True; x.target = lo
    st.add(softmax_items(0, 0, 12, lo + 10, rs['first'] - 2, pre=rm[32]))
    st.add(softmax_items(1, 0, SPLIT, pv[0]['first'] + 1, n - 1, pre=rm[-1]))
    up = wrap0(sRD, 4 * SLOT, 12 * SLOT) + [V(f"v_add_u32 v{vKA+u}, s{sRD}, v{vKL+u}") for u in range(2)]
    up[0].after += [(kr1[-1], 1), (dm[-1], 1)]
    st.add(chain(up, pv[0]['first'], n - 2))
    p.cur += st.emit(3 * T, name="front")
    return [dict(mf=u['mf']) for u in pv[12 - T:]]

def o_store(s):
    return [S(f"s_add_u32 s{sXOFF}, s{sKOFF}, {s*12288}")] + [
        Item('M', f"buffer_store_dwordx4 {bfrag(s,qb)}, v{vOL}, {sr(sWS)}, s{sXOFF} offen offset:{1024*qb} sc1", tag=f"OST{s>>1}") for qb in range(3)]
def o_conv(s, qb):
    t = 32 + 8 * ((s * 3 + qb) % 3); d = vQ + (s * 3 + qb) * 4
    its = [V(f"v_accvgpr_read_b32 v{t+4*h+r}, a{oacc(2*s+h,qb)+r}") for h in range(2) for r in range(4)]
    its += [V(f"v_mul_f32 v{t+r}, v{t+r}, v{vRCS[qb]}") for r in range(8)]
    its += [V(f"v_cvt_pk_bf16_f32 v{d+r}, v{t+2*r}, v{t+2*r+1}") for r in range(4)]
    return its

def check_items(cur, lo, hi):
    mx = V(f"v_max3_f32 v{vCK}, v{vL[cur]}, v{vL[cur]+4}, v{vL[cur]+8}", lo=min(lo, hi), hi=hi)
    return [mx, V(f"v_cmp_nge_f32 vcc, s{sLTHR}, v{vCK}", after=[(mx, 0)], hi=hi)]
def rare_head(p, cur):
    ret = p.newlabel("L_ret"); tr = p.newlabel("L_tramp")
    TRAMPS.append((tr, ret, cur))
    return L(f"s_cbranch_vccnz {tr}\n{ret}:")
def attention(p, pool, tail):
    def step(t_par, tail, mode, vm, extra=(), endi=(), final=False):
        cur, nxt = t_par, t_par ^ 1
        imm = 0 if t_par else 2 * SLOT
        st = Stream(tail)
        qk = qk_units(pool, nxt, imm)
        pv = pv_units(pool, cur, imm)
        rs = rs_unit(cur)
        pv[0]['head'] = rare_head(p, cur)
        for u in qk[:9] + [rs] + qk[9:] + pv: st.add_unit(u)
        n = st.n() - 3 * T
        bar = st.barrier(0, [f"s_waitcnt vmcnt({vm}) lgkmcnt(0)"])
        kr = st.reads(qk, 1, 33 if not final else 28, [(bar, 0)])
        aft = [(bar, 0), (kr[-1], 0)]
        if t_par:
            va = chain([V(f"v_add_u32 v{vVA+u}, s{sRD}, v{vVL+u}") for u in range(4)], 0, 20)
            st.add(va); aft.append((va[-1], 1))
        vrd = st.reads(pv, kr[-1].target + 2, n - (12 if not final else 20), aft)
        if final:
            up = wrap0(sRD, 4 * SLOT, 12 * SLOT) + [V(f"v_add_u32 v{vVA+u}, s{sRD}, v{vVL+u}") for u in range(4)]
            up[2].after.append((vrd[-1], 1))
            st.add(chain(up, n - 24, n - 1))
        elif not t_par:
            up = wrap0(sRD, 4 * SLOT, 12 * SLOT) + [V(f"v_add_u32 v{vKA+u}, s{sRD}, v{vKL+u}") for u in range(2)]
            up[0].after += [(kr[-1], 1)]
            st.add(chain(up, rs['first'], n - 4))
        dm = []
        if mode == 'A':
            dm = chain(kv_issue(), 2, DMAHI) if not WIN else spread_kv(kv_issue(), 2, WHI)
            for x in dm: x.hi = n - (8 if not WIN else 4)
        if extra:
            fx = [x for x in extra if getattr(x, 'fixed', False)]; fr = [x for x in extra if not getattr(x, 'fixed', False)]
            if fr:
                chain(fr, DMAHI + 2 if fx else 2, 68 if fx else (56 if not final else 30))
                if fx: fr[0].after.append((fx[-1], 1))
            dm = fx + fr
            for x in dm: x.hi = n - 1
        if dm: dm[0].after.append((bar, 1))
        st.add(dm)
        st.add(softmax_items(cur, SPLIT, 12, 0, rs['first'] - 2))
        pf = pv[0]['first']
        st.add(check_items(cur, rs['first'] + 6, pf - 1))
        st.add(softmax_items(nxt, 0, SPLIT if not final else SP30, pf + (1 if not final else 0), n - 1))
        if endi: st.add(chain(list(endi), n - 3, n - 1, 0))
        return st.emit(3 * T, name=mode), [dict(mf=u['mf']) for u in pv[12 - T:]]
    txt = lambda tl: [[i.text for i in u['mf']] for u in tl]
    global WIN
    VMA = VMLIM if not WIN else 6 * (D0 - 1)
    tr = []
    if TRACE: tr = L(f"s_memrealtime s[84:85]\ns_waitcnt lgkmcnt(0)\ns_mov_b32 m0, s{sT}\nv_writelane_b32 v174, s84, m0")
    global WHI
    for k, (tend, w, wh) in enumerate(LOOPS or [(27, WIN, WHI)]):
        WIN = w; WHI = wh
        lp = f"L_attA{k}"
        b1, tail1 = step(1, tail, 'A', VMA)
        b2, tail2 = step(0, tail1, 'A', VMA, endi=[S(f"s_add_u32 s{sT}, s{sT}, 2"), S(f"s_cmp_lt_u32 s{sT}, {tend}")])
        assert txt(tail2) == txt(tail) and VMLIM <= 6 * (D0 - 1) and tend % 2 == 1
        p.loop(L(f"{lp}:") + [I(x.text) for x in tr] + b1 + b2 + L(f"s_cbranch_scc1 {lp}"))
    assert tend == 27
    if TRACE:
        p(f"s_add_u32 s96, s90, {STAMP_OFF + 65536}\ns_addc_u32 s97, s91, 0"); srd(p, 84, 96, 1 << 20)
        p(f"s_lshl_b32 s{sTMP}, s2, 2\ns_add_u32 s{sTMP}, s{sTMP}, s{sWAVE}\ns_lshl_b32 s{sTMP}, s{sTMP}, 9\nv_lshlrev_b32 v{vT0}, 3, v0")
        p(f"buffer_store_dwordx2 v[174:175], v{vT0}, s[84:87], s{sTMP} offen")
    p.cur += stp('Lend')
    p("L_att27:")
    cnt = lambda its: sum(1 for x in its if x.kind == 'M')
    log = [pr for pr in range(27, 27 + D0) for _ in range(6)]
    nxt = 27 + D0
    tl = tail
    for t in range(27, 31):
        vm = len(log) - 1 - max(k for k, x in enumerate(log) if x == t)
        lastkv = max(k for k, x in enumerate(log) if x >= 0)
        if not WIN and 'kv' in PLAN[t]: vm = min(vm, VMLIM + len(log) - 1 - lastkv)
        ex = []
        for a in PLAN[t]:
            if a == 'kv': its = kv_issue(nok=(nxt == 31)); log += [nxt] * cnt(its); nxt += 1
            else:
                if a == 'r': its = [V(f"v_accvgpr_read_b32 v{r}, a{aPARK+k}") for k, r in enumerate(PARK)]
                elif a == 'p': its = pf_wo(vPWO)
                elif a == 't':
                    its = [S(f"s_mul_i32 s{sTMP+2}, s{sHL}, 73728"), Item('M', f"buffer_load_dword v{vDUM}, v{vOL}, {sr(sWS)}, s{sTMP+2} offen sc1", tag="dummy"),
                           S(f"s_mul_i32 s{sTMP+2}, s{sHG}, 15360"), Item('M', f"buffer_load_dword v{vDUM}, v{vPT}, {sr(sWS)}, s{sTMP+2} offen sc1", tag="dummy")]
                elif a == 'u':
                    its = [Item('M', f"buffer_load_dword v{vDUM}, v{vOUT}, {sr(sOUT)}, 0 offen sc1", tag="dummy")]
                elif a == 'l': its = [Item('M', f"buffer_load_dword v{vDUM}, v{vF1}, {sr(sWS)}, 0 offen offset:128 sc1", tag="dummy")]
                else:
                    assert t >= {0: 28, 1: 28, 2: 29, 3: 29, 4: 30, 5: 31, 6: 31}[a]
                    its = dma_wo(a)
                log += [-1] * cnt(its)
            if a == 'kv':
                if WIN: spread_kv(its, 2, 62 if len(PLAN[t]) == 1 or cnt(its) == 3 else 40)
                else: chain(its, 2, DMAHI)
                for x in its: x.fixed = True
            ex += its
        ins, tl = step(t & 1, tl, 'P', min(vm, 63), ex, final=(t == 30)); p.cur += ins
    assert nxt == 32
    return tl, len(log) - 1 - max(k for k, x in enumerate(log) if x == 31)

def set_flag(vfl, sidx, off=0, local=False, vt=None):
    vt = vt or vTK
    st = f"buffer_store_dwordx2 v[{vt}:{vt+1}], v{vfl}, {sr(sWS)}, 0 offen offset:"
    return L(f"s_lshl_b64 exec, 1, s{sidx}\n" + (f"{st}{off+128}\n" if local else "") + f"{st}{off} sc1\ns_mov_b64 exec, -1")
def spin(name, voff, tk, off):
    one = lambda o: f"""buffer_load_dwordx2 v[{vFLV}:{vFLV+1}], v{voff}, {sr(sWS)}, 0 offen offset:{o} sc1
s_waitcnt vmcnt(0)
v_cmp_ne_u64 vcc, s[{tk}:{tk+1}], v[{vFLV}:{vFLV+1}]
s_cbranch_vccz L_spinr{name}
"""
    OUTL.append(f"""L_spin{name}:
s_mov_b32 s{sTMP}, 0x10000
L_poll{name}:
""" + (one(off + 128) * NLOC if LOCAL else "") + one(off) + f"""s_sub_u32 s{sTMP}, s{sTMP}, 1
s_cmp_lg_u32 s{sTMP}, 0
s_cbranch_scc1 L_poll{name}
s_branch L_spinr{name}
""")
def bump_epoch(p, voff, tk, sidx, off):
    ne = p.newlabel("L_ne")
    p(f"s_cmp_lg_u32 s{sidx}, 0\ns_cbranch_scc1 {ne}\nv_mov_b32 v{vFLV}, s{tk}\nv_mov_b32 v{vFLV+1}, s{tk+1}\ns_mov_b64 exec, 1")
    p.flush()
    p.raw(f"buffer_store_dwordx2 v[{vFLV}:{vFLV+1}], v{voff}, {sr(sWS)}, 0 offen offset:{off} sc1")
    p(f"s_mov_b64 exec, -1\ns_nop 1\n{ne}:")
def load_g(G):
    i, c = gic(G)
    g = [S(f"s_add_u32 s{sXOFF}, s{sHI+i}, {c}"), S(f"s_mul_i32 s{sXOFF}, s{sXOFF}, 24576")]
    for ks in range(2):
        if ks: g.append(S(f"s_add_u32 s{sXOFF}, s{sXOFF}, 12288"))
        g += [Item('M', f"buffer_load_dwordx4 {bfrag(2*G+ks,qb)}, v{vOL}, {sr(sWS)}, s{sXOFF} offen offset:{1024*qb} sc1") for qb in range(3)]
    return g

def oproj(p, pool, tail, vm31):
    NEXTG = max(a for v in PLAN.values() for a in v if isinstance(a, int)) + 1
    st = Stream(tail[:2])
    rs = rs_unit(1); st.add_unit(rs)
    for u in tail[2:]: st.add_unit(u)
    apv = pv_units(pool, 1, 0)
    apv[0]['head'] = rare_head(p, 1)
    for u in apv: st.add_unit(u)
    Z = st.n()
    def unit(G, ks, nb, va, imm):
        u = 2 * G + ks; pb = pool.next(); a = va + (nb & 1)
        rd = [f"ds_read_b64_tr_b16 {ar(pb,2)}, v{a} offset:{imm+ks*10240+nb*32}", f"ds_read_b64_tr_b16 {ar(pb+2,2)}, v{a} offset:{imm+ks*10240+nb*32+5120}"]
        mf = [I(f"{MF} {vr(cacc(nb,qb))}, {ar(pb)}, {bfrag(u,qb)}, {vr(cacc(nb,qb)) if u else 0}") for qb in range(3)]
        return dict(reads=rd, mf=snake(mf, pool.n))
    def seta(va, off): return [V(f"v_add_u32 v{va+k}, {off}, v{vWOL+k}") for k in range(2)]
    NG = 6
    def un2(G, ks, nb): return unit(G, ks, nb, vWA[2 + (G - NG) // 3], ((G - NG) % 3) * GSZ)
    assert all(goff(G + 1) == goff(G) + GSZ for G in range(NG, 11))
    U = [[unit(G, ks, nb, vWA[G & 1], 0) for ks in range(2) for nb in range(10)] for G in range(NG)]
    NL = 12 - NBA
    A = [[un2(G, ks, nb) for ks in range(2) for nb in range(6 if G >= GS else 10)] for G in range(6, NL)]
    F = [[un2(G, ks, nb) for G in range(NL if nb < 6 else GS, 12) for ks in range(2)] for nb in range(10)]
    tiles = U + A + [[u for nb in range(10) for u in F[nb]]]
    if ST: U[0][0]['head'] = stp('Aend')
    for tl in tiles:
        for u in tl: st.add_unit(u)
    bar0 = st.barrier(0, ["WAITVM G0", f"s_waitcnt vmcnt({vm31}) lgkmcnt(0)"])
    pf = apv[0]['first']
    vrd = st.reads(apv, 1, pf + 14, [(bar0, 0)])
    st.add(softmax_items(1, SP30, 12, 0, rs['first'] - 1))
    st.add(check_items(1, rs['first'] + 5, pf - 1))
    sa0 = chain(seta(vWA[0], goff(0)) + [V(f"v_mov_b32 v{vTK}, s{sTK1}"), V(f"v_mov_b32 v{vTK+1}, s{sTK1+1}")], rs['first'], pf - 1); st.add(sa0)
    for x in sa0: x.hi = pf + 12
    rc = chain([S(f"s_mul_i32 s{sKOFF}, s{sHL}, 73728"), S(f"s_mul_i32 s{sT}, s{sHG}, 15360")] + [Item('E', f"v_rcp_f32 v{vRCS[qb]}, v{vL[1]+4*qb}") for qb in range(3)], pf, pf + 6)
    for x in rc: x.hi = pf + 10
    st.add(rc)
    mem = []
    def addmem(its, lo, hi, after=None):
        chain(its, lo, hi)
        for x in its: x.hi = 10 ** 9
        if after: its[0].after.append(after)
        if mem: its[0].after.append((mem[-1], 1))
        mem.extend(its); st.add(its)
    wit = {}
    for k, G in enumerate(PRE31):
        addmem(dma_wo(G), 4 + 10 * k, 12 + 10 * k, (bar0, 1)); wit[G] = mem[-1]
        for x in mem: x.hi = pf + 9
    prev = rc[-1]; conv = {}
    for sx in range(6):
        stv = o_store(sx)
        for qb in range(3):
            its = o_conv(sx, qb)
            lo = min(apv[2 * sx + 1]['first'] + 6, Z + 2)
            if sx < NEO:
                k = sx * 3 + qb; a = apv[1]['first'] + 6
                dl = max(lo, a + (Z - 3 - a) * (k + 1) // (3 * NEO))
            else: dl = Z + 30 * sx - 3
            chain(its, lo, dl, 0)
            for x in its: x.dense = True; x.target = lo
            its[0].after.append((prev, 1 if prev.kind != 'V' else 0)); prev = its[-1]; st.add(its)
            conv[sx, qb] = its[-1]
            if sx < NEO:
                o = ([stv[0]] if qb == 0 else []) + [stv[1 + qb]]
                o[-1].after.append((its[-1], 1)); addmem(o, lo, dl + 1)
                for x in o: x.hi = dl + 1
                o[-1].target = dl + 1
    st.add(chain(seta(vWA[2], goff(6)) + seta(vWA[3], goff(9)) + [V(f"v_mov_b32 v{vTK2}, s{sTK2}"), V(f"v_mov_b32 v{vTK2+1}, s{sTK2+1}"),
        S(f"s_cmp_ge_u32 s{sJ}, 4\ns_cselect_b32 s{sTMP+2}, 8, 0"), S(f"s_cmp_eq_u32 s{sJ}, 0\ns_cselect_b32 s{sTMP+2}, -8, s{sTMP+2}" if TRI else f"s_mov_b32 s{sTMP+2}, 8"),
        V(f"v_and_b32 v{vF2R}, 8, v0"), V(f"v_mul_i32_i24 v{vF2R}, s{sTMP+2}, v{vF2R}"), V(f"v_add_u32 v{vF2R}, v{vF2R}, v{vF2}")], Z + 200, Z + 300))
    bars = {0: bar0}
    for k, tl in enumerate(tiles):
        g0 = tl[0]['first'] - 3 * T
        last = tiles[k + 1][0]['first'] - 3 * T - (RGAP if k < 4 else 0) if k + 1 < len(tiles) else st.n() - 14
        if k == 0: rdl = st.reads(U[0], g0 + 1, last, [(vrd[-1], 0), (sa0[1], 1)])
        else:
            bars[k] = st.barrier(g0, [f"WAITVM G{k if k < NL else 11}"] + (["s_waitcnt lgkmcnt(0)"] if k <= 4 else []) + stp(f"G{k}"))
            rdl = st.reads(tl, g0 + 1, last, [(bars[k], 0), (rdl[-1], 0)])
        if k + 1 < NG: st.add(chain(seta(vWA[(k + 1) & 1], goff(k + 1)), g0 + 20, g0 + 50))
    pv = {0: 2, 1: 4, 2: 8}
    for pos, act in OCH:
        k, n = act[0], int(act[1:]); pos += Z
        if k == 'W':
            if n >= NEXTG and n not in wit:
                addmem(dma_wo(n), pos, pos + SPW, (bars[0 if n < 7 else max(n - 7, 1)], 1)); wit[n] = mem[-1]
        elif k == 'F': addmem([Item('M', [I(f"WAITVM OST{n}")] + stp(f"F{n}") + set_flag(vF1, sHL, 32 * n, LOCAL))], pos, pos)
        elif k == 'P': addmem([Item('M', f"buffer_load_dwordx2 v[{pv[n]}:{pv[n]+1}], v{vF1}, {sr(sWS)}, 0 offen offset:{32*n + (128 if LOCAL else 0)} sc1")], pos, pos)
        elif k == 'C':
            addmem([V(f"v_cmp_ne_u64 vcc, s[{sTK1}:{sTK1+1}], v[{pv[n]}:{pv[n]+1}]")], pos, pos)
            addmem([Item('S', stp(f"C{n}a") + L(f"s_cbranch_vccnz L_spin{n}\nL_spinr{n}:") + stp(f"C{n}b"))], pos + 3, pos + 3)
            spin(n, vF1, sTK1, 32 * n)
        elif k == 'B': addmem([x for G in range(3 + 3 * n, 6 + 3 * n) for x in load_g(G)], pos, pos + 40)
        elif k == 'b': addmem(load_g(n), pos, pos + SPW, (conv[5, 2], 1) if n >= 6 else (conv[0, 2], 1))
        elif k == 'S':
            assert n >= NEO
            o = o_store(n)
            for qb in range(3): o[1 + qb].after.append((conv[n, qb], 1))
            addmem(o, pos, pos + 6)
    def gran(m, qb, k):
        t = vQ + 12 * (k % 4); j = m * 3 + qb
        its = [V(f"v_cvt_pk_bf16_f32 v{t+8+r}, v{cacc(2*m+(r>>1),qb)+2*(r&1)}, v{cacc(2*m+(r>>1),qb)+2*(r&1)+1}") for r in range(4)]
        if j % 4 == 0: its.append(S(f"s_add_u32 s{sTMP+1}, s{sT}, {j*1024}"))
        so = sTMP + 1; post = []
        if OWN:
            so = sTMP + 3
            if OWN == 2:
                its.append(S(f"s_cmp_eq_u32 s{sJ}, {j&7}\ns_cselect_b32 s{so}, {OOB}, s{sTMP+1}\ns_cselect_b64 s[96:97], -1, 0"))
                post = [V(f"v_cndmask_b32 v{40+8*(j>>3)+4*h+r}, v{40+8*(j>>3)+4*h+r}, v{cacc(2*m+h,qb)+r}, s[96:97]") for h in range(2) for r in range(4)]
            else:
                its.append(S(f"s_cmp_eq_u32 s{sJ}, {j&7}\ns_cselect_b32 s{so}, {OOB}, s{sTMP+1}\ns_cbranch_scc1 L_own{j}\nL_ownr{j}:"))
                OUTL.append(f"L_own{j}:\n" + "".join(f"v_mov_b32 v{40+8*(j>>3)+4*h+r}, v{cacc(2*m+h,qb)+r}\n" for h in range(2) for r in range(4)) + f"s_branch L_ownr{j}\n")
        its.append(Item('M', f"buffer_store_dwordx4 {vr(t+8)}, v{vPT}, {sr(sWS)}, s{so} offen offset:{(j%4)*1024} sc1", tag="PA" if m < 3 else f"P{m}"))
        if m == 4 and post: return its, [S(f"s_cmp_eq_u32 s{sJ}, {j&7}\ns_cselect_b64 s[96:97], -1, 0")] + post
        return its + post
    k = 0
    for m in range(4):
        its = []
        for qb in range(3): its += gran(m, qb, k); k += 1
        lo = F[2 * m + 2][0]['first'] + 4
        fa = [Item('M', [I("WAITVM PA")] + stp('FA') + set_flag(vF2, sHG, 0, vt=vTK2))]
        fp = min(F[6][0]['first'] + FAPOS, st.n() - 1)
        if m == 3 and fp <= lo: addmem(fa, fp, fp)
        addmem(its, lo, lo + (14 if OWN != 2 else 20))
        if m == 3 and fp > lo: addmem(fa, fp, fp)
    p.cur += st.emit(name="oproj")
    for it in mem:
        if it.kind == 'M' and it.ins[0].op == 'buffer_load_dwordx4' and it.ins[0].dst:
            d = set(it.ins[0].dst)
            assert it.gap < min(g for g, (h, m) in enumerate(st.mf) if g >= Z and d & set(m.srcAB)), it.ins[0].text
    for n, it in wit.items(): assert it.gap < bars[min(n, NL)].gap - 1, n
    assert set(wit) | set(range(NEXTG)) == set(range(12))
    p.cur += stp('E')
    if OWN == 2:
        gs = [gran(4, qb, k + qb) for qb in range(3)]
        for a, b in gs: flat(p, a)
        return [x for a, b in gs for x in b]
    for qb in range(3): flat(p, gran(4, qb, k)); k += 1
    return []

def final_reduce(p, rest):
    sDONE, sNEW, sO2, sOWNB, sOOB = sKK, sWR, sRD, sWOFF, sXOFF
    ld = f"buffer_load_dwordx2 v[{vFLV}:{vFLV+1}], v{vF2R}, {sr(sWS)}, 0 offen sc1"
    if TRI: p("WAITVM P3"); p.cur += set_flag(vF2, sHG, 64, vt=vTK2)
    p(f"""
{ld}
s_lshl_b32 s{sTMP}, s{sJ}, 10
v_add_u32 v2, s{sTMP}, v{vPT}
s_cmp_eq_u32 s{sJ}, 7
s_cselect_b32 s{sO2}, {OOB}, 0
s_cselect_b32 s{sDONE}, 0xff00, 0
s_mov_b32 s{sT}, 0xffff0000
s_lshl_b32 s{sOWNB}, 0x101, s{sHG}
s_mov_b32 s{sOOB}, {OOB}
s_mov_b32 s{sTMP}, 0x20000
""")
    flat(p, rest)
    p("WAITVM P4")
    p.cur += set_flag(vF2, sHG, 128, vt=vTK2); p.cur += stp('ACK')
    p("s_waitcnt vmcnt(1)\ns_branch L_fin2")
    p.flush()
    t = f"""L_fin:
{ld}
s_waitcnt vmcnt(0)
L_fin2:
v_cmp_eq_u64 vcc, s[{sTK2}:{sTK2+1}], v[{vFLV}:{vFLV+1}]
s_nop 4
s_and_b32 s{sNEW}, vcc_lo, 0xffff
{"s_or_b32 s%d, s%d, s%d" % (sNEW, sNEW, sOWNB) if OWN else ""}
s_andn2_b32 s{sNEW}, s{sNEW}, s{sDONE}
s_or_b32 s{sDONE}, s{sDONE}, s{sNEW}
"""
    for g in range(16):
        t += f"""s_bitcmp0_b32 s{sNEW}, {g}
s_cbranch_scc1 L_fs{g}
s_cmp_eq_u32 s{sHG}, {g%8 if OWN else 99}
s_cselect_b32 s{sTMP+1}, s{sOOB}, {(g%8)*15360 + (g//8)*8192}
buffer_load_dwordx4 {vr(56+g*4)}, v2, {sr(sWS)}, s{sTMP+1} offen sc1
L_fs{g}:
"""
    t += f"""s_cmp_eq_u32 s{sDONE}, 0xffff
s_cbranch_scc1 L_find
s_sub_u32 s{sTMP}, s{sTMP}, 1
s_cmp_lg_u32 s{sTMP}, 0
s_cbranch_scc1 L_fin
L_find:"""
    p.raw(t)
    p.cur += stp('P2')
    for i in range(2):
        p(f"""
s_add_u32 s{sTMP}, s{sJ}, {8*i}
s_mul_i32 s{sTMP+1}, s{sTMP}, 11
s_lshr_b32 s{sTMP+1}, s{sTMP+1}, 5
s_mul_i32 s{sTMP+3}, s{sTMP+1}, 3
s_sub_u32 s{sTMP+3}, s{sTMP}, s{sTMP+3}
s_mul_i32 s{sTMP+3}, s{sTMP+3}, {16*1280}
s_lshl_b32 s{sTMP+1}, s{sTMP+1}, 6
s_add_u32 s{sTMP+4+i}, s{sTMP+1}, s{sTMP+3}
""")
    p(f"s_add_u32 s{sTMP+5}, s{sTMP+5}, s{sO2}\ns_and_b32 s{sNEW}, s{sNEW}, 0xff\ns_cbranch_scc0 L_fa\ns_waitcnt vmcnt(0)\nL_fa:")
    for i in range(2):
        acc = 40 + i * 8
        if i: p("s_waitcnt vmcnt(1)")
        for g in range(8):
            b = 56 + (i * 8 + g) * 4
            for r in range(4):
                d = acc if g == 0 and not OWN else 120
                p(f"v_lshlrev_b32 v{d+2*r}, 16, v{b+r}\nv_and_b32 v{d+1+2*r}, s{sT}, v{b+r}")
            if g or OWN:
                for r in range(8): p(f"v_add_f32 v{acc+r}, v{acc+r}, v{120+r}")
        o = 132 + 4 * i
        for r in range(4): p(f"v_cvt_pk_bf16_f32 v{o+r}, v{acc+2*r}, v{acc+2*r+1}")
        p(f"v_permlane16_swap_b32 v{o}, v{o+2}\nv_permlane16_swap_b32 v{o+1}, v{o+3}")
        p(f"buffer_store_dwordx4 {vr(o)}, v{vOUT}, {sr(sOUT)}, s{sTMP+4+i} offen")
    bump_epoch(p, vF1, sTK1, sHL, 96)
    bump_epoch(p, vF2, sTK2, sHG, 192)

def store_stamps(p):
    if not ST: return
    p("s_waitcnt vmcnt(0)"); p.cur += stp('end')
    lab = p.newlabel("L_nost")
    if AMP:
        a, b = sSTAMP + 2 * ST[AMP[0]], sSTAMP + 2 * ST[AMP[1]]; e = sSTAMP + 2 * ST['end']
        p(f"""s_waitcnt lgkmcnt(0)
s_cmp_lg_u32 s2, 100
s_cbranch_scc1 {lab}
s_sub_u32 s{sTMP}, s{b}, s{a}
s_lshl_b32 s{sTMP}, s{sTMP}, 3
s_min_u32 s{sTMP}, s{sTMP}, 100000
L_amp:
s_memrealtime s[96:97]
s_waitcnt lgkmcnt(0)
s_sub_u32 s{sTMP+1}, s96, s{e}
s_cmp_lt_u32 s{sTMP+1}, s{sTMP}
s_cbranch_scc1 L_amp
{lab}:""")
        return
    if DBGST is not None:
        p("s_load_dwordx2 s[96:97], s[0:1], 48\ns_waitcnt lgkmcnt(0)"); srd(p, sK, 96, 256)
        p(f"s_cmp_lg_u32 s{sWAVE}, 0\ns_cbranch_scc1 {lab}\ns_cmp_lg_u32 s2, {DBGST}\ns_cbranch_scc1 {lab}")
        p("s_mov_b64 exec, 1\nv_mov_b32 v2, 0")
        for i in range(NSTAMP):
            p(f"s_sub_u32 s{sTMP}, s{sSTAMP+2*i}, s{sSTAMP}\nv_mov_b32 v4, s{sTMP}\nbuffer_store_dword v4, v2, {sr(sK)}, 0 offen offset:{4*i}\ns_nop 1")
        p(f"s_waitcnt vmcnt(0)\n{lab}:")
        return
    p(f"s_add_u32 s96, s90, {STAMP_OFF}\ns_addc_u32 s97, s91, 0"); srd(p, sK, 96, 65536)
    p("s_waitcnt lgkmcnt(0)")
    p(f"s_cmp_lg_u32 s{sWAVE}, 0\ns_cbranch_scc1 {lab}")
    p(f"s_lshl_b32 s{sTMP}, s2, 7\nv_mov_b32 v2, s{sTMP}\ns_mov_b64 exec, 1")
    for i, r in enumerate([sSTAMP + 2 * i for i in range(NSTAMP)] + list(CST.values())):
        p(f"v_mov_b32 v4, s{r}\nv_mov_b32 v5, s{r+1}\nbuffer_store_dwordx2 v[4:5], v2, {sr(sK)}, 0 offen offset:{8*i}\ns_nop 1")
    p(f"s_waitcnt vmcnt(0)\n{lab}:")

def kernel(p):
    name = NAME + "_kernel"
    p.raw(f".globl {name}\n.p2align 8\n.type {name},@function\n{name}:")
    p("s_cmp_ge_u32 s2, 256\ns_cbranch_scc1 L_end")
    p.cur += stp('start')
    p(f"""
s_load_dwordx8 s[76:83], s[0:1], 0
s_load_dwordx8 s[84:91], s[0:1], 32
v_lshrrev_b32 v1, 6, v0
v_and_b32 v0, 63, v0
v_readfirstlane_b32 s{sWAVE}, v1
""")
    if CODEPF:
        p(f"""
s_getpc_b64 s[98:99]
s_lshr_b32 s{sTMP+1}, s2, 3
s_mul_i32 s{sTMP+1}, s{sTMP+1}, {13*128}
v_mul_u32_u24 v252, 3, v1
v_add_lshl_u32 v252, v252, v0, 7
v_add_u32 v252, s{sTMP+1}, v252
v_mov_b32 v253, s99
v_add_co_u32 v252, vcc, s98, v252
v_addc_co_u32 v253, vcc, 0, v253, vcc
s_mov_b64 exec, 15
global_load_dword v{vDUM}, v[252:253], off
s_mov_b64 exec, -1
""", "dummy")
    tab = sum((((k % PH) * (10 - COMMON) + PH // 2) // PH) << (4 * k) for k in range(11))
    p(f"""
s_and_b32 s{sHG}, s2, 7
s_lshr_b32 s{sB}, s2, 5
s_bfe_u32 s{sHL}, s2, 0x20003
s_mul_i32 s{sM0W}, s{sWAVE}, 3072
s_add_u32 s{sTMP+1}, s{sB}, s{sHL}
s_lshl_b32 s{sTMP+1}, s{sTMP+1}, 2
s_mov_b32 s96, {tab & 0xffffffff}
s_mov_b32 s97, {tab >> 32}
s_lshr_b64 s[96:97], s[96:97], s{sTMP+1}
s_and_b32 s{sTMP+1}, s96, 15
s_lshl_b32 s{sXOFF}, s{sTMP+1}, 7
s_mul_i32 s{sWOFF}, s{sTMP+1}, {64*12288}
""")
    if COMMON: p(f"s_mov_b32 s{sRD}, s{sTMP+1}\ns_mov_b32 s{sXOFF}, {(10-COMMON)*128}\ns_mov_b32 s{sWOFF}, {(10-COMMON)*64*12288}")
    if KSTAG: p(f"s_mul_i32 s{sKK}, s2, 11\ns_add_u32 s{sKK}, s{sKK}, s{sB}\ns_and_b32 s{sKK}, s{sKK}, 31\ns_mul_i32 s{sKK}, s{sKK}, {KG*384}")
    else: p(f"s_mov_b32 s{sKK}, 0")
    p(f"s_mov_b32 s{sKOFF}, s{sKK}")
    setup_first(p)
    if not XFIRST:
        p.cur += stp('s0')
        srd(p, sX, 76, 1536 * 1280); p.cur += stp('s1')
    srd(p, sWq, 82, 640 * 12288)
    pool = Pool(12)
    tail = front(p, pool)
    if not QONLY:
        tail, vm31 = attention(p, pool, tail)
        rest = oproj(p, pool, tail, vm31)
        final_reduce(p, rest)
    store_stamps(p)
    p("L_end:\ns_endpgm")
    for t in OUTL: p.raw(t)
    for tr, ret, cur in TRAMPS: p.raw(f"{tr}:\ns_call_b64 s[98:99], L_rare{cur}\ns_branch {ret}")
    rare_path(p, "L_rare0", 0)
    rare_path(p, "L_rare1", 1)
    p.raw(".fill 64, 4, 0xbf800000" if not QONLY else ".fill 12288, 4, 0xbf800000")
    return kernel_desc(name, vgpr=512, accum=256)

def build(path):
    p = Prog()
    p.raw("""; GQA block (q-projection, attention over the cached K/V, out-projection) for gfx950 in one fused kernel.
; @launch grid=(256,1,1) block=(256,1,1) lds=163840
.amdgcn_target "amdgcn-amd-amdhsa--gfx950"
.text""")
    d = kernel(p)
    p.raw('.section .rodata,"a"\n.p2align 6\n' + d)
    txt = p.text()
    if LLFIX == 1: txt = fix_ll(txt)
    if NODMA:
        txt = "\n".join(l for l in txt.split("\n") if not (l.startswith("buffer_load_dwordx4")))
        txt = txt.replace("s_cbranch_vccnz L_tramp", "s_cbranch_execz L_tramp")
    if ST: txt = txt.replace(".amdgcn_target", "; stamps " + repr(ST) + "\n.amdgcn_target", 1)
    open(path, "w").write(txt)
    if VERB:
        import collections
        print(collections.Counter(w.split(':')[0] for w in WARN))
        if VERB > 1:
            for w in WARN: print("WARN", w)
        ls = txt.split("\n")
        marks = [k for k, l in enumerate(ls) if l.endswith(":") and not l.startswith("L_ret")]
        for a, b in zip(marks, marks[1:] + [len(ls)]):
            seg = [l for l in ls[a:b] if l and not l.startswith(".") and not l.startswith(" ")]
            c, nm = estimate(seg)
            if nm: print(f"{ls[a][:28]:28s} est {c:6d} cyc, mfma {nm:4d} ({16*nm})")

STD = {'start': 0, 'X0': 1, 'u8': 2, 'u16': 3, 'E': 4, 'Qend': 5, 'Lend': 6, 'Aend': 7, 'C0b': 8, 'G6': 9, 'ACK': 10, 'end': 11}
if __name__ == "__main__":
    for a in sys.argv[2:]:
        k, v = a.split("=", 1)
        globals()[k] = eval(v)
    build(sys.argv[1])
```

```python
import sys, math, struct
from sched import *
from asmlib import kernel_desc

NAME = "standalone__gqa_block_cached__near_ridge"
SLOT = 12288
GSZ = 20480
NT = "nt"
CODEPF = True
PH = 3
VMLIM = 2
DMAHI = 22
SNAKE = True
KSTAG = True
NDB = 4
NBM = 3
NST = 4
NEO = 2
SCHED = 10
KVSPAN = 150
PLAN = {27: ['kv', 'r', 'l'], 28: ['kv', 0], 29: [1, 2], 30: [3, 4]}
OCH = [(0,'W6'),(50,'S2'),(62,'F0'),(76,'S3'),(90,'W7'),(114,'P0'),(132,'C0'),(136,'b3'),(160,'F1'),(164,'b4'),(186,'S4'),(194,'S5'),(206,'b5'),(228,'P1'),(230,'W8'),(250,'C1'),
       (254,'b6'),(274,'F2'),(278,'b7'),(298,'W9'),(318,'P2'),(320,'b8'),(340,'C2'),(344,'b9'),(364,'W10'),(384,'b10'),(404,'W11'),(424,'b11')]
LATESET = True
QUICK = True
EARLY = 0
CDL = 99
BARFIX = True
LLFIX = 0
QBAR = [1, 2, 3, 4, 5, 6, 7, 8, 9, 10, 11, 12, 14, 16]
OBAR = None
KG = 32
TRI = False
ROT = True
LATEHI = 432
COMMON = 0
WHI = 62
LOOPS = [(9, (6,), 62), (27, (5,), 54)]
SPW = 18
OWN = 1
WIN = (5,)
PRE31 = (5,)
SP30 = 9
XPF = 0
XFIRST = True
AMP = None
RAMP = ()
D0 = 3
PWQ = None
VMTAIL = None
LOCAL = True
NLOC = 4
NBA = 2
FAPOS = 80
GS = 5
PART_OFF = 20 << 20
FLAG_OFF = 40 << 20
WS_SIZE = 41 << 20
STAMP_OFF = 64 << 20
ST = {}
NSTAMP = 12
DBGST = None
TRACE = 0
NODMA = 0
QONLY = 0
VERB = 0
OOB = 0x7f000000

def f32(x): return "0x%08x" % struct.unpack("<I", struct.pack("<f", x))[0]
def vr(b, n=4): return f"v[{b}:{b+n-1}]"
def ar(b, n=4): return f"a[{b}:{b+n-1}]"
def sr(b, n=4): return f"s[{b}:{b+n-1}]"
MF = "v_mfma_f32_16x16x32_bf16"
def srd(p, d, lo, nbytes):
    p(f"s_mov_b32 s{d}, s{lo}\ns_and_b32 s{d+1}, s{lo+1}, 0xffff\ns_mov_b32 s{d+2}, {nbytes}\ns_mov_b32 s{d+3}, 0x00020000")

sLTHR = 3
sK, sV, sWq, sX, sWS, sWo, sOUT = 4, 8, 12, 16, 20, 24, 28
sWAVE, sB, sSC, sHG, sHL = 32, 33, 34, 35, 36
sM0W, sKOFF, sWR, sRD, sT, sKK = 37, 38, 39, 40, 41, 42
sWOFF, sXOFF, sWW = 43, 44, 45
sTMP = 46
sSTAMP = 52
sHI = 76
sTK1, sTK2 = 92, 94
sJ = 33
TOKC = (0x9e3779b9, 0x7f4a7c15)
F2BASE = 256 * 256
CST = {'Qend': 80, 'Lend': 82, 'C0b': 88, 'ACK': 100}
def stp(name):
    r = []
    if name in ST: r.append(I(f"s_memrealtime s[{sSTAMP+2*ST[name]}:{sSTAMP+2*ST[name]+1}]"))
    if ST and name in CST: r.append(I(f"s_memtime s[{CST[name]}:{CST[name]+1}]"))
    return r

vKD, vVD, vWD = 2, 5, 8
vXD = 11
vWOD, vPWO = 11, 16
vKL, vVL = 17, 19
vKA, vVA = 23, 25
vXR = 29
vOL, vPT = 30, 31
vT0 = 31
vDUM = 248
vF1, vF2 = 250, 251
vVB = 252
vWOL, vOUT = 252, 254
vACC = 32; vQ = 176
vS = (32, 56); vP = (80, 92); vNM = 104; vE = 120; vCK = 130; vR = 132; vL = (144, 156)
NE = 5
vB = 32; vRC = 136; vTK = 6; vTK2 = 18; vFLV = 28
vWA = (23, 20, 25, 16)
vRCS = (1, 10, 249)
vF2R = 22
vC = 56
aO = 0; aPOOL = 144; aC = 0; aX = 0; NXB = 6; aONE = 240; aPARK = 244
PARK = [vWOD + j for j in range(5)] + [vPWO, vWOL, vWOL + 1, vOL, vPT, vOUT]
def qfrag(qb, s): return vQ + (qb * 6 + s) * 4
def qacc(db, qb): return vACC + (db * 3 + qb) * 4
def oacc(db, qb): return aO + (db * 3 + qb) * 4
def cacc(nb, qb): return vC + (nb * 3 + qb) * 4
def sreg(buf, qb, kb): return vS[buf] + (qb * 2 + kb) * 4
def bfrag(u, qb):
    if u < 6: return vr(vQ + (u * 3 + qb) * 4)
    k = (u - 6) * 3 + qb
    if k < 16: return ar(192 + k * 4)
    k -= 16
    return ar(k * 4) if k < 36 else vr(32 + (k - 36) * 4)

LAYOUT = 2
def xs0(): return 5 if LAYOUT == 0 else 4
def xpair(c): return 5 + 2 * (c % 2) if LAYOUT == 0 else 6 - 2 * (c % 2)
WRING = [9, 10, 11, 1, 12]
def wslot(u):
    if LAYOUT == 0: return WRING[u % 5]
    return [1, 8, 9, 10, 11, 12][u % 6] if u < 14 else u - 8 if u < 16 else u - 7
def kvslot(kind, i): return 2 * (i % 6) if kind == 'K' else 2 * ((i + 1) % 6) + 1
def gic(G): return (0, G) if G < 3 else (1 + (G - 3) % 3, (G - 3) // 3)
def goff(G): return ((G + 4) % 8) * GSZ
TRAMPS = []; OUTL = []

def tile_rows(p, t, j):
    p(f"""
v_add_u32 v{t+2}, {8*j}, v{t}
v_mul_u32_u24 v{t+3}, 11, v{t+2}
v_lshrrev_b32 v{t+3}, 5, v{t+3}
v_mul_u32_u24 v{t+4}, 3, v{t+3}
v_sub_u32 v{t+4}, v{t+2}, v{t+4}
v_add_u32 v{t+3}, s{sTMP}, v{t+3}
v_and_b32 v{t+5}, 6, v{t+3}
v_xor_b32 v{t+5}, v{t+5}, v{t+1}
v_lshlrev_b32 v{t+5}, 4, v{t+5}
""")
def setup_first(p):
    t = 240
    p(f"""
v_lshrrev_b32 v{t}, 3, v0
v_and_b32 v{t+1}, 7, v0
s_lshl_b32 s{sTMP}, s{sWAVE}, 3
s_lshl_b32 s{sTMP+1}, s{sB}, 2
s_add_u32 s{sTMP+1}, s{sTMP+1}, s{sWAVE}
s_mul_i32 s{sTMP+4}, s{sTMP+1}, {48*1280}
s_lshl_b32 s{sTMP+2}, s{sHG}, 2
s_add_u32 s{sTMP+5}, s{sTMP+2}, s{sHL}
s_mul_i32 s{sTMP+2}, s{sTMP+5}, 384
""")
    for half in range(2):
        p(f"""
v_lshrrev_b32 v{t+2}, 1, v{t}
v_add_u32 v{t+2}, {4*half}, v{t+2}
v_xor_b32 v{t+2}, v{t+2}, v{t+1}
v_lshlrev_b32 v{t+2}, 4, v{t+2}
v_add_u32 v{t+3}, {8*half}, v{t}
v_mul_u32_u24 v{t+3}, 1280, v{t+3}
v_add3_u32 v{vXD+half}, v{t+2}, v{t+3}, s{sTMP+4}
v_add_u32 v{vXD+2+half}, {20480-1024}, v{vXD+half}
v_add_u32 v{vXD+4+half}, {2*(20480-1024)}, v{vXD+half}
""")
    if XFIRST:
        p.cur += stp('s0')
        srd(p, sX, 76, 1536 * 1280); p.cur += stp('s1')
        xpf = f"""s_lshl_b32 s96, s2, 2
s_add_u32 s96, s96, s{sWAVE}
s_mul_i32 s96, s96, 1920
v_lshlrev_b32 v{t+2}, 7, v0
s_mov_b64 exec, 0x7fff
buffer_load_dword v{vDUM}, v{t+2}, {sr(sX)}, s96 offen
s_mov_b64 exec, -1"""
        if XPF == 1: p(xpf, "dummy")
        flat(p, issue('X0'))
        if XPF == 2: p(xpf, "dummy")
    for j in range(3):
        tile_rows(p, t, j)
        p(f"""
v_bfe_u32 v{t+6}, v{t+3}, 2, 2
v_lshlrev_b32 v{t+6}, 3, v{t+6}
v_lshrrev_b32 v{t+7}, 4, v{t+3}
v_lshl_add_u32 v{t+6}, v{t+7}, 2, v{t+6}
v_and_b32 v{t+7}, 3, v{t+3}
v_add_u32 v{t+6}, v{t+6}, v{t+7}
v_mul_u32_u24 v{t+6}, 12288, v{t+6}
v_lshl_add_u32 v{t+6}, v{t+4}, 7, v{t+6}
v_add3_u32 v{t+6}, v{t+6}, v{t+5}, s{sTMP+2}
v_subrev_u32 v{vWD+j}, {1024*j}, v{t+6}
""")
def setup_reads(p):
    t = 232
    p(f"""
v_and_b32 v{t}, 15, v0
v_lshrrev_b32 v{t+1}, 4, v0
v_lshrrev_b32 v{t+2}, 1, v{t}
v_xor_b32 v{t+2}, v{t+2}, v{t+1}
v_lshlrev_b32 v{t+5}, 4, v{t+2}
v_and_b32 v{t+3}, 7, v{t}
v_lshl_add_u32 v{t+5}, v{t+3}, 7, v{t+5}
v_lshrrev_b32 v{t+3}, 3, v{t}
v_mul_u32_u24 v{t+3}, 12288, v{t+3}
v_add3_u32 v{t+5}, v{t+5}, v{t+3}, s{sM0W}
v_add_u32 v{vXR}, {xs0()*SLOT}, v{t+5}
v_xor_b32 v{vXR+1}, 64, v{vXR}
v_bfe_u32 v{t+3}, v{t+2}, 1, 1
v_and_b32 v{t+4}, 1, v{t+2}
v_lshl_add_u32 v{t+3}, v{t+4}, 1, v{t+3}
v_and_b32 v{t+4}, 4, v{t+2}
v_or_b32 v{t+3}, v{t+3}, v{t+4}
v_lshlrev_b32 v{t+3}, 4, v{t+3}
v_mul_u32_u24 v{t+4}, 384, v{t}
v_add_u32 v{vKL}, v{t+3}, v{t+4}
v_xor_b32 v{vKL+1}, 64, v{vKL}
v_mov_b32 v{vKA}, v{vKL}
v_mov_b32 v{vKA+1}, v{vKL+1}
v_lshrrev_b32 v{t+2}, 2, v0
v_mul_u32_u24 v{t+3}, 384, v{t+2}
v_bfe_u32 v{t+4}, v{t+2}, 1, 2
v_lshl_add_u32 v{t+3}, v{t+4}, 5, v{t+3}
v_and_b32 v{t+4}, 3, v0
v_lshl_add_u32 v{vVL}, v{t+4}, 3, v{t+3}
v_xor_b32 v{vVL+1}, 32, v{vVL}
v_xor_b32 v{vVL+2}, 64, v{vVL}
v_xor_b32 v{vVL+3}, 96, v{vVL}
""")
def setup_rest(p):
    t = 240
    p(f"""
s_lshl_b32 s{sTMP+1}, s{sB}, 3
s_add_u32 s{sTMP+1}, s{sTMP+1}, s{sHG}
s_lshl_b32 s96, s{sTMP+1}, 2
s_add_u32 s{sTMP+1}, s96, s{sWAVE}
s_lshl_b32 s{sTMP+1}, s{sTMP+1}, 8
s_add_u32 s{sTMP+1}, s{sTMP+1}, {FLAG_OFF}
s_lshl_b32 s{sTMP+2}, s{sB}, 2
s_add_u32 s{sTMP+2}, s{sTMP+2}, s{sHL}
s_lshl_b32 s{sTMP+2}, s{sTMP+2}, 2
s_add_u32 s97, s{sTMP+2}, s{sWAVE}
s_lshl_b32 s{sTMP+2}, s97, 8
s_add_u32 s{sTMP+2}, s{sTMP+2}, {FLAG_OFF + F2BASE}
v_and_b32 v{t+2}, 3, v0
v_lshl_add_u32 v{vF1}, v{t+2}, 3, s{sTMP+1}
v_and_b32 v{t+2}, 15, v0
v_lshl_add_u32 v{vF2}, v{t+2}, 3, s{sTMP+2}
s_add_u32 s{sTMP+1}, s{sTMP+1}, 96
s_add_u32 s{sTMP+2}, s{sTMP+2}, 192
s_mul_i32 s{sJ}, s97, {3 if ROT else 0}
s_add_u32 s{sJ}, s{sJ}, s{sHG}
s_and_b32 s{sJ}, s{sJ}, 7
s_load_dwordx2 s[{sTK1}:{sTK1+1}], s[90:91], s{sTMP+1}
s_load_dwordx2 s[{sTK2}:{sTK2+1}], s[90:91], s{sTMP+2}
s_add_u32 s{sTMP+1}, s96, s{sHL}
s_mul_i32 s{sTMP+1}, s{sTMP+1}, 393216
s_add_u32 s78, s78, s{sTMP+1}
s_addc_u32 s79, s79, 0
s_add_u32 s80, s80, s{sTMP+1}
s_addc_u32 s81, s81, 0
""")
    LG = KG.bit_length() - 1
    srd(p, sK, 78, 393216); srd(p, sV, 80, 393216)
    srd(p, sWS, 90, WS_SIZE); srd(p, sWo, 84, 6144 * 1280); srd(p, sOUT, 86, 1536 * 1280)
    for j in range(3):
        tile_rows(p, t, j)
        p(f"""
v_lshrrev_b32 v{t+7}, {LG}, v{t+3}
v_lshlrev_b32 v{t+7}, {LG+5}, v{t+7}
v_and_b32 v{t+6}, {KG-1}, v{t+3}
v_add_u32 v{t+7}, v{t+7}, v{t+6}
v_mul_u32_u24 v{t+7}, 384, v{t+7}
v_lshl_add_u32 v{t+7}, v{t+4}, 7, v{t+7}
v_subrev_u32 v{t+7}, {1024*j}, v{t+7}
v_add_u32 v{vVD+j}, v{t+7}, v{t+5}
v_bfe_u32 v{t+5}, v{t+3}, 2, 1
v_and_b32 v{t+6}, 2, v{t+3}
v_or_b32 v{t+5}, v{t+5}, v{t+6}
v_lshrrev_b32 v{t+6}, 1, v{t+3}
v_and_b32 v{t+6}, 4, v{t+6}
v_or_b32 v{t+5}, v{t+5}, v{t+6}
v_xor_b32 v{t+5}, v{t+5}, v{t+1}
v_lshl_add_u32 v{vKD+j}, v{t+5}, 4, v{t+7}
""")
    t = 232
    park = lambda r, v: p(f"v_accvgpr_write_b32 a{aPARK + PARK.index(r)}, v{v}")
    u = 224
    p(f"""
s_mul_i32 s{sTMP+1}, s{sHG}, {768*1280}
s_mul_i32 s{sTMP+2}, s{sHL}, 320
s_mul_i32 s{sTMP+3}, s{sWAVE}, {16*1280}
s_add_u32 s{sTMP+3}, s{sTMP+3}, s{sTMP+1}
s_add_u32 s{sTMP+3}, s{sTMP+3}, s{sTMP+2}
""")
    for j in range(5):
        p(f"""
v_add_u32 v{u}, {64*j}, v0
v_mul_u32_u24 v{u+1}, 205, v{u}
v_lshrrev_b32 v{u+1}, 12, v{u+1}
v_mul_u32_u24 v{u+2}, 20, v{u+1}
v_sub_u32 v{u+2}, v{u}, v{u+2}
v_lshrrev_b32 v{u+3}, 1, v{u+1}
v_and_b32 v{u+3}, 2, v{u+3}
v_xor_b32 v{u+2}, v{u+2}, v{u+3}
v_mul_u32_u24 v{u+1}, 1280, v{u+1}
v_lshl_add_u32 v{u+1}, v{u+2}, 4, v{u+1}
v_add_u32 v{u+1}, s{sTMP+3}, v{u+1}
v_subrev_u32 v{u+1}, {1024*(j%4)}, v{u+1}
""")
        park(vWOD + j, u + 1)
    p(f"""
s_lshr_b32 s{sTMP+3}, s2, 3
s_lshl_b32 s{sTMP+3}, s{sTMP+3}, 2
s_add_u32 s{sTMP+3}, s{sTMP+3}, s{sWAVE}
s_mul_i32 s{sTMP+3}, s{sTMP+3}, {60*128}
s_add_u32 s{sTMP+3}, s{sTMP+3}, s{sTMP+1}
v_lshlrev_b32 v{u}, 7, v0
v_add_u32 v{u}, s{sTMP+3}, v{u}
v_cmp_gt_u32 vcc, 60, v0
v_mov_b32 v{u+1}, {OOB}
v_cndmask_b32 v{u}, v{u+1}, v{u}, vcc
""")
    park(vPWO, u)
    p(f"""
v_mul_u32_u24 v{u}, 320, v{t+2}
v_lshl_add_u32 v{u}, v{t+4}, 3, v{u}
v_and_b32 v{u+1}, 16, v0
v_lshlrev_b32 v{u+1}, 1, v{u+1}
v_add_u32 v{u+2}, v{u}, v{u+1}
v_sub_u32 v{u+3}, v{u}, v{u+1}
""")
    park(vWOL, u + 2); park(vWOL + 1, u + 3)
    p(f"""
s_mul_i32 s96, s96, 73728
s_add_u32 s96, s96, s{sM0W}
s_mul_i32 s97, s97, {8*15360}
s_add_u32 s97, s97, {PART_OFF}
v_lshlrev_b32 v{u}, 4, v0
v_add_u32 v{u+2}, s96, v{u}
v_add_u32 v{u+3}, s97, v{u}
""")
    park(vOL, u + 2); park(vPT, u + 3)
    p(f"""
s_add_u32 s{sTMP+2}, s{sTMP+2}, s{sTMP+4}
v_mul_u32_u24 v{u}, 1280, v{t}
v_add3_u32 v{u}, v{u}, v{u+1}, s{sTMP+2}
v_lshrrev_b32 v{u+2}, 5, v0
v_lshl_add_u32 v{u}, v{u+2}, 4, v{u}
""")
    park(vOUT, u)
    p(f"v_mov_b32 v{u}, 0x3f803f80\nv_cmp_eq_u32 vcc, 0, v{t+4}\nv_cndmask_b32 v{u}, 0, v{u}, vcc")
    for r in range(4): p(f"v_accvgpr_write_b32 a{aONE+r}, v{u}")
    for i in range(4):
        p(f"s_add_u32 s{sHI+i}, s{sHL}, {i}\ns_and_b32 s{sHI+i}, s{sHI+i}, 3\ns_mul_i32 s{sHI+i}, s{sHI+i}, 3")
    SC = math.log2(math.e) / math.sqrt(192.0)
    p(f"""
s_mul_i32 s{sWW}, s{sWAVE}, 5120
s_mov_b32 s{sLTHR}, {f32(LTHR)}
s_mov_b32 s{sSC}, {f32(SC)}
s_add_u32 s{sWR}, s{sM0W}, {2*(D0+1)*SLOT}
s_mov_b32 s{sRD}, 0
s_mov_b32 s{sT}, 1
""")

def S(t, **k): return Item('S', t, **k)
def V(t, **k): return Item('V', t, **k)
def wrap0(s, inc, lim, zero="0"):
    return [S(f"s_add_u32 s{s}, s{s}, {inc}"), S(f"s_cmp_ge_u32 s{s}, {lim}\ns_cselect_b32 s{s}, {zero}, s{s}")]
def dma_tile(kind, pre, so, tag=None, post=()):
    vd, srn, pol = {'K': (vKD, sK, NT), 'V': (vVD, sV, NT), 'W': (vWD, sWq, "")}[kind]
    g = [S(x) for x in pre]
    for j in range(3):
        g.append(Item('M', f"buffer_load_dwordx4 v{vd+j}, {sr(srn)}, {so} offen offset:{1024*j} {pol} lds", tag=tag))
    return g + list(post)
def dma_kv_static(kind, i):
    so = sKK if kind == 'K' else sKOFF
    return dma_tile(kind, [f"s_add_u32 m0, s{sM0W}, {kvslot(kind,i)*SLOT}"], f"s{so}", f"{kind}{i}", wrap0(so, KG * 384, 32 * KG * 384))
def dma_w(u):
    return dma_tile('W', [f"s_add_u32 m0, s{sM0W}, {wslot(u)*SLOT}"], f"s{sWOFF}", f"W{u}",
                    wrap0(sWOFF, 32 * 12288, 640 * 12288) if not COMMON else
                    [S(f"s_add_u32 s{sWOFF}, s{sWOFF}, {32*12288}")] if u < 2 * COMMON - 1 else
                    [S(f"s_mul_i32 s{sWOFF}, s{sRD}, {64*12288}")] if u == 2 * COMMON - 1 else wrap0(sWOFF, 32 * 12288, (10 - COMMON) * 64 * 12288))
def dma_x(c):
    g = []
    for half in range(2):
        g.append(S(f"s_add_u32 m0, s{sM0W}, {(xpair(c)+half)*SLOT}"))
        for qb in range(3):
            g.append(Item('M', f"buffer_load_dwordx4 v{vXD+2*qb+half}, {sr(sX)}, s{sXOFF} offen offset:{1024*qb} lds", tag=f"X{c}"))
    if COMMON and c < COMMON - 1: return g + [S(f"s_add_u32 s{sXOFF}, s{sXOFF}, 128")]
    if COMMON and c == COMMON - 1: return g + [S(f"s_lshl_b32 s{sXOFF}, s{sRD}, 7")]
    return g + wrap0(sXOFF, 128, (10 - COMMON) * 128)
def spread_kv(its, lo, hi):
    ms = [x for x in its if x.kind == 'M']
    chain(its, lo, hi)
    for k, x in enumerate(ms):
        x.target = lo + 1 + (hi - lo) * k // 5
        w = WIN[k % len(WIN)] - 1
        x.ins = [I(f"s_waitcnt vmcnt({w})")] + x.ins; x.needA = True
    t = lo
    for x in reversed(its):
        if x.kind == 'M': t = x.target
        elif any(its.index(y) > its.index(x) for y in ms): x.target = max(lo, t - 3)
        else: x.target = hi + 1
    return its
def kv_issue(nok=False):
    dk = dma_tile('K', [f"s_mov_b32 m0, s{sWR}"], f"s{sKK}") if not nok else []
    dv = dma_tile('V', [f"s_add_u32 m0, s{sWR}, {SLOT}"], f"s{sKOFF}")
    if nok: return dv
    return dk + dv + [S(f"s_mov_b32 s{sKOFF}, s{sKK}")] + wrap0(sKK, KG * 384, 32 * KG * 384) + wrap0(sWR, 2 * SLOT, 12 * SLOT, f"s{sM0W}")
def dma_wo(G):
    sl = goff(G); i, c = gic(G)
    g = [S(f"s_add_u32 s{sWOFF}, s{sHI+i}, {c}"), S(f"s_mul_i32 s{sWOFF}, s{sWOFF}, {64*1280}")]
    for j in range(5):
        if j == 0: g.append(S(f"s_add_u32 m0, s{sWW}, {sl}"))
        if j == 4: g.append(S(f"s_add_u32 m0, s{sWW}, {sl+4096}"))
        g.append(Item('M', f"buffer_load_dwordx4 v{vWOD+j}, {sr(sWo)}, s{sWOFF} offen offset:{1024*(j%4)} lds", tag=f"G{G}"))
    return g
def xfrag(c, ks, qb): return aX + (c % NXB) * 24 + (ks * 3 + qb) * 4
def read_x(c):
    off = (xpair(c) - xs0()) * SLOT
    return [Item('L', f"ds_read_b128 {ar(xfrag(c,ks,qb))}, v{vXR+ks} offset:{off + qb*1024}") for ks in range(2) for qb in range(3)]
def flat(p, items):
    for it in items: p.cur += it.ins
def snake(mf, k): return mf[::-1] if (SNAKE and k & 1) else mf
class Pool:
    def __init__(self, size): self.n = 0; self.size = size
    def next(self):
        r = aPOOL + 4 * (self.n % self.size); self.n += 1; return r
def vunit_reads(buf, db, imm, va):
    return [f"ds_read_b64_tr_b16 {ar(buf,2)}, v{va+(db&3)} offset:{imm + (db>>2)*128}",
            f"ds_read_b64_tr_b16 {ar(buf+2,2)}, v{va+(db&3)} offset:{imm + (db>>2)*128 + 6144}"]

T = 4
RGAP = 6
class Stream:
    def __init__(self, tail=()):
        self.mf = []; self.items = []; self.resA = set()
        for u in tail: self.add_unit(u)
    def n(self): return len(self.mf)
    def add_unit(self, u):
        u['first'] = len(self.mf)
        if u.get('reads'): self.resA.add(len(self.mf) - 1)
        for k, m in enumerate(u['mf']): self.mf.append((u.get('head', []) if k == 0 else [], m))
    def reads(self, units, lo, hi, after=()):
        its = []
        tot = sum(len(u['reads']) for u in units); k = 0
        for u in units:
            g = lo + (hi - lo + 1) * k // tot
            for r in u['reads']:
                it = Item('L', r, lo=lo, hi=max(lo, min(hi, u['first'] - 5)), target=g, after=list(after) + ([(its[-1], 0)] if its else []))
                it.use = u['first']
                its.append(it); k += 1
        self.items += its
        return its
    def barrier(self, g, wait, after=()):
        w = Item('S', [x if isinstance(x, I) else I(x) for x in wait], lo=g, hi=g + 2, target=g, after=after)
        b = Item('S', "s_barrier", lo=g + 1, hi=g + 3, after=[(w, 1)])
        b.bar = BARFIX
        self.items += [w, b]
        return b
    def add(self, its): self.items += its; return its
    def emit(self, keep=0, name=""):
        mf = self.mf[:len(self.mf) - keep] if keep else self.mf
        out = pack(mf, self.items, self.resA, name)
        for it in self.items:
            if hasattr(it, 'use'):
                d = set(it.ins[0].dst)
                assert it.gap < it.use, (name, it.ins[0].text)
                for g in range(it.gap + 1, it.use):
                    assert not (d & set(self.mf[g][1].src)), ("pool WAR", name, it.ins[0].text, it.gap, g)
        return out

def qk_unit(pool, buf, kb, ds, c0, imm, k):
    pb = pool.next()
    mf = []
    for qb in range(3):
        d = sreg(buf, qb, kb)
        c = vr(d) if ds else (0 if c0 else vr(vNM + 4 * qb))
        mf.append(I(f"{MF} {vr(d)}, {ar(pb)}, {vr(qfrag(qb,ds))}, {c}"))
    return dict(reads=[f"ds_read_b128 {ar(pb)}, v{vKA+(ds&1)} offset:{imm + kb*6144 + (ds>>1)*128}"], mf=snake(mf, k))
def qk_units(pool, buf, imm, zero=()):
    return [qk_unit(pool, buf, kb, ds, kb in zero, imm, ds) for kb in range(2) for ds in range(6)]
def rs_unit(buf, zero=False):
    return dict(reads=None, mf=[I(f"{MF} {vr(vL[buf]+4*qb)}, {ar(aONE)}, {vr(vP[buf]+4*qb)}, {0 if zero else vr(vL[buf^1]+4*qb)}") for qb in range(3)])
def pv_units(pool, buf, imm, zero=False):
    units = []
    for db in range(12):
        pb = pool.next()
        z = zero and db < 12 - T
        mf = [I(f"{MF} {ar(oacc(db,qb))}, {ar(pb)}, {vr(vP[buf]+4*qb)}, {0 if z else ar(oacc(db,qb))}") for qb in range(3)]
        units.append(dict(reads=vunit_reads(pb, db, SLOT + imm, vVA), mf=snake(mf, db)))
    return units
PAIRS = [(qb, kb, h) for kb in range(2) for qb in range(3) for h in range(2)]
def softmax_items(buf, n0, n1, lo, hi, pre=None):
    ex = []; cv = []; ex0 = []
    for n in range(n0, n1):
        qb, kb, h = PAIRS[n]
        s = sreg(buf, qb, kb) + 2 * h
        e = vE + 2 * (n % NE)
        a = Item('E', f"v_exp_f32 v{e}, v{s}"); b = Item('E', f"v_exp_f32 v{e+1}, v{s+1}")
        if len(cv) >= NE: a.after.append((cv[-NE], 1))
        if pre:
            for k, x in enumerate((a, b)):
                sub = V(f"v_add_f32 v{s+k}, v{s+k}, v{vNM+4*qb}", lo=lo, hi=hi, after=[(pre, 1)])
                x.after.append((sub, 1)); ex0.append((sub, x))
        ex += [a, b]
        cv.append(V(f"v_cvt_pk_bf16_f32 v{vP[buf]+4*qb+2*kb+h}, v{e}, v{e+1}", lo=lo, hi=hi, after=[(b, 1)]))
    chain(ex, lo, hi - 1)
    for e in ex: e.hi = hi
    for k, c in enumerate(cv): c.target = ex[2 * k + 1].target + 1
    for sub, x in ex0: sub.target = max(lo, x.target - 2)
    return [s for s, _ in ex0] + ex + cv
SPLIT = 6
LTHR = 2.0 ** 40
def rowmax_text(buf, qb, d, t):
    s0, s1 = sreg(buf, qb, 0), sreg(buf, qb, 1)
    return [f"v_max3_f32 v{d}, v{s0}, v{s0+1}, v{s0+2}", f"v_max3_f32 v{t}, v{s1}, v{s1+1}, v{s1+2}",
            f"v_max3_f32 v{d}, v{d}, v{s0+3}, v{s1+3}", f"v_max_f32 v{d}, v{d}, v{t}",
            f"v_mov_b32 v{t}, v{d}", f"v_permlane32_swap_b32 v{d}, v{t}", f"v_max_f32 v{d}, v{d}, v{t}",
            f"v_mov_b32 v{t}, v{d}", f"v_permlane16_swap_b32 v{d}, v{t}", f"v_max_f32 v{d}, v{d}, v{t}"]
def rare_path(p, label, buf):
    p.reset_state()
    p(f"{label}:\ns_nop 15")
    for qb in range(3):
        d = vR + qb
        p("\n".join(rowmax_text(buf, qb, d, vR + 8)))
        p(f"v_max_f32 v{d}, 0, v{d}")
        for r in range(4): p(f"v_sub_f32 v{vNM+4*qb+r}, v{vNM+4*qb+r}, v{d}")
        for bb in (buf, buf ^ 1):
            for r in range(8): p(f"v_sub_f32 v{sreg(bb,qb,0)+r}, v{sreg(bb,qb,0)+r}, v{d}")
        p(f"v_exp_f32_e64 v{vR+4+qb}, -v{d}")
    for qb in range(3):
        for r in range(4): p(f"v_mul_f32 v{vL[buf^1]+4*qb+r}, v{vL[buf^1]+4*qb+r}, v{vR+4+qb}")
        for r in [oacc(db, qb) + r for db in range(12) for r in range(4)]:
            p(f"v_accvgpr_read_b32 v{vR+9}, a{r}\nv_mul_f32 v{vR+9}, v{vR+9}, v{vR+4+qb}\nv_accvgpr_write_b32 a{r}, v{vR+9}")
    for (qb, kb, h) in PAIRS:
        s = sreg(buf, qb, kb) + 2 * h
        p(f"v_exp_f32 v{vE}, v{s}\nv_exp_f32 v{vE+1}, v{s+1}\nv_cvt_pk_bf16_f32 v{vP[buf]+4*qb+2*kb+h}, v{vE}, v{vE+1}")
    p.cur += rs_unit(buf)['mf']
    p(f"s_nop 15\ns_setpc_b64 s[98:99]")
    p.flush()

KVPRE = ['K0', 'K1', 'V0', 'K2', 'V1', 'K3', 'V2', 'K4', 'V3']
def get_sched():
    PRO = ['X0', 'W0', 'W1', 'W2']; PRO2 = ['X1']
    QS = {0: (['W3'], None, []), 1: (['W4', 'W5'], 1, ['X2']), 2: (['W6'], None, ['X3']), 3: (['W7'], 2, ['X4']), 4: (['W8'], 3, ['X5']),
          5: (['W9', 'K0', 'K1'], None, []), 6: (['W10'], 4, ['X6']), 7: (['W11'], 5, ['X7']), 8: (['W12', 'V0', 'K2'], None, []),
          9: (['W13'], 6, ['X8']), 10: (['W14'], 7, ['X9']), 11: (['W15'], None, []), 12: (['W16'], 8, []), 13: (['W17'], 9, []),
          14: (['W18'], None, []), 15: (['W19'], None, []), 16: (['V1', 'K3', 'V2', 'K4', 'V3'], None, [])}
    if SCHED == 1:
        QS[5] = (['W9'], None, []); QS[8] = (['W12', 'K0', 'K1'], None, []); QS[11] = (['W15', 'V0', 'K2'], None, [])
    if SCHED == 2:
        QS[5] = (['W9'], None, []); QS[8] = (['W12'], None, []); QS[11] = (['W15', 'K0', 'K1'], None, [])
        QS[15] = (['W19', 'V0', 'K2'], None, [])
    if SCHED == 3:
        QS[13] = (['W17'], 9, ['V1', 'K3']); QS[16] = (['V2', 'K4', 'V3'], None, [])
    if SCHED in (4, 5, 6):
        PRO = ['X0', 'W0', 'W1']; PRO2 = ['X1']
        if SCHED == 4:
            QS.update({0: (['W2', 'W3'], None, []), 1: (['X2'], 1, ['W4']), 2: (['W5', 'X3'], None, ['W6']), 3: (['W7'], 2, ['X4']), 4: (['W8'], None, []),
                       5: (['W9'], 3, ['X5']), 6: (['W10'], 4, ['X6']), 7: (['W11'], 5, ['X7']), 8: (['W12'], None, [])})
        if SCHED == 5:
            PRO2 = []
            QS.update({0: (['X1', 'W2'], None, ['W3']), 1: (['X2'], 1, ['W4']), 2: (['W5', 'X3'], None, ['W6']), 3: (['W7'], 2, ['X4']), 4: (['W8'], None, []),
                       5: (['W9'], 3, ['X5']), 6: (['W10'], 4, ['X6']), 7: (['W11'], 5, ['X7']), 8: (['W12'], None, [])})
        if SCHED == 6:
            PRO2 = ['X1', 'W2']
            QS.update({0: (['W3', 'X2'], None, ['W4']), 1: (['W5'], 1, ['X3']), 2: (['W6'], None, []), 3: (['W7'], 2, ['X4']), 4: (['W8'], 3, ['X5']),
                       5: (['W9'], None, []), 6: (['W10'], 4, ['X6']), 7: (['W11'], 5, ['X7']), 8: (['W12'], None, [])})
    if SCHED == 7:
        QS.update({5: (['W9'], 4, ['X6']), 6: (['W10'], 5, ['X7']), 7: (['W11'], 6, ['X8']), 8: (['W12'], 7, ['X9']), 9: (['W13'], 8, []), 10: (['W14'], 9, []),
                   11: (['W15'], None, []), 12: (['W16'], None, []), 13: (['W17'], None, [])})
    if SCHED == 8:
        QS.update({5: (['W9'], None, []), 6: (['W10'], 4, ['X6']), 7: (['W11'], 5, ['X7']), 8: (['W12'], 6, ['X8']), 9: (['W13'], 7, ['X9']), 10: (['W14'], None, []),
                   11: (['W15'], 8, []), 12: (['W16'], 9, []), 13: (['W17'], None, [])})
    if SCHED == 9:
        QS.update({4: (['W8'], None, []), 5: (['W9'], 3, ['X5']), 6: (['W10'], None, []), 7: (['W11'], 4, ['X6']), 8: (['W12'], None, []), 9: (['W13'], 5, ['X7']), 10: (['W14'], None, []),
                   11: (['W15'], 6, ['X8']), 12: (['W16'], 7, ['X9']), 13: (['W17'], None, []), 14: (['W18'], 8, []), 15: (['W19'], 9, [])})
    if SCHED == 10:
        assert LAYOUT == 2 and D0 <= 3
        QS.update({5: (['W9'], 4, ['X6']), 6: (['W10'], 5, ['X7']), 7: (['W11'], 6, ['X8']), 8: (['W12'], 7, ['X9']), 9: (['W13'], 8, ['W14', 'W15']), 10: (['W16'], 9, ['W17']),
                   11: (['W18'], None, []), 12: (['W19'], None, []), 13: ([], None, []), 14: ([], None, []), 15: ([], None, [])})
    if SCHED == 11:
        assert LAYOUT == 2 and D0 <= 3
        QS.update({5: (['W9', 'W10'], None, []), 6: (['W11'], 4, ['X6']), 7: (['W12'], 5, ['X7']), 8: (['W13'], 6, ['X8']), 9: ([], 7, ['X9']), 10: ([], 8, ['W14', 'W15']),
                   11: (['W16'], 9, ['W17']), 12: (['W18', 'W19'], None, []), 13: ([], None, []), 14: ([], None, []), 15: ([], None, [])})
    keep = KVPRE[:1 + 2 * D0]
    for u in QS: QS[u] = tuple([n for n in part if n[0] not in 'KV' or n in keep] if isinstance(part, list) else part for part in QS[u])
    if QKV:
        for u in QS: QS[u] = tuple([n for n in part if n[0] not in 'KV'] if isinstance(part, list) else part for part in QS[u])
        for u, l in QKV.items(): QS[u] = (QS[u][0] + l,) + QS[u][1:]
    return PRO, PRO2, QS
QKV = {11: ['K0'], 12: ['K1'], 14: ['V0'], 15: ['K2'], 16: ['V1', 'K3', 'V2', 'P0']}
def pf_wo(v): return [Item('M', f"buffer_load_dword v{vDUM}, v{v}, {sr(sWo)}, 0 offen", tag="dummy")]
def issue(name):
    if name == 'P0': return [V(f"v_accvgpr_read_b32 v1, a{aPARK + PARK.index(vPWO)}")] + pf_wo(1)
    k, i = name[0], int(name[1:])
    return dma_x(i) if k == 'X' else dma_w(i) if k == 'W' else dma_kv_static(k, i)
def check_sched(PRO, PRO2, QS):
    occ = {}; xread = {0: -1}; qbar = set(QBAR or range(1, 17)); when = {}
    for u, (e, xr, l) in QS.items():
        if xr is not None: xread[xr] = u
    def put(n, u, late):
        k, i = n[0], int(n[1:])
        if k == 'P': return
        for s in ([xpair(i), xpair(i) + 1] if k == 'X' else [wslot(i)] if k == 'W' else [kvslot(k, i)]):
            o = occ.get(s)
            if o:
                k2, i2 = o[0], int(o[1:])
                lb = max([b for b in qbar if b <= u] + [0])
                if k2 == 'W': assert i2 <= lb - 1, (n, u, o)
                elif k2 == 'X': assert xread[i2] < lb or (xread[i2] == u and late), (n, u, o)
                else: assert False, (n, u, o)
            occ[s] = n
    seq = []
    for n in PRO: put(n, -2, False); seq.append(n)
    for n in PRO2: put(n, -1.5, True); seq.append(n)
    for u in sorted(QS):
        e, xr, l = QS[u]
        for n in e: put(n, u, False); seq.append(n); when[n] = u
        for n in l: put(n, u, True); seq.append(n); when[n] = u
        if xr is not None: assert min(xr * 2, 20 - NDB) > u and (xr - NXB) * 2 + 1 < u, (xr, u)
    for i in range(1, 20): assert when.get(f'W{i}', -1) < max(b for b in qbar if b <= min(i, 16)), i
    assert when['K0'] < max(qbar)
    assert [n for n in seq if n[0] == 'W'] == [f"W{i}" for i in range(20)]
    assert [n for n in seq if n[0] == 'X'] == [f"X{i}" for i in range(10)]
    assert [n for n in seq if n[0] in 'KV'] == KVPRE[:1 + 2 * D0] and 'K0' not in QS[16][0]

def front(p, pool):
    assert NDB == 4
    PRO, PRO2, QS = get_sched()
    check_sched(PRO, PRO2, QS)
    q = Prog(); setup_rest(q)
    ntok = max(k for k, x in enumerate(q.cur) if x.kind == 'smem') + 1
    for n in PRO[1:]: flat(p, issue(n))
    p.cur += q.cur[:ntok]
    p.cur += stp('s2')
    setup_reads(p)
    for uu in range(4): p(f"v_add_u32 v{vVA+uu}, {wslot(0)*SLOT}, v{vVL+uu}")
    late = []
    for x in q.cur[ntok:]:
        if x.op in ('s_addc_u32', 'v_cndmask_b32'): late[-1].ins.append(x)
        else: late.append(Item('V' if x.kind == 'valu' else 'S', [x]))
    if not LATESET: flat(p, late); late = []
    p("WAITVM X0"); p.cur += stp('X0')
    flat(p, read_x(0))
    for n in PRO2: flat(p, issue(n))
    p(f"""
s_add_u32 s{sTK1}, s{sTK1}, {TOKC[0]}
s_addc_u32 s{sTK1+1}, s{sTK1+1}, {TOKC[1]}
s_add_u32 s{sTK2}, s{sTK2}, {TOKC[0]}
s_addc_u32 s{sTK2+1}, s{sTK2+1}, {TOKC[1]}
""")
    p("WAITVM W0\ns_waitcnt lgkmcnt(0)\ns_barrier"); p.cur += stp('u0')
    st = Stream()
    if late:
        chain(late, 0, LATEHI)
        for x in late: x.dense = True; x.target = 0
        st.add(late)
        kvset = [x for x in late if set(x.ins[0].dst) & {('v', vKD + 2)}][0]
    NU = 20 - NDB
    def wunit(u, db, va, imm, k):
        buf = pool.next()
        mf = [I(f"{MF} {vr(qacc(db,qb))}, {ar(buf)}, {ar(xfrag(u>>1,u&1,qb))}, {vr(qacc(db,qb)) if u else 0}") for qb in range(3)]
        return dict(reads=vunit_reads(buf, db, imm, va), mf=snake(mf, k))
    tiles = [[wunit(u, db, vVA if u % 2 == 0 else vVB, 0, db) for db in range(12)] for u in range(NU)]
    sa = {16: (vVA, 0), 17: (vVA, SLOT), 19: (vVA, 2 * SLOT), 18: (vVB, 0)} if LAYOUT == 0 else {u: (vVA, (u - 16) * SLOT) for u in range(16, 20)}
    sup = [wunit(u, db, sa[u][0], sa[u][1], k) for db in range(12) for k, u in enumerate((16, 17, 19, 18))]
    tiles.append(sup)
    qk0 = [qk_unit(pool, 0, kb, ds, True, 0, kb) for ds in range(6) for kb in range(2)]
    qk1 = qk_units(pool, 1, 2 * SLOT, zero=(0,))
    rs = rs_unit(0, zero=True)
    pv = pv_units(pool, 0, 2 * SLOT, zero=True)
    for tl in tiles + [qk0, qk1, [rs], pv]:
        for un in tl: st.add_unit(un)
    n = st.n() - 3 * T
    prevdma = None
    qbar = set(QBAR or range(1, NU + 1))
    assert 1 in qbar
    for u in range(NU + 1):
        g0 = 36 * u - 3 * T
        span = 36 if u < NU else 36 * NDB
        if u == 0:
            for un in tiles[0][:T]:
                for r in un['reads']: p(r)
            rd = st.reads(tiles[0][T:], 0, g0 + 36 - RGAP)
            bar = None; glo = 0
        else:
            if u in qbar:
                cover = min([b for b in qbar if b > u] + [20]) - 1
                bar = st.barrier(g0, [f"WAITVM W{cover}"] + (["WAITVM K0"] if u == max(qbar) else []) + ["s_waitcnt lgkmcnt(0)"] + stp(f"u{u}"))
                aft = [(bar, 0)]
            else:
                bar = None; aft = [(rd[-1], 0)]
                if stp(f"u{u}"): st.add([Item('S', stp(f"u{u}"), lo=g0, hi=g0 + 3)])
            if u == NU and LAYOUT == 0:
                vb = chain([V(f"v_add_u32 v{vVB+uu}, {wslot(18)*SLOT}, v{vVL+uu}") for uu in range(4)], g0 - 4, g0 + 1)
                vb[0].after.append((rd[-1], 1)); st.add(vb)
                for x in vb: x.hi = g0 + 4
            rd = st.reads(tiles[u], g0 + 1, g0 + span - (RGAP if (u + 1) in qbar and u < NU else 0), aft)
            if u == NU and LAYOUT == 0:
                for x in rd[6:8]: x.after.append((vb[-1], 1))
            glo = g0 + 2
        if u < NU:
            va = vVA if (u + 1) % 2 == 0 else vVB
            st.add(chain([V(f"v_add_u32 v{va+uu}, {wslot(u+1)*SLOT}, v{vVL+uu}") for uu in range(4)], glo + 6, g0 + 30))
        e, xr, l = QS[u]
        f1 = [g for nm in e for g in issue(nm)]
        nx = [g for nm in l for g in issue(nm)]
        seq = []
        if f1:
            chain(f1, glo, glo + (12 if u < NU else KVSPAN))
            if bar: f1[0].after.append((bar, 1))
            if late and 'K0' in e: f1[0].after.append((kvset, 1))
            if late and 'P0' in e: f1[0].after.append((late[-1], 1))
            seq += f1
        if xr is not None:
            rx = [S(f"WAITVM X{xr}")] + read_x(xr)
            chain(rx, g0 + 14, g0 + 22)
            seq += rx
            if nx: nx = [V(f"v_accvgpr_read_b32 v{vT0}, a{xfrag(xr,1,2)}", after=[(rx[-1], 4)])] + nx
        if nx:
            chain(nx, g0 + 24, g0 + 35); seq += nx
        for k in range(len(seq)):
            pvs = seq[k - 1] if k else prevdma
            if pvs is not None and not any(a is pvs for a, _ in seq[k].after): seq[k].after.append((pvs, 1))
            seq[k].hi = g0 + span + 14 if seq[k].kind != 'L' else g0 + 30
        if seq: prevdma = seq[-1]
        st.add(seq)
    wlast = rd[-1]
    assert oacc(12 - T, 0) == xfrag(4, 0, 0)
    st.add(chain([V(f"v_accvgpr_write_b32 a{oacc(12-T,0)+r}, 0") for r in range(12 * T)], 36 * 12 + 4, 36 * 16 - 20))
    cprev = None
    for s in range(6):
        its = []
        for qb in range(3):
            a, b, q = qacc(2 * s, qb), qacc(2 * s + 1, qb), qfrag(qb, s)
            its += [V(f"v_mul_f32 v{r}, s{sSC}, v{r}") for r in list(range(a, a + 4)) + list(range(b, b + 4))]
            its += [V(f"v_cvt_pk_bf16_f32 v{q+k}, v{r}, v{r+1}") for k, r in enumerate((a, a + 2, b, b + 2))]
        for qb in range(3):
            q = qfrag(qb, s)
            its += [V(f"v_permlane16_swap_b32 v{q}, v{q+2}"), V(f"v_permlane16_swap_b32 v{q+1}, v{q+3}")]
        lo = sup[8 * s + 7]['first'] + 5
        dl = qk0[2 * s]['first'] - 2 if s else qk0[0]['first'] - 2
        chain(its, lo, min(lo + 26, dl), 0)
        for x in its: x.hi = dl; x.dense = True; x.target = lo
        if cprev: its[0].after.append((cprev, 0))
        cprev = its[-1]; st.add(its)
    q0 = qk0[0]['first']
    kr0 = st.reads(qk0, q0 - 11, q0 + 14, [(wlast, 0)])
    gx = q0 + 20
    barx = st.barrier(gx, ["WAITVM V0", "s_waitcnt lgkmcnt(0)"] + stp('Qend'), after=[(kr0[-1], 1), (prevdma, 1)])
    kr1 = st.reads(qk1, gx + 1, qk1[0]['first'] + 18, [(barx, 0)])
    va = chain([V(f"v_mov_b32 v{vVA+u}, v{vVL+u}") for u in range(4)], q0, q0 + 20); va[0].after.append((wlast, 1)); st.add(va)
    for x in va: x.hi = qk1[6]['first']
    st.reads(pv, kr1[-1].target + 2, n - 12, [(kr1[-1], 0), (va[-1], 1)])
    dm = chain(kv_issue(), qk0[10]['first'], qk0[10]['first'] + 14); dm[0].after.append((barx, 1)); st.add(dm)
    for x in dm: x.hi = n - 8
    lo = qk1[0]['first'] + 3; dl = qk1[6]['first'] - 2
    cols = [[V(t) for t in rowmax_text(0, qb, vR + qb, vR + 4 + qb)] for qb in range(3)]
    rm = [cols[qb][k] for k in range(10) for qb in range(3)]
    rm += [V(f"v_sub_f32 v{vNM+4*qb+r}, 0, v{vR+qb}") for r in range(4) for qb in range(3)]
    chain(rm, lo, dl, 0); st.add(rm)
    for x in rm: x.dense = True; x.target = lo
    st.add(softmax_items(0, 0, 12, lo + 10, rs['first'] - 2, pre=rm[32]))
    st.add(softmax_items(1, 0, SPLIT, pv[0]['first'] + 1, n - 1, pre=rm[-1]))
    up = wrap0(sRD, 4 * SLOT, 12 * SLOT) + [V(f"v_add_u32 v{vKA+u}, s{sRD}, v{vKL+u}") for u in range(2)]
    up[0].after += [(kr1[-1], 1), (dm[-1], 1)]
    st.add(chain(up, pv[0]['first'], n - 2))
    p.cur += st.emit(3 * T, name="front")
    return [dict(mf=u['mf']) for u in pv[12 - T:]]

def o_store(s):
    return [S(f"s_add_u32 s{sXOFF}, s{sKOFF}, {s*12288}")] + [
        Item('M', f"buffer_store_dwordx4 {bfrag(s,qb)}, v{vOL}, {sr(sWS)}, s{sXOFF} offen offset:{1024*qb} sc1", tag=f"OST{s>>1}") for qb in range(3)]
def o_conv(s, qb):
    t = 32 + 8 * ((s * 3 + qb) % 3); d = vQ + (s * 3 + qb) * 4
    its = [V(f"v_accvgpr_read_b32 v{t+4*h+r}, a{oacc(2*s+h,qb)+r}") for h in range(2) for r in range(4)]
    its += [V(f"v_mul_f32 v{t+r}, v{t+r}, v{vRCS[qb]}") for r in range(8)]
    its += [V(f"v_cvt_pk_bf16_f32 v{d+r}, v{t+2*r}, v{t+2*r+1}") for r in range(4)]
    return its

def check_items(cur, lo, hi):
    mx = V(f"v_max3_f32 v{vCK}, v{vL[cur]}, v{vL[cur]+4}, v{vL[cur]+8}", lo=min(lo, hi), hi=hi)
    return [mx, V(f"v_cmp_nge_f32 vcc, s{sLTHR}, v{vCK}", after=[(mx, 0)], hi=hi)]
def rare_head(p, cur):
    ret = p.newlabel("L_ret"); tr = p.newlabel("L_tramp")
    TRAMPS.append((tr, ret, cur))
    return L(f"s_cbranch_vccnz {tr}\n{ret}:")
def attention(p, pool, tail):
    def step(t_par, tail, mode, vm, extra=(), endi=(), final=False):
        cur, nxt = t_par, t_par ^ 1
        imm = 0 if t_par else 2 * SLOT
        st = Stream(tail)
        qk = qk_units(pool, nxt, imm)
        pv = pv_units(pool, cur, imm)
        rs = rs_unit(cur)
        pv[0]['head'] = rare_head(p, cur)
        for u in qk[:9] + [rs] + qk[9:] + pv: st.add_unit(u)
        n = st.n() - 3 * T
        bar = st.barrier(0, [f"s_waitcnt vmcnt({vm}) lgkmcnt(0)"])
        kr = st.reads(qk, 1, 33 if not final else 28, [(bar, 0)])
        aft = [(bar, 0), (kr[-1], 0)]
        if t_par:
            va = chain([V(f"v_add_u32 v{vVA+u}, s{sRD}, v{vVL+u}") for u in range(4)], 0, 20)
            st.add(va); aft.append((va[-1], 1))
        vrd = st.reads(pv, kr[-1].target + 2, n - (12 if not final else 20), aft)
        if final:
            up = wrap0(sRD, 4 * SLOT, 12 * SLOT) + [V(f"v_add_u32 v{vVA+u}, s{sRD}, v{vVL+u}") for u in range(4)]
            up[2].after.append((vrd[-1], 1))
            st.add(chain(up, n - 24, n - 1))
        elif not t_par:
            up = wrap0(sRD, 4 * SLOT, 12 * SLOT) + [V(f"v_add_u32 v{vKA+u}, s{sRD}, v{vKL+u}") for u in range(2)]
            up[0].after += [(kr[-1], 1)]
            st.add(chain(up, rs['first'], n - 4))
        dm = []
        if mode == 'A':
            dm = chain(kv_issue(), 2, DMAHI) if not WIN else spread_kv(kv_issue(), 2, WHI)
            for x in dm: x.hi = n - (8 if not WIN else 4)
        if extra:
            fx = [x for x in extra if getattr(x, 'fixed', False)]; fr = [x for x in extra if not getattr(x, 'fixed', False)]
            if fr:
                chain(fr, DMAHI + 2 if fx else 2, 68 if fx else (56 if not final else 30))
                if fx: fr[0].after.append((fx[-1], 1))
            dm = fx + fr
            for x in dm: x.hi = n - 1
        if dm: dm[0].after.append((bar, 1))
        st.add(dm)
        st.add(softmax_items(cur, SPLIT, 12, 0, rs['first'] - 2))
        pf = pv[0]['first']
        st.add(check_items(cur, rs['first'] + 6, pf - 1))
        st.add(softmax_items(nxt, 0, SPLIT if not final else SP30, pf + (1 if not final else 0), n - 1))
        if endi: st.add(chain(list(endi), n - 3, n - 1, 0))
        return st.emit(3 * T, name=mode), [dict(mf=u['mf']) for u in pv[12 - T:]]
    txt = lambda tl: [[i.text for i in u['mf']] for u in tl]
    global WIN
    VMA = VMLIM if not WIN else 6 * (D0 - 1)
    tr = []
    if TRACE: tr = L(f"s_memrealtime s[84:85]\ns_waitcnt lgkmcnt(0)\ns_mov_b32 m0, s{sT}\nv_writelane_b32 v174, s84, m0")
    global WHI
    for k, (tend, w, wh) in enumerate(LOOPS or [(27, WIN, WHI)]):
        WIN = w; WHI = wh
        lp = f"L_attA{k}"
        b1, tail1 = step(1, tail, 'A', VMA)
        b2, tail2 = step(0, tail1, 'A', VMA, endi=[S(f"s_add_u32 s{sT}, s{sT}, 2"), S(f"s_cmp_lt_u32 s{sT}, {tend}")])
        assert txt(tail2) == txt(tail) and VMLIM <= 6 * (D0 - 1) and tend % 2 == 1
        p.loop(L(f"{lp}:") + [I(x.text) for x in tr] + b1 + b2 + L(f"s_cbranch_scc1 {lp}"))
    assert tend == 27
    if TRACE:
        p(f"s_add_u32 s96, s90, {STAMP_OFF + 65536}\ns_addc_u32 s97, s91, 0"); srd(p, 84, 96, 1 << 20)
        p(f"s_lshl_b32 s{sTMP}, s2, 2\ns_add_u32 s{sTMP}, s{sTMP}, s{sWAVE}\ns_lshl_b32 s{sTMP}, s{sTMP}, 9\nv_lshlrev_b32 v{vT0}, 3, v0")
        p(f"buffer_store_dwordx2 v[174:175], v{vT0}, s[84:87], s{sTMP} offen")
    p.cur += stp('Lend')
    p("L_att27:")
    cnt = lambda its: sum(1 for x in its if x.kind == 'M')
    log = [pr for pr in range(27, 27 + D0) for _ in range(6)]
    nxt = 27 + D0
    tl = tail
    for t in range(27, 31):
        vm = len(log) - 1 - max(k for k, x in enumerate(log) if x == t)
        lastkv = max(k for k, x in enumerate(log) if x >= 0)
        if not WIN and 'kv' in PLAN[t]: vm = min(vm, VMLIM + len(log) - 1 - lastkv)
        ex = []
        for a in PLAN[t]:
            if a == 'kv': its = kv_issue(nok=(nxt == 31)); log += [nxt] * cnt(its); nxt += 1
            else:
                if a == 'r': its = [V(f"v_accvgpr_read_b32 v{r}, a{aPARK+k}") for k, r in enumerate(PARK)]
                elif a == 'p': its = pf_wo(vPWO)
                elif a == 't':
                    its = [S(f"s_mul_i32 s{sTMP+2}, s{sHL}, 73728"), Item('M', f"buffer_load_dword v{vDUM}, v{vOL}, {sr(sWS)}, s{sTMP+2} offen sc1", tag="dummy"),
                           S(f"s_mul_i32 s{sTMP+2}, s{sHG}, 15360"), Item('M', f"buffer_load_dword v{vDUM}, v{vPT}, {sr(sWS)}, s{sTMP+2} offen sc1", tag="dummy")]
                elif a == 'u':
                    its = [Item('M', f"buffer_load_dword v{vDUM}, v{vOUT}, {sr(sOUT)}, 0 offen sc1", tag="dummy")]
                elif a == 'l': its = [Item('M', f"buffer_load_dword v{vDUM}, v{vF1}, {sr(sWS)}, 0 offen offset:128 sc1", tag="dummy")]
                else:
                    assert t >= {0: 28, 1: 28, 2: 29, 3: 29, 4: 30, 5: 31, 6: 31}[a]
                    its = dma_wo(a)
                log += [-1] * cnt(its)
            if a == 'kv':
                if WIN: spread_kv(its, 2, 62 if len(PLAN[t]) == 1 or cnt(its) == 3 else 40)
                else: chain(its, 2, DMAHI)
                for x in its: x.fixed = True
            ex += its
        ins, tl = step(t & 1, tl, 'P', min(vm, 63), ex, final=(t == 30)); p.cur += ins
    assert nxt == 32
    return tl, len(log) - 1 - max(k for k, x in enumerate(log) if x == 31)

def set_flag(vfl, sidx, off=0, local=False, vt=None):
    vt = vt or vTK
    st = f"buffer_store_dwordx2 v[{vt}:{vt+1}], v{vfl}, {sr(sWS)}, 0 offen offset:"
    return L(f"s_lshl_b64 exec, 1, s{sidx}\n" + (f"{st}{off+128}\n" if local else "") + f"{st}{off} sc1\ns_mov_b64 exec, -1")
def spin(name, voff, tk, off):
    one = lambda o: f"""buffer_load_dwordx2 v[{vFLV}:{vFLV+1}], v{voff}, {sr(sWS)}, 0 offen offset:{o} sc1
s_waitcnt vmcnt(0)
v_cmp_ne_u64 vcc, s[{tk}:{tk+1}], v[{vFLV}:{vFLV+1}]
s_cbranch_vccz L_spinr{name}
"""
    OUTL.append(f"""L_spin{name}:
s_mov_b32 s{sTMP}, 0x10000
L_poll{name}:
""" + (one(off + 128) * NLOC if LOCAL else "") + one(off) + f"""s_sub_u32 s{sTMP}, s{sTMP}, 1
s_cmp_lg_u32 s{sTMP}, 0
s_cbranch_scc1 L_poll{name}
s_branch L_spinr{name}
""")
def bump_epoch(p, voff, tk, sidx, off):
    ne = p.newlabel("L_ne")
    p(f"s_cmp_lg_u32 s{sidx}, 0\ns_cbranch_scc1 {ne}\nv_mov_b32 v{vFLV}, s{tk}\nv_mov_b32 v{vFLV+1}, s{tk+1}\ns_mov_b64 exec, 1")
    p.flush()
    p.raw(f"buffer_store_dwordx2 v[{vFLV}:{vFLV+1}], v{voff}, {sr(sWS)}, 0 offen offset:{off} sc1")
    p(f"s_mov_b64 exec, -1\ns_nop 1\n{ne}:")
def load_g(G):
    i, c = gic(G)
    g = [S(f"s_add_u32 s{sXOFF}, s{sHI+i}, {c}"), S(f"s_mul_i32 s{sXOFF}, s{sXOFF}, 24576")]
    for ks in range(2):
        if ks: g.append(S(f"s_add_u32 s{sXOFF}, s{sXOFF}, 12288"))
        g += [Item('M', f"buffer_load_dwordx4 {bfrag(2*G+ks,qb)}, v{vOL}, {sr(sWS)}, s{sXOFF} offen offset:{1024*qb} sc1") for qb in range(3)]
    return g

def oproj(p, pool, tail, vm31):
    NEXTG = max(a for v in PLAN.values() for a in v if isinstance(a, int)) + 1
    st = Stream(tail[:2])
    rs = rs_unit(1); st.add_unit(rs)
    for u in tail[2:]: st.add_unit(u)
    apv = pv_units(pool, 1, 0)
    apv[0]['head'] = rare_head(p, 1)
    for u in apv: st.add_unit(u)
    Z = st.n()
    def unit(G, ks, nb, va, imm):
        u = 2 * G + ks; pb = pool.next(); a = va + (nb & 1)
        rd = [f"ds_read_b64_tr_b16 {ar(pb,2)}, v{a} offset:{imm+ks*10240+nb*32}", f"ds_read_b64_tr_b16 {ar(pb+2,2)}, v{a} offset:{imm+ks*10240+nb*32+5120}"]
        mf = [I(f"{MF} {vr(cacc(nb,qb))}, {ar(pb)}, {bfrag(u,qb)}, {vr(cacc(nb,qb)) if u else 0}") for qb in range(3)]
        return dict(reads=rd, mf=snake(mf, pool.n))
    def seta(va, off): return [V(f"v_add_u32 v{va+k}, {off}, v{vWOL+k}") for k in range(2)]
    NG = 6
    assert GS >= 4
    def un2(G, ks, nb): return unit(G, ks, nb, vWA[2 + (G - NG) // 3], ((G - NG) % 3) * GSZ) if G >= NG else unit(G, ks, nb, vWA[G & 1], 0)
    assert all(goff(G + 1) == goff(G) + GSZ for G in range(NG, 11))
    U = [[unit(G, ks, nb, vWA[G & 1], 0) for ks in range(2) for nb in range(6 if G >= GS else 10)] for G in range(NG)]
    NL = 12 - NBA
    A = [[un2(G, ks, nb) for ks in range(2) for nb in range(6 if G >= GS else 10)] for G in range(6, NL)]
    F = [[un2(G, ks, nb) for G in range(NL if nb < 6 else GS, 12) for ks in range(2)] for nb in range(10)]
    tiles = U + A + [[u for nb in range(10) for u in F[nb]]]
    if ST: U[0][0]['head'] = stp('Aend')
    for tl in tiles:
        for u in tl: st.add_unit(u)
    bar0 = st.barrier(0, ["WAITVM G0", f"s_waitcnt vmcnt({vm31}) lgkmcnt(0)"])
    pf = apv[0]['first']
    vrd = st.reads(apv, 1, pf + 14, [(bar0, 0)])
    st.add(softmax_items(1, SP30, 12, 0, rs['first'] - 1))
    st.add(check_items(1, rs['first'] + 5, pf - 1))
    sa0 = chain(seta(vWA[0], goff(0)) + [V(f"v_mov_b32 v{vTK}, s{sTK1}"), V(f"v_mov_b32 v{vTK+1}, s{sTK1+1}")], rs['first'], pf - 1); st.add(sa0)
    for x in sa0: x.hi = pf + 12
    rc = chain([S(f"s_mul_i32 s{sKOFF}, s{sHL}, 73728"), S(f"s_mul_i32 s{sT}, s{sHG}, 15360")] + [Item('E', f"v_rcp_f32 v{vRCS[qb]}, v{vL[1]+4*qb}") for qb in range(3)], pf, pf + 6)
    for x in rc: x.hi = pf + 10
    st.add(rc)
    mem = []
    def addmem(its, lo, hi, after=None):
        chain(its, lo, hi)
        for x in its: x.hi = 10 ** 9
        if after: its[0].after.append(after)
        if mem: its[0].after.append((mem[-1], 1))
        mem.extend(its); st.add(its)
    wit = {}
    for k, G in enumerate(PRE31):
        addmem(dma_wo(G), 4 + 10 * k, 12 + 10 * k, (bar0, 1)); wit[G] = mem[-1]
        for x in mem: x.hi = pf + 9
    prev = rc[-1]; conv = {}
    for sx in range(6):
        stv = o_store(sx)
        for qb in range(3):
            its = o_conv(sx, qb)
            lo = min(apv[2 * sx + 1]['first'] + 6, Z + 2)
            if sx < NEO:
                k = sx * 3 + qb; a = apv[1]['first'] + 6
                dl = max(lo, a + (Z - 3 - a) * (k + 1) // (3 * NEO))
            else: dl = min(Z + 30 * sx - 3, Z + CDL * (3 * (sx - NEO) + qb + 1))
            chain(its, lo, dl, 0)
            for x in its: x.dense = True; x.target = lo
            its[0].after.append((prev, 1 if prev.kind != 'V' else 0)); prev = its[-1]; st.add(its)
            conv[sx, qb] = its[-1]
            if sx < NEO:
                o = ([stv[0]] if qb == 0 else []) + [stv[1 + qb]]
                o[-1].after.append((its[-1], 1)); addmem(o, lo, dl + 1)
                for x in o: x.hi = dl + 1
                o[-1].target = dl + 1
    st.add(chain(seta(vWA[2], goff(6)) + seta(vWA[3], goff(9)) + [V(f"v_mov_b32 v{vTK2}, s{sTK2}"), V(f"v_mov_b32 v{vTK2+1}, s{sTK2+1}"),
        S(f"s_cmp_ge_u32 s{sJ}, 4\ns_cselect_b32 s{sTMP+2}, 8, 0"), S(f"s_cmp_eq_u32 s{sJ}, 0\ns_cselect_b32 s{sTMP+2}, -8, s{sTMP+2}" if TRI else f"s_mov_b32 s{sTMP+2}, 8"),
        V(f"v_and_b32 v{vF2R}, 8, v0"), V(f"v_mul_i32_i24 v{vF2R}, s{sTMP+2}, v{vF2R}"), V(f"v_add_u32 v{vF2R}, v{vF2R}, v{vF2}")], Z + 180, Z + 280))
    bars = {0: bar0}
    for k, tl in enumerate(tiles):
        g0 = tl[0]['first'] - 3 * T
        last = tiles[k + 1][0]['first'] - 3 * T - (RGAP if k < 4 else 0) if k + 1 < len(tiles) else st.n() - 14
        if k == 0: rdl = st.reads(U[0], g0 + 1, last, [(vrd[-1], 0), (sa0[1], 1)])
        else:
            bars[k] = st.barrier(g0, [f"WAITVM G{k if k < NL else 11}"] + (["s_waitcnt lgkmcnt(0)"] if k <= 4 else []) + stp(f"G{k}"))
            rdl = st.reads(tl, g0 + 1, last, [(bars[k], 0), (rdl[-1], 0)])
        if k + 1 < NG: st.add(chain(seta(vWA[(k + 1) & 1], goff(k + 1)), g0 + 14, g0 + 30))
    pv = {0: 2, 1: 4, 2: 8}
    for pos, act in OCH:
        k, n = act[0], int(act[1:]); pos += Z
        if k == 'W':
            if n >= NEXTG and n not in wit:
                addmem(dma_wo(n), pos, pos + SPW, (bars[0 if n < 7 else max(n - 7, 1)], 1)); wit[n] = mem[-1]
        elif k == 'F': addmem([Item('M', [I(f"WAITVM OST{n}")] + stp(f"F{n}") + set_flag(vF1, sHL, 32 * n, LOCAL))], pos, pos)
        elif k == 'P': addmem([Item('M', f"buffer_load_dwordx2 v[{pv[n]}:{pv[n]+1}], v{vF1}, {sr(sWS)}, 0 offen offset:{32*n + (128 if LOCAL else 0)} sc1")], pos, pos)
        elif k == 'C':
            addmem([V(f"v_cmp_ne_u64 vcc, s[{sTK1}:{sTK1+1}], v[{pv[n]}:{pv[n]+1}]")], pos, pos)
            addmem([Item('S', stp(f"C{n}a") + L(f"s_cbranch_vccnz L_spin{n}\nL_spinr{n}:") + stp(f"C{n}b"))], pos + 3, pos + 3)
            spin(n, vF1, sTK1, 32 * n)
        elif k == 'B': addmem([x for G in range(3 + 3 * n, 6 + 3 * n) for x in load_g(G)], pos, pos + 40)
        elif k == 'b': addmem(load_g(n), pos, pos + SPW, (conv[5, 2], 1) if n >= 6 else (conv[0, 2], 1))
        elif k == 'S':
            assert n >= NEO
            o = o_store(n)
            for qb in range(3): o[1 + qb].after.append((conv[n, qb], 1))
            addmem(o, pos, pos + 6)
    def gran(m, qb, k):
        t = vQ + 12 * (k % 4); j = m * 3 + qb
        its = [V(f"v_cvt_pk_bf16_f32 v{t+8+r}, v{cacc(2*m+(r>>1),qb)+2*(r&1)}, v{cacc(2*m+(r>>1),qb)+2*(r&1)+1}") for r in range(4)]
        if j % 4 == 0: its.append(S(f"s_add_u32 s{sTMP+1}, s{sT}, {j*1024}"))
        so = sTMP + 1; post = []
        if OWN:
            so = sTMP + 3
            if OWN == 2:
                its.append(S(f"s_cmp_eq_u32 s{sJ}, {j&7}\ns_cselect_b32 s{so}, {OOB}, s{sTMP+1}\ns_cselect_b64 s[96:97], -1, 0"))
                post = [V(f"v_cndmask_b32 v{40+8*(j>>3)+4*h+r}, v{40+8*(j>>3)+4*h+r}, v{cacc(2*m+h,qb)+r}, s[96:97]") for h in range(2) for r in range(4)]
            else:
                its.append(S(f"s_cmp_eq_u32 s{sJ}, {j&7}\ns_cselect_b32 s{so}, {OOB}, s{sTMP+1}\ns_cbranch_scc1 L_own{j}\nL_ownr{j}:"))
                OUTL.append(f"L_own{j}:\n" + "".join(f"v_mov_b32 v{40+8*(j>>3)+4*h+r}, v{cacc(2*m+h,qb)+r}\n" for h in range(2) for r in range(4)) + f"s_branch L_ownr{j}\n")
        its.append(Item('M', f"buffer_store_dwordx4 {vr(t+8)}, v{vPT}, {sr(sWS)}, s{so} offen offset:{(j%4)*1024} sc1", tag="PA" if m < 3 else f"P{m}"))
        if m == 4 and post: return its, [S(f"s_cmp_eq_u32 s{sJ}, {j&7}\ns_cselect_b64 s[96:97], -1, 0")] + post
        return its + post
    k = 0
    for m in range(4):
        its = []
        for qb in range(3): its += gran(m, qb, k); k += 1
        lo = F[2 * m + 2][0]['first'] + 4
        fa = [Item('M', [I("WAITVM PA")] + stp('FA') + set_flag(vF2, sHG, 0, vt=vTK2))]
        fp = min(F[6][0]['first'] + FAPOS, st.n() - 1)
        if m == 3 and fp <= lo: addmem(fa, fp, fp)
        addmem(its, lo, lo + (14 if OWN != 2 else 20))
        if m == 3 and fp > lo: addmem(fa, fp, fp)
    if EARLY: addmem([Item('M', f"buffer_load_dwordx2 v[4:5], v{vF2R}, {sr(sWS)}, 0 offen sc1")], st.n() - EARLY, st.n() - EARLY)
    p.cur += st.emit(name="oproj")
    for it in mem:
        if it.kind == 'M' and it.ins[0].op == 'buffer_load_dwordx4' and it.ins[0].dst:
            d = set(it.ins[0].dst)
            assert it.gap < min(g for g, (h, m) in enumerate(st.mf) if g >= Z and d & set(m.srcAB)), it.ins[0].text
    for n, it in wit.items(): assert it.gap < bars[min(n, NL)].gap - 1, n
    assert set(wit) | set(range(NEXTG)) == set(range(12))
    p.cur += stp('E')
    if OWN == 2:
        gs = [gran(4, qb, k + qb) for qb in range(3)]
        for a, b in gs: flat(p, a)
        return [x for a, b in gs for x in b]
    for qb in range(3): flat(p, gran(4, qb, k)); k += 1
    return []

def final_reduce(p, rest):
    sDONE, sNEW, sO2, sOWNB, sOOB = sKK, sWR, sRD, sWOFF, sXOFF
    ld = f"buffer_load_dwordx2 v[{vFLV}:{vFLV+1}], v{vF2R}, {sr(sWS)}, 0 offen sc1"
    if TRI: p("WAITVM P3"); p.cur += set_flag(vF2, sHG, 64, vt=vTK2)
    p(f"""
{ld if not EARLY else ""}
s_lshl_b32 s{sTMP}, s{sJ}, 10
v_add_u32 v2, s{sTMP}, v{vPT}
s_cmp_eq_u32 s{sJ}, 7
s_cselect_b32 s{sO2}, {OOB}, 0
s_cselect_b32 s{sDONE}, 0xff00, 0
s_mov_b32 s{sT}, 0xffff0000
s_lshl_b32 s{sOWNB}, 0x101, s{sHG}
s_mov_b32 s{sOOB}, {OOB}
s_mov_b32 s{sTMP}, 0x20000
""")
    flat(p, rest)
    if EARLY:
        p(f"v_cmp_eq_u64 vcc, s[{sTK2}:{sTK2+1}], v[4:5]\ns_nop 4\ns_and_b32 s{sNEW}, vcc_lo, 0xff\ns_andn2_b32 s{sNEW}, s{sNEW}, s{sOWNB}\ns_or_b32 s{sDONE}, s{sDONE}, s{sNEW}")
        for g in range(8):
            p(f"s_bitcmp1_b32 s{sNEW}, {g}\ns_cselect_b32 s{sTMP+1}, {g*15360}, s{sOOB}\nbuffer_load_dwordx4 {vr(56+g*4)}, v2, {sr(sWS)}, s{sTMP+1} offen sc1")
    p("WAITVM P4")
    p.cur += set_flag(vF2, sHG, 128, vt=vTK2); p.cur += stp('ACK')
    if not EARLY: p("s_waitcnt vmcnt(1)\ns_branch L_fin2")
    p.flush()
    t = f"""L_fin:
{ld}
s_waitcnt vmcnt(0)
L_fin2:
v_cmp_eq_u64 vcc, s[{sTK2}:{sTK2+1}], v[{vFLV}:{vFLV+1}]
s_nop 4
s_and_b32 s{sNEW}, vcc_lo, 0xffff
{"s_or_b32 s%d, s%d, s%d" % (sNEW, sNEW, sOWNB) if OWN else ""}
s_andn2_b32 s{sNEW}, s{sNEW}, s{sDONE}
{"s_cbranch_scc0 L_fnone" if QUICK else ""}
s_or_b32 s{sDONE}, s{sDONE}, s{sNEW}
{"s_and_b32 s%d, s%d, 0xff" % (sTMP+1, sNEW) if QUICK else ""}
{"s_cbranch_scc0 L_fs7" if QUICK else ""}
"""
    for g in range(16):
        t += f"""s_bitcmp0_b32 s{sNEW}, {g}
s_cbranch_scc1 L_fs{g}
s_cmp_eq_u32 s{sHG}, {g%8 if OWN else 99}
s_cselect_b32 s{sTMP+1}, s{sOOB}, {(g%8)*15360 + (g//8)*8192}
buffer_load_dwordx4 {vr(56+g*4)}, v2, {sr(sWS)}, s{sTMP+1} offen sc1
L_fs{g}:
"""
    t += f"""s_cmp_eq_u32 s{sDONE}, 0xffff
s_cbranch_scc1 L_find
L_fnone:
s_sub_u32 s{sTMP}, s{sTMP}, 1
s_cmp_lg_u32 s{sTMP}, 0
s_cbranch_scc1 L_fin
L_find:"""
    p.raw(t)
    p.cur += stp('P2')
    for i in range(2):
        p(f"""
s_add_u32 s{sTMP}, s{sJ}, {8*i}
s_mul_i32 s{sTMP+1}, s{sTMP}, 11
s_lshr_b32 s{sTMP+1}, s{sTMP+1}, 5
s_mul_i32 s{sTMP+3}, s{sTMP+1}, 3
s_sub_u32 s{sTMP+3}, s{sTMP}, s{sTMP+3}
s_mul_i32 s{sTMP+3}, s{sTMP+3}, {16*1280}
s_lshl_b32 s{sTMP+1}, s{sTMP+1}, 6
s_add_u32 s{sTMP+4+i}, s{sTMP+1}, s{sTMP+3}
""")
    p(f"s_add_u32 s{sTMP+5}, s{sTMP+5}, s{sO2}\ns_and_b32 s{sNEW}, s{sNEW}, 0xff\ns_cbranch_scc0 L_fa\ns_waitcnt vmcnt(0)\nL_fa:")
    for i in range(2):
        acc = 40 + i * 8
        if i: p("s_waitcnt vmcnt(1)")
        for g in range(8):
            b = 56 + (i * 8 + g) * 4
            for r in range(4):
                d = acc if g == 0 and not OWN else 120
                p(f"v_lshlrev_b32 v{d+2*r}, 16, v{b+r}\nv_and_b32 v{d+1+2*r}, s{sT}, v{b+r}")
            if g or OWN:
                for r in range(8): p(f"v_add_f32 v{acc+r}, v{acc+r}, v{120+r}")
        o = 132 + 4 * i
        for r in range(4): p(f"v_cvt_pk_bf16_f32 v{o+r}, v{acc+2*r}, v{acc+2*r+1}")
        p(f"v_permlane16_swap_b32 v{o}, v{o+2}\nv_permlane16_swap_b32 v{o+1}, v{o+3}")
        p(f"buffer_store_dwordx4 {vr(o)}, v{vOUT}, {sr(sOUT)}, s{sTMP+4+i} offen")
    bump_epoch(p, vF1, sTK1, sHL, 96)
    bump_epoch(p, vF2, sTK2, sHG, 192)

def store_stamps(p):
    if not ST: return
    p("s_waitcnt vmcnt(0)"); p.cur += stp('end')
    lab = p.newlabel("L_nost")
    if AMP:
        a, b = sSTAMP + 2 * ST[AMP[0]], sSTAMP + 2 * ST[AMP[1]]; e = sSTAMP + 2 * ST['end']
        p(f"""s_waitcnt lgkmcnt(0)
s_cmp_lg_u32 s2, 100
s_cbranch_scc1 {lab}
s_sub_u32 s{sTMP}, s{b}, s{a}
s_lshl_b32 s{sTMP}, s{sTMP}, 3
s_min_u32 s{sTMP}, s{sTMP}, 100000
L_amp:
s_memrealtime s[96:97]
s_waitcnt lgkmcnt(0)
s_sub_u32 s{sTMP+1}, s96, s{e}
s_cmp_lt_u32 s{sTMP+1}, s{sTMP}
s_cbranch_scc1 L_amp
{lab}:""")
        return
    if DBGST is not None:
        p("s_load_dwordx2 s[96:97], s[0:1], 48\ns_waitcnt lgkmcnt(0)"); srd(p, sK, 96, 256)
        p(f"s_cmp_lg_u32 s{sWAVE}, 0\ns_cbranch_scc1 {lab}\ns_cmp_lg_u32 s2, {DBGST}\ns_cbranch_scc1 {lab}")
        p("s_mov_b64 exec, 1\nv_mov_b32 v2, 0")
        for i in range(NSTAMP):
            p(f"s_sub_u32 s{sTMP}, s{sSTAMP+2*i}, s{sSTAMP}\nv_mov_b32 v4, s{sTMP}\nbuffer_store_dword v4, v2, {sr(sK)}, 0 offen offset:{4*i}\ns_nop 1")
        p(f"s_waitcnt vmcnt(0)\n{lab}:")
        return
    p(f"s_add_u32 s96, s90, {STAMP_OFF}\ns_addc_u32 s97, s91, 0"); srd(p, sK, 96, 65536)
    p("s_waitcnt lgkmcnt(0)")
    p(f"s_cmp_lg_u32 s{sWAVE}, 0\ns_cbranch_scc1 {lab}")
    p(f"s_lshl_b32 s{sTMP}, s2, 7\nv_mov_b32 v2, s{sTMP}\ns_mov_b64 exec, 1")
    for i, r in enumerate([sSTAMP + 2 * i for i in range(NSTAMP)] + list(CST.values())):
        p(f"v_mov_b32 v4, s{r}\nv_mov_b32 v5, s{r+1}\nbuffer_store_dwordx2 v[4:5], v2, {sr(sK)}, 0 offen offset:{8*i}\ns_nop 1")
    p(f"s_waitcnt vmcnt(0)\n{lab}:")

def kernel(p):
    name = NAME + "_kernel"
    p.raw(f".globl {name}\n.p2align 8\n.type {name},@function\n{name}:")
    p("s_cmp_ge_u32 s2, 256\ns_cbranch_scc1 L_end")
    p.cur += stp('start')
    p(f"""
s_load_dwordx8 s[76:83], s[0:1], 0
s_load_dwordx8 s[84:91], s[0:1], 32
v_lshrrev_b32 v1, 6, v0
v_and_b32 v0, 63, v0
v_readfirstlane_b32 s{sWAVE}, v1
""")
    if CODEPF:
        p(f"""
s_getpc_b64 s[98:99]
s_lshr_b32 s{sTMP+1}, s2, 3
s_mul_i32 s{sTMP+1}, s{sTMP+1}, {13*128}
v_mul_u32_u24 v252, 3, v1
v_add_lshl_u32 v252, v252, v0, 7
v_add_u32 v252, s{sTMP+1}, v252
v_mov_b32 v253, s99
v_add_co_u32 v252, vcc, s98, v252
v_addc_co_u32 v253, vcc, 0, v253, vcc
s_mov_b64 exec, 15
global_load_dword v{vDUM}, v[252:253], off
s_mov_b64 exec, -1
""", "dummy")
    tab = sum((((k % PH) * (10 - COMMON) + PH // 2) // PH) << (4 * k) for k in range(11))
    p(f"""
s_and_b32 s{sHG}, s2, 7
s_lshr_b32 s{sB}, s2, 5
s_bfe_u32 s{sHL}, s2, 0x20003
s_mul_i32 s{sM0W}, s{sWAVE}, 3072
s_add_u32 s{sTMP+1}, s{sB}, s{sHL}
s_lshl_b32 s{sTMP+1}, s{sTMP+1}, 2
s_mov_b32 s96, {tab & 0xffffffff}
s_mov_b32 s97, {tab >> 32}
s_lshr_b64 s[96:97], s[96:97], s{sTMP+1}
s_and_b32 s{sTMP+1}, s96, 15
s_lshl_b32 s{sXOFF}, s{sTMP+1}, 7
s_mul_i32 s{sWOFF}, s{sTMP+1}, {64*12288}
""")
    if COMMON: p(f"s_mov_b32 s{sRD}, s{sTMP+1}\ns_mov_b32 s{sXOFF}, {(10-COMMON)*128}\ns_mov_b32 s{sWOFF}, {(10-COMMON)*64*12288}")
    if KSTAG: p(f"s_mul_i32 s{sKK}, s2, 11\ns_add_u32 s{sKK}, s{sKK}, s{sB}\ns_and_b32 s{sKK}, s{sKK}, 31\ns_mul_i32 s{sKK}, s{sKK}, {KG*384}")
    else: p(f"s_mov_b32 s{sKK}, 0")
    p(f"s_mov_b32 s{sKOFF}, s{sKK}")
    setup_first(p)
    if not XFIRST:
        p.cur += stp('s0')
        srd(p, sX, 76, 1536 * 1280); p.cur += stp('s1')
    srd(p, sWq, 82, 640 * 12288)
    pool = Pool(12)
    tail = front(p, pool)
    if not QONLY:
        tail, vm31 = attention(p, pool, tail)
        rest = oproj(p, pool, tail, vm31)
        final_reduce(p, rest)
    store_stamps(p)
    p("L_end:\ns_endpgm")
    for t in OUTL: p.raw(t)
    for tr, ret, cur in TRAMPS: p.raw(f"{tr}:\ns_call_b64 s[98:99], L_rare{cur}\ns_branch {ret}")
    rare_path(p, "L_rare0", 0)
    rare_path(p, "L_rare1", 1)
    p.raw(".fill 64, 4, 0xbf800000" if not QONLY else ".fill 12288, 4, 0xbf800000")
    return kernel_desc(name, vgpr=512, accum=256)

def build(path):
    p = Prog()
    p.raw("""; GQA block (q-projection, attention over the cached K/V, out-projection) for gfx950 in one fused kernel.
; @launch grid=(256,1,1) block=(256,1,1) lds=163840
.amdgcn_target "amdgcn-amd-amdhsa--gfx950"
.text""")
    d = kernel(p)
    p.raw('.section .rodata,"a"\n.p2align 6\n' + d)
    txt = p.text()
    if LLFIX == 1: txt = fix_ll(txt)
    if NODMA:
        txt = "\n".join(l for l in txt.split("\n") if not (l.startswith("buffer_load_dwordx4")))
        txt = txt.replace("s_cbranch_vccnz L_tramp", "s_cbranch_execz L_tramp")
    if ST: txt = txt.replace(".amdgcn_target", "; stamps " + repr(ST) + "\n.amdgcn_target", 1)
    open(path, "w").write(txt)
    if VERB:
        import collections
        print(collections.Counter(w.split(':')[0] for w in WARN))
        if VERB > 1:
            for w in WARN: print("WARN", w)
        ls = txt.split("\n")
        marks = [k for k, l in enumerate(ls) if l.endswith(":") and not l.startswith("L_ret")]
        for a, b in zip(marks, marks[1:] + [len(ls)]):
            seg = [l for l in ls[a:b] if l and not l.startswith(".") and not l.startswith(" ")]
            c, nm = estimate(seg)
            if nm: print(f"{ls[a][:28]:28s} est {c:6d} cyc, mfma {nm:4d} ({16*nm})")

STD = {'start': 0, 'X0': 1, 'u8': 2, 'u16': 3, 'E': 4, 'Qend': 5, 'Lend': 6, 'Aend': 7, 'C0b': 8, 'G6': 9, 'ACK': 10, 'end': 11}
if __name__ == "__main__":
    for a in sys.argv[2:]:
        k, v = a.split("=", 1)
        globals()[k] = eval(v)
    build(sys.argv[1])
```

```python
import sys, math, struct
from sched import *
from asmlib import kernel_desc

NAME = "standalone__gqa_block_cached__near_ridge"
SLOT = 12288
GSZ = 20480
NT = "nt"
CODEPF = True
PH = 3
VMLIM = 2
DMAHI = 22
SNAKE = True
KSTAG = True
NDB = 4
NBM = 3
NST = 4
NEO = 2
SCHED = 10
KVSPAN = 150
PLAN = {27: ['kv', 'r', 'l'], 28: ['kv', 0], 29: [1, 2], 30: [3, 4]}
OCH = [(0,'W6'),(50,'S2'),(62,'F0'),(76,'S3'),(90,'W7'),(114,'P0'),(132,'C0'),(136,'b3'),(160,'F1'),(164,'b4'),(186,'S4'),(194,'S5'),(206,'b5'),(228,'P1'),(230,'W8'),(250,'C1'),
       (254,'b6'),(274,'F2'),(278,'b7'),(298,'W9'),(318,'P2'),(320,'b8'),(340,'C2'),(344,'b9'),(364,'W10'),(384,'b10'),(404,'W11'),(424,'b11')]
LATESET = True
XROT = 7
EARLYQ = None
QUICK = True
EARLY = 0
CDL = 99
BARFIX = True
LLFIX = 0
QBAR = [1, 2, 3, 4, 5, 6, 7, 8, 9, 10, 11, 12, 14, 16]
OBAR = None
KG = 32
TRI = False
ROT = True
LATEHI = 432
COMMON = 0
WHI = 62
LOOPS = [(9, (5,), 62), (27, (5,), 52)]
SPW = 18
OWN = 1
WIN = (5,)
PRE31 = (5,)
SP30 = 9
XPF = 0
XFIRST = True
AMP = None
RAMP = ()
D0 = 3
PWQ = None
VMTAIL = None
LOCAL = True
NLOC = 4
NBA = 2
FAPOS = 80
GS = 5
PART_OFF = 20 << 20
FLAG_OFF = 40 << 20
WS_SIZE = 41 << 20
STAMP_OFF = 64 << 20
ST = {}
NSTAMP = 12
DBGST = None
TRACE = 0
NODMA = 0
QONLY = 0
VERB = 0
OOB = 0x7f000000

def f32(x): return "0x%08x" % struct.unpack("<I", struct.pack("<f", x))[0]
def vr(b, n=4): return f"v[{b}:{b+n-1}]"
def ar(b, n=4): return f"a[{b}:{b+n-1}]"
def sr(b, n=4): return f"s[{b}:{b+n-1}]"
MF = "v_mfma_f32_16x16x32_bf16"
def srd(p, d, lo, nbytes):
    p(f"s_mov_b32 s{d}, s{lo}\ns_and_b32 s{d+1}, s{lo+1}, 0xffff\ns_mov_b32 s{d+2}, {nbytes}\ns_mov_b32 s{d+3}, 0x00020000")

sLTHR = 3
sK, sV, sWq, sX, sWS, sWo, sOUT = 4, 8, 12, 16, 20, 24, 28
sWAVE, sB, sSC, sHG, sHL = 32, 33, 34, 35, 36
sM0W, sKOFF, sWR, sRD, sT, sKK = 37, 38, 39, 40, 41, 42
sWOFF, sXOFF, sWW = 43, 44, 45
sTMP = 46
sSTAMP = 52
sHI = 76
sTK1, sTK2 = 92, 94
sJ = 33
TOKC = (0x9e3779b9, 0x7f4a7c15)
F2BASE = 256 * 256
CST = {'Qend': 80, 'Lend': 82, 'C0b': 88, 'ACK': 100}
def stp(name):
    r = []
    if name in ST: r.append(I(f"s_memrealtime s[{sSTAMP+2*ST[name]}:{sSTAMP+2*ST[name]+1}]"))
    if ST and name in CST: r.append(I(f"s_memtime s[{CST[name]}:{CST[name]+1}]"))
    return r

vKD, vVD, vWD = 2, 5, 8
vXD = 11
vWOD, vPWO = 11, 16
vKL, vVL = 17, 19
vKA, vVA = 23, 25
vXR = 29
vOL, vPT = 30, 31
vT0 = 31
vDUM = 248
vF1, vF2 = 250, 251
vVB = 252
vWOL, vOUT = 252, 254
vACC = 32; vQ = 176
vS = (32, 56); vP = (80, 92); vNM = 104; vE = 120; vCK = 130; vR = 132; vL = (144, 156)
NE = 5
vB = 32; vRC = 136; vTK = 6; vTK2 = 18; vFLV = 28
vWA = (23, 20, 25, 16)
vRCS = (1, 10, 249)
vF2R = 22
vC = 56
aO = 0; aPOOL = 144; aC = 0; aX = 0; NXB = 6; aONE = 240; aPARK = 244
PARK = [vWOD + j for j in range(5)] + [vPWO, vWOL, vWOL + 1, vOL, vPT, vOUT]
def qfrag(qb, s): return vQ + (qb * 6 + s) * 4
def qacc(db, qb): return vACC + (db * 3 + qb) * 4
def oacc(db, qb): return aO + (db * 3 + qb) * 4
def cacc(nb, qb): return vC + (nb * 3 + qb) * 4
def sreg(buf, qb, kb): return vS[buf] + (qb * 2 + kb) * 4
def bfrag(u, qb):
    if u < 6: return vr(vQ + (u * 3 + qb) * 4)
    k = (u - 6) * 3 + qb
    if k < 16: return ar(192 + k * 4)
    k -= 16
    return ar(k * 4) if k < 36 else vr(32 + (k - 36) * 4)

LAYOUT = 2
def xs0(): return 5 if LAYOUT == 0 else 4
def xpair(c): return 5 + 2 * (c % 2) if LAYOUT == 0 else 6 - 2 * (c % 2)
WRING = [9, 10, 11, 1, 12]
def wslot(u):
    if LAYOUT == 0: return WRING[u % 5]
    return [1, 8, 9, 10, 11, 12][u % 6] if u < 14 else u - 8 if u < 16 else u - 7
def kvslot(kind, i): return 2 * (i % 6) if kind == 'K' else 2 * ((i + 1) % 6) + 1
def gic(G): return (0, G) if G < 3 else (1 + (G - 3) % 3, (G - 3) // 3)
def goff(G): return ((G + 4) % 8) * GSZ
TRAMPS = []; OUTL = []

def tile_rows(p, t, j):
    p(f"""
v_add_u32 v{t+2}, {8*j}, v{t}
v_mul_u32_u24 v{t+3}, 11, v{t+2}
v_lshrrev_b32 v{t+3}, 5, v{t+3}
v_mul_u32_u24 v{t+4}, 3, v{t+3}
v_sub_u32 v{t+4}, v{t+2}, v{t+4}
v_add_u32 v{t+3}, s{sTMP}, v{t+3}
v_and_b32 v{t+5}, 6, v{t+3}
v_xor_b32 v{t+5}, v{t+5}, v{t+1}
v_lshlrev_b32 v{t+5}, 4, v{t+5}
""")
def setup_first(p):
    t = 240
    p(f"""
v_lshrrev_b32 v{t}, 3, v0
v_and_b32 v{t+1}, 7, v0
s_lshl_b32 s{sTMP}, s{sWAVE}, 3
s_lshl_b32 s{sTMP+1}, s{sB}, 2
s_add_u32 s{sTMP+1}, s{sTMP+1}, s{sWAVE}
s_mul_i32 s{sTMP+4}, s{sTMP+1}, {48*1280}
s_lshl_b32 s{sTMP+2}, s{sHG}, 2
s_add_u32 s{sTMP+5}, s{sTMP+2}, s{sHL}
s_mul_i32 s{sTMP+2}, s{sTMP+5}, 384
""")
    for half in range(2):
        p(f"""
v_lshrrev_b32 v{t+2}, 1, v{t}
v_add_u32 v{t+2}, {4*half}, v{t+2}
v_xor_b32 v{t+2}, v{t+2}, v{t+1}
v_lshlrev_b32 v{t+2}, 4, v{t+2}
v_add_u32 v{t+3}, {8*half}, v{t}
v_mul_u32_u24 v{t+3}, 1280, v{t+3}
v_add3_u32 v{vXD+half}, v{t+2}, v{t+3}, s{sTMP+4}
v_add_u32 v{vXD+2+half}, {20480-1024}, v{vXD+half}
v_add_u32 v{vXD+4+half}, {2*(20480-1024)}, v{vXD+half}
""")
    if XFIRST:
        p.cur += stp('s0')
        srd(p, sX, 76, 1536 * 1280); p.cur += stp('s1')
        xpf = f"""s_lshl_b32 s96, s2, 2
s_add_u32 s96, s96, s{sWAVE}
s_mul_i32 s96, s96, 1920
v_lshlrev_b32 v{t+2}, 7, v0
s_mov_b64 exec, 0x7fff
buffer_load_dword v{vDUM}, v{t+2}, {sr(sX)}, s96 offen
s_mov_b64 exec, -1"""
        if XPF == 1: p(xpf, "dummy")
        flat(p, issue('X0'))
        if XPF == 2: p(xpf, "dummy")
    for j in range(3):
        tile_rows(p, t, j)
        p(f"""
v_bfe_u32 v{t+6}, v{t+3}, 2, 2
v_lshlrev_b32 v{t+6}, 3, v{t+6}
v_lshrrev_b32 v{t+7}, 4, v{t+3}
v_lshl_add_u32 v{t+6}, v{t+7}, 2, v{t+6}
v_and_b32 v{t+7}, 3, v{t+3}
v_add_u32 v{t+6}, v{t+6}, v{t+7}
v_mul_u32_u24 v{t+6}, 12288, v{t+6}
v_lshl_add_u32 v{t+6}, v{t+4}, 7, v{t+6}
v_add3_u32 v{t+6}, v{t+6}, v{t+5}, s{sTMP+2}
v_subrev_u32 v{vWD+j}, {1024*j}, v{t+6}
""")
def setup_reads(p):
    t = 232
    p(f"""
v_and_b32 v{t}, 15, v0
v_lshrrev_b32 v{t+1}, 4, v0
v_lshrrev_b32 v{t+2}, 1, v{t}
v_xor_b32 v{t+2}, v{t+2}, v{t+1}
v_lshlrev_b32 v{t+5}, 4, v{t+2}
v_and_b32 v{t+3}, 7, v{t}
v_lshl_add_u32 v{t+5}, v{t+3}, 7, v{t+5}
v_lshrrev_b32 v{t+3}, 3, v{t}
v_mul_u32_u24 v{t+3}, 12288, v{t+3}
v_add3_u32 v{t+5}, v{t+5}, v{t+3}, s{sM0W}
v_add_u32 v{vXR}, {xs0()*SLOT}, v{t+5}
v_xor_b32 v{vXR+1}, 64, v{vXR}
v_bfe_u32 v{t+3}, v{t+2}, 1, 1
v_and_b32 v{t+4}, 1, v{t+2}
v_lshl_add_u32 v{t+3}, v{t+4}, 1, v{t+3}
v_and_b32 v{t+4}, 4, v{t+2}
v_or_b32 v{t+3}, v{t+3}, v{t+4}
v_lshlrev_b32 v{t+3}, 4, v{t+3}
v_mul_u32_u24 v{t+4}, 384, v{t}
v_add_u32 v{vKL}, v{t+3}, v{t+4}
v_xor_b32 v{vKL+1}, 64, v{vKL}
v_mov_b32 v{vKA}, v{vKL}
v_mov_b32 v{vKA+1}, v{vKL+1}
v_lshrrev_b32 v{t+2}, 2, v0
v_mul_u32_u24 v{t+3}, 384, v{t+2}
v_bfe_u32 v{t+4}, v{t+2}, 1, 2
v_lshl_add_u32 v{t+3}, v{t+4}, 5, v{t+3}
v_and_b32 v{t+4}, 3, v0
v_lshl_add_u32 v{vVL}, v{t+4}, 3, v{t+3}
v_xor_b32 v{vVL+1}, 32, v{vVL}
v_xor_b32 v{vVL+2}, 64, v{vVL}
v_xor_b32 v{vVL+3}, 96, v{vVL}
""")
def setup_rest(p):
    t = 240
    p(f"""
s_lshl_b32 s{sTMP+1}, s{sB}, 3
s_add_u32 s{sTMP+1}, s{sTMP+1}, s{sHG}
s_lshl_b32 s96, s{sTMP+1}, 2
s_add_u32 s{sTMP+1}, s96, s{sWAVE}
s_lshl_b32 s{sTMP+1}, s{sTMP+1}, 8
s_add_u32 s{sTMP+1}, s{sTMP+1}, {FLAG_OFF}
s_lshl_b32 s{sTMP+2}, s{sB}, 2
s_add_u32 s{sTMP+2}, s{sTMP+2}, s{sHL}
s_lshl_b32 s{sTMP+2}, s{sTMP+2}, 2
s_add_u32 s97, s{sTMP+2}, s{sWAVE}
s_lshl_b32 s{sTMP+2}, s97, 8
s_add_u32 s{sTMP+2}, s{sTMP+2}, {FLAG_OFF + F2BASE}
v_and_b32 v{t+2}, 3, v0
v_lshl_add_u32 v{vF1}, v{t+2}, 3, s{sTMP+1}
v_and_b32 v{t+2}, 15, v0
v_lshl_add_u32 v{vF2}, v{t+2}, 3, s{sTMP+2}
s_add_u32 s{sTMP+1}, s{sTMP+1}, 96
s_add_u32 s{sTMP+2}, s{sTMP+2}, 192
s_mul_i32 s{sJ}, s97, {3 if ROT else 0}
s_add_u32 s{sJ}, s{sJ}, s{sHG}
s_and_b32 s{sJ}, s{sJ}, 7
s_load_dwordx2 s[{sTK1}:{sTK1+1}], s[90:91], s{sTMP+1}
s_load_dwordx2 s[{sTK2}:{sTK2+1}], s[90:91], s{sTMP+2}
s_add_u32 s{sTMP+1}, s96, s{sHL}
s_mul_i32 s{sTMP+1}, s{sTMP+1}, 393216
s_add_u32 s78, s78, s{sTMP+1}
s_addc_u32 s79, s79, 0
s_add_u32 s80, s80, s{sTMP+1}
s_addc_u32 s81, s81, 0
""")
    LG = KG.bit_length() - 1
    srd(p, sK, 78, 393216); srd(p, sV, 80, 393216)
    srd(p, sWS, 90, WS_SIZE); srd(p, sWo, 84, 6144 * 1280); srd(p, sOUT, 86, 1536 * 1280)
    for j in range(3):
        tile_rows(p, t, j)
        p(f"""
v_lshrrev_b32 v{t+7}, {LG}, v{t+3}
v_lshlrev_b32 v{t+7}, {LG+5}, v{t+7}
v_and_b32 v{t+6}, {KG-1}, v{t+3}
v_add_u32 v{t+7}, v{t+7}, v{t+6}
v_mul_u32_u24 v{t+7}, 384, v{t+7}
v_lshl_add_u32 v{t+7}, v{t+4}, 7, v{t+7}
v_subrev_u32 v{t+7}, {1024*j}, v{t+7}
v_add_u32 v{vVD+j}, v{t+7}, v{t+5}
v_bfe_u32 v{t+5}, v{t+3}, 2, 1
v_and_b32 v{t+6}, 2, v{t+3}
v_or_b32 v{t+5}, v{t+5}, v{t+6}
v_lshrrev_b32 v{t+6}, 1, v{t+3}
v_and_b32 v{t+6}, 4, v{t+6}
v_or_b32 v{t+5}, v{t+5}, v{t+6}
v_xor_b32 v{t+5}, v{t+5}, v{t+1}
v_lshl_add_u32 v{vKD+j}, v{t+5}, 4, v{t+7}
""")
    t = 232
    park = lambda r, v: p(f"v_accvgpr_write_b32 a{aPARK + PARK.index(r)}, v{v}")
    u = 224
    p(f"""
s_mul_i32 s{sTMP+1}, s{sHG}, {768*1280}
s_mul_i32 s{sTMP+2}, s{sHL}, 320
s_mul_i32 s{sTMP+3}, s{sWAVE}, {16*1280}
s_add_u32 s{sTMP+3}, s{sTMP+3}, s{sTMP+1}
s_add_u32 s{sTMP+3}, s{sTMP+3}, s{sTMP+2}
""")
    for j in range(5):
        p(f"""
v_add_u32 v{u}, {64*j}, v0
v_mul_u32_u24 v{u+1}, 205, v{u}
v_lshrrev_b32 v{u+1}, 12, v{u+1}
v_mul_u32_u24 v{u+2}, 20, v{u+1}
v_sub_u32 v{u+2}, v{u}, v{u+2}
v_lshrrev_b32 v{u+3}, 1, v{u+1}
v_and_b32 v{u+3}, 2, v{u+3}
v_xor_b32 v{u+2}, v{u+2}, v{u+3}
v_mul_u32_u24 v{u+1}, 1280, v{u+1}
v_lshl_add_u32 v{u+1}, v{u+2}, 4, v{u+1}
v_add_u32 v{u+1}, s{sTMP+3}, v{u+1}
v_subrev_u32 v{u+1}, {1024*(j%4)}, v{u+1}
""")
        park(vWOD + j, u + 1)
    p(f"""
s_lshr_b32 s{sTMP+3}, s2, 3
s_lshl_b32 s{sTMP+3}, s{sTMP+3}, 2
s_add_u32 s{sTMP+3}, s{sTMP+3}, s{sWAVE}
s_mul_i32 s{sTMP+3}, s{sTMP+3}, {60*128}
s_add_u32 s{sTMP+3}, s{sTMP+3}, s{sTMP+1}
v_lshlrev_b32 v{u}, 7, v0
v_add_u32 v{u}, s{sTMP+3}, v{u}
v_cmp_gt_u32 vcc, 60, v0
v_mov_b32 v{u+1}, {OOB}
v_cndmask_b32 v{u}, v{u+1}, v{u}, vcc
""")
    park(vPWO, u)
    p(f"""
v_mul_u32_u24 v{u}, 320, v{t+2}
v_lshl_add_u32 v{u}, v{t+4}, 3, v{u}
v_and_b32 v{u+1}, 16, v0
v_lshlrev_b32 v{u+1}, 1, v{u+1}
v_add_u32 v{u+2}, v{u}, v{u+1}
v_sub_u32 v{u+3}, v{u}, v{u+1}
""")
    park(vWOL, u + 2); park(vWOL + 1, u + 3)
    p(f"""
s_mul_i32 s96, s96, 73728
s_add_u32 s96, s96, s{sM0W}
s_mul_i32 s97, s97, {8*15360}
s_add_u32 s97, s97, {PART_OFF}
v_lshlrev_b32 v{u}, 4, v0
v_add_u32 v{u+2}, s96, v{u}
v_add_u32 v{u+3}, s97, v{u}
""")
    park(vOL, u + 2); park(vPT, u + 3)
    p(f"""
s_add_u32 s{sTMP+2}, s{sTMP+2}, s{sTMP+4}
v_mul_u32_u24 v{u}, 1280, v{t}
v_add3_u32 v{u}, v{u}, v{u+1}, s{sTMP+2}
v_lshrrev_b32 v{u+2}, 5, v0
v_lshl_add_u32 v{u}, v{u+2}, 4, v{u}
""")
    park(vOUT, u)
    p(f"v_mov_b32 v{u}, 0x3f803f80\nv_cmp_eq_u32 vcc, 0, v{t+4}\nv_cndmask_b32 v{u}, 0, v{u}, vcc")
    for r in range(4): p(f"v_accvgpr_write_b32 a{aONE+r}, v{u}")
    for i in range(4):
        p(f"s_add_u32 s{sHI+i}, s{sHL}, {i}\ns_and_b32 s{sHI+i}, s{sHI+i}, 3\ns_mul_i32 s{sHI+i}, s{sHI+i}, 3")
    SC = math.log2(math.e) / math.sqrt(192.0)
    p(f"""
s_mul_i32 s{sWW}, s{sWAVE}, 5120
s_mov_b32 s{sLTHR}, {f32(LTHR)}
s_mov_b32 s{sSC}, {f32(SC)}
s_add_u32 s{sWR}, s{sM0W}, {2*(D0+1)*SLOT}
s_mov_b32 s{sRD}, 0
s_mov_b32 s{sT}, 1
""")

def S(t, **k): return Item('S', t, **k)
def V(t, **k): return Item('V', t, **k)
def wrap0(s, inc, lim, zero="0"):
    return [S(f"s_add_u32 s{s}, s{s}, {inc}"), S(f"s_cmp_ge_u32 s{s}, {lim}\ns_cselect_b32 s{s}, {zero}, s{s}")]
def dma_tile(kind, pre, so, tag=None, post=()):
    vd, srn, pol = {'K': (vKD, sK, NT), 'V': (vVD, sV, NT), 'W': (vWD, sWq, "")}[kind]
    g = [S(x) for x in pre]
    for j in range(3):
        g.append(Item('M', f"buffer_load_dwordx4 v{vd+j}, {sr(srn)}, {so} offen offset:{1024*j} {pol} lds", tag=tag))
    return g + list(post)
def dma_kv_static(kind, i):
    so = sKK if kind == 'K' else sKOFF
    return dma_tile(kind, [f"s_add_u32 m0, s{sM0W}, {kvslot(kind,i)*SLOT}"], f"s{so}", f"{kind}{i}", wrap0(so, KG * 384, 32 * KG * 384))
def dma_w(u):
    return dma_tile('W', [f"s_add_u32 m0, s{sM0W}, {wslot(u)*SLOT}"], f"s{sWOFF}", f"W{u}",
                    wrap0(sWOFF, 32 * 12288, 640 * 12288) if not COMMON else
                    [S(f"s_add_u32 s{sWOFF}, s{sWOFF}, {32*12288}")] if u < 2 * COMMON - 1 else
                    [S(f"s_mul_i32 s{sWOFF}, s{sRD}, {64*12288}")] if u == 2 * COMMON - 1 else wrap0(sWOFF, 32 * 12288, (10 - COMMON) * 64 * 12288))
def dma_x(c):
    g = []
    for half in range(2):
        g.append(S(f"s_add_u32 m0, s{sM0W}, {(xpair(c)+half)*SLOT}"))
        for qb in range(3):
            g.append(Item('M', f"buffer_load_dwordx4 v{vXD+2*qb+half}, {sr(sX)}, s{sXOFF} offen offset:{1024*qb} lds", tag=f"X{c}"))
    if COMMON and c < COMMON - 1: return g + [S(f"s_add_u32 s{sXOFF}, s{sXOFF}, 128")]
    if COMMON and c == COMMON - 1: return g + [S(f"s_lshl_b32 s{sXOFF}, s{sRD}, 7")]
    return g + wrap0(sXOFF, 128, (10 - COMMON) * 128)
def spread_kv(its, lo, hi):
    ms = [x for x in its if x.kind == 'M']
    chain(its, lo, hi)
    for k, x in enumerate(ms):
        x.target = lo + 1 + (hi - lo) * k // 5
        w = WIN[k % len(WIN)] - 1
        x.ins = [I(f"s_waitcnt vmcnt({w})")] + x.ins; x.needA = True
    t = lo
    for x in reversed(its):
        if x.kind == 'M': t = x.target
        elif any(its.index(y) > its.index(x) for y in ms): x.target = max(lo, t - 3)
        else: x.target = hi + 1
    return its
def kv_issue(nok=False):
    dk = dma_tile('K', [f"s_mov_b32 m0, s{sWR}"], f"s{sKK}") if not nok else []
    dv = dma_tile('V', [f"s_add_u32 m0, s{sWR}, {SLOT}"], f"s{sKOFF}")
    if nok: return dv
    return dk + dv + [S(f"s_mov_b32 s{sKOFF}, s{sKK}")] + wrap0(sKK, KG * 384, 32 * KG * 384) + wrap0(sWR, 2 * SLOT, 12 * SLOT, f"s{sM0W}")
def dma_wo(G):
    sl = goff(G); i, c = gic(G)
    g = [S(f"s_add_u32 s{sWOFF}, s{sHI+i}, {c}"), S(f"s_mul_i32 s{sWOFF}, s{sWOFF}, {64*1280}")]
    for j in range(5):
        if j == 0: g.append(S(f"s_add_u32 m0, s{sWW}, {sl}"))
        if j == 4: g.append(S(f"s_add_u32 m0, s{sWW}, {sl+4096}"))
        g.append(Item('M', f"buffer_load_dwordx4 v{vWOD+j}, {sr(sWo)}, s{sWOFF} offen offset:{1024*(j%4)} lds", tag=f"G{G}"))
    return g
def xfrag(c, ks, qb): return aX + (c % NXB) * 24 + (ks * 3 + qb) * 4
def read_x(c):
    off = (xpair(c) - xs0()) * SLOT
    return [Item('L', f"ds_read_b128 {ar(xfrag(c,ks,qb))}, v{vXR+ks} offset:{off + qb*1024}") for ks in range(2) for qb in range(3)]
def flat(p, items):
    for it in items: p.cur += it.ins
def snake(mf, k): return mf[::-1] if (SNAKE and k & 1) else mf
class Pool:
    def __init__(self, size): self.n = 0; self.size = size
    def next(self):
        r = aPOOL + 4 * (self.n % self.size); self.n += 1; return r
def vunit_reads(buf, db, imm, va):
    return [f"ds_read_b64_tr_b16 {ar(buf,2)}, v{va+(db&3)} offset:{imm + (db>>2)*128}",
            f"ds_read_b64_tr_b16 {ar(buf+2,2)}, v{va+(db&3)} offset:{imm + (db>>2)*128 + 6144}"]

T = 4
RGAP = 6
class Stream:
    def __init__(self, tail=()):
        self.mf = []; self.items = []; self.resA = set()
        for u in tail: self.add_unit(u)
    def n(self): return len(self.mf)
    def add_unit(self, u):
        u['first'] = len(self.mf)
        if u.get('reads'): self.resA.add(len(self.mf) - 1)
        for k, m in enumerate(u['mf']): self.mf.append((u.get('head', []) if k == 0 else [], m))
    def reads(self, units, lo, hi, after=()):
        its = []
        tot = sum(len(u['reads']) for u in units); k = 0
        for u in units:
            g = lo + (hi - lo + 1) * k // tot
            for r in u['reads']:
                it = Item('L', r, lo=lo, hi=max(lo, min(hi, u['first'] - 5)), target=g, after=list(after) + ([(its[-1], 0)] if its else []))
                it.use = u['first']
                its.append(it); k += 1
        self.items += its
        return its
    def barrier(self, g, wait, after=()):
        w = Item('S', [x if isinstance(x, I) else I(x) for x in wait], lo=g, hi=g + 2, target=g, after=after)
        b = Item('S', "s_barrier", lo=g + 1, hi=g + 3, after=[(w, 1)])
        b.bar = BARFIX
        self.items += [w, b]
        return b
    def add(self, its): self.items += its; return its
    def emit(self, keep=0, name=""):
        mf = self.mf[:len(self.mf) - keep] if keep else self.mf
        out = pack(mf, self.items, self.resA, name)
        for it in self.items:
            if hasattr(it, 'use'):
                d = set(it.ins[0].dst)
                assert it.gap < it.use, (name, it.ins[0].text)
                for g in range(it.gap + 1, it.use):
                    assert not (d & set(self.mf[g][1].src)), ("pool WAR", name, it.ins[0].text, it.gap, g)
        return out

def qk_unit(pool, buf, kb, ds, c0, imm, k):
    pb = pool.next()
    mf = []
    for qb in range(3):
        d = sreg(buf, qb, kb)
        c = vr(d) if ds else (0 if c0 else vr(vNM + 4 * qb))
        mf.append(I(f"{MF} {vr(d)}, {ar(pb)}, {vr(qfrag(qb,ds))}, {c}"))
    return dict(reads=[f"ds_read_b128 {ar(pb)}, v{vKA+(ds&1)} offset:{imm + kb*6144 + (ds>>1)*128}"], mf=snake(mf, k))
def qk_units(pool, buf, imm, zero=()):
    return [qk_unit(pool, buf, kb, ds, kb in zero, imm, ds) for kb in range(2) for ds in range(6)]
def rs_unit(buf, zero=False):
    return dict(reads=None, mf=[I(f"{MF} {vr(vL[buf]+4*qb)}, {ar(aONE)}, {vr(vP[buf]+4*qb)}, {0 if zero else vr(vL[buf^1]+4*qb)}") for qb in range(3)])
def pv_units(pool, buf, imm, zero=False):
    units = []
    for db in range(12):
        pb = pool.next()
        z = zero and db < 12 - T
        mf = [I(f"{MF} {ar(oacc(db,qb))}, {ar(pb)}, {vr(vP[buf]+4*qb)}, {0 if z else ar(oacc(db,qb))}") for qb in range(3)]
        units.append(dict(reads=vunit_reads(pb, db, SLOT + imm, vVA), mf=snake(mf, db)))
    return units
PAIRS = [(qb, kb, h) for kb in range(2) for qb in range(3) for h in range(2)]
def softmax_items(buf, n0, n1, lo, hi, pre=None):
    ex = []; cv = []; ex0 = []
    for n in range(n0, n1):
        qb, kb, h = PAIRS[n]
        s = sreg(buf, qb, kb) + 2 * h
        e = vE + 2 * (n % NE)
        a = Item('E', f"v_exp_f32 v{e}, v{s}"); b = Item('E', f"v_exp_f32 v{e+1}, v{s+1}")
        if len(cv) >= NE: a.after.append((cv[-NE], 1))
        if pre:
            for k, x in enumerate((a, b)):
                sub = V(f"v_add_f32 v{s+k}, v{s+k}, v{vNM+4*qb}", lo=lo, hi=hi, after=[(pre, 1)])
                x.after.append((sub, 1)); ex0.append((sub, x))
        ex += [a, b]
        cv.append(V(f"v_cvt_pk_bf16_f32 v{vP[buf]+4*qb+2*kb+h}, v{e}, v{e+1}", lo=lo, hi=hi, after=[(b, 1)]))
    chain(ex, lo, hi - 1)
    for e in ex: e.hi = hi
    for k, c in enumerate(cv): c.target = ex[2 * k + 1].target + 1
    for sub, x in ex0: sub.target = max(lo, x.target - 2)
    return [s for s, _ in ex0] + ex + cv
SPLIT = 6
LTHR = 2.0 ** 40
def rowmax_text(buf, qb, d, t):
    s0, s1 = sreg(buf, qb, 0), sreg(buf, qb, 1)
    return [f"v_max3_f32 v{d}, v{s0}, v{s0+1}, v{s0+2}", f"v_max3_f32 v{t}, v{s1}, v{s1+1}, v{s1+2}",
            f"v_max3_f32 v{d}, v{d}, v{s0+3}, v{s1+3}", f"v_max_f32 v{d}, v{d}, v{t}",
            f"v_mov_b32 v{t}, v{d}", f"v_permlane32_swap_b32 v{d}, v{t}", f"v_max_f32 v{d}, v{d}, v{t}",
            f"v_mov_b32 v{t}, v{d}", f"v_permlane16_swap_b32 v{d}, v{t}", f"v_max_f32 v{d}, v{d}, v{t}"]
def rare_path(p, label, buf):
    p.reset_state()
    p(f"{label}:\ns_nop 15")
    for qb in range(3):
        d = vR + qb
        p("\n".join(rowmax_text(buf, qb, d, vR + 8)))
        p(f"v_max_f32 v{d}, 0, v{d}")
        for r in range(4): p(f"v_sub_f32 v{vNM+4*qb+r}, v{vNM+4*qb+r}, v{d}")
        for bb in (buf, buf ^ 1):
            for r in range(8): p(f"v_sub_f32 v{sreg(bb,qb,0)+r}, v{sreg(bb,qb,0)+r}, v{d}")
        p(f"v_exp_f32_e64 v{vR+4+qb}, -v{d}")
    for qb in range(3):
        for r in range(4): p(f"v_mul_f32 v{vL[buf^1]+4*qb+r}, v{vL[buf^1]+4*qb+r}, v{vR+4+qb}")
        for r in [oacc(db, qb) + r for db in range(12) for r in range(4)]:
            p(f"v_accvgpr_read_b32 v{vR+9}, a{r}\nv_mul_f32 v{vR+9}, v{vR+9}, v{vR+4+qb}\nv_accvgpr_write_b32 a{r}, v{vR+9}")
    for (qb, kb, h) in PAIRS:
        s = sreg(buf, qb, kb) + 2 * h
        p(f"v_exp_f32 v{vE}, v{s}\nv_exp_f32 v{vE+1}, v{s+1}\nv_cvt_pk_bf16_f32 v{vP[buf]+4*qb+2*kb+h}, v{vE}, v{vE+1}")
    p.cur += rs_unit(buf)['mf']
    p(f"s_nop 15\ns_setpc_b64 s[98:99]")
    p.flush()

KVPRE = ['K0', 'K1', 'V0', 'K2', 'V1', 'K3', 'V2', 'K4', 'V3']
def get_sched():
    PRO = ['X0', 'W0', 'W1', 'W2']; PRO2 = ['X1']
    QS = {0: (['W3'], None, []), 1: (['W4', 'W5'], 1, ['X2']), 2: (['W6'], None, ['X3']), 3: (['W7'], 2, ['X4']), 4: (['W8'], 3, ['X5']),
          5: (['W9', 'K0', 'K1'], None, []), 6: (['W10'], 4, ['X6']), 7: (['W11'], 5, ['X7']), 8: (['W12', 'V0', 'K2'], None, []),
          9: (['W13'], 6, ['X8']), 10: (['W14'], 7, ['X9']), 11: (['W15'], None, []), 12: (['W16'], 8, []), 13: (['W17'], 9, []),
          14: (['W18'], None, []), 15: (['W19'], None, []), 16: (['V1', 'K3', 'V2', 'K4', 'V3'], None, [])}
    if SCHED == 1:
        QS[5] = (['W9'], None, []); QS[8] = (['W12', 'K0', 'K1'], None, []); QS[11] = (['W15', 'V0', 'K2'], None, [])
    if SCHED == 2:
        QS[5] = (['W9'], None, []); QS[8] = (['W12'], None, []); QS[11] = (['W15', 'K0', 'K1'], None, [])
        QS[15] = (['W19', 'V0', 'K2'], None, [])
    if SCHED == 3:
        QS[13] = (['W17'], 9, ['V1', 'K3']); QS[16] = (['V2', 'K4', 'V3'], None, [])
    if SCHED in (4, 5, 6):
        PRO = ['X0', 'W0', 'W1']; PRO2 = ['X1']
        if SCHED == 4:
            QS.update({0: (['W2', 'W3'], None, []), 1: (['X2'], 1, ['W4']), 2: (['W5', 'X3'], None, ['W6']), 3: (['W7'], 2, ['X4']), 4: (['W8'], None, []),
                       5: (['W9'], 3, ['X5']), 6: (['W10'], 4, ['X6']), 7: (['W11'], 5, ['X7']), 8: (['W12'], None, [])})
        if SCHED == 5:
            PRO2 = []
            QS.update({0: (['X1', 'W2'], None, ['W3']), 1: (['X2'], 1, ['W4']), 2: (['W5', 'X3'], None, ['W6']), 3: (['W7'], 2, ['X4']), 4: (['W8'], None, []),
                       5: (['W9'], 3, ['X5']), 6: (['W10'], 4, ['X6']), 7: (['W11'], 5, ['X7']), 8: (['W12'], None, [])})
        if SCHED == 6:
            PRO2 = ['X1', 'W2']
            QS.update({0: (['W3', 'X2'], None, ['W4']), 1: (['W5'], 1, ['X3']), 2: (['W6'], None, []), 3: (['W7'], 2, ['X4']), 4: (['W8'], 3, ['X5']),
                       5: (['W9'], None, []), 6: (['W10'], 4, ['X6']), 7: (['W11'], 5, ['X7']), 8: (['W12'], None, [])})
    if SCHED == 7:
        QS.update({5: (['W9'], 4, ['X6']), 6: (['W10'], 5, ['X7']), 7: (['W11'], 6, ['X8']), 8: (['W12'], 7, ['X9']), 9: (['W13'], 8, []), 10: (['W14'], 9, []),
                   11: (['W15'], None, []), 12: (['W16'], None, []), 13: (['W17'], None, [])})
    if SCHED == 8:
        QS.update({5: (['W9'], None, []), 6: (['W10'], 4, ['X6']), 7: (['W11'], 5, ['X7']), 8: (['W12'], 6, ['X8']), 9: (['W13'], 7, ['X9']), 10: (['W14'], None, []),
                   11: (['W15'], 8, []), 12: (['W16'], 9, []), 13: (['W17'], None, [])})
    if SCHED == 9:
        QS.update({4: (['W8'], None, []), 5: (['W9'], 3, ['X5']), 6: (['W10'], None, []), 7: (['W11'], 4, ['X6']), 8: (['W12'], None, []), 9: (['W13'], 5, ['X7']), 10: (['W14'], None, []),
                   11: (['W15'], 6, ['X8']), 12: (['W16'], 7, ['X9']), 13: (['W17'], None, []), 14: (['W18'], 8, []), 15: (['W19'], 9, [])})
    if SCHED == 10:
        assert LAYOUT == 2 and D0 <= 3
        QS.update({5: (['W9'], 4, ['X6']), 6: (['W10'], 5, ['X7']), 7: (['W11'], 6, ['X8']), 8: (['W12'], 7, ['X9']), 9: (['W13'], 8, ['W14', 'W15']), 10: (['W16'], 9, ['W17']),
                   11: (['W18'], None, []), 12: (['W19'], None, []), 13: ([], None, []), 14: ([], None, []), 15: ([], None, [])})
    if SCHED == 11:
        assert LAYOUT == 2 and D0 <= 3
        QS.update({5: (['W9', 'W10'], None, []), 6: (['W11'], 4, ['X6']), 7: (['W12'], 5, ['X7']), 8: (['W13'], 6, ['X8']), 9: ([], 7, ['X9']), 10: ([], 8, ['W14', 'W15']),
                   11: (['W16'], 9, ['W17']), 12: (['W18', 'W19'], None, []), 13: ([], None, []), 14: ([], None, []), 15: ([], None, [])})
    if EARLYQ:
        PRO, PRO2 = EARLYQ[0], EARLYQ[1]; QS.update(EARLYQ[2])
    keep = KVPRE[:1 + 2 * D0]
    for u in QS: QS[u] = tuple([n for n in part if n[0] not in 'KV' or n in keep] if isinstance(part, list) else part for part in QS[u])
    if QKV:
        for u in QS: QS[u] = tuple([n for n in part if n[0] not in 'KV'] if isinstance(part, list) else part for part in QS[u])
        for u, l in QKV.items(): QS[u] = (QS[u][0] + l,) + QS[u][1:]
    return PRO, PRO2, QS
QKV = {11: ['K0'], 12: ['K1'], 14: ['V0'], 15: ['K2'], 16: ['V1', 'K3', 'V2', 'P0']}
def pf_wo(v): return [Item('M', f"buffer_load_dword v{vDUM}, v{v}, {sr(sWo)}, 0 offen", tag="dummy")]
def issue(name):
    if name == 'P0': return [V(f"v_accvgpr_read_b32 v1, a{aPARK + PARK.index(vPWO)}")] + pf_wo(1)
    k, i = name[0], int(name[1:])
    return dma_x(i) if k == 'X' else dma_w(i) if k == 'W' else dma_kv_static(k, i)
def check_sched(PRO, PRO2, QS):
    occ = {}; xread = {0: -1}; qbar = set(QBAR or range(1, 17)); when = {}
    for u, (e, xr, l) in QS.items():
        if xr is not None: xread[xr] = u
    def put(n, u, late):
        k, i = n[0], int(n[1:])
        if k == 'P': return
        for s in ([xpair(i), xpair(i) + 1] if k == 'X' else [wslot(i)] if k == 'W' else [kvslot(k, i)]):
            o = occ.get(s)
            if o:
                k2, i2 = o[0], int(o[1:])
                lb = max([b for b in qbar if b <= u] + [0])
                if k2 == 'W': assert i2 <= lb - 1, (n, u, o)
                elif k2 == 'X': assert xread[i2] < lb or (xread[i2] == u and late), (n, u, o)
                else: assert False, (n, u, o)
            occ[s] = n
    seq = []
    for n in PRO: put(n, -2, False); seq.append(n)
    for n in PRO2: put(n, -1.5, True); seq.append(n)
    for u in sorted(QS):
        e, xr, l = QS[u]
        for n in e: put(n, u, False); seq.append(n); when[n] = u
        for n in l: put(n, u, True); seq.append(n); when[n] = u
        if xr is not None: assert min(xr * 2, 20 - NDB) > u and (xr - NXB) * 2 + 1 < u, (xr, u)
    for i in range(1, 20): assert when.get(f'W{i}', -1) < max(b for b in qbar if b <= min(i, 16)), i
    assert when['K0'] < max(qbar)
    assert [n for n in seq if n[0] == 'W'] == [f"W{i}" for i in range(20)]
    assert [n for n in seq if n[0] == 'X'] == [f"X{i}" for i in range(10)]
    assert [n for n in seq if n[0] in 'KV'] == KVPRE[:1 + 2 * D0] and 'K0' not in QS[16][0]

def front(p, pool):
    assert NDB == 4
    PRO, PRO2, QS = get_sched()
    check_sched(PRO, PRO2, QS)
    q = Prog(); setup_rest(q)
    ntok = max(k for k, x in enumerate(q.cur) if x.kind == 'smem') + 1
    for n in PRO[1:]: flat(p, issue(n))
    p.cur += q.cur[:ntok]
    p.cur += stp('s2')
    setup_reads(p)
    for uu in range(4): p(f"v_add_u32 v{vVA+uu}, {wslot(0)*SLOT}, v{vVL+uu}")
    late = []
    for x in q.cur[ntok:]:
        if x.op in ('s_addc_u32', 'v_cndmask_b32'): late[-1].ins.append(x)
        else: late.append(Item('V' if x.kind == 'valu' else 'S', [x]))
    if not LATESET: flat(p, late); late = []
    p("WAITVM X0"); p.cur += stp('X0')
    flat(p, read_x(0))
    for n in PRO2: flat(p, issue(n))
    p(f"""
s_add_u32 s{sTK1}, s{sTK1}, {TOKC[0]}
s_addc_u32 s{sTK1+1}, s{sTK1+1}, {TOKC[1]}
s_add_u32 s{sTK2}, s{sTK2}, {TOKC[0]}
s_addc_u32 s{sTK2+1}, s{sTK2+1}, {TOKC[1]}
""")
    p("WAITVM W0\ns_waitcnt lgkmcnt(0)\ns_barrier"); p.cur += stp('u0')
    st = Stream()
    if late:
        chain(late, 0, LATEHI)
        for x in late: x.dense = True; x.target = 0
        st.add(late)
        kvset = [x for x in late if set(x.ins[0].dst) & {('v', vKD + 2)}][0]
    NU = 20 - NDB
    def wunit(u, db, va, imm, k):
        buf = pool.next()
        mf = [I(f"{MF} {vr(qacc(db,qb))}, {ar(buf)}, {ar(xfrag(u>>1,u&1,qb))}, {vr(qacc(db,qb)) if u else 0}") for qb in range(3)]
        return dict(reads=vunit_reads(buf, db, imm, va), mf=snake(mf, k))
    tiles = [[wunit(u, db, vVA if u % 2 == 0 else vVB, 0, db) for db in range(12)] for u in range(NU)]
    sa = {16: (vVA, 0), 17: (vVA, SLOT), 19: (vVA, 2 * SLOT), 18: (vVB, 0)} if LAYOUT == 0 else {u: (vVA, (u - 16) * SLOT) for u in range(16, 20)}
    sup = [wunit(u, db, sa[u][0], sa[u][1], k) for db in range(12) for k, u in enumerate((16, 17, 19, 18))]
    tiles.append(sup)
    qk0 = [qk_unit(pool, 0, kb, ds, True, 0, kb) for ds in range(6) for kb in range(2)]
    qk1 = qk_units(pool, 1, 2 * SLOT, zero=(0,))
    rs = rs_unit(0, zero=True)
    pv = pv_units(pool, 0, 2 * SLOT, zero=True)
    for tl in tiles + [qk0, qk1, [rs], pv]:
        for un in tl: st.add_unit(un)
    n = st.n() - 3 * T
    prevdma = None
    qbar = set(QBAR or range(1, NU + 1))
    assert 1 in qbar
    for u in range(NU + 1):
        g0 = 36 * u - 3 * T
        span = 36 if u < NU else 36 * NDB
        if u == 0:
            for un in tiles[0][:T]:
                for r in un['reads']: p(r)
            rd = st.reads(tiles[0][T:], 0, g0 + 36 - RGAP)
            bar = None; glo = 0
        else:
            if u in qbar:
                cover = min([b for b in qbar if b > u] + [20]) - 1
                bar = st.barrier(g0, [f"WAITVM W{cover}"] + (["WAITVM K0"] if u == max(qbar) else []) + ["s_waitcnt lgkmcnt(0)"] + stp(f"u{u}"))
                aft = [(bar, 0)]
            else:
                bar = None; aft = [(rd[-1], 0)]
                if stp(f"u{u}"): st.add([Item('S', stp(f"u{u}"), lo=g0, hi=g0 + 3)])
            if u == NU and LAYOUT == 0:
                vb = chain([V(f"v_add_u32 v{vVB+uu}, {wslot(18)*SLOT}, v{vVL+uu}") for uu in range(4)], g0 - 4, g0 + 1)
                vb[0].after.append((rd[-1], 1)); st.add(vb)
                for x in vb: x.hi = g0 + 4
            rd = st.reads(tiles[u], g0 + 1, g0 + span - (RGAP if (u + 1) in qbar and u < NU else 0), aft)
            if u == NU and LAYOUT == 0:
                for x in rd[6:8]: x.after.append((vb[-1], 1))
            glo = g0 + 2
        if u < NU:
            va = vVA if (u + 1) % 2 == 0 else vVB
            st.add(chain([V(f"v_add_u32 v{va+uu}, {wslot(u+1)*SLOT}, v{vVL+uu}") for uu in range(4)], glo + 6, g0 + 30))
        e, xr, l = QS[u]
        f1 = [g for nm in e for g in issue(nm)]
        nx = [g for nm in l for g in issue(nm)]
        seq = []
        if f1:
            chain(f1, glo, glo + (12 if u < NU else KVSPAN))
            if bar: f1[0].after.append((bar, 1))
            if late and 'K0' in e: f1[0].after.append((kvset, 1))
            if late and 'P0' in e: f1[0].after.append((late[-1], 1))
            seq += f1
        if xr is not None:
            rx = [S(f"WAITVM X{xr}")] + read_x(xr)
            chain(rx, g0 + 14, g0 + 22)
            seq += rx
            if nx: nx = [V(f"v_accvgpr_read_b32 v{vT0}, a{xfrag(xr,1,2)}", after=[(rx[-1], 4)])] + nx
        if nx:
            chain(nx, g0 + 24, g0 + 35); seq += nx
        for k in range(len(seq)):
            pvs = seq[k - 1] if k else prevdma
            if pvs is not None and not any(a is pvs for a, _ in seq[k].after): seq[k].after.append((pvs, 1))
            seq[k].hi = g0 + span + 14 if seq[k].kind != 'L' else g0 + 30
        if seq: prevdma = seq[-1]
        st.add(seq)
    wlast = rd[-1]
    assert oacc(12 - T, 0) == xfrag(4, 0, 0)
    st.add(chain([V(f"v_accvgpr_write_b32 a{oacc(12-T,0)+r}, 0") for r in range(12 * T)], 36 * 12 + 4, 36 * 16 - 20))
    cprev = None
    for s in range(6):
        its = []
        for qb in range(3):
            a, b, q = qacc(2 * s, qb), qacc(2 * s + 1, qb), qfrag(qb, s)
            its += [V(f"v_mul_f32 v{r}, s{sSC}, v{r}") for r in list(range(a, a + 4)) + list(range(b, b + 4))]
            its += [V(f"v_cvt_pk_bf16_f32 v{q+k}, v{r}, v{r+1}") for k, r in enumerate((a, a + 2, b, b + 2))]
        for qb in range(3):
            q = qfrag(qb, s)
            its += [V(f"v_permlane16_swap_b32 v{q}, v{q+2}"), V(f"v_permlane16_swap_b32 v{q+1}, v{q+3}")]
        lo = sup[8 * s + 7]['first'] + 5
        dl = qk0[2 * s]['first'] - 2 if s else qk0[0]['first'] - 2
        chain(its, lo, min(lo + 26, dl), 0)
        for x in its: x.hi = dl; x.dense = True; x.target = lo
        if cprev: its[0].after.append((cprev, 0))
        cprev = its[-1]; st.add(its)
    q0 = qk0[0]['first']
    kr0 = st.reads(qk0, q0 - 11, q0 + 14, [(wlast, 0)])
    gx = q0 + 20
    barx = st.barrier(gx, ["WAITVM V0", "s_waitcnt lgkmcnt(0)"] + stp('Qend'), after=[(kr0[-1], 1), (prevdma, 1)])
    kr1 = st.reads(qk1, gx + 1, qk1[0]['first'] + 18, [(barx, 0)])
    va = chain([V(f"v_mov_b32 v{vVA+u}, v{vVL+u}") for u in range(4)], q0, q0 + 20); va[0].after.append((wlast, 1)); st.add(va)
    for x in va: x.hi = qk1[6]['first']
    st.reads(pv, kr1[-1].target + 2, n - 12, [(kr1[-1], 0), (va[-1], 1)])
    dm = chain(kv_issue(), qk0[10]['first'], qk0[10]['first'] + 14); dm[0].after.append((barx, 1)); st.add(dm)
    for x in dm: x.hi = n - 8
    lo = qk1[0]['first'] + 3; dl = qk1[6]['first'] - 2
    cols = [[V(t) for t in rowmax_text(0, qb, vR + qb, vR + 4 + qb)] for qb in range(3)]
    rm = [cols[qb][k] for k in range(10) for qb in range(3)]
    rm += [V(f"v_sub_f32 v{vNM+4*qb+r}, 0, v{vR+qb}") for r in range(4) for qb in range(3)]
    chain(rm, lo, dl, 0); st.add(rm)
    for x in rm: x.dense = True; x.target = lo
    st.add(softmax_items(0, 0, 12, lo + 10, rs['first'] - 2, pre=rm[32]))
    st.add(softmax_items(1, 0, SPLIT, pv[0]['first'] + 1, n - 1, pre=rm[-1]))
    up = wrap0(sRD, 4 * SLOT, 12 * SLOT) + [V(f"v_add_u32 v{vKA+u}, s{sRD}, v{vKL+u}") for u in range(2)]
    up[0].after += [(kr1[-1], 1), (dm[-1], 1)]
    st.add(chain(up, pv[0]['first'], n - 2))
    p.cur += st.emit(3 * T, name="front")
    return [dict(mf=u['mf']) for u in pv[12 - T:]]

def o_store(s):
    return [S(f"s_add_u32 s{sXOFF}, s{sKOFF}, {s*12288}")] + [
        Item('M', f"buffer_store_dwordx4 {bfrag(s,qb)}, v{vOL}, {sr(sWS)}, s{sXOFF} offen offset:{1024*qb} sc1", tag=f"OST{s>>1}") for qb in range(3)]
def o_conv(s, qb):
    t = 32 + 8 * ((s * 3 + qb) % 3); d = vQ + (s * 3 + qb) * 4
    its = [V(f"v_accvgpr_read_b32 v{t+4*h+r}, a{oacc(2*s+h,qb)+r}") for h in range(2) for r in range(4)]
    its += [V(f"v_mul_f32 v{t+r}, v{t+r}, v{vRCS[qb]}") for r in range(8)]
    its += [V(f"v_cvt_pk_bf16_f32 v{d+r}, v{t+2*r}, v{t+2*r+1}") for r in range(4)]
    return its

def check_items(cur, lo, hi):
    mx = V(f"v_max3_f32 v{vCK}, v{vL[cur]}, v{vL[cur]+4}, v{vL[cur]+8}", lo=min(lo, hi), hi=hi)
    return [mx, V(f"v_cmp_nge_f32 vcc, s{sLTHR}, v{vCK}", after=[(mx, 0)], hi=hi)]
def rare_head(p, cur):
    ret = p.newlabel("L_ret"); tr = p.newlabel("L_tramp")
    TRAMPS.append((tr, ret, cur))
    return L(f"s_cbranch_vccnz {tr}\n{ret}:")
def attention(p, pool, tail):
    def step(t_par, tail, mode, vm, extra=(), endi=(), final=False):
        cur, nxt = t_par, t_par ^ 1
        imm = 0 if t_par else 2 * SLOT
        st = Stream(tail)
        qk = qk_units(pool, nxt, imm)
        pv = pv_units(pool, cur, imm)
        rs = rs_unit(cur)
        pv[0]['head'] = rare_head(p, cur)
        for u in qk[:9] + [rs] + qk[9:] + pv: st.add_unit(u)
        n = st.n() - 3 * T
        bar = st.barrier(0, [f"s_waitcnt vmcnt({vm}) lgkmcnt(0)"])
        kr = st.reads(qk, 1, 33 if not final else 28, [(bar, 0)])
        aft = [(bar, 0), (kr[-1], 0)]
        if t_par:
            va = chain([V(f"v_add_u32 v{vVA+u}, s{sRD}, v{vVL+u}") for u in range(4)], 0, 20)
            st.add(va); aft.append((va[-1], 1))
        vrd = st.reads(pv, kr[-1].target + 2, n - (12 if not final else 20), aft)
        if final:
            up = wrap0(sRD, 4 * SLOT, 12 * SLOT) + [V(f"v_add_u32 v{vVA+u}, s{sRD}, v{vVL+u}") for u in range(4)]
            up[2].after.append((vrd[-1], 1))
            st.add(chain(up, n - 24, n - 1))
        elif not t_par:
            up = wrap0(sRD, 4 * SLOT, 12 * SLOT) + [V(f"v_add_u32 v{vKA+u}, s{sRD}, v{vKL+u}") for u in range(2)]
            up[0].after += [(kr[-1], 1)]
            st.add(chain(up, rs['first'], n - 4))
        dm = []
        if mode == 'A':
            dm = chain(kv_issue(), 2, DMAHI) if not WIN else spread_kv(kv_issue(), 2, WHI)
            for x in dm: x.hi = n - (8 if not WIN else 4)
        if extra:
            fx = [x for x in extra if getattr(x, 'fixed', False)]; fr = [x for x in extra if not getattr(x, 'fixed', False)]
            if fr:
                chain(fr, DMAHI + 2 if fx else 2, 68 if fx else (56 if not final else 30))
                if fx: fr[0].after.append((fx[-1], 1))
            dm = fx + fr
            for x in dm: x.hi = n - 1
        if dm: dm[0].after.append((bar, 1))
        st.add(dm)
        st.add(softmax_items(cur, SPLIT, 12, 0, rs['first'] - 2))
        pf = pv[0]['first']
        st.add(check_items(cur, rs['first'] + 6, pf - 1))
        st.add(softmax_items(nxt, 0, SPLIT if not final else SP30, pf + (1 if not final else 0), n - 1))
        if endi: st.add(chain(list(endi), n - 3, n - 1, 0))
        return st.emit(3 * T, name=mode), [dict(mf=u['mf']) for u in pv[12 - T:]]
    txt = lambda tl: [[i.text for i in u['mf']] for u in tl]
    global WIN
    VMA = VMLIM if not WIN else 6 * (D0 - 1)
    tr = []
    if TRACE: tr = L(f"s_memrealtime s[84:85]\ns_waitcnt lgkmcnt(0)\ns_mov_b32 m0, s{sT}\nv_writelane_b32 v174, s84, m0")
    global WHI
    for k, (tend, w, wh) in enumerate(LOOPS or [(27, WIN, WHI)]):
        WIN = w; WHI = wh
        lp = f"L_attA{k}"
        b1, tail1 = step(1, tail, 'A', VMA)
        b2, tail2 = step(0, tail1, 'A', VMA, endi=[S(f"s_add_u32 s{sT}, s{sT}, 2"), S(f"s_cmp_lt_u32 s{sT}, {tend}")])
        assert txt(tail2) == txt(tail) and VMLIM <= 6 * (D0 - 1) and tend % 2 == 1
        p.loop(L(f"{lp}:") + [I(x.text) for x in tr] + b1 + b2 + L(f"s_cbranch_scc1 {lp}"))
    assert tend == 27
    if TRACE:
        p(f"s_add_u32 s96, s90, {STAMP_OFF + 65536}\ns_addc_u32 s97, s91, 0"); srd(p, 84, 96, 1 << 20)
        p(f"s_lshl_b32 s{sTMP}, s2, 2\ns_add_u32 s{sTMP}, s{sTMP}, s{sWAVE}\ns_lshl_b32 s{sTMP}, s{sTMP}, 9\nv_lshlrev_b32 v{vT0}, 3, v0")
        p(f"buffer_store_dwordx2 v[174:175], v{vT0}, s[84:87], s{sTMP} offen")
    p.cur += stp('Lend')
    p("L_att27:")
    cnt = lambda its: sum(1 for x in its if x.kind == 'M')
    log = [pr for pr in range(27, 27 + D0) for _ in range(6)]
    nxt = 27 + D0
    tl = tail
    for t in range(27, 31):
        vm = len(log) - 1 - max(k for k, x in enumerate(log) if x == t)
        lastkv = max(k for k, x in enumerate(log) if x >= 0)
        if not WIN and 'kv' in PLAN[t]: vm = min(vm, VMLIM + len(log) - 1 - lastkv)
        ex = []
        for a in PLAN[t]:
            if a == 'kv': its = kv_issue(nok=(nxt == 31)); log += [nxt] * cnt(its); nxt += 1
            else:
                if a == 'r': its = [V(f"v_accvgpr_read_b32 v{r}, a{aPARK+k}") for k, r in enumerate(PARK)]
                elif a == 'p': its = pf_wo(vPWO)
                elif a == 't':
                    its = [S(f"s_mul_i32 s{sTMP+2}, s{sHL}, 73728"), Item('M', f"buffer_load_dword v{vDUM}, v{vOL}, {sr(sWS)}, s{sTMP+2} offen sc1", tag="dummy"),
                           S(f"s_mul_i32 s{sTMP+2}, s{sHG}, 15360"), Item('M', f"buffer_load_dword v{vDUM}, v{vPT}, {sr(sWS)}, s{sTMP+2} offen sc1", tag="dummy")]
                elif a == 'u':
                    its = [Item('M', f"buffer_load_dword v{vDUM}, v{vOUT}, {sr(sOUT)}, 0 offen sc1", tag="dummy")]
                elif a == 'l': its = [Item('M', f"buffer_load_dword v{vDUM}, v{vF1}, {sr(sWS)}, 0 offen offset:128 sc1", tag="dummy")]
                else:
                    assert t >= {0: 28, 1: 28, 2: 29, 3: 29, 4: 30, 5: 31, 6: 31}[a]
                    its = dma_wo(a)
                log += [-1] * cnt(its)
            if a == 'kv':
                if WIN: spread_kv(its, 2, 62 if len(PLAN[t]) == 1 or cnt(its) == 3 else 40)
                else: chain(its, 2, DMAHI)
                for x in its: x.fixed = True
            ex += its
        ins, tl = step(t & 1, tl, 'P', min(vm, 63), ex, final=(t == 30)); p.cur += ins
    assert nxt == 32
    return tl, len(log) - 1 - max(k for k, x in enumerate(log) if x == 31)

def set_flag(vfl, sidx, off=0, local=False, vt=None):
    vt = vt or vTK
    st = f"buffer_store_dwordx2 v[{vt}:{vt+1}], v{vfl}, {sr(sWS)}, 0 offen offset:"
    return L(f"s_lshl_b64 exec, 1, s{sidx}\n" + (f"{st}{off+128}\n" if local else "") + f"{st}{off} sc1\ns_mov_b64 exec, -1")
def spin(name, voff, tk, off):
    one = lambda o: f"""buffer_load_dwordx2 v[{vFLV}:{vFLV+1}], v{voff}, {sr(sWS)}, 0 offen offset:{o} sc1
s_waitcnt vmcnt(0)
v_cmp_ne_u64 vcc, s[{tk}:{tk+1}], v[{vFLV}:{vFLV+1}]
s_cbranch_vccz L_spinr{name}
"""
    OUTL.append(f"""L_spin{name}:
s_mov_b32 s{sTMP}, 0x10000
L_poll{name}:
""" + (one(off + 128) * NLOC if LOCAL else "") + one(off) + f"""s_sub_u32 s{sTMP}, s{sTMP}, 1
s_cmp_lg_u32 s{sTMP}, 0
s_cbranch_scc1 L_poll{name}
s_branch L_spinr{name}
""")
def bump_epoch(p, voff, tk, sidx, off):
    ne = p.newlabel("L_ne")
    p(f"s_cmp_lg_u32 s{sidx}, 0\ns_cbranch_scc1 {ne}\nv_mov_b32 v{vFLV}, s{tk}\nv_mov_b32 v{vFLV+1}, s{tk+1}\ns_mov_b64 exec, 1")
    p.flush()
    p.raw(f"buffer_store_dwordx2 v[{vFLV}:{vFLV+1}], v{voff}, {sr(sWS)}, 0 offen offset:{off} sc1")
    p(f"s_mov_b64 exec, -1\ns_nop 1\n{ne}:")
def load_g(G):
    i, c = gic(G)
    g = [S(f"s_add_u32 s{sXOFF}, s{sHI+i}, {c}"), S(f"s_mul_i32 s{sXOFF}, s{sXOFF}, 24576")]
    for ks in range(2):
        if ks: g.append(S(f"s_add_u32 s{sXOFF}, s{sXOFF}, 12288"))
        g += [Item('M', f"buffer_load_dwordx4 {bfrag(2*G+ks,qb)}, v{vOL}, {sr(sWS)}, s{sXOFF} offen offset:{1024*qb} sc1") for qb in range(3)]
    return g

def oproj(p, pool, tail, vm31):
    NEXTG = max(a for v in PLAN.values() for a in v if isinstance(a, int)) + 1
    st = Stream(tail[:2])
    rs = rs_unit(1); st.add_unit(rs)
    for u in tail[2:]: st.add_unit(u)
    apv = pv_units(pool, 1, 0)
    apv[0]['head'] = rare_head(p, 1)
    for u in apv: st.add_unit(u)
    Z = st.n()
    def unit(G, ks, nb, va, imm):
        u = 2 * G + ks; pb = pool.next(); a = va + (nb & 1)
        rd = [f"ds_read_b64_tr_b16 {ar(pb,2)}, v{a} offset:{imm+ks*10240+nb*32}", f"ds_read_b64_tr_b16 {ar(pb+2,2)}, v{a} offset:{imm+ks*10240+nb*32+5120}"]
        mf = [I(f"{MF} {vr(cacc(nb,qb))}, {ar(pb)}, {bfrag(u,qb)}, {vr(cacc(nb,qb)) if u else 0}") for qb in range(3)]
        return dict(reads=rd, mf=snake(mf, pool.n))
    def seta(va, off): return [V(f"v_add_u32 v{va+k}, {off}, v{vWOL+k}") for k in range(2)]
    NG = 6
    assert GS >= 4
    def un2(G, ks, nb): return unit(G, ks, nb, vWA[2 + (G - NG) // 3], ((G - NG) % 3) * GSZ) if G >= NG else unit(G, ks, nb, vWA[G & 1], 0)
    assert all(goff(G + 1) == goff(G) + GSZ for G in range(NG, 11))
    U = [[unit(G, ks, nb, vWA[G & 1], 0) for ks in range(2) for nb in range(6 if G >= GS else 10)] for G in range(NG)]
    NL = 12 - NBA
    A = [[un2(G, ks, nb) for ks in range(2) for nb in range(6 if G >= GS else 10)] for G in range(6, NL)]
    F = [[un2(G, ks, nb) for G in range(NL if nb < 6 else GS, 12) for ks in range(2)] for nb in range(10)]
    tiles = U + A + [[u for nb in range(10) for u in F[nb]]]
    if ST: U[0][0]['head'] = stp('Aend')
    for tl in tiles:
        for u in tl: st.add_unit(u)
    bar0 = st.barrier(0, ["WAITVM G0", f"s_waitcnt vmcnt({vm31}) lgkmcnt(0)"])
    pf = apv[0]['first']
    vrd = st.reads(apv, 1, pf + 14, [(bar0, 0)])
    st.add(softmax_items(1, SP30, 12, 0, rs['first'] - 1))
    st.add(check_items(1, rs['first'] + 5, pf - 1))
    sa0 = chain(seta(vWA[0], goff(0)) + [V(f"v_mov_b32 v{vTK}, s{sTK1}"), V(f"v_mov_b32 v{vTK+1}, s{sTK1+1}")], rs['first'], pf - 1); st.add(sa0)
    for x in sa0: x.hi = pf + 12
    rc = chain([S(f"s_mul_i32 s{sKOFF}, s{sHL}, 73728"), S(f"s_mul_i32 s{sT}, s{sHG}, 15360")] + [Item('E', f"v_rcp_f32 v{vRCS[qb]}, v{vL[1]+4*qb}") for qb in range(3)], pf, pf + 6)
    for x in rc: x.hi = pf + 10
    st.add(rc)
    mem = []
    def addmem(its, lo, hi, after=None):
        chain(its, lo, hi)
        for x in its: x.hi = 10 ** 9
        if after: its[0].after.append(after)
        if mem: its[0].after.append((mem[-1], 1))
        mem.extend(its); st.add(its)
    wit = {}
    for k, G in enumerate(PRE31):
        addmem(dma_wo(G), 4 + 10 * k, 12 + 10 * k, (bar0, 1)); wit[G] = mem[-1]
        for x in mem: x.hi = pf + 9
    prev = rc[-1]; conv = {}
    for sx in range(6):
        stv = o_store(sx)
        for qb in range(3):
            its = o_conv(sx, qb)
            lo = min(apv[2 * sx + 1]['first'] + 6, Z + 2)
            if sx < NEO:
                k = sx * 3 + qb; a = apv[1]['first'] + 6
                dl = max(lo, a + (Z - 3 - a) * (k + 1) // (3 * NEO))
            else: dl = min(Z + 30 * sx - 3, Z + CDL * (3 * (sx - NEO) + qb + 1))
            chain(its, lo, dl, 0)
            for x in its: x.dense = True; x.target = lo
            its[0].after.append((prev, 1 if prev.kind != 'V' else 0)); prev = its[-1]; st.add(its)
            conv[sx, qb] = its[-1]
            if sx < NEO:
                o = ([stv[0]] if qb == 0 else []) + [stv[1 + qb]]
                o[-1].after.append((its[-1], 1)); addmem(o, lo, dl + 1)
                for x in o: x.hi = dl + 1
                o[-1].target = dl + 1
    st.add(chain(seta(vWA[2], goff(6)) + seta(vWA[3], goff(9)) + [V(f"v_mov_b32 v{vTK2}, s{sTK2}"), V(f"v_mov_b32 v{vTK2+1}, s{sTK2+1}"),
        S(f"s_cmp_ge_u32 s{sJ}, 4\ns_cselect_b32 s{sTMP+2}, 8, 0"), S(f"s_cmp_eq_u32 s{sJ}, 0\ns_cselect_b32 s{sTMP+2}, -8, s{sTMP+2}" if TRI else f"s_mov_b32 s{sTMP+2}, 8"),
        V(f"v_and_b32 v{vF2R}, 8, v0"), V(f"v_mul_i32_i24 v{vF2R}, s{sTMP+2}, v{vF2R}"), V(f"v_add_u32 v{vF2R}, v{vF2R}, v{vF2}")], Z + 180, Z + 280))
    bars = {0: bar0}
    for k, tl in enumerate(tiles):
        g0 = tl[0]['first'] - 3 * T
        last = tiles[k + 1][0]['first'] - 3 * T - (RGAP if k < 4 else 0) if k + 1 < len(tiles) else st.n() - 14
        if k == 0: rdl = st.reads(U[0], g0 + 1, last, [(vrd[-1], 0), (sa0[1], 1)])
        else:
            bars[k] = st.barrier(g0, [f"WAITVM G{k if k < NL else 11}"] + (["s_waitcnt lgkmcnt(0)"] if k <= 4 else []) + stp(f"G{k}"))
            rdl = st.reads(tl, g0 + 1, last, [(bars[k], 0), (rdl[-1], 0)])
        if k + 1 < NG: st.add(chain(seta(vWA[(k + 1) & 1], goff(k + 1)), g0 + 14, g0 + 30))
    pv = {0: 2, 1: 4, 2: 8}
    for pos, act in OCH:
        k, n = act[0], int(act[1:]); pos += Z
        if k == 'W':
            if n >= NEXTG and n not in wit:
                addmem(dma_wo(n), pos, pos + SPW, (bars[0 if n < 7 else max(n - 7, 1)], 1)); wit[n] = mem[-1]
        elif k == 'F': addmem([Item('M', [I(f"WAITVM OST{n}")] + stp(f"F{n}") + set_flag(vF1, sHL, 32 * n, LOCAL))], pos, pos)
        elif k == 'P': addmem([Item('M', f"buffer_load_dwordx2 v[{pv[n]}:{pv[n]+1}], v{vF1}, {sr(sWS)}, 0 offen offset:{32*n + (128 if LOCAL else 0)} sc1")], pos, pos)
        elif k == 'C':
            addmem([V(f"v_cmp_ne_u64 vcc, s[{sTK1}:{sTK1+1}], v[{pv[n]}:{pv[n]+1}]")], pos, pos)
            addmem([Item('S', stp(f"C{n}a") + L(f"s_cbranch_vccnz L_spin{n}\nL_spinr{n}:") + stp(f"C{n}b"))], pos + 3, pos + 3)
            spin(n, vF1, sTK1, 32 * n)
        elif k == 'B': addmem([x for G in range(3 + 3 * n, 6 + 3 * n) for x in load_g(G)], pos, pos + 40)
        elif k == 'b': addmem(load_g(n), pos, pos + SPW, (conv[5, 2], 1) if n >= 6 else (conv[0, 2], 1))
        elif k == 'S':
            assert n >= NEO
            o = o_store(n)
            for qb in range(3): o[1 + qb].after.append((conv[n, qb], 1))
            addmem(o, pos, pos + 6)
    def gran(m, qb, k):
        t = vQ + 12 * (k % 4); j = m * 3 + qb
        its = [V(f"v_cvt_pk_bf16_f32 v{t+8+r}, v{cacc(2*m+(r>>1),qb)+2*(r&1)}, v{cacc(2*m+(r>>1),qb)+2*(r&1)+1}") for r in range(4)]
        if j % 4 == 0: its.append(S(f"s_add_u32 s{sTMP+1}, s{sT}, {j*1024}"))
        so = sTMP + 1; post = []
        if OWN:
            so = sTMP + 3
            if OWN == 2:
                its.append(S(f"s_cmp_eq_u32 s{sJ}, {j&7}\ns_cselect_b32 s{so}, {OOB}, s{sTMP+1}\ns_cselect_b64 s[96:97], -1, 0"))
                post = [V(f"v_cndmask_b32 v{40+8*(j>>3)+4*h+r}, v{40+8*(j>>3)+4*h+r}, v{cacc(2*m+h,qb)+r}, s[96:97]") for h in range(2) for r in range(4)]
            else:
                its.append(S(f"s_cmp_eq_u32 s{sJ}, {j&7}\ns_cselect_b32 s{so}, {OOB}, s{sTMP+1}\ns_cbranch_scc1 L_own{j}\nL_ownr{j}:"))
                OUTL.append(f"L_own{j}:\n" + "".join(f"v_mov_b32 v{40+8*(j>>3)+4*h+r}, v{cacc(2*m+h,qb)+r}\n" for h in range(2) for r in range(4)) + f"s_branch L_ownr{j}\n")
        its.append(Item('M', f"buffer_store_dwordx4 {vr(t+8)}, v{vPT}, {sr(sWS)}, s{so} offen offset:{(j%4)*1024} sc1", tag="PA" if m < 3 else f"P{m}"))
        if m == 4 and post: return its, [S(f"s_cmp_eq_u32 s{sJ}, {j&7}\ns_cselect_b64 s[96:97], -1, 0")] + post
        return its + post
    k = 0
    for m in range(4):
        its = []
        for qb in range(3): its += gran(m, qb, k); k += 1
        lo = F[2 * m + 2][0]['first'] + 4
        fa = [Item('M', [I("WAITVM PA")] + stp('FA') + set_flag(vF2, sHG, 0, vt=vTK2))]
        fp = min(F[6][0]['first'] + FAPOS, st.n() - 1)
        if m == 3 and fp <= lo: addmem(fa, fp, fp)
        addmem(its, lo, lo + (14 if OWN != 2 else 20))
        if m == 3 and fp > lo: addmem(fa, fp, fp)
    if EARLY: addmem([Item('M', f"buffer_load_dwordx2 v[4:5], v{vF2R}, {sr(sWS)}, 0 offen sc1")], st.n() - EARLY, st.n() - EARLY)
    p.cur += st.emit(name="oproj")
    for it in mem:
        if it.kind == 'M' and it.ins[0].op == 'buffer_load_dwordx4' and it.ins[0].dst:
            d = set(it.ins[0].dst)
            assert it.gap < min(g for g, (h, m) in enumerate(st.mf) if g >= Z and d & set(m.srcAB)), it.ins[0].text
    for n, it in wit.items(): assert it.gap < bars[min(n, NL)].gap - 1, n
    assert set(wit) | set(range(NEXTG)) == set(range(12))
    p.cur += stp('E')
    if OWN == 2:
        gs = [gran(4, qb, k + qb) for qb in range(3)]
        for a, b in gs: flat(p, a)
        return [x for a, b in gs for x in b]
    for qb in range(3): flat(p, gran(4, qb, k)); k += 1
    return []

def final_reduce(p, rest):
    sDONE, sNEW, sO2, sOWNB, sOOB = sKK, sWR, sRD, sWOFF, sXOFF
    ld = f"buffer_load_dwordx2 v[{vFLV}:{vFLV+1}], v{vF2R}, {sr(sWS)}, 0 offen sc1"
    if TRI: p("WAITVM P3"); p.cur += set_flag(vF2, sHG, 64, vt=vTK2)
    p(f"""
{ld if not EARLY else ""}
s_lshl_b32 s{sTMP}, s{sJ}, 10
v_add_u32 v2, s{sTMP}, v{vPT}
s_cmp_eq_u32 s{sJ}, 7
s_cselect_b32 s{sO2}, {OOB}, 0
s_cselect_b32 s{sDONE}, 0xff00, 0
s_mov_b32 s{sT}, 0xffff0000
s_lshl_b32 s{sOWNB}, 0x101, s{sHG}
s_mov_b32 s{sOOB}, {OOB}
s_mov_b32 s{sTMP}, 0x20000
""")
    flat(p, rest)
    if EARLY:
        p(f"v_cmp_eq_u64 vcc, s[{sTK2}:{sTK2+1}], v[4:5]\ns_nop 4\ns_and_b32 s{sNEW}, vcc_lo, 0xff\ns_andn2_b32 s{sNEW}, s{sNEW}, s{sOWNB}\ns_or_b32 s{sDONE}, s{sDONE}, s{sNEW}")
        for g in range(8):
            p(f"s_bitcmp1_b32 s{sNEW}, {g}\ns_cselect_b32 s{sTMP+1}, {g*15360}, s{sOOB}\nbuffer_load_dwordx4 {vr(56+g*4)}, v2, {sr(sWS)}, s{sTMP+1} offen sc1")
    p("WAITVM P4")
    p.cur += set_flag(vF2, sHG, 128, vt=vTK2); p.cur += stp('ACK')
    if not EARLY: p("s_waitcnt vmcnt(1)\ns_branch L_fin2")
    p.flush()
    t = f"""L_fin:
{ld}
s_waitcnt vmcnt(0)
L_fin2:
v_cmp_eq_u64 vcc, s[{sTK2}:{sTK2+1}], v[{vFLV}:{vFLV+1}]
s_nop 4
s_and_b32 s{sNEW}, vcc_lo, 0xffff
{"s_or_b32 s%d, s%d, s%d" % (sNEW, sNEW, sOWNB) if OWN else ""}
s_andn2_b32 s{sNEW}, s{sNEW}, s{sDONE}
{"s_cbranch_scc0 L_fnone" if QUICK else ""}
s_or_b32 s{sDONE}, s{sDONE}, s{sNEW}
{"s_and_b32 s%d, s%d, 0xff" % (sTMP+1, sNEW) if QUICK else ""}
{"s_cbranch_scc0 L_fs7" if QUICK else ""}
"""
    for g in range(16):
        t += f"""s_bitcmp0_b32 s{sNEW}, {g}
s_cbranch_scc1 L_fs{g}
s_cmp_eq_u32 s{sHG}, {g%8 if OWN else 99}
s_cselect_b32 s{sTMP+1}, s{sOOB}, {(g%8)*15360 + (g//8)*8192}
buffer_load_dwordx4 {vr(56+g*4)}, v2, {sr(sWS)}, s{sTMP+1} offen sc1
L_fs{g}:
"""
    t += f"""s_cmp_eq_u32 s{sDONE}, 0xffff
s_cbranch_scc1 L_find
L_fnone:
s_sub_u32 s{sTMP}, s{sTMP}, 1
s_cmp_lg_u32 s{sTMP}, 0
s_cbranch_scc1 L_fin
L_find:"""
    p.raw(t)
    p.cur += stp('P2')
    for i in range(2):
        p(f"""
s_add_u32 s{sTMP}, s{sJ}, {8*i}
s_mul_i32 s{sTMP+1}, s{sTMP}, 11
s_lshr_b32 s{sTMP+1}, s{sTMP+1}, 5
s_mul_i32 s{sTMP+3}, s{sTMP+1}, 3
s_sub_u32 s{sTMP+3}, s{sTMP}, s{sTMP+3}
s_mul_i32 s{sTMP+3}, s{sTMP+3}, {16*1280}
s_lshl_b32 s{sTMP+1}, s{sTMP+1}, 6
s_add_u32 s{sTMP+4+i}, s{sTMP+1}, s{sTMP+3}
""")
    p(f"s_add_u32 s{sTMP+5}, s{sTMP+5}, s{sO2}\ns_and_b32 s{sNEW}, s{sNEW}, 0xff\ns_cbranch_scc0 L_fa\ns_waitcnt vmcnt(0)\nL_fa:")
    for i in range(2):
        acc = 40 + i * 8
        if i: p("s_waitcnt vmcnt(1)")
        for g in range(8):
            b = 56 + (i * 8 + g) * 4
            for r in range(4):
                d = acc if g == 0 and not OWN else 120
                p(f"v_lshlrev_b32 v{d+2*r}, 16, v{b+r}\nv_and_b32 v{d+1+2*r}, s{sT}, v{b+r}")
            if g or OWN:
                for r in range(8): p(f"v_add_f32 v{acc+r}, v{acc+r}, v{120+r}")
        o = 132 + 4 * i
        for r in range(4): p(f"v_cvt_pk_bf16_f32 v{o+r}, v{acc+2*r}, v{acc+2*r+1}")
        p(f"v_permlane16_swap_b32 v{o}, v{o+2}\nv_permlane16_swap_b32 v{o+1}, v{o+3}")
        p(f"buffer_store_dwordx4 {vr(o)}, v{vOUT}, {sr(sOUT)}, s{sTMP+4+i} offen")
    bump_epoch(p, vF1, sTK1, sHL, 96)
    bump_epoch(p, vF2, sTK2, sHG, 192)

def store_stamps(p):
    if not ST: return
    p("s_waitcnt vmcnt(0)"); p.cur += stp('end')
    lab = p.newlabel("L_nost")
    if AMP:
        a, b = sSTAMP + 2 * ST[AMP[0]], sSTAMP + 2 * ST[AMP[1]]; e = sSTAMP + 2 * ST['end']
        p(f"""s_waitcnt lgkmcnt(0)
s_cmp_lg_u32 s2, 100
s_cbranch_scc1 {lab}
s_sub_u32 s{sTMP}, s{b}, s{a}
s_lshl_b32 s{sTMP}, s{sTMP}, 3
s_min_u32 s{sTMP}, s{sTMP}, 100000
L_amp:
s_memrealtime s[96:97]
s_waitcnt lgkmcnt(0)
s_sub_u32 s{sTMP+1}, s96, s{e}
s_cmp_lt_u32 s{sTMP+1}, s{sTMP}
s_cbranch_scc1 L_amp
{lab}:""")
        return
    if DBGST is not None:
        p("s_load_dwordx2 s[96:97], s[0:1], 48\ns_waitcnt lgkmcnt(0)"); srd(p, sK, 96, 256)
        p(f"s_cmp_lg_u32 s{sWAVE}, 0\ns_cbranch_scc1 {lab}\ns_cmp_lg_u32 s2, {DBGST}\ns_cbranch_scc1 {lab}")
        p("s_mov_b64 exec, 1\nv_mov_b32 v2, 0")
        for i in range(NSTAMP):
            p(f"s_sub_u32 s{sTMP}, s{sSTAMP+2*i}, s{sSTAMP}\nv_mov_b32 v4, s{sTMP}\nbuffer_store_dword v4, v2, {sr(sK)}, 0 offen offset:{4*i}\ns_nop 1")
        p(f"s_waitcnt vmcnt(0)\n{lab}:")
        return
    p(f"s_add_u32 s96, s90, {STAMP_OFF}\ns_addc_u32 s97, s91, 0"); srd(p, sK, 96, 65536)
    p("s_waitcnt lgkmcnt(0)")
    p(f"s_cmp_lg_u32 s{sWAVE}, 0\ns_cbranch_scc1 {lab}")
    p(f"s_lshl_b32 s{sTMP}, s2, 7\nv_mov_b32 v2, s{sTMP}\ns_mov_b64 exec, 1")
    for i, r in enumerate([sSTAMP + 2 * i for i in range(NSTAMP)] + list(CST.values())):
        p(f"v_mov_b32 v4, s{r}\nv_mov_b32 v5, s{r+1}\nbuffer_store_dwordx2 v[4:5], v2, {sr(sK)}, 0 offen offset:{8*i}\ns_nop 1")
    p(f"s_waitcnt vmcnt(0)\n{lab}:")

def kernel(p):
    name = NAME + "_kernel"
    p.raw(f".globl {name}\n.p2align 8\n.type {name},@function\n{name}:")
    p("s_cmp_ge_u32 s2, 256\ns_cbranch_scc1 L_end")
    p.cur += stp('start')
    p(f"""
s_load_dwordx8 s[76:83], s[0:1], 0
s_load_dwordx8 s[84:91], s[0:1], 32
v_lshrrev_b32 v1, 6, v0
v_and_b32 v0, 63, v0
v_readfirstlane_b32 s{sWAVE}, v1
""")
    if CODEPF:
        p(f"""
s_getpc_b64 s[98:99]
s_lshr_b32 s{sTMP+1}, s2, 3
s_mul_i32 s{sTMP+1}, s{sTMP+1}, {13*128}
v_mul_u32_u24 v252, 3, v1
v_add_lshl_u32 v252, v252, v0, 7
v_add_u32 v252, s{sTMP+1}, v252
v_mov_b32 v253, s99
v_add_co_u32 v252, vcc, s98, v252
v_addc_co_u32 v253, vcc, 0, v253, vcc
s_mov_b64 exec, 15
global_load_dword v{vDUM}, v[252:253], off
s_mov_b64 exec, -1
""", "dummy")
    tab = sum((((k % PH) * (10 - COMMON) + PH // 2) // PH) << (4 * k) for k in range(11))
    p(f"""
s_and_b32 s{sHG}, s2, 7
s_lshr_b32 s{sB}, s2, 5
s_bfe_u32 s{sHL}, s2, 0x20003
s_mul_i32 s{sM0W}, s{sWAVE}, 3072
s_add_u32 s{sTMP+1}, s{sB}, s{sHL}
s_lshl_b32 s{sTMP+1}, s{sTMP+1}, 2
s_mov_b32 s96, {tab & 0xffffffff}
s_mov_b32 s97, {tab >> 32}
s_lshr_b64 s[96:97], s[96:97], s{sTMP+1}
s_and_b32 s{sTMP+1}, s96, 15
{"s_and_b32 s96, s%d, %d" % (sHG, XROT) if XROT else ""}
{"s_add_u32 s%d, s%d, s96" % (sTMP+1, sTMP+1) if XROT else ""}
{"s_cmp_ge_u32 s%d, 10" % (sTMP+1) if XROT else ""}
{"s_cselect_b32 s96, 10, 0" if XROT else ""}
{"s_sub_u32 s%d, s%d, s96" % (sTMP+1, sTMP+1) if XROT else ""}
s_lshl_b32 s{sXOFF}, s{sTMP+1}, 7
s_mul_i32 s{sWOFF}, s{sTMP+1}, {64*12288}
""")
    if COMMON: p(f"s_mov_b32 s{sRD}, s{sTMP+1}\ns_mov_b32 s{sXOFF}, {(10-COMMON)*128}\ns_mov_b32 s{sWOFF}, {(10-COMMON)*64*12288}")
    if KSTAG: p(f"s_mul_i32 s{sKK}, s2, 11\ns_add_u32 s{sKK}, s{sKK}, s{sB}\ns_and_b32 s{sKK}, s{sKK}, 31\ns_mul_i32 s{sKK}, s{sKK}, {KG*384}")
    else: p(f"s_mov_b32 s{sKK}, 0")
    p(f"s_mov_b32 s{sKOFF}, s{sKK}")
    setup_first(p)
    if not XFIRST:
        p.cur += stp('s0')
        srd(p, sX, 76, 1536 * 1280); p.cur += stp('s1')
    srd(p, sWq, 82, 640 * 12288)
    pool = Pool(12)
    tail = front(p, pool)
    if not QONLY:
        tail, vm31 = attention(p, pool, tail)
        rest = oproj(p, pool, tail, vm31)
        final_reduce(p, rest)
    store_stamps(p)
    p("L_end:\ns_endpgm")
    for t in OUTL: p.raw(t)
    for tr, ret, cur in TRAMPS: p.raw(f"{tr}:\ns_call_b64 s[98:99], L_rare{cur}\ns_branch {ret}")
    rare_path(p, "L_rare0", 0)
    rare_path(p, "L_rare1", 1)
    p.raw(".fill 64, 4, 0xbf800000" if not QONLY else ".fill 12288, 4, 0xbf800000")
    return kernel_desc(name, vgpr=512, accum=256)

def build(path):
    p = Prog()
    p.raw("""; GQA block (q-projection, attention over the cached K/V, out-projection) for gfx950 in one fused kernel.
; @launch grid=(256,1,1) block=(256,1,1) lds=163840
.amdgcn_target "amdgcn-amd-amdhsa--gfx950"
.text""")
    d = kernel(p)
    p.raw('.section .rodata,"a"\n.p2align 6\n' + d)
    txt = p.text()
    if LLFIX == 1: txt = fix_ll(txt)
    if NODMA:
        txt = "\n".join(l for l in txt.split("\n") if not (l.startswith("buffer_load_dwordx4")))
        txt = txt.replace("s_cbranch_vccnz L_tramp", "s_cbranch_execz L_tramp")
    if ST: txt = txt.replace(".amdgcn_target", "; stamps " + repr(ST) + "\n.amdgcn_target", 1)
    open(path, "w").write(txt)
    if VERB:
        import collections
        print(collections.Counter(w.split(':')[0] for w in WARN))
        if VERB > 1:
            for w in WARN: print("WARN", w)
        ls = txt.split("\n")
        marks = [k for k, l in enumerate(ls) if l.endswith(":") and not l.startswith("L_ret")]
        for a, b in zip(marks, marks[1:] + [len(ls)]):
            seg = [l for l in ls[a:b] if l and not l.startswith(".") and not l.startswith(" ")]
            c, nm = estimate(seg)
            if nm: print(f"{ls[a][:28]:28s} est {c:6d} cyc, mfma {nm:4d} ({16*nm})")

STD = {'start': 0, 'X0': 1, 'u8': 2, 'u16': 3, 'E': 4, 'Qend': 5, 'Lend': 6, 'Aend': 7, 'C0b': 8, 'G6': 9, 'ACK': 10, 'end': 11}
if __name__ == "__main__":
    for a in sys.argv[2:]:
        k, v = a.split("=", 1)
        globals()[k] = eval(v)
    build(sys.argv[1])
```

```python
import sys, math, struct
from sched import *
from asmlib import kernel_desc

NAME = "standalone__gqa_block_cached__near_ridge"
SLOT = 12288
GSZ = 20480
NT = "nt"
CODEPF = True
PH = 3
VMLIM = 2
DMAHI = 22
SNAKE = True
KSTAG = True
NDB = 4
NBM = 3
NST = 4
NEO = 2
SCHED = 10
KVSPAN = 150
PLAN = {27: ['kv', 'KV', 'r', 'l'], 28: [0, 1], 29: [2, 3], 30: [4]}
OCH = [(0,'W6'),(50,'S2'),(62,'F0'),(76,'S3'),(90,'W7'),(114,'P0'),(132,'C0'),(136,'b3'),(160,'F1'),(164,'b4'),(186,'S4'),(194,'S5'),(206,'b5'),(228,'P1'),(230,'W8'),(250,'C1'),
       (254,'b6'),(274,'F2'),(278,'b7'),(298,'W9'),(318,'P2'),(320,'b8'),(340,'C2'),(344,'b9'),(364,'W10'),(384,'b10'),(404,'W11'),(424,'b11')]
LATESET = True
TWIN = None
XROT = 7
EARLYQ = None
QUICK = True
EARLY = 0
CDL = 99
BARFIX = True
LLFIX = 0
QBAR = [1, 2, 3, 4, 5, 6, 7, 8, 9, 10, 11, 12, 14, 16]
OBAR = None
KG = 32
TRI = False
ROT = True
LATEHI = 432
COMMON = 0
WHI = 62
LOOPS = [(9, (5,), 62), (27, (5,), 52)]
SPW = 18
OWN = 1
WIN = (5,)
PRE31 = (5,)
SP30 = 9
XPF = 0
XFIRST = True
AMP = None
RAMP = ()
D0 = 3
PWQ = None
VMTAIL = None
LOCAL = True
NLOC = 4
NBA = 2
FAPOS = 80
GS = 5
PART_OFF = 20 << 20
FLAG_OFF = 40 << 20
WS_SIZE = 41 << 20
STAMP_OFF = 64 << 20
ST = {}
NSTAMP = 12
DBGST = None
TRACE = 0
NODMA = 0
QONLY = 0
VERB = 0
OOB = 0x7f000000

def f32(x): return "0x%08x" % struct.unpack("<I", struct.pack("<f", x))[0]
def vr(b, n=4): return f"v[{b}:{b+n-1}]"
def ar(b, n=4): return f"a[{b}:{b+n-1}]"
def sr(b, n=4): return f"s[{b}:{b+n-1}]"
MF = "v_mfma_f32_16x16x32_bf16"
def srd(p, d, lo, nbytes):
    p(f"s_mov_b32 s{d}, s{lo}\ns_and_b32 s{d+1}, s{lo+1}, 0xffff\ns_mov_b32 s{d+2}, {nbytes}\ns_mov_b32 s{d+3}, 0x00020000")

sLTHR = 3
sK, sV, sWq, sX, sWS, sWo, sOUT = 4, 8, 12, 16, 20, 24, 28
sWAVE, sB, sSC, sHG, sHL = 32, 33, 34, 35, 36
sM0W, sKOFF, sWR, sRD, sT, sKK = 37, 38, 39, 40, 41, 42
sWOFF, sXOFF, sWW = 43, 44, 45
sTMP = 46
sSTAMP = 52
sHI = 76
sTK1, sTK2 = 92, 94
sJ = 33
TOKC = (0x9e3779b9, 0x7f4a7c15)
F2BASE = 256 * 256
CST = {'Qend': 80, 'Lend': 82, 'C0b': 88, 'ACK': 100}
def stp(name):
    r = []
    if name in ST: r.append(I(f"s_memrealtime s[{sSTAMP+2*ST[name]}:{sSTAMP+2*ST[name]+1}]"))
    if ST and name in CST: r.append(I(f"s_memtime s[{CST[name]}:{CST[name]+1}]"))
    return r

vKD, vVD, vWD = 2, 5, 8
vXD = 11
vWOD, vPWO = 11, 16
vKL, vVL = 17, 19
vKA, vVA = 23, 25
vXR = 29
vOL, vPT = 30, 31
vT0 = 31
vDUM = 248
vF1, vF2 = 250, 251
vVB = 252
vWOL, vOUT = 252, 254
vACC = 32; vQ = 176
vS = (32, 56); vP = (80, 92); vNM = 104; vE = 120; vCK = 130; vR = 132; vL = (144, 156)
NE = 5
vB = 32; vRC = 136; vTK = 6; vTK2 = 18; vFLV = 28
vWA = (23, 20, 25, 16)
vRCS = (1, 10, 249)
vF2R = 22
vC = 56
aO = 0; aPOOL = 144; aC = 0; aX = 0; NXB = 6; aONE = 240; aPARK = 244
PARK = [vWOD + j for j in range(5)] + [vPWO, vWOL, vWOL + 1, vOL, vPT, vOUT]
def qfrag(qb, s): return vQ + (qb * 6 + s) * 4
def qacc(db, qb): return vACC + (db * 3 + qb) * 4
def oacc(db, qb): return aO + (db * 3 + qb) * 4
def cacc(nb, qb): return vC + (nb * 3 + qb) * 4
def sreg(buf, qb, kb): return vS[buf] + (qb * 2 + kb) * 4
def bfrag(u, qb):
    if u < 6: return vr(vQ + (u * 3 + qb) * 4)
    k = (u - 6) * 3 + qb
    if k < 16: return ar(192 + k * 4)
    k -= 16
    return ar(k * 4) if k < 36 else vr(32 + (k - 36) * 4)

LAYOUT = 2
def xs0(): return 5 if LAYOUT == 0 else 4
def xpair(c): return 5 + 2 * (c % 2) if LAYOUT == 0 else 6 - 2 * (c % 2)
WRING = [9, 10, 11, 1, 12]
def wslot(u):
    if LAYOUT == 0: return WRING[u % 5]
    return [1, 8, 9, 10, 11, 12][u % 6] if u < 14 else u - 8 if u < 16 else u - 7
def kvslot(kind, i): return 2 * (i % 6) if kind == 'K' else 2 * ((i + 1) % 6) + 1
def gic(G): return (0, G) if G < 3 else (1 + (G - 3) % 3, (G - 3) // 3)
def goff(G): return ((G + 4) % 8) * GSZ
TRAMPS = []; OUTL = []

def tile_rows(p, t, j):
    p(f"""
v_add_u32 v{t+2}, {8*j}, v{t}
v_mul_u32_u24 v{t+3}, 11, v{t+2}
v_lshrrev_b32 v{t+3}, 5, v{t+3}
v_mul_u32_u24 v{t+4}, 3, v{t+3}
v_sub_u32 v{t+4}, v{t+2}, v{t+4}
v_add_u32 v{t+3}, s{sTMP}, v{t+3}
v_and_b32 v{t+5}, 6, v{t+3}
v_xor_b32 v{t+5}, v{t+5}, v{t+1}
v_lshlrev_b32 v{t+5}, 4, v{t+5}
""")
def setup_first(p):
    t = 240
    p(f"""
v_lshrrev_b32 v{t}, 3, v0
v_and_b32 v{t+1}, 7, v0
s_lshl_b32 s{sTMP}, s{sWAVE}, 3
s_lshl_b32 s{sTMP+1}, s{sB}, 2
s_add_u32 s{sTMP+1}, s{sTMP+1}, s{sWAVE}
s_mul_i32 s{sTMP+4}, s{sTMP+1}, {48*1280}
s_lshl_b32 s{sTMP+2}, s{sHG}, 2
s_add_u32 s{sTMP+5}, s{sTMP+2}, s{sHL}
s_mul_i32 s{sTMP+2}, s{sTMP+5}, 384
""")
    for half in range(2):
        p(f"""
v_lshrrev_b32 v{t+2}, 1, v{t}
v_add_u32 v{t+2}, {4*half}, v{t+2}
v_xor_b32 v{t+2}, v{t+2}, v{t+1}
v_lshlrev_b32 v{t+2}, 4, v{t+2}
v_add_u32 v{t+3}, {8*half}, v{t}
v_mul_u32_u24 v{t+3}, 1280, v{t+3}
v_add3_u32 v{vXD+half}, v{t+2}, v{t+3}, s{sTMP+4}
v_add_u32 v{vXD+2+half}, {20480-1024}, v{vXD+half}
v_add_u32 v{vXD+4+half}, {2*(20480-1024)}, v{vXD+half}
""")
    if XFIRST:
        p.cur += stp('s0')
        srd(p, sX, 76, 1536 * 1280); p.cur += stp('s1')
        xpf = f"""s_lshl_b32 s96, s2, 2
s_add_u32 s96, s96, s{sWAVE}
s_mul_i32 s96, s96, 1920
v_lshlrev_b32 v{t+2}, 7, v0
s_mov_b64 exec, 0x7fff
buffer_load_dword v{vDUM}, v{t+2}, {sr(sX)}, s96 offen
s_mov_b64 exec, -1"""
        if XPF == 1: p(xpf, "dummy")
        flat(p, issue('X0'))
        if XPF == 2: p(xpf, "dummy")
    for j in range(3):
        tile_rows(p, t, j)
        p(f"""
v_bfe_u32 v{t+6}, v{t+3}, 2, 2
v_lshlrev_b32 v{t+6}, 3, v{t+6}
v_lshrrev_b32 v{t+7}, 4, v{t+3}
v_lshl_add_u32 v{t+6}, v{t+7}, 2, v{t+6}
v_and_b32 v{t+7}, 3, v{t+3}
v_add_u32 v{t+6}, v{t+6}, v{t+7}
v_mul_u32_u24 v{t+6}, 12288, v{t+6}
v_lshl_add_u32 v{t+6}, v{t+4}, 7, v{t+6}
v_add3_u32 v{t+6}, v{t+6}, v{t+5}, s{sTMP+2}
v_subrev_u32 v{vWD+j}, {1024*j}, v{t+6}
""")
def setup_reads(p):
    t = 232
    p(f"""
v_and_b32 v{t}, 15, v0
v_lshrrev_b32 v{t+1}, 4, v0
v_lshrrev_b32 v{t+2}, 1, v{t}
v_xor_b32 v{t+2}, v{t+2}, v{t+1}
v_lshlrev_b32 v{t+5}, 4, v{t+2}
v_and_b32 v{t+3}, 7, v{t}
v_lshl_add_u32 v{t+5}, v{t+3}, 7, v{t+5}
v_lshrrev_b32 v{t+3}, 3, v{t}
v_mul_u32_u24 v{t+3}, 12288, v{t+3}
v_add3_u32 v{t+5}, v{t+5}, v{t+3}, s{sM0W}
v_add_u32 v{vXR}, {xs0()*SLOT}, v{t+5}
v_xor_b32 v{vXR+1}, 64, v{vXR}
v_bfe_u32 v{t+3}, v{t+2}, 1, 1
v_and_b32 v{t+4}, 1, v{t+2}
v_lshl_add_u32 v{t+3}, v{t+4}, 1, v{t+3}
v_and_b32 v{t+4}, 4, v{t+2}
v_or_b32 v{t+3}, v{t+3}, v{t+4}
v_lshlrev_b32 v{t+3}, 4, v{t+3}
v_mul_u32_u24 v{t+4}, 384, v{t}
v_add_u32 v{vKL}, v{t+3}, v{t+4}
v_xor_b32 v{vKL+1}, 64, v{vKL}
v_mov_b32 v{vKA}, v{vKL}
v_mov_b32 v{vKA+1}, v{vKL+1}
v_lshrrev_b32 v{t+2}, 2, v0
v_mul_u32_u24 v{t+3}, 384, v{t+2}
v_bfe_u32 v{t+4}, v{t+2}, 1, 2
v_lshl_add_u32 v{t+3}, v{t+4}, 5, v{t+3}
v_and_b32 v{t+4}, 3, v0
v_lshl_add_u32 v{vVL}, v{t+4}, 3, v{t+3}
v_xor_b32 v{vVL+1}, 32, v{vVL}
v_xor_b32 v{vVL+2}, 64, v{vVL}
v_xor_b32 v{vVL+3}, 96, v{vVL}
""")
def setup_rest(p):
    t = 240
    p(f"""
s_lshl_b32 s{sTMP+1}, s{sB}, 3
s_add_u32 s{sTMP+1}, s{sTMP+1}, s{sHG}
s_lshl_b32 s96, s{sTMP+1}, 2
s_add_u32 s{sTMP+1}, s96, s{sWAVE}
s_lshl_b32 s{sTMP+1}, s{sTMP+1}, 8
s_add_u32 s{sTMP+1}, s{sTMP+1}, {FLAG_OFF}
s_lshl_b32 s{sTMP+2}, s{sB}, 2
s_add_u32 s{sTMP+2}, s{sTMP+2}, s{sHL}
s_lshl_b32 s{sTMP+2}, s{sTMP+2}, 2
s_add_u32 s97, s{sTMP+2}, s{sWAVE}
s_lshl_b32 s{sTMP+2}, s97, 8
s_add_u32 s{sTMP+2}, s{sTMP+2}, {FLAG_OFF + F2BASE}
v_and_b32 v{t+2}, 3, v0
v_lshl_add_u32 v{vF1}, v{t+2}, 3, s{sTMP+1}
v_and_b32 v{t+2}, 15, v0
v_lshl_add_u32 v{vF2}, v{t+2}, 3, s{sTMP+2}
s_add_u32 s{sTMP+1}, s{sTMP+1}, 96
s_add_u32 s{sTMP+2}, s{sTMP+2}, 192
s_mul_i32 s{sJ}, s97, {3 if ROT else 0}
s_add_u32 s{sJ}, s{sJ}, s{sHG}
s_and_b32 s{sJ}, s{sJ}, 7
s_load_dwordx2 s[{sTK1}:{sTK1+1}], s[90:91], s{sTMP+1}
s_load_dwordx2 s[{sTK2}:{sTK2+1}], s[90:91], s{sTMP+2}
s_add_u32 s{sTMP+1}, s96, s{sHL}
s_mul_i32 s{sTMP+1}, s{sTMP+1}, 393216
s_add_u32 s78, s78, s{sTMP+1}
s_addc_u32 s79, s79, 0
s_add_u32 s80, s80, s{sTMP+1}
s_addc_u32 s81, s81, 0
""")
    LG = KG.bit_length() - 1
    srd(p, sK, 78, 393216); srd(p, sV, 80, 393216)
    srd(p, sWS, 90, WS_SIZE); srd(p, sWo, 84, 6144 * 1280); srd(p, sOUT, 86, 1536 * 1280)
    for j in range(3):
        tile_rows(p, t, j)
        p(f"""
v_lshrrev_b32 v{t+7}, {LG}, v{t+3}
v_lshlrev_b32 v{t+7}, {LG+5}, v{t+7}
v_and_b32 v{t+6}, {KG-1}, v{t+3}
v_add_u32 v{t+7}, v{t+7}, v{t+6}
v_mul_u32_u24 v{t+7}, 384, v{t+7}
v_lshl_add_u32 v{t+7}, v{t+4}, 7, v{t+7}
v_subrev_u32 v{t+7}, {1024*j}, v{t+7}
v_add_u32 v{vVD+j}, v{t+7}, v{t+5}
v_bfe_u32 v{t+5}, v{t+3}, 2, 1
v_and_b32 v{t+6}, 2, v{t+3}
v_or_b32 v{t+5}, v{t+5}, v{t+6}
v_lshrrev_b32 v{t+6}, 1, v{t+3}
v_and_b32 v{t+6}, 4, v{t+6}
v_or_b32 v{t+5}, v{t+5}, v{t+6}
v_xor_b32 v{t+5}, v{t+5}, v{t+1}
v_lshl_add_u32 v{vKD+j}, v{t+5}, 4, v{t+7}
""")
    t = 232
    park = lambda r, v: p(f"v_accvgpr_write_b32 a{aPARK + PARK.index(r)}, v{v}")
    u = 224
    p(f"""
s_mul_i32 s{sTMP+1}, s{sHG}, {768*1280}
s_mul_i32 s{sTMP+2}, s{sHL}, 320
s_mul_i32 s{sTMP+3}, s{sWAVE}, {16*1280}
s_add_u32 s{sTMP+3}, s{sTMP+3}, s{sTMP+1}
s_add_u32 s{sTMP+3}, s{sTMP+3}, s{sTMP+2}
""")
    for j in range(5):
        p(f"""
v_add_u32 v{u}, {64*j}, v0
v_mul_u32_u24 v{u+1}, 205, v{u}
v_lshrrev_b32 v{u+1}, 12, v{u+1}
v_mul_u32_u24 v{u+2}, 20, v{u+1}
v_sub_u32 v{u+2}, v{u}, v{u+2}
v_lshrrev_b32 v{u+3}, 1, v{u+1}
v_and_b32 v{u+3}, 2, v{u+3}
v_xor_b32 v{u+2}, v{u+2}, v{u+3}
v_mul_u32_u24 v{u+1}, 1280, v{u+1}
v_lshl_add_u32 v{u+1}, v{u+2}, 4, v{u+1}
v_add_u32 v{u+1}, s{sTMP+3}, v{u+1}
v_subrev_u32 v{u+1}, {1024*(j%4)}, v{u+1}
""")
        park(vWOD + j, u + 1)
    p(f"""
s_lshr_b32 s{sTMP+3}, s2, 3
s_lshl_b32 s{sTMP+3}, s{sTMP+3}, 2
s_add_u32 s{sTMP+3}, s{sTMP+3}, s{sWAVE}
s_mul_i32 s{sTMP+3}, s{sTMP+3}, {60*128}
s_add_u32 s{sTMP+3}, s{sTMP+3}, s{sTMP+1}
v_lshlrev_b32 v{u}, 7, v0
v_add_u32 v{u}, s{sTMP+3}, v{u}
v_cmp_gt_u32 vcc, 60, v0
v_mov_b32 v{u+1}, {OOB}
v_cndmask_b32 v{u}, v{u+1}, v{u}, vcc
""")
    park(vPWO, u)
    p(f"""
v_mul_u32_u24 v{u}, 320, v{t+2}
v_lshl_add_u32 v{u}, v{t+4}, 3, v{u}
v_and_b32 v{u+1}, 16, v0
v_lshlrev_b32 v{u+1}, 1, v{u+1}
v_add_u32 v{u+2}, v{u}, v{u+1}
v_sub_u32 v{u+3}, v{u}, v{u+1}
""")
    park(vWOL, u + 2); park(vWOL + 1, u + 3)
    p(f"""
s_mul_i32 s96, s96, 73728
s_add_u32 s96, s96, s{sM0W}
s_mul_i32 s97, s97, {8*15360}
s_add_u32 s97, s97, {PART_OFF}
v_lshlrev_b32 v{u}, 4, v0
v_add_u32 v{u+2}, s96, v{u}
v_add_u32 v{u+3}, s97, v{u}
""")
    park(vOL, u + 2); park(vPT, u + 3)
    p(f"""
s_add_u32 s{sTMP+2}, s{sTMP+2}, s{sTMP+4}
v_mul_u32_u24 v{u}, 1280, v{t}
v_add3_u32 v{u}, v{u}, v{u+1}, s{sTMP+2}
v_lshrrev_b32 v{u+2}, 5, v0
v_lshl_add_u32 v{u}, v{u+2}, 4, v{u}
""")
    park(vOUT, u)
    p(f"v_mov_b32 v{u}, 0x3f803f80\nv_cmp_eq_u32 vcc, 0, v{t+4}\nv_cndmask_b32 v{u}, 0, v{u}, vcc")
    for r in range(4): p(f"v_accvgpr_write_b32 a{aONE+r}, v{u}")
    for i in range(4):
        p(f"s_add_u32 s{sHI+i}, s{sHL}, {i}\ns_and_b32 s{sHI+i}, s{sHI+i}, 3\ns_mul_i32 s{sHI+i}, s{sHI+i}, 3")
    SC = math.log2(math.e) / math.sqrt(192.0)
    p(f"""
s_mul_i32 s{sWW}, s{sWAVE}, 5120
s_mov_b32 s{sLTHR}, {f32(LTHR)}
s_mov_b32 s{sSC}, {f32(SC)}
s_add_u32 s{sWR}, s{sM0W}, {2*(D0+1)*SLOT}
s_mov_b32 s{sRD}, 0
s_mov_b32 s{sT}, 1
""")

def S(t, **k): return Item('S', t, **k)
def V(t, **k): return Item('V', t, **k)
def wrap0(s, inc, lim, zero="0"):
    return [S(f"s_add_u32 s{s}, s{s}, {inc}"), S(f"s_cmp_ge_u32 s{s}, {lim}\ns_cselect_b32 s{s}, {zero}, s{s}")]
def dma_tile(kind, pre, so, tag=None, post=()):
    vd, srn, pol = {'K': (vKD, sK, NT), 'V': (vVD, sV, NT), 'W': (vWD, sWq, "")}[kind]
    g = [S(x) for x in pre]
    for j in range(3):
        g.append(Item('M', f"buffer_load_dwordx4 v{vd+j}, {sr(srn)}, {so} offen offset:{1024*j} {pol} lds", tag=tag))
    return g + list(post)
def dma_kv_static(kind, i):
    so = sKK if kind == 'K' else sKOFF
    return dma_tile(kind, [f"s_add_u32 m0, s{sM0W}, {kvslot(kind,i)*SLOT}"], f"s{so}", f"{kind}{i}", wrap0(so, KG * 384, 32 * KG * 384))
def dma_w(u):
    return dma_tile('W', [f"s_add_u32 m0, s{sM0W}, {wslot(u)*SLOT}"], f"s{sWOFF}", f"W{u}",
                    wrap0(sWOFF, 32 * 12288, 640 * 12288) if not COMMON else
                    [S(f"s_add_u32 s{sWOFF}, s{sWOFF}, {32*12288}")] if u < 2 * COMMON - 1 else
                    [S(f"s_mul_i32 s{sWOFF}, s{sRD}, {64*12288}")] if u == 2 * COMMON - 1 else wrap0(sWOFF, 32 * 12288, (10 - COMMON) * 64 * 12288))
def dma_x(c):
    g = []
    for half in range(2):
        g.append(S(f"s_add_u32 m0, s{sM0W}, {(xpair(c)+half)*SLOT}"))
        for qb in range(3):
            g.append(Item('M', f"buffer_load_dwordx4 v{vXD+2*qb+half}, {sr(sX)}, s{sXOFF} offen offset:{1024*qb} lds", tag=f"X{c}"))
    if COMMON and c < COMMON - 1: return g + [S(f"s_add_u32 s{sXOFF}, s{sXOFF}, 128")]
    if COMMON and c == COMMON - 1: return g + [S(f"s_lshl_b32 s{sXOFF}, s{sRD}, 7")]
    return g + wrap0(sXOFF, 128, (10 - COMMON) * 128)
def spread_kv(its, lo, hi):
    ms = [x for x in its if x.kind == 'M']
    chain(its, lo, hi)
    for k, x in enumerate(ms):
        x.target = lo + 1 + (hi - lo) * k // 5
        w = WIN[k % len(WIN)] - 1
        x.ins = [I(f"s_waitcnt vmcnt({w})")] + x.ins; x.needA = True
    t = lo
    for x in reversed(its):
        if x.kind == 'M': t = x.target
        elif any(its.index(y) > its.index(x) for y in ms): x.target = max(lo, t - 3)
        else: x.target = hi + 1
    return its
def kv_issue(nok=False):
    dk = dma_tile('K', [f"s_mov_b32 m0, s{sWR}"], f"s{sKK}") if not nok else []
    dv = dma_tile('V', [f"s_add_u32 m0, s{sWR}, {SLOT}"], f"s{sKOFF}")
    if nok: return dv
    return dk + dv + [S(f"s_mov_b32 s{sKOFF}, s{sKK}")] + wrap0(sKK, KG * 384, 32 * KG * 384) + wrap0(sWR, 2 * SLOT, 12 * SLOT, f"s{sM0W}")
def dma_wo(G):
    sl = goff(G); i, c = gic(G)
    g = [S(f"s_add_u32 s{sWOFF}, s{sHI+i}, {c}"), S(f"s_mul_i32 s{sWOFF}, s{sWOFF}, {64*1280}")]
    for j in range(5):
        if j == 0: g.append(S(f"s_add_u32 m0, s{sWW}, {sl}"))
        if j == 4: g.append(S(f"s_add_u32 m0, s{sWW}, {sl+4096}"))
        g.append(Item('M', f"buffer_load_dwordx4 v{vWOD+j}, {sr(sWo)}, s{sWOFF} offen offset:{1024*(j%4)} lds", tag=f"G{G}"))
    return g
def xfrag(c, ks, qb): return aX + (c % NXB) * 24 + (ks * 3 + qb) * 4
def read_x(c):
    off = (xpair(c) - xs0()) * SLOT
    return [Item('L', f"ds_read_b128 {ar(xfrag(c,ks,qb))}, v{vXR+ks} offset:{off + qb*1024}") for ks in range(2) for qb in range(3)]
def flat(p, items):
    for it in items: p.cur += it.ins
def snake(mf, k): return mf[::-1] if (SNAKE and k & 1) else mf
class Pool:
    def __init__(self, size): self.n = 0; self.size = size
    def next(self):
        r = aPOOL + 4 * (self.n % self.size); self.n += 1; return r
def vunit_reads(buf, db, imm, va):
    return [f"ds_read_b64_tr_b16 {ar(buf,2)}, v{va+(db&3)} offset:{imm + (db>>2)*128}",
            f"ds_read_b64_tr_b16 {ar(buf+2,2)}, v{va+(db&3)} offset:{imm + (db>>2)*128 + 6144}"]

T = 4
RGAP = 6
class Stream:
    def __init__(self, tail=()):
        self.mf = []; self.items = []; self.resA = set()
        for u in tail: self.add_unit(u)
    def n(self): return len(self.mf)
    def add_unit(self, u):
        u['first'] = len(self.mf)
        if u.get('reads'): self.resA.add(len(self.mf) - 1)
        for k, m in enumerate(u['mf']): self.mf.append((u.get('head', []) if k == 0 else [], m))
    def reads(self, units, lo, hi, after=()):
        its = []
        tot = sum(len(u['reads']) for u in units); k = 0
        for u in units:
            g = lo + (hi - lo + 1) * k // tot
            for r in u['reads']:
                it = Item('L', r, lo=lo, hi=max(lo, min(hi, u['first'] - 5)), target=g, after=list(after) + ([(its[-1], 0)] if its else []))
                it.use = u['first']
                its.append(it); k += 1
        self.items += its
        return its
    def barrier(self, g, wait, after=()):
        w = Item('S', [x if isinstance(x, I) else I(x) for x in wait], lo=g, hi=g + 2, target=g, after=after)
        b = Item('S', "s_barrier", lo=g + 1, hi=g + 3, after=[(w, 1)])
        b.bar = BARFIX
        self.items += [w, b]
        return b
    def add(self, its): self.items += its; return its
    def emit(self, keep=0, name=""):
        mf = self.mf[:len(self.mf) - keep] if keep else self.mf
        out = pack(mf, self.items, self.resA, name)
        for it in self.items:
            if hasattr(it, 'use'):
                d = set(it.ins[0].dst)
                assert it.gap < it.use, (name, it.ins[0].text)
                for g in range(it.gap + 1, it.use):
                    assert not (d & set(self.mf[g][1].src)), ("pool WAR", name, it.ins[0].text, it.gap, g)
        return out

def qk_unit(pool, buf, kb, ds, c0, imm, k):
    pb = pool.next()
    mf = []
    for qb in range(3):
        d = sreg(buf, qb, kb)
        c = vr(d) if ds else (0 if c0 else vr(vNM + 4 * qb))
        mf.append(I(f"{MF} {vr(d)}, {ar(pb)}, {vr(qfrag(qb,ds))}, {c}"))
    return dict(reads=[f"ds_read_b128 {ar(pb)}, v{vKA+(ds&1)} offset:{imm + kb*6144 + (ds>>1)*128}"], mf=snake(mf, k))
def qk_units(pool, buf, imm, zero=()):
    return [qk_unit(pool, buf, kb, ds, kb in zero, imm, ds) for kb in range(2) for ds in range(6)]
def rs_unit(buf, zero=False):
    return dict(reads=None, mf=[I(f"{MF} {vr(vL[buf]+4*qb)}, {ar(aONE)}, {vr(vP[buf]+4*qb)}, {0 if zero else vr(vL[buf^1]+4*qb)}") for qb in range(3)])
def pv_units(pool, buf, imm, zero=False):
    units = []
    for db in range(12):
        pb = pool.next()
        z = zero and db < 12 - T
        mf = [I(f"{MF} {ar(oacc(db,qb))}, {ar(pb)}, {vr(vP[buf]+4*qb)}, {0 if z else ar(oacc(db,qb))}") for qb in range(3)]
        units.append(dict(reads=vunit_reads(pb, db, SLOT + imm, vVA), mf=snake(mf, db)))
    return units
PAIRS = [(qb, kb, h) for kb in range(2) for qb in range(3) for h in range(2)]
def softmax_items(buf, n0, n1, lo, hi, pre=None):
    ex = []; cv = []; ex0 = []
    for n in range(n0, n1):
        qb, kb, h = PAIRS[n]
        s = sreg(buf, qb, kb) + 2 * h
        e = vE + 2 * (n % NE)
        a = Item('E', f"v_exp_f32 v{e}, v{s}"); b = Item('E', f"v_exp_f32 v{e+1}, v{s+1}")
        if len(cv) >= NE: a.after.append((cv[-NE], 1))
        if pre:
            for k, x in enumerate((a, b)):
                sub = V(f"v_add_f32 v{s+k}, v{s+k}, v{vNM+4*qb}", lo=lo, hi=hi, after=[(pre, 1)])
                x.after.append((sub, 1)); ex0.append((sub, x))
        ex += [a, b]
        cv.append(V(f"v_cvt_pk_bf16_f32 v{vP[buf]+4*qb+2*kb+h}, v{e}, v{e+1}", lo=lo, hi=hi, after=[(b, 1)]))
    chain(ex, lo, hi - 1)
    for e in ex: e.hi = hi
    for k, c in enumerate(cv): c.target = ex[2 * k + 1].target + 1
    for sub, x in ex0: sub.target = max(lo, x.target - 2)
    return [s for s, _ in ex0] + ex + cv
SPLIT = 6
LTHR = 2.0 ** 40
def rowmax_text(buf, qb, d, t):
    s0, s1 = sreg(buf, qb, 0), sreg(buf, qb, 1)
    return [f"v_max3_f32 v{d}, v{s0}, v{s0+1}, v{s0+2}", f"v_max3_f32 v{t}, v{s1}, v{s1+1}, v{s1+2}",
            f"v_max3_f32 v{d}, v{d}, v{s0+3}, v{s1+3}", f"v_max_f32 v{d}, v{d}, v{t}",
            f"v_mov_b32 v{t}, v{d}", f"v_permlane32_swap_b32 v{d}, v{t}", f"v_max_f32 v{d}, v{d}, v{t}",
            f"v_mov_b32 v{t}, v{d}", f"v_permlane16_swap_b32 v{d}, v{t}", f"v_max_f32 v{d}, v{d}, v{t}"]
def rare_path(p, label, buf):
    p.reset_state()
    p(f"{label}:\ns_nop 15")
    for qb in range(3):
        d = vR + qb
        p("\n".join(rowmax_text(buf, qb, d, vR + 8)))
        p(f"v_max_f32 v{d}, 0, v{d}")
        for r in range(4): p(f"v_sub_f32 v{vNM+4*qb+r}, v{vNM+4*qb+r}, v{d}")
        for bb in (buf, buf ^ 1):
            for r in range(8): p(f"v_sub_f32 v{sreg(bb,qb,0)+r}, v{sreg(bb,qb,0)+r}, v{d}")
        p(f"v_exp_f32_e64 v{vR+4+qb}, -v{d}")
    for qb in range(3):
        for r in range(4): p(f"v_mul_f32 v{vL[buf^1]+4*qb+r}, v{vL[buf^1]+4*qb+r}, v{vR+4+qb}")
        for r in [oacc(db, qb) + r for db in range(12) for r in range(4)]:
            p(f"v_accvgpr_read_b32 v{vR+9}, a{r}\nv_mul_f32 v{vR+9}, v{vR+9}, v{vR+4+qb}\nv_accvgpr_write_b32 a{r}, v{vR+9}")
    for (qb, kb, h) in PAIRS:
        s = sreg(buf, qb, kb) + 2 * h
        p(f"v_exp_f32 v{vE}, v{s}\nv_exp_f32 v{vE+1}, v{s+1}\nv_cvt_pk_bf16_f32 v{vP[buf]+4*qb+2*kb+h}, v{vE}, v{vE+1}")
    p.cur += rs_unit(buf)['mf']
    p(f"s_nop 15\ns_setpc_b64 s[98:99]")
    p.flush()

KVPRE = ['K0', 'K1', 'V0', 'K2', 'V1', 'K3', 'V2', 'K4', 'V3']
def get_sched():
    PRO = ['X0', 'W0', 'W1', 'W2']; PRO2 = ['X1']
    QS = {0: (['W3'], None, []), 1: (['W4', 'W5'], 1, ['X2']), 2: (['W6'], None, ['X3']), 3: (['W7'], 2, ['X4']), 4: (['W8'], 3, ['X5']),
          5: (['W9', 'K0', 'K1'], None, []), 6: (['W10'], 4, ['X6']), 7: (['W11'], 5, ['X7']), 8: (['W12', 'V0', 'K2'], None, []),
          9: (['W13'], 6, ['X8']), 10: (['W14'], 7, ['X9']), 11: (['W15'], None, []), 12: (['W16'], 8, []), 13: (['W17'], 9, []),
          14: (['W18'], None, []), 15: (['W19'], None, []), 16: (['V1', 'K3', 'V2', 'K4', 'V3'], None, [])}
    if SCHED == 1:
        QS[5] = (['W9'], None, []); QS[8] = (['W12', 'K0', 'K1'], None, []); QS[11] = (['W15', 'V0', 'K2'], None, [])
    if SCHED == 2:
        QS[5] = (['W9'], None, []); QS[8] = (['W12'], None, []); QS[11] = (['W15', 'K0', 'K1'], None, [])
        QS[15] = (['W19', 'V0', 'K2'], None, [])
    if SCHED == 3:
        QS[13] = (['W17'], 9, ['V1', 'K3']); QS[16] = (['V2', 'K4', 'V3'], None, [])
    if SCHED in (4, 5, 6):
        PRO = ['X0', 'W0', 'W1']; PRO2 = ['X1']
        if SCHED == 4:
            QS.update({0: (['W2', 'W3'], None, []), 1: (['X2'], 1, ['W4']), 2: (['W5', 'X3'], None, ['W6']), 3: (['W7'], 2, ['X4']), 4: (['W8'], None, []),
                       5: (['W9'], 3, ['X5']), 6: (['W10'], 4, ['X6']), 7: (['W11'], 5, ['X7']), 8: (['W12'], None, [])})
        if SCHED == 5:
            PRO2 = []
            QS.update({0: (['X1', 'W2'], None, ['W3']), 1: (['X2'], 1, ['W4']), 2: (['W5', 'X3'], None, ['W6']), 3: (['W7'], 2, ['X4']), 4: (['W8'], None, []),
                       5: (['W9'], 3, ['X5']), 6: (['W10'], 4, ['X6']), 7: (['W11'], 5, ['X7']), 8: (['W12'], None, [])})
        if SCHED == 6:
            PRO2 = ['X1', 'W2']
            QS.update({0: (['W3', 'X2'], None, ['W4']), 1: (['W5'], 1, ['X3']), 2: (['W6'], None, []), 3: (['W7'], 2, ['X4']), 4: (['W8'], 3, ['X5']),
                       5: (['W9'], None, []), 6: (['W10'], 4, ['X6']), 7: (['W11'], 5, ['X7']), 8: (['W12'], None, [])})
    if SCHED == 7:
        QS.update({5: (['W9'], 4, ['X6']), 6: (['W10'], 5, ['X7']), 7: (['W11'], 6, ['X8']), 8: (['W12'], 7, ['X9']), 9: (['W13'], 8, []), 10: (['W14'], 9, []),
                   11: (['W15'], None, []), 12: (['W16'], None, []), 13: (['W17'], None, [])})
    if SCHED == 8:
        QS.update({5: (['W9'], None, []), 6: (['W10'], 4, ['X6']), 7: (['W11'], 5, ['X7']), 8: (['W12'], 6, ['X8']), 9: (['W13'], 7, ['X9']), 10: (['W14'], None, []),
                   11: (['W15'], 8, []), 12: (['W16'], 9, []), 13: (['W17'], None, [])})
    if SCHED == 9:
        QS.update({4: (['W8'], None, []), 5: (['W9'], 3, ['X5']), 6: (['W10'], None, []), 7: (['W11'], 4, ['X6']), 8: (['W12'], None, []), 9: (['W13'], 5, ['X7']), 10: (['W14'], None, []),
                   11: (['W15'], 6, ['X8']), 12: (['W16'], 7, ['X9']), 13: (['W17'], None, []), 14: (['W18'], 8, []), 15: (['W19'], 9, [])})
    if SCHED == 10:
        assert LAYOUT == 2 and D0 <= 3
        QS.update({5: (['W9'], 4, ['X6']), 6: (['W10'], 5, ['X7']), 7: (['W11'], 6, ['X8']), 8: (['W12'], 7, ['X9']), 9: (['W13'], 8, ['W14', 'W15']), 10: (['W16'], 9, ['W17']),
                   11: (['W18'], None, []), 12: (['W19'], None, []), 13: ([], None, []), 14: ([], None, []), 15: ([], None, [])})
    if SCHED == 11:
        assert LAYOUT == 2 and D0 <= 3
        QS.update({5: (['W9', 'W10'], None, []), 6: (['W11'], 4, ['X6']), 7: (['W12'], 5, ['X7']), 8: (['W13'], 6, ['X8']), 9: ([], 7, ['X9']), 10: ([], 8, ['W14', 'W15']),
                   11: (['W16'], 9, ['W17']), 12: (['W18', 'W19'], None, []), 13: ([], None, []), 14: ([], None, []), 15: ([], None, [])})
    if EARLYQ:
        PRO, PRO2 = EARLYQ[0], EARLYQ[1]; QS.update(EARLYQ[2])
    keep = KVPRE[:1 + 2 * D0]
    for u in QS: QS[u] = tuple([n for n in part if n[0] not in 'KV' or n in keep] if isinstance(part, list) else part for part in QS[u])
    if QKV:
        for u in QS: QS[u] = tuple([n for n in part if n[0] not in 'KV'] if isinstance(part, list) else part for part in QS[u])
        for u, l in QKV.items(): QS[u] = (QS[u][0] + l,) + QS[u][1:]
    return PRO, PRO2, QS
QKV = {11: ['K0'], 12: ['K1'], 14: ['V0'], 15: ['K2'], 16: ['V1', 'K3', 'V2', 'P0']}
def pf_wo(v): return [Item('M', f"buffer_load_dword v{vDUM}, v{v}, {sr(sWo)}, 0 offen", tag="dummy")]
def issue(name):
    if name == 'P0': return [V(f"v_accvgpr_read_b32 v1, a{aPARK + PARK.index(vPWO)}")] + pf_wo(1)
    k, i = name[0], int(name[1:])
    return dma_x(i) if k == 'X' else dma_w(i) if k == 'W' else dma_kv_static(k, i)
def check_sched(PRO, PRO2, QS):
    occ = {}; xread = {0: -1}; qbar = set(QBAR or range(1, 17)); when = {}
    for u, (e, xr, l) in QS.items():
        if xr is not None: xread[xr] = u
    def put(n, u, late):
        k, i = n[0], int(n[1:])
        if k == 'P': return
        for s in ([xpair(i), xpair(i) + 1] if k == 'X' else [wslot(i)] if k == 'W' else [kvslot(k, i)]):
            o = occ.get(s)
            if o:
                k2, i2 = o[0], int(o[1:])
                lb = max([b for b in qbar if b <= u] + [0])
                if k2 == 'W': assert i2 <= lb - 1, (n, u, o)
                elif k2 == 'X': assert xread[i2] < lb or (xread[i2] == u and late), (n, u, o)
                else: assert False, (n, u, o)
            occ[s] = n
    seq = []
    for n in PRO: put(n, -2, False); seq.append(n)
    for n in PRO2: put(n, -1.5, True); seq.append(n)
    for u in sorted(QS):
        e, xr, l = QS[u]
        for n in e: put(n, u, False); seq.append(n); when[n] = u
        for n in l: put(n, u, True); seq.append(n); when[n] = u
        if xr is not None: assert min(xr * 2, 20 - NDB) > u and (xr - NXB) * 2 + 1 < u, (xr, u)
    for i in range(1, 20): assert when.get(f'W{i}', -1) < max(b for b in qbar if b <= min(i, 16)), i
    assert when['K0'] < max(qbar)
    assert [n for n in seq if n[0] == 'W'] == [f"W{i}" for i in range(20)]
    assert [n for n in seq if n[0] == 'X'] == [f"X{i}" for i in range(10)]
    assert [n for n in seq if n[0] in 'KV'] == KVPRE[:1 + 2 * D0] and 'K0' not in QS[16][0]

def front(p, pool):
    assert NDB == 4
    PRO, PRO2, QS = get_sched()
    check_sched(PRO, PRO2, QS)
    q = Prog(); setup_rest(q)
    ntok = max(k for k, x in enumerate(q.cur) if x.kind == 'smem') + 1
    for n in PRO[1:]: flat(p, issue(n))
    p.cur += q.cur[:ntok]
    p.cur += stp('s2')
    setup_reads(p)
    for uu in range(4): p(f"v_add_u32 v{vVA+uu}, {wslot(0)*SLOT}, v{vVL+uu}")
    late = []
    for x in q.cur[ntok:]:
        if x.op in ('s_addc_u32', 'v_cndmask_b32'): late[-1].ins.append(x)
        else: late.append(Item('V' if x.kind == 'valu' else 'S', [x]))
    if not LATESET: flat(p, late); late = []
    p("WAITVM X0"); p.cur += stp('X0')
    flat(p, read_x(0))
    for n in PRO2: flat(p, issue(n))
    p(f"""
s_add_u32 s{sTK1}, s{sTK1}, {TOKC[0]}
s_addc_u32 s{sTK1+1}, s{sTK1+1}, {TOKC[1]}
s_add_u32 s{sTK2}, s{sTK2}, {TOKC[0]}
s_addc_u32 s{sTK2+1}, s{sTK2+1}, {TOKC[1]}
""")
    p("WAITVM W0\ns_waitcnt lgkmcnt(0)\ns_barrier"); p.cur += stp('u0')
    st = Stream()
    if late:
        chain(late, 0, LATEHI)
        for x in late: x.dense = True; x.target = 0
        st.add(late)
        kvset = [x for x in late if set(x.ins[0].dst) & {('v', vKD + 2)}][0]
    NU = 20 - NDB
    def wunit(u, db, va, imm, k):
        buf = pool.next()
        mf = [I(f"{MF} {vr(qacc(db,qb))}, {ar(buf)}, {ar(xfrag(u>>1,u&1,qb))}, {vr(qacc(db,qb)) if u else 0}") for qb in range(3)]
        return dict(reads=vunit_reads(buf, db, imm, va), mf=snake(mf, k))
    tiles = [[wunit(u, db, vVA if u % 2 == 0 else vVB, 0, db) for db in range(12)] for u in range(NU)]
    sa = {16: (vVA, 0), 17: (vVA, SLOT), 19: (vVA, 2 * SLOT), 18: (vVB, 0)} if LAYOUT == 0 else {u: (vVA, (u - 16) * SLOT) for u in range(16, 20)}
    sup = [wunit(u, db, sa[u][0], sa[u][1], k) for db in range(12) for k, u in enumerate((16, 17, 19, 18))]
    tiles.append(sup)
    qk0 = [qk_unit(pool, 0, kb, ds, True, 0, kb) for ds in range(6) for kb in range(2)]
    qk1 = qk_units(pool, 1, 2 * SLOT, zero=(0,))
    rs = rs_unit(0, zero=True)
    pv = pv_units(pool, 0, 2 * SLOT, zero=True)
    for tl in tiles + [qk0, qk1, [rs], pv]:
        for un in tl: st.add_unit(un)
    n = st.n() - 3 * T
    prevdma = None
    qbar = set(QBAR or range(1, NU + 1))
    assert 1 in qbar
    for u in range(NU + 1):
        g0 = 36 * u - 3 * T
        span = 36 if u < NU else 36 * NDB
        if u == 0:
            for un in tiles[0][:T]:
                for r in un['reads']: p(r)
            rd = st.reads(tiles[0][T:], 0, g0 + 36 - RGAP)
            bar = None; glo = 0
        else:
            if u in qbar:
                cover = min([b for b in qbar if b > u] + [20]) - 1
                bar = st.barrier(g0, [f"WAITVM W{cover}"] + (["WAITVM K0"] if u == max(qbar) else []) + ["s_waitcnt lgkmcnt(0)"] + stp(f"u{u}"))
                aft = [(bar, 0)]
            else:
                bar = None; aft = [(rd[-1], 0)]
                if stp(f"u{u}"): st.add([Item('S', stp(f"u{u}"), lo=g0, hi=g0 + 3)])
            if u == NU and LAYOUT == 0:
                vb = chain([V(f"v_add_u32 v{vVB+uu}, {wslot(18)*SLOT}, v{vVL+uu}") for uu in range(4)], g0 - 4, g0 + 1)
                vb[0].after.append((rd[-1], 1)); st.add(vb)
                for x in vb: x.hi = g0 + 4
            rd = st.reads(tiles[u], g0 + 1, g0 + span - (RGAP if (u + 1) in qbar and u < NU else 0), aft)
            if u == NU and LAYOUT == 0:
                for x in rd[6:8]: x.after.append((vb[-1], 1))
            glo = g0 + 2
        if u < NU:
            va = vVA if (u + 1) % 2 == 0 else vVB
            st.add(chain([V(f"v_add_u32 v{va+uu}, {wslot(u+1)*SLOT}, v{vVL+uu}") for uu in range(4)], glo + 6, g0 + 30))
        e, xr, l = QS[u]
        f1 = [g for nm in e for g in issue(nm)]
        nx = [g for nm in l for g in issue(nm)]
        seq = []
        if f1:
            chain(f1, glo, glo + (12 if u < NU else KVSPAN))
            if bar: f1[0].after.append((bar, 1))
            if late and 'K0' in e: f1[0].after.append((kvset, 1))
            if late and 'P0' in e: f1[0].after.append((late[-1], 1))
            seq += f1
        if xr is not None:
            rx = [S(f"WAITVM X{xr}")] + read_x(xr)
            chain(rx, g0 + 14, g0 + 22)
            seq += rx
            if nx: nx = [V(f"v_accvgpr_read_b32 v{vT0}, a{xfrag(xr,1,2)}", after=[(rx[-1], 4)])] + nx
        if nx:
            chain(nx, g0 + 24, g0 + 35); seq += nx
        for k in range(len(seq)):
            pvs = seq[k - 1] if k else prevdma
            if pvs is not None and not any(a is pvs for a, _ in seq[k].after): seq[k].after.append((pvs, 1))
            seq[k].hi = g0 + span + 14 if seq[k].kind != 'L' else g0 + 30
        if seq: prevdma = seq[-1]
        st.add(seq)
    wlast = rd[-1]
    assert oacc(12 - T, 0) == xfrag(4, 0, 0)
    st.add(chain([V(f"v_accvgpr_write_b32 a{oacc(12-T,0)+r}, 0") for r in range(12 * T)], 36 * 12 + 4, 36 * 16 - 20))
    cprev = None
    for s in range(6):
        its = []
        for qb in range(3):
            a, b, q = qacc(2 * s, qb), qacc(2 * s + 1, qb), qfrag(qb, s)
            its += [V(f"v_mul_f32 v{r}, s{sSC}, v{r}") for r in list(range(a, a + 4)) + list(range(b, b + 4))]
            its += [V(f"v_cvt_pk_bf16_f32 v{q+k}, v{r}, v{r+1}") for k, r in enumerate((a, a + 2, b, b + 2))]
        for qb in range(3):
            q = qfrag(qb, s)
            its += [V(f"v_permlane16_swap_b32 v{q}, v{q+2}"), V(f"v_permlane16_swap_b32 v{q+1}, v{q+3}")]
        lo = sup[8 * s + 7]['first'] + 5
        dl = qk0[2 * s]['first'] - 2 if s else qk0[0]['first'] - 2
        chain(its, lo, min(lo + 26, dl), 0)
        for x in its: x.hi = dl; x.dense = True; x.target = lo
        if cprev: its[0].after.append((cprev, 0))
        cprev = its[-1]; st.add(its)
    q0 = qk0[0]['first']
    kr0 = st.reads(qk0, q0 - 11, q0 + 14, [(wlast, 0)])
    gx = q0 + 20
    barx = st.barrier(gx, ["WAITVM V0", "s_waitcnt lgkmcnt(0)"] + stp('Qend'), after=[(kr0[-1], 1), (prevdma, 1)])
    kr1 = st.reads(qk1, gx + 1, qk1[0]['first'] + 18, [(barx, 0)])
    va = chain([V(f"v_mov_b32 v{vVA+u}, v{vVL+u}") for u in range(4)], q0, q0 + 20); va[0].after.append((wlast, 1)); st.add(va)
    for x in va: x.hi = qk1[6]['first']
    st.reads(pv, kr1[-1].target + 2, n - 12, [(kr1[-1], 0), (va[-1], 1)])
    dm = chain(kv_issue(), qk0[10]['first'], qk0[10]['first'] + 14); dm[0].after.append((barx, 1)); st.add(dm)
    for x in dm: x.hi = n - 8
    lo = qk1[0]['first'] + 3; dl = qk1[6]['first'] - 2
    cols = [[V(t) for t in rowmax_text(0, qb, vR + qb, vR + 4 + qb)] for qb in range(3)]
    rm = [cols[qb][k] for k in range(10) for qb in range(3)]
    rm += [V(f"v_sub_f32 v{vNM+4*qb+r}, 0, v{vR+qb}") for r in range(4) for qb in range(3)]
    chain(rm, lo, dl, 0); st.add(rm)
    for x in rm: x.dense = True; x.target = lo
    st.add(softmax_items(0, 0, 12, lo + 10, rs['first'] - 2, pre=rm[32]))
    st.add(softmax_items(1, 0, SPLIT, pv[0]['first'] + 1, n - 1, pre=rm[-1]))
    up = wrap0(sRD, 4 * SLOT, 12 * SLOT) + [V(f"v_add_u32 v{vKA+u}, s{sRD}, v{vKL+u}") for u in range(2)]
    up[0].after += [(kr1[-1], 1), (dm[-1], 1)]
    st.add(chain(up, pv[0]['first'], n - 2))
    p.cur += st.emit(3 * T, name="front")
    return [dict(mf=u['mf']) for u in pv[12 - T:]]

def o_store(s):
    return [S(f"s_add_u32 s{sXOFF}, s{sKOFF}, {s*12288}")] + [
        Item('M', f"buffer_store_dwordx4 {bfrag(s,qb)}, v{vOL}, {sr(sWS)}, s{sXOFF} offen offset:{1024*qb} sc1", tag=f"OST{s>>1}") for qb in range(3)]
def o_conv(s, qb):
    t = 32 + 8 * ((s * 3 + qb) % 3); d = vQ + (s * 3 + qb) * 4
    its = [V(f"v_accvgpr_read_b32 v{t+4*h+r}, a{oacc(2*s+h,qb)+r}") for h in range(2) for r in range(4)]
    its += [V(f"v_mul_f32 v{t+r}, v{t+r}, v{vRCS[qb]}") for r in range(8)]
    its += [V(f"v_cvt_pk_bf16_f32 v{d+r}, v{t+2*r}, v{t+2*r+1}") for r in range(4)]
    return its

def check_items(cur, lo, hi):
    mx = V(f"v_max3_f32 v{vCK}, v{vL[cur]}, v{vL[cur]+4}, v{vL[cur]+8}", lo=min(lo, hi), hi=hi)
    return [mx, V(f"v_cmp_nge_f32 vcc, s{sLTHR}, v{vCK}", after=[(mx, 0)], hi=hi)]
def rare_head(p, cur):
    ret = p.newlabel("L_ret"); tr = p.newlabel("L_tramp")
    TRAMPS.append((tr, ret, cur))
    return L(f"s_cbranch_vccnz {tr}\n{ret}:")
def attention(p, pool, tail):
    def step(t_par, tail, mode, vm, extra=(), endi=(), final=False):
        cur, nxt = t_par, t_par ^ 1
        imm = 0 if t_par else 2 * SLOT
        st = Stream(tail)
        qk = qk_units(pool, nxt, imm)
        pv = pv_units(pool, cur, imm)
        rs = rs_unit(cur)
        pv[0]['head'] = rare_head(p, cur)
        for u in qk[:9] + [rs] + qk[9:] + pv: st.add_unit(u)
        n = st.n() - 3 * T
        bar = st.barrier(0, [f"s_waitcnt vmcnt({vm}) lgkmcnt(0)"])
        kr = st.reads(qk, 1, 33 if not final else 28, [(bar, 0)])
        aft = [(bar, 0), (kr[-1], 0)]
        if t_par:
            va = chain([V(f"v_add_u32 v{vVA+u}, s{sRD}, v{vVL+u}") for u in range(4)], 0, 20)
            st.add(va); aft.append((va[-1], 1))
        vrd = st.reads(pv, kr[-1].target + 2, n - (12 if not final else 20), aft)
        if final:
            up = wrap0(sRD, 4 * SLOT, 12 * SLOT) + [V(f"v_add_u32 v{vVA+u}, s{sRD}, v{vVL+u}") for u in range(4)]
            up[2].after.append((vrd[-1], 1))
            st.add(chain(up, n - 24, n - 1))
        elif not t_par:
            up = wrap0(sRD, 4 * SLOT, 12 * SLOT) + [V(f"v_add_u32 v{vKA+u}, s{sRD}, v{vKL+u}") for u in range(2)]
            up[0].after += [(kr[-1], 1)]
            st.add(chain(up, rs['first'], n - 4))
        dm = []
        if mode == 'A':
            dm = chain(kv_issue(), 2, DMAHI) if not WIN else spread_kv(kv_issue(), 2, WHI)
            for x in dm: x.hi = n - (8 if not WIN else 4)
        if extra:
            fx = [x for x in extra if getattr(x, 'fixed', False)]; fr = [x for x in extra if not getattr(x, 'fixed', False)]
            if fr:
                chain(fr, DMAHI + 2 if fx else 2, 68 if fx else (56 if not final else 30))
                if fx: fr[0].after.append((fx[-1], 1))
            dm = fx + fr
            for x in dm: x.hi = n - 1
        if dm: dm[0].after.append((bar, 1))
        st.add(dm)
        st.add(softmax_items(cur, SPLIT, 12, 0, rs['first'] - 2))
        pf = pv[0]['first']
        st.add(check_items(cur, rs['first'] + 6, pf - 1))
        st.add(softmax_items(nxt, 0, SPLIT if not final else SP30, pf + (1 if not final else 0), n - 1))
        if endi: st.add(chain(list(endi), n - 3, n - 1, 0))
        return st.emit(3 * T, name=mode), [dict(mf=u['mf']) for u in pv[12 - T:]]
    txt = lambda tl: [[i.text for i in u['mf']] for u in tl]
    global WIN
    VMA = VMLIM if not WIN else 6 * (D0 - 1)
    tr = []
    if TRACE: tr = L(f"s_memrealtime s[84:85]\ns_waitcnt lgkmcnt(0)\ns_mov_b32 m0, s{sT}\nv_writelane_b32 v174, s84, m0")
    global WHI
    for k, (tend, w, wh) in enumerate(LOOPS or [(27, WIN, WHI)]):
        WIN = w; WHI = wh
        lp = f"L_attA{k}"
        b1, tail1 = step(1, tail, 'A', VMA)
        b2, tail2 = step(0, tail1, 'A', VMA, endi=[S(f"s_add_u32 s{sT}, s{sT}, 2"), S(f"s_cmp_lt_u32 s{sT}, {tend}")])
        assert txt(tail2) == txt(tail) and VMLIM <= 6 * (D0 - 1) and tend % 2 == 1
        p.loop(L(f"{lp}:") + [I(x.text) for x in tr] + b1 + b2 + L(f"s_cbranch_scc1 {lp}"))
    assert tend == 27
    if TRACE:
        p(f"s_add_u32 s96, s90, {STAMP_OFF + 65536}\ns_addc_u32 s97, s91, 0"); srd(p, 84, 96, 1 << 20)
        p(f"s_lshl_b32 s{sTMP}, s2, 2\ns_add_u32 s{sTMP}, s{sTMP}, s{sWAVE}\ns_lshl_b32 s{sTMP}, s{sTMP}, 9\nv_lshlrev_b32 v{vT0}, 3, v0")
        p(f"buffer_store_dwordx2 v[174:175], v{vT0}, s[84:87], s{sTMP} offen")
    p.cur += stp('Lend')
    p("L_att27:")
    cnt = lambda its: sum(1 for x in its if x.kind == 'M')
    log = [pr for pr in range(27, 27 + D0) for _ in range(6)]
    nxt = 27 + D0
    tl = tail
    for t in range(27, 31):
        vm = len(log) - 1 - max(k for k, x in enumerate(log) if x == t)
        lastkv = max(k for k, x in enumerate(log) if x >= 0)
        if not WIN and 'kv' in PLAN[t]: vm = min(vm, VMLIM + len(log) - 1 - lastkv)
        ex = []
        for a in PLAN[t]:
            if a in ('kv', 'KV'): its = kv_issue(nok=(nxt == 31)); log += [nxt] * cnt(its); nxt += 1
            else:
                if a == 'r': its = [V(f"v_accvgpr_read_b32 v{r}, a{aPARK+k}") for k, r in enumerate(PARK)]
                elif a == 'p': its = pf_wo(vPWO)
                elif a == 't':
                    its = [S(f"s_mul_i32 s{sTMP+2}, s{sHL}, 73728"), Item('M', f"buffer_load_dword v{vDUM}, v{vOL}, {sr(sWS)}, s{sTMP+2} offen sc1", tag="dummy"),
                           S(f"s_mul_i32 s{sTMP+2}, s{sHG}, 15360"), Item('M', f"buffer_load_dword v{vDUM}, v{vPT}, {sr(sWS)}, s{sTMP+2} offen sc1", tag="dummy")]
                elif a == 'u':
                    its = [Item('M', f"buffer_load_dword v{vDUM}, v{vOUT}, {sr(sOUT)}, 0 offen sc1", tag="dummy")]
                elif a == 'l': its = [Item('M', f"buffer_load_dword v{vDUM}, v{vF1}, {sr(sWS)}, 0 offen offset:128 sc1", tag="dummy")]
                else:
                    assert t >= {0: 28, 1: 28, 2: 29, 3: 29, 4: 30, 5: 31, 6: 31}[a]
                    its = dma_wo(a)
                log += [-1] * cnt(its)
            if a == 'kv':
                if WIN:
                    sv = WIN; WIN = TWIN or WIN
                    spread_kv(its, 2, 62 if len(PLAN[t]) == 1 or cnt(its) == 3 else 40); WIN = sv
                else: chain(its, 2, DMAHI)
                for x in its: x.fixed = True
            ex += its
        ins, tl = step(t & 1, tl, 'P', min(vm, 63), ex, final=(t == 30)); p.cur += ins
    assert nxt == 32
    return tl, len(log) - 1 - max(k for k, x in enumerate(log) if x == 31)

def set_flag(vfl, sidx, off=0, local=False, vt=None):
    vt = vt or vTK
    st = f"buffer_store_dwordx2 v[{vt}:{vt+1}], v{vfl}, {sr(sWS)}, 0 offen offset:"
    return L(f"s_lshl_b64 exec, 1, s{sidx}\n" + (f"{st}{off+128}\n" if local else "") + f"{st}{off} sc1\ns_mov_b64 exec, -1")
def spin(name, voff, tk, off):
    one = lambda o: f"""buffer_load_dwordx2 v[{vFLV}:{vFLV+1}], v{voff}, {sr(sWS)}, 0 offen offset:{o} sc1
s_waitcnt vmcnt(0)
v_cmp_ne_u64 vcc, s[{tk}:{tk+1}], v[{vFLV}:{vFLV+1}]
s_cbranch_vccz L_spinr{name}
"""
    OUTL.append(f"""L_spin{name}:
s_mov_b32 s{sTMP}, 0x10000
L_poll{name}:
""" + (one(off + 128) * NLOC if LOCAL else "") + one(off) + f"""s_sub_u32 s{sTMP}, s{sTMP}, 1
s_cmp_lg_u32 s{sTMP}, 0
s_cbranch_scc1 L_poll{name}
s_branch L_spinr{name}
""")
def bump_epoch(p, voff, tk, sidx, off):
    ne = p.newlabel("L_ne")
    p(f"s_cmp_lg_u32 s{sidx}, 0\ns_cbranch_scc1 {ne}\nv_mov_b32 v{vFLV}, s{tk}\nv_mov_b32 v{vFLV+1}, s{tk+1}\ns_mov_b64 exec, 1")
    p.flush()
    p.raw(f"buffer_store_dwordx2 v[{vFLV}:{vFLV+1}], v{voff}, {sr(sWS)}, 0 offen offset:{off} sc1")
    p(f"s_mov_b64 exec, -1\ns_nop 1\n{ne}:")
def load_g(G):
    i, c = gic(G)
    g = [S(f"s_add_u32 s{sXOFF}, s{sHI+i}, {c}"), S(f"s_mul_i32 s{sXOFF}, s{sXOFF}, 24576")]
    for ks in range(2):
        if ks: g.append(S(f"s_add_u32 s{sXOFF}, s{sXOFF}, 12288"))
        g += [Item('M', f"buffer_load_dwordx4 {bfrag(2*G+ks,qb)}, v{vOL}, {sr(sWS)}, s{sXOFF} offen offset:{1024*qb} sc1") for qb in range(3)]
    return g

def oproj(p, pool, tail, vm31):
    NEXTG = max(a for v in PLAN.values() for a in v if isinstance(a, int)) + 1
    st = Stream(tail[:2])
    rs = rs_unit(1); st.add_unit(rs)
    for u in tail[2:]: st.add_unit(u)
    apv = pv_units(pool, 1, 0)
    apv[0]['head'] = rare_head(p, 1)
    for u in apv: st.add_unit(u)
    Z = st.n()
    def unit(G, ks, nb, va, imm):
        u = 2 * G + ks; pb = pool.next(); a = va + (nb & 1)
        rd = [f"ds_read_b64_tr_b16 {ar(pb,2)}, v{a} offset:{imm+ks*10240+nb*32}", f"ds_read_b64_tr_b16 {ar(pb+2,2)}, v{a} offset:{imm+ks*10240+nb*32+5120}"]
        mf = [I(f"{MF} {vr(cacc(nb,qb))}, {ar(pb)}, {bfrag(u,qb)}, {vr(cacc(nb,qb)) if u else 0}") for qb in range(3)]
        return dict(reads=rd, mf=snake(mf, pool.n))
    def seta(va, off): return [V(f"v_add_u32 v{va+k}, {off}, v{vWOL+k}") for k in range(2)]
    NG = 6
    assert GS >= 4
    def un2(G, ks, nb): return unit(G, ks, nb, vWA[2 + (G - NG) // 3], ((G - NG) % 3) * GSZ) if G >= NG else unit(G, ks, nb, vWA[G & 1], 0)
    assert all(goff(G + 1) == goff(G) + GSZ for G in range(NG, 11))
    U = [[unit(G, ks, nb, vWA[G & 1], 0) for ks in range(2) for nb in range(6 if G >= GS else 10)] for G in range(NG)]
    NL = 12 - NBA
    A = [[un2(G, ks, nb) for ks in range(2) for nb in range(6 if G >= GS else 10)] for G in range(6, NL)]
    F = [[un2(G, ks, nb) for G in range(NL if nb < 6 else GS, 12) for ks in range(2)] for nb in range(10)]
    tiles = U + A + [[u for nb in range(10) for u in F[nb]]]
    if ST: U[0][0]['head'] = stp('Aend')
    for tl in tiles:
        for u in tl: st.add_unit(u)
    bar0 = st.barrier(0, ["WAITVM G0", f"s_waitcnt vmcnt({vm31}) lgkmcnt(0)"])
    pf = apv[0]['first']
    vrd = st.reads(apv, 1, pf + 14, [(bar0, 0)])
    st.add(softmax_items(1, SP30, 12, 0, rs['first'] - 1))
    st.add(check_items(1, rs['first'] + 5, pf - 1))
    sa0 = chain(seta(vWA[0], goff(0)) + [V(f"v_mov_b32 v{vTK}, s{sTK1}"), V(f"v_mov_b32 v{vTK+1}, s{sTK1+1}")], rs['first'], pf - 1); st.add(sa0)
    for x in sa0: x.hi = pf + 12
    rc = chain([S(f"s_mul_i32 s{sKOFF}, s{sHL}, 73728"), S(f"s_mul_i32 s{sT}, s{sHG}, 15360")] + [Item('E', f"v_rcp_f32 v{vRCS[qb]}, v{vL[1]+4*qb}") for qb in range(3)], pf, pf + 6)
    for x in rc: x.hi = pf + 10
    st.add(rc)
    mem = []
    def addmem(its, lo, hi, after=None):
        chain(its, lo, hi)
        for x in its: x.hi = 10 ** 9
        if after: its[0].after.append(after)
        if mem: its[0].after.append((mem[-1], 1))
        mem.extend(its); st.add(its)
    wit = {}
    for k, G in enumerate(PRE31):
        addmem(dma_wo(G), 4 + 10 * k, 12 + 10 * k, (bar0, 1)); wit[G] = mem[-1]
        for x in mem: x.hi = pf + 9
    prev = rc[-1]; conv = {}
    for sx in range(6):
        stv = o_store(sx)
        for qb in range(3):
            its = o_conv(sx, qb)
            lo = min(apv[2 * sx + 1]['first'] + 6, Z + 2)
            if sx < NEO:
                k = sx * 3 + qb; a = apv[1]['first'] + 6
                dl = max(lo, a + (Z - 3 - a) * (k + 1) // (3 * NEO))
            else: dl = min(Z + 30 * sx - 3, Z + CDL * (3 * (sx - NEO) + qb + 1))
            chain(its, lo, dl, 0)
            for x in its: x.dense = True; x.target = lo
            its[0].after.append((prev, 1 if prev.kind != 'V' else 0)); prev = its[-1]; st.add(its)
            conv[sx, qb] = its[-1]
            if sx < NEO:
                o = ([stv[0]] if qb == 0 else []) + [stv[1 + qb]]
                o[-1].after.append((its[-1], 1)); addmem(o, lo, dl + 1)
                for x in o: x.hi = dl + 1
                o[-1].target = dl + 1
    st.add(chain(seta(vWA[2], goff(6)) + seta(vWA[3], goff(9)) + [V(f"v_mov_b32 v{vTK2}, s{sTK2}"), V(f"v_mov_b32 v{vTK2+1}, s{sTK2+1}"),
        S(f"s_cmp_ge_u32 s{sJ}, 4\ns_cselect_b32 s{sTMP+2}, 8, 0"), S(f"s_cmp_eq_u32 s{sJ}, 0\ns_cselect_b32 s{sTMP+2}, -8, s{sTMP+2}" if TRI else f"s_mov_b32 s{sTMP+2}, 8"),
        V(f"v_and_b32 v{vF2R}, 8, v0"), V(f"v_mul_i32_i24 v{vF2R}, s{sTMP+2}, v{vF2R}"), V(f"v_add_u32 v{vF2R}, v{vF2R}, v{vF2}")], Z + 180, Z + 280))
    bars = {0: bar0}
    for k, tl in enumerate(tiles):
        g0 = tl[0]['first'] - 3 * T
        last = tiles[k + 1][0]['first'] - 3 * T - (RGAP if k < 4 else 0) if k + 1 < len(tiles) else st.n() - 14
        if k == 0: rdl = st.reads(U[0], g0 + 1, last, [(vrd[-1], 0), (sa0[1], 1)])
        else:
            bars[k] = st.barrier(g0, [f"WAITVM G{k if k < NL else 11}"] + (["s_waitcnt lgkmcnt(0)"] if k <= 4 else []) + stp(f"G{k}"))
            rdl = st.reads(tl, g0 + 1, last, [(bars[k], 0), (rdl[-1], 0)])
        if k + 1 < NG: st.add(chain(seta(vWA[(k + 1) & 1], goff(k + 1)), g0 + 14, g0 + 30))
    pv = {0: 2, 1: 4, 2: 8}
    for pos, act in OCH:
        k, n = act[0], int(act[1:]); pos += Z
        if k == 'W':
            if n >= NEXTG and n not in wit:
                addmem(dma_wo(n), pos, pos + SPW, (bars[0 if n < 7 else max(n - 7, 1)], 1)); wit[n] = mem[-1]
        elif k == 'F': addmem([Item('M', [I(f"WAITVM OST{n}")] + stp(f"F{n}") + set_flag(vF1, sHL, 32 * n, LOCAL))], pos, pos)
        elif k == 'P': addmem([Item('M', f"buffer_load_dwordx2 v[{pv[n]}:{pv[n]+1}], v{vF1}, {sr(sWS)}, 0 offen offset:{32*n + (128 if LOCAL else 0)} sc1")], pos, pos)
        elif k == 'C':
            addmem([V(f"v_cmp_ne_u64 vcc, s[{sTK1}:{sTK1+1}], v[{pv[n]}:{pv[n]+1}]")], pos, pos)
            addmem([Item('S', stp(f"C{n}a") + L(f"s_cbranch_vccnz L_spin{n}\nL_spinr{n}:") + stp(f"C{n}b"))], pos + 3, pos + 3)
            spin(n, vF1, sTK1, 32 * n)
        elif k == 'B': addmem([x for G in range(3 + 3 * n, 6 + 3 * n) for x in load_g(G)], pos, pos + 40)
        elif k == 'b': addmem(load_g(n), pos, pos + SPW, (conv[5, 2], 1) if n >= 6 else (conv[0, 2], 1))
        elif k == 'S':
            assert n >= NEO
            o = o_store(n)
            for qb in range(3): o[1 + qb].after.append((conv[n, qb], 1))
            addmem(o, pos, pos + 6)
    def gran(m, qb, k):
        t = vQ + 12 * (k % 4); j = m * 3 + qb
        its = [V(f"v_cvt_pk_bf16_f32 v{t+8+r}, v{cacc(2*m+(r>>1),qb)+2*(r&1)}, v{cacc(2*m+(r>>1),qb)+2*(r&1)+1}") for r in range(4)]
        if j % 4 == 0: its.append(S(f"s_add_u32 s{sTMP+1}, s{sT}, {j*1024}"))
        so = sTMP + 1; post = []
        if OWN:
            so = sTMP + 3
            if OWN == 2:
                its.append(S(f"s_cmp_eq_u32 s{sJ}, {j&7}\ns_cselect_b32 s{so}, {OOB}, s{sTMP+1}\ns_cselect_b64 s[96:97], -1, 0"))
                post = [V(f"v_cndmask_b32 v{40+8*(j>>3)+4*h+r}, v{40+8*(j>>3)+4*h+r}, v{cacc(2*m+h,qb)+r}, s[96:97]") for h in range(2) for r in range(4)]
            else:
                its.append(S(f"s_cmp_eq_u32 s{sJ}, {j&7}\ns_cselect_b32 s{so}, {OOB}, s{sTMP+1}\ns_cbranch_scc1 L_own{j}\nL_ownr{j}:"))
                OUTL.append(f"L_own{j}:\n" + "".join(f"v_mov_b32 v{40+8*(j>>3)+4*h+r}, v{cacc(2*m+h,qb)+r}\n" for h in range(2) for r in range(4)) + f"s_branch L_ownr{j}\n")
        its.append(Item('M', f"buffer_store_dwordx4 {vr(t+8)}, v{vPT}, {sr(sWS)}, s{so} offen offset:{(j%4)*1024} sc1", tag="PA" if m < 3 else f"P{m}"))
        if m == 4 and post: return its, [S(f"s_cmp_eq_u32 s{sJ}, {j&7}\ns_cselect_b64 s[96:97], -1, 0")] + post
        return its + post
    k = 0
    for m in range(4):
        its = []
        for qb in range(3): its += gran(m, qb, k); k += 1
        lo = F[2 * m + 2][0]['first'] + 4
        fa = [Item('M', [I("WAITVM PA")] + stp('FA') + set_flag(vF2, sHG, 0, vt=vTK2))]
        fp = min(F[6][0]['first'] + FAPOS, st.n() - 1)
        if m == 3 and fp <= lo: addmem(fa, fp, fp)
        addmem(its, lo, lo + (14 if OWN != 2 else 20))
        if m == 3 and fp > lo: addmem(fa, fp, fp)
    if EARLY: addmem([Item('M', f"buffer_load_dwordx2 v[4:5], v{vF2R}, {sr(sWS)}, 0 offen sc1")], st.n() - EARLY, st.n() - EARLY)
    p.cur += st.emit(name="oproj")
    for it in mem:
        if it.kind == 'M' and it.ins[0].op == 'buffer_load_dwordx4' and it.ins[0].dst:
            d = set(it.ins[0].dst)
            assert it.gap < min(g for g, (h, m) in enumerate(st.mf) if g >= Z and d & set(m.srcAB)), it.ins[0].text
    for n, it in wit.items(): assert it.gap < bars[min(n, NL)].gap - 1, n
    assert set(wit) | set(range(NEXTG)) == set(range(12))
    p.cur += stp('E')
    if OWN == 2:
        gs = [gran(4, qb, k + qb) for qb in range(3)]
        for a, b in gs: flat(p, a)
        return [x for a, b in gs for x in b]
    for qb in range(3): flat(p, gran(4, qb, k)); k += 1
    return []

def final_reduce(p, rest):
    sDONE, sNEW, sO2, sOWNB, sOOB = sKK, sWR, sRD, sWOFF, sXOFF
    ld = f"buffer_load_dwordx2 v[{vFLV}:{vFLV+1}], v{vF2R}, {sr(sWS)}, 0 offen sc1"
    if TRI: p("WAITVM P3"); p.cur += set_flag(vF2, sHG, 64, vt=vTK2)
    p(f"""
{ld if not EARLY else ""}
s_lshl_b32 s{sTMP}, s{sJ}, 10
v_add_u32 v2, s{sTMP}, v{vPT}
s_cmp_eq_u32 s{sJ}, 7
s_cselect_b32 s{sO2}, {OOB}, 0
s_cselect_b32 s{sDONE}, 0xff00, 0
s_mov_b32 s{sT}, 0xffff0000
s_lshl_b32 s{sOWNB}, 0x101, s{sHG}
s_mov_b32 s{sOOB}, {OOB}
s_mov_b32 s{sTMP}, 0x20000
""")
    flat(p, rest)
    if EARLY:
        p(f"v_cmp_eq_u64 vcc, s[{sTK2}:{sTK2+1}], v[4:5]\ns_nop 4\ns_and_b32 s{sNEW}, vcc_lo, 0xff\ns_andn2_b32 s{sNEW}, s{sNEW}, s{sOWNB}\ns_or_b32 s{sDONE}, s{sDONE}, s{sNEW}")
        for g in range(8):
            p(f"s_bitcmp1_b32 s{sNEW}, {g}\ns_cselect_b32 s{sTMP+1}, {g*15360}, s{sOOB}\nbuffer_load_dwordx4 {vr(56+g*4)}, v2, {sr(sWS)}, s{sTMP+1} offen sc1")
    p("WAITVM P4")
    p.cur += set_flag(vF2, sHG, 128, vt=vTK2); p.cur += stp('ACK')
    if not EARLY: p("s_waitcnt vmcnt(1)\ns_branch L_fin2")
    p.flush()
    t = f"""L_fin:
{ld}
s_waitcnt vmcnt(0)
L_fin2:
v_cmp_eq_u64 vcc, s[{sTK2}:{sTK2+1}], v[{vFLV}:{vFLV+1}]
s_nop 4
s_and_b32 s{sNEW}, vcc_lo, 0xffff
{"s_or_b32 s%d, s%d, s%d" % (sNEW, sNEW, sOWNB) if OWN else ""}
s_andn2_b32 s{sNEW}, s{sNEW}, s{sDONE}
{"s_cbranch_scc0 L_fnone" if QUICK else ""}
s_or_b32 s{sDONE}, s{sDONE}, s{sNEW}
{"s_and_b32 s%d, s%d, 0xff" % (sTMP+1, sNEW) if QUICK else ""}
{"s_cbranch_scc0 L_fs7" if QUICK else ""}
"""
    for g in range(16):
        t += f"""s_bitcmp0_b32 s{sNEW}, {g}
s_cbranch_scc1 L_fs{g}
s_cmp_eq_u32 s{sHG}, {g%8 if OWN else 99}
s_cselect_b32 s{sTMP+1}, s{sOOB}, {(g%8)*15360 + (g//8)*8192}
buffer_load_dwordx4 {vr(56+g*4)}, v2, {sr(sWS)}, s{sTMP+1} offen sc1
L_fs{g}:
"""
    t += f"""s_cmp_eq_u32 s{sDONE}, 0xffff
s_cbranch_scc1 L_find
L_fnone:
s_sub_u32 s{sTMP}, s{sTMP}, 1
s_cmp_lg_u32 s{sTMP}, 0
s_cbranch_scc1 L_fin
L_find:"""
    p.raw(t)
    p.cur += stp('P2')
    for i in range(2):
        p(f"""
s_add_u32 s{sTMP}, s{sJ}, {8*i}
s_mul_i32 s{sTMP+1}, s{sTMP}, 11
s_lshr_b32 s{sTMP+1}, s{sTMP+1}, 5
s_mul_i32 s{sTMP+3}, s{sTMP+1}, 3
s_sub_u32 s{sTMP+3}, s{sTMP}, s{sTMP+3}
s_mul_i32 s{sTMP+3}, s{sTMP+3}, {16*1280}
s_lshl_b32 s{sTMP+1}, s{sTMP+1}, 6
s_add_u32 s{sTMP+4+i}, s{sTMP+1}, s{sTMP+3}
""")
    p(f"s_add_u32 s{sTMP+5}, s{sTMP+5}, s{sO2}\ns_and_b32 s{sNEW}, s{sNEW}, 0xff\ns_cbranch_scc0 L_fa\ns_waitcnt vmcnt(0)\nL_fa:")
    for i in range(2):
        acc = 40 + i * 8
        if i: p("s_waitcnt vmcnt(1)")
        for g in range(8):
            b = 56 + (i * 8 + g) * 4
            for r in range(4):
                d = acc if g == 0 and not OWN else 120
                p(f"v_lshlrev_b32 v{d+2*r}, 16, v{b+r}\nv_and_b32 v{d+1+2*r}, s{sT}, v{b+r}")
            if g or OWN:
                for r in range(8): p(f"v_add_f32 v{acc+r}, v{acc+r}, v{120+r}")
        o = 132 + 4 * i
        for r in range(4): p(f"v_cvt_pk_bf16_f32 v{o+r}, v{acc+2*r}, v{acc+2*r+1}")
        p(f"v_permlane16_swap_b32 v{o}, v{o+2}\nv_permlane16_swap_b32 v{o+1}, v{o+3}")
        p(f"buffer_store_dwordx4 {vr(o)}, v{vOUT}, {sr(sOUT)}, s{sTMP+4+i} offen")
    bump_epoch(p, vF1, sTK1, sHL, 96)
    bump_epoch(p, vF2, sTK2, sHG, 192)

def store_stamps(p):
    if not ST: return
    p("s_waitcnt vmcnt(0)"); p.cur += stp('end')
    lab = p.newlabel("L_nost")
    if AMP:
        a, b = sSTAMP + 2 * ST[AMP[0]], sSTAMP + 2 * ST[AMP[1]]; e = sSTAMP + 2 * ST['end']
        p(f"""s_waitcnt lgkmcnt(0)
s_cmp_lg_u32 s2, 100
s_cbranch_scc1 {lab}
s_sub_u32 s{sTMP}, s{b}, s{a}
s_lshl_b32 s{sTMP}, s{sTMP}, 3
s_min_u32 s{sTMP}, s{sTMP}, 100000
L_amp:
s_memrealtime s[96:97]
s_waitcnt lgkmcnt(0)
s_sub_u32 s{sTMP+1}, s96, s{e}
s_cmp_lt_u32 s{sTMP+1}, s{sTMP}
s_cbranch_scc1 L_amp
{lab}:""")
        return
    if DBGST is not None:
        p("s_load_dwordx2 s[96:97], s[0:1], 48\ns_waitcnt lgkmcnt(0)"); srd(p, sK, 96, 256)
        p(f"s_cmp_lg_u32 s{sWAVE}, 0\ns_cbranch_scc1 {lab}\ns_cmp_lg_u32 s2, {DBGST}\ns_cbranch_scc1 {lab}")
        p("s_mov_b64 exec, 1\nv_mov_b32 v2, 0")
        for i in range(NSTAMP):
            p(f"s_sub_u32 s{sTMP}, s{sSTAMP+2*i}, s{sSTAMP}\nv_mov_b32 v4, s{sTMP}\nbuffer_store_dword v4, v2, {sr(sK)}, 0 offen offset:{4*i}\ns_nop 1")
        p(f"s_waitcnt vmcnt(0)\n{lab}:")
        return
    p(f"s_add_u32 s96, s90, {STAMP_OFF}\ns_addc_u32 s97, s91, 0"); srd(p, sK, 96, 65536)
    p("s_waitcnt lgkmcnt(0)")
    p(f"s_cmp_lg_u32 s{sWAVE}, 0\ns_cbranch_scc1 {lab}")
    p(f"s_lshl_b32 s{sTMP}, s2, 7\nv_mov_b32 v2, s{sTMP}\ns_mov_b64 exec, 1")
    for i, r in enumerate([sSTAMP + 2 * i for i in range(NSTAMP)] + list(CST.values())):
        p(f"v_mov_b32 v4, s{r}\nv_mov_b32 v5, s{r+1}\nbuffer_store_dwordx2 v[4:5], v2, {sr(sK)}, 0 offen offset:{8*i}\ns_nop 1")
    p(f"s_waitcnt vmcnt(0)\n{lab}:")

def kernel(p):
    name = NAME + "_kernel"
    p.raw(f".globl {name}\n.p2align 8\n.type {name},@function\n{name}:")
    p("s_cmp_ge_u32 s2, 256\ns_cbranch_scc1 L_end")
    p.cur += stp('start')
    p(f"""
s_load_dwordx8 s[76:83], s[0:1], 0
s_load_dwordx8 s[84:91], s[0:1], 32
v_lshrrev_b32 v1, 6, v0
v_and_b32 v0, 63, v0
v_readfirstlane_b32 s{sWAVE}, v1
""")
    if CODEPF:
        p(f"""
s_getpc_b64 s[98:99]
s_lshr_b32 s{sTMP+1}, s2, 3
s_mul_i32 s{sTMP+1}, s{sTMP+1}, {13*128}
v_mul_u32_u24 v252, 3, v1
v_add_lshl_u32 v252, v252, v0, 7
v_add_u32 v252, s{sTMP+1}, v252
v_mov_b32 v253, s99
v_add_co_u32 v252, vcc, s98, v252
v_addc_co_u32 v253, vcc, 0, v253, vcc
s_mov_b64 exec, 15
global_load_dword v{vDUM}, v[252:253], off
s_mov_b64 exec, -1
""", "dummy")
    tab = sum((((k % PH) * (10 - COMMON) + PH // 2) // PH) << (4 * k) for k in range(11))
    p(f"""
s_and_b32 s{sHG}, s2, 7
s_lshr_b32 s{sB}, s2, 5
s_bfe_u32 s{sHL}, s2, 0x20003
s_mul_i32 s{sM0W}, s{sWAVE}, 3072
s_add_u32 s{sTMP+1}, s{sB}, s{sHL}
s_lshl_b32 s{sTMP+1}, s{sTMP+1}, 2
s_mov_b32 s96, {tab & 0xffffffff}
s_mov_b32 s97, {tab >> 32}
s_lshr_b64 s[96:97], s[96:97], s{sTMP+1}
s_and_b32 s{sTMP+1}, s96, 15
{"s_and_b32 s96, s%d, %d" % (sHG, XROT) if XROT else ""}
{"s_add_u32 s%d, s%d, s96" % (sTMP+1, sTMP+1) if XROT else ""}
{"s_cmp_ge_u32 s%d, 10" % (sTMP+1) if XROT else ""}
{"s_cselect_b32 s96, 10, 0" if XROT else ""}
{"s_sub_u32 s%d, s%d, s96" % (sTMP+1, sTMP+1) if XROT else ""}
s_lshl_b32 s{sXOFF}, s{sTMP+1}, 7
s_mul_i32 s{sWOFF}, s{sTMP+1}, {64*12288}
""")
    if COMMON: p(f"s_mov_b32 s{sRD}, s{sTMP+1}\ns_mov_b32 s{sXOFF}, {(10-COMMON)*128}\ns_mov_b32 s{sWOFF}, {(10-COMMON)*64*12288}")
    if KSTAG: p(f"s_mul_i32 s{sKK}, s2, 11\ns_add_u32 s{sKK}, s{sKK}, s{sB}\ns_and_b32 s{sKK}, s{sKK}, 31\ns_mul_i32 s{sKK}, s{sKK}, {KG*384}")
    else: p(f"s_mov_b32 s{sKK}, 0")
    p(f"s_mov_b32 s{sKOFF}, s{sKK}")
    setup_first(p)
    if not XFIRST:
        p.cur += stp('s0')
        srd(p, sX, 76, 1536 * 1280); p.cur += stp('s1')
    srd(p, sWq, 82, 640 * 12288)
    pool = Pool(12)
    tail = front(p, pool)
    if not QONLY:
        tail, vm31 = attention(p, pool, tail)
        rest = oproj(p, pool, tail, vm31)
        final_reduce(p, rest)
    store_stamps(p)
    p("L_end:\ns_endpgm")
    for t in OUTL: p.raw(t)
    for tr, ret, cur in TRAMPS: p.raw(f"{tr}:\ns_call_b64 s[98:99], L_rare{cur}\ns_branch {ret}")
    rare_path(p, "L_rare0", 0)
    rare_path(p, "L_rare1", 1)
    p.raw(".fill 64, 4, 0xbf800000" if not QONLY else ".fill 12288, 4, 0xbf800000")
    return kernel_desc(name, vgpr=512, accum=256)

def build(path):
    p = Prog()
    p.raw("""; GQA block (q-projection, attention over the cached K/V, out-projection) for gfx950 in one fused kernel.
; @launch grid=(256,1,1) block=(256,1,1) lds=163840
.amdgcn_target "amdgcn-amd-amdhsa--gfx950"
.text""")
    d = kernel(p)
    p.raw('.section .rodata,"a"\n.p2align 6\n' + d)
    txt = p.text()
    if LLFIX == 1: txt = fix_ll(txt)
    if NODMA:
        txt = "\n".join(l for l in txt.split("\n") if not (l.startswith("buffer_load_dwordx4")))
        txt = txt.replace("s_cbranch_vccnz L_tramp", "s_cbranch_execz L_tramp")
    if ST: txt = txt.replace(".amdgcn_target", "; stamps " + repr(ST) + "\n.amdgcn_target", 1)
    open(path, "w").write(txt)
    if VERB:
        import collections
        print(collections.Counter(w.split(':')[0] for w in WARN))
        if VERB > 1:
            for w in WARN: print("WARN", w)
        ls = txt.split("\n")
        marks = [k for k, l in enumerate(ls) if l.endswith(":") and not l.startswith("L_ret")]
        for a, b in zip(marks, marks[1:] + [len(ls)]):
            seg = [l for l in ls[a:b] if l and not l.startswith(".") and not l.startswith(" ")]
            c, nm = estimate(seg)
            if nm: print(f"{ls[a][:28]:28s} est {c:6d} cyc, mfma {nm:4d} ({16*nm})")

STD = {'start': 0, 'X0': 1, 'u8': 2, 'u16': 3, 'E': 4, 'Qend': 5, 'Lend': 6, 'Aend': 7, 'C0b': 8, 'G6': 9, 'ACK': 10, 'end': 11}
if __name__ == "__main__":
    for a in sys.argv[2:]:
        k, v = a.split("=", 1)
        globals()[k] = eval(v)
    build(sys.argv[1])
```

```python
import sys, math, struct
from sched import *
from asmlib import kernel_desc

NAME = "standalone__gqa_block_cached__near_ridge"
SLOT = 12288
GSZ = 20480
NT = "nt"
CODEPF = True
PH = 3
VMLIM = 2
DMAHI = 22
SNAKE = True
KSTAG = True
NDB = 4
NBM = 3
NST = 4
NEO = 2
SCHED = 10
KVSPAN = 150
PLAN = {27: ['kv', 'KV', 'r', 'l'], 28: [0, 1], 29: [2, 3], 30: [4]}
OCH = [(0,'W6'),(50,'S2'),(62,'F0'),(76,'S3'),(90,'W7'),(114,'P0'),(132,'C0'),(136,'b3'),(160,'F1'),(164,'b4'),(186,'S4'),(194,'S5'),(206,'b5'),(228,'P1'),(230,'W8'),
       (268,'F2'),(272,'C1'),(276,'b6'),(296,'b7'),(314,'P2'),(316,'W9'),(336,'b8'),(356,'C2'),(360,'b9'),(380,'W10'),(398,'b10'),(416,'W11'),(434,'b11')]
LATESET = True
QWIN = 0
TWIN = None
XROT = 7
EARLYQ = None
QUICK = True
EARLY = 0
CDL = 99
BARFIX = True
LLFIX = 0
QBAR = [1, 2, 3, 4, 5, 6, 7, 8, 9, 10, 11, 12, 14, 16]
OBAR = None
KG = 32
TRI = False
ROT = True
LATEHI = 432
COMMON = 0
WHI = 62
LOOPS = [(9, (5,), 62), (27, (5,), 52)]
SPW = 18
OWN = 1
WIN = (5,)
PRE31 = (5,)
SP30 = 9
XPF = 0
XFIRST = True
AMP = None
RAMP = ()
D0 = 3
PWQ = None
VMTAIL = None
LOCAL = True
NLOC = 4
NBA = 2
FAPOS = 80
GS = 5
PART_OFF = 20 << 20
FLAG_OFF = 40 << 20
WS_SIZE = 41 << 20
STAMP_OFF = 64 << 20
ST = {}
NSTAMP = 12
DBGST = None
TRACE = 0
NODMA = 0
QONLY = 0
VERB = 0
OOB = 0x7f000000

def f32(x): return "0x%08x" % struct.unpack("<I", struct.pack("<f", x))[0]
def vr(b, n=4): return f"v[{b}:{b+n-1}]"
def ar(b, n=4): return f"a[{b}:{b+n-1}]"
def sr(b, n=4): return f"s[{b}:{b+n-1}]"
MF = "v_mfma_f32_16x16x32_bf16"
def srd(p, d, lo, nbytes):
    p(f"s_mov_b32 s{d}, s{lo}\ns_and_b32 s{d+1}, s{lo+1}, 0xffff\ns_mov_b32 s{d+2}, {nbytes}\ns_mov_b32 s{d+3}, 0x00020000")

sLTHR = 3
sK, sV, sWq, sX, sWS, sWo, sOUT = 4, 8, 12, 16, 20, 24, 28
sWAVE, sB, sSC, sHG, sHL = 32, 33, 34, 35, 36
sM0W, sKOFF, sWR, sRD, sT, sKK = 37, 38, 39, 40, 41, 42
sWOFF, sXOFF, sWW = 43, 44, 45
sTMP = 46
sSTAMP = 52
sHI = 76
sTK1, sTK2 = 92, 94
sJ = 33
TOKC = (0x9e3779b9, 0x7f4a7c15)
F2BASE = 256 * 256
CST = {'Qend': 80, 'Lend': 82, 'C0b': 88, 'ACK': 100}
def stp(name):
    r = []
    if name in ST: r.append(I(f"s_memrealtime s[{sSTAMP+2*ST[name]}:{sSTAMP+2*ST[name]+1}]"))
    if ST and name in CST: r.append(I(f"s_memtime s[{CST[name]}:{CST[name]+1}]"))
    return r

vKD, vVD, vWD = 2, 5, 8
vXD = 11
vWOD, vPWO = 11, 16
vKL, vVL = 17, 19
vKA, vVA = 23, 25
vXR = 29
vOL, vPT = 30, 31
vT0 = 31
vDUM = 248
vF1, vF2 = 250, 251
vVB = 252
vWOL, vOUT = 252, 254
vACC = 32; vQ = 176
vS = (32, 56); vP = (80, 92); vNM = 104; vE = 120; vCK = 130; vR = 132; vL = (144, 156)
NE = 5
vB = 32; vRC = 136; vTK = 6; vTK2 = 18; vFLV = 28
vWA = (23, 20, 25, 16)
vRCS = (1, 10, 249)
vF2R = 22
vC = 56
aO = 0; aPOOL = 144; aC = 0; aX = 0; NXB = 6; aONE = 240; aPARK = 244
PARK = [vWOD + j for j in range(5)] + [vPWO, vWOL, vWOL + 1, vOL, vPT, vOUT]
def qfrag(qb, s): return vQ + (qb * 6 + s) * 4
def qacc(db, qb): return vACC + (db * 3 + qb) * 4
def oacc(db, qb): return aO + (db * 3 + qb) * 4
def cacc(nb, qb): return vC + (nb * 3 + qb) * 4
def sreg(buf, qb, kb): return vS[buf] + (qb * 2 + kb) * 4
def bfrag(u, qb):
    if u < 6: return vr(vQ + (u * 3 + qb) * 4)
    k = (u - 6) * 3 + qb
    if k < 16: return ar(192 + k * 4)
    k -= 16
    return ar(k * 4) if k < 36 else vr(32 + (k - 36) * 4)

LAYOUT = 2
def xs0(): return 5 if LAYOUT == 0 else 4
def xpair(c): return 5 + 2 * (c % 2) if LAYOUT == 0 else 6 - 2 * (c % 2)
WRING = [9, 10, 11, 1, 12]
def wslot(u):
    if LAYOUT == 0: return WRING[u % 5]
    return [1, 8, 9, 10, 11, 12][u % 6] if u < 14 else u - 8 if u < 16 else u - 7
def kvslot(kind, i): return 2 * (i % 6) if kind == 'K' else 2 * ((i + 1) % 6) + 1
def gic(G): return (0, G) if G < 3 else (1 + (G - 3) % 3, (G - 3) // 3)
def goff(G): return ((G + 4) % 8) * GSZ
TRAMPS = []; OUTL = []

def tile_rows(p, t, j):
    p(f"""
v_add_u32 v{t+2}, {8*j}, v{t}
v_mul_u32_u24 v{t+3}, 11, v{t+2}
v_lshrrev_b32 v{t+3}, 5, v{t+3}
v_mul_u32_u24 v{t+4}, 3, v{t+3}
v_sub_u32 v{t+4}, v{t+2}, v{t+4}
v_add_u32 v{t+3}, s{sTMP}, v{t+3}
v_and_b32 v{t+5}, 6, v{t+3}
v_xor_b32 v{t+5}, v{t+5}, v{t+1}
v_lshlrev_b32 v{t+5}, 4, v{t+5}
""")
def setup_first(p):
    t = 240
    p(f"""
v_lshrrev_b32 v{t}, 3, v0
v_and_b32 v{t+1}, 7, v0
s_lshl_b32 s{sTMP}, s{sWAVE}, 3
s_lshl_b32 s{sTMP+1}, s{sB}, 2
s_add_u32 s{sTMP+1}, s{sTMP+1}, s{sWAVE}
s_mul_i32 s{sTMP+4}, s{sTMP+1}, {48*1280}
s_lshl_b32 s{sTMP+2}, s{sHG}, 2
s_add_u32 s{sTMP+5}, s{sTMP+2}, s{sHL}
s_mul_i32 s{sTMP+2}, s{sTMP+5}, 384
""")
    for half in range(2):
        p(f"""
v_lshrrev_b32 v{t+2}, 1, v{t}
v_add_u32 v{t+2}, {4*half}, v{t+2}
v_xor_b32 v{t+2}, v{t+2}, v{t+1}
v_lshlrev_b32 v{t+2}, 4, v{t+2}
v_add_u32 v{t+3}, {8*half}, v{t}
v_mul_u32_u24 v{t+3}, 1280, v{t+3}
v_add3_u32 v{vXD+half}, v{t+2}, v{t+3}, s{sTMP+4}
v_add_u32 v{vXD+2+half}, {20480-1024}, v{vXD+half}
v_add_u32 v{vXD+4+half}, {2*(20480-1024)}, v{vXD+half}
""")
    if XFIRST:
        p.cur += stp('s0')
        srd(p, sX, 76, 1536 * 1280); p.cur += stp('s1')
        xpf = f"""s_lshl_b32 s96, s2, 2
s_add_u32 s96, s96, s{sWAVE}
s_mul_i32 s96, s96, 1920
v_lshlrev_b32 v{t+2}, 7, v0
s_mov_b64 exec, 0x7fff
buffer_load_dword v{vDUM}, v{t+2}, {sr(sX)}, s96 offen
s_mov_b64 exec, -1"""
        if XPF == 1: p(xpf, "dummy")
        flat(p, issue('X0'))
        if XPF == 2: p(xpf, "dummy")
    for j in range(3):
        tile_rows(p, t, j)
        p(f"""
v_bfe_u32 v{t+6}, v{t+3}, 2, 2
v_lshlrev_b32 v{t+6}, 3, v{t+6}
v_lshrrev_b32 v{t+7}, 4, v{t+3}
v_lshl_add_u32 v{t+6}, v{t+7}, 2, v{t+6}
v_and_b32 v{t+7}, 3, v{t+3}
v_add_u32 v{t+6}, v{t+6}, v{t+7}
v_mul_u32_u24 v{t+6}, 12288, v{t+6}
v_lshl_add_u32 v{t+6}, v{t+4}, 7, v{t+6}
v_add3_u32 v{t+6}, v{t+6}, v{t+5}, s{sTMP+2}
v_subrev_u32 v{vWD+j}, {1024*j}, v{t+6}
""")
def setup_reads(p):
    t = 232
    p(f"""
v_and_b32 v{t}, 15, v0
v_lshrrev_b32 v{t+1}, 4, v0
v_lshrrev_b32 v{t+2}, 1, v{t}
v_xor_b32 v{t+2}, v{t+2}, v{t+1}
v_lshlrev_b32 v{t+5}, 4, v{t+2}
v_and_b32 v{t+3}, 7, v{t}
v_lshl_add_u32 v{t+5}, v{t+3}, 7, v{t+5}
v_lshrrev_b32 v{t+3}, 3, v{t}
v_mul_u32_u24 v{t+3}, 12288, v{t+3}
v_add3_u32 v{t+5}, v{t+5}, v{t+3}, s{sM0W}
v_add_u32 v{vXR}, {xs0()*SLOT}, v{t+5}
v_xor_b32 v{vXR+1}, 64, v{vXR}
v_bfe_u32 v{t+3}, v{t+2}, 1, 1
v_and_b32 v{t+4}, 1, v{t+2}
v_lshl_add_u32 v{t+3}, v{t+4}, 1, v{t+3}
v_and_b32 v{t+4}, 4, v{t+2}
v_or_b32 v{t+3}, v{t+3}, v{t+4}
v_lshlrev_b32 v{t+3}, 4, v{t+3}
v_mul_u32_u24 v{t+4}, 384, v{t}
v_add_u32 v{vKL}, v{t+3}, v{t+4}
v_xor_b32 v{vKL+1}, 64, v{vKL}
v_mov_b32 v{vKA}, v{vKL}
v_mov_b32 v{vKA+1}, v{vKL+1}
v_lshrrev_b32 v{t+2}, 2, v0
v_mul_u32_u24 v{t+3}, 384, v{t+2}
v_bfe_u32 v{t+4}, v{t+2}, 1, 2
v_lshl_add_u32 v{t+3}, v{t+4}, 5, v{t+3}
v_and_b32 v{t+4}, 3, v0
v_lshl_add_u32 v{vVL}, v{t+4}, 3, v{t+3}
v_xor_b32 v{vVL+1}, 32, v{vVL}
v_xor_b32 v{vVL+2}, 64, v{vVL}
v_xor_b32 v{vVL+3}, 96, v{vVL}
""")
def setup_rest(p):
    t = 240
    p(f"""
s_lshl_b32 s{sTMP+1}, s{sB}, 3
s_add_u32 s{sTMP+1}, s{sTMP+1}, s{sHG}
s_lshl_b32 s96, s{sTMP+1}, 2
s_add_u32 s{sTMP+1}, s96, s{sWAVE}
s_lshl_b32 s{sTMP+1}, s{sTMP+1}, 8
s_add_u32 s{sTMP+1}, s{sTMP+1}, {FLAG_OFF}
s_lshl_b32 s{sTMP+2}, s{sB}, 2
s_add_u32 s{sTMP+2}, s{sTMP+2}, s{sHL}
s_lshl_b32 s{sTMP+2}, s{sTMP+2}, 2
s_add_u32 s97, s{sTMP+2}, s{sWAVE}
s_lshl_b32 s{sTMP+2}, s97, 8
s_add_u32 s{sTMP+2}, s{sTMP+2}, {FLAG_OFF + F2BASE}
v_and_b32 v{t+2}, 3, v0
v_lshl_add_u32 v{vF1}, v{t+2}, 3, s{sTMP+1}
v_and_b32 v{t+2}, 15, v0
v_lshl_add_u32 v{vF2}, v{t+2}, 3, s{sTMP+2}
s_add_u32 s{sTMP+1}, s{sTMP+1}, 96
s_add_u32 s{sTMP+2}, s{sTMP+2}, 192
s_mul_i32 s{sJ}, s97, {3 if ROT else 0}
s_add_u32 s{sJ}, s{sJ}, s{sHG}
s_and_b32 s{sJ}, s{sJ}, 7
s_load_dwordx2 s[{sTK1}:{sTK1+1}], s[90:91], s{sTMP+1}
s_load_dwordx2 s[{sTK2}:{sTK2+1}], s[90:91], s{sTMP+2}
s_add_u32 s{sTMP+1}, s96, s{sHL}
s_mul_i32 s{sTMP+1}, s{sTMP+1}, 393216
s_add_u32 s78, s78, s{sTMP+1}
s_addc_u32 s79, s79, 0
s_add_u32 s80, s80, s{sTMP+1}
s_addc_u32 s81, s81, 0
""")
    LG = KG.bit_length() - 1
    srd(p, sK, 78, 393216); srd(p, sV, 80, 393216)
    srd(p, sWS, 90, WS_SIZE); srd(p, sWo, 84, 6144 * 1280); srd(p, sOUT, 86, 1536 * 1280)
    for j in range(3):
        tile_rows(p, t, j)
        p(f"""
v_lshrrev_b32 v{t+7}, {LG}, v{t+3}
v_lshlrev_b32 v{t+7}, {LG+5}, v{t+7}
v_and_b32 v{t+6}, {KG-1}, v{t+3}
v_add_u32 v{t+7}, v{t+7}, v{t+6}
v_mul_u32_u24 v{t+7}, 384, v{t+7}
v_lshl_add_u32 v{t+7}, v{t+4}, 7, v{t+7}
v_subrev_u32 v{t+7}, {1024*j}, v{t+7}
v_add_u32 v{vVD+j}, v{t+7}, v{t+5}
v_bfe_u32 v{t+5}, v{t+3}, 2, 1
v_and_b32 v{t+6}, 2, v{t+3}
v_or_b32 v{t+5}, v{t+5}, v{t+6}
v_lshrrev_b32 v{t+6}, 1, v{t+3}
v_and_b32 v{t+6}, 4, v{t+6}
v_or_b32 v{t+5}, v{t+5}, v{t+6}
v_xor_b32 v{t+5}, v{t+5}, v{t+1}
v_lshl_add_u32 v{vKD+j}, v{t+5}, 4, v{t+7}
""")
    t = 232
    park = lambda r, v: p(f"v_accvgpr_write_b32 a{aPARK + PARK.index(r)}, v{v}")
    u = 224
    p(f"""
s_mul_i32 s{sTMP+1}, s{sHG}, {768*1280}
s_mul_i32 s{sTMP+2}, s{sHL}, 320
s_mul_i32 s{sTMP+3}, s{sWAVE}, {16*1280}
s_add_u32 s{sTMP+3}, s{sTMP+3}, s{sTMP+1}
s_add_u32 s{sTMP+3}, s{sTMP+3}, s{sTMP+2}
""")
    for j in range(5):
        p(f"""
v_add_u32 v{u}, {64*j}, v0
v_mul_u32_u24 v{u+1}, 205, v{u}
v_lshrrev_b32 v{u+1}, 12, v{u+1}
v_mul_u32_u24 v{u+2}, 20, v{u+1}
v_sub_u32 v{u+2}, v{u}, v{u+2}
v_lshrrev_b32 v{u+3}, 1, v{u+1}
v_and_b32 v{u+3}, 2, v{u+3}
v_xor_b32 v{u+2}, v{u+2}, v{u+3}
v_mul_u32_u24 v{u+1}, 1280, v{u+1}
v_lshl_add_u32 v{u+1}, v{u+2}, 4, v{u+1}
v_add_u32 v{u+1}, s{sTMP+3}, v{u+1}
v_subrev_u32 v{u+1}, {1024*(j%4)}, v{u+1}
""")
        park(vWOD + j, u + 1)
    p(f"""
s_lshr_b32 s{sTMP+3}, s2, 3
s_lshl_b32 s{sTMP+3}, s{sTMP+3}, 2
s_add_u32 s{sTMP+3}, s{sTMP+3}, s{sWAVE}
s_mul_i32 s{sTMP+3}, s{sTMP+3}, {60*128}
s_add_u32 s{sTMP+3}, s{sTMP+3}, s{sTMP+1}
v_lshlrev_b32 v{u}, 7, v0
v_add_u32 v{u}, s{sTMP+3}, v{u}
v_cmp_gt_u32 vcc, 60, v0
v_mov_b32 v{u+1}, {OOB}
v_cndmask_b32 v{u}, v{u+1}, v{u}, vcc
""")
    park(vPWO, u)
    p(f"""
v_mul_u32_u24 v{u}, 320, v{t+2}
v_lshl_add_u32 v{u}, v{t+4}, 3, v{u}
v_and_b32 v{u+1}, 16, v0
v_lshlrev_b32 v{u+1}, 1, v{u+1}
v_add_u32 v{u+2}, v{u}, v{u+1}
v_sub_u32 v{u+3}, v{u}, v{u+1}
""")
    park(vWOL, u + 2); park(vWOL + 1, u + 3)
    p(f"""
s_mul_i32 s96, s96, 73728
s_add_u32 s96, s96, s{sM0W}
s_mul_i32 s97, s97, {8*15360}
s_add_u32 s97, s97, {PART_OFF}
v_lshlrev_b32 v{u}, 4, v0
v_add_u32 v{u+2}, s96, v{u}
v_add_u32 v{u+3}, s97, v{u}
""")
    park(vOL, u + 2); park(vPT, u + 3)
    p(f"""
s_add_u32 s{sTMP+2}, s{sTMP+2}, s{sTMP+4}
v_mul_u32_u24 v{u}, 1280, v{t}
v_add3_u32 v{u}, v{u}, v{u+1}, s{sTMP+2}
v_lshrrev_b32 v{u+2}, 5, v0
v_lshl_add_u32 v{u}, v{u+2}, 4, v{u}
""")
    park(vOUT, u)
    p(f"v_mov_b32 v{u}, 0x3f803f80\nv_cmp_eq_u32 vcc, 0, v{t+4}\nv_cndmask_b32 v{u}, 0, v{u}, vcc")
    for r in range(4): p(f"v_accvgpr_write_b32 a{aONE+r}, v{u}")
    for i in range(4):
        p(f"s_add_u32 s{sHI+i}, s{sHL}, {i}\ns_and_b32 s{sHI+i}, s{sHI+i}, 3\ns_mul_i32 s{sHI+i}, s{sHI+i}, 3")
    SC = math.log2(math.e) / math.sqrt(192.0)
    p(f"""
s_mul_i32 s{sWW}, s{sWAVE}, 5120
s_mov_b32 s{sLTHR}, {f32(LTHR)}
s_mov_b32 s{sSC}, {f32(SC)}
s_add_u32 s{sWR}, s{sM0W}, {2*(D0+1)*SLOT}
s_mov_b32 s{sRD}, 0
s_mov_b32 s{sT}, 1
""")

def S(t, **k): return Item('S', t, **k)
def V(t, **k): return Item('V', t, **k)
def wrap0(s, inc, lim, zero="0"):
    return [S(f"s_add_u32 s{s}, s{s}, {inc}"), S(f"s_cmp_ge_u32 s{s}, {lim}\ns_cselect_b32 s{s}, {zero}, s{s}")]
def dma_tile(kind, pre, so, tag=None, post=()):
    vd, srn, pol = {'K': (vKD, sK, NT), 'V': (vVD, sV, NT), 'W': (vWD, sWq, "")}[kind]
    g = [S(x) for x in pre]
    for j in range(3):
        g.append(Item('M', f"buffer_load_dwordx4 v{vd+j}, {sr(srn)}, {so} offen offset:{1024*j} {pol} lds", tag=tag))
    return g + list(post)
def dma_kv_static(kind, i):
    so = sKK if kind == 'K' else sKOFF
    return dma_tile(kind, [f"s_add_u32 m0, s{sM0W}, {kvslot(kind,i)*SLOT}"], f"s{so}", f"{kind}{i}", wrap0(so, KG * 384, 32 * KG * 384))
def dma_w(u):
    return dma_tile('W', [f"s_add_u32 m0, s{sM0W}, {wslot(u)*SLOT}"], f"s{sWOFF}", f"W{u}",
                    wrap0(sWOFF, 32 * 12288, 640 * 12288) if not COMMON else
                    [S(f"s_add_u32 s{sWOFF}, s{sWOFF}, {32*12288}")] if u < 2 * COMMON - 1 else
                    [S(f"s_mul_i32 s{sWOFF}, s{sRD}, {64*12288}")] if u == 2 * COMMON - 1 else wrap0(sWOFF, 32 * 12288, (10 - COMMON) * 64 * 12288))
def dma_x(c):
    g = []
    for half in range(2):
        g.append(S(f"s_add_u32 m0, s{sM0W}, {(xpair(c)+half)*SLOT}"))
        for qb in range(3):
            g.append(Item('M', f"buffer_load_dwordx4 v{vXD+2*qb+half}, {sr(sX)}, s{sXOFF} offen offset:{1024*qb} lds", tag=f"X{c}"))
    if COMMON and c < COMMON - 1: return g + [S(f"s_add_u32 s{sXOFF}, s{sXOFF}, 128")]
    if COMMON and c == COMMON - 1: return g + [S(f"s_lshl_b32 s{sXOFF}, s{sRD}, 7")]
    return g + wrap0(sXOFF, 128, (10 - COMMON) * 128)
def spread_kv(its, lo, hi):
    ms = [x for x in its if x.kind == 'M']
    chain(its, lo, hi)
    for k, x in enumerate(ms):
        x.target = lo + 1 + (hi - lo) * k // 5
        w = WIN[k % len(WIN)] - 1
        x.ins = [I(f"s_waitcnt vmcnt({w})")] + x.ins; x.needA = True
    t = lo
    for x in reversed(its):
        if x.kind == 'M': t = x.target
        elif any(its.index(y) > its.index(x) for y in ms): x.target = max(lo, t - 3)
        else: x.target = hi + 1
    return its
def kv_issue(nok=False):
    dk = dma_tile('K', [f"s_mov_b32 m0, s{sWR}"], f"s{sKK}") if not nok else []
    dv = dma_tile('V', [f"s_add_u32 m0, s{sWR}, {SLOT}"], f"s{sKOFF}")
    if nok: return dv
    return dk + dv + [S(f"s_mov_b32 s{sKOFF}, s{sKK}")] + wrap0(sKK, KG * 384, 32 * KG * 384) + wrap0(sWR, 2 * SLOT, 12 * SLOT, f"s{sM0W}")
def dma_wo(G):
    sl = goff(G); i, c = gic(G)
    g = [S(f"s_add_u32 s{sWOFF}, s{sHI+i}, {c}"), S(f"s_mul_i32 s{sWOFF}, s{sWOFF}, {64*1280}")]
    for j in range(5):
        if j == 0: g.append(S(f"s_add_u32 m0, s{sWW}, {sl}"))
        if j == 4: g.append(S(f"s_add_u32 m0, s{sWW}, {sl+4096}"))
        g.append(Item('M', f"buffer_load_dwordx4 v{vWOD+j}, {sr(sWo)}, s{sWOFF} offen offset:{1024*(j%4)} lds", tag=f"G{G}"))
    return g
def xfrag(c, ks, qb): return aX + (c % NXB) * 24 + (ks * 3 + qb) * 4
def read_x(c):
    off = (xpair(c) - xs0()) * SLOT
    return [Item('L', f"ds_read_b128 {ar(xfrag(c,ks,qb))}, v{vXR+ks} offset:{off + qb*1024}") for ks in range(2) for qb in range(3)]
def flat(p, items):
    for it in items: p.cur += it.ins
def snake(mf, k): return mf[::-1] if (SNAKE and k & 1) else mf
class Pool:
    def __init__(self, size): self.n = 0; self.size = size
    def next(self):
        r = aPOOL + 4 * (self.n % self.size); self.n += 1; return r
def vunit_reads(buf, db, imm, va):
    return [f"ds_read_b64_tr_b16 {ar(buf,2)}, v{va+(db&3)} offset:{imm + (db>>2)*128}",
            f"ds_read_b64_tr_b16 {ar(buf+2,2)}, v{va+(db&3)} offset:{imm + (db>>2)*128 + 6144}"]

T = 4
RGAP = 6
class Stream:
    def __init__(self, tail=()):
        self.mf = []; self.items = []; self.resA = set()
        for u in tail: self.add_unit(u)
    def n(self): return len(self.mf)
    def add_unit(self, u):
        u['first'] = len(self.mf)
        if u.get('reads'): self.resA.add(len(self.mf) - 1)
        for k, m in enumerate(u['mf']): self.mf.append((u.get('head', []) if k == 0 else [], m))
    def reads(self, units, lo, hi, after=()):
        its = []
        tot = sum(len(u['reads']) for u in units); k = 0
        for u in units:
            g = lo + (hi - lo + 1) * k // tot
            for r in u['reads']:
                it = Item('L', r, lo=lo, hi=max(lo, min(hi, u['first'] - 5)), target=g, after=list(after) + ([(its[-1], 0)] if its else []))
                it.use = u['first']
                its.append(it); k += 1
        self.items += its
        return its
    def barrier(self, g, wait, after=()):
        w = Item('S', [x if isinstance(x, I) else I(x) for x in wait], lo=g, hi=g + 2, target=g, after=after)
        b = Item('S', "s_barrier", lo=g + 1, hi=g + 3, after=[(w, 1)])
        b.bar = BARFIX
        self.items += [w, b]
        return b
    def add(self, its): self.items += its; return its
    def emit(self, keep=0, name=""):
        mf = self.mf[:len(self.mf) - keep] if keep else self.mf
        out = pack(mf, self.items, self.resA, name)
        for it in self.items:
            if hasattr(it, 'use'):
                d = set(it.ins[0].dst)
                assert it.gap < it.use, (name, it.ins[0].text)
                for g in range(it.gap + 1, it.use):
                    assert not (d & set(self.mf[g][1].src)), ("pool WAR", name, it.ins[0].text, it.gap, g)
        return out

def qk_unit(pool, buf, kb, ds, c0, imm, k):
    pb = pool.next()
    mf = []
    for qb in range(3):
        d = sreg(buf, qb, kb)
        c = vr(d) if ds else (0 if c0 else vr(vNM + 4 * qb))
        mf.append(I(f"{MF} {vr(d)}, {ar(pb)}, {vr(qfrag(qb,ds))}, {c}"))
    return dict(reads=[f"ds_read_b128 {ar(pb)}, v{vKA+(ds&1)} offset:{imm + kb*6144 + (ds>>1)*128}"], mf=snake(mf, k))
def qk_units(pool, buf, imm, zero=()):
    return [qk_unit(pool, buf, kb, ds, kb in zero, imm, ds) for kb in range(2) for ds in range(6)]
def rs_unit(buf, zero=False):
    return dict(reads=None, mf=[I(f"{MF} {vr(vL[buf]+4*qb)}, {ar(aONE)}, {vr(vP[buf]+4*qb)}, {0 if zero else vr(vL[buf^1]+4*qb)}") for qb in range(3)])
def pv_units(pool, buf, imm, zero=False):
    units = []
    for db in range(12):
        pb = pool.next()
        z = zero and db < 12 - T
        mf = [I(f"{MF} {ar(oacc(db,qb))}, {ar(pb)}, {vr(vP[buf]+4*qb)}, {0 if z else ar(oacc(db,qb))}") for qb in range(3)]
        units.append(dict(reads=vunit_reads(pb, db, SLOT + imm, vVA), mf=snake(mf, db)))
    return units
PAIRS = [(qb, kb, h) for kb in range(2) for qb in range(3) for h in range(2)]
def softmax_items(buf, n0, n1, lo, hi, pre=None):
    ex = []; cv = []; ex0 = []
    for n in range(n0, n1):
        qb, kb, h = PAIRS[n]
        s = sreg(buf, qb, kb) + 2 * h
        e = vE + 2 * (n % NE)
        a = Item('E', f"v_exp_f32 v{e}, v{s}"); b = Item('E', f"v_exp_f32 v{e+1}, v{s+1}")
        if len(cv) >= NE: a.after.append((cv[-NE], 1))
        if pre:
            for k, x in enumerate((a, b)):
                sub = V(f"v_add_f32 v{s+k}, v{s+k}, v{vNM+4*qb}", lo=lo, hi=hi, after=[(pre, 1)])
                x.after.append((sub, 1)); ex0.append((sub, x))
        ex += [a, b]
        cv.append(V(f"v_cvt_pk_bf16_f32 v{vP[buf]+4*qb+2*kb+h}, v{e}, v{e+1}", lo=lo, hi=hi, after=[(b, 1)]))
    chain(ex, lo, hi - 1)
    for e in ex: e.hi = hi
    for k, c in enumerate(cv): c.target = ex[2 * k + 1].target + 1
    for sub, x in ex0: sub.target = max(lo, x.target - 2)
    return [s for s, _ in ex0] + ex + cv
SPLIT = 6
LTHR = 2.0 ** 40
def rowmax_text(buf, qb, d, t):
    s0, s1 = sreg(buf, qb, 0), sreg(buf, qb, 1)
    return [f"v_max3_f32 v{d}, v{s0}, v{s0+1}, v{s0+2}", f"v_max3_f32 v{t}, v{s1}, v{s1+1}, v{s1+2}",
            f"v_max3_f32 v{d}, v{d}, v{s0+3}, v{s1+3}", f"v_max_f32 v{d}, v{d}, v{t}",
            f"v_mov_b32 v{t}, v{d}", f"v_permlane32_swap_b32 v{d}, v{t}", f"v_max_f32 v{d}, v{d}, v{t}",
            f"v_mov_b32 v{t}, v{d}", f"v_permlane16_swap_b32 v{d}, v{t}", f"v_max_f32 v{d}, v{d}, v{t}"]
def rare_path(p, label, buf):
    p.reset_state()
    p(f"{label}:\ns_nop 15")
    for qb in range(3):
        d = vR + qb
        p("\n".join(rowmax_text(buf, qb, d, vR + 8)))
        p(f"v_max_f32 v{d}, 0, v{d}")
        for r in range(4): p(f"v_sub_f32 v{vNM+4*qb+r}, v{vNM+4*qb+r}, v{d}")
        for bb in (buf, buf ^ 1):
            for r in range(8): p(f"v_sub_f32 v{sreg(bb,qb,0)+r}, v{sreg(bb,qb,0)+r}, v{d}")
        p(f"v_exp_f32_e64 v{vR+4+qb}, -v{d}")
    for qb in range(3):
        for r in range(4): p(f"v_mul_f32 v{vL[buf^1]+4*qb+r}, v{vL[buf^1]+4*qb+r}, v{vR+4+qb}")
        for r in [oacc(db, qb) + r for db in range(12) for r in range(4)]:
            p(f"v_accvgpr_read_b32 v{vR+9}, a{r}\nv_mul_f32 v{vR+9}, v{vR+9}, v{vR+4+qb}\nv_accvgpr_write_b32 a{r}, v{vR+9}")
    for (qb, kb, h) in PAIRS:
        s = sreg(buf, qb, kb) + 2 * h
        p(f"v_exp_f32 v{vE}, v{s}\nv_exp_f32 v{vE+1}, v{s+1}\nv_cvt_pk_bf16_f32 v{vP[buf]+4*qb+2*kb+h}, v{vE}, v{vE+1}")
    p.cur += rs_unit(buf)['mf']
    p(f"s_nop 15\ns_setpc_b64 s[98:99]")
    p.flush()

KVPRE = ['K0', 'K1', 'V0', 'K2', 'V1', 'K3', 'V2', 'K4', 'V3']
def get_sched():
    PRO = ['X0', 'W0', 'W1', 'W2']; PRO2 = ['X1']
    QS = {0: (['W3'], None, []), 1: (['W4', 'W5'], 1, ['X2']), 2: (['W6'], None, ['X3']), 3: (['W7'], 2, ['X4']), 4: (['W8'], 3, ['X5']),
          5: (['W9', 'K0', 'K1'], None, []), 6: (['W10'], 4, ['X6']), 7: (['W11'], 5, ['X7']), 8: (['W12', 'V0', 'K2'], None, []),
          9: (['W13'], 6, ['X8']), 10: (['W14'], 7, ['X9']), 11: (['W15'], None, []), 12: (['W16'], 8, []), 13: (['W17'], 9, []),
          14: (['W18'], None, []), 15: (['W19'], None, []), 16: (['V1', 'K3', 'V2', 'K4', 'V3'], None, [])}
    if SCHED == 1:
        QS[5] = (['W9'], None, []); QS[8] = (['W12', 'K0', 'K1'], None, []); QS[11] = (['W15', 'V0', 'K2'], None, [])
    if SCHED == 2:
        QS[5] = (['W9'], None, []); QS[8] = (['W12'], None, []); QS[11] = (['W15', 'K0', 'K1'], None, [])
        QS[15] = (['W19', 'V0', 'K2'], None, [])
    if SCHED == 3:
        QS[13] = (['W17'], 9, ['V1', 'K3']); QS[16] = (['V2', 'K4', 'V3'], None, [])
    if SCHED in (4, 5, 6):
        PRO = ['X0', 'W0', 'W1']; PRO2 = ['X1']
        if SCHED == 4:
            QS.update({0: (['W2', 'W3'], None, []), 1: (['X2'], 1, ['W4']), 2: (['W5', 'X3'], None, ['W6']), 3: (['W7'], 2, ['X4']), 4: (['W8'], None, []),
                       5: (['W9'], 3, ['X5']), 6: (['W10'], 4, ['X6']), 7: (['W11'], 5, ['X7']), 8: (['W12'], None, [])})
        if SCHED == 5:
            PRO2 = []
            QS.update({0: (['X1', 'W2'], None, ['W3']), 1: (['X2'], 1, ['W4']), 2: (['W5', 'X3'], None, ['W6']), 3: (['W7'], 2, ['X4']), 4: (['W8'], None, []),
                       5: (['W9'], 3, ['X5']), 6: (['W10'], 4, ['X6']), 7: (['W11'], 5, ['X7']), 8: (['W12'], None, [])})
        if SCHED == 6:
            PRO2 = ['X1', 'W2']
            QS.update({0: (['W3', 'X2'], None, ['W4']), 1: (['W5'], 1, ['X3']), 2: (['W6'], None, []), 3: (['W7'], 2, ['X4']), 4: (['W8'], 3, ['X5']),
                       5: (['W9'], None, []), 6: (['W10'], 4, ['X6']), 7: (['W11'], 5, ['X7']), 8: (['W12'], None, [])})
    if SCHED == 7:
        QS.update({5: (['W9'], 4, ['X6']), 6: (['W10'], 5, ['X7']), 7: (['W11'], 6, ['X8']), 8: (['W12'], 7, ['X9']), 9: (['W13'], 8, []), 10: (['W14'], 9, []),
                   11: (['W15'], None, []), 12: (['W16'], None, []), 13: (['W17'], None, [])})
    if SCHED == 8:
        QS.update({5: (['W9'], None, []), 6: (['W10'], 4, ['X6']), 7: (['W11'], 5, ['X7']), 8: (['W12'], 6, ['X8']), 9: (['W13'], 7, ['X9']), 10: (['W14'], None, []),
                   11: (['W15'], 8, []), 12: (['W16'], 9, []), 13: (['W17'], None, [])})
    if SCHED == 9:
        QS.update({4: (['W8'], None, []), 5: (['W9'], 3, ['X5']), 6: (['W10'], None, []), 7: (['W11'], 4, ['X6']), 8: (['W12'], None, []), 9: (['W13'], 5, ['X7']), 10: (['W14'], None, []),
                   11: (['W15'], 6, ['X8']), 12: (['W16'], 7, ['X9']), 13: (['W17'], None, []), 14: (['W18'], 8, []), 15: (['W19'], 9, [])})
    if SCHED == 10:
        assert LAYOUT == 2 and D0 <= 3
        QS.update({5: (['W9'], 4, ['X6']), 6: (['W10'], 5, ['X7']), 7: (['W11'], 6, ['X8']), 8: (['W12'], 7, ['X9']), 9: (['W13'], 8, ['W14', 'W15']), 10: (['W16'], 9, ['W17']),
                   11: (['W18'], None, []), 12: (['W19'], None, []), 13: ([], None, []), 14: ([], None, []), 15: ([], None, [])})
    if SCHED == 11:
        assert LAYOUT == 2 and D0 <= 3
        QS.update({5: (['W9', 'W10'], None, []), 6: (['W11'], 4, ['X6']), 7: (['W12'], 5, ['X7']), 8: (['W13'], 6, ['X8']), 9: ([], 7, ['X9']), 10: ([], 8, ['W14', 'W15']),
                   11: (['W16'], 9, ['W17']), 12: (['W18', 'W19'], None, []), 13: ([], None, []), 14: ([], None, []), 15: ([], None, [])})
    if EARLYQ:
        PRO, PRO2 = EARLYQ[0], EARLYQ[1]; QS.update(EARLYQ[2])
    keep = KVPRE[:1 + 2 * D0]
    for u in QS: QS[u] = tuple([n for n in part if n[0] not in 'KV' or n in keep] if isinstance(part, list) else part for part in QS[u])
    if QKV:
        for u in QS: QS[u] = tuple([n for n in part if n[0] not in 'KV'] if isinstance(part, list) else part for part in QS[u])
        for u, l in QKV.items(): QS[u] = (QS[u][0] + l,) + QS[u][1:]
    return PRO, PRO2, QS
QKV = {11: ['K0'], 12: ['K1'], 14: ['V0'], 15: ['K2'], 16: ['V1', 'K3', 'V2', 'P0']}
def pf_wo(v): return [Item('M', f"buffer_load_dword v{vDUM}, v{v}, {sr(sWo)}, 0 offen", tag="dummy")]
def issue(name):
    if name == 'P0': return [V(f"v_accvgpr_read_b32 v1, a{aPARK + PARK.index(vPWO)}")] + pf_wo(1)
    k, i = name[0], int(name[1:])
    return dma_x(i) if k == 'X' else dma_w(i) if k == 'W' else dma_kv_static(k, i)
def check_sched(PRO, PRO2, QS):
    occ = {}; xread = {0: -1}; qbar = set(QBAR or range(1, 17)); when = {}
    for u, (e, xr, l) in QS.items():
        if xr is not None: xread[xr] = u
    def put(n, u, late):
        k, i = n[0], int(n[1:])
        if k == 'P': return
        for s in ([xpair(i), xpair(i) + 1] if k == 'X' else [wslot(i)] if k == 'W' else [kvslot(k, i)]):
            o = occ.get(s)
            if o:
                k2, i2 = o[0], int(o[1:])
                lb = max([b for b in qbar if b <= u] + [0])
                if k2 == 'W': assert i2 <= lb - 1, (n, u, o)
                elif k2 == 'X': assert xread[i2] < lb or (xread[i2] == u and late), (n, u, o)
                else: assert False, (n, u, o)
            occ[s] = n
    seq = []
    for n in PRO: put(n, -2, False); seq.append(n)
    for n in PRO2: put(n, -1.5, True); seq.append(n)
    for u in sorted(QS):
        e, xr, l = QS[u]
        for n in e: put(n, u, False); seq.append(n); when[n] = u
        for n in l: put(n, u, True); seq.append(n); when[n] = u
        if xr is not None: assert min(xr * 2, 20 - NDB) > u and (xr - NXB) * 2 + 1 < u, (xr, u)
    for i in range(1, 20): assert when.get(f'W{i}', -1) < max(b for b in qbar if b <= min(i, 16)), i
    assert when['K0'] < max(qbar)
    assert [n for n in seq if n[0] == 'W'] == [f"W{i}" for i in range(20)]
    assert [n for n in seq if n[0] == 'X'] == [f"X{i}" for i in range(10)]
    assert [n for n in seq if n[0] in 'KV'] == KVPRE[:1 + 2 * D0] and 'K0' not in QS[16][0]

def front(p, pool):
    assert NDB == 4
    PRO, PRO2, QS = get_sched()
    check_sched(PRO, PRO2, QS)
    q = Prog(); setup_rest(q)
    ntok = max(k for k, x in enumerate(q.cur) if x.kind == 'smem') + 1
    for n in PRO[1:]: flat(p, issue(n))
    p.cur += q.cur[:ntok]
    p.cur += stp('s2')
    setup_reads(p)
    for uu in range(4): p(f"v_add_u32 v{vVA+uu}, {wslot(0)*SLOT}, v{vVL+uu}")
    late = []
    for x in q.cur[ntok:]:
        if x.op in ('s_addc_u32', 'v_cndmask_b32'): late[-1].ins.append(x)
        else: late.append(Item('V' if x.kind == 'valu' else 'S', [x]))
    if not LATESET: flat(p, late); late = []
    p("WAITVM X0"); p.cur += stp('X0')
    flat(p, read_x(0))
    for n in PRO2: flat(p, issue(n))
    p(f"""
s_add_u32 s{sTK1}, s{sTK1}, {TOKC[0]}
s_addc_u32 s{sTK1+1}, s{sTK1+1}, {TOKC[1]}
s_add_u32 s{sTK2}, s{sTK2}, {TOKC[0]}
s_addc_u32 s{sTK2+1}, s{sTK2+1}, {TOKC[1]}
""")
    p("WAITVM W0\ns_waitcnt lgkmcnt(0)\ns_barrier"); p.cur += stp('u0')
    st = Stream()
    if late:
        chain(late, 0, LATEHI)
        for x in late: x.dense = True; x.target = 0
        st.add(late)
        kvset = [x for x in late if set(x.ins[0].dst) & {('v', vKD + 2)}][0]
    NU = 20 - NDB
    def wunit(u, db, va, imm, k):
        buf = pool.next()
        mf = [I(f"{MF} {vr(qacc(db,qb))}, {ar(buf)}, {ar(xfrag(u>>1,u&1,qb))}, {vr(qacc(db,qb)) if u else 0}") for qb in range(3)]
        return dict(reads=vunit_reads(buf, db, imm, va), mf=snake(mf, k))
    tiles = [[wunit(u, db, vVA if u % 2 == 0 else vVB, 0, db) for db in range(12)] for u in range(NU)]
    sa = {16: (vVA, 0), 17: (vVA, SLOT), 19: (vVA, 2 * SLOT), 18: (vVB, 0)} if LAYOUT == 0 else {u: (vVA, (u - 16) * SLOT) for u in range(16, 20)}
    sup = [wunit(u, db, sa[u][0], sa[u][1], k) for db in range(12) for k, u in enumerate((16, 17, 19, 18))]
    tiles.append(sup)
    qk0 = [qk_unit(pool, 0, kb, ds, True, 0, kb) for ds in range(6) for kb in range(2)]
    qk1 = qk_units(pool, 1, 2 * SLOT, zero=(0,))
    rs = rs_unit(0, zero=True)
    pv = pv_units(pool, 0, 2 * SLOT, zero=True)
    for tl in tiles + [qk0, qk1, [rs], pv]:
        for un in tl: st.add_unit(un)
    n = st.n() - 3 * T
    prevdma = None
    qbar = set(QBAR or range(1, NU + 1))
    assert 1 in qbar
    for u in range(NU + 1):
        g0 = 36 * u - 3 * T
        span = 36 if u < NU else 36 * NDB
        if u == 0:
            for un in tiles[0][:T]:
                for r in un['reads']: p(r)
            rd = st.reads(tiles[0][T:], 0, g0 + 36 - RGAP)
            bar = None; glo = 0
        else:
            if u in qbar:
                cover = min([b for b in qbar if b > u] + [20]) - 1
                bar = st.barrier(g0, [f"WAITVM W{cover}"] + (["WAITVM K0"] if u == max(qbar) else []) + ["s_waitcnt lgkmcnt(0)"] + stp(f"u{u}"))
                aft = [(bar, 0)]
            else:
                bar = None; aft = [(rd[-1], 0)]
                if stp(f"u{u}"): st.add([Item('S', stp(f"u{u}"), lo=g0, hi=g0 + 3)])
            if u == NU and LAYOUT == 0:
                vb = chain([V(f"v_add_u32 v{vVB+uu}, {wslot(18)*SLOT}, v{vVL+uu}") for uu in range(4)], g0 - 4, g0 + 1)
                vb[0].after.append((rd[-1], 1)); st.add(vb)
                for x in vb: x.hi = g0 + 4
            rd = st.reads(tiles[u], g0 + 1, g0 + span - (RGAP if (u + 1) in qbar and u < NU else 0), aft)
            if u == NU and LAYOUT == 0:
                for x in rd[6:8]: x.after.append((vb[-1], 1))
            glo = g0 + 2
        if u < NU:
            va = vVA if (u + 1) % 2 == 0 else vVB
            st.add(chain([V(f"v_add_u32 v{va+uu}, {wslot(u+1)*SLOT}, v{vVL+uu}") for uu in range(4)], glo + 6, g0 + 30))
        e, xr, l = QS[u]
        f1 = [g for nm in e for g in issue(nm)]
        nx = [g for nm in l for g in issue(nm)]
        seq = []
        if QWIN and u >= 14:
            for x in f1:
                if x.kind == 'M': x.ins = [I(f"s_waitcnt vmcnt({QWIN-1})")] + x.ins; x.needA = True
        if f1:
            chain(f1, glo, glo + (12 if u < NU else KVSPAN))
            if bar: f1[0].after.append((bar, 1))
            if late and 'K0' in e: f1[0].after.append((kvset, 1))
            if late and 'P0' in e: f1[0].after.append((late[-1], 1))
            seq += f1
        if xr is not None:
            rx = [S(f"WAITVM X{xr}")] + read_x(xr)
            chain(rx, g0 + 14, g0 + 22)
            seq += rx
            if nx: nx = [V(f"v_accvgpr_read_b32 v{vT0}, a{xfrag(xr,1,2)}", after=[(rx[-1], 4)])] + nx
        if nx:
            chain(nx, g0 + 24, g0 + 35); seq += nx
        for k in range(len(seq)):
            pvs = seq[k - 1] if k else prevdma
            if pvs is not None and not any(a is pvs for a, _ in seq[k].after): seq[k].after.append((pvs, 1))
            seq[k].hi = g0 + span + 14 if seq[k].kind != 'L' else g0 + 30
        if seq: prevdma = seq[-1]
        st.add(seq)
    wlast = rd[-1]
    assert oacc(12 - T, 0) == xfrag(4, 0, 0)
    st.add(chain([V(f"v_accvgpr_write_b32 a{oacc(12-T,0)+r}, 0") for r in range(12 * T)], 36 * 12 + 4, 36 * 16 - 20))
    cprev = None
    for s in range(6):
        its = []
        for qb in range(3):
            a, b, q = qacc(2 * s, qb), qacc(2 * s + 1, qb), qfrag(qb, s)
            its += [V(f"v_mul_f32 v{r}, s{sSC}, v{r}") for r in list(range(a, a + 4)) + list(range(b, b + 4))]
            its += [V(f"v_cvt_pk_bf16_f32 v{q+k}, v{r}, v{r+1}") for k, r in enumerate((a, a + 2, b, b + 2))]
        for qb in range(3):
            q = qfrag(qb, s)
            its += [V(f"v_permlane16_swap_b32 v{q}, v{q+2}"), V(f"v_permlane16_swap_b32 v{q+1}, v{q+3}")]
        lo = sup[8 * s + 7]['first'] + 5
        dl = qk0[2 * s]['first'] - 2 if s else qk0[0]['first'] - 2
        chain(its, lo, min(lo + 26, dl), 0)
        for x in its: x.hi = dl; x.dense = True; x.target = lo
        if cprev: its[0].after.append((cprev, 0))
        cprev = its[-1]; st.add(its)
    q0 = qk0[0]['first']
    kr0 = st.reads(qk0, q0 - 11, q0 + 14, [(wlast, 0)])
    gx = q0 + 20
    barx = st.barrier(gx, ["WAITVM V0", "s_waitcnt lgkmcnt(0)"] + stp('Qend'), after=[(kr0[-1], 1), (prevdma, 1)])
    kr1 = st.reads(qk1, gx + 1, qk1[0]['first'] + 18, [(barx, 0)])
    va = chain([V(f"v_mov_b32 v{vVA+u}, v{vVL+u}") for u in range(4)], q0, q0 + 20); va[0].after.append((wlast, 1)); st.add(va)
    for x in va: x.hi = qk1[6]['first']
    st.reads(pv, kr1[-1].target + 2, n - 12, [(kr1[-1], 0), (va[-1], 1)])
    dm = chain(kv_issue(), qk0[10]['first'], qk0[10]['first'] + 14) if not QWIN else spread_kv(kv_issue(), qk0[10]['first'], qk0[10]['first'] + 52)
    dm[0].after.append((barx, 1)); st.add(dm)
    for x in dm: x.hi = n - (8 if not QWIN else 4)
    lo = qk1[0]['first'] + 3; dl = qk1[6]['first'] - 2
    cols = [[V(t) for t in rowmax_text(0, qb, vR + qb, vR + 4 + qb)] for qb in range(3)]
    rm = [cols[qb][k] for k in range(10) for qb in range(3)]
    rm += [V(f"v_sub_f32 v{vNM+4*qb+r}, 0, v{vR+qb}") for r in range(4) for qb in range(3)]
    chain(rm, lo, dl, 0); st.add(rm)
    for x in rm: x.dense = True; x.target = lo
    st.add(softmax_items(0, 0, 12, lo + 10, rs['first'] - 2, pre=rm[32]))
    st.add(softmax_items(1, 0, SPLIT, pv[0]['first'] + 1, n - 1, pre=rm[-1]))
    up = wrap0(sRD, 4 * SLOT, 12 * SLOT) + [V(f"v_add_u32 v{vKA+u}, s{sRD}, v{vKL+u}") for u in range(2)]
    up[0].after += [(kr1[-1], 1), (dm[-1], 1)]
    st.add(chain(up, pv[0]['first'], n - 2))
    p.cur += st.emit(3 * T, name="front")
    return [dict(mf=u['mf']) for u in pv[12 - T:]]

def o_store(s):
    return [S(f"s_add_u32 s{sXOFF}, s{sKOFF}, {s*12288}")] + [
        Item('M', f"buffer_store_dwordx4 {bfrag(s,qb)}, v{vOL}, {sr(sWS)}, s{sXOFF} offen offset:{1024*qb} sc1", tag=f"OST{s>>1}") for qb in range(3)]
def o_conv(s, qb):
    t = 32 + 8 * ((s * 3 + qb) % 3); d = vQ + (s * 3 + qb) * 4
    its = [V(f"v_accvgpr_read_b32 v{t+4*h+r}, a{oacc(2*s+h,qb)+r}") for h in range(2) for r in range(4)]
    its += [V(f"v_mul_f32 v{t+r}, v{t+r}, v{vRCS[qb]}") for r in range(8)]
    its += [V(f"v_cvt_pk_bf16_f32 v{d+r}, v{t+2*r}, v{t+2*r+1}") for r in range(4)]
    return its

def check_items(cur, lo, hi):
    mx = V(f"v_max3_f32 v{vCK}, v{vL[cur]}, v{vL[cur]+4}, v{vL[cur]+8}", lo=min(lo, hi), hi=hi)
    return [mx, V(f"v_cmp_nge_f32 vcc, s{sLTHR}, v{vCK}", after=[(mx, 0)], hi=hi)]
def rare_head(p, cur):
    ret = p.newlabel("L_ret"); tr = p.newlabel("L_tramp")
    TRAMPS.append((tr, ret, cur))
    return L(f"s_cbranch_vccnz {tr}\n{ret}:")
def attention(p, pool, tail):
    def step(t_par, tail, mode, vm, extra=(), endi=(), final=False):
        cur, nxt = t_par, t_par ^ 1
        imm = 0 if t_par else 2 * SLOT
        st = Stream(tail)
        qk = qk_units(pool, nxt, imm)
        pv = pv_units(pool, cur, imm)
        rs = rs_unit(cur)
        pv[0]['head'] = rare_head(p, cur)
        for u in qk[:9] + [rs] + qk[9:] + pv: st.add_unit(u)
        n = st.n() - 3 * T
        bar = st.barrier(0, [f"s_waitcnt vmcnt({vm}) lgkmcnt(0)"])
        kr = st.reads(qk, 1, 33 if not final else 28, [(bar, 0)])
        aft = [(bar, 0), (kr[-1], 0)]
        if t_par:
            va = chain([V(f"v_add_u32 v{vVA+u}, s{sRD}, v{vVL+u}") for u in range(4)], 0, 20)
            st.add(va); aft.append((va[-1], 1))
        vrd = st.reads(pv, kr[-1].target + 2, n - (12 if not final else 20), aft)
        if final:
            up = wrap0(sRD, 4 * SLOT, 12 * SLOT) + [V(f"v_add_u32 v{vVA+u}, s{sRD}, v{vVL+u}") for u in range(4)]
            up[2].after.append((vrd[-1], 1))
            st.add(chain(up, n - 24, n - 1))
        elif not t_par:
            up = wrap0(sRD, 4 * SLOT, 12 * SLOT) + [V(f"v_add_u32 v{vKA+u}, s{sRD}, v{vKL+u}") for u in range(2)]
            up[0].after += [(kr[-1], 1)]
            st.add(chain(up, rs['first'], n - 4))
        dm = []
        if mode == 'A':
            dm = chain(kv_issue(), 2, DMAHI) if not WIN else spread_kv(kv_issue(), 2, WHI)
            for x in dm: x.hi = n - (8 if not WIN else 4)
        if extra:
            fx = [x for x in extra if getattr(x, 'fixed', False)]; fr = [x for x in extra if not getattr(x, 'fixed', False)]
            if fr:
                chain(fr, DMAHI + 2 if fx else 2, 68 if fx else (56 if not final else 30))
                if fx: fr[0].after.append((fx[-1], 1))
            dm = fx + fr
            for x in dm: x.hi = n - 1
        if dm: dm[0].after.append((bar, 1))
        st.add(dm)
        st.add(softmax_items(cur, SPLIT, 12, 0, rs['first'] - 2))
        pf = pv[0]['first']
        st.add(check_items(cur, rs['first'] + 6, pf - 1))
        st.add(softmax_items(nxt, 0, SPLIT if not final else SP30, pf + (1 if not final else 0), n - 1))
        if endi: st.add(chain(list(endi), n - 3, n - 1, 0))
        return st.emit(3 * T, name=mode), [dict(mf=u['mf']) for u in pv[12 - T:]]
    txt = lambda tl: [[i.text for i in u['mf']] for u in tl]
    global WIN
    VMA = VMLIM if not WIN else 6 * (D0 - 1)
    tr = []
    if TRACE: tr = L(f"s_memrealtime s[84:85]\ns_waitcnt lgkmcnt(0)\ns_mov_b32 m0, s{sT}\nv_writelane_b32 v174, s84, m0")
    global WHI
    for k, (tend, w, wh) in enumerate(LOOPS or [(27, WIN, WHI)]):
        WIN = w; WHI = wh
        lp = f"L_attA{k}"
        b1, tail1 = step(1, tail, 'A', VMA)
        b2, tail2 = step(0, tail1, 'A', VMA, endi=[S(f"s_add_u32 s{sT}, s{sT}, 2"), S(f"s_cmp_lt_u32 s{sT}, {tend}")])
        assert txt(tail2) == txt(tail) and VMLIM <= 6 * (D0 - 1) and tend % 2 == 1
        p.loop(L(f"{lp}:") + [I(x.text) for x in tr] + b1 + b2 + L(f"s_cbranch_scc1 {lp}"))
    assert tend == 27
    if TRACE:
        p(f"s_add_u32 s96, s90, {STAMP_OFF + 65536}\ns_addc_u32 s97, s91, 0"); srd(p, 84, 96, 1 << 20)
        p(f"s_lshl_b32 s{sTMP}, s2, 2\ns_add_u32 s{sTMP}, s{sTMP}, s{sWAVE}\ns_lshl_b32 s{sTMP}, s{sTMP}, 9\nv_lshlrev_b32 v{vT0}, 3, v0")
        p(f"buffer_store_dwordx2 v[174:175], v{vT0}, s[84:87], s{sTMP} offen")
    p.cur += stp('Lend')
    p("L_att27:")
    cnt = lambda its: sum(1 for x in its if x.kind == 'M')
    log = [pr for pr in range(27, 27 + D0) for _ in range(6)]
    nxt = 27 + D0
    tl = tail
    for t in range(27, 31):
        vm = len(log) - 1 - max(k for k, x in enumerate(log) if x == t)
        lastkv = max(k for k, x in enumerate(log) if x >= 0)
        if not WIN and 'kv' in PLAN[t]: vm = min(vm, VMLIM + len(log) - 1 - lastkv)
        ex = []
        for a in PLAN[t]:
            if a in ('kv', 'KV'): its = kv_issue(nok=(nxt == 31)); log += [nxt] * cnt(its); nxt += 1
            else:
                if a == 'r': its = [V(f"v_accvgpr_read_b32 v{r}, a{aPARK+k}") for k, r in enumerate(PARK)]
                elif a == 'p': its = pf_wo(vPWO)
                elif a == 't':
                    its = [S(f"s_mul_i32 s{sTMP+2}, s{sHL}, 73728"), Item('M', f"buffer_load_dword v{vDUM}, v{vOL}, {sr(sWS)}, s{sTMP+2} offen sc1", tag="dummy"),
                           S(f"s_mul_i32 s{sTMP+2}, s{sHG}, 15360"), Item('M', f"buffer_load_dword v{vDUM}, v{vPT}, {sr(sWS)}, s{sTMP+2} offen sc1", tag="dummy")]
                elif a == 'u':
                    its = [Item('M', f"buffer_load_dword v{vDUM}, v{vOUT}, {sr(sOUT)}, 0 offen sc1", tag="dummy")]
                elif a == 'l': its = [Item('M', f"buffer_load_dword v{vDUM}, v{vF1}, {sr(sWS)}, 0 offen offset:128 sc1", tag="dummy")]
                else:
                    assert t >= {0: 28, 1: 28, 2: 29, 3: 29, 4: 30, 5: 31, 6: 31}[a]
                    its = dma_wo(a)
                log += [-1] * cnt(its)
            if a == 'kv':
                if WIN:
                    sv = WIN; WIN = TWIN or WIN
                    spread_kv(its, 2, 62 if len(PLAN[t]) == 1 or cnt(its) == 3 else 40); WIN = sv
                else: chain(its, 2, DMAHI)
                for x in its: x.fixed = True
            ex += its
        ins, tl = step(t & 1, tl, 'P', min(vm, 63), ex, final=(t == 30)); p.cur += ins
    assert nxt == 32
    return tl, len(log) - 1 - max(k for k, x in enumerate(log) if x == 31)

def set_flag(vfl, sidx, off=0, local=False, vt=None):
    vt = vt or vTK
    st = f"buffer_store_dwordx2 v[{vt}:{vt+1}], v{vfl}, {sr(sWS)}, 0 offen offset:"
    return L(f"s_lshl_b64 exec, 1, s{sidx}\n" + (f"{st}{off+128}\n" if local else "") + f"{st}{off} sc1\ns_mov_b64 exec, -1")
def spin(name, voff, tk, off):
    one = lambda o: f"""buffer_load_dwordx2 v[{vFLV}:{vFLV+1}], v{voff}, {sr(sWS)}, 0 offen offset:{o} sc1
s_waitcnt vmcnt(0)
v_cmp_ne_u64 vcc, s[{tk}:{tk+1}], v[{vFLV}:{vFLV+1}]
s_cbranch_vccz L_spinr{name}
"""
    OUTL.append(f"""L_spin{name}:
s_mov_b32 s{sTMP}, 0x10000
L_poll{name}:
""" + (one(off + 128) * NLOC if LOCAL else "") + one(off) + f"""s_sub_u32 s{sTMP}, s{sTMP}, 1
s_cmp_lg_u32 s{sTMP}, 0
s_cbranch_scc1 L_poll{name}
s_branch L_spinr{name}
""")
def bump_epoch(p, voff, tk, sidx, off):
    ne = p.newlabel("L_ne")
    p(f"s_cmp_lg_u32 s{sidx}, 0\ns_cbranch_scc1 {ne}\nv_mov_b32 v{vFLV}, s{tk}\nv_mov_b32 v{vFLV+1}, s{tk+1}\ns_mov_b64 exec, 1")
    p.flush()
    p.raw(f"buffer_store_dwordx2 v[{vFLV}:{vFLV+1}], v{voff}, {sr(sWS)}, 0 offen offset:{off} sc1")
    p(f"s_mov_b64 exec, -1\ns_nop 1\n{ne}:")
def load_g(G):
    i, c = gic(G)
    g = [S(f"s_add_u32 s{sXOFF}, s{sHI+i}, {c}"), S(f"s_mul_i32 s{sXOFF}, s{sXOFF}, 24576")]
    for ks in range(2):
        if ks: g.append(S(f"s_add_u32 s{sXOFF}, s{sXOFF}, 12288"))
        g += [Item('M', f"buffer_load_dwordx4 {bfrag(2*G+ks,qb)}, v{vOL}, {sr(sWS)}, s{sXOFF} offen offset:{1024*qb} sc1") for qb in range(3)]
    return g

def oproj(p, pool, tail, vm31):
    NEXTG = max(a for v in PLAN.values() for a in v if isinstance(a, int)) + 1
    st = Stream(tail[:2])
    rs = rs_unit(1); st.add_unit(rs)
    for u in tail[2:]: st.add_unit(u)
    apv = pv_units(pool, 1, 0)
    apv[0]['head'] = rare_head(p, 1)
    for u in apv: st.add_unit(u)
    Z = st.n()
    def unit(G, ks, nb, va, imm):
        u = 2 * G + ks; pb = pool.next(); a = va + (nb & 1)
        rd = [f"ds_read_b64_tr_b16 {ar(pb,2)}, v{a} offset:{imm+ks*10240+nb*32}", f"ds_read_b64_tr_b16 {ar(pb+2,2)}, v{a} offset:{imm+ks*10240+nb*32+5120}"]
        mf = [I(f"{MF} {vr(cacc(nb,qb))}, {ar(pb)}, {bfrag(u,qb)}, {vr(cacc(nb,qb)) if u else 0}") for qb in range(3)]
        return dict(reads=rd, mf=snake(mf, pool.n))
    def seta(va, off): return [V(f"v_add_u32 v{va+k}, {off}, v{vWOL+k}") for k in range(2)]
    NG = 6
    assert GS >= 4
    def un2(G, ks, nb): return unit(G, ks, nb, vWA[2 + (G - NG) // 3], ((G - NG) % 3) * GSZ) if G >= NG else unit(G, ks, nb, vWA[G & 1], 0)
    assert all(goff(G + 1) == goff(G) + GSZ for G in range(NG, 11))
    U = [[unit(G, ks, nb, vWA[G & 1], 0) for ks in range(2) for nb in range(6 if G >= GS else 10)] for G in range(NG)]
    NL = 12 - NBA
    A = [[un2(G, ks, nb) for ks in range(2) for nb in range(6 if G >= GS else 10)] for G in range(6, NL)]
    F = [[un2(G, ks, nb) for G in range(NL if nb < 6 else GS, 12) for ks in range(2)] for nb in range(10)]
    tiles = U + A + [[u for nb in range(10) for u in F[nb]]]
    if ST: U[0][0]['head'] = stp('Aend')
    for tl in tiles:
        for u in tl: st.add_unit(u)
    bar0 = st.barrier(0, ["WAITVM G0", f"s_waitcnt vmcnt({vm31}) lgkmcnt(0)"])
    pf = apv[0]['first']
    vrd = st.reads(apv, 1, pf + 14, [(bar0, 0)])
    st.add(softmax_items(1, SP30, 12, 0, rs['first'] - 1))
    st.add(check_items(1, rs['first'] + 5, pf - 1))
    sa0 = chain(seta(vWA[0], goff(0)) + [V(f"v_mov_b32 v{vTK}, s{sTK1}"), V(f"v_mov_b32 v{vTK+1}, s{sTK1+1}")], rs['first'], pf - 1); st.add(sa0)
    for x in sa0: x.hi = pf + 12
    rc = chain([S(f"s_mul_i32 s{sKOFF}, s{sHL}, 73728"), S(f"s_mul_i32 s{sT}, s{sHG}, 15360")] + [Item('E', f"v_rcp_f32 v{vRCS[qb]}, v{vL[1]+4*qb}") for qb in range(3)], pf, pf + 6)
    for x in rc: x.hi = pf + 10
    st.add(rc)
    mem = []
    def addmem(its, lo, hi, after=None):
        chain(its, lo, hi)
        for x in its: x.hi = 10 ** 9
        if after: its[0].after.append(after)
        if mem: its[0].after.append((mem[-1], 1))
        mem.extend(its); st.add(its)
    wit = {}
    for k, G in enumerate(PRE31):
        addmem(dma_wo(G), 4 + 10 * k, 12 + 10 * k, (bar0, 1)); wit[G] = mem[-1]
        for x in mem: x.hi = pf + 9
    prev = rc[-1]; conv = {}
    for sx in range(6):
        stv = o_store(sx)
        for qb in range(3):
            its = o_conv(sx, qb)
            lo = min(apv[2 * sx + 1]['first'] + 6, Z + 2)
            if sx < NEO:
                k = sx * 3 + qb; a = apv[1]['first'] + 6
                dl = max(lo, a + (Z - 3 - a) * (k + 1) // (3 * NEO))
            else: dl = min(Z + 30 * sx - 3, Z + CDL * (3 * (sx - NEO) + qb + 1))
            chain(its, lo, dl, 0)
            for x in its: x.dense = True; x.target = lo
            its[0].after.append((prev, 1 if prev.kind != 'V' else 0)); prev = its[-1]; st.add(its)
            conv[sx, qb] = its[-1]
            if sx < NEO:
                o = ([stv[0]] if qb == 0 else []) + [stv[1 + qb]]
                o[-1].after.append((its[-1], 1)); addmem(o, lo, dl + 1)
                for x in o: x.hi = dl + 1
                o[-1].target = dl + 1
    st.add(chain(seta(vWA[2], goff(6)) + seta(vWA[3], goff(9)) + [V(f"v_mov_b32 v{vTK2}, s{sTK2}"), V(f"v_mov_b32 v{vTK2+1}, s{sTK2+1}"),
        S(f"s_cmp_ge_u32 s{sJ}, 4\ns_cselect_b32 s{sTMP+2}, 8, 0"), S(f"s_cmp_eq_u32 s{sJ}, 0\ns_cselect_b32 s{sTMP+2}, -8, s{sTMP+2}" if TRI else f"s_mov_b32 s{sTMP+2}, 8"),
        V(f"v_and_b32 v{vF2R}, 8, v0"), V(f"v_mul_i32_i24 v{vF2R}, s{sTMP+2}, v{vF2R}"), V(f"v_add_u32 v{vF2R}, v{vF2R}, v{vF2}")], Z + 180, Z + 280))
    bars = {0: bar0}
    for k, tl in enumerate(tiles):
        g0 = tl[0]['first'] - 3 * T
        last = tiles[k + 1][0]['first'] - 3 * T - (RGAP if k < 4 else 0) if k + 1 < len(tiles) else st.n() - 14
        if k == 0: rdl = st.reads(U[0], g0 + 1, last, [(vrd[-1], 0), (sa0[1], 1)])
        else:
            bars[k] = st.barrier(g0, [f"WAITVM G{k if k < NL else 11}"] + (["s_waitcnt lgkmcnt(0)"] if k <= 4 else []) + stp(f"G{k}"))
            rdl = st.reads(tl, g0 + 1, last, [(bars[k], 0), (rdl[-1], 0)])
        if k + 1 < NG: st.add(chain(seta(vWA[(k + 1) & 1], goff(k + 1)), g0 + 14, g0 + 30))
    pv = {0: 2, 1: 4, 2: 8}
    for pos, act in OCH:
        k, n = act[0], int(act[1:]); pos += Z
        if k == 'W':
            if n >= NEXTG and n not in wit:
                addmem(dma_wo(n), pos, pos + SPW, (bars[0 if n < 7 else max(n - 7, 1)], 1)); wit[n] = mem[-1]
        elif k == 'F': addmem([Item('M', [I(f"WAITVM OST{n}")] + stp(f"F{n}") + set_flag(vF1, sHL, 32 * n, LOCAL))], pos, pos)
        elif k == 'P': addmem([Item('M', f"buffer_load_dwordx2 v[{pv[n]}:{pv[n]+1}], v{vF1}, {sr(sWS)}, 0 offen offset:{32*n + (128 if LOCAL else 0)} sc1")], pos, pos)
        elif k == 'C':
            addmem([V(f"v_cmp_ne_u64 vcc, s[{sTK1}:{sTK1+1}], v[{pv[n]}:{pv[n]+1}]")], pos, pos)
            addmem([Item('S', stp(f"C{n}a") + L(f"s_cbranch_vccnz L_spin{n}\nL_spinr{n}:") + stp(f"C{n}b"))], pos + 3, pos + 3)
            spin(n, vF1, sTK1, 32 * n)
        elif k == 'B': addmem([x for G in range(3 + 3 * n, 6 + 3 * n) for x in load_g(G)], pos, pos + 40)
        elif k == 'b': addmem(load_g(n), pos, pos + SPW, (conv[5, 2], 1) if n >= 6 else (conv[0, 2], 1))
        elif k == 'S':
            assert n >= NEO
            o = o_store(n)
            for qb in range(3): o[1 + qb].after.append((conv[n, qb], 1))
            addmem(o, pos, pos + 6)
    def gran(m, qb, k):
        t = vQ + 12 * (k % 4); j = m * 3 + qb
        its = [V(f"v_cvt_pk_bf16_f32 v{t+8+r}, v{cacc(2*m+(r>>1),qb)+2*(r&1)}, v{cacc(2*m+(r>>1),qb)+2*(r&1)+1}") for r in range(4)]
        if j % 4 == 0: its.append(S(f"s_add_u32 s{sTMP+1}, s{sT}, {j*1024}"))
        so = sTMP + 1; post = []
        if OWN:
            so = sTMP + 3
            if OWN == 2:
                its.append(S(f"s_cmp_eq_u32 s{sJ}, {j&7}\ns_cselect_b32 s{so}, {OOB}, s{sTMP+1}\ns_cselect_b64 s[96:97], -1, 0"))
                post = [V(f"v_cndmask_b32 v{40+8*(j>>3)+4*h+r}, v{40+8*(j>>3)+4*h+r}, v{cacc(2*m+h,qb)+r}, s[96:97]") for h in range(2) for r in range(4)]
            else:
                its.append(S(f"s_cmp_eq_u32 s{sJ}, {j&7}\ns_cselect_b32 s{so}, {OOB}, s{sTMP+1}\ns_cbranch_scc1 L_own{j}\nL_ownr{j}:"))
                OUTL.append(f"L_own{j}:\n" + "".join(f"v_mov_b32 v{40+8*(j>>3)+4*h+r}, v{cacc(2*m+h,qb)+r}\n" for h in range(2) for r in range(4)) + f"s_branch L_ownr{j}\n")
        its.append(Item('M', f"buffer_store_dwordx4 {vr(t+8)}, v{vPT}, {sr(sWS)}, s{so} offen offset:{(j%4)*1024} sc1", tag="PA" if m < 3 else f"P{m}"))
        if m == 4 and post: return its, [S(f"s_cmp_eq_u32 s{sJ}, {j&7}\ns_cselect_b64 s[96:97], -1, 0")] + post
        return its + post
    k = 0
    for m in range(4):
        its = []
        for qb in range(3): its += gran(m, qb, k); k += 1
        lo = F[2 * m + 2][0]['first'] + 4
        fa = [Item('M', [I("WAITVM PA")] + stp('FA') + set_flag(vF2, sHG, 0, vt=vTK2))]
        fp = min(F[6][0]['first'] + FAPOS, st.n() - 1)
        if m == 3 and fp <= lo: addmem(fa, fp, fp)
        addmem(its, lo, lo + (14 if OWN != 2 else 20))
        if m == 3 and fp > lo: addmem(fa, fp, fp)
    if EARLY: addmem([Item('M', f"buffer_load_dwordx2 v[4:5], v{vF2R}, {sr(sWS)}, 0 offen sc1")], st.n() - EARLY, st.n() - EARLY)
    p.cur += st.emit(name="oproj")
    for it in mem:
        if it.kind == 'M' and it.ins[0].op == 'buffer_load_dwordx4' and it.ins[0].dst:
            d = set(it.ins[0].dst)
            assert it.gap < min(g for g, (h, m) in enumerate(st.mf) if g >= Z and d & set(m.srcAB)), it.ins[0].text
    for n, it in wit.items(): assert it.gap < bars[min(n, NL)].gap - 1, n
    assert set(wit) | set(range(NEXTG)) == set(range(12))
    p.cur += stp('E')
    if OWN == 2:
        gs = [gran(4, qb, k + qb) for qb in range(3)]
        for a, b in gs: flat(p, a)
        return [x for a, b in gs for x in b]
    for qb in range(3): flat(p, gran(4, qb, k)); k += 1
    return []

def final_reduce(p, rest):
    sDONE, sNEW, sO2, sOWNB, sOOB = sKK, sWR, sRD, sWOFF, sXOFF
    ld = f"buffer_load_dwordx2 v[{vFLV}:{vFLV+1}], v{vF2R}, {sr(sWS)}, 0 offen sc1"
    if TRI: p("WAITVM P3"); p.cur += set_flag(vF2, sHG, 64, vt=vTK2)
    p(f"""
{ld if not EARLY else ""}
s_lshl_b32 s{sTMP}, s{sJ}, 10
v_add_u32 v2, s{sTMP}, v{vPT}
s_cmp_eq_u32 s{sJ}, 7
s_cselect_b32 s{sO2}, {OOB}, 0
s_cselect_b32 s{sDONE}, 0xff00, 0
s_mov_b32 s{sT}, 0xffff0000
s_lshl_b32 s{sOWNB}, 0x101, s{sHG}
s_mov_b32 s{sOOB}, {OOB}
s_mov_b32 s{sTMP}, 0x20000
""")
    flat(p, rest)
    if EARLY:
        p(f"v_cmp_eq_u64 vcc, s[{sTK2}:{sTK2+1}], v[4:5]\ns_nop 4\ns_and_b32 s{sNEW}, vcc_lo, 0xff\ns_andn2_b32 s{sNEW}, s{sNEW}, s{sOWNB}\ns_or_b32 s{sDONE}, s{sDONE}, s{sNEW}")
        for g in range(8):
            p(f"s_bitcmp1_b32 s{sNEW}, {g}\ns_cselect_b32 s{sTMP+1}, {g*15360}, s{sOOB}\nbuffer_load_dwordx4 {vr(56+g*4)}, v2, {sr(sWS)}, s{sTMP+1} offen sc1")
    p("WAITVM P4")
    p.cur += set_flag(vF2, sHG, 128, vt=vTK2); p.cur += stp('ACK')
    if not EARLY: p("s_waitcnt vmcnt(1)\ns_branch L_fin2")
    p.flush()
    t = f"""L_fin:
{ld}
s_waitcnt vmcnt(0)
L_fin2:
v_cmp_eq_u64 vcc, s[{sTK2}:{sTK2+1}], v[{vFLV}:{vFLV+1}]
s_nop 4
s_and_b32 s{sNEW}, vcc_lo, 0xffff
{"s_or_b32 s%d, s%d, s%d" % (sNEW, sNEW, sOWNB) if OWN else ""}
s_andn2_b32 s{sNEW}, s{sNEW}, s{sDONE}
{"s_cbranch_scc0 L_fnone" if QUICK else ""}
s_or_b32 s{sDONE}, s{sDONE}, s{sNEW}
{"s_and_b32 s%d, s%d, 0xff" % (sTMP+1, sNEW) if QUICK else ""}
{"s_cbranch_scc0 L_fs7" if QUICK else ""}
"""
    for g in range(16):
        t += f"""s_bitcmp0_b32 s{sNEW}, {g}
s_cbranch_scc1 L_fs{g}
s_cmp_eq_u32 s{sHG}, {g%8 if OWN else 99}
s_cselect_b32 s{sTMP+1}, s{sOOB}, {(g%8)*15360 + (g//8)*8192}
buffer_load_dwordx4 {vr(56+g*4)}, v2, {sr(sWS)}, s{sTMP+1} offen sc1
L_fs{g}:
"""
    t += f"""s_cmp_eq_u32 s{sDONE}, 0xffff
s_cbranch_scc1 L_find
L_fnone:
s_sub_u32 s{sTMP}, s{sTMP}, 1
s_cmp_lg_u32 s{sTMP}, 0
s_cbranch_scc1 L_fin
L_find:"""
    p.raw(t)
    p.cur += stp('P2')
    for i in range(2):
        p(f"""
s_add_u32 s{sTMP}, s{sJ}, {8*i}
s_mul_i32 s{sTMP+1}, s{sTMP}, 11
s_lshr_b32 s{sTMP+1}, s{sTMP+1}, 5
s_mul_i32 s{sTMP+3}, s{sTMP+1}, 3
s_sub_u32 s{sTMP+3}, s{sTMP}, s{sTMP+3}
s_mul_i32 s{sTMP+3}, s{sTMP+3}, {16*1280}
s_lshl_b32 s{sTMP+1}, s{sTMP+1}, 6
s_add_u32 s{sTMP+4+i}, s{sTMP+1}, s{sTMP+3}
""")
    p(f"s_add_u32 s{sTMP+5}, s{sTMP+5}, s{sO2}\ns_and_b32 s{sNEW}, s{sNEW}, 0xff\ns_cbranch_scc0 L_fa\ns_waitcnt vmcnt(0)\nL_fa:")
    for i in range(2):
        acc = 40 + i * 8
        if i: p("s_waitcnt vmcnt(1)")
        for g in range(8):
            b = 56 + (i * 8 + g) * 4
            for r in range(4):
                d = acc if g == 0 and not OWN else 120
                p(f"v_lshlrev_b32 v{d+2*r}, 16, v{b+r}\nv_and_b32 v{d+1+2*r}, s{sT}, v{b+r}")
            if g or OWN:
                for r in range(8): p(f"v_add_f32 v{acc+r}, v{acc+r}, v{120+r}")
        o = 132 + 4 * i
        for r in range(4): p(f"v_cvt_pk_bf16_f32 v{o+r}, v{acc+2*r}, v{acc+2*r+1}")
        p(f"v_permlane16_swap_b32 v{o}, v{o+2}\nv_permlane16_swap_b32 v{o+1}, v{o+3}")
        p(f"buffer_store_dwordx4 {vr(o)}, v{vOUT}, {sr(sOUT)}, s{sTMP+4+i} offen")
    bump_epoch(p, vF1, sTK1, sHL, 96)
    bump_epoch(p, vF2, sTK2, sHG, 192)

def store_stamps(p):
    if not ST: return
    p("s_waitcnt vmcnt(0)"); p.cur += stp('end')
    lab = p.newlabel("L_nost")
    if AMP:
        a, b = sSTAMP + 2 * ST[AMP[0]], sSTAMP + 2 * ST[AMP[1]]; e = sSTAMP + 2 * ST['end']
        p(f"""s_waitcnt lgkmcnt(0)
s_cmp_lg_u32 s2, 100
s_cbranch_scc1 {lab}
s_sub_u32 s{sTMP}, s{b}, s{a}
s_lshl_b32 s{sTMP}, s{sTMP}, 3
s_min_u32 s{sTMP}, s{sTMP}, 100000
L_amp:
s_memrealtime s[96:97]
s_waitcnt lgkmcnt(0)
s_sub_u32 s{sTMP+1}, s96, s{e}
s_cmp_lt_u32 s{sTMP+1}, s{sTMP}
s_cbranch_scc1 L_amp
{lab}:""")
        return
    if DBGST is not None:
        p("s_load_dwordx2 s[96:97], s[0:1], 48\ns_waitcnt lgkmcnt(0)"); srd(p, sK, 96, 256)
        p(f"s_cmp_lg_u32 s{sWAVE}, 0\ns_cbranch_scc1 {lab}\ns_cmp_lg_u32 s2, {DBGST}\ns_cbranch_scc1 {lab}")
        p("s_mov_b64 exec, 1\nv_mov_b32 v2, 0")
        for i in range(NSTAMP):
            p(f"s_sub_u32 s{sTMP}, s{sSTAMP+2*i}, s{sSTAMP}\nv_mov_b32 v4, s{sTMP}\nbuffer_store_dword v4, v2, {sr(sK)}, 0 offen offset:{4*i}\ns_nop 1")
        p(f"s_waitcnt vmcnt(0)\n{lab}:")
        return
    p(f"s_add_u32 s96, s90, {STAMP_OFF}\ns_addc_u32 s97, s91, 0"); srd(p, sK, 96, 65536)
    p("s_waitcnt lgkmcnt(0)")
    p(f"s_cmp_lg_u32 s{sWAVE}, 0\ns_cbranch_scc1 {lab}")
    p(f"s_lshl_b32 s{sTMP}, s2, 7\nv_mov_b32 v2, s{sTMP}\ns_mov_b64 exec, 1")
    for i, r in enumerate([sSTAMP + 2 * i for i in range(NSTAMP)] + list(CST.values())):
        p(f"v_mov_b32 v4, s{r}\nv_mov_b32 v5, s{r+1}\nbuffer_store_dwordx2 v[4:5], v2, {sr(sK)}, 0 offen offset:{8*i}\ns_nop 1")
    p(f"s_waitcnt vmcnt(0)\n{lab}:")

def kernel(p):
    name = NAME + "_kernel"
    p.raw(f".globl {name}\n.p2align 8\n.type {name},@function\n{name}:")
    p("s_cmp_ge_u32 s2, 256\ns_cbranch_scc1 L_end")
    p.cur += stp('start')
    p(f"""
s_load_dwordx8 s[76:83], s[0:1], 0
s_load_dwordx8 s[84:91], s[0:1], 32
v_lshrrev_b32 v1, 6, v0
v_and_b32 v0, 63, v0
v_readfirstlane_b32 s{sWAVE}, v1
""")
    if CODEPF:
        p(f"""
s_getpc_b64 s[98:99]
s_lshr_b32 s{sTMP+1}, s2, 3
s_mul_i32 s{sTMP+1}, s{sTMP+1}, {13*128}
v_mul_u32_u24 v252, 3, v1
v_add_lshl_u32 v252, v252, v0, 7
v_add_u32 v252, s{sTMP+1}, v252
v_mov_b32 v253, s99
v_add_co_u32 v252, vcc, s98, v252
v_addc_co_u32 v253, vcc, 0, v253, vcc
s_mov_b64 exec, 15
global_load_dword v{vDUM}, v[252:253], off
s_mov_b64 exec, -1
""", "dummy")
    tab = sum((((k % PH) * (10 - COMMON) + PH // 2) // PH) << (4 * k) for k in range(11))
    p(f"""
s_and_b32 s{sHG}, s2, 7
s_lshr_b32 s{sB}, s2, 5
s_bfe_u32 s{sHL}, s2, 0x20003
s_mul_i32 s{sM0W}, s{sWAVE}, 3072
s_add_u32 s{sTMP+1}, s{sB}, s{sHL}
s_lshl_b32 s{sTMP+1}, s{sTMP+1}, 2
s_mov_b32 s96, {tab & 0xffffffff}
s_mov_b32 s97, {tab >> 32}
s_lshr_b64 s[96:97], s[96:97], s{sTMP+1}
s_and_b32 s{sTMP+1}, s96, 15
{"s_and_b32 s96, s%d, %d" % (sHG, XROT) if XROT else ""}
{"s_add_u32 s%d, s%d, s96" % (sTMP+1, sTMP+1) if XROT else ""}
{"s_cmp_ge_u32 s%d, 10" % (sTMP+1) if XROT else ""}
{"s_cselect_b32 s96, 10, 0" if XROT else ""}
{"s_sub_u32 s%d, s%d, s96" % (sTMP+1, sTMP+1) if XROT else ""}
s_lshl_b32 s{sXOFF}, s{sTMP+1}, 7
s_mul_i32 s{sWOFF}, s{sTMP+1}, {64*12288}
""")
    if COMMON: p(f"s_mov_b32 s{sRD}, s{sTMP+1}\ns_mov_b32 s{sXOFF}, {(10-COMMON)*128}\ns_mov_b32 s{sWOFF}, {(10-COMMON)*64*12288}")
    if KSTAG: p(f"s_mul_i32 s{sKK}, s2, 11\ns_add_u32 s{sKK}, s{sKK}, s{sB}\ns_and_b32 s{sKK}, s{sKK}, 31\ns_mul_i32 s{sKK}, s{sKK}, {KG*384}")
    else: p(f"s_mov_b32 s{sKK}, 0")
    p(f"s_mov_b32 s{sKOFF}, s{sKK}")
    setup_first(p)
    if not XFIRST:
        p.cur += stp('s0')
        srd(p, sX, 76, 1536 * 1280); p.cur += stp('s1')
    srd(p, sWq, 82, 640 * 12288)
    pool = Pool(12)
    tail = front(p, pool)
    if not QONLY:
        tail, vm31 = attention(p, pool, tail)
        rest = oproj(p, pool, tail, vm31)
        final_reduce(p, rest)
    store_stamps(p)
    p("L_end:\ns_endpgm")
    for t in OUTL: p.raw(t)
    for tr, ret, cur in TRAMPS: p.raw(f"{tr}:\ns_call_b64 s[98:99], L_rare{cur}\ns_branch {ret}")
    rare_path(p, "L_rare0", 0)
    rare_path(p, "L_rare1", 1)
    p.raw(".fill 64, 4, 0xbf800000" if not QONLY else ".fill 12288, 4, 0xbf800000")
    return kernel_desc(name, vgpr=512, accum=256)

def build(path):
    p = Prog()
    p.raw("""; GQA block (q-projection, attention over the cached K/V, out-projection) for gfx950 in one fused kernel.
; @launch grid=(256,1,1) block=(256,1,1) lds=163840
.amdgcn_target "amdgcn-amd-amdhsa--gfx950"
.text""")
    d = kernel(p)
    p.raw('.section .rodata,"a"\n.p2align 6\n' + d)
    txt = p.text()
    if LLFIX == 1: txt = fix_ll(txt)
    if NODMA:
        txt = "\n".join(l for l in txt.split("\n") if not (l.startswith("buffer_load_dwordx4")))
        txt = txt.replace("s_cbranch_vccnz L_tramp", "s_cbranch_execz L_tramp")
    if ST: txt = txt.replace(".amdgcn_target", "; stamps " + repr(ST) + "\n.amdgcn_target", 1)
    open(path, "w").write(txt)
    if VERB:
        import collections
        print(collections.Counter(w.split(':')[0] for w in WARN))
        if VERB > 1:
            for w in WARN: print("WARN", w)
        ls = txt.split("\n")
        marks = [k for k, l in enumerate(ls) if l.endswith(":") and not l.startswith("L_ret")]
        for a, b in zip(marks, marks[1:] + [len(ls)]):
            seg = [l for l in ls[a:b] if l and not l.startswith(".") and not l.startswith(" ")]
            c, nm = estimate(seg)
            if nm: print(f"{ls[a][:28]:28s} est {c:6d} cyc, mfma {nm:4d} ({16*nm})")

STD = {'start': 0, 'X0': 1, 'u8': 2, 'u16': 3, 'E': 4, 'Qend': 5, 'Lend': 6, 'Aend': 7, 'C0b': 8, 'G6': 9, 'ACK': 10, 'end': 11}
if __name__ == "__main__":
    for a in sys.argv[2:]:
        k, v = a.split("=", 1)
        globals()[k] = eval(v)
    build(sys.argv[1])
```
